```python
import torch

def _softmax(x, axis=-1):
    return torch.softmax(x, dim=axis)
def _gelu(x):
    return torch.nn.functional.gelu(x, approximate="tanh")
def _silu(x):
    return torch.nn.functional.silu(x)
def _sigmoid(x):
    return torch.sigmoid(x)
def _layernorm(x, axis=-1, eps=1e-5):
    m = x.mean(dim=axis, keepdim=True)
    v = x.var(dim=axis, keepdim=True, unbiased=False)
    return (x - m) / torch.sqrt(v + eps)
def _scatter_add(tgt, idx, src, axis=0):
    return tgt.clone().index_add_(axis, idx, src)
def _segment_sum(src, seg, n):
    out = torch.zeros((n,) + src.shape[1:], dtype=src.dtype)
    return out.index_add_(0, seg, src)
def _pad(x, pw):
    flat = tuple(v for pair in reversed(pw) for v in pair)
    return torch.nn.functional.pad(x, flat)

kernel_name = 'sequential_preLN__sliding_local_dilated__mixer_token_mlp__prompt'

def setup_inputs():

    _w = (lambda a: (lambda t: t.to(torch.bfloat16) if t.is_floating_point() else t)(torch.as_tensor(a)))
    def _A_setup():
        B, S, D = 1, 2048, 448
        return {
            "x": _w((lambda *s: torch.randn(*s, dtype=torch.bfloat16) * 0.05)(B, S, D)),
            "wqkv": _w((lambda *s: torch.randn(*s, dtype=torch.bfloat16) * 0.05)(D, 3 * D)),
            "wo": _w((lambda *s: torch.randn(*s, dtype=torch.bfloat16) * 0.05)(D, D)),
        }
    _A_in = _A_setup()

    def _B_setup():
        B, S, D, F = 1, 2048, 448, 1792
        return {
            "x": _w((lambda *s: torch.randn(*s, dtype=torch.bfloat16) * 0.05)(B, S, D)),
            "w1": _w((lambda *s: torch.randn(*s, dtype=torch.bfloat16) * 1.6)(S, F) * (S ** -0.5)),
            "b1": _w((lambda *s: torch.randn(*s, dtype=torch.bfloat16) * 12.8)(F) * 0.02),
            "w2": _w((lambda *s: torch.randn(*s, dtype=torch.bfloat16) * 0.4)(F, S) * (F ** -0.5)),
            "b2": _w((lambda *s: torch.randn(*s, dtype=torch.bfloat16) * 6.4)(S) * 0.02),
        }
    _B_in = _B_setup()

    return {
        "A_x": _A_in["x"],
        "A_wqkv": _A_in["wqkv"],
        "A_wo": _A_in["wo"],
        "B_x": _B_in["x"],
        "B_w1": _B_in["w1"],
        "B_b1": _B_in["b1"],
        "B_w2": _B_in["w2"],
        "B_b2": _B_in["b2"],
    }

def reference(A_x, A_wqkv, A_wo, B_x, B_w1, B_b1, B_w2, B_b2):
    def _A_ref(x, wqkv, wo):
        B, S, D = x.shape
        H = 16; Dh = D // H
        W, dil = 8, 2
        qkv = (lambda x, *d: x.permute(*d))((x @ wqkv).reshape(B, S, 3, H, Dh), 2, 0, 3, 1, 4)
        q, k, v = qkv[0], qkv[1], qkv[2]
        scale = Dh ** -0.5
        pos = torch.arange(S)
        off = torch.arange(W) * dil
        idx = pos[:, None] - off[None, :]
        mask = idx >= 0
        idx_c = torch.where(mask, idx, 0).reshape(-1)
        kg = k[:, :, idx_c, :].reshape(B, H, S, W, Dh)
        vg = v[:, :, idx_c, :].reshape(B, H, S, W, Dh)
        logits = torch.einsum("bhsd,bhswd->bhsw", q, kg) * scale
        logits = torch.where(mask[None, None, :, :], logits, -1e9)
        attn = _softmax(logits, axis=-1)
        o = torch.einsum("bhsw,bhswd->bhsd", attn, vg)
        return (lambda x, *d: x.permute(*d))(o, 0, 2, 1, 3).reshape(B, S, D) @ wo

    def _B_ref(x, w1, b1, w2, b2):
        B, S, D = x.shape
        h = _layernorm(x, axis=-1)
        u = torch.einsum("bsd,sf->bdf", h, w1) + b1
        u = _gelu(u)
        y = torch.einsum("bdf,fs->bds", u, w2) + b2
        return (lambda x, *d: x.permute(*d))(y, 0, 2, 1)

    x = A_x
    h = x + _A_ref(_layernorm(x, axis=-1), A_wqkv, A_wo)
    h2 = h + _B_ref(_layernorm(h, axis=-1), B_w1, B_b1, B_w2, B_b2)
    return h2
```

```python
import re

TRANS = ('v_exp_f32', 'v_log_f32', 'v_rcp_f32', 'v_rsq_f32', 'v_sqrt_f32', 'v_sin_f32', 'v_cos_f32',
         'v_rcp_iflag_f32')

_reg_re = re.compile(r'^(-|\|)?(abs\()?([vas])(\d+|\[(\d+):(\d+)\])\)?\|?$')


def parse_reg(tok):
    tok = tok.strip()
    if tok in ('vcc',):
        return [('s', 106), ('s', 107)]
    if tok == 'vcc_lo':
        return [('s', 106)]
    if tok == 'vcc_hi':
        return [('s', 107)]
    if tok == 'exec':
        return [('s', 126), ('s', 127)]
    if tok == 'exec_lo':
        return [('s', 126)]
    if tok == 'exec_hi':
        return [('s', 127)]
    if tok == 'm0':
        return [('s', 124)]
    m = _reg_re.match(tok)
    if not m:
        return []
    c = m.group(3)
    if m.group(5) is not None:
        return [(c, i) for i in range(int(m.group(5)), int(m.group(6)) + 1)]
    return [(c, int(m.group(4)))]


def split_ops(s):
    out, depth, cur = [], 0, ''
    for ch in s:
        if ch in '[(':
            depth += 1
        if ch in '])':
            depth -= 1
        if ch == ',' and depth == 0:
            out.append(cur.strip())
            cur = ''
        else:
            cur += ch
    if cur.strip():
        out.append(cur.strip())
    return out


class Ins:
    __slots__ = ('text', 'mn', 'ops', 'mods', 'rd', 'wr', 'cls', 'tag', 'passes', 'srcc', 'srcab', 'data',
                 'lds_dma', 'dpp', 'note')

    def __repr__(self):
        return self.text


def classify(text, tag=None):
    I = Ins()
    I.text = text
    I.tag = tag
    I.note = None
    t = text.strip()
    parts = t.split(None, 1)
    mn = parts[0]
    rest = parts[1] if len(parts) > 1 else ''
    ops = split_ops(rest)
    mods = ''
    if ops:
        last = ops[-1]
        depth = 0
        cut = None
        for i, ch in enumerate(last):
            if ch in '[(':
                depth += 1
            elif ch in '])':
                depth -= 1
            elif ch == ' ' and depth == 0:
                cut = i
                break
        if cut is not None:
            mods = last[cut + 1:]
            ops[-1] = last[:cut]
    I.mn, I.ops, I.mods = mn, ops, mods
    I.rd, I.wr = [], []
    I.passes = 0
    I.srcc, I.srcab, I.data = [], [], []
    I.lds_dma = False
    I.dpp = ('_dpp' in mn) or ('row_' in mods) or ('quad_perm' in mods)
    R = [parse_reg(o) for o in ops]
    EXEC = [('s', 126), ('s', 127)]
    VCC = [('s', 106), ('s', 107)]
    SCC = [('scc', 0)]
    if mn.startswith('v_mfma'):
        I.cls = 'mfma'
        I.wr = R[0]
        I.srcab = R[1] + R[2]
        I.srcc = R[3]
        I.rd = I.srcab + I.srcc
        I.passes = 8 if '32x32' in mn else 4
    elif mn.startswith('v_'):
        I.cls = 'valu'
        if mn.startswith('v_cmp'):
            I.wr = R[0]
            I.rd = sum(R[1:], [])
            if mn.startswith('v_cmpx'):
                I.wr = I.wr + EXEC
        elif mn.startswith(('v_add_co', 'v_sub_co', 'v_subrev_co', 'v_addc_co', 'v_subb_co')):
            I.wr = R[0] + R[1]
            I.rd = sum(R[2:], [])
        elif mn.startswith('v_permlane') and 'swap' in mn:
            I.wr = R[0] + R[1]
            I.rd = R[0] + R[1]
        elif mn.startswith(('v_fmac', 'v_dot2c', 'v_pk_fmac', 'v_mac', 'v_writelane')):
            I.wr = R[0]
            I.rd = sum(R, [])
        elif mn.startswith('v_nop'):
            pass
        else:
            I.wr = R[0]
            I.rd = sum(R[1:], [])
            if I.dpp or 'sdwa' in mn or 'd16' in mn:
                I.rd = I.rd + R[0]
            if mn.startswith('v_cndmask') and len(ops) == 3:
                I.rd = I.rd + VCC
        I.rd = I.rd + EXEC
    elif mn.startswith(('buffer_', 'global_', 'flat_', 'scratch_')):
        I.cls = 'vmem'
        m = mods.split()
        if mn in ('buffer_wbl2', 'buffer_inv'):
            pass
        elif mn.startswith('buffer_load'):
            if 'lds' in m:
                I.lds_dma = True
                I.rd = sum(R, []) + [('s', 124)]
            else:
                I.wr = R[0]
                I.rd = sum(R[1:], [])
                if 'd16' in mn:
                    I.rd = I.rd + R[0]
        elif mn.startswith('global_load_lds'):
            I.lds_dma = True
            I.rd = sum(R, []) + [('s', 124)]
        elif mn.startswith('global_load'):
            I.wr = R[0]
            I.rd = sum(R[1:], [])
        elif mn.startswith('buffer_store'):
            I.data = R[0]
            I.rd = sum(R, [])
        elif mn.startswith('global_store'):
            I.data = R[1]
            I.rd = sum(R, [])
        elif mn.startswith('buffer_atomic'):
            I.data = R[0]
            I.rd = sum(R, [])
            if 'sc0' in m:
                I.wr = R[0][:1] if 'x2' not in mn else R[0][:2]
        else:
            raise ValueError('unhandled vmem ' + text)
        I.rd = I.rd + EXEC
    elif mn.startswith('ds_'):
        I.cls = 'ds'
        if mn.startswith(('ds_read', 'ds_bpermute', 'ds_permute', 'ds_swizzle')):
            I.wr = R[0]
            I.rd = sum(R[1:], [])
        elif mn.startswith('ds_write'):
            I.rd = sum(R, [])
            I.data = sum(R[1:], [])
        else:
            raise ValueError('unhandled ds ' + text)
        I.rd = I.rd + EXEC
    elif mn.startswith(('s_load', 's_buffer_load', 's_memtime', 's_memrealtime')):
        I.cls = 'smem'
        I.wr = R[0]
        I.rd = sum(R[1:], [])
    elif mn in ('s_waitcnt', 's_barrier', 's_nop', 's_endpgm', 's_sleep', 's_setprio', 's_branch') or \
            mn.startswith('s_cbranch'):
        I.cls = 'ctl'
        if mn in ('s_cbranch_scc0', 's_cbranch_scc1'):
            I.rd = SCC
        elif mn in ('s_cbranch_vccz', 's_cbranch_vccnz'):
            I.rd = VCC
        elif mn in ('s_cbranch_execz', 's_cbranch_execnz'):
            I.rd = EXEC
    elif mn.startswith('s_'):
        I.cls = 'salu'
        if mn.startswith('s_cmp') or mn.startswith('s_bitcmp'):
            I.wr = SCC
            I.rd = sum(R, [])
        elif mn.endswith('saveexec_b64'):
            I.wr = R[0] + EXEC + SCC
            I.rd = sum(R[1:], []) + EXEC
        else:
            I.wr = R[0] + SCC
            I.rd = sum(R[1:], [])
            if mn.startswith(('s_cselect', 's_addc', 's_subb', 's_cmov')):
                I.rd = I.rd + SCC
            if mn.startswith(('s_addk', 's_mulk', 's_cmov')):
                I.rd = I.rd + R[0]
    else:
        raise ValueError('unknown instr ' + text)
    return I


def is_wide_store(I):
    return I.cls == 'vmem' and ('store' in I.mn) and (I.mn.endswith('x3') or I.mn.endswith('x4'))


class Kernel:
    def __init__(self, name):
        self.name = name
        self.out = []
        self.hist = []
        self.vm = []
        self.lg = []
        self.sm = []
        self.pending_labels = {}
        self.nlabel = 0
        self.max_v = -1
        self.max_a = -1
        self.max_s = -1
        self.n_nops = 0
        self.n_ins = 0
        self.bytes = 0

    def c(self, s):
        self.out.append('    ; ' + s)

    def raw(self, s):
        self.out.append(s)

    def _advance(self, n):
        for h in self.hist:
            h[1] += n
        self.hist = [h for h in self.hist if h[1] < 24]

    def _emit(self, I):
        self.out.append('    ' + I.text + (('   ; ' + I.note) if I.note else ''))
        self.n_ins += 1
        for c, i in I.rd + I.wr:
            if c == 'v':
                self.max_v = max(self.max_v, i)
            elif c == 'a':
                self.max_a = max(self.max_a, i)
            elif c == 's' and i < 102:
                self.max_s = max(self.max_s, i)
        if I.mn == 's_nop':
            n = int(I.ops[0]) + 1
        else:
            n = 1
        self._advance(n)
        self.hist.append([I, 0])

    def nop(self, n):
        while n > 0:
            k = min(n, 16)
            self._emit(classify('s_nop %d' % (k - 1)))
            self.n_nops += 1
            n -= k

    def _need(self, I):
        need = 0
        rd = set(I.rd)
        wr = set(I.wr)
        isvalu = I.cls == 'valu'
        ismfma = I.cls == 'mfma'
        for P, d in self.hist:
            pw = set(P.wr)
            req = 0
            if P.cls == 'valu':
                vw = {r for r in pw if r[0] in 'va'}
                sw = {r for r in pw if r[0] == 's'}
                if ismfma and vw & rd:
                    req = max(req, 2)
                if isvalu and vw & rd:
                    if I.dpp:
                        req = max(req, 2)
                    if I.mn.startswith('v_permlane'):
                        req = max(req, 2)
                    if I.mn.startswith(('v_readlane', 'v_readfirstlane')):
                        req = max(req, 1)
                    if P.mn.split('_e')[0] in TRANS or P.mn in TRANS:
                        if not (I.mn in TRANS):
                            req = max(req, 1)
                        else:
                            req = max(req, 1)
                    if 'op_sel' in P.mods and not P.mn.startswith('v_pk_') or 'sdwa' in P.mn:
                        req = max(req, 1)
                if P.mn.startswith('v_dot') and (vw & (rd | wr)):
                    if I.mn == P.mn and I.mn.startswith('v_dot2c') and not (vw & set(sum([parse_reg(o) for o in I.ops[1:]], []))):
                        pass
                    else:
                        req = max(req, 3)
                if sw:
                    execw = ('s', 126) in sw
                    if isvalu and (sw & rd - {('s', 126), ('s', 127)}):
                        req = max(req, 2)
                        if I.mn.startswith(('v_readlane', 'v_writelane')):
                            req = max(req, 4)
                    if I.cls == 'vmem' and (sw & rd):
                        req = max(req, 5)
                    if execw and (isvalu or ismfma):
                        req = max(req, 5)
                    if I.cls in ('salu', 'ctl', 'smem') and (sw & rd):
                        req = max(req, 2)
            elif P.cls == 'mfma':
                big = 12 if P.passes == 8 else 8
                if ismfma:
                    if pw & set(I.srcab):
                        req = max(req, big)
                    sc = set(I.srcc)
                    if pw & sc:
                        if pw == sc and P.passes == I.passes:
                            pass
                        else:
                            req = max(req, big - 2)
                    if (pw & wr) and not (pw == sc and P.passes == I.passes):
                        req = max(req, big)
                else:
                    if (pw & rd) or (pw & wr):
                        req = max(req, big)
                    if isvalu and (set(P.srcc) & wr):
                        req = max(req, 7 if P.passes == 8 else 3)
            elif P.cls == 'salu':
                if ('s', 124) in pw and (I.lds_dma or 'addtid' in I.mn):
                    req = max(req, 1)
            elif P.cls == 'vmem':
                if is_wide_store(P) and (set(P.data) & wr):
                    req = max(req, 2)
            if req > d:
                need = max(need, req - d)
        return need

    def fence(self):
        need = 0
        for P, d in self.hist:
            r = 0
            if P.cls == 'mfma':
                r = 12 if P.passes == 8 else 8
            elif P.cls == 'valu':
                r = 5
            elif P.cls in ('salu', 'vmem'):
                r = 2
            need = max(need, r - d)
        if need > 0:
            self.nop(need)

    def _wait(self, vm=None, lg=None):
        parts = []
        if vm is not None:
            vm = min(vm, 63)
            if vm < len(self.vm):
                parts.append('vmcnt(%d)' % vm)
                self.vm = self.vm[len(self.vm) - vm:] if vm > 0 else []
        if lg is not None:
            tot = len(self.lg) + len(self.sm)
            if self.sm and lg < tot:
                lg = 0
            lg = min(lg, 15)
            if lg < tot:
                parts.append('lgkmcnt(%d)' % lg)
                if lg == 0:
                    self.lg = []
                    self.sm = []
                else:
                    self.lg = self.lg[len(self.lg) - lg:]
        if parts:
            self._emit(classify('s_waitcnt ' + ' '.join(parts)))

    def _auto_wait(self, I):
        touch = set(I.rd) | set(I.wr)
        vm = None
        for idx in range(len(self.vm) - 1, -1, -1):
            P = self.vm[idx]
            if set(P.wr) & touch:
                vm = len(self.vm) - 1 - idx
                break
        lg = None
        for idx in range(len(self.lg) - 1, -1, -1):
            P = self.lg[idx]
            if set(P.wr) & touch:
                lg = len(self.lg) - 1 - idx
                break
        for P in self.sm:
            if set(P.wr) & touch:
                lg = 0
        self._wait(vm, lg)

    def wait_tag(self, tag):
        for idx in range(len(self.vm) - 1, -1, -1):
            if self.vm[idx].tag == tag:
                self._wait(vm=len(self.vm) - 1 - idx)
                return

    def wait_vm(self, n=0):
        self._wait(vm=n)

    def wait_lg(self, n=0):
        self._wait(lg=n)

    def wait_lg_tag(self, tag):
        for idx in range(len(self.lg) - 1, -1, -1):
            if self.lg[idx].tag == tag:
                self._wait(lg=len(self.lg) - 1 - idx)
                return

    def force_wait(self, vm=None, lg=None):
        parts = []
        if vm is not None:
            parts.append('vmcnt(%d)' % vm)
            self.vm = self.vm[len(self.vm) - vm:] if vm > 0 else []
        if lg is not None:
            parts.append('lgkmcnt(%d)' % lg)
            assert lg == 0
            self.lg = []
            self.sm = []
        self._emit(classify('s_waitcnt ' + ' '.join(parts)))

    def __call__(self, text, tag=None, note=None):
        I = classify(text, tag)
        I.note = note
        self._auto_wait(I)
        if I.cls == 'ds' and len(self.lg) + len(self.sm) >= 15:
            pass
        n = self._need(I)
        if n:
            self.nop(n)
        self._emit(I)
        if I.cls == 'vmem':
            self.vm.append(I)
        elif I.cls == 'ds':
            self.lg.append(I)
        elif I.cls == 'smem':
            self.sm.append(I)
        return I

    def barrier(self):
        self('s_barrier')

    def newlabel(self, base='L'):
        self.nlabel += 1
        return '%s_%s_%d' % (base, self.name, self.nlabel)

    def branch_fwd(self, mn, label):
        self(mn + ' ' + label)
        self.pending_labels.setdefault(label, []).append(
            ([[h[0], h[1]] for h in self.hist], list(self.vm), list(self.lg), list(self.sm)))

    def label(self, label):
        saved = self.pending_labels.pop(label, [])
        for hist, vm, lg, sm in saved:
            self.hist = self.hist + hist
            self.vm = self._merge_q(self.vm, vm)
            self.lg = self._merge_q(self.lg, lg)
            self.sm = self.sm + [x for x in sm if x not in self.sm]
        self.out.append(label + ':')

    @staticmethod
    def _merge_q(a, b):
        if len(a) == len(b) and all(x is y for x, y in zip(a, b)):
            return a
        if not a:
            return b
        if not b:
            return a
        raise AssertionError('counter queues differ at label merge: %r vs %r' % (a, b))

    def loop_label(self, label):
        self.fence()
        self.out.append(label + ':')

    def text(self):
        return '\n'.join(self.out) + '\n'


def vr(base, n=1):
    return 'v%d' % base if n == 1 else 'v[%d:%d]' % (base, base + n - 1)


def ar(base, n=1):
    return 'a%d' % base if n == 1 else 'a[%d:%d]' % (base, base + n - 1)


def sr(base, n=1):
    return 's%d' % base if n == 1 else 's[%d:%d]' % (base, base + n - 1)
```

```python
import struct
from dsl import Kernel, vr, ar, sr

S, D, H, DH, F = 2048, 448, 16, 28, 1792

OF_OFF = 0x000000
HH_OFF = 0x200000
HT_OFF = 0x400000
U_OFF = 0x600000
STAT_OFF = 0x800000
FLAG_OFF = 0x840000
WS_SIZE = 0x900000
OOB = 0x40000000

SRD_X, SRD_WQKV, SRD_WO, SRD_W1, SRD_W2, SRD_B1, SRD_B2, SRD_OUT, SRD_WS, SRD_DBG = 8, 12, 16, 20, 24, 28, 32, 36, 40, 44
S_WG, S_WAVE = 2, 3
S_EPOCH = 4
S_ONES = 5
S_T = 48
V_LANE, V_T16, V_G, V_L16 = 1, 2, 3, 4


def f32(x):
    return '0x%08x' % struct.unpack('<I', struct.pack('<f', x))[0]


def srd(base):
    return sr(base, 4)


def prologue(k, nwg, end_label, need):
    k('s_cmp_ge_u32 s2, %d' % nwg)
    k('s_cbranch_scc1 %s' % end_label)
    for base, off, size in need:
        k('s_load_dwordx2 %s, s[0:1], %d' % (sr(base, 2), off))
    k('v_lshrrev_b32 v1, 6, v0')
    k('v_readfirstlane_b32 s3, v1')
    k('v_and_b32 v1, 63, v0')
    k('v_and_b32 v2, 15, v0')
    k('v_lshrrev_b32 v3, 4, v1')
    k('v_lshlrev_b32 v4, 4, v1')
    for base, off, size in need:
        k('s_mov_b32 s%d, 0x%x' % (base + 2, size))
        k('s_mov_b32 s%d, 0x00020000' % (base + 3))
    k('s_mov_b32 s%d, 0x3f803f80' % S_ONES)


ARG = dict(x=(SRD_X, 0, S * D * 2), wqkv=(SRD_WQKV, 8, D * 3 * D * 2), wo=(SRD_WO, 16, D * D * 2),
           w1=(SRD_W1, 32, S * F * 2), b1=(SRD_B1, 40, F * 2), w2=(SRD_W2, 48, F * S * 2), b2=(SRD_B2, 56, S * 2),
           out=(SRD_OUT, 64, S * D * 2), dbg=(SRD_DBG, 72, 256), ws=(SRD_WS, 80, WS_SIZE))


def xgroup_reduce(k, regs, tmp, op='v_add_f32'):
    for swap in ('v_permlane32_swap_b32', 'v_permlane16_swap_b32'):
        for r, t in zip(regs, tmp):
            k('v_mov_b32 v%d, v%d' % (t, r))
        for r, t in zip(regs, tmp):
            k('%s v%d, v%d' % (swap, r, t))
        for r, t in zip(regs, tmp):
            k('%s v%d, v%d, v%d' % (op, r, r, t))


A_LDS_CS = 0
A_LDS_ST = 512
A_LDS_KV = 2048
A_LDS_W = 12288
A_LDS_END = A_LDS_W + 86016


def phaseA(k, sc1='', hooks=None):
    hooks = hooks or {}
    XR, NRING = 16, 10
    ACC = 136
    WF = 192
    ST = 224
    vXa, vXh, vW, vA0, vA1, vH1, vH2 = 230, 231, 232, 233, 234, 235, 236
    vT = 237
    BP, BC, BPA = 240, 244, 248
    s_rb, s_head, s_t0, s_m0w, s_blkb, s_tmp = 48, 49, 50, 51, 52, 53
    s_hm = 54

    def xreg(j, blk):
        return XR + (j % NRING) * 12 + blk * 4

    def acc(blk, nbi):
        return ACC + blk * 24 + nbi * 4
    H1, H2 = ACC + 48, ACC + 52

    k.c('---- phase A setup')
    k('s_and_b32 s%d, s2, 7' % s_rb)
    k('s_lshl_b32 s%d, s%d, 1' % (s_rb, s_rb))
    k('s_lshr_b32 s%d, s2, 7' % s_tmp)
    k('s_add_u32 s%d, s%d, s%d' % (s_rb, s_rb, s_tmp))
    k('s_lshr_b32 s%d, s2, 3' % s_head)
    k('s_and_b32 s%d, s%d, 15' % (s_head, s_head))
    k('v_lshrrev_b32 v%d, 2, v1' % vT)
    k('v_mul_u32_u24 v%d, 2688, v%d' % (vW, vT))
    k('v_lshrrev_b32 v%d, 5, v1' % vT)
    k('v_lshlrev_b32 v%d, 1, v%d' % (vT, vT))
    k('v_and_b32 v%d, 3, v1' % (vT + 1))
    k('v_xor_b32 v%d, v%d, v%d' % (vT, vT, vT + 1))
    k('v_lshl_add_u32 v%d, v%d, 4, v%d' % (vW, vT, vW))
    k('s_mul_i32 s%d, s%d, 56' % (s_tmp, s_head))
    k('s_mul_i32 s%d, s3, %d' % (s_m0w, 16 * 2688))
    k('s_add_u32 s%d, s%d, s%d' % (s_tmp, s_tmp, s_m0w))
    k('v_add_u32 v%d, s%d, v%d' % (vW, s_tmp, vW))
    k('s_lshr_b32 s%d, s3, 1' % s_tmp)
    k('s_mul_i32 s%d, s%d, 6144' % (s_m0w, s_tmp))
    k('s_and_b32 s%d, s3, 1' % s_tmp)
    k('s_lshl_b32 s%d, s%d, 10' % (s_tmp, s_tmp))
    k('s_add_u32 s%d, s%d, s%d' % (s_m0w, s_m0w, s_tmp))
    k('v_mul_u32_u24 v%d, 896, v2' % vXh)
    k('v_lshl_add_u32 v%d, v3, 4, v%d' % (vXh, vXh))
    k('s_lshl_b32 s%d, s%d, 7' % (s_t0, s_rb))
    k('s_lshl_b32 s%d, s3, 5' % s_tmp)
    k('s_add_u32 s%d, s%d, s%d' % (s_tmp, s_tmp, s_t0))
    k('s_mul_i32 s%d, s%d, 896' % (s_tmp, s_tmp))
    k('v_add_u32 v%d, s%d, v%d' % (vXa, s_tmp, vXh))
    k('s_sub_u32 s%d, s%d, 16' % (s_tmp, s_t0))
    k('s_mul_i32 s%d, s%d, 896' % (s_tmp, s_tmp))
    k('s_cmp_eq_u32 s%d, 0' % s_rb)
    k('s_cselect_b32 s%d, 0x%x, s%d' % (s_tmp, OOB, s_tmp))
    k('v_add_u32 v%d, s%d, v%d' % (vXh, s_tmp, vXh))
    k('s_mov_b32 s%d, %d' % (s_blkb, 16 * 896))
    k('s_mov_b32 s%d, 0xfffefffe' % s_hm)
    k('s_mov_b32 s%d, 0xfffefffe' % (s_hm + 1))

    def dma_w(grp):
        for p in range(3):
            k('s_add_u32 m0, s%d, %d' % (s_m0w, A_LDS_W + grp * 12288 + p * 2048))
            k('s_mov_b32 s%d, %d' % (s_tmp, grp * 64 * 2688 + p * 896))
            k('buffer_load_dwordx4 v%d, %s, s%d offen lds' % (vW, srd(SRD_WQKV), s_tmp), tag='W%d' % grp)

    def load_x(j):
        k('buffer_load_dwordx4 %s, v%d, %s, 0 offen offset:%d' % (vr(xreg(j, 0), 4), vXa, srd(SRD_X), j * 64))
        k('buffer_load_dwordx4 %s, v%d, %s, s%d offen offset:%d' % (vr(xreg(j, 1), 4), vXa, srd(SRD_X), s_blkb, j * 64))
        k('s_mov_b64 exec, %s' % sr(s_hm, 2))
        k('buffer_load_dwordx4 %s, v%d, %s, 0 offen offset:%d' % (vr(xreg(j, 2), 4), vXh, srd(SRD_X), j * 64))
        k('s_mov_b64 exec, -1')

    dma_w(0)
    for j in range(NRING):
        for r in range(4):
            k('v_mov_b32 v%d, s%d' % (xreg(j, 2) + r, S_ONES))
        load_x(j)
        if j % 2 == 1 and (j + 1) // 2 < 7:
            dma_w((j + 1) // 2)
    dma_w(6)
    if 'A_after_issue' in hooks:
        hooks['A_after_issue']()

    k('v_lshlrev_b32 v%d, 9, v3' % vA0)
    k('v_bfe_u32 v%d, v1, 2, 2' % vT)
    k('v_lshl_add_u32 v%d, v%d, 6, v%d' % (vA0, vT, vA0))
    k('v_and_b32 v%d, 3, v1' % vT)
    k('v_lshl_add_u32 v%d, v%d, 3, v%d' % (vA0, vT, vA0))
    k('v_and_b32 v%d, 1, v3' % vT)
    k('v_lshlrev_b32 v%d, 5, v%d' % (vT, vT))
    k('v_add_u32 v%d, v%d, v%d' % (vA0, vA0, vT))
    k('v_add_u32 v%d, %d, v%d' % (vA0, A_LDS_W, vA0))
    k('v_xor_b32 v%d, 32, v%d' % (vA1, vA0))
    k('s_and_b32 s%d, s3, 1' % s_tmp)
    k('s_lshl_b32 s%d, s%d, 5' % (s_tmp, s_tmp))
    k('v_xor_b32 v%d, s%d, v%d' % (vH2, s_tmp, vA0))
    k('s_lshr_b32 s%d, s3, 1' % s_tmp)
    k('s_lshl_b32 s%d, s%d, 11' % (s_tmp, s_tmp))
    k('s_add_u32 s%d, s%d, 2048' % (s_tmp, s_tmp))
    k('v_add_u32 v%d, s%d, v%d' % (vH1, s_tmp, vH2))
    k('v_lshlrev_b32 v%d, 2, v3' % vT)
    k('v_sub_u32 v%d, v2, v%d' % (vT, vT))
    k('v_mov_b32 v%d, %s' % (vT + 2, f32(-1e30)))
    for which, base in ((16, BP), (0, BC)):
        for r in range(4):
            k('v_add_u32 v%d, %d, v%d' % (vT + 1, which - r, vT))
            k('v_and_b32 v%d, 0xfffffff1, v%d' % (vT + 1, vT + 1))
            k('v_cmp_eq_u32 vcc, 0, v%d' % (vT + 1))
            k('v_cndmask_b32 v%d, v%d, 0, vcc' % (base + r, vT + 2))
    k('s_or_b32 s%d, s%d, s3' % (s_tmp, s_rb))
    k('s_cmp_eq_u32 s%d, 0' % s_tmp)
    k('s_cselect_b64 vcc, -1, 0')
    for r in range(4):
        k('v_cndmask_b32 v%d, v%d, v%d, vcc' % (BPA + r, BP + r, vT + 2))
    for i in range(6):
        k('v_mov_b32 v%d, 0' % (ST + i))

    frag_addr = [(vA0, 0), (vA1, 0), (vA0, 2048), (vA1, 2048), (vA0, 4096), (vA1, 4096), (vH1, 0), (vH2, 0)]

    def read_frag(f, j):
        va, off = frag_addr[f]
        o = (j % 7) * 6144 + off
        k('ds_read_b64_tr_b16 %s, v%d offset:%d' % (vr(WF + 4 * f, 2), va, o))
        k('ds_read_b64_tr_b16 %s, v%d offset:%d' % (vr(WF + 4 * f + 2, 2), va, o + 256))

    k.wait_tag('W0')
    k.barrier()
    for f in range(8):
        read_frag(f, 0)
    for j in range(14):
        k.c('kstep %d' % j)
        if j + 1 < 14 and (j + 1) % 2 == 0:
            k.wait_tag('W%d' % ((j + 1) // 2))
            k.barrier()
        if j + 1 == 7:
            for va in (vA0, vA1, vH1, vH2):
                k('v_add_u32 v%d, %d, v%d' % (va, 7 * 6144, va))
        for r in range(4):
            for blk in range(3):
                x = xreg(j, blk) + r
                k('v_dot2c_f32_bf16 v%d, s%d, v%d' % (ST + 2 * blk, S_ONES, x))
                k('v_dot2c_f32_bf16 v%d, v%d, v%d' % (ST + 2 * blk + 1, x, x))
        for f in range(8):
            w = vr(WF + 4 * f, 4)
            if f < 6:
                for blk in range(2):
                    a = vr(acc(blk, f), 4)
                    x = vr(xreg(j, blk), 4)
                    c = '0' if j == 0 else a
                    if f < 4:
                        k('v_mfma_f32_16x16x32_bf16 %s, %s, %s, %s' % (a, w, x, c))
                    else:
                        k('v_mfma_f32_16x16x32_bf16 %s, %s, %s, %s' % (a, x, w, c))
            else:
                a = vr(H1 if f == 6 else H2, 4)
                c = '0' if j == 0 else a
                k('v_mfma_f32_16x16x32_bf16 %s, %s, %s, %s' % (a, w, vr(xreg(j, 2), 4), c))
            if j + 1 < 14:
                read_frag(f, j + 1)
        if j + NRING < 14:
            load_x(j + NRING)
        if ('A_k%d' % j) in hooks:
            hooks['A_k%d' % j]()

    k.c('---- phase A epilogue')
    T = XR
    xgroup_reduce(k, [ST + i for i in range(6)], [T + i for i in range(6)])
    RR = T + 8
    for blk in range(3):
        m, r_ = RR + 2 * blk + 1, RR + 2 * blk
        k('v_mul_f32 v%d, %s, v%d' % (m, f32(1.0 / D), ST + 2 * blk))
        k('v_mul_f32 v%d, v%d, v%d' % (r_, m, m))
        k('v_mul_f32 v%d, %s, v%d' % (ST + 2 * blk + 1, f32(1.0 / D), ST + 2 * blk + 1))
        k('v_sub_f32 v%d, v%d, v%d' % (r_, ST + 2 * blk + 1, r_))
        k('v_max_f32 v%d, 0, v%d' % (r_, r_))
        k('v_add_f32 v%d, %s, v%d' % (r_, f32(1e-5), r_))
        k('v_rsq_f32 v%d, v%d' % (r_, r_))
    vAd = T + 16
    k('v_lshlrev_b32 v%d, 4, v3' % vAd)
    k('s_lshl_b32 s%d, s3, 6' % s_tmp)
    k('v_add_u32 v%d, s%d, v%d' % (vAd + 1, s_tmp, vAd))
    k('s_and_b32 s%d, s%d, 64' % (s_tmp, s_tmp))
    k('v_add_u32 v%d, s%d, v%d' % (vAd + 2, s_tmp, vAd))
    k('s_not_b64 exec, %s' % sr(s_hm, 2))
    k('ds_write_b128 v%d, %s offset:%d' % (vAd + 1, vr(H1, 4), A_LDS_CS + 128))
    k('ds_write_b128 v%d, %s offset:%d' % (vAd + 2, vr(H2, 4), A_LDS_CS))
    k('s_mov_b64 exec, 0xffff')
    k('s_lshl_b32 s%d, s3, 8' % s_tmp)
    k('v_lshl_add_u32 v%d, v2, 2, s%d' % (vAd + 3, s_tmp))
    for blk in range(2):
        k('ds_write_b32 v%d, v%d offset:%d' % (vAd + 3, RR + 2 * blk, A_LDS_ST + blk * 128))
        k('ds_write_b32 v%d, v%d offset:%d' % (vAd + 3, RR + 2 * blk + 1, A_LDS_ST + blk * 128 + 64))
    k('s_mov_b64 exec, -1')
    HC = T + 24
    for r in range(4):
        k('v_mov_b32_dpp v%d, v%d row_newbcast:0 row_mask:0xf bank_mask:0xf' % (HC + r, H1 + r))
    for r in range(4):
        k('v_fma_f32 v%d, -v%d, v%d, v%d' % (HC + r, RR + 5, HC + r, H1 + r))
    for r in range(4):
        k('v_mul_f32 v%d, v%d, v%d' % (HC + r, RR + 4, HC + r))
    k('v_cvt_pk_bf16_f32 v%d, v%d, v%d' % (HC, HC, HC + 1))
    k('v_cvt_pk_bf16_f32 v%d, v%d, v%d' % (HC + 2, HC + 2, HC + 3))
    vK, vV = T + 28, T + 29
    k('s_and_b32 s%d, s3, 1' % s_tmp)
    k('s_lshl_b32 s%d, s%d, 3' % (s_tmp, s_tmp))
    k('v_add_u32 v%d, s%d, v4' % (vK, s_tmp))
    k('v_lshrrev_b32 v%d, 2, v2' % vV)
    k('v_lshlrev_b32 v%d, 8, v%d' % (vV, vV))
    k('v_lshl_add_u32 v%d, v3, 6, v%d' % (vV, vV))
    k('v_and_b32 v%d, 3, v2' % (vV + 1))
    k('v_lshl_add_u32 v%d, v%d, 1, v%d' % (vV, vV + 1, vV))
    k('v_add_u32 v%d, s%d, v%d' % (vV, s_tmp, vV))
    k('v_add_u32 v%d, 1024, v%d' % (vV, vV))
    k('s_cmp_lt_u32 s3, 2')
    k('s_cselect_b64 vcc, -1, 0')
    k('s_cselect_b32 s%d, 2, 16' % s_tmp)
    k('v_cndmask_b32 v%d, v%d, v%d, vcc' % (vK, vV, vK))
    k('v_add_u32 v%d, s%d, v%d' % (vK + 1, s_tmp, vK))
    k('v_add_u32 v%d, s%d, v%d' % (vK + 2, s_tmp, vK + 1))
    k('v_add_u32 v%d, s%d, v%d' % (vK + 3, s_tmp, vK + 2))
    k('ds_write_b16 v%d, v%d offset:%d' % (vK, HC, A_LDS_KV))
    k('ds_write_b16_d16_hi v%d, v%d offset:%d' % (vK + 1, HC, A_LDS_KV))
    k('ds_write_b16 v%d, v%d offset:%d' % (vK + 2, HC + 2, A_LDS_KV))
    k('ds_write_b16_d16_hi v%d, v%d offset:%d' % (vK + 3, HC + 2, A_LDS_KV))
    k.wait_lg(0)
    k.barrier()
    CS = T + 32
    CSV = T + 48
    L2 = T + 52
    for s_ in range(4):
        k('ds_read_b128 %s, v%d offset:%d' % (vr(CS + 4 * s_, 4), vAd, A_LDS_CS + 64 * s_))
    k('v_lshlrev_b32 v%d, 2, v2' % (vAd + 1))
    k('ds_read_b32 v%d, v%d offset:%d' % (CSV, vAd + 1, A_LDS_CS + 256))
    k('ds_read_b32 v%d, v%d offset:%d' % (CSV + 1, vAd + 1, A_LDS_CS + 320))
    k('s_lshl_b32 s%d, s3, 8' % s_tmp)
    k('v_add_u32 v%d, s%d, v%d' % (vAd + 2, s_tmp, vAd))
    for blk in range(2):
        k('ds_read_b128 %s, v%d offset:%d' % (vr(L2 + 8 * blk, 4), vAd + 2, A_LDS_ST + blk * 128))
        k('ds_read_b128 %s, v%d offset:%d' % (vr(L2 + 8 * blk + 4, 4), vAd + 2, A_LDS_ST + blk * 128 + 64))
    RQ = T + 68
    k('v_cmp_ne_u32 vcc, 3, v3')
    qs = (DH ** -0.5) * 1.4426950408889634
    for blk in range(2):
        k('v_mul_f32 v%d, %s, v%d' % (RQ + 2 * blk, f32(qs), RR + 2 * blk))
    for blk in range(2):
        k('v_cndmask_b32 v%d, 0, v%d, vcc' % (RQ + 2 * blk + 1, RQ + 2 * blk))
    QT = T + 72
    KT = T + 80
    VV = T + 92
    def fix_qk(blk, nbi, scale_reg, dst):
        a = acc(blk, nbi)
        m = RR + 2 * blk + 1
        for r in range(4):
            k('v_fma_f32 v%d, -v%d, v%d, v%d' % (a + r, m, CS + 4 * nbi + r, a + r))
        for r in range(4):
            k('v_mul_f32 v%d, v%d, v%d' % (a + r, scale_reg, a + r))
        k('v_cvt_pk_bf16_f32 v%d, v%d, v%d' % (dst, a, a + 1))
        k('v_cvt_pk_bf16_f32 v%d, v%d, v%d' % (dst + 1, a + 2, a + 3))

    def fix_v(blk, nb):
        a = acc(blk, 4 + nb)
        for r in range(4):
            k('v_fma_f32 v%d, -v%d, v%d, v%d' % (a + r, L2 + 8 * blk + 4 + r, CSV + nb, a + r))
        for r in range(4):
            k('v_mul_f32 v%d, v%d, v%d' % (a + r, L2 + 8 * blk + r, a + r))
        dst = VV + 6 * nb + 2 + 2 * blk
        k('v_cvt_pk_bf16_f32 v%d, v%d, v%d' % (dst, a, a + 1))
        k('v_cvt_pk_bf16_f32 v%d, v%d, v%d' % (dst + 1, a + 2, a + 3))

    fix_qk(1, 2, RR + 2, KT + 8)
    fix_qk(1, 3, RR + 2, KT + 10)
    fix_v(1, 0)
    fix_v(1, 1)
    k('s_lshl_b32 s%d, s3, 11' % s_tmp)
    k('v_add_u32 v%d, s%d, v4' % (vAd + 3, s_tmp))
    k('ds_write_b128 v%d, %s offset:%d' % (vAd + 3, vr(KT + 8, 4), A_LDS_KV + 2048))
    k('ds_write_b64 v%d, %s offset:%d' % (vAd + 3, vr(VV + 4, 2), A_LDS_KV + 2048 + 1024))
    k('ds_write_b64 v%d, %s offset:%d' % (vAd + 3, vr(VV + 10, 2), A_LDS_KV + 2048 + 1024 + 8))
    fix_qk(0, 2, RR + 0, KT + 4)
    fix_qk(0, 3, RR + 0, KT + 6)
    fix_qk(1, 0, RQ + 2, QT + 4)
    fix_qk(1, 1, RQ + 3, QT + 6)
    k.wait_lg(0)
    k.barrier()
    k('ds_read_b128 %s, v%d offset:%d' % (vr(KT, 4), vAd + 3, A_LDS_KV))
    k('ds_read_b64 %s, v%d offset:%d' % (vr(VV, 2), vAd + 3, A_LDS_KV + 1024))
    k('ds_read_b64 %s, v%d offset:%d' % (vr(VV + 6, 2), vAd + 3, A_LDS_KV + 1024 + 8))
    SS = T + 104
    k('v_mfma_f32_16x16x32_bf16 %s, %s, %s, %s' % (vr(SS + 8, 4), vr(KT + 4, 4), vr(QT + 4, 4), vr(BP, 4)))
    k('v_mfma_f32_16x16x32_bf16 %s, %s, %s, %s' % (vr(SS + 12, 4), vr(KT + 8, 4), vr(QT + 4, 4), vr(BC, 4)))
    fix_qk(0, 0, RQ + 0, QT + 0)
    fix_qk(0, 1, RQ + 1, QT + 2)
    fix_v(0, 0)
    fix_v(0, 1)
    k('v_mfma_f32_16x16x32_bf16 %s, %s, %s, %s' % (vr(SS + 0, 4), vr(KT + 0, 4), vr(QT, 4), vr(BPA, 4)))
    k('v_mfma_f32_16x16x32_bf16 %s, %s, %s, %s' % (vr(SS + 4, 4), vr(KT + 4, 4), vr(QT, 4), vr(BC, 4)))
    MX = ACC
    TM = ACC + 2
    for blk in (1, 0):
        s_ = SS + 8 * blk
        k('v_max3_f32 v%d, v%d, v%d, v%d' % (MX + blk, s_, s_ + 1, s_ + 2))
        k('v_max3_f32 v%d, v%d, v%d, v%d' % (TM + blk, s_ + 3, s_ + 4, s_ + 5))
        k('v_max3_f32 v%d, v%d, v%d, v%d' % (MX + blk, MX + blk, s_ + 6, s_ + 7))
        k('v_max_f32 v%d, v%d, v%d' % (MX + blk, MX + blk, TM + blk))
    xgroup_reduce(k, [MX, MX + 1], [TM, TM + 1], op='v_max_f32')
    SUM = ACC + 4
    PP = ACC + 8
    for blk in (1, 0):
        s_ = SS + 8 * blk
        for i in range(8):
            k('v_sub_f32 v%d, v%d, v%d' % (s_ + i, s_ + i, MX + blk))
        for i in range(8):
            k('v_exp_f32 v%d, v%d' % (s_ + i, s_ + i))
        for i in range(4):
            k('v_cvt_pk_bf16_f32 v%d, v%d, v%d' % (PP + 4 * blk + i, s_ + 2 * i, s_ + 2 * i + 1))
    OO = ACC + 16
    for blk in (1, 0):
        for nb in range(2):
            k('v_mfma_f32_16x16x32_bf16 %s, %s, %s, 0' % (vr(OO + 8 * blk + 4 * nb, 4), vr(VV + 6 * nb + 2 * blk, 4),
                                                          vr(PP + 4 * blk, 4)))
    for blk in range(2):
        s_ = SS + 8 * blk
        k('v_add_f32 v%d, v%d, v%d' % (SUM + blk, s_, s_ + 1))
        k('v_add_f32 v%d, v%d, v%d' % (TM + blk, s_ + 2, s_ + 3))
        for i in (4, 6):
            k('v_add_f32 v%d, v%d, v%d' % (SUM + blk, SUM + blk, s_ + i))
            k('v_add_f32 v%d, v%d, v%d' % (TM + blk, TM + blk, s_ + i + 1))
        k('v_add_f32 v%d, v%d, v%d' % (SUM + blk, SUM + blk, TM + blk))
    xgroup_reduce(k, [SUM, SUM + 1], [TM, TM + 1])
    k('v_cmp_ne_u32 vcc, 3, v3')
    for blk in range(2):
        k('v_rcp_f32 v%d, v%d' % (SUM + blk, SUM + blk))
    for blk in range(2):
        k('v_cndmask_b32 v%d, 0, v%d, vcc' % (TM + blk, SUM + blk))
    k('s_lshl_b32 s%d, s%d, 3' % (s_tmp, s_rb))
    k('s_lshl_b32 s%d, s3, 1' % s_t0)
    k('s_add_u32 s%d, s%d, s%d' % (s_tmp, s_tmp, s_t0))
    k('s_lshl_b32 s%d, s%d, 4' % (s_tmp, s_tmp))
    k('s_add_u32 s%d, s%d, s%d' % (s_tmp, s_tmp, s_head))
    k('s_lshl_b32 s%d, s%d, 10' % (s_tmp, s_tmp))
    if OF_OFF:
        k('s_add_u32 s%d, s%d, 0x%x' % (s_tmp, s_tmp, OF_OFF))
    k('s_add_u32 s%d, s%d, 16384' % (s_t0, s_tmp))
    for blk in range(2):
        o = OO + 8 * blk
        for r in range(4):
            k('v_mul_f32 v%d, v%d, v%d' % (o + r, SUM + blk, o + r))
        for r in range(4):
            k('v_mul_f32 v%d, v%d, v%d' % (o + 4 + r, TM + blk, o + 4 + r))
        p = PP + 4 * blk
        for i in range(4):
            k('v_cvt_pk_bf16_f32 v%d, v%d, v%d' % (p + i, o + 2 * i, o + 2 * i + 1))
        k('buffer_store_dwordx4 %s, v4, %s, s%d offen %s' % (vr(p, 4), srd(SRD_WS), s_tmp if blk == 0 else s_t0, sc1))


STAMP_OFF = 0xA00000


def stamp(k, idx, vtmp=254, stmp=96):
    if not getattr(k, 'stamps', False):
        return
    k('s_memrealtime %s' % sr(stmp, 2))
    k('s_lshl_b32 s%d, s2, 2' % (stmp + 2))
    k('s_add_u32 s%d, s%d, s3' % (stmp + 2, stmp + 2))
    k('s_lshl_b32 s%d, s%d, 7' % (stmp + 2, stmp + 2))
    k('s_add_u32 s%d, s%d, 0x%x' % (stmp + 2, stmp + 2, STAMP_OFF + 4 * idx))
    k('v_mov_b32 v%d, s%d' % (vtmp, stmp))
    k('v_mov_b32 v%d, 0' % (vtmp + 1))
    k('s_mov_b64 exec, 1')
    k('buffer_store_dword v%d, v%d, %s, s%d offen' % (vtmp, vtmp + 1, srd(SRD_WS), stmp + 2))
    k('s_mov_b64 exec, -1')


def epoch_publish(k, vt):
    skip = k.newlabel('Lep')
    k('s_or_b32 s%d, s2, s3' % S_T)
    k('s_cmp_lg_u32 s%d, 0' % S_T)
    k.branch_fwd('s_cbranch_scc1', skip)
    k('s_memrealtime %s' % sr(S_T, 2))
    k('v_mov_b32 v%d, 0' % (vt + 1))
    k('s_or_b32 s%d, s%d, 1' % (S_T, S_T))
    k('v_mov_b32 v%d, s%d' % (vt, S_T))
    k('s_mov_b64 exec, 1')
    k('buffer_store_dword v%d, v%d, %s, 0 offen sc0 sc1' % (vt, vt + 1, srd(SRD_DBG)))
    k('s_mov_b64 exec, -1')
    k.force_wait(vm=0)
    k.label(skip)


def epoch_get(k, vt):
    L = k.newlabel('Lepg')
    k('v_mov_b32 v%d, 0' % (vt + 1))
    k.wait_vm(0)
    k.loop_label(L)
    k('buffer_load_dword v%d, v%d, %s, 0 offen sc0 sc1' % (vt, vt + 1, srd(SRD_DBG)))
    k.force_wait(vm=0)
    k('v_readfirstlane_b32 s%d, v%d' % (S_EPOCH, vt))
    k('s_cmp_eq_u32 s%d, 0' % S_EPOCH)
    k('s_cbranch_scc1 %s' % L)


class B:
    s_tb32, s_cq, s_tmp, s_wbase, s_t2, s_valid = 56, 57, 58, 59, 60, 61
    vWo, vR0, vR1, vR2, vR3 = 208, 209, 210, 211, 212
    ACC = 16
    OFR = 32
    T = 64


def B_setup(k):
    b = B
    k.c('---- phase B setup')
    k('s_and_b32 s%d, s2, 7' % b.s_tb32)
    k('s_lshl_b32 s%d, s%d, 3' % (b.s_tb32, b.s_tb32))
    k('s_lshr_b32 s%d, s2, 5' % b.s_tmp)
    k('s_add_u32 s%d, s%d, s%d' % (b.s_tb32, b.s_tb32, b.s_tmp))
    k('s_lshr_b32 s%d, s2, 3' % b.s_cq)
    k('s_and_b32 s%d, s%d, 3' % (b.s_cq, b.s_cq))
    t = b.vR0
    k('v_lshrrev_b32 v%d, 2, v1' % t)
    k('v_mul_u32_u24 v%d, 896, v%d' % (b.vWo, t))
    k('v_and_b32 v%d, 1, v3' % t)
    k('v_lshlrev_b32 v%d, 1, v%d' % (t, t))
    k('v_and_b32 v%d, 3, v1' % (t + 1))
    k('v_xor_b32 v%d, v%d, v%d' % (t, t, t + 1))
    k('v_lshl_add_u32 v%d, v%d, 4, v%d' % (b.vWo, t, b.vWo))
    k('s_mul_i32 s%d, s%d, 224' % (b.s_tmp, b.s_cq))
    k('s_lshl_b32 s%d, s3, 6' % b.s_t2)
    k('s_add_u32 s%d, s%d, s%d' % (b.s_tmp, b.s_tmp, b.s_t2))
    k('v_add_u32 v%d, s%d, v%d' % (b.vWo, b.s_tmp, b.vWo))


def B_wo_addr(k, lds_base, per_wave):
    b = B
    k('s_mul_i32 s%d, s3, %d' % (b.s_wbase, per_wave))
    k('s_add_u32 s%d, s%d, %d' % (b.s_wbase, b.s_wbase, lds_base))
    t = b.T
    k('v_bfe_u32 v%d, v1, 2, 2' % t)
    k('v_lshlrev_b32 v%d, 6, v%d' % (t, t))
    k('v_and_b32 v%d, 3, v1' % (t + 1))
    k('v_lshl_add_u32 v%d, v%d, 3, v%d' % (t, t + 1, t))
    k('v_add_u32 v%d, s%d, v%d' % (t, b.s_wbase, t))
    k('v_and_b32 v%d, 1, v3' % (t + 1))
    k('v_lshlrev_b32 v%d, 5, v%d' % (t + 1, t + 1))
    k('v_add_u32 v%d, v%d, v%d' % (t, t, t + 1))
    k('v_lshl_add_u32 v%d, v3, 8, v%d' % (b.vR0, t))
    k('v_xor_b32 v%d, 32, v%d' % (b.vR1, b.vR0))
    k('v_cmp_eq_u32 vcc, 3, v3')
    k('v_cndmask_b32 v%d, v3, 1, vcc' % (t + 1))
    k('v_lshl_add_u32 v%d, v%d, 8, v%d' % (b.vR2, t + 1, t))
    k('v_add_u32 v%d, 1024, v%d' % (b.vR2, b.vR2))
    k('v_xor_b32 v%d, 32, v%d' % (b.vR3, b.vR2))


def B_wo_dma(k, h0, nh, slot_off=0):
    b = B
    assert (28 * nh) % 16 == 0 and h0 % 2 == 0
    for i in range(28 * nh // 16):
        k('s_add_u32 m0, s%d, %d' % (b.s_wbase, slot_off + i * 1024))
        k('s_mov_b32 s%d, %d' % (b.s_tmp, (28 * h0 + 16 * i) * 896))
        k('buffer_load_dwordx4 v%d, %s, s%d offen lds' % (b.vWo, srd(SRD_WO), b.s_tmp), tag='wo%d' % h0)


def B_wo_read(k, h0, nh, abase, slot_off=0):
    b = B
    k.wait_tag('wo%d' % h0)
    for h in range(h0, h0 + nh):
        for nb in range(2):
            par = (nb ^ h) & 1
            o = slot_off + (h - h0) * 1792
            a = abase + 8 * h + 4 * nb
            k('ds_read_b64_tr_b16 %s, v%d offset:%d' % (ar(a, 2), b.vR1 if par else b.vR0, o))
            k('ds_read_b64_tr_b16 %s, v%d offset:%d' % (ar(a + 2, 2), b.vR3 if par else b.vR2, o))


def B_xinit(k):
    b = B
    t = b.T
    k('v_mul_u32_u24 v%d, %d, v3' % (t, 4 * 896))
    k('v_lshl_add_u32 v%d, v2, 1, v%d' % (t, t))
    k('s_mul_i32 s%d, s%d, %d' % (b.s_tmp, b.s_tb32, 32 * 896))
    k('s_mul_i32 s%d, s%d, 224' % (b.s_t2, b.s_cq))
    k('s_add_u32 s%d, s%d, s%d' % (b.s_tmp, b.s_tmp, b.s_t2))
    k('s_lshl_b32 s%d, s3, 6' % b.s_t2)
    k('s_add_u32 s%d, s%d, s%d' % (b.s_tmp, b.s_tmp, b.s_t2))
    k('s_add_u32 s%d, s%d, %d' % (b.s_t2, b.s_tmp, 16 * 896))
    for tb in range(2):
        for nb in range(2):
            for r in range(4):
                k('buffer_load_ushort v%d, v%d, %s, s%d offen offset:%d' % (
                    b.ACC + 8 * tb + 4 * nb + r, t, srd(SRD_X), b.s_t2 if tb else b.s_tmp, r * 896 + nb * 32))


def B_xinit_finish(k):
    b = B
    for i in range(16):
        k('v_lshlrev_b32 v%d, 16, v%d' % (b.ACC + i, b.ACC + i))


def B_main(k, abase, lds_o, lds_small, sc1=''):
    b = B
    t = b.T
    k.c('---- phase B main')
    k('s_lshl_b32 s%d, s%d, 15' % (b.s_tmp, b.s_tb32))
    k('s_lshl_b32 s%d, s3, 13' % b.s_t2)
    k('s_add_u32 s%d, s%d, s%d' % (b.s_tmp, b.s_tmp, b.s_t2))
    if OF_OFF:
        k('s_add_u32 s%d, s%d, 0x%x' % (b.s_tmp, b.s_tmp, OF_OFF))
    for i in range(8):
        if i % 4 == 0:
            k('s_add_u32 m0, s%d, %d' % (b.s_t2, lds_o + i * 1024))
            if i:
                k('s_add_u32 s%d, s%d, 4096' % (b.s_tmp, b.s_tmp))
        k('buffer_load_dwordx4 v4, %s, s%d offen offset:%d lds %s' % (srd(SRD_WS), b.s_tmp, (i % 4) * 1024, sc1), tag='of')
    k('v_add_u32 v%d, %d, v4' % (t, lds_o))
    k('s_cmp_lg_u32 s3, 3')
    k('s_cselect_b32 s%d, 1.0, 0' % b.s_valid)
    k.wait_tag('of')
    k.barrier()
    order = [(h, tb) for h in range(16) for tb in range(2)]

    def rd(i):
        h, tb = order[i]
        k('ds_read_b128 %s, v%d offset:%d' % (vr(b.OFR + 4 * (i % 8), 4), t, (tb * 16 + h) * 1024))
    for i in range(8):
        rd(i)
    for i, (h, tb) in enumerate(order):
        for nb in range(2):
            a = vr(b.ACC + 8 * tb + 4 * nb, 4)
            k('v_mfma_f32_16x16x32_bf16 %s, %s, %s, %s' % (a, vr(b.OFR + 4 * (i % 8), 4), ar(abase + 8 * h + 4 * nb, 4), a))
        if i + 8 < 32:
            rd(i + 8)
    stamp(k, 12)
    V = t + 4
    A1 = t + 20
    for tb in range(2):
        for r in range(4):
            k('v_mul_f32 v%d, s%d, v%d' % (A1 + 4 * tb + r, b.s_valid, b.ACC + 8 * tb + 4 + r))

    def vi(tb, kind, r):
        return V + 4 * (2 * tb + kind) + 2 * (r & 1) + (r >> 1)
    for tb in range(2):
        for r in range(4):
            a0, a1 = b.ACC + 8 * tb + r, A1 + 4 * tb + r
            k('v_add_f32 v%d, v%d, v%d' % (vi(tb, 0, r), a0, a1))
            k('v_mul_f32 v%d, v%d, v%d' % (vi(tb, 1, r), a0, a0))
        for r in range(4):
            a1 = A1 + 4 * tb + r
            k('v_fmac_f32 v%d, v%d, v%d' % (vi(tb, 1, r), a1, a1))
    for i in range(8):
        k('v_add_f32_dpp v%d, v%d, v%d row_mirror row_mask:0xf bank_mask:0x3' % (V + 2 * i, V + 2 * i, V + 2 * i))
    for i in range(8):
        k('v_add_f32_dpp v%d, v%d, v%d row_mirror row_mask:0xf bank_mask:0xc' % (V + 2 * i, V + 2 * i + 1, V + 2 * i + 1))
    for i in range(4):
        k('v_add_f32_dpp v%d, v%d, v%d row_half_mirror row_mask:0xf bank_mask:0x5' % (V + 4 * i, V + 4 * i, V + 4 * i))
    for i in range(4):
        k('v_add_f32_dpp v%d, v%d, v%d row_half_mirror row_mask:0xf bank_mask:0xa' % (V + 4 * i, V + 4 * i + 2, V + 4 * i + 2))
    for i in range(4):
        k('v_add_f32_dpp v%d, v%d, v%d quad_perm:[1,0,3,2] row_mask:0xf bank_mask:0xf' % (V + 4 * i + 1, V + 4 * i, V + 4 * i))
    U = A1
    for i in range(4):
        k('v_add_f32_dpp v%d, v%d, v%d quad_perm:[2,3,0,1] row_mask:0xf bank_mask:0xf' % (U + i, V + 4 * i + 1, V + 4 * i + 1))
    vA = t + 1
    k('v_lshrrev_b32 v%d, 2, v1' % vA)
    k('s_lshl_b32 s%d, s3, 8' % b.s_tmp)
    k('v_lshl_add_u32 v%d, v%d, 3, s%d' % (vA, vA, b.s_tmp))
    k('ds_write_b64 v%d, %s offset:%d' % (vA, vr(U, 2), lds_small))
    k('ds_write_b64 v%d, %s offset:%d' % (vA, vr(U + 2, 2), lds_small + 128))
    vC, vG = t + 2, t + 3
    k('v_and_b32 v%d, 31, v1' % vG)
    k('v_lshrrev_b32 v%d, 5, v1' % vC)
    k('v_lshlrev_b32 v%d, 9, v%d' % (vC, vC))
    k('v_lshl_add_u32 v%d, v%d, 4, v%d' % (vA, vG, vC))
    k('v_lshl_add_u32 v%d, v%d, 3, v%d' % (vC, vG, vC))
    k('s_lshl_b32 s%d, s%d, 11' % (b.s_tmp, b.s_tb32))
    k('s_add_u32 s%d, s%d, 0x%x' % (b.s_tmp, b.s_tmp, STAT_OFF))
    k('s_lshl_b32 s%d, s%d, 9' % (b.s_t2, b.s_cq))
    k('s_add_u32 s%d, s%d, s%d' % (b.s_t2, b.s_t2, b.s_tmp))
    k.wait_lg(0)
    k.barrier()
    k('ds_read_b64 %s, v%d offset:%d' % (vr(V, 2), vC, lds_small))
    k('ds_read_b64 %s, v%d offset:%d' % (vr(V + 2, 2), vC, lds_small + 256))
    G = V + 4
    k('v_add_f32 v%d, v%d, v%d' % (G, V, V + 2))
    k('v_add_f32 v%d, v%d, v%d' % (G + 2, V + 1, V + 3))
    k('v_mov_b32 v%d, v%d' % (V, G))
    k('v_mov_b32 v%d, v%d' % (V + 1, G + 2))
    k('v_permlane32_swap_b32 v%d, v%d' % (G, V))
    k('v_permlane32_swap_b32 v%d, v%d' % (G + 2, V + 1))
    k('v_add_f32 v%d, v%d, v%d' % (G, G, V))
    k('v_add_f32 v%d, v%d, v%d' % (G + 2, G + 2, V + 1))
    k('v_mov_b32 v%d, s%d' % (G + 1, S_EPOCH))
    k('v_mov_b32 v%d, s%d' % (G + 3, S_EPOCH))
    k('s_cmp_eq_u32 s3, 0')
    k('s_cselect_b32 exec_lo, -1, 0')
    k('s_mov_b32 exec_hi, 0')
    k('buffer_store_dwordx4 %s, v%d, %s, s%d offen sc0 sc1' % (vr(G, 4), vA, srd(SRD_WS), b.s_t2))
    k('s_mov_b64 exec, -1')
    HP = V + 8
    vS0, vS1 = t + 28, t + 29
    s_o = [62, 63]
    k('v_lshrrev_b32 v%d, 1, v3' % vS0)
    k('v_lshlrev_b32 v%d, 5, v%d' % (vS0, vS0))
    k('v_add_u32 v%d, v%d, v2' % (vS0, vS0))
    k('v_lshlrev_b32 v%d, 4, v%d' % (vS0, vS0))
    k('v_and_b32 v%d, 1, v3' % vS1)
    k('v_lshl_add_u32 v%d, v%d, 3, v%d' % (vS0, vS1, vS0))
    k('s_cmp_eq_u32 s3, 3')
    k('s_cselect_b32 s%d, 0x%x, 0' % (s_o[0], OOB))
    k('v_add_u32 v%d, s%d, v%d' % (vS1, s_o[0], vS0))
    for nb in range(2):
        k('s_mul_i32 s%d, s%d, 7' % (s_o[nb], b.s_cq))
        k('s_lshl_b32 s%d, s3, 1' % b.s_t2)
        k('s_add_u32 s%d, s%d, s%d' % (s_o[nb], s_o[nb], b.s_t2))
        if nb:
            k('s_add_u32 s%d, s%d, 1' % (s_o[nb], s_o[nb]))
        k('s_and_b32 s%d, s%d, 1' % (b.s_t2, s_o[nb]))
        k('s_lshl_b32 s%d, s%d, 8' % (b.s_t2, b.s_t2))
        k('s_lshr_b32 s%d, s%d, 1' % (s_o[nb], s_o[nb]))
        k('s_lshl_b32 s%d, s%d, 17' % (s_o[nb], s_o[nb]))
        k('s_add_u32 s%d, s%d, s%d' % (s_o[nb], s_o[nb], b.s_t2))
        k('s_lshl_b32 s%d, s%d, 11' % (b.s_t2, b.s_tb32))
        k('s_add_u32 s%d, s%d, s%d' % (s_o[nb], s_o[nb], b.s_t2))
        k('s_add_u32 s%d, s%d, 0x%x' % (s_o[nb], s_o[nb], HT_OFF))
    for tb in range(2):
        for nb in range(2):
            a = b.ACC + 8 * tb + 4 * nb
            p = HP + 4 * tb + 2 * nb
            k('v_cvt_pk_bf16_f32 v%d, v%d, v%d' % (p, a, a + 1))
            k('v_cvt_pk_bf16_f32 v%d, v%d, v%d' % (p + 1, a + 2, a + 3))
            k('buffer_store_dwordx2 %s, v%d, %s, s%d offen offset:%d %s' % (vr(p, 2), vS1 if nb else vS0, srd(SRD_WS), s_o[nb], tb * 1024, sc1))
    for nb in range(2):
        k('s_sub_u32 s%d, s%d, 0x%x' % (s_o[nb], s_o[nb], HT_OFF - HH_OFF))
    P0 = t + 32
    L = k.newlabel('Lst')
    k.loop_label(L)
    k('buffer_load_dwordx4 %s, v%d, %s, s%d offen sc0 sc1' % (vr(P0, 4), vA, srd(SRD_WS), b.s_tmp))
    k('buffer_load_dwordx4 %s, v%d, %s, s%d offen offset:1024 sc0 sc1' % (vr(P0 + 4, 4), vA, srd(SRD_WS), b.s_tmp))
    k.force_wait(vm=0)
    k('v_xor_b32 v%d, s%d, v%d' % (P0 + 1, S_EPOCH, P0 + 1))
    k('v_xor_b32 v%d, s%d, v%d' % (P0 + 3, S_EPOCH, P0 + 3))
    k('v_xor_b32 v%d, s%d, v%d' % (P0 + 5, S_EPOCH, P0 + 5))
    k('v_xor_b32 v%d, s%d, v%d' % (P0 + 7, S_EPOCH, P0 + 7))
    k('v_or3_b32 v%d, v%d, v%d, v%d' % (P0 + 1, P0 + 1, P0 + 3, P0 + 5))
    k('v_or_b32 v%d, v%d, v%d' % (P0 + 1, P0 + 1, P0 + 7))
    k('v_cmp_ne_u32 vcc, 0, v%d' % (P0 + 1))
    k('s_cbranch_vccnz %s' % L)
    stamp(k, 13)
    Sx, Qx = P0, P0 + 2
    k('v_add_f32 v%d, v%d, v%d' % (Sx, P0, P0 + 4))
    k('v_add_f32 v%d, v%d, v%d' % (Qx, P0 + 2, P0 + 6))
    k('v_mov_b32 v%d, v%d' % (P0 + 4, Sx))
    k('v_mov_b32 v%d, v%d' % (P0 + 6, Qx))
    k('v_permlane32_swap_b32 v%d, v%d' % (Sx, P0 + 4))
    k('v_permlane32_swap_b32 v%d, v%d' % (Qx, P0 + 6))
    k('v_add_f32 v%d, v%d, v%d' % (Sx, Sx, P0 + 4))
    k('v_add_f32 v%d, v%d, v%d' % (Qx, Qx, P0 + 6))
    M, R = P0 + 1, P0 + 3
    k('v_mul_f32 v%d, %s, v%d' % (M, f32(1.0 / D), Sx))
    k('v_mul_f32 v%d, %s, v%d' % (Qx, f32(1.0 / D), Qx))
    k('v_fma_f32 v%d, -v%d, v%d, v%d' % (Qx, M, M, Qx))
    k('v_max_f32 v%d, 0, v%d' % (Qx, Qx))
    k('v_add_f32 v%d, %s, v%d' % (R, f32(1e-5), Qx))
    k('v_rsq_f32 v%d, v%d' % (R, R))
    k('v_mul_f32 v%d, v%d, v%d' % (Qx, Qx, R))
    k('v_fmaak_f32 v%d, v%d, v%d, %s' % (Qx, Qx, R, f32(1e-5)))
    k('v_rsq_f32 v%d, v%d' % (Qx, Qx))
    k('v_mul_f32 v%d, v%d, v%d' % (R, R, Qx))
    k('s_lshl_b32 s%d, s3, 8' % b.s_t2)
    k('v_lshl_add_u32 v%d, v%d, 2, s%d' % (vC, vG, b.s_t2))
    k('ds_write_b32 v%d, v%d offset:%d' % (vC, M, lds_small + 1024))
    k('ds_write_b32 v%d, v%d offset:%d' % (vC, R, lds_small + 1024 + 128))
    k('v_lshl_add_u32 v%d, v3, 4, s%d' % (vC, b.s_t2))
    MM = P0 + 8
    k.wait_lg(0)
    for tb in range(2):
        k('ds_read_b128 %s, v%d offset:%d' % (vr(MM + 8 * tb, 4), vC, lds_small + 1024 + 64 * tb))
        k('ds_read_b128 %s, v%d offset:%d' % (vr(MM + 8 * tb + 4, 4), vC, lds_small + 1024 + 128 + 64 * tb))
    for tb in range(2):
        for nb in range(2):
            a = b.ACC + 8 * tb + 4 * nb
            for r in (0, 2):
                k('v_pk_add_f32 %s, %s, %s neg_lo:[0,1] neg_hi:[0,1]' % (vr(a + r, 2), vr(a + r, 2), vr(MM + 8 * tb + r, 2)))
            for r in (0, 2):
                k('v_pk_mul_f32 %s, %s, %s' % (vr(a + r, 2), vr(a + r, 2), vr(MM + 8 * tb + 4 + r, 2)))
            p = HP + 4 * tb + 2 * nb
            k('v_cvt_pk_bf16_f32 v%d, v%d, v%d' % (p, a, a + 1))
            k('v_cvt_pk_bf16_f32 v%d, v%d, v%d' % (p + 1, a + 2, a + 3))
            k('buffer_store_dwordx2 %s, v%d, %s, s%d offen offset:%d %s' % (vr(p, 2), vS1 if nb else vS0, srd(SRD_WS), s_o[nb], tb * 1024, sc1))


class G:
    ACC = 16
    RING = 80
    NR = 16
    vW1, vW2 = 213, 214
    vRa, vRb = 215, 216
    vSa, vSb = 217, 218
    T = 220
    s_dtC, s_ft, s_dtD, s_st, s_tmp, s_t2, s_stage, s_a0, s_a1 = 64, 65, 66, 67, 68, 69, 70, 71, 72


def G_map(k):
    g = G
    k.c('---- C/D tile map')
    k('s_lshr_b32 s%d, s2, 3' % g.s_tmp)
    k('s_mul_i32 s%d, s%d, 37' % (g.s_t2, g.s_tmp))
    k('s_lshr_b32 s%d, s%d, 8' % (g.s_t2, g.s_t2))
    k('s_mul_i32 s%d, s%d, 7' % (g.s_dtC, g.s_t2))
    k('s_sub_u32 s%d, s%d, s%d' % (g.s_dtC, g.s_tmp, g.s_dtC))
    k('s_mov_b32 s%d, s%d' % (g.s_dtD, g.s_dtC))
    k('s_and_b32 s%d, s2, 7' % g.s_tmp)
    k('s_lshl_b32 s%d, s%d, 2' % (g.s_st, g.s_tmp))
    k('s_add_u32 s%d, s%d, s%d' % (g.s_st, g.s_st, g.s_t2))
    k('s_cmp_ge_u32 s%d, 4' % g.s_t2)
    k('s_cselect_b32 s%d, 99, s%d' % (g.s_st, g.s_st))
    k('s_mul_i32 s%d, s%d, 3' % (g.s_a0, g.s_tmp))
    k('s_add_u32 s%d, s%d, 4' % (g.s_a0, g.s_a0))
    k('s_lshl_b32 s%d, s%d, 2' % (g.s_a1, g.s_tmp))
    k('s_cmp_lt_u32 s%d, 4' % g.s_tmp)
    k('s_cselect_b32 s%d, s%d, s%d' % (g.s_ft, g.s_a1, g.s_a0))
    k('s_cselect_b32 s%d, 4, 3' % g.s_a0)
    k('s_add_u32 s%d, s%d, s%d' % (g.s_ft, g.s_ft, g.s_t2))
    k('s_cmp_ge_u32 s%d, s%d' % (g.s_t2, g.s_a0))
    k('s_cselect_b32 s%d, 99, s%d' % (g.s_ft, g.s_ft))


def G_w_setup(k, which, lds_base, per_wave):
    g = G
    t = g.T
    stride = F * 2 if which == 1 else S * 2
    krows = 512 if which == 1 else 448
    vW = g.vW1 if which == 1 else g.vW2
    va, vb = (g.vRa, g.vRb) if which == 1 else (g.vSa, g.vSb)
    s_tile = g.s_ft if which == 1 else g.s_st
    k('s_mul_i32 s%d, s3, %d' % (g.s_stage, per_wave))
    k('s_add_u32 s%d, s%d, %d' % (g.s_stage, g.s_stage, lds_base))
    k('v_lshrrev_b32 v%d, 3, v1' % t)
    k('v_mul_u32_u24 v%d, %d, v%d' % (vW, stride, t))
    k('v_and_b32 v%d, 1, v3' % t)
    k('v_lshlrev_b32 v%d, 2, v%d' % (t, t))
    k('v_and_b32 v%d, 7, v1' % (t + 1))
    k('v_xor_b32 v%d, v%d, v%d' % (t, t, t + 1))
    k('v_lshl_add_u32 v%d, v%d, 4, v%d' % (vW, t, vW))
    k('s_mul_i32 s%d, s3, %d' % (g.s_tmp, krows * stride))
    k('s_lshl_b32 s%d, s%d, 7' % (g.s_t2, s_tile))
    k('s_add_u32 s%d, s%d, s%d' % (g.s_tmp, g.s_tmp, g.s_t2))
    k('v_add_u32 v%d, s%d, v%d' % (vW, g.s_tmp, vW))
    k('v_lshrrev_b32 v%d, 5, v1' % t)
    k('v_lshlrev_b32 v%d, %d, v%d' % (va, 10 if which == 1 else 9, t))
    k('v_bfe_u32 v%d, v1, 2, 2' % t)
    k('v_lshl_add_u32 v%d, v%d, 7, v%d' % (va, t, va))
    k('v_lshrrev_b32 v%d, 1, v%d' % (t, t))
    k('s_lshr_b32 s%d, s3, 1' % g.s_tmp)
    k('v_xor_b32 v%d, s%d, v%d' % (t, g.s_tmp, t))
    k('v_lshl_add_u32 v%d, v%d, 6, v%d' % (va, t, va))
    k('v_and_b32 v%d, 1, v3' % t)
    k('v_lshl_add_u32 v%d, v%d, 5, v%d' % (va, t, va))
    k('v_and_b32 v%d, 3, v1' % t)
    k('v_lshl_add_u32 v%d, v%d, 3, v%d' % (va, t, va))
    k('v_add_u32 v%d, s%d, v%d' % (va, g.s_stage, va))
    k('v_xor_b32 v%d, 64, v%d' % (vb, va))


def G_w_dma(k, which, t0, nt, slot0, tag):
    g = G
    stride = F * 2 if which == 1 else S * 2
    for i in range(2 * nt):
        k('s_add_u32 m0, s%d, %d' % (g.s_stage, slot0 * 2048 + i * 1024))
        k('s_mov_b32 s%d, %d' % (g.s_tmp, (16 * t0 + 8 * i) * stride))
        k('buffer_load_dwordx4 v%d, %s, s%d offen lds' % (g.vW1 if which == 1 else g.vW2, srd(SRD_W1 if which == 1 else SRD_W2), g.s_tmp), tag=tag)


def G_w_read(k, which, t, slot, areg):
    g = G
    va, vb = (g.vRa, g.vRb) if which == 1 else (g.vSa, g.vSb)
    sec = 512 if which == 1 else 1024
    for i, v in enumerate((va, vb)):
        k('ds_read_b64_tr_b16 %s, v%d offset:%d' % (ar(areg + 4 * i, 2), v, slot * 2048))
        k('ds_read_b64_tr_b16 %s, v%d offset:%d' % (ar(areg + 4 * i + 2, 2), v, slot * 2048 + sec))


def G_a_setup(k, which):
    g = G
    nks = 128 if which == 1 else 112
    per = 32 if which == 1 else 28
    base = HH_OFF if which == 1 else U_OFF
    s_dt = g.s_dtC if which == 1 else g.s_dtD
    k('s_lshl_b32 s%d, s%d, 1' % (g.s_tmp, s_dt))
    k('s_and_b32 s%d, s3, 1' % g.s_t2)
    k('s_add_u32 s%d, s%d, s%d' % (g.s_a0, g.s_tmp, g.s_t2))
    k('s_xor_b32 s%d, s%d, 1' % (g.s_a1, g.s_a0))
    k('s_mul_i32 s%d, s3, %d' % (g.s_tmp, per * 1024))
    k('s_add_u32 s%d, s%d, 0x%x' % (g.s_tmp, g.s_tmp, base))
    for s_ in (g.s_a0, g.s_a1):
        k('s_mul_i32 s%d, s%d, %d' % (s_, s_, nks * 1024))
        k('s_add_u32 s%d, s%d, s%d' % (s_, s_, g.s_tmp))


def G_a_load(k, t, sc1=''):
    g = G
    if t and t % 4 == 0:
        k('s_add_u32 s%d, s%d, 4096' % (g.s_a0, g.s_a0))
        k('s_add_u32 s%d, s%d, 4096' % (g.s_a1, g.s_a1))
    r = g.RING + 8 * (t % g.NR)
    for i, s_ in enumerate((g.s_a0, g.s_a1)):
        k('buffer_load_dwordx4 %s, v4, %s, s%d offen offset:%d %s' % (vr(r + 4 * i, 4), srd(SRD_WS), s_, (t % 4) * 1024, sc1))


def G_mfma(k, t, areg):
    g = G
    r = g.RING + 8 * (t % g.NR)
    for iw in range(2):
        for ia in range(2):
            L = 2 * iw + ia
            a = vr(g.ACC + 16 * L, 16)
            c = '0' if (t == 0 and L != 0) else a
            k('v_mfma_f32_32x32x16_bf16 %s, %s, %s, %s' % (a, ar(areg + 4 * iw, 4), vr(r + 4 * ia, 4), c))


def C_init(k):
    g = G
    t = g.T
    k('v_lshrrev_b32 v%d, 5, v1' % t)
    k('v_lshlrev_b32 v%d, 3, v%d' % (t, t))
    k('s_lshl_b32 s%d, s%d, 7' % (g.s_tmp, g.s_ft))
    k('s_lshr_b32 s%d, s3, 1' % g.s_t2)
    k('s_lshl_b32 s%d, s%d, 6' % (g.s_t2, g.s_t2))
    k('s_add_u32 s%d, s%d, s%d' % (g.s_tmp, g.s_tmp, g.s_t2))
    for q in range(4):
        k('buffer_load_dwordx2 %s, v%d, %s, s%d offen offset:%d' % (vr(t + 2 + 2 * q, 2), t, srd(SRD_B1), g.s_tmp, 16 * q))


def C_init_finish(k):
    g = G
    t = g.T
    for q in range(4):
        for i in range(2):
            k('v_lshlrev_b32 v%d, 16, v%d' % (g.ACC + 4 * q + 2 * i, t + 2 + 2 * q + i))
            k('v_and_b32 v%d, 0xffff0000, v%d' % (g.ACC + 4 * q + 2 * i + 1, t + 2 + 2 * q + i))


def C_epilogue(k, lds_red, sc1=''):
    g = G
    t = g.T
    k.c('---- phase C epilogue')
    for L in range(1, 4):
        k('s_xor_b32 s%d, s3, %d' % (g.s_tmp, L))
        k('s_mul_i32 s%d, s%d, 12288' % (g.s_tmp, g.s_tmp))
        k('s_add_u32 s%d, s%d, %d' % (g.s_tmp, g.s_tmp, lds_red + (L - 1) * 4096))
        k('v_add_u32 v%d, s%d, v4' % (t + L, g.s_tmp))
    for L in range(1, 4):
        for q in range(4):
            k('ds_write_b128 v%d, %s offset:%d' % (t + L, vr(g.ACC + 16 * L + 4 * q, 4), q * 1024))
    k('s_mul_i32 s%d, s3, 12288' % g.s_tmp)
    k('s_add_u32 s%d, s%d, %d' % (g.s_tmp, g.s_tmp, lds_red))
    k('v_add_u32 v%d, s%d, v4' % (t, g.s_tmp))
    k('s_lshl_b32 s%d, s%d, 1' % (g.s_tmp, g.s_dtC))
    k('s_and_b32 s%d, s3, 1' % g.s_t2)
    k('s_add_u32 s%d, s%d, s%d' % (g.s_tmp, g.s_tmp, g.s_t2))
    k('s_mul_i32 s%d, s%d, 112' % (g.s_tmp, g.s_tmp))
    k('s_lshl_b32 s%d, s%d, 2' % (g.s_t2, g.s_ft))
    k('s_add_u32 s%d, s%d, s%d' % (g.s_tmp, g.s_tmp, g.s_t2))
    k('s_and_b32 s%d, s3, 2' % g.s_t2)
    k('s_add_u32 s%d, s%d, s%d' % (g.s_tmp, g.s_tmp, g.s_t2))
    k('s_lshl_b32 s%d, s%d, 10' % (g.s_tmp, g.s_tmp))
    k('s_add_u32 s%d, s%d, 0x%x' % (g.s_tmp, g.s_tmp, U_OFF))
    k.wait_lg(0)
    k.barrier()
    R = g.ACC + 16
    for q in range(4):
        for L in range(3):
            k('ds_read_b128 %s, v%d offset:%d' % (vr(R + 16 * L + 4 * q, 4), t, L * 4096 + q * 1024))
    c1 = -2.0 * 0.7978845608028654 * 1.4426950408889634
    c2 = c1 * 0.044715
    sc = 74
    k('s_mov_b32 s%d, %s' % (sc, f32(c1)))
    k('s_mov_b32 s%d, %s' % (sc + 2, f32(c2)))
    X2 = g.RING
    k('v_mov_b32 v%d, s%d' % (t + 4, sc))
    k('v_mov_b32 v%d, s%d' % (t + 5, sc))
    for half in range(2):
        for i in range(8 * half, 8 * half + 8, 2):
            a = g.ACC + i
            k('v_pk_add_f32 %s, %s, %s' % (vr(R + i, 2), vr(R + i, 2), vr(R + 16 + i, 2)))
            k('v_pk_add_f32 %s, %s, %s' % (vr(a, 2), vr(a, 2), vr(R + 32 + i, 2)))
        for i in range(8 * half, 8 * half + 8, 2):
            a = g.ACC + i
            k('v_pk_add_f32 %s, %s, %s' % (vr(a, 2), vr(a, 2), vr(R + i, 2)))
        for i in range(8 * half, 8 * half + 8, 2):
            a = g.ACC + i
            k('v_pk_mul_f32 %s, %s, %s' % (vr(X2 + i, 2), vr(a, 2), vr(a, 2)))
        for i in range(8 * half, 8 * half + 8, 2):
            k('v_pk_fma_f32 %s, %s, %s, %s op_sel_hi:[1,0,1]' % (vr(X2 + i, 2), vr(X2 + i, 2), sr(sc + 2, 2), vr(t + 4, 2)))
        for i in range(8 * half, 8 * half + 8, 2):
            k('v_pk_mul_f32 %s, %s, %s' % (vr(X2 + i, 2), vr(X2 + i, 2), vr(g.ACC + i, 2)))
        for i in range(8 * half, 8 * half + 8):
            k('v_exp_f32 v%d, v%d' % (X2 + i, X2 + i))
        for i in range(8 * half, 8 * half + 8, 2):
            k('v_pk_add_f32 %s, %s, 1.0 op_sel_hi:[1,0]' % (vr(X2 + i, 2), vr(X2 + i, 2)))
        for i in range(8 * half, 8 * half + 8):
            k('v_rcp_f32 v%d, v%d' % (X2 + i, X2 + i))
        for i in range(8 * half, 8 * half + 8, 2):
            k('v_pk_mul_f32 %s, %s, %s' % (vr(X2 + i, 2), vr(X2 + i, 2), vr(g.ACC + i, 2)))
        p = X2 + 16 + 4 * half
        for i in range(4):
            k('v_cvt_pk_bf16_f32 v%d, v%d, v%d' % (p + i, X2 + 8 * half + 2 * i, X2 + 8 * half + 2 * i + 1))
        k('buffer_store_dwordx4 %s, v4, %s, s%d offen offset:%d %s' % (vr(p, 4), srd(SRD_WS), g.s_tmp, half * 1024, sc1))


def D_init(k, sc1=''):
    g = G
    t = g.T
    k('v_lshrrev_b32 v%d, 5, v1' % t)
    k('v_lshlrev_b32 v%d, 3, v%d' % (t, t))
    k('s_lshl_b32 s%d, s%d, 7' % (g.s_tmp, g.s_st))
    k('s_lshr_b32 s%d, s3, 1' % g.s_t2)
    k('s_lshl_b32 s%d, s%d, 6' % (g.s_t2, g.s_t2))
    k('s_add_u32 s%d, s%d, s%d' % (g.s_tmp, g.s_tmp, g.s_t2))
    for q in range(4):
        k('buffer_load_dwordx2 %s, v%d, %s, s%d offen offset:%d' % (vr(t + 2 + 2 * q, 2), t, srd(SRD_B2), g.s_tmp, 16 * q))
    k('v_and_b32 v%d, 31, v1' % (t + 1))
    k('v_lshl_add_u32 v%d, v%d, 4, v%d' % (t + 1, t + 1, t))
    k('s_lshl_b32 s%d, s%d, 1' % (g.s_tmp, g.s_dtD))
    k('s_and_b32 s%d, s3, 1' % g.s_t2)
    k('s_add_u32 s%d, s%d, s%d' % (g.s_tmp, g.s_tmp, g.s_t2))
    k('s_lshl_b32 s%d, s%d, 7' % (g.s_tmp, g.s_tmp))
    k('s_lshl_b32 s%d, s%d, 2' % (g.s_t2, g.s_st))
    k('s_add_u32 s%d, s%d, s%d' % (g.s_tmp, g.s_tmp, g.s_t2))
    k('s_and_b32 s%d, s3, 2' % g.s_t2)
    k('s_add_u32 s%d, s%d, s%d' % (g.s_tmp, g.s_tmp, g.s_t2))
    k('s_lshl_b32 s%d, s%d, 10' % (g.s_tmp, g.s_tmp))
    k('s_add_u32 s%d, s%d, 0x%x' % (g.s_tmp, g.s_tmp, HT_OFF))
    for q in range(4):
        k('buffer_load_dwordx2 %s, v%d, %s, s%d offen offset:%d %s' % (vr(t + 10 + 2 * q, 2), t + 1, srd(SRD_WS), g.s_tmp, 512 * q, sc1))


def D_init_finish(k):
    g = G
    t = g.T
    for q in range(4):
        for i in range(2):
            a = g.ACC + 4 * q + 2 * i
            k('v_lshlrev_b32 v%d, 16, v%d' % (a, t + 2 + 2 * q + i))
            k('v_and_b32 v%d, 0xffff0000, v%d' % (a + 1, t + 2 + 2 * q + i))
            k('v_lshlrev_b32 v%d, 16, v%d' % (t + 18, t + 10 + 2 * q + i))
            k('v_and_b32 v%d, 0xffff0000, v%d' % (t + 19, t + 10 + 2 * q + i))
            k('v_pk_add_f32 %s, %s, %s' % (vr(a, 2), vr(a, 2), vr(t + 18, 2)))


def D_epilogue(k, lds_red):
    g = G
    t = g.T
    k.c('---- phase D epilogue')
    k('v_lshrrev_b32 v%d, 5, v1' % t)
    k('v_lshlrev_b32 v%d, 10, v%d' % (t, t))
    k('v_and_b32 v%d, 31, v1' % (t + 1))
    k('v_lshl_add_u32 v%d, v%d, 2, v%d' % (t, t + 1, t))
    k('s_lshl_b32 s%d, s3, 14' % g.s_tmp)
    k('s_add_u32 s%d, s%d, %d' % (g.s_tmp, g.s_tmp, lds_red))
    k('s_lshr_b32 s%d, s3, 1' % g.s_t2)
    k('s_lshl_b32 s%d, s%d, 13' % (g.s_t2, g.s_t2))
    k('s_add_u32 s%d, s%d, s%d' % (g.s_tmp, g.s_tmp, g.s_t2))
    k('s_and_b32 s%d, s3, 1' % g.s_t2)
    k('s_lshl_b32 s%d, s%d, 7' % (g.s_t2, g.s_t2))
    k('s_add_u32 s%d, s%d, s%d' % (g.s_tmp, g.s_tmp, g.s_t2))
    k('v_add_u32 v%d, s%d, v%d' % (t, g.s_tmp, t))
    assert lds_red % 16384 == 0
    k('v_xor_b32 v%d, 128, v%d' % (t + 1, t))
    k('v_xor_b32 v%d, 0x2000, v%d' % (t + 2, t))
    k('v_xor_b32 v%d, 0x2080, v%d' % (t + 3, t))
    for L in range(4):
        for q in range(4):
            for r in (0, 2):
                a = g.ACC + 16 * L + 4 * q + r
                k('ds_write2st64_b32 v%d, v%d, v%d offset0:%d offset1:%d' % (t + L, a, a + 1, 8 * q + r, 8 * q + r + 1))
    k('s_lshl_b32 s%d, s3, 12' % g.s_tmp)
    k('s_add_u32 s%d, s%d, %d' % (g.s_tmp, g.s_tmp, lds_red))
    k('v_add_u32 v%d, s%d, v4' % (t + 4, g.s_tmp))
    k('v_mul_u32_u24 v%d, 896, v3' % (t + 5))
    k('v_lshl_add_u32 v%d, v2, 3, v%d' % (t + 5, t + 5))
    k('s_lshl_b32 s%d, s%d, 2' % (g.s_tmp, g.s_st))
    k('s_add_u32 s%d, s%d, s3' % (g.s_tmp, g.s_tmp))
    k('s_mul_i32 s%d, s%d, %d' % (g.s_tmp, g.s_tmp, 16 * 896))
    k('s_lshl_b32 s%d, s%d, 7' % (g.s_t2, g.s_dtD))
    k('s_add_u32 s%d, s%d, s%d' % (g.s_tmp, g.s_tmp, g.s_t2))
    k('s_add_u32 s%d, s%d, %d' % (g.s_t2, g.s_tmp, 8 * 896))
    k.wait_lg(0)
    k.barrier()
    R = g.ACC
    for i in range(4):
        for w in range(4):
            k('ds_read_b128 %s, v%d offset:%d' % (vr(R + 16 * i + 4 * w, 4), t + 4, w * 16384 + i * 1024))
    for i in range(4):
        r = R + 16 * i
        for j in (0, 2):
            k('v_pk_add_f32 %s, %s, %s' % (vr(r + j, 2), vr(r + j, 2), vr(r + 4 + j, 2)))
            k('v_pk_add_f32 %s, %s, %s' % (vr(r + 8 + j, 2), vr(r + 8 + j, 2), vr(r + 12 + j, 2)))
        for j in (0, 2):
            k('v_pk_add_f32 %s, %s, %s' % (vr(r + j, 2), vr(r + j, 2), vr(r + 8 + j, 2)))
        k('v_cvt_pk_bf16_f32 v%d, v%d, v%d' % (r + 4, r, r + 1))
        k('v_cvt_pk_bf16_f32 v%d, v%d, v%d' % (r + 5, r + 2, r + 3))
        k('buffer_store_dwordx2 %s, v%d, %s, s%d offen offset:%d' % (vr(r + 4, 2), t + 5, srd(SRD_OUT), g.s_t2 if i >= 2 else g.s_tmp, (i % 2) * 4 * 896))
```

```python
import sys, os
sys.path.insert(0, os.path.dirname(os.path.abspath(__file__)))
from dsl import Kernel
import phases as P

NAME = 'sequential_preLN__sliding_local_dilated__mixer_token_mlp__prompt'
HEADER = open(os.path.join(os.path.dirname(os.path.abspath(__file__)), '..', NAME + '.s.ref')).read().split('; Override launch')[0]


def wrap(kernels):
    out = [HEADER.rstrip('\n')]
    for label, k, grid, lds in kernels:
        out.append('; @launch kernel=%s grid=(%d,1,1) block=(256,1,1) lds=%d' % (label, grid, lds))
    out.append('.amdgcn_target "amdgcn-amd-amdhsa--gfx950"')
    out.append('.text')
    seen = []
    for label, k, grid, lds in kernels:
        if label in seen:
            continue
        seen.append(label)
        out.append('.globl %s\n.p2align 8\n.type %s,@function\n%s:' % (label, label, label))
        out.append(k.text())
    out.append('.section .rodata,"a"')
    seen = []
    for label, k, grid, lds in kernels:
        if label in seen:
            continue
        seen.append(label)
        nv = k.max_v + 1
        acc = (nv + 3) // 4 * 4
        tot = acc + k.max_a + 1 if k.max_a >= 0 else nv
        out.append('.p2align 6\n.amdhsa_kernel %s\n  .amdhsa_next_free_vgpr %d\n  .amdhsa_next_free_sgpr 102\n'
                   '  .amdhsa_accum_offset %d\n  .amdhsa_group_segment_fixed_size 0\n  .amdhsa_kernarg_size 88\n'
                   '  .amdhsa_user_sgpr_count 2\n  .amdhsa_user_sgpr_kernarg_segment_ptr 1\n'
                   '  .amdhsa_system_sgpr_workgroup_id_x 1\n.end_amdhsa_kernel' % (label, tot, acc))
        sys.stderr.write('%s: %d instrs, %d nops, v<=%d a<=%d s<=%d\n' % (label, k.n_ins, k.n_nops, k.max_v, k.max_a, k.max_s))
    return '\n'.join(out) + '\n'


def kernel_A():
    k = Kernel('A')
    P.prologue(k, 256, 'L_end_A', [P.ARG[n] for n in ('x', 'wqkv', 'ws')])
    P.phaseA(k)
    k.label('L_end_A')
    k('s_endpgm')
    return ('phaseA_kernel', k, 256, P.A_LDS_END)


def kernel_B(stamps=False):
    k = Kernel('B'); k.stamps = stamps
    P.prologue(k, 256, 'L_end_B', [P.ARG[n] for n in ('x', 'wo', 'ws', 'dbg')])
    P.epoch_publish(k, 250)
    P.B_setup(k)
    P.B_wo_addr(k, 36864, 28672)
    P.B_wo_dma(k, 0, 8, 0)
    P.B_wo_dma(k, 8, 8, 14336)
    P.B_xinit(k)
    P.B_wo_read(k, 0, 8, 0, 0)
    P.B_wo_read(k, 8, 8, 0, 14336)
    P.B_xinit_finish(k)
    P.epoch_get(k, 250)
    P.B_main(k, 0, 4096, 0)
    k.label('L_end_B')
    k('s_endpgm')
    return ('phaseB_kernel', k, 256, 36864 + 4 * 28672)


def gemm_kernel(which, stamps=False):
    nm = 'C' if which == 1 else 'D'
    k = Kernel(nm); k.stamps = stamps
    end = 'L_end_' + nm
    P.prologue(k, 256, end, [P.ARG[n] for n in (('w1', 'b1', 'ws') if which == 1 else ('w2', 'b2', 'ws', 'out'))])
    g = P.G
    P.G_map(k)
    k('s_cmp_ge_u32 s%d, 99' % (g.s_ft if which == 1 else g.s_st))
    k('s_cbranch_scc1 %s' % end)
    nk = 32 if which == 1 else 28
    h = nk // 2
    P.G_w_setup(k, which, 0, 32768)
    P.G_w_dma(k, which, 0, h, 0, 'w0')
    P.G_a_setup(k, which)
    if which == 1:
        P.C_init(k)
    else:
        P.D_init(k)
    for t in range(10):
        P.G_a_load(k, t)
    k.wait_tag('w0')
    for t in range(h):
        P.G_w_read(k, which, t, t, 8 * t)
    k.wait_lg(0)
    P.G_w_dma(k, which, h, h, 0, 'w1')
    if which == 1:
        P.C_init_finish(k)
    else:
        P.D_init_finish(k)
    nxt = 10
    for t in range(nk):
        if t == h:
            k.wait_tag('w1')
            for tt in range(h, nk):
                P.G_w_read(k, which, tt, tt - h, 8 * tt)
        P.G_mfma(k, t, 8 * t)
        while nxt < nk and nxt < t + g.NR:
            P.G_a_load(k, nxt)
            nxt += 1
    k.wait_lg(0)
    k.barrier()
    if which == 1:
        P.C_epilogue(k, 0)
    else:
        P.D_epilogue(k, 0)
    k.label(end)
    k('s_endpgm')
    return ('phase%s_kernel' % nm, k, 256, 131072)


if __name__ == '__main__':
    which = sys.argv[1] if len(sys.argv) > 1 else 'multi'
    outp = sys.argv[2] if len(sys.argv) > 2 else os.path.join(os.path.dirname(os.path.abspath(__file__)), '..', NAME + '.s')
    if which == 'multi':
        ks = [kernel_A(), kernel_B(), gemm_kernel(1), gemm_kernel(2)]
    open(outp, 'w').write(wrap(ks))
```

```python
import struct
from dsl import Kernel, vr, ar, sr

S, D, H, DH, F = 2048, 448, 16, 28, 1792

OF_OFF = 0x000000
HH_OFF = 0x200000
HT_OFF = 0x400000
U_OFF = 0x600000
STAT_OFF = 0x800000
FLAG_OFF = 0x840000
WS_SIZE = 0x900000
OOB = 0x40000000

SRD_X, SRD_WQKV, SRD_WO, SRD_W1, SRD_W2, SRD_B1, SRD_B2, SRD_OUT, SRD_WS, SRD_DBG = 8, 12, 16, 20, 24, 28, 32, 36, 40, 44
S_WG, S_WAVE = 2, 3
S_EPOCH = 4
S_SPIN = 6
S_ONES = 5
S_T = 86
V_LANE, V_T16, V_G, V_L16 = 1, 2, 3, 4


def f32(x):
    return '0x%08x' % struct.unpack('<I', struct.pack('<f', x))[0]


def srd(base):
    return sr(base, 4)


def prologue(k, nwg, end_label, need):
    k('s_cmp_ge_u32 s2, %d' % nwg)
    k('s_cbranch_scc1 %s' % end_label)
    for base, off, size in need:
        k('s_load_dwordx2 %s, s[0:1], %d' % (sr(base, 2), off))
    k('v_lshrrev_b32 v1, 6, v0')
    k('v_readfirstlane_b32 s3, v1')
    k('v_and_b32 v1, 63, v0')
    k('v_and_b32 v2, 15, v0')
    k('v_lshrrev_b32 v3, 4, v1')
    k('v_lshlrev_b32 v4, 4, v1')
    for base, off, size in need:
        k('s_mov_b32 s%d, 0x%x' % (base + 2, size))
        k('s_mov_b32 s%d, 0x00020000' % (base + 3))
    k('s_mov_b32 s%d, 0x3f803f80' % S_ONES)
    k('s_mov_b32 s%d, 0x40000' % S_SPIN)
    k.end_label = end_label


ARG = dict(x=(SRD_X, 0, S * D * 2), wqkv=(SRD_WQKV, 8, D * 3 * D * 2), wo=(SRD_WO, 16, D * D * 2),
           w1=(SRD_W1, 32, S * F * 2), b1=(SRD_B1, 40, F * 2), w2=(SRD_W2, 48, F * S * 2), b2=(SRD_B2, 56, S * 2),
           out=(SRD_OUT, 64, S * D * 2), dbg=(SRD_DBG, 72, 256), ws=(SRD_WS, 80, WS_SIZE))


def xgroup_reduce(k, regs, tmp, op='v_add_f32'):
    for swap in ('v_permlane32_swap_b32', 'v_permlane16_swap_b32'):
        for r, t in zip(regs, tmp):
            k('v_mov_b32 v%d, v%d' % (t, r))
        for r, t in zip(regs, tmp):
            k('%s v%d, v%d' % (swap, r, t))
        for r, t in zip(regs, tmp):
            k('%s v%d, v%d, v%d' % (op, r, r, t))


A_LDS_CS = 0
A_LDS_ST = 512
A_LDS_KV = 2048
A_LDS_W = 12288
A_LDS_X = 61440
A_XSLOT = [2, 1, 0, 3]
A_LDS_END = A_LDS_X + 4 * 18432
LDS_MID = 12288
LDS_STG = 65536
STG_SZ = 24576
LDS_END = 163840
WO_F = [135168, 98304, 69632, 40960]
TMP = 219


def xslot(grp):
    return A_XSLOT.index(grp % 4) * 18432


def phaseA(k, sc1='', hooks=None):
    hooks = hooks or {}
    XR = 16
    ACC = 136
    WF = 88
    ST = 224
    vXl, vXu, vXh, vW, vA0, vA1, vH1, vH2 = 120, 121, 122, 123, 124, 125, 126, 127
    vRe, vRo, vHe, vHo = 128, 129, 130, 131
    vT = 237
    BP, BC, BPA = 240, 244, 248
    s_rb, s_head, s_t0, s_m0w, s_m0x, s_tmp = 48, 49, 50, 51, 52, 53
    s_hm = 54
    s_m0h = 78

    def hook(name):
        if name in hooks:
            hooks[name]()

    def xreg(j, blk):
        return XR + (j % 2) * 12 + blk * 4

    def acc(blk, nbi):
        return ACC + blk * 24 + nbi * 4
    H1, H2 = ACC + 48, ACC + 52

    k.c('---- phase A setup')
    k('s_and_b32 s%d, s2, 7' % s_rb)
    k('s_lshl_b32 s%d, s%d, 1' % (s_rb, s_rb))
    k('s_lshr_b32 s%d, s2, 7' % s_tmp)
    k('s_add_u32 s%d, s%d, s%d' % (s_rb, s_rb, s_tmp))
    k('s_lshr_b32 s%d, s2, 3' % s_head)
    k('s_and_b32 s%d, s%d, 15' % (s_head, s_head))
    k('v_lshrrev_b32 v%d, 2, v1' % vT)
    k('v_mul_u32_u24 v%d, 2688, v%d' % (vW, vT))
    k('v_lshrrev_b32 v%d, 5, v1' % vT)
    k('v_lshlrev_b32 v%d, 1, v%d' % (vT, vT))
    k('v_and_b32 v%d, 3, v1' % (vT + 1))
    k('v_xor_b32 v%d, v%d, v%d' % (vT, vT, vT + 1))
    k('v_lshl_add_u32 v%d, v%d, 4, v%d' % (vW, vT, vW))
    k('s_mul_i32 s%d, s%d, 56' % (s_tmp, s_head))
    k('s_mul_i32 s%d, s3, %d' % (s_m0w, 16 * 2688))
    k('s_add_u32 s%d, s%d, s%d' % (s_tmp, s_tmp, s_m0w))
    k('v_add_u32 v%d, s%d, v%d' % (vW, s_tmp, vW))
    k('s_lshr_b32 s%d, s3, 1' % s_tmp)
    k('s_mul_i32 s%d, s%d, 6144' % (s_m0w, s_tmp))
    k('s_and_b32 s%d, s3, 1' % s_tmp)
    k('s_lshl_b32 s%d, s%d, 10' % (s_tmp, s_tmp))
    k('s_add_u32 s%d, s%d, s%d' % (s_m0w, s_m0w, s_tmp))
    k('v_lshrrev_b32 v%d, 3, v1' % vT)
    k('v_mul_u32_u24 v%d, 896, v%d' % (vXh, vT))
    k('v_and_b32 v%d, 7, v1' % vT)
    k('v_xor_b32 v%d, v%d, v3' % (vT, vT))
    k('v_lshl_add_u32 v%d, v%d, 4, v%d' % (vXl, vT, vXh))
    k('s_lshl_b32 s%d, s%d, 7' % (s_t0, s_rb))
    k('s_lshl_b32 s%d, s3, 5' % s_tmp)
    k('s_add_u32 s%d, s%d, s%d' % (s_tmp, s_tmp, s_t0))
    k('s_mul_i32 s%d, s%d, 896' % (s_tmp, s_tmp))
    k('v_xor_b32 v%d, 64, v%d' % (vXu, vXl))
    k('v_add_u32 v%d, s%d, v%d' % (vXl, s_tmp, vXl))
    k('s_add_u32 s%d, s%d, %d' % (s_tmp, s_tmp, 8 * 896))
    k('v_add_u32 v%d, s%d, v%d' % (vXu, s_tmp, vXu))
    k('s_lshl_b32 s%d, s3, 1' % s_tmp)
    k('v_xor_b32 v%d, s%d, v%d' % (vT, s_tmp, vT))
    k('v_lshl_add_u32 v%d, v%d, 4, v%d' % (vXh, vT, vXh))
    k('s_lshl_b32 s%d, s3, 2' % s_tmp)
    k('s_add_u32 s%d, s%d, s%d' % (s_tmp, s_tmp, s_t0))
    k('s_sub_u32 s%d, s%d, 16' % (s_tmp, s_tmp))
    k('s_mul_i32 s%d, s%d, 896' % (s_tmp, s_tmp))
    k('s_cmp_eq_u32 s%d, 0' % s_rb)
    k('s_cselect_b32 s%d, 0x%x, s%d' % (s_tmp, OOB, s_tmp))
    k('v_add_u32 v%d, s%d, v%d' % (vXh, s_tmp, vXh))
    k('s_lshl_b32 s%d, s3, 12' % s_m0x)
    k('s_add_u32 s%d, s%d, %d' % (s_m0x, s_m0x, A_LDS_X + 2048))
    k('s_lshl_b32 s%d, s3, 9' % s_m0h)
    k('s_cmp_eq_u32 s3, 0')
    k('s_cselect_b32 s%d, 0xffffff00, -1' % s_hm)
    k('s_mov_b32 s%d, 0' % (s_hm + 1))

    def dma_group(grp):
        tag = 'G%d' % grp
        for p in range(3):
            k('s_add_u32 m0, s%d, %d' % (s_m0w, A_LDS_W + (grp % 4) * 12288 + p * 2048))
            k('s_mov_b32 s%d, %d' % (s_tmp, grp * 64 * 2688 + p * 896))
            k('buffer_load_dwordx4 v%d, %s, s%d offen lds' % (vW, srd(SRD_WQKV), s_tmp), tag=tag)
        for i in range(4):
            k('s_add_u32 m0, s%d, %d' % (s_m0x, xslot(grp) + i * 1024))
            k('s_mov_b32 s%d, %d' % (s_tmp, grp * 128 + (i >> 1) * 16 * 896))
            k('buffer_load_dwordx4 v%d, %s, s%d offen lds' % (vXu if i & 1 else vXl, srd(SRD_X), s_tmp), tag=tag)
        k('s_add_u32 m0, s%d, %d' % (s_m0h, A_LDS_X + xslot(grp)))
        k('s_mov_b32 s%d, %d' % (s_tmp, grp * 128))
        k('s_mov_b64 exec, %s' % sr(s_hm, 2))
        k('buffer_load_dwordx4 v%d, %s, s%d offen lds' % (vXh, srd(SRD_X), s_tmp), tag=tag)
        k('s_mov_b64 exec, -1')

    hook('A_pre')
    for p in range(2):
        dma_group(p)
    k('v_mul_u32_u24 v%d, 18432, v3' % vT)
    k('v_lshl_add_u32 v%d, v2, 3, v%d' % (vT, vT))
    k('v_mov_b32 v%d, s%d' % (vT + 1, S_ONES))
    k('v_add_u32 v%d, %d, v%d' % (vT, A_LDS_X, vT))
    k('ds_write2_b32 v%d, v%d, v%d offset0:0 offset1:1' % (vT, vT + 1, vT + 1))
    hook('A_after_issue')

    k('v_lshlrev_b32 v%d, 9, v3' % vA0)
    k('v_bfe_u32 v%d, v1, 2, 2' % vT)
    k('v_lshl_add_u32 v%d, v%d, 6, v%d' % (vA0, vT, vA0))
    k('v_and_b32 v%d, 3, v1' % vT)
    k('v_lshl_add_u32 v%d, v%d, 3, v%d' % (vA0, vT, vA0))
    k('v_and_b32 v%d, 1, v3' % vT)
    k('v_lshlrev_b32 v%d, 5, v%d' % (vT, vT))
    k('v_add_u32 v%d, v%d, v%d' % (vA0, vA0, vT))
    k('v_add_u32 v%d, %d, v%d' % (vA0, A_LDS_W, vA0))
    k('v_xor_b32 v%d, 32, v%d' % (vA1, vA0))
    k('s_and_b32 s%d, s3, 1' % s_tmp)
    k('s_lshl_b32 s%d, s%d, 5' % (s_tmp, s_tmp))
    k('v_xor_b32 v%d, s%d, v%d' % (vH2, s_tmp, vA0))
    k('s_lshr_b32 s%d, s3, 1' % s_tmp)
    k('s_lshl_b32 s%d, s%d, 11' % (s_tmp, s_tmp))
    k('s_add_u32 s%d, s%d, 2048' % (s_tmp, s_tmp))
    k('v_add_u32 v%d, s%d, v%d' % (vH1, s_tmp, vH2))
    k('v_lshrrev_b32 v%d, 1, v2' % vT)
    k('v_xor_b32 v%d, v%d, v3' % (vT, vT))
    k('v_lshlrev_b32 v%d, 4, v%d' % (vT, vT))
    k('v_lshl_add_u32 v%d, v2, 7, v%d' % (vT, vT))
    k('v_add_u32 v%d, %d, v%d' % (vHe, A_LDS_X, vT))
    k('v_xor_b32 v%d, 64, v%d' % (vHo, vHe))
    k('v_add_u32 v%d, s%d, v%d' % (vRe, s_m0x, vT))
    k('v_xor_b32 v%d, 64, v%d' % (vRo, vRe))
    k('v_lshlrev_b32 v%d, 2, v3' % vT)
    k('v_sub_u32 v%d, v2, v%d' % (vT, vT))
    k('v_mov_b32 v%d, %s' % (vT + 2, f32(-1e30)))
    for which, base in ((16, BP), (0, BC)):
        for r in range(4):
            k('v_add_u32 v%d, %d, v%d' % (vT + 1, which - r, vT))
            k('v_and_b32 v%d, 0xfffffff1, v%d' % (vT + 1, vT + 1))
            k('v_cmp_eq_u32 vcc, 0, v%d' % (vT + 1))
            k('v_cndmask_b32 v%d, v%d, 0, vcc' % (base + r, vT + 2))
    k('s_or_b32 s%d, s%d, s3' % (s_tmp, s_rb))
    k('s_cmp_eq_u32 s%d, 0' % s_tmp)
    k('s_cselect_b64 vcc, -1, 0')
    for r in range(4):
        k('v_cndmask_b32 v%d, v%d, v%d, vcc' % (BPA + r, BP + r, vT + 2))
    for i in range(6):
        k('v_mov_b32 v%d, 0' % (ST + i))

    frag_addr = [(vA0, 0), (vA1, 0), (vA0, 2048), (vA1, 2048), (vA0, 4096), (vA1, 4096), (vH1, 0), (vH2, 0)]

    def read_frag(f, j):
        va, off = frag_addr[f]
        o = (j % 8) * 6144 + off
        k('ds_read_b64_tr_b16 %s, v%d offset:%d' % (vr(WF + 4 * f, 2), va, o))
        k('ds_read_b64_tr_b16 %s, v%d offset:%d' % (vr(WF + 4 * f + 2, 2), va, o + 256))

    def read_x(j):
        o = xslot(j // 2)
        k('ds_read_b128 %s, v%d offset:%d' % (vr(xreg(j, 0), 4), vRo if j & 1 else vRe, o))
        k('ds_read_b128 %s, v%d offset:%d' % (vr(xreg(j, 1), 4), vRo if j & 1 else vRe, o + 2048))
        k('ds_read_b128 %s, v%d offset:%d' % (vr(xreg(j, 2), 4), vHo if j & 1 else vHe, o))

    stamp(k, 1)
    k.wait_tag('G0')
    k.wait_lg(0)
    k.barrier()
    stamp(k, 2)
    read_x(0)
    for f in range(8):
        read_frag(f, 0)
    dma_group(2)
    for j in range(14):
        k.c('kstep %d' % j)
        if j + 1 < 14 and (j + 1) % 2 == 0:
            k.wait_tag('G%d' % ((j + 1) // 2))
            k.barrier()
            if (j + 5) // 2 < 7:
                dma_group((j + 5) // 2)
        for r in range(4):
            for blk in range(3):
                x = xreg(j, blk) + r
                k('v_dot2c_f32_bf16 v%d, s%d, v%d' % (ST + 2 * blk, S_ONES, x))
                k('v_dot2c_f32_bf16 v%d, v%d, v%d' % (ST + 2 * blk + 1, x, x))
        if j + 1 < 14:
            read_x(j + 1)
        for f in range(8):
            w = vr(WF + 4 * f, 4)
            if f < 6:
                for blk in range(2):
                    a = vr(acc(blk, f), 4)
                    x = vr(xreg(j, blk), 4)
                    c = '0' if j == 0 else a
                    if f < 4:
                        k('v_mfma_f32_16x16x32_bf16 %s, %s, %s, %s' % (a, w, x, c))
                    else:
                        k('v_mfma_f32_16x16x32_bf16 %s, %s, %s, %s' % (a, x, w, c))
            else:
                a = vr(H1 if f == 6 else H2, 4)
                c = '0' if j == 0 else a
                k('v_mfma_f32_16x16x32_bf16 %s, %s, %s, %s' % (a, w, vr(xreg(j, 2), 4), c))
            if j + 1 < 14:
                read_frag(f, j + 1)
        if j == 6:
            stamp(k, 3)
        hook('A_k%d' % j)

    k('s_mov_b32 s%d, 0xfffefffe' % s_hm)
    k('s_mov_b32 s%d, 0xfffefffe' % (s_hm + 1))
    k.c('---- phase A epilogue')
    stamp(k, 4)
    T = XR
    xgroup_reduce(k, [ST + i for i in range(6)], [T + i for i in range(6)])
    RR = T + 8
    for blk in range(3):
        m, r_ = RR + 2 * blk + 1, RR + 2 * blk
        k('v_mul_f32 v%d, %s, v%d' % (m, f32(1.0 / D), ST + 2 * blk))
        k('v_mul_f32 v%d, v%d, v%d' % (r_, m, m))
        k('v_mul_f32 v%d, %s, v%d' % (ST + 2 * blk + 1, f32(1.0 / D), ST + 2 * blk + 1))
        k('v_sub_f32 v%d, v%d, v%d' % (r_, ST + 2 * blk + 1, r_))
        k('v_max_f32 v%d, 0, v%d' % (r_, r_))
        k('v_add_f32 v%d, %s, v%d' % (r_, f32(1e-5), r_))
        k('v_rsq_f32 v%d, v%d' % (r_, r_))
    vAd = T + 16
    k('v_lshlrev_b32 v%d, 4, v3' % vAd)
    k('s_lshl_b32 s%d, s3, 6' % s_tmp)
    k('v_add_u32 v%d, s%d, v%d' % (vAd + 1, s_tmp, vAd))
    k('s_and_b32 s%d, s%d, 64' % (s_tmp, s_tmp))
    k('v_add_u32 v%d, s%d, v%d' % (vAd + 2, s_tmp, vAd))
    k('s_not_b64 exec, %s' % sr(s_hm, 2))
    k('ds_write_b128 v%d, %s offset:%d' % (vAd + 1, vr(H1, 4), A_LDS_CS + 128))
    k('ds_write_b128 v%d, %s offset:%d' % (vAd + 2, vr(H2, 4), A_LDS_CS))
    k('s_mov_b64 exec, 0xffff')
    k('s_lshl_b32 s%d, s3, 8' % s_tmp)
    k('v_lshl_add_u32 v%d, v2, 2, s%d' % (vAd + 3, s_tmp))
    for blk in range(2):
        k('ds_write_b32 v%d, v%d offset:%d' % (vAd + 3, RR + 2 * blk, A_LDS_ST + blk * 128))
        k('ds_write_b32 v%d, v%d offset:%d' % (vAd + 3, RR + 2 * blk + 1, A_LDS_ST + blk * 128 + 64))
    k('s_mov_b64 exec, -1')
    HC = T + 24
    for r in range(4):
        k('v_mov_b32_dpp v%d, v%d row_newbcast:0 row_mask:0xf bank_mask:0xf' % (HC + r, H1 + r))
    for r in range(4):
        k('v_fma_f32 v%d, -v%d, v%d, v%d' % (HC + r, RR + 5, HC + r, H1 + r))
    for r in range(4):
        k('v_mul_f32 v%d, v%d, v%d' % (HC + r, RR + 4, HC + r))
    k('v_cvt_pk_bf16_f32 v%d, v%d, v%d' % (HC, HC, HC + 1))
    k('v_cvt_pk_bf16_f32 v%d, v%d, v%d' % (HC + 2, HC + 2, HC + 3))
    vK, vV = T + 28, T + 29
    k('s_and_b32 s%d, s3, 1' % s_tmp)
    k('s_lshl_b32 s%d, s%d, 3' % (s_tmp, s_tmp))
    k('v_add_u32 v%d, s%d, v4' % (vK, s_tmp))
    k('v_lshrrev_b32 v%d, 2, v2' % vV)
    k('v_lshlrev_b32 v%d, 8, v%d' % (vV, vV))
    k('v_lshl_add_u32 v%d, v3, 6, v%d' % (vV, vV))
    k('v_and_b32 v%d, 3, v2' % (vV + 1))
    k('v_lshl_add_u32 v%d, v%d, 1, v%d' % (vV, vV + 1, vV))
    k('v_add_u32 v%d, s%d, v%d' % (vV, s_tmp, vV))
    k('v_add_u32 v%d, 1024, v%d' % (vV, vV))
    k('s_cmp_lt_u32 s3, 2')
    k('s_cselect_b64 vcc, -1, 0')
    k('s_cselect_b32 s%d, 2, 16' % s_tmp)
    k('v_cndmask_b32 v%d, v%d, v%d, vcc' % (vK, vV, vK))
    k('v_add_u32 v%d, s%d, v%d' % (vK + 1, s_tmp, vK))
    k('v_add_u32 v%d, s%d, v%d' % (vK + 2, s_tmp, vK + 1))
    k('v_add_u32 v%d, s%d, v%d' % (vK + 3, s_tmp, vK + 2))
    k('ds_write_b16 v%d, v%d offset:%d' % (vK, HC, A_LDS_KV))
    k('ds_write_b16_d16_hi v%d, v%d offset:%d' % (vK + 1, HC, A_LDS_KV))
    k('ds_write_b16 v%d, v%d offset:%d' % (vK + 2, HC + 2, A_LDS_KV))
    k('ds_write_b16_d16_hi v%d, v%d offset:%d' % (vK + 3, HC + 2, A_LDS_KV))
    k.wait_lg(0)
    k.barrier()
    hook('A_e1')
    CS = T + 32
    CSV = T + 48
    L2 = T + 52
    for s_ in range(4):
        k('ds_read_b128 %s, v%d offset:%d' % (vr(CS + 4 * s_, 4), vAd, A_LDS_CS + 64 * s_))
    k('v_lshlrev_b32 v%d, 2, v2' % (vAd + 1))
    k('ds_read_b32 v%d, v%d offset:%d' % (CSV, vAd + 1, A_LDS_CS + 256))
    k('ds_read_b32 v%d, v%d offset:%d' % (CSV + 1, vAd + 1, A_LDS_CS + 320))
    k('s_lshl_b32 s%d, s3, 8' % s_tmp)
    k('v_add_u32 v%d, s%d, v%d' % (vAd + 2, s_tmp, vAd))
    for blk in range(2):
        k('ds_read_b128 %s, v%d offset:%d' % (vr(L2 + 8 * blk, 4), vAd + 2, A_LDS_ST + blk * 128))
        k('ds_read_b128 %s, v%d offset:%d' % (vr(L2 + 8 * blk + 4, 4), vAd + 2, A_LDS_ST + blk * 128 + 64))
    RQ = T + 68
    k('v_cmp_ne_u32 vcc, 3, v3')
    qs = (DH ** -0.5) * 1.4426950408889634
    for blk in range(2):
        k('v_mul_f32 v%d, %s, v%d' % (RQ + 2 * blk, f32(qs), RR + 2 * blk))
    for blk in range(2):
        k('v_cndmask_b32 v%d, 0, v%d, vcc' % (RQ + 2 * blk + 1, RQ + 2 * blk))
    QT = T + 72
    KT = T + 80
    VV = T + 92
    def fix_qk(blk, nbi, scale_reg, dst):
        a = acc(blk, nbi)
        m = RR + 2 * blk + 1
        for r in range(4):
            k('v_fma_f32 v%d, -v%d, v%d, v%d' % (a + r, m, CS + 4 * nbi + r, a + r))
        for r in range(4):
            k('v_mul_f32 v%d, v%d, v%d' % (a + r, scale_reg, a + r))
        k('v_cvt_pk_bf16_f32 v%d, v%d, v%d' % (dst, a, a + 1))
        k('v_cvt_pk_bf16_f32 v%d, v%d, v%d' % (dst + 1, a + 2, a + 3))

    def fix_v(blk, nb):
        a = acc(blk, 4 + nb)
        for r in range(4):
            k('v_fma_f32 v%d, -v%d, v%d, v%d' % (a + r, L2 + 8 * blk + 4 + r, CSV + nb, a + r))
        for r in range(4):
            k('v_mul_f32 v%d, v%d, v%d' % (a + r, L2 + 8 * blk + r, a + r))
        dst = VV + 6 * nb + 2 + 2 * blk
        k('v_cvt_pk_bf16_f32 v%d, v%d, v%d' % (dst, a, a + 1))
        k('v_cvt_pk_bf16_f32 v%d, v%d, v%d' % (dst + 1, a + 2, a + 3))

    fix_qk(1, 2, RR + 2, KT + 8)
    fix_qk(1, 3, RR + 2, KT + 10)
    fix_v(1, 0)
    fix_v(1, 1)
    k('s_lshl_b32 s%d, s3, 11' % s_tmp)
    k('v_add_u32 v%d, s%d, v4' % (vAd + 3, s_tmp))
    k('ds_write_b128 v%d, %s offset:%d' % (vAd + 3, vr(KT + 8, 4), A_LDS_KV + 2048))
    k('ds_write_b64 v%d, %s offset:%d' % (vAd + 3, vr(VV + 4, 2), A_LDS_KV + 2048 + 1024))
    k('ds_write_b64 v%d, %s offset:%d' % (vAd + 3, vr(VV + 10, 2), A_LDS_KV + 2048 + 1024 + 8))
    fix_qk(0, 2, RR + 0, KT + 4)
    fix_qk(0, 3, RR + 0, KT + 6)
    fix_qk(1, 0, RQ + 2, QT + 4)
    fix_qk(1, 1, RQ + 3, QT + 6)
    k.wait_lg(0)
    k.barrier()
    k('ds_read_b128 %s, v%d offset:%d' % (vr(KT, 4), vAd + 3, A_LDS_KV))
    k('ds_read_b64 %s, v%d offset:%d' % (vr(VV, 2), vAd + 3, A_LDS_KV + 1024))
    k('ds_read_b64 %s, v%d offset:%d' % (vr(VV + 6, 2), vAd + 3, A_LDS_KV + 1024 + 8))
    SS = T + 104
    k('v_mfma_f32_16x16x32_bf16 %s, %s, %s, %s' % (vr(SS + 8, 4), vr(KT + 4, 4), vr(QT + 4, 4), vr(BP, 4)))
    k('v_mfma_f32_16x16x32_bf16 %s, %s, %s, %s' % (vr(SS + 12, 4), vr(KT + 8, 4), vr(QT + 4, 4), vr(BC, 4)))
    fix_qk(0, 0, RQ + 0, QT + 0)
    fix_qk(0, 1, RQ + 1, QT + 2)
    fix_v(0, 0)
    fix_v(0, 1)
    k('v_mfma_f32_16x16x32_bf16 %s, %s, %s, %s' % (vr(SS + 0, 4), vr(KT + 0, 4), vr(QT, 4), vr(BPA, 4)))
    k('v_mfma_f32_16x16x32_bf16 %s, %s, %s, %s' % (vr(SS + 4, 4), vr(KT + 4, 4), vr(QT, 4), vr(BC, 4)))
    MX = ACC
    TM = ACC + 2
    for blk in (1, 0):
        s_ = SS + 8 * blk
        k('v_max3_f32 v%d, v%d, v%d, v%d' % (MX + blk, s_, s_ + 1, s_ + 2))
        k('v_max3_f32 v%d, v%d, v%d, v%d' % (TM + blk, s_ + 3, s_ + 4, s_ + 5))
        k('v_max3_f32 v%d, v%d, v%d, v%d' % (MX + blk, MX + blk, s_ + 6, s_ + 7))
        k('v_max_f32 v%d, v%d, v%d' % (MX + blk, MX + blk, TM + blk))
    xgroup_reduce(k, [MX, MX + 1], [TM, TM + 1], op='v_max_f32')
    SUM = ACC + 4
    PP = ACC + 8
    for blk in (1, 0):
        s_ = SS + 8 * blk
        for i in range(8):
            k('v_sub_f32 v%d, v%d, v%d' % (s_ + i, s_ + i, MX + blk))
        for i in range(8):
            k('v_exp_f32 v%d, v%d' % (s_ + i, s_ + i))
        for i in range(4):
            k('v_cvt_pk_bf16_f32 v%d, v%d, v%d' % (PP + 4 * blk + i, s_ + 2 * i, s_ + 2 * i + 1))
    OO = ACC + 16
    for blk in (1, 0):
        for nb in range(2):
            k('v_mfma_f32_16x16x32_bf16 %s, %s, %s, 0' % (vr(OO + 8 * blk + 4 * nb, 4), vr(VV + 6 * nb + 2 * blk, 4),
                                                          vr(PP + 4 * blk, 4)))
    for blk in range(2):
        s_ = SS + 8 * blk
        k('v_add_f32 v%d, v%d, v%d' % (SUM + blk, s_, s_ + 1))
        k('v_add_f32 v%d, v%d, v%d' % (TM + blk, s_ + 2, s_ + 3))
        for i in (4, 6):
            k('v_add_f32 v%d, v%d, v%d' % (SUM + blk, SUM + blk, s_ + i))
            k('v_add_f32 v%d, v%d, v%d' % (TM + blk, TM + blk, s_ + i + 1))
        k('v_add_f32 v%d, v%d, v%d' % (SUM + blk, SUM + blk, TM + blk))
    xgroup_reduce(k, [SUM, SUM + 1], [TM, TM + 1])
    k('v_cmp_ne_u32 vcc, 3, v3')
    for blk in range(2):
        k('v_rcp_f32 v%d, v%d' % (SUM + blk, SUM + blk))
    for blk in range(2):
        k('v_cndmask_b32 v%d, 0, v%d, vcc' % (TM + blk, SUM + blk))
    k('s_lshl_b32 s%d, s%d, 3' % (s_tmp, s_rb))
    k('s_lshl_b32 s%d, s3, 1' % s_t0)
    k('s_add_u32 s%d, s%d, s%d' % (s_tmp, s_tmp, s_t0))
    k('s_lshl_b32 s%d, s%d, 4' % (s_tmp, s_tmp))
    k('s_add_u32 s%d, s%d, s%d' % (s_tmp, s_tmp, s_head))
    k('s_lshl_b32 s%d, s%d, 10' % (s_tmp, s_tmp))
    if OF_OFF:
        k('s_add_u32 s%d, s%d, 0x%x' % (s_tmp, s_tmp, OF_OFF))
    k('s_add_u32 s%d, s%d, 16384' % (s_t0, s_tmp))
    for blk in range(2):
        o = OO + 8 * blk
        for r in range(4):
            k('v_mul_f32 v%d, v%d, v%d' % (o + r, SUM + blk, o + r))
        for r in range(4):
            k('v_mul_f32 v%d, v%d, v%d' % (o + 4 + r, TM + blk, o + 4 + r))
        p = PP + 4 * blk
        for i in range(4):
            k('v_cvt_pk_bf16_f32 v%d, v%d, v%d' % (p + i, o + 2 * i, o + 2 * i + 1))
        k('buffer_store_dwordx4 %s, v4, %s, s%d offen %s' % (vr(p, 4), srd(SRD_WS), s_tmp if blk == 0 else s_t0, sc1), tag='ost')


STAMP_OFF = 0xA00000


def stamp(k, idx, vtmp=253, stmp=94):
    if not getattr(k, 'stamps', False):
        return
    k('s_memrealtime %s' % sr(stmp, 2))
    k('s_memtime %s' % sr(stmp + 2, 2))
    k('s_lshl_b32 s%d, s2, 2' % (stmp + 4))
    k('s_add_u32 s%d, s%d, s3' % (stmp + 4, stmp + 4))
    k('s_lshl_b32 s%d, s%d, 7' % (stmp + 4, stmp + 4))
    k('s_add_u32 s%d, s%d, 0x%x' % (stmp + 4, stmp + 4, STAMP_OFF + 4 * idx))
    k('v_mov_b32 v%d, s%d' % (vtmp, stmp))
    k('v_mov_b32 v%d, s%d' % (vtmp + 1, stmp + 2))
    k('v_mov_b32 v%d, 0' % (vtmp + 2))
    k('s_mov_b64 exec, 1')
    k('buffer_store_dword v%d, v%d, %s, s%d offen' % (vtmp, vtmp + 2, srd(SRD_WS), stmp + 4))
    k('s_add_u32 s%d, s%d, 0x20000' % (stmp + 4, stmp + 4))
    k('buffer_store_dword v%d, v%d, %s, s%d offen' % (vtmp + 1, vtmp + 2, srd(SRD_WS), stmp + 4))
    k('s_mov_b64 exec, -1')


def spin_guard(k):
    k('s_sub_u32 s%d, s%d, 1' % (S_SPIN, S_SPIN))
    k('s_cbranch_scc1 %s' % k.end_label)


def epoch_publish(k, vt):
    k('s_memrealtime %s' % sr(S_T, 2))
    k('v_mov_b32 v%d, 0' % (vt + 1))
    k('s_or_b32 s%d, s%d, 1' % (S_T, S_T))
    k('v_mov_b32 v%d, s%d' % (vt, S_T))
    k('s_or_b32 s%d, s2, s3' % S_T)
    k('s_cmp_eq_u32 s%d, 0' % S_T)
    k('s_cselect_b64 exec, 1, 0')
    k('buffer_store_dword v%d, v%d, %s, 0 offen sc1' % (vt, vt + 1, srd(SRD_DBG)))
    k('s_mov_b64 exec, -1')


def epoch_load(k, vt):
    k('v_mov_b32 v%d, 0' % (vt + 1))
    k('buffer_load_dword v%d, v%d, %s, 0 offen sc1' % (vt, vt + 1, srd(SRD_DBG)))


def epoch_get(k, vt):
    L = k.newlabel('Lepg')
    done = k.newlabel('Lepd')
    k('v_readfirstlane_b32 s%d, v%d' % (S_EPOCH, vt))
    k('s_cmp_lg_u32 s%d, 0' % S_EPOCH)
    k.branch_fwd('s_cbranch_scc1', done)
    k.loop_label(L)
    spin_guard(k)
    k('buffer_load_dword v%d, v%d, %s, 0 offen sc1' % (vt, vt + 1, srd(SRD_DBG)))
    k.force_wait(vm=0)
    k('v_readfirstlane_b32 s%d, v%d' % (S_EPOCH, vt))
    k('s_cmp_eq_u32 s%d, 0' % S_EPOCH)
    k('s_cbranch_scc1 %s' % L)
    k.label(done)


FLAG_A = FLAG_OFF
FLAG_B = FLAG_OFF + 0x1000
FLAG_C = FLAG_OFF + 0x2000


def flag_store(k, vt, s_off):
    k('v_mov_b32 v%d, s%d' % (vt, S_EPOCH))
    k('s_mov_b64 exec, 1')
    k('buffer_store_dword v%d, v%d, %s, s%d offen sc1' % (vt, vt + 1, srd(SRD_WS), s_off))
    k('s_mov_b64 exec, -1')


def flag_poll(k, vt, voff, s_off):
    L = k.newlabel('Lpoll')
    k.loop_label(L)
    spin_guard(k)
    k('buffer_load_dword v%d, v%d, %s, s%d offen sc1' % (vt, voff, srd(SRD_WS), s_off))
    k.force_wait(vm=0)
    k('v_cmp_ne_u32 vcc, s%d, v%d' % (S_EPOCH, vt))
    k('s_cbranch_vccnz %s' % L)


class B:
    s_tb32, s_cq, s_tmp, s_wbase, s_t2, s_valid = 56, 57, 58, 59, 60, 61
    vWo, vR0, vR1, vR2, vR3 = 208, 209, 210, 211, 212
    ACC = 192
    OFR = 32
    T = 64


def B_setup(k):
    b = B
    k.c('---- phase B setup')
    k('s_and_b32 s%d, s2, 7' % b.s_tb32)
    k('s_lshl_b32 s%d, s%d, 3' % (b.s_tb32, b.s_tb32))
    k('s_lshr_b32 s%d, s2, 5' % b.s_tmp)
    k('s_add_u32 s%d, s%d, s%d' % (b.s_tb32, b.s_tb32, b.s_tmp))
    k('s_lshr_b32 s%d, s2, 3' % b.s_cq)
    k('s_and_b32 s%d, s%d, 3' % (b.s_cq, b.s_cq))
    t = b.vR0
    k('v_lshrrev_b32 v%d, 2, v1' % t)
    k('v_mul_u32_u24 v%d, 896, v%d' % (b.vWo, t))
    k('v_and_b32 v%d, 1, v3' % t)
    k('v_lshlrev_b32 v%d, 1, v%d' % (t, t))
    k('v_and_b32 v%d, 3, v1' % (t + 1))
    k('v_xor_b32 v%d, v%d, v%d' % (t, t, t + 1))
    k('v_lshl_add_u32 v%d, v%d, 4, v%d' % (b.vWo, t, b.vWo))
    k('s_mul_i32 s%d, s%d, 224' % (b.s_tmp, b.s_cq))
    k('s_lshl_b32 s%d, s3, 6' % b.s_t2)
    k('s_add_u32 s%d, s%d, s%d' % (b.s_tmp, b.s_tmp, b.s_t2))
    k('v_add_u32 v%d, s%d, v%d' % (b.vWo, b.s_tmp, b.vWo))


def B_wo_addr(k, per_wave=7168):
    b = B
    k('s_mul_i32 s%d, s3, %d' % (b.s_wbase, per_wave))
    t = TMP
    k('v_bfe_u32 v%d, v1, 2, 2' % t)
    k('v_lshlrev_b32 v%d, 6, v%d' % (t, t))
    k('v_and_b32 v%d, 3, v1' % (t + 1))
    k('v_lshl_add_u32 v%d, v%d, 3, v%d' % (t, t + 1, t))
    k('v_add_u32 v%d, s%d, v%d' % (t, b.s_wbase, t))
    k('v_and_b32 v%d, 1, v3' % (t + 1))
    k('v_lshlrev_b32 v%d, 5, v%d' % (t + 1, t + 1))
    k('v_add_u32 v%d, v%d, v%d' % (t, t, t + 1))
    k('v_lshl_add_u32 v%d, v3, 8, v%d' % (b.vR0, t))
    k('v_xor_b32 v%d, 32, v%d' % (b.vR1, b.vR0))
    k('v_cmp_eq_u32 vcc, 3, v3')
    k('v_cndmask_b32 v%d, v3, 1, vcc' % (t + 1))
    k('v_lshl_add_u32 v%d, v%d, 8, v%d' % (b.vR2, t + 1, t))
    k('v_add_u32 v%d, 1024, v%d' % (b.vR2, b.vR2))
    k('v_xor_b32 v%d, 32, v%d' % (b.vR3, b.vR2))
    b.cur_base = 0


def B_wo_dma(k, part, i0=0, i1=7):
    b = B
    for i in range(i0, i1):
        k('s_add_u32 m0, s%d, %d' % (b.s_wbase, WO_F[part] + i * 1024))
        k('s_mov_b32 s%d, %d' % (b.s_tmp, (112 * part + 16 * i) * 896))
        k('buffer_load_dwordx4 v%d, %s, s%d offen lds' % (b.vWo, srd(SRD_WO), b.s_tmp), tag='wo%d' % part)


def B_wo_read(k, part, abase):
    b = B
    d = WO_F[part] - b.cur_base
    b.cur_base = WO_F[part]
    for r in (b.vR0, b.vR1, b.vR2, b.vR3):
        k('v_add_u32 v%d, 0x%x, v%d' % (r, d & 0xffffffff, r))
    k.wait_tag('wo%d' % part)
    for h in range(4 * part, 4 * part + 4):
        for nb in range(2):
            par = (nb ^ h) & 1
            o = (h - 4 * part) * 1792
            a = abase + 8 * h + 4 * nb
            k('ds_read_b64_tr_b16 %s, v%d offset:%d' % (ar(a, 2), b.vR1 if par else b.vR0, o))
            k('ds_read_b64_tr_b16 %s, v%d offset:%d' % (ar(a + 2, 2), b.vR3 if par else b.vR2, o))


def B_xinit(k):
    b = B
    t = TMP + 2
    k('v_mul_u32_u24 v%d, %d, v3' % (t, 4 * 896))
    k('v_lshl_add_u32 v%d, v2, 1, v%d' % (t, t))
    k('s_mul_i32 s%d, s%d, %d' % (b.s_tmp, b.s_tb32, 32 * 896))
    k('s_mul_i32 s%d, s%d, 224' % (b.s_t2, b.s_cq))
    k('s_add_u32 s%d, s%d, s%d' % (b.s_tmp, b.s_tmp, b.s_t2))
    k('s_lshl_b32 s%d, s3, 6' % b.s_t2)
    k('s_add_u32 s%d, s%d, s%d' % (b.s_tmp, b.s_tmp, b.s_t2))
    k('s_add_u32 s%d, s%d, %d' % (b.s_t2, b.s_tmp, 16 * 896))
    for tb in range(2):
        for nb in range(2):
            for r in range(4):
                k('buffer_load_ushort v%d, v%d, %s, s%d offen offset:%d' % (
                    b.ACC + 8 * tb + 4 * nb + r, t, srd(SRD_X), b.s_t2 if tb else b.s_tmp, r * 896 + nb * 32))


def B_xinit_finish(k):
    b = B
    for i in range(16):
        k('v_lshlrev_b32 v%d, 16, v%d' % (b.ACC + i, b.ACC + i))


def B_main(k, abase, lds_o, lds_small, sc1='', hooks=None):
    b = B
    t = b.T
    k.c('---- phase B main')
    hooks = hooks or {}

    def hook(name):
        if name in hooks:
            hooks[name]()
    k('s_lshl_b32 s%d, s%d, 15' % (b.s_tmp, b.s_tb32))
    k('s_lshl_b32 s%d, s3, 13' % b.s_t2)
    k('s_add_u32 s%d, s%d, s%d' % (b.s_tmp, b.s_tmp, b.s_t2))
    if OF_OFF:
        k('s_add_u32 s%d, s%d, 0x%x' % (b.s_tmp, b.s_tmp, OF_OFF))
    for i in range(8):
        if i % 4 == 0:
            k('s_add_u32 m0, s%d, %d' % (b.s_t2, lds_o + i * 1024))
            if i:
                k('s_add_u32 s%d, s%d, 4096' % (b.s_tmp, b.s_tmp))
        k('buffer_load_dwordx4 v4, %s, s%d offen offset:%d %s lds' % (srd(SRD_WS), b.s_tmp, (i % 4) * 1024, sc1), tag='of')
    k('v_add_u32 v%d, %d, v4' % (t, lds_o))
    k('s_cmp_lg_u32 s3, 3')
    k('s_cselect_b32 s%d, 1.0, 0' % b.s_valid)
    hook('B_after_of')
    k.wait_tag('of')
    k.barrier()
    stamp(k, 11)
    order = [(h, tb) for h in range(16) for tb in range(2)]

    def rd(i):
        h, tb = order[i]
        k('ds_read_b128 %s, v%d offset:%d' % (vr(b.OFR + 4 * (i % 8), 4), t, (tb * 16 + h) * 1024))
    for i in range(8):
        rd(i)
    for i, (h, tb) in enumerate(order):
        for nb in range(2):
            a = vr(b.ACC + 8 * tb + 4 * nb, 4)
            k('v_mfma_f32_16x16x32_bf16 %s, %s, %s, %s' % (a, vr(b.OFR + 4 * (i % 8), 4), ar(abase + 8 * h + 4 * nb, 4), a))
        if i + 8 < 32:
            rd(i + 8)
    stamp(k, 12)
    V = t + 4
    A1 = t + 20
    for tb in range(2):
        for r in range(4):
            k('v_mul_f32 v%d, s%d, v%d' % (A1 + 4 * tb + r, b.s_valid, b.ACC + 8 * tb + 4 + r))

    def vi(tb, kind, r):
        return V + 4 * (2 * tb + kind) + 2 * (r & 1) + (r >> 1)
    for tb in range(2):
        for r in range(4):
            a0, a1 = b.ACC + 8 * tb + r, A1 + 4 * tb + r
            k('v_add_f32 v%d, v%d, v%d' % (vi(tb, 0, r), a0, a1))
            k('v_mul_f32 v%d, v%d, v%d' % (vi(tb, 1, r), a0, a0))
        for r in range(4):
            a1 = A1 + 4 * tb + r
            k('v_fmac_f32 v%d, v%d, v%d' % (vi(tb, 1, r), a1, a1))
    for i in range(8):
        k('v_add_f32_dpp v%d, v%d, v%d row_mirror row_mask:0xf bank_mask:0x3' % (V + 2 * i, V + 2 * i, V + 2 * i))
    for i in range(8):
        k('v_add_f32_dpp v%d, v%d, v%d row_mirror row_mask:0xf bank_mask:0xc' % (V + 2 * i, V + 2 * i + 1, V + 2 * i + 1))
    for i in range(4):
        k('v_add_f32_dpp v%d, v%d, v%d row_half_mirror row_mask:0xf bank_mask:0x5' % (V + 4 * i, V + 4 * i, V + 4 * i))
    for i in range(4):
        k('v_add_f32_dpp v%d, v%d, v%d row_half_mirror row_mask:0xf bank_mask:0xa' % (V + 4 * i, V + 4 * i + 2, V + 4 * i + 2))
    for i in range(4):
        k('v_add_f32_dpp v%d, v%d, v%d quad_perm:[1,0,3,2] row_mask:0xf bank_mask:0xf' % (V + 4 * i + 1, V + 4 * i, V + 4 * i))
    U = A1
    for i in range(4):
        k('v_add_f32_dpp v%d, v%d, v%d quad_perm:[2,3,0,1] row_mask:0xf bank_mask:0xf' % (U + i, V + 4 * i + 1, V + 4 * i + 1))
    vA = t + 1
    k('v_lshrrev_b32 v%d, 2, v1' % vA)
    k('s_lshl_b32 s%d, s3, 8' % b.s_tmp)
    k('v_lshl_add_u32 v%d, v%d, 3, s%d' % (vA, vA, b.s_tmp))
    k('ds_write_b64 v%d, %s offset:%d' % (vA, vr(U, 2), lds_small))
    k('ds_write_b64 v%d, %s offset:%d' % (vA, vr(U + 2, 2), lds_small + 128))
    vC, vG = t + 2, t + 3
    k('v_and_b32 v%d, 31, v1' % vG)
    k('v_lshrrev_b32 v%d, 5, v1' % vC)
    k('v_lshlrev_b32 v%d, 9, v%d' % (vC, vC))
    k('v_lshl_add_u32 v%d, v%d, 4, v%d' % (vA, vG, vC))
    k('v_lshl_add_u32 v%d, v%d, 3, v%d' % (vC, vG, vC))
    k('s_lshl_b32 s%d, s%d, 11' % (b.s_tmp, b.s_tb32))
    k('s_add_u32 s%d, s%d, 0x%x' % (b.s_tmp, b.s_tmp, STAT_OFF))
    k('s_lshl_b32 s%d, s%d, 9' % (b.s_t2, b.s_cq))
    k('s_add_u32 s%d, s%d, s%d' % (b.s_t2, b.s_t2, b.s_tmp))
    k.wait_lg(0)
    k.barrier()
    k('ds_read_b64 %s, v%d offset:%d' % (vr(V, 2), vC, lds_small))
    k('ds_read_b64 %s, v%d offset:%d' % (vr(V + 2, 2), vC, lds_small + 256))
    G = V + 4
    k('v_add_f32 v%d, v%d, v%d' % (G, V, V + 2))
    k('v_add_f32 v%d, v%d, v%d' % (G + 2, V + 1, V + 3))
    k('v_mov_b32 v%d, v%d' % (V, G))
    k('v_mov_b32 v%d, v%d' % (V + 1, G + 2))
    k('v_permlane32_swap_b32 v%d, v%d' % (G, V))
    k('v_permlane32_swap_b32 v%d, v%d' % (G + 2, V + 1))
    k('v_add_f32 v%d, v%d, v%d' % (G, G, V))
    k('v_add_f32 v%d, v%d, v%d' % (G + 2, G + 2, V + 1))
    k('v_mov_b32 v%d, s%d' % (G + 1, S_EPOCH))
    k('v_mov_b32 v%d, s%d' % (G + 3, S_EPOCH))
    k('s_cmp_eq_u32 s3, 0')
    k('s_cselect_b32 exec_lo, -1, 0')
    k('s_mov_b32 exec_hi, 0')
    k('buffer_store_dwordx4 %s, v%d, %s, s%d offen sc1' % (vr(G, 4), vA, srd(SRD_WS), b.s_t2))
    k('s_mov_b64 exec, -1')
    HP = V + 8
    vS0, vS1 = t + 28, t + 29
    s_o = [62, 63]
    k('v_lshrrev_b32 v%d, 1, v3' % vS0)
    k('v_lshlrev_b32 v%d, 5, v%d' % (vS0, vS0))
    k('v_add_u32 v%d, v%d, v2' % (vS0, vS0))
    k('v_lshlrev_b32 v%d, 4, v%d' % (vS0, vS0))
    k('v_and_b32 v%d, 1, v3' % vS1)
    k('v_lshl_add_u32 v%d, v%d, 3, v%d' % (vS0, vS1, vS0))
    k('s_cmp_eq_u32 s3, 3')
    k('s_cselect_b32 s%d, 0x%x, 0' % (s_o[0], OOB))
    k('v_add_u32 v%d, s%d, v%d' % (vS1, s_o[0], vS0))
    for nb in range(2):
        k('s_mul_i32 s%d, s%d, 7' % (s_o[nb], b.s_cq))
        k('s_lshl_b32 s%d, s3, 1' % b.s_t2)
        k('s_add_u32 s%d, s%d, s%d' % (s_o[nb], s_o[nb], b.s_t2))
        if nb:
            k('s_add_u32 s%d, s%d, 1' % (s_o[nb], s_o[nb]))
        k('s_and_b32 s%d, s%d, 1' % (b.s_t2, s_o[nb]))
        k('s_lshl_b32 s%d, s%d, 8' % (b.s_t2, b.s_t2))
        k('s_lshr_b32 s%d, s%d, 1' % (s_o[nb], s_o[nb]))
        k('s_lshl_b32 s%d, s%d, 17' % (s_o[nb], s_o[nb]))
        k('s_add_u32 s%d, s%d, s%d' % (s_o[nb], s_o[nb], b.s_t2))
        k('s_lshl_b32 s%d, s%d, 11' % (b.s_t2, b.s_tb32))
        k('s_add_u32 s%d, s%d, s%d' % (s_o[nb], s_o[nb], b.s_t2))
        k('s_add_u32 s%d, s%d, 0x%x' % (s_o[nb], s_o[nb], HT_OFF))
    for tb in range(2):
        for nb in range(2):
            a = b.ACC + 8 * tb + 4 * nb
            p = HP + 4 * tb + 2 * nb
            k('v_cvt_pk_bf16_f32 v%d, v%d, v%d' % (p, a, a + 1))
            k('v_cvt_pk_bf16_f32 v%d, v%d, v%d' % (p + 1, a + 2, a + 3))
            k('buffer_store_dwordx2 %s, v%d, %s, s%d offen offset:%d %s' % (vr(p, 2), vS1 if nb else vS0, srd(SRD_WS), s_o[nb], tb * 1024, sc1))
    for nb in range(2):
        k('s_sub_u32 s%d, s%d, 0x%x' % (s_o[nb], s_o[nb], HT_OFF - HH_OFF))
    hook('B_before_poll')
    P0 = t + 32
    L = k.newlabel('Lst')
    k.loop_label(L)
    spin_guard(k)
    k('buffer_load_dwordx4 %s, v%d, %s, s%d offen sc1' % (vr(P0, 4), vA, srd(SRD_WS), b.s_tmp))
    k('buffer_load_dwordx4 %s, v%d, %s, s%d offen offset:1024 sc1' % (vr(P0 + 4, 4), vA, srd(SRD_WS), b.s_tmp))
    k.force_wait(vm=0)
    k('v_xor_b32 v%d, s%d, v%d' % (P0 + 1, S_EPOCH, P0 + 1))
    k('v_xor_b32 v%d, s%d, v%d' % (P0 + 3, S_EPOCH, P0 + 3))
    k('v_xor_b32 v%d, s%d, v%d' % (P0 + 5, S_EPOCH, P0 + 5))
    k('v_xor_b32 v%d, s%d, v%d' % (P0 + 7, S_EPOCH, P0 + 7))
    k('v_or3_b32 v%d, v%d, v%d, v%d' % (P0 + 1, P0 + 1, P0 + 3, P0 + 5))
    k('v_or_b32 v%d, v%d, v%d' % (P0 + 1, P0 + 1, P0 + 7))
    k('v_cmp_ne_u32 vcc, 0, v%d' % (P0 + 1))
    k('s_cbranch_vccnz %s' % L)
    stamp(k, 13)
    Sx, Qx = P0, P0 + 2
    k('v_add_f32 v%d, v%d, v%d' % (Sx, P0, P0 + 4))
    k('v_add_f32 v%d, v%d, v%d' % (Qx, P0 + 2, P0 + 6))
    k('v_mov_b32 v%d, v%d' % (P0 + 4, Sx))
    k('v_mov_b32 v%d, v%d' % (P0 + 6, Qx))
    k('v_permlane32_swap_b32 v%d, v%d' % (Sx, P0 + 4))
    k('v_permlane32_swap_b32 v%d, v%d' % (Qx, P0 + 6))
    k('v_add_f32 v%d, v%d, v%d' % (Sx, Sx, P0 + 4))
    k('v_add_f32 v%d, v%d, v%d' % (Qx, Qx, P0 + 6))
    M, R = P0 + 1, P0 + 3
    k('v_mul_f32 v%d, %s, v%d' % (M, f32(1.0 / D), Sx))
    k('v_mul_f32 v%d, %s, v%d' % (Qx, f32(1.0 / D), Qx))
    k('v_fma_f32 v%d, -v%d, v%d, v%d' % (Qx, M, M, Qx))
    k('v_max_f32 v%d, 0, v%d' % (Qx, Qx))
    k('v_add_f32 v%d, %s, v%d' % (R, f32(1e-5), Qx))
    k('v_rsq_f32 v%d, v%d' % (R, R))
    k('v_mul_f32 v%d, v%d, v%d' % (Qx, Qx, R))
    k('v_fmaak_f32 v%d, v%d, v%d, %s' % (Qx, Qx, R, f32(1e-5)))
    k('v_rsq_f32 v%d, v%d' % (Qx, Qx))
    k('v_mul_f32 v%d, v%d, v%d' % (R, R, Qx))
    k('s_lshl_b32 s%d, s3, 8' % b.s_t2)
    k('v_lshl_add_u32 v%d, v%d, 2, s%d' % (vC, vG, b.s_t2))
    k('ds_write_b32 v%d, v%d offset:%d' % (vC, M, lds_small + 1024))
    k('ds_write_b32 v%d, v%d offset:%d' % (vC, R, lds_small + 1024 + 128))
    k('v_lshl_add_u32 v%d, v3, 4, s%d' % (vC, b.s_t2))
    MM = P0 + 8
    k.wait_lg(0)
    for tb in range(2):
        k('ds_read_b128 %s, v%d offset:%d' % (vr(MM + 8 * tb, 4), vC, lds_small + 1024 + 64 * tb))
        k('ds_read_b128 %s, v%d offset:%d' % (vr(MM + 8 * tb + 4, 4), vC, lds_small + 1024 + 128 + 64 * tb))
    for tb in range(2):
        for nb in range(2):
            a = b.ACC + 8 * tb + 4 * nb
            for r in (0, 2):
                k('v_pk_add_f32 %s, %s, %s neg_lo:[0,1] neg_hi:[0,1]' % (vr(a + r, 2), vr(a + r, 2), vr(MM + 8 * tb + r, 2)))
            for r in (0, 2):
                k('v_pk_mul_f32 %s, %s, %s' % (vr(a + r, 2), vr(a + r, 2), vr(MM + 8 * tb + 4 + r, 2)))
            p = HP + 4 * tb + 2 * nb
            k('v_cvt_pk_bf16_f32 v%d, v%d, v%d' % (p, a, a + 1))
            k('v_cvt_pk_bf16_f32 v%d, v%d, v%d' % (p + 1, a + 2, a + 3))
            k('buffer_store_dwordx2 %s, v%d, %s, s%d offen offset:%d %s' % (vr(p, 2), vS1 if nb else vS0, srd(SRD_WS), s_o[nb], tb * 1024, sc1))


class G:
    ACC = 16
    RING = 80
    NR = 16
    vW1, vW2 = 213, 214
    vRa, vRb = 215, 216
    vSa, vSb = 217, 218
    vCl = 5
    T = 220
    s_dtC, s_ft, s_dtD, s_st, s_tmp, s_t2, s_stage, s_a0, s_a1 = 64, 65, 66, 67, 68, 69, 70, 71, 72


def G_map(k):
    g = G
    k.c('---- C/D tile map')
    k('s_lshr_b32 s%d, s2, 3' % g.s_tmp)
    k('s_mul_i32 s%d, s%d, 37' % (g.s_t2, g.s_tmp))
    k('s_lshr_b32 s%d, s%d, 8' % (g.s_t2, g.s_t2))
    k('s_mul_i32 s%d, s%d, 7' % (g.s_dtC, g.s_t2))
    k('s_sub_u32 s%d, s%d, s%d' % (g.s_dtC, g.s_tmp, g.s_dtC))
    k('s_mov_b32 s%d, s%d' % (g.s_dtD, g.s_dtC))
    k('s_and_b32 s%d, s2, 7' % g.s_tmp)
    k('s_lshl_b32 s%d, s%d, 2' % (g.s_st, g.s_tmp))
    k('s_add_u32 s%d, s%d, s%d' % (g.s_st, g.s_st, g.s_t2))
    k('s_cmp_ge_u32 s%d, 4' % g.s_t2)
    k('s_cselect_b32 s%d, 99, s%d' % (g.s_st, g.s_st))
    k('s_mul_i32 s%d, s%d, 3' % (g.s_a0, g.s_tmp))
    k('s_add_u32 s%d, s%d, 4' % (g.s_a0, g.s_a0))
    k('s_lshl_b32 s%d, s%d, 2' % (g.s_a1, g.s_tmp))
    k('s_cmp_lt_u32 s%d, 4' % g.s_tmp)
    k('s_cselect_b32 s%d, s%d, s%d' % (g.s_ft, g.s_a1, g.s_a0))
    k('s_cselect_b32 s%d, 4, 3' % g.s_a0)
    k('s_add_u32 s%d, s%d, s%d' % (g.s_ft, g.s_ft, g.s_t2))
    k('s_cmp_ge_u32 s%d, s%d' % (g.s_t2, g.s_a0))
    k('s_cselect_b32 s%d, 99, s%d' % (g.s_ft, g.s_ft))


def G_w_setup(k, which, lds_base, per_wave):
    g = G
    t = TMP
    stride = F * 2 if which == 1 else S * 2
    krows = 512 if which == 1 else 448
    vW = g.vW1 if which == 1 else g.vW2
    va, vb = (g.vRa, g.vRb) if which == 1 else (g.vSa, g.vSb)
    s_tile = g.s_ft if which == 1 else g.s_st
    k('s_mul_i32 s%d, s3, %d' % (g.s_stage, per_wave))
    k('s_add_u32 s%d, s%d, %d' % (g.s_stage, g.s_stage, lds_base))
    k('v_lshrrev_b32 v%d, 3, v1' % t)
    k('v_mul_u32_u24 v%d, %d, v%d' % (vW, stride, t))
    k('v_and_b32 v%d, 1, v3' % t)
    k('v_lshlrev_b32 v%d, 2, v%d' % (t, t))
    k('v_and_b32 v%d, 7, v1' % (t + 1))
    k('v_xor_b32 v%d, v%d, v%d' % (t, t, t + 1))
    k('v_lshl_add_u32 v%d, v%d, 4, v%d' % (vW, t, vW))
    k('s_mul_i32 s%d, s3, %d' % (g.s_tmp, krows * stride))
    k('s_lshl_b32 s%d, s%d, 7' % (g.s_t2, s_tile))
    k('s_add_u32 s%d, s%d, s%d' % (g.s_tmp, g.s_tmp, g.s_t2))
    k('s_cmp_ge_u32 s%d, 99' % s_tile)
    k('s_cselect_b32 s%d, 0x%x, s%d' % (g.s_tmp, OOB, g.s_tmp))
    k('v_add_u32 v%d, s%d, v%d' % (vW, g.s_tmp, vW))
    if which == 1:
        k('s_cselect_b32 s%d, 0x%x, 0' % (g.s_tmp, OOB))
        k('v_add_u32 v%d, s%d, v4' % (g.vCl, g.s_tmp))
    k('v_lshrrev_b32 v%d, 5, v1' % t)
    k('v_lshlrev_b32 v%d, %d, v%d' % (va, 10 if which == 1 else 9, t))
    k('v_bfe_u32 v%d, v1, 2, 2' % t)
    k('v_lshl_add_u32 v%d, v%d, 7, v%d' % (va, t, va))
    k('v_lshrrev_b32 v%d, 1, v%d' % (t, t))
    k('s_lshr_b32 s%d, s3, 1' % g.s_tmp)
    k('v_xor_b32 v%d, s%d, v%d' % (t, g.s_tmp, t))
    k('v_lshl_add_u32 v%d, v%d, 6, v%d' % (va, t, va))
    k('v_and_b32 v%d, 1, v3' % t)
    k('v_lshl_add_u32 v%d, v%d, 5, v%d' % (va, t, va))
    k('v_and_b32 v%d, 3, v1' % t)
    k('v_lshl_add_u32 v%d, v%d, 3, v%d' % (va, t, va))
    k('v_add_u32 v%d, s%d, v%d' % (va, g.s_stage, va))
    k('v_xor_b32 v%d, 64, v%d' % (vb, va))


def G_w_dma(k, which, t0, nt, slot0, tag):
    g = G
    stride = F * 2 if which == 1 else S * 2
    for i in range(2 * nt):
        k('s_add_u32 m0, s%d, %d' % (g.s_stage, slot0 * 2048 + i * 1024))
        k('s_mov_b32 s%d, %d' % (g.s_tmp, (16 * t0 + 8 * i) * stride))
        k('buffer_load_dwordx4 v%d, %s, s%d offen lds' % (g.vW1 if which == 1 else g.vW2, srd(SRD_W1 if which == 1 else SRD_W2), g.s_tmp), tag=tag)


def G_w_read(k, which, t, slot, areg):
    g = G
    va, vb = (g.vRa, g.vRb) if which == 1 else (g.vSa, g.vSb)
    sec = 512 if which == 1 else 1024
    for i, v in enumerate((va, vb)):
        k('ds_read_b64_tr_b16 %s, v%d offset:%d' % (ar(areg + 4 * i, 2), v, slot * 2048))
        k('ds_read_b64_tr_b16 %s, v%d offset:%d' % (ar(areg + 4 * i + 2, 2), v, slot * 2048 + sec))


def G_a_setup(k, which):
    g = G
    nks = 128 if which == 1 else 112
    per = 32 if which == 1 else 28
    base = HH_OFF if which == 1 else U_OFF
    s_dt = g.s_dtC if which == 1 else g.s_dtD
    k('s_lshl_b32 s%d, s%d, 1' % (g.s_tmp, s_dt))
    k('s_and_b32 s%d, s3, 1' % g.s_t2)
    k('s_add_u32 s%d, s%d, s%d' % (g.s_a0, g.s_tmp, g.s_t2))
    k('s_xor_b32 s%d, s%d, 1' % (g.s_a1, g.s_a0))
    k('s_mul_i32 s%d, s3, %d' % (g.s_tmp, per * 1024))
    k('s_add_u32 s%d, s%d, 0x%x' % (g.s_tmp, g.s_tmp, base))
    for s_ in (g.s_a0, g.s_a1):
        k('s_mul_i32 s%d, s%d, %d' % (s_, s_, nks * 1024))
        k('s_add_u32 s%d, s%d, s%d' % (s_, s_, g.s_tmp))


def G_a_load(k, t, sc1='', vo=4):
    g = G
    if t and t % 4 == 0:
        k('s_add_u32 s%d, s%d, 4096' % (g.s_a0, g.s_a0))
        k('s_add_u32 s%d, s%d, 4096' % (g.s_a1, g.s_a1))
    r = g.RING + 8 * (t % g.NR)
    for i, s_ in enumerate((g.s_a0, g.s_a1)):
        k('buffer_load_dwordx4 %s, v%d, %s, s%d offen offset:%d %s' % (vr(r + 4 * i, 4), vo, srd(SRD_WS), s_, (t % 4) * 1024, sc1))


def G_mfma(k, t, areg):
    g = G
    r = g.RING + 8 * (t % g.NR)
    for iw in range(2):
        for ia in range(2):
            L = 2 * iw + ia
            a = vr(g.ACC + 16 * L, 16)
            c = '0' if (t == 0 and L != 0) else a
            k('v_mfma_f32_32x32x16_bf16 %s, %s, %s, %s' % (a, ar(areg + 4 * iw, 4), vr(r + 4 * ia, 4), c))


def C_init(k):
    g = G
    t = g.T
    k('v_lshrrev_b32 v%d, 5, v1' % t)
    k('v_lshlrev_b32 v%d, 3, v%d' % (t, t))
    k('s_lshl_b32 s%d, s%d, 7' % (g.s_tmp, g.s_ft))
    k('s_lshr_b32 s%d, s3, 1' % g.s_t2)
    k('s_lshl_b32 s%d, s%d, 6' % (g.s_t2, g.s_t2))
    k('s_add_u32 s%d, s%d, s%d' % (g.s_tmp, g.s_tmp, g.s_t2))
    for q in range(4):
        k('buffer_load_dwordx2 %s, v%d, %s, s%d offen offset:%d' % (vr(t + 2 + 2 * q, 2), t, srd(SRD_B1), g.s_tmp, 16 * q))


def C_init_finish(k):
    g = G
    t = g.T
    for q in range(4):
        for i in range(2):
            k('v_lshlrev_b32 v%d, 16, v%d' % (g.ACC + 4 * q + 2 * i, t + 2 + 2 * q + i))
            k('v_and_b32 v%d, 0xffff0000, v%d' % (g.ACC + 4 * q + 2 * i + 1, t + 2 + 2 * q + i))


def C_epilogue(k, lds_red, sc1=''):
    g = G
    t = g.T
    k.c('---- phase C epilogue')
    for L in range(1, 4):
        k('s_xor_b32 s%d, s3, %d' % (g.s_tmp, L))
        k('s_mul_i32 s%d, s%d, 12288' % (g.s_tmp, g.s_tmp))
        k('s_add_u32 s%d, s%d, %d' % (g.s_tmp, g.s_tmp, lds_red + (L - 1) * 4096))
        k('v_add_u32 v%d, s%d, v4' % (t + L, g.s_tmp))
    for L in range(1, 4):
        for q in range(4):
            k('ds_write_b128 v%d, %s offset:%d' % (t + L, vr(g.ACC + 16 * L + 4 * q, 4), q * 1024))
    k('s_mul_i32 s%d, s3, 12288' % g.s_tmp)
    k('s_add_u32 s%d, s%d, %d' % (g.s_tmp, g.s_tmp, lds_red))
    k('v_add_u32 v%d, s%d, v4' % (t, g.s_tmp))
    k('s_lshl_b32 s%d, s%d, 1' % (g.s_tmp, g.s_dtC))
    k('s_and_b32 s%d, s3, 1' % g.s_t2)
    k('s_add_u32 s%d, s%d, s%d' % (g.s_tmp, g.s_tmp, g.s_t2))
    k('s_mul_i32 s%d, s%d, 112' % (g.s_tmp, g.s_tmp))
    k('s_lshl_b32 s%d, s%d, 2' % (g.s_t2, g.s_ft))
    k('s_add_u32 s%d, s%d, s%d' % (g.s_tmp, g.s_tmp, g.s_t2))
    k('s_and_b32 s%d, s3, 2' % g.s_t2)
    k('s_add_u32 s%d, s%d, s%d' % (g.s_tmp, g.s_tmp, g.s_t2))
    k('s_lshl_b32 s%d, s%d, 10' % (g.s_tmp, g.s_tmp))
    k('s_add_u32 s%d, s%d, 0x%x' % (g.s_tmp, g.s_tmp, U_OFF))
    k.wait_lg(0)
    k.barrier()
    R = g.ACC + 16
    for q in range(4):
        for L in range(3):
            k('ds_read_b128 %s, v%d offset:%d' % (vr(R + 16 * L + 4 * q, 4), t, L * 4096 + q * 1024))
    c1 = -2.0 * 0.7978845608028654 * 1.4426950408889634
    c2 = c1 * 0.044715
    sc = 74
    k('s_mov_b32 s%d, %s' % (sc, f32(c1)))
    k('s_mov_b32 s%d, %s' % (sc + 2, f32(c2)))
    X2 = g.RING
    k('v_mov_b32 v%d, s%d' % (t + 4, sc))
    k('v_mov_b32 v%d, s%d' % (t + 5, sc))
    for half in range(2):
        for i in range(8 * half, 8 * half + 8, 2):
            a = g.ACC + i
            k('v_pk_add_f32 %s, %s, %s' % (vr(R + i, 2), vr(R + i, 2), vr(R + 16 + i, 2)))
            k('v_pk_add_f32 %s, %s, %s' % (vr(a, 2), vr(a, 2), vr(R + 32 + i, 2)))
        for i in range(8 * half, 8 * half + 8, 2):
            a = g.ACC + i
            k('v_pk_add_f32 %s, %s, %s' % (vr(a, 2), vr(a, 2), vr(R + i, 2)))
        for i in range(8 * half, 8 * half + 8, 2):
            a = g.ACC + i
            k('v_pk_mul_f32 %s, %s, %s' % (vr(X2 + i, 2), vr(a, 2), vr(a, 2)))
        for i in range(8 * half, 8 * half + 8, 2):
            k('v_pk_fma_f32 %s, %s, %s, %s op_sel_hi:[1,0,1]' % (vr(X2 + i, 2), vr(X2 + i, 2), sr(sc + 2, 2), vr(t + 4, 2)))
        for i in range(8 * half, 8 * half + 8, 2):
            k('v_pk_mul_f32 %s, %s, %s' % (vr(X2 + i, 2), vr(X2 + i, 2), vr(g.ACC + i, 2)))
        for i in range(8 * half, 8 * half + 8):
            k('v_exp_f32 v%d, v%d' % (X2 + i, X2 + i))
        for i in range(8 * half, 8 * half + 8, 2):
            k('v_pk_add_f32 %s, %s, 1.0 op_sel_hi:[1,0]' % (vr(X2 + i, 2), vr(X2 + i, 2)))
        for i in range(8 * half, 8 * half + 8):
            k('v_rcp_f32 v%d, v%d' % (X2 + i, X2 + i))
        for i in range(8 * half, 8 * half + 8, 2):
            k('v_pk_mul_f32 %s, %s, %s' % (vr(X2 + i, 2), vr(X2 + i, 2), vr(g.ACC + i, 2)))
        p = X2 + 16 + 4 * half
        for i in range(4):
            k('v_cvt_pk_bf16_f32 v%d, v%d, v%d' % (p + i, X2 + 8 * half + 2 * i, X2 + 8 * half + 2 * i + 1))
        k('buffer_store_dwordx4 %s, v%d, %s, s%d offen offset:%d %s' % (vr(p, 4), g.vCl, srd(SRD_WS), g.s_tmp, half * 1024, sc1), tag='ust')


def D_init(k, sc1=''):
    g = G
    t = g.T
    k('v_lshrrev_b32 v%d, 5, v1' % t)
    k('v_lshlrev_b32 v%d, 3, v%d' % (t, t))
    k('s_lshl_b32 s%d, s%d, 7' % (g.s_tmp, g.s_st))
    k('s_lshr_b32 s%d, s3, 1' % g.s_t2)
    k('s_lshl_b32 s%d, s%d, 6' % (g.s_t2, g.s_t2))
    k('s_add_u32 s%d, s%d, s%d' % (g.s_tmp, g.s_tmp, g.s_t2))
    for q in range(4):
        k('buffer_load_dwordx2 %s, v%d, %s, s%d offen offset:%d' % (vr(t + 2 + 2 * q, 2), t, srd(SRD_B2), g.s_tmp, 16 * q))
    k('v_and_b32 v%d, 31, v1' % (t + 1))
    k('v_lshl_add_u32 v%d, v%d, 4, v%d' % (t + 1, t + 1, t))
    k('s_lshl_b32 s%d, s%d, 1' % (g.s_tmp, g.s_dtD))
    k('s_and_b32 s%d, s3, 1' % g.s_t2)
    k('s_add_u32 s%d, s%d, s%d' % (g.s_tmp, g.s_tmp, g.s_t2))
    k('s_lshl_b32 s%d, s%d, 7' % (g.s_tmp, g.s_tmp))
    k('s_lshl_b32 s%d, s%d, 2' % (g.s_t2, g.s_st))
    k('s_add_u32 s%d, s%d, s%d' % (g.s_tmp, g.s_tmp, g.s_t2))
    k('s_and_b32 s%d, s3, 2' % g.s_t2)
    k('s_add_u32 s%d, s%d, s%d' % (g.s_tmp, g.s_tmp, g.s_t2))
    k('s_lshl_b32 s%d, s%d, 10' % (g.s_tmp, g.s_tmp))
    k('s_add_u32 s%d, s%d, 0x%x' % (g.s_tmp, g.s_tmp, HT_OFF))
    for q in range(4):
        k('buffer_load_dwordx2 %s, v%d, %s, s%d offen offset:%d %s' % (vr(t + 10 + 2 * q, 2), t + 1, srd(SRD_WS), g.s_tmp, 512 * q, sc1))


def D_init_finish(k):
    g = G
    t = g.T
    for q in range(4):
        for i in range(2):
            a = g.ACC + 4 * q + 2 * i
            k('v_lshlrev_b32 v%d, 16, v%d' % (a, t + 2 + 2 * q + i))
            k('v_and_b32 v%d, 0xffff0000, v%d' % (a + 1, t + 2 + 2 * q + i))
            k('v_lshlrev_b32 v%d, 16, v%d' % (t + 18, t + 10 + 2 * q + i))
            k('v_and_b32 v%d, 0xffff0000, v%d' % (t + 19, t + 10 + 2 * q + i))
            k('v_pk_add_f32 %s, %s, %s' % (vr(a, 2), vr(a, 2), vr(t + 18, 2)))


def D_epilogue(k, lds_red, stride):
    g = G
    t = g.T
    k.c('---- phase D epilogue')
    k('v_lshrrev_b32 v%d, 5, v1' % t)
    k('v_lshlrev_b32 v%d, 10, v%d' % (t, t))
    k('v_and_b32 v%d, 31, v1' % (t + 1))
    k('v_lshl_add_u32 v%d, v%d, 2, v%d' % (t, t + 1, t))
    k('s_lshr_b32 s%d, s3, 1' % g.s_t2)
    k('s_lshl_b32 s%d, s%d, 13' % (g.s_tmp, g.s_t2))
    k('s_and_b32 s%d, s3, 1' % g.s_t2)
    k('s_lshl_b32 s%d, s%d, 7' % (g.s_t2, g.s_t2))
    k('s_add_u32 s%d, s%d, s%d' % (g.s_tmp, g.s_tmp, g.s_t2))
    k('v_add_u32 v%d, s%d, v%d' % (t, g.s_tmp, t))
    k('v_xor_b32 v%d, 128, v%d' % (t + 1, t))
    k('v_xor_b32 v%d, 0x2000, v%d' % (t + 2, t))
    k('v_xor_b32 v%d, 0x2080, v%d' % (t + 3, t))
    k('s_mul_i32 s%d, s3, %d' % (g.s_tmp, stride))
    k('s_add_u32 s%d, s%d, %d' % (g.s_tmp, g.s_tmp, lds_red))
    for L in range(4):
        k('v_add_u32 v%d, s%d, v%d' % (t + L, g.s_tmp, t + L))
    k('s_lshl_b32 s%d, s3, 12' % g.s_tmp)
    k('s_add_u32 s%d, s%d, %d' % (g.s_tmp, g.s_tmp, lds_red))
    k('v_add_u32 v%d, s%d, v4' % (t + 4, g.s_tmp))
    k('v_add_u32 v%d, %d, v%d' % (t + 6, 2 * stride, t + 4))
    k('v_mul_u32_u24 v%d, 896, v3' % (t + 5))
    k('v_lshl_add_u32 v%d, v2, 3, v%d' % (t + 5, t + 5))
    k('s_lshl_b32 s%d, s%d, 2' % (g.s_tmp, g.s_st))
    k('s_add_u32 s%d, s%d, s3' % (g.s_tmp, g.s_tmp))
    k('s_mul_i32 s%d, s%d, %d' % (g.s_tmp, g.s_tmp, 16 * 896))
    k('s_lshl_b32 s%d, s%d, 7' % (g.s_t2, g.s_dtD))
    k('s_add_u32 s%d, s%d, s%d' % (g.s_tmp, g.s_tmp, g.s_t2))
    k('s_add_u32 s%d, s%d, %d' % (g.s_t2, g.s_tmp, 8 * 896))


def D_epilogue2(k, stride):
    g = G
    t = g.T
    for L in range(4):
        for q in range(4):
            for r in (0, 2):
                a = g.ACC + 16 * L + 4 * q + r
                k('ds_write2st64_b32 v%d, v%d, v%d offset0:%d offset1:%d' % (t + L, a, a + 1, 8 * q + r, 8 * q + r + 1))
    k.wait_lg(0)
    k.barrier()
    R = g.ACC
    for i in range(4):
        for w in range(4):
            k('ds_read_b128 %s, v%d offset:%d' % (vr(R + 16 * i + 4 * w, 4), t + 4 if w < 2 else t + 6, (w & 1) * stride + i * 1024))
    for i in range(4):
        r = R + 16 * i
        for j in (0, 2):
            k('v_pk_add_f32 %s, %s, %s' % (vr(r + j, 2), vr(r + j, 2), vr(r + 4 + j, 2)))
            k('v_pk_add_f32 %s, %s, %s' % (vr(r + 8 + j, 2), vr(r + 8 + j, 2), vr(r + 12 + j, 2)))
        for j in (0, 2):
            k('v_pk_add_f32 %s, %s, %s' % (vr(r + j, 2), vr(r + j, 2), vr(r + 8 + j, 2)))
        k('v_cvt_pk_bf16_f32 v%d, v%d, v%d' % (r + 4, r, r + 1))
        k('v_cvt_pk_bf16_f32 v%d, v%d, v%d' % (r + 5, r + 2, r + 3))
        k('buffer_store_dwordx2 %s, v%d, %s, s%d offen offset:%d' % (vr(r + 4, 2), t + 5, srd(SRD_OUT), g.s_t2 if i >= 2 else g.s_tmp, (i % 2) * 4 * 896))
```

```python
import sys, os
sys.path.insert(0, os.path.dirname(os.path.abspath(__file__)))
from dsl import Kernel
import phases as P

NAME = 'sequential_preLN__sliding_local_dilated__mixer_token_mlp__prompt'
HEADER = open(os.path.join(os.path.dirname(os.path.abspath(__file__)), '..', NAME + '.s.ref')).read().split('; Override launch')[0]


def wrap(kernels):
    out = [HEADER.rstrip('\n')]
    for label, k, grid, lds in kernels:
        if len(kernels) == 1 and label == NAME + '_kernel':
            out.append('; @launch grid=(%d,1,1) block=(256,1,1) lds=%d' % (grid, lds))
        else:
            out.append('; @launch kernel=%s grid=(%d,1,1) block=(256,1,1) lds=%d' % (label, grid, lds))
    out.append('.amdgcn_target "amdgcn-amd-amdhsa--gfx950"')
    out.append('.text')
    seen = []
    for label, k, grid, lds in kernels:
        if label in seen:
            continue
        seen.append(label)
        out.append('.globl %s\n.p2align 8\n.type %s,@function\n%s:' % (label, label, label))
        out.append(k.text())
    out.append('.section .rodata,"a"')
    seen = []
    for label, k, grid, lds in kernels:
        if label in seen:
            continue
        seen.append(label)
        nv = k.max_v + 1
        acc = (nv + 3) // 4 * 4
        tot = acc + k.max_a + 1 if k.max_a >= 0 else nv
        out.append('.p2align 6\n.amdhsa_kernel %s\n  .amdhsa_next_free_vgpr %d\n  .amdhsa_next_free_sgpr 102\n'
                   '  .amdhsa_accum_offset %d\n  .amdhsa_group_segment_fixed_size 0\n  .amdhsa_kernarg_size 88\n'
                   '  .amdhsa_user_sgpr_count 2\n  .amdhsa_user_sgpr_kernarg_segment_ptr 1\n'
                   '  .amdhsa_system_sgpr_workgroup_id_x 1\n.end_amdhsa_kernel' % (label, tot, acc))
        sys.stderr.write('%s: %d instrs, %d nops, v<=%d a<=%d s<=%d\n' % (label, k.n_ins, k.n_nops, k.max_v, k.max_a, k.max_s))
    return '\n'.join(out) + '\n'


def kernel_A(stamps=False):
    k = Kernel('A'); k.stamps = stamps
    P.prologue(k, 256, 'L_end_A', [P.ARG[n] for n in ('x', 'wqkv', 'ws')])
    P.stamp(k, 0)
    P.phaseA(k)
    P.stamp(k, 5)
    k.wait_vm(0)
    P.stamp(k, 6)
    k.label('L_end_A')
    k('s_endpgm')
    return ('phaseA_kernel', k, 256, P.A_LDS_END)


def persist(stamps=False):
    k = Kernel('P'); k.stamps = stamps
    end = 'L_end_P'
    g, b = P.G, P.B
    SC = 'sc1'
    vE, vF, vPA, vPB, vPC = 6, 8, 10, 11, 12
    sFA, sFB, sFC, sPA, sPB, sPC = 80, 81, 82, 83, 84, 85
    P.prologue(k, 256, end, [P.ARG[n] for n in ('x', 'wqkv', 'dbg', 'ws', 'wo', 'w1', 'w2', 'b1', 'b2', 'out')])
    P.stamp(k, 0)

    def areg(t):
        return 128 + 8 * t if t < 16 else 8 * (t - 16)

    def setup():
        P.G_map(k)
        P.B_setup(k)
        P.B_wo_addr(k)
        P.G_w_setup(k, 1, P.LDS_STG, P.STG_SZ)
        P.G_w_setup(k, 2, P.LDS_STG, P.STG_SZ)
        t = 79
        k('s_lshl_b32 s%d, s48, 2' % sFA)
        k('s_add_u32 s%d, s%d, s3' % (sFA, sFA))
        k('s_lshl_b32 s%d, s%d, 4' % (sFA, sFA))
        k('s_add_u32 s%d, s%d, s49' % (sFA, sFA))
        k('s_lshl_b32 s%d, s%d, 2' % (sFA, sFA))
        k('s_add_u32 s%d, s%d, 0x%x' % (sFA, sFA, P.FLAG_A))
        k('s_lshl_b32 s%d, s%d, 6' % (sPA, b.s_tb32))
        k('s_and_b32 s%d, s3, 1' % t)
        k('s_lshl_b32 s%d, s%d, 5' % (t, t))
        k('s_add_u32 s%d, s%d, s%d' % (sPA, sPA, t))
        k('s_add_u32 s%d, s%d, 0x%x' % (sPA, sPA, P.FLAG_A))
        k('v_and_b32 v%d, 7, v1' % vPA)
        k('v_lshlrev_b32 v%d, 2, v%d' % (vPA, vPA))
        k('s_lshl_b32 s%d, s%d, 2' % (sFB, b.s_cq))
        k('s_add_u32 s%d, s%d, s3' % (sFB, sFB))
        k('s_lshl_b32 s%d, s%d, 6' % (sFB, sFB))
        k('s_add_u32 s%d, s%d, s%d' % (sFB, sFB, b.s_tb32))
        k('s_lshl_b32 s%d, s%d, 2' % (sFB, sFB))
        k('s_add_u32 s%d, s%d, 0x%x' % (sFB, sFB, P.FLAG_B))
        k('s_lshl_b32 s%d, s%d, 1' % (sPB, g.s_dtC))
        k('s_cmp_ge_u32 s%d, 4' % g.s_dtC)
        k('s_addc_u32 s%d, s%d, 0' % (sPB, sPB))
        k('s_lshl_b32 s%d, s%d, 8' % (sPB, sPB))
        k('s_lshl_b32 s%d, s3, 6' % t)
        k('s_add_u32 s%d, s%d, s%d' % (sPB, sPB, t))
        k('s_add_u32 s%d, s%d, 0x%x' % (sPB, sPB, P.FLAG_B))
        k('v_min_u32 v%d, 2, v3' % vPB)
        k('v_lshlrev_b32 v%d, 8, v%d' % (vPB, vPB))
        k('v_lshl_add_u32 v%d, v2, 2, v%d' % (vPB, vPB))
        k('s_lshl_b32 s%d, s%d, 9' % (sPC, g.s_dtC))
        k('s_add_u32 s%d, s%d, 0x%x' % (sPC, sPC, P.FLAG_C))
        k('s_lshl_b32 s%d, s%d, 2' % (sFC, g.s_ft))
        k('s_add_u32 s%d, s%d, s3' % (sFC, sFC))
        k('s_lshl_b32 s%d, s%d, 2' % (sFC, sFC))
        k('s_add_u32 s%d, s%d, s%d' % (sFC, sFC, sPC))
        k('s_mul_i32 s%d, s3, 112' % t)
        k('s_add_u32 s%d, s%d, s%d' % (sPC, sPC, t))
        k('v_min_u32 v%d, 27, v1' % vPC)
        k('v_lshlrev_b32 v%d, 2, v%d' % (vPC, vPC))
        k('v_mov_b32 v%d, 0' % (vF + 1))

    hooksA = {
        'A_pre': lambda: P.epoch_publish(k, vE),
        'A_after_issue': setup,
        'A_k8': lambda: (P.epoch_load(k, vE), P.B_wo_dma(k, 0)),
        'A_k9': lambda: P.B_xinit(k),
        'A_k11': lambda: P.B_wo_dma(k, 1),
        'A_e1': lambda: (P.B_wo_dma(k, 2), P.B_wo_dma(k, 3)),
    }
    P.phaseA(k, SC, hooksA)
    P.stamp(k, 5)
    for p in range(4):
        P.B_wo_read(k, p, 0)
    P.B_xinit_finish(k)
    P.epoch_get(k, vE)
    k.wait_tag('ost')
    P.flag_store(k, vF, sFA)
    P.stamp(k, 6)
    k.wait_lg(0)
    k.barrier()
    P.G_w_dma(k, 1, 0, 12, 0, 'w1a')
    P.flag_poll(k, vF, vPA, sPA)
    P.stamp(k, 10)

    def after_of():
        for t in range(12):
            P.G_w_read(k, 1, t, t, areg(t))
        k.wait_lg(0)
        P.G_w_dma(k, 1, 12, 12, 0, 'w1b')

    def before_poll():
        k.wait_tag('w1b')
        for t in range(12, 24):
            P.G_w_read(k, 1, t, t - 12, areg(t))
        k.wait_lg(0)
        P.G_w_dma(k, 1, 24, 8, 0, 'w1c')

    P.B_main(k, 0, P.LDS_MID, 0, SC, {'B_after_of': after_of, 'B_before_poll': before_poll})
    P.stamp(k, 14)
    for t in range(24, 32):
        P.G_w_read(k, 1, t, t - 24, areg(t))
    k.wait_vm(0)
    P.flag_store(k, vF, sFB)
    P.stamp(k, 15)
    k.wait_lg(0)
    P.G_w_dma(k, 2, 0, 12, 0, 'w2a')
    P.C_init(k)
    P.G_a_setup(k, 1)
    P.flag_poll(k, vF, vPB, sPB)
    P.stamp(k, 16)
    for t in range(16):
        P.G_a_load(k, t, SC, g.vCl)
        if t == 3:
            P.C_init_finish(k)
    for t in range(32):
        P.G_mfma(k, t, areg(t))
        if t < 12:
            P.G_w_read(k, 2, t, t, areg(t))
        if t + 16 < 32:
            P.G_a_load(k, t + 16, SC, g.vCl)
        if t == 16:
            k.wait_lg(0)
        if 16 <= t < 28:
            P.G_w_dma(k, 2, t - 4, 1, t - 16, 'w2b')
        if t == 15:
            P.stamp(k, 18)
    P.stamp(k, 20)
    P.C_epilogue(k, P.LDS_MID, SC)
    P.stamp(k, 21)
    k('v_mov_b32 v%d, v%d' % (vF + 1, g.vCl))
    k.wait_tag('ust')
    P.flag_store(k, vF, sFC)
    P.stamp(k, 22)
    k('s_cmp_ge_u32 s%d, 99' % g.s_st)
    k('s_cbranch_scc1 %s' % end)
    for t in range(12, 24):
        P.G_w_read(k, 2, t, t - 12, areg(t))
    P.D_init(k, SC)
    k.wait_lg(0)
    P.G_w_dma(k, 2, 24, 4, 0, 'w2c')
    P.G_a_setup(k, 2)
    P.flag_poll(k, vF, vPC, sPC)
    P.stamp(k, 24)
    for t in range(16):
        P.G_a_load(k, t, SC)
        if t == 3:
            for tt in range(24, 28):
                P.G_w_read(k, 2, tt, tt - 24, areg(tt))
            P.D_init_finish(k)
    P.D_epilogue(k, P.LDS_STG, P.STG_SZ)
    for t in range(28):
        P.G_mfma(k, t, areg(t))
        if t + 16 < 28:
            P.G_a_load(k, t + 16, SC)
    P.stamp(k, 28)
    P.D_epilogue2(k, P.STG_SZ)
    P.stamp(k, 29)
    if stamps:
        k.wait_vm(0)
        P.stamp(k, 30)
    k.label(end)
    k('s_endpgm')
    return (NAME + '_kernel', k, 256, P.LDS_END)


if __name__ == '__main__':
    which = sys.argv[1] if len(sys.argv) > 1 else 'p'
    outp = sys.argv[2] if len(sys.argv) > 2 else os.path.join(os.path.dirname(os.path.abspath(__file__)), '..', NAME + '.s')
    if which == 'p':
        ks = [persist()]
    elif which == 'p_dbg':
        ks = [persist('dbg')]
    elif which == 'p_st':
        P.ARG['ws'] = (P.SRD_WS, 80, 0x1000000)
        ks = [persist(True)]
    open(outp, 'w').write(wrap(ks))
```

```python
import struct
from dsl import Kernel, vr, ar, sr

S, D, H, DH, F = 2048, 448, 16, 28, 1792

OF_OFF = 0x000000
HH_OFF = 0x200000
HT_OFF = 0x400000
U_OFF = 0x600000
STAT_OFF = 0x800000
FLAG_OFF = 0x840000
WS_SIZE = 0x900000
OOB = 0x40000000

SRD_X, SRD_WQKV, SRD_WO, SRD_W1, SRD_W2, SRD_B1, SRD_B2, SRD_OUT, SRD_WS, SRD_DBG = 8, 12, 16, 20, 24, 28, 32, 36, 40, 44
S_WG, S_WAVE = 2, 3
S_EPOCH = 4
S_SPIN = 6
S_ONES = 5
S_T = 86
V_LANE, V_T16, V_G, V_L16 = 1, 2, 3, 4


def f32(x):
    return '0x%08x' % struct.unpack('<I', struct.pack('<f', x))[0]


def srd(base):
    return sr(base, 4)


def prologue(k, nwg, end_label, need):
    k('s_cmp_ge_u32 s2, %d' % nwg)
    k('s_cbranch_scc1 %s' % end_label)
    for base, off, size in need:
        k('s_load_dwordx2 %s, s[0:1], %d' % (sr(base, 2), off))
    k('v_lshrrev_b32 v1, 6, v0')
    k('v_readfirstlane_b32 s3, v1')
    k('v_and_b32 v1, 63, v0')
    k('v_and_b32 v2, 15, v0')
    k('v_lshrrev_b32 v3, 4, v1')
    k('v_lshlrev_b32 v4, 4, v1')
    for base, off, size in need:
        k('s_mov_b32 s%d, 0x%x' % (base + 2, size))
        k('s_mov_b32 s%d, 0x00020000' % (base + 3))
    k('s_mov_b32 s%d, 0x3f803f80' % S_ONES)
    k('s_mov_b32 s%d, 0x40000' % S_SPIN)
    k.end_label = end_label


ARG = dict(x=(SRD_X, 0, S * D * 2), wqkv=(SRD_WQKV, 8, D * 3 * D * 2), wo=(SRD_WO, 16, D * D * 2),
           w1=(SRD_W1, 32, S * F * 2), b1=(SRD_B1, 40, F * 2), w2=(SRD_W2, 48, F * S * 2), b2=(SRD_B2, 56, S * 2),
           out=(SRD_OUT, 64, S * D * 2), dbg=(SRD_DBG, 72, 256), ws=(SRD_WS, 80, WS_SIZE))


def xgroup_reduce(k, regs, tmp, op='v_add_f32'):
    for swap in ('v_permlane32_swap_b32', 'v_permlane16_swap_b32'):
        for r, t in zip(regs, tmp):
            k('v_mov_b32 v%d, v%d' % (t, r))
        for r, t in zip(regs, tmp):
            k('%s v%d, v%d' % (swap, r, t))
        for r, t in zip(regs, tmp):
            k('%s v%d, v%d, v%d' % (op, r, r, t))


A_LDS_CS = 0
A_LDS_ST = 512
A_LDS_KV = 2048
A_LDS_W = 12288
A_LDS_X = 61440
A_XSLOT = [2, 1, 0, 3]
A_LDS_END = A_LDS_X + 4 * 18432
LDS_MID = 12288
LDS_STG = 65536
STG_SZ = 24576
LDS_END = 163840
WO_F = [135168, 98304, 69632, 40960]
TMP = 219


def xslot(grp):
    return A_XSLOT.index(grp % 4) * 18432


def phaseA(k, sc1='', hooks=None):
    hooks = hooks or {}
    XR = 16
    ACC = 136
    WF = 88
    ST = 224
    vXl, vXu, vXh, vW, vA0, vA1, vH1, vH2 = 120, 121, 122, 123, 124, 125, 126, 127
    vRe, vRo, vHe, vHo = 128, 129, 130, 131
    vT = 237
    BP, BC, BPA = 240, 244, 248
    s_rb, s_head, s_t0, s_m0w, s_m0x, s_tmp = 48, 49, 50, 51, 52, 53
    s_hm = 54
    s_m0h = 78

    def hook(name):
        if name in hooks:
            hooks[name]()

    def xreg(j, blk):
        return XR + (j % 2) * 12 + blk * 4

    def acc(blk, nbi):
        return ACC + blk * 24 + nbi * 4
    H1, H2 = ACC + 48, ACC + 52

    k.c('---- phase A setup')
    k('s_and_b32 s%d, s2, 7' % s_rb)
    k('s_lshl_b32 s%d, s%d, 1' % (s_rb, s_rb))
    k('s_lshr_b32 s%d, s2, 7' % s_tmp)
    k('s_add_u32 s%d, s%d, s%d' % (s_rb, s_rb, s_tmp))
    k('s_lshr_b32 s%d, s2, 3' % s_head)
    k('s_and_b32 s%d, s%d, 15' % (s_head, s_head))
    k('v_lshrrev_b32 v%d, 2, v1' % vT)
    k('v_mul_u32_u24 v%d, 2688, v%d' % (vW, vT))
    k('v_lshrrev_b32 v%d, 5, v1' % vT)
    k('v_lshlrev_b32 v%d, 1, v%d' % (vT, vT))
    k('v_and_b32 v%d, 3, v1' % (vT + 1))
    k('v_xor_b32 v%d, v%d, v%d' % (vT, vT, vT + 1))
    k('v_lshl_add_u32 v%d, v%d, 4, v%d' % (vW, vT, vW))
    k('s_mul_i32 s%d, s%d, 56' % (s_tmp, s_head))
    k('s_mul_i32 s%d, s3, %d' % (s_m0w, 16 * 2688))
    k('s_add_u32 s%d, s%d, s%d' % (s_tmp, s_tmp, s_m0w))
    k('v_add_u32 v%d, s%d, v%d' % (vW, s_tmp, vW))
    k('s_lshr_b32 s%d, s3, 1' % s_tmp)
    k('s_mul_i32 s%d, s%d, 6144' % (s_m0w, s_tmp))
    k('s_and_b32 s%d, s3, 1' % s_tmp)
    k('s_lshl_b32 s%d, s%d, 10' % (s_tmp, s_tmp))
    k('s_add_u32 s%d, s%d, s%d' % (s_m0w, s_m0w, s_tmp))
    k('v_lshrrev_b32 v%d, 3, v1' % vT)
    k('v_mul_u32_u24 v%d, 896, v%d' % (vXh, vT))
    k('v_and_b32 v%d, 7, v1' % vT)
    k('v_xor_b32 v%d, v%d, v3' % (vT, vT))
    k('v_lshl_add_u32 v%d, v%d, 4, v%d' % (vXl, vT, vXh))
    k('s_lshl_b32 s%d, s%d, 7' % (s_t0, s_rb))
    k('s_lshl_b32 s%d, s3, 5' % s_tmp)
    k('s_add_u32 s%d, s%d, s%d' % (s_tmp, s_tmp, s_t0))
    k('s_mul_i32 s%d, s%d, 896' % (s_tmp, s_tmp))
    k('v_xor_b32 v%d, 64, v%d' % (vXu, vXl))
    k('v_add_u32 v%d, s%d, v%d' % (vXl, s_tmp, vXl))
    k('s_add_u32 s%d, s%d, %d' % (s_tmp, s_tmp, 8 * 896))
    k('v_add_u32 v%d, s%d, v%d' % (vXu, s_tmp, vXu))
    k('s_lshl_b32 s%d, s3, 1' % s_tmp)
    k('v_xor_b32 v%d, s%d, v%d' % (vT, s_tmp, vT))
    k('v_lshl_add_u32 v%d, v%d, 4, v%d' % (vXh, vT, vXh))
    k('s_lshl_b32 s%d, s3, 2' % s_tmp)
    k('s_add_u32 s%d, s%d, s%d' % (s_tmp, s_tmp, s_t0))
    k('s_sub_u32 s%d, s%d, 16' % (s_tmp, s_tmp))
    k('s_mul_i32 s%d, s%d, 896' % (s_tmp, s_tmp))
    k('s_cmp_eq_u32 s%d, 0' % s_rb)
    k('s_cselect_b32 s%d, 0x%x, s%d' % (s_tmp, OOB, s_tmp))
    k('v_add_u32 v%d, s%d, v%d' % (vXh, s_tmp, vXh))
    k('s_lshl_b32 s%d, s3, 12' % s_m0x)
    k('s_add_u32 s%d, s%d, %d' % (s_m0x, s_m0x, A_LDS_X + 2048))
    k('s_lshl_b32 s%d, s3, 9' % s_m0h)
    k('s_cmp_eq_u32 s3, 0')
    k('s_cselect_b32 s%d, 0xffffff00, -1' % s_hm)
    k('s_mov_b32 s%d, 0' % (s_hm + 1))

    def dma_group(grp):
        tag = 'G%d' % grp
        for p in range(3):
            k('s_add_u32 m0, s%d, %d' % (s_m0w, A_LDS_W + (grp % 4) * 12288 + p * 2048))
            k('s_mov_b32 s%d, %d' % (s_tmp, grp * 64 * 2688 + p * 896))
            k('buffer_load_dwordx4 v%d, %s, s%d offen lds' % (vW, srd(SRD_WQKV), s_tmp), tag=tag)
        for i in range(4):
            k('s_add_u32 m0, s%d, %d' % (s_m0x, xslot(grp) + i * 1024))
            k('s_mov_b32 s%d, %d' % (s_tmp, grp * 128 + (i >> 1) * 16 * 896))
            k('buffer_load_dwordx4 v%d, %s, s%d offen lds' % (vXu if i & 1 else vXl, srd(SRD_X), s_tmp), tag=tag)
        k('s_add_u32 m0, s%d, %d' % (s_m0h, A_LDS_X + xslot(grp)))
        k('s_mov_b32 s%d, %d' % (s_tmp, grp * 128))
        k('s_mov_b64 exec, %s' % sr(s_hm, 2))
        k('buffer_load_dwordx4 v%d, %s, s%d offen lds' % (vXh, srd(SRD_X), s_tmp), tag=tag)
        k('s_mov_b64 exec, -1')

    hook('A_pre')
    for p in range(2):
        dma_group(p)
    k('v_mul_u32_u24 v%d, 18432, v3' % vT)
    k('v_lshl_add_u32 v%d, v2, 3, v%d' % (vT, vT))
    k('v_mov_b32 v%d, s%d' % (vT + 1, S_ONES))
    k('v_add_u32 v%d, %d, v%d' % (vT, A_LDS_X, vT))
    k('ds_write2_b32 v%d, v%d, v%d offset0:0 offset1:1' % (vT, vT + 1, vT + 1))
    hook('A_after_issue')

    k('v_lshlrev_b32 v%d, 9, v3' % vA0)
    k('v_bfe_u32 v%d, v1, 2, 2' % vT)
    k('v_lshl_add_u32 v%d, v%d, 6, v%d' % (vA0, vT, vA0))
    k('v_and_b32 v%d, 3, v1' % vT)
    k('v_lshl_add_u32 v%d, v%d, 3, v%d' % (vA0, vT, vA0))
    k('v_and_b32 v%d, 1, v3' % vT)
    k('v_lshlrev_b32 v%d, 5, v%d' % (vT, vT))
    k('v_add_u32 v%d, v%d, v%d' % (vA0, vA0, vT))
    k('v_add_u32 v%d, %d, v%d' % (vA0, A_LDS_W, vA0))
    k('v_xor_b32 v%d, 32, v%d' % (vA1, vA0))
    k('s_and_b32 s%d, s3, 1' % s_tmp)
    k('s_lshl_b32 s%d, s%d, 5' % (s_tmp, s_tmp))
    k('v_xor_b32 v%d, s%d, v%d' % (vH2, s_tmp, vA0))
    k('s_lshr_b32 s%d, s3, 1' % s_tmp)
    k('s_lshl_b32 s%d, s%d, 11' % (s_tmp, s_tmp))
    k('s_add_u32 s%d, s%d, 2048' % (s_tmp, s_tmp))
    k('v_add_u32 v%d, s%d, v%d' % (vH1, s_tmp, vH2))
    k('v_lshrrev_b32 v%d, 1, v2' % vT)
    k('v_xor_b32 v%d, v%d, v3' % (vT, vT))
    k('v_lshlrev_b32 v%d, 4, v%d' % (vT, vT))
    k('v_lshl_add_u32 v%d, v2, 7, v%d' % (vT, vT))
    k('v_add_u32 v%d, %d, v%d' % (vHe, A_LDS_X, vT))
    k('v_xor_b32 v%d, 64, v%d' % (vHo, vHe))
    k('v_add_u32 v%d, s%d, v%d' % (vRe, s_m0x, vT))
    k('v_xor_b32 v%d, 64, v%d' % (vRo, vRe))
    k('v_lshlrev_b32 v%d, 2, v3' % vT)
    k('v_sub_u32 v%d, v2, v%d' % (vT, vT))
    k('v_mov_b32 v%d, %s' % (vT + 2, f32(-1e30)))
    for which, base in ((16, BP), (0, BC)):
        for r in range(4):
            k('v_add_u32 v%d, %d, v%d' % (vT + 1, which - r, vT))
            k('v_and_b32 v%d, 0xfffffff1, v%d' % (vT + 1, vT + 1))
            k('v_cmp_eq_u32 vcc, 0, v%d' % (vT + 1))
            k('v_cndmask_b32 v%d, v%d, 0, vcc' % (base + r, vT + 2))
    k('s_or_b32 s%d, s%d, s3' % (s_tmp, s_rb))
    k('s_cmp_eq_u32 s%d, 0' % s_tmp)
    k('s_cselect_b64 vcc, -1, 0')
    for r in range(4):
        k('v_cndmask_b32 v%d, v%d, v%d, vcc' % (BPA + r, BP + r, vT + 2))
    for i in range(6):
        k('v_mov_b32 v%d, 0' % (ST + i))

    frag_addr = [(vA0, 0), (vA1, 0), (vA0, 2048), (vA1, 2048), (vA0, 4096), (vA1, 4096), (vH1, 0), (vH2, 0)]

    def read_frag(f, j):
        va, off = frag_addr[f]
        o = (j % 8) * 6144 + off
        k('ds_read_b64_tr_b16 %s, v%d offset:%d' % (vr(WF + 4 * f, 2), va, o))
        k('ds_read_b64_tr_b16 %s, v%d offset:%d' % (vr(WF + 4 * f + 2, 2), va, o + 256))

    def read_x(j):
        o = xslot(j // 2)
        k('ds_read_b128 %s, v%d offset:%d' % (vr(xreg(j, 0), 4), vRo if j & 1 else vRe, o))
        k('ds_read_b128 %s, v%d offset:%d' % (vr(xreg(j, 1), 4), vRo if j & 1 else vRe, o + 2048))
        k('ds_read_b128 %s, v%d offset:%d' % (vr(xreg(j, 2), 4), vHo if j & 1 else vHe, o))

    stamp(k, 1)
    k.wait_tag('G0')
    k.wait_lg(0)
    k.barrier()
    stamp(k, 2)
    read_x(0)
    for f in range(8):
        read_frag(f, 0)
    dma_group(2)
    for j in range(14):
        k.c('kstep %d' % j)
        if j + 1 < 14 and (j + 1) % 2 == 0:
            k.wait_tag('G%d' % ((j + 1) // 2))
            k.barrier()
            if (j + 5) // 2 < 7:
                dma_group((j + 5) // 2)
        for r in range(4):
            for blk in range(3):
                x = xreg(j, blk) + r
                k('v_dot2c_f32_bf16 v%d, s%d, v%d' % (ST + 2 * blk, S_ONES, x))
                k('v_dot2c_f32_bf16 v%d, v%d, v%d' % (ST + 2 * blk + 1, x, x))
        if j + 1 < 14:
            read_x(j + 1)
        for f in range(8):
            w = vr(WF + 4 * f, 4)
            if f < 6:
                for blk in range(2):
                    a = vr(acc(blk, f), 4)
                    x = vr(xreg(j, blk), 4)
                    c = '0' if j == 0 else a
                    if f < 4:
                        k('v_mfma_f32_16x16x32_bf16 %s, %s, %s, %s' % (a, w, x, c))
                    else:
                        k('v_mfma_f32_16x16x32_bf16 %s, %s, %s, %s' % (a, x, w, c))
            else:
                a = vr(H1 if f == 6 else H2, 4)
                c = '0' if j == 0 else a
                k('v_mfma_f32_16x16x32_bf16 %s, %s, %s, %s' % (a, w, vr(xreg(j, 2), 4), c))
            if j + 1 < 14:
                read_frag(f, j + 1)
        if j == 6:
            stamp(k, 3)
        hook('A_k%d' % j)

    k('s_mov_b32 s%d, 0xfffefffe' % s_hm)
    k('s_mov_b32 s%d, 0xfffefffe' % (s_hm + 1))
    k.c('---- phase A epilogue')
    stamp(k, 4)
    T = XR
    xgroup_reduce(k, [ST + i for i in range(6)], [T + i for i in range(6)])
    RR = T + 8
    for blk in range(3):
        m, r_ = RR + 2 * blk + 1, RR + 2 * blk
        k('v_mul_f32 v%d, %s, v%d' % (m, f32(1.0 / D), ST + 2 * blk))
        k('v_mul_f32 v%d, v%d, v%d' % (r_, m, m))
        k('v_mul_f32 v%d, %s, v%d' % (ST + 2 * blk + 1, f32(1.0 / D), ST + 2 * blk + 1))
        k('v_sub_f32 v%d, v%d, v%d' % (r_, ST + 2 * blk + 1, r_))
        k('v_max_f32 v%d, 0, v%d' % (r_, r_))
        k('v_add_f32 v%d, %s, v%d' % (r_, f32(1e-5), r_))
        k('v_rsq_f32 v%d, v%d' % (r_, r_))
    vAd = T + 16
    k('v_lshlrev_b32 v%d, 4, v3' % vAd)
    k('s_lshl_b32 s%d, s3, 6' % s_tmp)
    k('v_add_u32 v%d, s%d, v%d' % (vAd + 1, s_tmp, vAd))
    k('s_and_b32 s%d, s%d, 64' % (s_tmp, s_tmp))
    k('v_add_u32 v%d, s%d, v%d' % (vAd + 2, s_tmp, vAd))
    k('s_not_b64 exec, %s' % sr(s_hm, 2))
    k('ds_write_b128 v%d, %s offset:%d' % (vAd + 1, vr(H1, 4), A_LDS_CS + 128))
    k('ds_write_b128 v%d, %s offset:%d' % (vAd + 2, vr(H2, 4), A_LDS_CS))
    k('s_mov_b64 exec, 0xffff')
    k('s_lshl_b32 s%d, s3, 8' % s_tmp)
    k('v_lshl_add_u32 v%d, v2, 2, s%d' % (vAd + 3, s_tmp))
    for blk in range(2):
        k('ds_write_b32 v%d, v%d offset:%d' % (vAd + 3, RR + 2 * blk, A_LDS_ST + blk * 128))
        k('ds_write_b32 v%d, v%d offset:%d' % (vAd + 3, RR + 2 * blk + 1, A_LDS_ST + blk * 128 + 64))
    k('s_mov_b64 exec, -1')
    HC = T + 24
    for r in range(4):
        k('v_mov_b32_dpp v%d, v%d row_newbcast:0 row_mask:0xf bank_mask:0xf' % (HC + r, H1 + r))
    for r in range(4):
        k('v_fma_f32 v%d, -v%d, v%d, v%d' % (HC + r, RR + 5, HC + r, H1 + r))
    for r in range(4):
        k('v_mul_f32 v%d, v%d, v%d' % (HC + r, RR + 4, HC + r))
    k('v_cvt_pk_bf16_f32 v%d, v%d, v%d' % (HC, HC, HC + 1))
    k('v_cvt_pk_bf16_f32 v%d, v%d, v%d' % (HC + 2, HC + 2, HC + 3))
    vK, vV = T + 28, T + 29
    k('s_and_b32 s%d, s3, 1' % s_tmp)
    k('s_lshl_b32 s%d, s%d, 3' % (s_tmp, s_tmp))
    k('v_add_u32 v%d, s%d, v4' % (vK, s_tmp))
    k('v_lshrrev_b32 v%d, 2, v2' % vV)
    k('v_lshlrev_b32 v%d, 8, v%d' % (vV, vV))
    k('v_lshl_add_u32 v%d, v3, 6, v%d' % (vV, vV))
    k('v_and_b32 v%d, 3, v2' % (vV + 1))
    k('v_lshl_add_u32 v%d, v%d, 1, v%d' % (vV, vV + 1, vV))
    k('v_add_u32 v%d, s%d, v%d' % (vV, s_tmp, vV))
    k('v_add_u32 v%d, 1024, v%d' % (vV, vV))
    k('s_cmp_lt_u32 s3, 2')
    k('s_cselect_b64 vcc, -1, 0')
    k('s_cselect_b32 s%d, 2, 16' % s_tmp)
    k('v_cndmask_b32 v%d, v%d, v%d, vcc' % (vK, vV, vK))
    k('v_add_u32 v%d, s%d, v%d' % (vK + 1, s_tmp, vK))
    k('v_add_u32 v%d, s%d, v%d' % (vK + 2, s_tmp, vK + 1))
    k('v_add_u32 v%d, s%d, v%d' % (vK + 3, s_tmp, vK + 2))
    k('ds_write_b16 v%d, v%d offset:%d' % (vK, HC, A_LDS_KV))
    k('ds_write_b16_d16_hi v%d, v%d offset:%d' % (vK + 1, HC, A_LDS_KV))
    k('ds_write_b16 v%d, v%d offset:%d' % (vK + 2, HC + 2, A_LDS_KV))
    k('ds_write_b16_d16_hi v%d, v%d offset:%d' % (vK + 3, HC + 2, A_LDS_KV))
    k.wait_lg(0)
    k.barrier()
    hook('A_e1')
    CS = T + 32
    CSV = T + 48
    L2 = T + 52
    for s_ in range(4):
        k('ds_read_b128 %s, v%d offset:%d' % (vr(CS + 4 * s_, 4), vAd, A_LDS_CS + 64 * s_))
    k('v_lshlrev_b32 v%d, 2, v2' % (vAd + 1))
    k('ds_read_b32 v%d, v%d offset:%d' % (CSV, vAd + 1, A_LDS_CS + 256))
    k('ds_read_b32 v%d, v%d offset:%d' % (CSV + 1, vAd + 1, A_LDS_CS + 320))
    k('s_lshl_b32 s%d, s3, 8' % s_tmp)
    k('v_add_u32 v%d, s%d, v%d' % (vAd + 2, s_tmp, vAd))
    for blk in range(2):
        k('ds_read_b128 %s, v%d offset:%d' % (vr(L2 + 8 * blk, 4), vAd + 2, A_LDS_ST + blk * 128))
        k('ds_read_b128 %s, v%d offset:%d' % (vr(L2 + 8 * blk + 4, 4), vAd + 2, A_LDS_ST + blk * 128 + 64))
    RQ = T + 68
    k('v_cmp_ne_u32 vcc, 3, v3')
    qs = (DH ** -0.5) * 1.4426950408889634
    for blk in range(2):
        k('v_mul_f32 v%d, %s, v%d' % (RQ + 2 * blk, f32(qs), RR + 2 * blk))
    for blk in range(2):
        k('v_cndmask_b32 v%d, 0, v%d, vcc' % (RQ + 2 * blk + 1, RQ + 2 * blk))
    QT = T + 72
    KT = T + 80
    VV = T + 92
    def fix_qk(blk, nbi, scale_reg, dst):
        a = acc(blk, nbi)
        m = RR + 2 * blk + 1
        for r in range(4):
            k('v_fma_f32 v%d, -v%d, v%d, v%d' % (a + r, m, CS + 4 * nbi + r, a + r))
        for r in range(4):
            k('v_mul_f32 v%d, v%d, v%d' % (a + r, scale_reg, a + r))
        k('v_cvt_pk_bf16_f32 v%d, v%d, v%d' % (dst, a, a + 1))
        k('v_cvt_pk_bf16_f32 v%d, v%d, v%d' % (dst + 1, a + 2, a + 3))

    def fix_v(blk, nb):
        a = acc(blk, 4 + nb)
        for r in range(4):
            k('v_fma_f32 v%d, -v%d, v%d, v%d' % (a + r, L2 + 8 * blk + 4 + r, CSV + nb, a + r))
        for r in range(4):
            k('v_mul_f32 v%d, v%d, v%d' % (a + r, L2 + 8 * blk + r, a + r))
        dst = VV + 6 * nb + 2 + 2 * blk
        k('v_cvt_pk_bf16_f32 v%d, v%d, v%d' % (dst, a, a + 1))
        k('v_cvt_pk_bf16_f32 v%d, v%d, v%d' % (dst + 1, a + 2, a + 3))

    fix_qk(1, 2, RR + 2, KT + 8)
    fix_qk(1, 3, RR + 2, KT + 10)
    fix_v(1, 0)
    fix_v(1, 1)
    k('s_lshl_b32 s%d, s3, 11' % s_tmp)
    k('v_add_u32 v%d, s%d, v4' % (vAd + 3, s_tmp))
    k('ds_write_b128 v%d, %s offset:%d' % (vAd + 3, vr(KT + 8, 4), A_LDS_KV + 2048))
    k('ds_write_b64 v%d, %s offset:%d' % (vAd + 3, vr(VV + 4, 2), A_LDS_KV + 2048 + 1024))
    k('ds_write_b64 v%d, %s offset:%d' % (vAd + 3, vr(VV + 10, 2), A_LDS_KV + 2048 + 1024 + 8))
    fix_qk(0, 2, RR + 0, KT + 4)
    fix_qk(0, 3, RR + 0, KT + 6)
    fix_qk(1, 0, RQ + 2, QT + 4)
    fix_qk(1, 1, RQ + 3, QT + 6)
    k.wait_lg(0)
    k.barrier()
    k('ds_read_b128 %s, v%d offset:%d' % (vr(KT, 4), vAd + 3, A_LDS_KV))
    k('ds_read_b64 %s, v%d offset:%d' % (vr(VV, 2), vAd + 3, A_LDS_KV + 1024))
    k('ds_read_b64 %s, v%d offset:%d' % (vr(VV + 6, 2), vAd + 3, A_LDS_KV + 1024 + 8))
    SS = T + 104
    k('v_mfma_f32_16x16x32_bf16 %s, %s, %s, %s' % (vr(SS + 8, 4), vr(KT + 4, 4), vr(QT + 4, 4), vr(BP, 4)))
    k('v_mfma_f32_16x16x32_bf16 %s, %s, %s, %s' % (vr(SS + 12, 4), vr(KT + 8, 4), vr(QT + 4, 4), vr(BC, 4)))
    fix_qk(0, 0, RQ + 0, QT + 0)
    fix_qk(0, 1, RQ + 1, QT + 2)
    fix_v(0, 0)
    fix_v(0, 1)
    k('v_mfma_f32_16x16x32_bf16 %s, %s, %s, %s' % (vr(SS + 0, 4), vr(KT + 0, 4), vr(QT, 4), vr(BPA, 4)))
    k('v_mfma_f32_16x16x32_bf16 %s, %s, %s, %s' % (vr(SS + 4, 4), vr(KT + 4, 4), vr(QT, 4), vr(BC, 4)))
    MX = ACC
    TM = ACC + 2
    for blk in (1, 0):
        s_ = SS + 8 * blk
        k('v_max3_f32 v%d, v%d, v%d, v%d' % (MX + blk, s_, s_ + 1, s_ + 2))
        k('v_max3_f32 v%d, v%d, v%d, v%d' % (TM + blk, s_ + 3, s_ + 4, s_ + 5))
        k('v_max3_f32 v%d, v%d, v%d, v%d' % (MX + blk, MX + blk, s_ + 6, s_ + 7))
        k('v_max_f32 v%d, v%d, v%d' % (MX + blk, MX + blk, TM + blk))
    xgroup_reduce(k, [MX, MX + 1], [TM, TM + 1], op='v_max_f32')
    SUM = ACC + 4
    PP = ACC + 8
    for blk in (1, 0):
        s_ = SS + 8 * blk
        for i in range(8):
            k('v_sub_f32 v%d, v%d, v%d' % (s_ + i, s_ + i, MX + blk))
        for i in range(8):
            k('v_exp_f32 v%d, v%d' % (s_ + i, s_ + i))
        for i in range(4):
            k('v_cvt_pk_bf16_f32 v%d, v%d, v%d' % (PP + 4 * blk + i, s_ + 2 * i, s_ + 2 * i + 1))
    OO = ACC + 16
    for blk in (1, 0):
        for nb in range(2):
            k('v_mfma_f32_16x16x32_bf16 %s, %s, %s, 0' % (vr(OO + 8 * blk + 4 * nb, 4), vr(VV + 6 * nb + 2 * blk, 4),
                                                          vr(PP + 4 * blk, 4)))
    for blk in range(2):
        s_ = SS + 8 * blk
        k('v_add_f32 v%d, v%d, v%d' % (SUM + blk, s_, s_ + 1))
        k('v_add_f32 v%d, v%d, v%d' % (TM + blk, s_ + 2, s_ + 3))
        for i in (4, 6):
            k('v_add_f32 v%d, v%d, v%d' % (SUM + blk, SUM + blk, s_ + i))
            k('v_add_f32 v%d, v%d, v%d' % (TM + blk, TM + blk, s_ + i + 1))
        k('v_add_f32 v%d, v%d, v%d' % (SUM + blk, SUM + blk, TM + blk))
    xgroup_reduce(k, [SUM, SUM + 1], [TM, TM + 1])
    k('v_cmp_ne_u32 vcc, 3, v3')
    for blk in range(2):
        k('v_rcp_f32 v%d, v%d' % (SUM + blk, SUM + blk))
    for blk in range(2):
        k('v_cndmask_b32 v%d, 0, v%d, vcc' % (TM + blk, SUM + blk))
    k('s_lshl_b32 s%d, s%d, 3' % (s_tmp, s_rb))
    k('s_lshl_b32 s%d, s3, 1' % s_t0)
    k('s_add_u32 s%d, s%d, s%d' % (s_tmp, s_tmp, s_t0))
    k('s_lshl_b32 s%d, s%d, 4' % (s_tmp, s_tmp))
    k('s_add_u32 s%d, s%d, s%d' % (s_tmp, s_tmp, s_head))
    k('s_lshl_b32 s%d, s%d, 10' % (s_tmp, s_tmp))
    if OF_OFF:
        k('s_add_u32 s%d, s%d, 0x%x' % (s_tmp, s_tmp, OF_OFF))
    k('s_add_u32 s%d, s%d, 16384' % (s_t0, s_tmp))
    for blk in range(2):
        o = OO + 8 * blk
        for r in range(4):
            k('v_mul_f32 v%d, v%d, v%d' % (o + r, SUM + blk, o + r))
        for r in range(4):
            k('v_mul_f32 v%d, v%d, v%d' % (o + 4 + r, TM + blk, o + 4 + r))
        p = PP + 4 * blk
        for i in range(4):
            k('v_cvt_pk_bf16_f32 v%d, v%d, v%d' % (p + i, o + 2 * i, o + 2 * i + 1))
        k('buffer_store_dwordx4 %s, v4, %s, s%d offen %s' % (vr(p, 4), srd(SRD_WS), s_tmp if blk == 0 else s_t0, sc1), tag='ost')


STAMP_OFF = 0xA00000


DST = {5: 1, 10: 2, 15: 3, 16: 4, 22: 5, 24: 6, 29: 7}


def dstamp(k, idx, vtmp=253, stmp=94):
    if idx not in DST and idx != 0:
        return
    slot = DST.get(idx, 0)
    k('s_memrealtime %s' % sr(stmp, 2))
    k('s_cmp_eq_u32 s2, 131')
    k('s_cselect_b32 s%d, %d, %s' % (stmp + 4, 32 + 4 * slot, '0x%x' % OOB))
    if slot:
        k('s_cmp_eq_u32 s2, 0')
        k('s_cselect_b32 s%d, %d, s%d' % (stmp + 4, 4 * slot, stmp + 4))
    k('v_mov_b32 v%d, s%d' % (vtmp + 2, stmp + 4))
    k('v_mov_b32 v%d, s%d' % (vtmp, stmp))
    k('s_cmp_eq_u32 s3, 0')
    k('s_cselect_b64 exec, 1, 0')
    k('buffer_store_dword v%d, v%d, %s, 0 offen' % (vtmp, vtmp + 2, srd(SRD_DBG)))
    k('s_mov_b64 exec, -1')


def stamp(k, idx, vtmp=253, stmp=94):
    if getattr(k, 'stamps', False) == 'dbg':
        return dstamp(k, idx, vtmp, stmp)
    if not getattr(k, 'stamps', False):
        return
    k('s_memrealtime %s' % sr(stmp, 2))
    k('s_memtime %s' % sr(stmp + 2, 2))
    k('s_lshl_b32 s%d, s2, 2' % (stmp + 4))
    k('s_add_u32 s%d, s%d, s3' % (stmp + 4, stmp + 4))
    k('s_lshl_b32 s%d, s%d, 7' % (stmp + 4, stmp + 4))
    k('s_add_u32 s%d, s%d, 0x%x' % (stmp + 4, stmp + 4, STAMP_OFF + 4 * idx))
    k('v_mov_b32 v%d, s%d' % (vtmp, stmp))
    k('v_mov_b32 v%d, s%d' % (vtmp + 1, stmp + 2))
    k('v_mov_b32 v%d, 0' % (vtmp + 2))
    k('s_mov_b64 exec, 1')
    k('buffer_store_dword v%d, v%d, %s, s%d offen' % (vtmp, vtmp + 2, srd(SRD_WS), stmp + 4))
    k('s_add_u32 s%d, s%d, 0x20000' % (stmp + 4, stmp + 4))
    k('buffer_store_dword v%d, v%d, %s, s%d offen' % (vtmp + 1, vtmp + 2, srd(SRD_WS), stmp + 4))
    k('s_mov_b64 exec, -1')


def spin_guard(k):
    k('s_sub_u32 s%d, s%d, 1' % (S_SPIN, S_SPIN))
    k('s_cbranch_scc1 %s' % k.end_label)


def epoch_publish(k, vt):
    k('s_memrealtime %s' % sr(S_T, 2))
    k('v_mov_b32 v%d, 0' % (vt + 1))
    k('s_or_b32 s%d, s%d, 1' % (S_T, S_T))
    k('v_mov_b32 v%d, s%d' % (vt, S_T))
    k('s_or_b32 s%d, s2, s3' % S_T)
    k('s_cmp_eq_u32 s%d, 0' % S_T)
    k('s_cselect_b64 exec, 1, 0')
    k('buffer_store_dword v%d, v%d, %s, 0 offen sc1' % (vt, vt + 1, srd(SRD_DBG)))
    k('s_mov_b64 exec, -1')


def epoch_load(k, vt):
    k('v_mov_b32 v%d, 0' % (vt + 1))
    k('buffer_load_dword v%d, v%d, %s, 0 offen sc1' % (vt, vt + 1, srd(SRD_DBG)))


def epoch_get(k, vt):
    L = k.newlabel('Lepg')
    done = k.newlabel('Lepd')
    k('v_readfirstlane_b32 s%d, v%d' % (S_EPOCH, vt))
    k('s_cmp_lg_u32 s%d, 0' % S_EPOCH)
    k.branch_fwd('s_cbranch_scc1', done)
    k.loop_label(L)
    spin_guard(k)
    k('buffer_load_dword v%d, v%d, %s, 0 offen sc1' % (vt, vt + 1, srd(SRD_DBG)))
    k.force_wait(vm=0)
    k('v_readfirstlane_b32 s%d, v%d' % (S_EPOCH, vt))
    k('s_cmp_eq_u32 s%d, 0' % S_EPOCH)
    k('s_cbranch_scc1 %s' % L)
    k.label(done)


FLAG_A = FLAG_OFF
FLAG_B = FLAG_OFF + 0x1000
FLAG_C = FLAG_OFF + 0x2000


def flag_store(k, vt, s_off):
    k('v_mov_b32 v%d, s%d' % (vt, S_EPOCH))
    k('s_mov_b64 exec, 1')
    k('buffer_store_dword v%d, v%d, %s, s%d offen sc1' % (vt, vt + 1, srd(SRD_WS), s_off))
    k('s_mov_b64 exec, -1')


def flag_poll(k, vt, voff, s_off):
    L = k.newlabel('Lpoll')
    k.loop_label(L)
    spin_guard(k)
    k('buffer_load_dword v%d, v%d, %s, s%d offen sc1' % (vt, voff, srd(SRD_WS), s_off))
    k.force_wait(vm=0)
    k('v_cmp_ne_u32 vcc, s%d, v%d' % (S_EPOCH, vt))
    k('s_cbranch_vccnz %s' % L)


class B:
    s_tb32, s_cq, s_tmp, s_wbase, s_t2, s_valid = 56, 57, 58, 59, 60, 61
    vWo, vR0, vR1, vR2, vR3 = 208, 209, 210, 211, 212
    ACC = 192
    OFR = 32
    T = 64


def B_setup(k):
    b = B
    k.c('---- phase B setup')
    k('s_and_b32 s%d, s2, 7' % b.s_tb32)
    k('s_lshl_b32 s%d, s%d, 3' % (b.s_tb32, b.s_tb32))
    k('s_lshr_b32 s%d, s2, 5' % b.s_tmp)
    k('s_add_u32 s%d, s%d, s%d' % (b.s_tb32, b.s_tb32, b.s_tmp))
    k('s_lshr_b32 s%d, s2, 3' % b.s_cq)
    k('s_and_b32 s%d, s%d, 3' % (b.s_cq, b.s_cq))
    t = b.vR0
    k('v_lshrrev_b32 v%d, 2, v1' % t)
    k('v_mul_u32_u24 v%d, 896, v%d' % (b.vWo, t))
    k('v_and_b32 v%d, 1, v3' % t)
    k('v_lshlrev_b32 v%d, 1, v%d' % (t, t))
    k('v_and_b32 v%d, 3, v1' % (t + 1))
    k('v_xor_b32 v%d, v%d, v%d' % (t, t, t + 1))
    k('v_lshl_add_u32 v%d, v%d, 4, v%d' % (b.vWo, t, b.vWo))
    k('s_mul_i32 s%d, s%d, 224' % (b.s_tmp, b.s_cq))
    k('s_lshl_b32 s%d, s3, 6' % b.s_t2)
    k('s_add_u32 s%d, s%d, s%d' % (b.s_tmp, b.s_tmp, b.s_t2))
    k('v_add_u32 v%d, s%d, v%d' % (b.vWo, b.s_tmp, b.vWo))


def B_wo_addr(k, per_wave=7168):
    b = B
    k('s_mul_i32 s%d, s3, %d' % (b.s_wbase, per_wave))
    t = TMP
    k('v_bfe_u32 v%d, v1, 2, 2' % t)
    k('v_lshlrev_b32 v%d, 6, v%d' % (t, t))
    k('v_and_b32 v%d, 3, v1' % (t + 1))
    k('v_lshl_add_u32 v%d, v%d, 3, v%d' % (t, t + 1, t))
    k('v_add_u32 v%d, s%d, v%d' % (t, b.s_wbase, t))
    k('v_and_b32 v%d, 1, v3' % (t + 1))
    k('v_lshlrev_b32 v%d, 5, v%d' % (t + 1, t + 1))
    k('v_add_u32 v%d, v%d, v%d' % (t, t, t + 1))
    k('v_lshl_add_u32 v%d, v3, 8, v%d' % (b.vR0, t))
    k('v_xor_b32 v%d, 32, v%d' % (b.vR1, b.vR0))
    k('v_cmp_eq_u32 vcc, 3, v3')
    k('v_cndmask_b32 v%d, v3, 1, vcc' % (t + 1))
    k('v_lshl_add_u32 v%d, v%d, 8, v%d' % (b.vR2, t + 1, t))
    k('v_add_u32 v%d, 1024, v%d' % (b.vR2, b.vR2))
    k('v_xor_b32 v%d, 32, v%d' % (b.vR3, b.vR2))
    b.cur_base = 0


def B_wo_dma(k, part, i0=0, i1=7):
    b = B
    for i in range(i0, i1):
        k('s_add_u32 m0, s%d, %d' % (b.s_wbase, WO_F[part] + i * 1024))
        k('s_mov_b32 s%d, %d' % (b.s_tmp, (112 * part + 16 * i) * 896))
        k('buffer_load_dwordx4 v%d, %s, s%d offen lds' % (b.vWo, srd(SRD_WO), b.s_tmp), tag='wo%d' % part)


def B_wo_read(k, part, abase):
    b = B
    d = WO_F[part] - b.cur_base
    b.cur_base = WO_F[part]
    for r in (b.vR0, b.vR1, b.vR2, b.vR3):
        k('v_add_u32 v%d, 0x%x, v%d' % (r, d & 0xffffffff, r))
    k.wait_tag('wo%d' % part)
    for h in range(4 * part, 4 * part + 4):
        for nb in range(2):
            par = (nb ^ h) & 1
            o = (h - 4 * part) * 1792
            a = abase + 8 * h + 4 * nb
            k('ds_read_b64_tr_b16 %s, v%d offset:%d' % (ar(a, 2), b.vR1 if par else b.vR0, o))
            k('ds_read_b64_tr_b16 %s, v%d offset:%d' % (ar(a + 2, 2), b.vR3 if par else b.vR2, o))


def B_xinit(k):
    b = B
    t = TMP + 2
    k('v_mul_u32_u24 v%d, %d, v3' % (t, 4 * 896))
    k('v_lshl_add_u32 v%d, v2, 1, v%d' % (t, t))
    k('s_mul_i32 s%d, s%d, %d' % (b.s_tmp, b.s_tb32, 32 * 896))
    k('s_mul_i32 s%d, s%d, 224' % (b.s_t2, b.s_cq))
    k('s_add_u32 s%d, s%d, s%d' % (b.s_tmp, b.s_tmp, b.s_t2))
    k('s_lshl_b32 s%d, s3, 6' % b.s_t2)
    k('s_add_u32 s%d, s%d, s%d' % (b.s_tmp, b.s_tmp, b.s_t2))
    k('s_add_u32 s%d, s%d, %d' % (b.s_t2, b.s_tmp, 16 * 896))
    for tb in range(2):
        for nb in range(2):
            for r in range(4):
                k('buffer_load_ushort v%d, v%d, %s, s%d offen offset:%d' % (
                    b.ACC + 8 * tb + 4 * nb + r, t, srd(SRD_X), b.s_t2 if tb else b.s_tmp, r * 896 + nb * 32))


def B_xinit_finish(k):
    b = B
    for i in range(16):
        k('v_lshlrev_b32 v%d, 16, v%d' % (b.ACC + i, b.ACC + i))


def B_main(k, abase, lds_o, lds_small, sc1='', hooks=None):
    b = B
    t = b.T
    k.c('---- phase B main')
    hooks = hooks or {}

    def hook(name):
        if name in hooks:
            hooks[name]()
    k('s_lshl_b32 s%d, s%d, 15' % (b.s_tmp, b.s_tb32))
    k('s_lshl_b32 s%d, s3, 13' % b.s_t2)
    k('s_add_u32 s%d, s%d, s%d' % (b.s_tmp, b.s_tmp, b.s_t2))
    if OF_OFF:
        k('s_add_u32 s%d, s%d, 0x%x' % (b.s_tmp, b.s_tmp, OF_OFF))
    for i in range(8):
        if i % 4 == 0:
            k('s_add_u32 m0, s%d, %d' % (b.s_t2, lds_o + i * 1024))
            if i:
                k('s_add_u32 s%d, s%d, 4096' % (b.s_tmp, b.s_tmp))
        k('buffer_load_dwordx4 v4, %s, s%d offen offset:%d %s lds' % (srd(SRD_WS), b.s_tmp, (i % 4) * 1024, sc1), tag='of')
    k('v_add_u32 v%d, %d, v4' % (t, lds_o))
    k('s_cmp_lg_u32 s3, 3')
    k('s_cselect_b32 s%d, 1.0, 0' % b.s_valid)
    hook('B_after_of')
    k.wait_tag('of')
    k.barrier()
    stamp(k, 11)
    order = [(h, tb) for h in range(16) for tb in range(2)]

    def rd(i):
        h, tb = order[i]
        k('ds_read_b128 %s, v%d offset:%d' % (vr(b.OFR + 4 * (i % 8), 4), t, (tb * 16 + h) * 1024))
    for i in range(8):
        rd(i)
    for i, (h, tb) in enumerate(order):
        for nb in range(2):
            a = vr(b.ACC + 8 * tb + 4 * nb, 4)
            k('v_mfma_f32_16x16x32_bf16 %s, %s, %s, %s' % (a, vr(b.OFR + 4 * (i % 8), 4), ar(abase + 8 * h + 4 * nb, 4), a))
        if i + 8 < 32:
            rd(i + 8)
    stamp(k, 12)
    V = t + 4
    A1 = t + 20
    for tb in range(2):
        for r in range(4):
            k('v_mul_f32 v%d, s%d, v%d' % (A1 + 4 * tb + r, b.s_valid, b.ACC + 8 * tb + 4 + r))

    def vi(tb, kind, r):
        return V + 4 * (2 * tb + kind) + 2 * (r & 1) + (r >> 1)
    for tb in range(2):
        for r in range(4):
            a0, a1 = b.ACC + 8 * tb + r, A1 + 4 * tb + r
            k('v_add_f32 v%d, v%d, v%d' % (vi(tb, 0, r), a0, a1))
            k('v_mul_f32 v%d, v%d, v%d' % (vi(tb, 1, r), a0, a0))
        for r in range(4):
            a1 = A1 + 4 * tb + r
            k('v_fmac_f32 v%d, v%d, v%d' % (vi(tb, 1, r), a1, a1))
    for i in range(8):
        k('v_add_f32_dpp v%d, v%d, v%d row_mirror row_mask:0xf bank_mask:0x3' % (V + 2 * i, V + 2 * i, V + 2 * i))
    for i in range(8):
        k('v_add_f32_dpp v%d, v%d, v%d row_mirror row_mask:0xf bank_mask:0xc' % (V + 2 * i, V + 2 * i + 1, V + 2 * i + 1))
    for i in range(4):
        k('v_add_f32_dpp v%d, v%d, v%d row_half_mirror row_mask:0xf bank_mask:0x5' % (V + 4 * i, V + 4 * i, V + 4 * i))
    for i in range(4):
        k('v_add_f32_dpp v%d, v%d, v%d row_half_mirror row_mask:0xf bank_mask:0xa' % (V + 4 * i, V + 4 * i + 2, V + 4 * i + 2))
    for i in range(4):
        k('v_add_f32_dpp v%d, v%d, v%d quad_perm:[1,0,3,2] row_mask:0xf bank_mask:0xf' % (V + 4 * i + 1, V + 4 * i, V + 4 * i))
    U = A1
    for i in range(4):
        k('v_add_f32_dpp v%d, v%d, v%d quad_perm:[2,3,0,1] row_mask:0xf bank_mask:0xf' % (U + i, V + 4 * i + 1, V + 4 * i + 1))
    vA = t + 1
    k('v_lshrrev_b32 v%d, 2, v1' % vA)
    k('s_lshl_b32 s%d, s3, 8' % b.s_tmp)
    k('v_lshl_add_u32 v%d, v%d, 3, s%d' % (vA, vA, b.s_tmp))
    k('ds_write_b64 v%d, %s offset:%d' % (vA, vr(U, 2), lds_small))
    k('ds_write_b64 v%d, %s offset:%d' % (vA, vr(U + 2, 2), lds_small + 128))
    vC, vG = t + 2, t + 3
    k('v_and_b32 v%d, 31, v1' % vG)
    k('v_lshrrev_b32 v%d, 5, v1' % vC)
    k('v_lshlrev_b32 v%d, 9, v%d' % (vC, vC))
    k('v_lshl_add_u32 v%d, v%d, 4, v%d' % (vA, vG, vC))
    k('v_lshl_add_u32 v%d, v%d, 3, v%d' % (vC, vG, vC))
    k('s_lshl_b32 s%d, s%d, 11' % (b.s_tmp, b.s_tb32))
    k('s_add_u32 s%d, s%d, 0x%x' % (b.s_tmp, b.s_tmp, STAT_OFF))
    k('s_lshl_b32 s%d, s%d, 9' % (b.s_t2, b.s_cq))
    k('s_add_u32 s%d, s%d, s%d' % (b.s_t2, b.s_t2, b.s_tmp))
    k.wait_lg(0)
    k.barrier()
    k('ds_read_b64 %s, v%d offset:%d' % (vr(V, 2), vC, lds_small))
    k('ds_read_b64 %s, v%d offset:%d' % (vr(V + 2, 2), vC, lds_small + 256))
    G = V + 4
    k('v_add_f32 v%d, v%d, v%d' % (G, V, V + 2))
    k('v_add_f32 v%d, v%d, v%d' % (G + 2, V + 1, V + 3))
    k('v_mov_b32 v%d, v%d' % (V, G))
    k('v_mov_b32 v%d, v%d' % (V + 1, G + 2))
    k('v_permlane32_swap_b32 v%d, v%d' % (G, V))
    k('v_permlane32_swap_b32 v%d, v%d' % (G + 2, V + 1))
    k('v_add_f32 v%d, v%d, v%d' % (G, G, V))
    k('v_add_f32 v%d, v%d, v%d' % (G + 2, G + 2, V + 1))
    k('v_mov_b32 v%d, s%d' % (G + 1, S_EPOCH))
    k('v_mov_b32 v%d, s%d' % (G + 3, S_EPOCH))
    k('s_cmp_eq_u32 s3, 0')
    k('s_cselect_b32 exec_lo, -1, 0')
    k('s_mov_b32 exec_hi, 0')
    k('buffer_store_dwordx4 %s, v%d, %s, s%d offen sc1' % (vr(G, 4), vA, srd(SRD_WS), b.s_t2))
    k('s_mov_b64 exec, -1')
    HP = V + 8
    vS0, vS1 = t + 28, t + 29
    s_o = [62, 63]
    k('v_lshrrev_b32 v%d, 1, v3' % vS0)
    k('v_lshlrev_b32 v%d, 5, v%d' % (vS0, vS0))
    k('v_add_u32 v%d, v%d, v2' % (vS0, vS0))
    k('v_lshlrev_b32 v%d, 4, v%d' % (vS0, vS0))
    k('v_and_b32 v%d, 1, v3' % vS1)
    k('v_lshl_add_u32 v%d, v%d, 3, v%d' % (vS0, vS1, vS0))
    k('s_cmp_eq_u32 s3, 3')
    k('s_cselect_b32 s%d, 0x%x, 0' % (s_o[0], OOB))
    k('v_add_u32 v%d, s%d, v%d' % (vS1, s_o[0], vS0))
    for nb in range(2):
        k('s_mul_i32 s%d, s%d, 7' % (s_o[nb], b.s_cq))
        k('s_lshl_b32 s%d, s3, 1' % b.s_t2)
        k('s_add_u32 s%d, s%d, s%d' % (s_o[nb], s_o[nb], b.s_t2))
        if nb:
            k('s_add_u32 s%d, s%d, 1' % (s_o[nb], s_o[nb]))
        k('s_and_b32 s%d, s%d, 1' % (b.s_t2, s_o[nb]))
        k('s_lshl_b32 s%d, s%d, 8' % (b.s_t2, b.s_t2))
        k('s_lshr_b32 s%d, s%d, 1' % (s_o[nb], s_o[nb]))
        k('s_lshl_b32 s%d, s%d, 17' % (s_o[nb], s_o[nb]))
        k('s_add_u32 s%d, s%d, s%d' % (s_o[nb], s_o[nb], b.s_t2))
        k('s_lshl_b32 s%d, s%d, 11' % (b.s_t2, b.s_tb32))
        k('s_add_u32 s%d, s%d, s%d' % (s_o[nb], s_o[nb], b.s_t2))
        k('s_add_u32 s%d, s%d, 0x%x' % (s_o[nb], s_o[nb], HT_OFF))
    for tb in range(2):
        for nb in range(2):
            a = b.ACC + 8 * tb + 4 * nb
            p = HP + 4 * tb + 2 * nb
            k('v_cvt_pk_bf16_f32 v%d, v%d, v%d' % (p, a, a + 1))
            k('v_cvt_pk_bf16_f32 v%d, v%d, v%d' % (p + 1, a + 2, a + 3))
            k('buffer_store_dwordx2 %s, v%d, %s, s%d offen offset:%d %s' % (vr(p, 2), vS1 if nb else vS0, srd(SRD_WS), s_o[nb], tb * 1024, sc1))
    for nb in range(2):
        k('s_sub_u32 s%d, s%d, 0x%x' % (s_o[nb], s_o[nb], HT_OFF - HH_OFF))
    hook('B_before_poll')
    P0 = t + 32
    L = k.newlabel('Lst')
    k.loop_label(L)
    spin_guard(k)
    k('buffer_load_dwordx4 %s, v%d, %s, s%d offen sc1' % (vr(P0, 4), vA, srd(SRD_WS), b.s_tmp))
    k('buffer_load_dwordx4 %s, v%d, %s, s%d offen offset:1024 sc1' % (vr(P0 + 4, 4), vA, srd(SRD_WS), b.s_tmp))
    k.force_wait(vm=0)
    k('v_xor_b32 v%d, s%d, v%d' % (P0 + 1, S_EPOCH, P0 + 1))
    k('v_xor_b32 v%d, s%d, v%d' % (P0 + 3, S_EPOCH, P0 + 3))
    k('v_xor_b32 v%d, s%d, v%d' % (P0 + 5, S_EPOCH, P0 + 5))
    k('v_xor_b32 v%d, s%d, v%d' % (P0 + 7, S_EPOCH, P0 + 7))
    k('v_or3_b32 v%d, v%d, v%d, v%d' % (P0 + 1, P0 + 1, P0 + 3, P0 + 5))
    k('v_or_b32 v%d, v%d, v%d' % (P0 + 1, P0 + 1, P0 + 7))
    k('v_cmp_ne_u32 vcc, 0, v%d' % (P0 + 1))
    k('s_cbranch_vccnz %s' % L)
    stamp(k, 13)
    Sx, Qx = P0, P0 + 2
    k('v_add_f32 v%d, v%d, v%d' % (Sx, P0, P0 + 4))
    k('v_add_f32 v%d, v%d, v%d' % (Qx, P0 + 2, P0 + 6))
    k('v_mov_b32 v%d, v%d' % (P0 + 4, Sx))
    k('v_mov_b32 v%d, v%d' % (P0 + 6, Qx))
    k('v_permlane32_swap_b32 v%d, v%d' % (Sx, P0 + 4))
    k('v_permlane32_swap_b32 v%d, v%d' % (Qx, P0 + 6))
    k('v_add_f32 v%d, v%d, v%d' % (Sx, Sx, P0 + 4))
    k('v_add_f32 v%d, v%d, v%d' % (Qx, Qx, P0 + 6))
    M, R = P0 + 1, P0 + 3
    k('v_mul_f32 v%d, %s, v%d' % (M, f32(1.0 / D), Sx))
    k('v_mul_f32 v%d, %s, v%d' % (Qx, f32(1.0 / D), Qx))
    k('v_fma_f32 v%d, -v%d, v%d, v%d' % (Qx, M, M, Qx))
    k('v_max_f32 v%d, 0, v%d' % (Qx, Qx))
    k('v_add_f32 v%d, %s, v%d' % (R, f32(1e-5), Qx))
    k('v_rsq_f32 v%d, v%d' % (R, R))
    k('v_mul_f32 v%d, v%d, v%d' % (Qx, Qx, R))
    k('v_fmaak_f32 v%d, v%d, v%d, %s' % (Qx, Qx, R, f32(1e-5)))
    k('v_rsq_f32 v%d, v%d' % (Qx, Qx))
    k('v_mul_f32 v%d, v%d, v%d' % (R, R, Qx))
    k('s_lshl_b32 s%d, s3, 8' % b.s_t2)
    k('v_lshl_add_u32 v%d, v%d, 2, s%d' % (vC, vG, b.s_t2))
    k('ds_write_b32 v%d, v%d offset:%d' % (vC, M, lds_small + 1024))
    k('ds_write_b32 v%d, v%d offset:%d' % (vC, R, lds_small + 1024 + 128))
    k('v_lshl_add_u32 v%d, v3, 4, s%d' % (vC, b.s_t2))
    MM = P0 + 8
    k.wait_lg(0)
    for tb in range(2):
        k('ds_read_b128 %s, v%d offset:%d' % (vr(MM + 8 * tb, 4), vC, lds_small + 1024 + 64 * tb))
        k('ds_read_b128 %s, v%d offset:%d' % (vr(MM + 8 * tb + 4, 4), vC, lds_small + 1024 + 128 + 64 * tb))
    for tb in range(2):
        for nb in range(2):
            a = b.ACC + 8 * tb + 4 * nb
            for r in (0, 2):
                k('v_pk_add_f32 %s, %s, %s neg_lo:[0,1] neg_hi:[0,1]' % (vr(a + r, 2), vr(a + r, 2), vr(MM + 8 * tb + r, 2)))
            for r in (0, 2):
                k('v_pk_mul_f32 %s, %s, %s' % (vr(a + r, 2), vr(a + r, 2), vr(MM + 8 * tb + 4 + r, 2)))
            p = HP + 4 * tb + 2 * nb
            k('v_cvt_pk_bf16_f32 v%d, v%d, v%d' % (p, a, a + 1))
            k('v_cvt_pk_bf16_f32 v%d, v%d, v%d' % (p + 1, a + 2, a + 3))
            k('buffer_store_dwordx2 %s, v%d, %s, s%d offen offset:%d %s' % (vr(p, 2), vS1 if nb else vS0, srd(SRD_WS), s_o[nb], tb * 1024, sc1))


class G:
    ACC = 16
    RING = 80
    NR = 16
    vW1, vW2 = 213, 214
    vRa, vRb = 215, 216
    vSa, vSb = 217, 218
    vCl = 5
    T = 220
    s_dtC, s_ft, s_dtD, s_st, s_tmp, s_t2, s_stage, s_a0, s_a1 = 64, 65, 66, 67, 68, 69, 70, 71, 72


def G_map(k):
    g = G
    k.c('---- C/D tile map')
    k('s_lshr_b32 s%d, s2, 3' % g.s_tmp)
    k('s_mul_i32 s%d, s%d, 37' % (g.s_t2, g.s_tmp))
    k('s_lshr_b32 s%d, s%d, 8' % (g.s_t2, g.s_t2))
    k('s_mul_i32 s%d, s%d, 7' % (g.s_dtC, g.s_t2))
    k('s_sub_u32 s%d, s%d, s%d' % (g.s_dtC, g.s_tmp, g.s_dtC))
    k('s_mov_b32 s%d, s%d' % (g.s_dtD, g.s_dtC))
    k('s_and_b32 s%d, s2, 7' % g.s_tmp)
    k('s_lshl_b32 s%d, s%d, 2' % (g.s_st, g.s_tmp))
    k('s_add_u32 s%d, s%d, s%d' % (g.s_st, g.s_st, g.s_t2))
    k('s_cmp_ge_u32 s%d, 4' % g.s_t2)
    k('s_cselect_b32 s%d, 99, s%d' % (g.s_st, g.s_st))
    k('s_mul_i32 s%d, s%d, 3' % (g.s_a0, g.s_tmp))
    k('s_add_u32 s%d, s%d, 4' % (g.s_a0, g.s_a0))
    k('s_lshl_b32 s%d, s%d, 2' % (g.s_a1, g.s_tmp))
    k('s_cmp_lt_u32 s%d, 4' % g.s_tmp)
    k('s_cselect_b32 s%d, s%d, s%d' % (g.s_ft, g.s_a1, g.s_a0))
    k('s_cselect_b32 s%d, 4, 3' % g.s_a0)
    k('s_add_u32 s%d, s%d, s%d' % (g.s_ft, g.s_ft, g.s_t2))
    k('s_cmp_ge_u32 s%d, s%d' % (g.s_t2, g.s_a0))
    k('s_cselect_b32 s%d, 99, s%d' % (g.s_ft, g.s_ft))


def G_w_setup(k, which, lds_base, per_wave):
    g = G
    t = TMP
    stride = F * 2 if which == 1 else S * 2
    krows = 512 if which == 1 else 448
    vW = g.vW1 if which == 1 else g.vW2
    va, vb = (g.vRa, g.vRb) if which == 1 else (g.vSa, g.vSb)
    s_tile = g.s_ft if which == 1 else g.s_st
    k('s_mul_i32 s%d, s3, %d' % (g.s_stage, per_wave))
    k('s_add_u32 s%d, s%d, %d' % (g.s_stage, g.s_stage, lds_base))
    k('v_lshrrev_b32 v%d, 3, v1' % t)
    k('v_mul_u32_u24 v%d, %d, v%d' % (vW, stride, t))
    k('v_and_b32 v%d, 1, v3' % t)
    k('v_lshlrev_b32 v%d, 2, v%d' % (t, t))
    k('v_and_b32 v%d, 7, v1' % (t + 1))
    k('v_xor_b32 v%d, v%d, v%d' % (t, t, t + 1))
    k('v_lshl_add_u32 v%d, v%d, 4, v%d' % (vW, t, vW))
    k('s_mul_i32 s%d, s3, %d' % (g.s_tmp, krows * stride))
    k('s_lshl_b32 s%d, s%d, 7' % (g.s_t2, s_tile))
    k('s_add_u32 s%d, s%d, s%d' % (g.s_tmp, g.s_tmp, g.s_t2))
    k('s_cmp_ge_u32 s%d, 99' % s_tile)
    k('s_cselect_b32 s%d, 0x%x, s%d' % (g.s_tmp, OOB, g.s_tmp))
    k('v_add_u32 v%d, s%d, v%d' % (vW, g.s_tmp, vW))
    if which == 1:
        k('s_cselect_b32 s%d, 0x%x, 0' % (g.s_tmp, OOB))
        k('v_add_u32 v%d, s%d, v4' % (g.vCl, g.s_tmp))
    k('v_lshrrev_b32 v%d, 5, v1' % t)
    k('v_lshlrev_b32 v%d, %d, v%d' % (va, 10 if which == 1 else 9, t))
    k('v_bfe_u32 v%d, v1, 2, 2' % t)
    k('v_lshl_add_u32 v%d, v%d, 7, v%d' % (va, t, va))
    k('v_lshrrev_b32 v%d, 1, v%d' % (t, t))
    k('s_lshr_b32 s%d, s3, 1' % g.s_tmp)
    k('v_xor_b32 v%d, s%d, v%d' % (t, g.s_tmp, t))
    k('v_lshl_add_u32 v%d, v%d, 6, v%d' % (va, t, va))
    k('v_and_b32 v%d, 1, v3' % t)
    k('v_lshl_add_u32 v%d, v%d, 5, v%d' % (va, t, va))
    k('v_and_b32 v%d, 3, v1' % t)
    k('v_lshl_add_u32 v%d, v%d, 3, v%d' % (va, t, va))
    k('v_add_u32 v%d, s%d, v%d' % (va, g.s_stage, va))
    k('v_xor_b32 v%d, 64, v%d' % (vb, va))


def G_w_dma(k, which, t0, nt, slot0, tag):
    g = G
    stride = F * 2 if which == 1 else S * 2
    for i in range(2 * nt):
        k('s_add_u32 m0, s%d, %d' % (g.s_stage, slot0 * 2048 + i * 1024))
        k('s_mov_b32 s%d, %d' % (g.s_tmp, (16 * t0 + 8 * i) * stride))
        k('buffer_load_dwordx4 v%d, %s, s%d offen lds' % (g.vW1 if which == 1 else g.vW2, srd(SRD_W1 if which == 1 else SRD_W2), g.s_tmp), tag=tag)


def G_w_read(k, which, t, slot, areg):
    g = G
    va, vb = (g.vRa, g.vRb) if which == 1 else (g.vSa, g.vSb)
    sec = 512 if which == 1 else 1024
    for i, v in enumerate((va, vb)):
        k('ds_read_b64_tr_b16 %s, v%d offset:%d' % (ar(areg + 4 * i, 2), v, slot * 2048))
        k('ds_read_b64_tr_b16 %s, v%d offset:%d' % (ar(areg + 4 * i + 2, 2), v, slot * 2048 + sec))


def G_a_setup(k, which):
    g = G
    nks = 128 if which == 1 else 112
    per = 32 if which == 1 else 28
    base = HH_OFF if which == 1 else U_OFF
    s_dt = g.s_dtC if which == 1 else g.s_dtD
    k('s_lshl_b32 s%d, s%d, 1' % (g.s_tmp, s_dt))
    k('s_and_b32 s%d, s3, 1' % g.s_t2)
    k('s_add_u32 s%d, s%d, s%d' % (g.s_a0, g.s_tmp, g.s_t2))
    k('s_xor_b32 s%d, s%d, 1' % (g.s_a1, g.s_a0))
    k('s_mul_i32 s%d, s3, %d' % (g.s_tmp, per * 1024))
    k('s_add_u32 s%d, s%d, 0x%x' % (g.s_tmp, g.s_tmp, base))
    for s_ in (g.s_a0, g.s_a1):
        k('s_mul_i32 s%d, s%d, %d' % (s_, s_, nks * 1024))
        k('s_add_u32 s%d, s%d, s%d' % (s_, s_, g.s_tmp))


def G_a_load(k, t, sc1='', vo=4):
    g = G
    if t and t % 4 == 0:
        k('s_add_u32 s%d, s%d, 4096' % (g.s_a0, g.s_a0))
        k('s_add_u32 s%d, s%d, 4096' % (g.s_a1, g.s_a1))
    r = g.RING + 8 * (t % g.NR)
    for i, s_ in enumerate((g.s_a0, g.s_a1)):
        k('buffer_load_dwordx4 %s, v%d, %s, s%d offen offset:%d %s' % (vr(r + 4 * i, 4), vo, srd(SRD_WS), s_, (t % 4) * 1024, sc1))


def G_mfma(k, t, areg):
    g = G
    r = g.RING + 8 * (t % g.NR)
    for iw in range(2):
        for ia in range(2):
            L = 2 * iw + ia
            a = vr(g.ACC + 16 * L, 16)
            c = '0' if (t == 0 and L != 0) else a
            k('v_mfma_f32_32x32x16_bf16 %s, %s, %s, %s' % (a, ar(areg + 4 * iw, 4), vr(r + 4 * ia, 4), c))


def C_init(k):
    g = G
    t = g.T
    k('v_lshrrev_b32 v%d, 5, v1' % t)
    k('v_lshlrev_b32 v%d, 3, v%d' % (t, t))
    k('s_lshl_b32 s%d, s%d, 7' % (g.s_tmp, g.s_ft))
    k('s_lshr_b32 s%d, s3, 1' % g.s_t2)
    k('s_lshl_b32 s%d, s%d, 6' % (g.s_t2, g.s_t2))
    k('s_add_u32 s%d, s%d, s%d' % (g.s_tmp, g.s_tmp, g.s_t2))
    for q in range(4):
        k('buffer_load_dwordx2 %s, v%d, %s, s%d offen offset:%d' % (vr(t + 2 + 2 * q, 2), t, srd(SRD_B1), g.s_tmp, 16 * q))


def C_init_finish(k):
    g = G
    t = g.T
    for q in range(4):
        for i in range(2):
            k('v_lshlrev_b32 v%d, 16, v%d' % (g.ACC + 4 * q + 2 * i, t + 2 + 2 * q + i))
            k('v_and_b32 v%d, 0xffff0000, v%d' % (g.ACC + 4 * q + 2 * i + 1, t + 2 + 2 * q + i))


def C_epilogue(k, lds_red, sc1=''):
    g = G
    t = g.T
    k.c('---- phase C epilogue')
    for L in range(1, 4):
        k('s_xor_b32 s%d, s3, %d' % (g.s_tmp, L))
        k('s_mul_i32 s%d, s%d, 12288' % (g.s_tmp, g.s_tmp))
        k('s_add_u32 s%d, s%d, %d' % (g.s_tmp, g.s_tmp, lds_red + (L - 1) * 4096))
        k('v_add_u32 v%d, s%d, v4' % (t + L, g.s_tmp))
    for L in range(1, 4):
        for q in range(4):
            k('ds_write_b128 v%d, %s offset:%d' % (t + L, vr(g.ACC + 16 * L + 4 * q, 4), q * 1024))
    k('s_mul_i32 s%d, s3, 12288' % g.s_tmp)
    k('s_add_u32 s%d, s%d, %d' % (g.s_tmp, g.s_tmp, lds_red))
    k('v_add_u32 v%d, s%d, v4' % (t, g.s_tmp))
    k('s_lshl_b32 s%d, s%d, 1' % (g.s_tmp, g.s_dtC))
    k('s_and_b32 s%d, s3, 1' % g.s_t2)
    k('s_add_u32 s%d, s%d, s%d' % (g.s_tmp, g.s_tmp, g.s_t2))
    k('s_mul_i32 s%d, s%d, 112' % (g.s_tmp, g.s_tmp))
    k('s_lshl_b32 s%d, s%d, 2' % (g.s_t2, g.s_ft))
    k('s_add_u32 s%d, s%d, s%d' % (g.s_tmp, g.s_tmp, g.s_t2))
    k('s_and_b32 s%d, s3, 2' % g.s_t2)
    k('s_add_u32 s%d, s%d, s%d' % (g.s_tmp, g.s_tmp, g.s_t2))
    k('s_lshl_b32 s%d, s%d, 10' % (g.s_tmp, g.s_tmp))
    k('s_add_u32 s%d, s%d, 0x%x' % (g.s_tmp, g.s_tmp, U_OFF))
    k.wait_lg(0)
    k.barrier()
    R = g.ACC + 16
    for q in range(4):
        for L in range(3):
            k('ds_read_b128 %s, v%d offset:%d' % (vr(R + 16 * L + 4 * q, 4), t, L * 4096 + q * 1024))
    c1 = -2.0 * 0.7978845608028654 * 1.4426950408889634
    c2 = c1 * 0.044715
    sc = 74
    k('s_mov_b32 s%d, %s' % (sc, f32(c1)))
    k('s_mov_b32 s%d, %s' % (sc + 2, f32(c2)))
    X2 = g.RING
    k('v_mov_b32 v%d, s%d' % (t + 4, sc))
    k('v_mov_b32 v%d, s%d' % (t + 5, sc))
    for half in range(2):
        for i in range(8 * half, 8 * half + 8, 2):
            a = g.ACC + i
            k('v_pk_add_f32 %s, %s, %s' % (vr(R + i, 2), vr(R + i, 2), vr(R + 16 + i, 2)))
            k('v_pk_add_f32 %s, %s, %s' % (vr(a, 2), vr(a, 2), vr(R + 32 + i, 2)))
        for i in range(8 * half, 8 * half + 8, 2):
            a = g.ACC + i
            k('v_pk_add_f32 %s, %s, %s' % (vr(a, 2), vr(a, 2), vr(R + i, 2)))
        for i in range(8 * half, 8 * half + 8, 2):
            a = g.ACC + i
            k('v_pk_mul_f32 %s, %s, %s' % (vr(X2 + i, 2), vr(a, 2), vr(a, 2)))
        for i in range(8 * half, 8 * half + 8, 2):
            k('v_pk_fma_f32 %s, %s, %s, %s op_sel_hi:[1,0,1]' % (vr(X2 + i, 2), vr(X2 + i, 2), sr(sc + 2, 2), vr(t + 4, 2)))
        for i in range(8 * half, 8 * half + 8, 2):
            k('v_pk_mul_f32 %s, %s, %s' % (vr(X2 + i, 2), vr(X2 + i, 2), vr(g.ACC + i, 2)))
        for i in range(8 * half, 8 * half + 8):
            k('v_exp_f32 v%d, v%d' % (X2 + i, X2 + i))
        for i in range(8 * half, 8 * half + 8, 2):
            k('v_pk_add_f32 %s, %s, 1.0 op_sel_hi:[1,0]' % (vr(X2 + i, 2), vr(X2 + i, 2)))
        for i in range(8 * half, 8 * half + 8):
            k('v_rcp_f32 v%d, v%d' % (X2 + i, X2 + i))
        for i in range(8 * half, 8 * half + 8, 2):
            k('v_pk_mul_f32 %s, %s, %s' % (vr(X2 + i, 2), vr(X2 + i, 2), vr(g.ACC + i, 2)))
        p = X2 + 16 + 4 * half
        for i in range(4):
            k('v_cvt_pk_bf16_f32 v%d, v%d, v%d' % (p + i, X2 + 8 * half + 2 * i, X2 + 8 * half + 2 * i + 1))
        k('buffer_store_dwordx4 %s, v%d, %s, s%d offen offset:%d %s' % (vr(p, 4), g.vCl, srd(SRD_WS), g.s_tmp, half * 1024, sc1), tag='ust')


def D_init(k, sc1=''):
    g = G
    t = g.T
    k('v_lshrrev_b32 v%d, 5, v1' % t)
    k('v_lshlrev_b32 v%d, 3, v%d' % (t, t))
    k('s_lshl_b32 s%d, s%d, 7' % (g.s_tmp, g.s_st))
    k('s_lshr_b32 s%d, s3, 1' % g.s_t2)
    k('s_lshl_b32 s%d, s%d, 6' % (g.s_t2, g.s_t2))
    k('s_add_u32 s%d, s%d, s%d' % (g.s_tmp, g.s_tmp, g.s_t2))
    for q in range(4):
        k('buffer_load_dwordx2 %s, v%d, %s, s%d offen offset:%d' % (vr(t + 2 + 2 * q, 2), t, srd(SRD_B2), g.s_tmp, 16 * q))
    k('v_and_b32 v%d, 31, v1' % (t + 1))
    k('v_lshl_add_u32 v%d, v%d, 4, v%d' % (t + 1, t + 1, t))
    k('s_lshl_b32 s%d, s%d, 1' % (g.s_tmp, g.s_dtD))
    k('s_and_b32 s%d, s3, 1' % g.s_t2)
    k('s_add_u32 s%d, s%d, s%d' % (g.s_tmp, g.s_tmp, g.s_t2))
    k('s_lshl_b32 s%d, s%d, 7' % (g.s_tmp, g.s_tmp))
    k('s_lshl_b32 s%d, s%d, 2' % (g.s_t2, g.s_st))
    k('s_add_u32 s%d, s%d, s%d' % (g.s_tmp, g.s_tmp, g.s_t2))
    k('s_and_b32 s%d, s3, 2' % g.s_t2)
    k('s_add_u32 s%d, s%d, s%d' % (g.s_tmp, g.s_tmp, g.s_t2))
    k('s_lshl_b32 s%d, s%d, 10' % (g.s_tmp, g.s_tmp))
    k('s_add_u32 s%d, s%d, 0x%x' % (g.s_tmp, g.s_tmp, HT_OFF))
    for q in range(4):
        k('buffer_load_dwordx2 %s, v%d, %s, s%d offen offset:%d %s' % (vr(t + 10 + 2 * q, 2), t + 1, srd(SRD_WS), g.s_tmp, 512 * q, sc1))


def D_init_finish(k):
    g = G
    t = g.T
    for q in range(4):
        for i in range(2):
            a = g.ACC + 4 * q + 2 * i
            k('v_lshlrev_b32 v%d, 16, v%d' % (a, t + 2 + 2 * q + i))
            k('v_and_b32 v%d, 0xffff0000, v%d' % (a + 1, t + 2 + 2 * q + i))
            k('v_lshlrev_b32 v%d, 16, v%d' % (t + 18, t + 10 + 2 * q + i))
            k('v_and_b32 v%d, 0xffff0000, v%d' % (t + 19, t + 10 + 2 * q + i))
            k('v_pk_add_f32 %s, %s, %s' % (vr(a, 2), vr(a, 2), vr(t + 18, 2)))


def D_epilogue(k, lds_red, stride):
    g = G
    t = g.T
    k.c('---- phase D epilogue')
    k('v_lshrrev_b32 v%d, 5, v1' % t)
    k('v_lshlrev_b32 v%d, 10, v%d' % (t, t))
    k('v_and_b32 v%d, 31, v1' % (t + 1))
    k('v_lshl_add_u32 v%d, v%d, 2, v%d' % (t, t + 1, t))
    k('s_lshr_b32 s%d, s3, 1' % g.s_t2)
    k('s_lshl_b32 s%d, s%d, 13' % (g.s_tmp, g.s_t2))
    k('s_and_b32 s%d, s3, 1' % g.s_t2)
    k('s_lshl_b32 s%d, s%d, 7' % (g.s_t2, g.s_t2))
    k('s_add_u32 s%d, s%d, s%d' % (g.s_tmp, g.s_tmp, g.s_t2))
    k('v_add_u32 v%d, s%d, v%d' % (t, g.s_tmp, t))
    k('v_xor_b32 v%d, 128, v%d' % (t + 1, t))
    k('v_xor_b32 v%d, 0x2000, v%d' % (t + 2, t))
    k('v_xor_b32 v%d, 0x2080, v%d' % (t + 3, t))
    k('s_mul_i32 s%d, s3, %d' % (g.s_tmp, stride))
    k('s_add_u32 s%d, s%d, %d' % (g.s_tmp, g.s_tmp, lds_red))
    for L in range(4):
        k('v_add_u32 v%d, s%d, v%d' % (t + L, g.s_tmp, t + L))
    k('s_lshl_b32 s%d, s3, 12' % g.s_tmp)
    k('s_add_u32 s%d, s%d, %d' % (g.s_tmp, g.s_tmp, lds_red))
    k('v_add_u32 v%d, s%d, v4' % (t + 4, g.s_tmp))
    k('v_add_u32 v%d, %d, v%d' % (t + 6, 2 * stride, t + 4))
    k('v_mul_u32_u24 v%d, 896, v3' % (t + 5))
    k('v_lshl_add_u32 v%d, v2, 3, v%d' % (t + 5, t + 5))
    k('s_lshl_b32 s%d, s%d, 2' % (g.s_tmp, g.s_st))
    k('s_add_u32 s%d, s%d, s3' % (g.s_tmp, g.s_tmp))
    k('s_mul_i32 s%d, s%d, %d' % (g.s_tmp, g.s_tmp, 16 * 896))
    k('s_lshl_b32 s%d, s%d, 7' % (g.s_t2, g.s_dtD))
    k('s_add_u32 s%d, s%d, s%d' % (g.s_tmp, g.s_tmp, g.s_t2))
    k('s_add_u32 s%d, s%d, %d' % (g.s_t2, g.s_tmp, 8 * 896))


def D_epilogue2(k, stride):
    g = G
    t = g.T
    for L in range(4):
        for q in range(4):
            for r in (0, 2):
                a = g.ACC + 16 * L + 4 * q + r
                k('ds_write2st64_b32 v%d, v%d, v%d offset0:%d offset1:%d' % (t + L, a, a + 1, 8 * q + r, 8 * q + r + 1))
    k.wait_lg(0)
    k.barrier()
    R = g.ACC
    for i in range(4):
        for w in range(4):
            k('ds_read_b128 %s, v%d offset:%d' % (vr(R + 16 * i + 4 * w, 4), t + 4 if w < 2 else t + 6, (w & 1) * stride + i * 1024))
    for i in range(4):
        r = R + 16 * i
        for j in (0, 2):
            k('v_pk_add_f32 %s, %s, %s' % (vr(r + j, 2), vr(r + j, 2), vr(r + 4 + j, 2)))
            k('v_pk_add_f32 %s, %s, %s' % (vr(r + 8 + j, 2), vr(r + 8 + j, 2), vr(r + 12 + j, 2)))
        for j in (0, 2):
            k('v_pk_add_f32 %s, %s, %s' % (vr(r + j, 2), vr(r + j, 2), vr(r + 8 + j, 2)))
        k('v_cvt_pk_bf16_f32 v%d, v%d, v%d' % (r + 4, r, r + 1))
        k('v_cvt_pk_bf16_f32 v%d, v%d, v%d' % (r + 5, r + 2, r + 3))
        k('buffer_store_dwordx2 %s, v%d, %s, s%d offen offset:%d' % (vr(r + 4, 2), t + 5, srd(SRD_OUT), g.s_t2 if i >= 2 else g.s_tmp, (i % 2) * 4 * 896))
```

```python
import re

TRANS = ('v_exp_f32', 'v_log_f32', 'v_rcp_f32', 'v_rsq_f32', 'v_sqrt_f32', 'v_sin_f32', 'v_cos_f32',
         'v_rcp_iflag_f32')

_reg_re = re.compile(r'^(-|\|)?(abs\()?([vas])(\d+|\[(\d+):(\d+)\])\)?\|?$')


def parse_reg(tok):
    tok = tok.strip()
    if tok in ('vcc',):
        return [('s', 106), ('s', 107)]
    if tok == 'vcc_lo':
        return [('s', 106)]
    if tok == 'vcc_hi':
        return [('s', 107)]
    if tok == 'exec':
        return [('s', 126), ('s', 127)]
    if tok == 'exec_lo':
        return [('s', 126)]
    if tok == 'exec_hi':
        return [('s', 127)]
    if tok == 'm0':
        return [('s', 124)]
    m = _reg_re.match(tok)
    if not m:
        return []
    c = m.group(3)
    if m.group(5) is not None:
        return [(c, i) for i in range(int(m.group(5)), int(m.group(6)) + 1)]
    return [(c, int(m.group(4)))]


def split_ops(s):
    out, depth, cur = [], 0, ''
    for ch in s:
        if ch in '[(':
            depth += 1
        if ch in '])':
            depth -= 1
        if ch == ',' and depth == 0:
            out.append(cur.strip())
            cur = ''
        else:
            cur += ch
    if cur.strip():
        out.append(cur.strip())
    return out


class Ins:
    __slots__ = ('text', 'mn', 'ops', 'mods', 'rd', 'wr', 'cls', 'tag', 'passes', 'srcc', 'srcab', 'data',
                 'lds_dma', 'dpp', 'note')

    def __repr__(self):
        return self.text


def classify(text, tag=None):
    I = Ins()
    I.text = text
    I.tag = tag
    I.note = None
    t = text.strip()
    parts = t.split(None, 1)
    mn = parts[0]
    rest = parts[1] if len(parts) > 1 else ''
    ops = split_ops(rest)
    mods = ''
    if ops:
        last = ops[-1]
        depth = 0
        cut = None
        for i, ch in enumerate(last):
            if ch in '[(':
                depth += 1
            elif ch in '])':
                depth -= 1
            elif ch == ' ' and depth == 0:
                cut = i
                break
        if cut is not None:
            mods = last[cut + 1:]
            ops[-1] = last[:cut]
    I.mn, I.ops, I.mods = mn, ops, mods
    I.rd, I.wr = [], []
    I.passes = 0
    I.srcc, I.srcab, I.data = [], [], []
    I.lds_dma = False
    I.dpp = ('_dpp' in mn) or ('row_' in mods) or ('quad_perm' in mods)
    R = [parse_reg(o) for o in ops]
    EXEC = [('s', 126), ('s', 127)]
    VCC = [('s', 106), ('s', 107)]
    SCC = [('scc', 0)]
    if mn.startswith('v_mfma'):
        I.cls = 'mfma'
        I.wr = R[0]
        I.srcab = R[1] + R[2]
        I.srcc = R[3]
        I.rd = I.srcab + I.srcc
        I.passes = 8 if '32x32' in mn else 4
    elif mn.startswith('v_'):
        I.cls = 'valu'
        if mn.startswith('v_cmp'):
            I.wr = R[0]
            I.rd = sum(R[1:], [])
            if mn.startswith('v_cmpx'):
                I.wr = I.wr + EXEC
        elif mn.startswith(('v_add_co', 'v_sub_co', 'v_subrev_co', 'v_addc_co', 'v_subb_co')):
            I.wr = R[0] + R[1]
            I.rd = sum(R[2:], [])
        elif mn.startswith('v_permlane') and 'swap' in mn:
            I.wr = R[0] + R[1]
            I.rd = R[0] + R[1]
        elif mn.startswith(('v_fmac', 'v_dot2c', 'v_pk_fmac', 'v_mac', 'v_writelane')):
            I.wr = R[0]
            I.rd = sum(R, [])
        elif mn.startswith('v_nop'):
            pass
        else:
            I.wr = R[0]
            I.rd = sum(R[1:], [])
            if I.dpp or 'sdwa' in mn or 'd16' in mn:
                I.rd = I.rd + R[0]
            if mn.startswith('v_cndmask') and len(ops) == 3:
                I.rd = I.rd + VCC
        I.rd = I.rd + EXEC
    elif mn.startswith(('buffer_', 'global_', 'flat_', 'scratch_')):
        I.cls = 'vmem'
        m = mods.split()
        if mn in ('buffer_wbl2', 'buffer_inv'):
            pass
        elif mn.startswith('buffer_load'):
            if 'lds' in m:
                I.lds_dma = True
                I.rd = sum(R, []) + [('s', 124)]
            else:
                I.wr = R[0]
                I.rd = sum(R[1:], [])
                if 'd16' in mn:
                    I.rd = I.rd + R[0]
        elif mn.startswith('global_load_lds'):
            I.lds_dma = True
            I.rd = sum(R, []) + [('s', 124)]
        elif mn.startswith('global_load'):
            I.wr = R[0]
            I.rd = sum(R[1:], [])
        elif mn.startswith('buffer_store'):
            I.data = R[0]
            I.rd = sum(R, [])
        elif mn.startswith('global_store'):
            I.data = R[1]
            I.rd = sum(R, [])
        elif mn.startswith('buffer_atomic'):
            I.data = R[0]
            I.rd = sum(R, [])
            if 'sc0' in m:
                I.wr = R[0][:1] if 'x2' not in mn else R[0][:2]
        else:
            raise ValueError('unhandled vmem ' + text)
        I.rd = I.rd + EXEC
    elif mn.startswith('ds_'):
        I.cls = 'ds'
        if mn.startswith(('ds_read', 'ds_bpermute', 'ds_permute', 'ds_swizzle')):
            I.wr = R[0]
            I.rd = sum(R[1:], [])
        elif mn.startswith('ds_write'):
            I.rd = sum(R, [])
            I.data = sum(R[1:], [])
        else:
            raise ValueError('unhandled ds ' + text)
        I.rd = I.rd + EXEC
    elif mn.startswith(('s_load', 's_buffer_load', 's_memtime', 's_memrealtime')):
        I.cls = 'smem'
        I.wr = R[0]
        I.rd = sum(R[1:], [])
    elif mn in ('s_waitcnt', 's_barrier', 's_nop', 's_endpgm', 's_sleep', 's_setprio', 's_branch') or \
            mn.startswith('s_cbranch'):
        I.cls = 'ctl'
        if mn in ('s_cbranch_scc0', 's_cbranch_scc1'):
            I.rd = SCC
        elif mn in ('s_cbranch_vccz', 's_cbranch_vccnz'):
            I.rd = VCC
        elif mn in ('s_cbranch_execz', 's_cbranch_execnz'):
            I.rd = EXEC
    elif mn.startswith('s_'):
        I.cls = 'salu'
        if mn.startswith('s_cmp') or mn.startswith('s_bitcmp'):
            I.wr = SCC
            I.rd = sum(R, [])
        elif mn == 's_getpc_b64':
            I.wr = R[0]
        elif mn.endswith('saveexec_b64'):
            I.wr = R[0] + EXEC + SCC
            I.rd = sum(R[1:], []) + EXEC
        else:
            I.wr = R[0] + SCC
            I.rd = sum(R[1:], [])
            if mn.startswith(('s_cselect', 's_addc', 's_subb', 's_cmov')):
                I.rd = I.rd + SCC
            if mn.startswith(('s_addk', 's_mulk', 's_cmov')):
                I.rd = I.rd + R[0]
    else:
        raise ValueError('unknown instr ' + text)
    return I


def is_wide_store(I):
    return I.cls == 'vmem' and ('store' in I.mn) and (I.mn.endswith('x3') or I.mn.endswith('x4'))


class Kernel:
    def __init__(self, name):
        self.name = name
        self.out = []
        self.hist = []
        self.vm = []
        self.lg = []
        self.sm = []
        self.pending_labels = {}
        self.nlabel = 0
        self.max_v = -1
        self.max_a = -1
        self.max_s = -1
        self.n_nops = 0
        self.n_ins = 0
        self.bytes = 0

    def c(self, s):
        self.out.append('    ; ' + s)

    def raw(self, s):
        self.out.append(s)

    def _advance(self, n):
        for h in self.hist:
            h[1] += n
        self.hist = [h for h in self.hist if h[1] < 24]

    def _emit(self, I):
        self.out.append('    ' + I.text + (('   ; ' + I.note) if I.note else ''))
        self.n_ins += 1
        for c, i in I.rd + I.wr:
            if c == 'v':
                self.max_v = max(self.max_v, i)
            elif c == 'a':
                self.max_a = max(self.max_a, i)
            elif c == 's' and i < 102:
                self.max_s = max(self.max_s, i)
        if I.mn == 's_nop':
            n = int(I.ops[0]) + 1
        else:
            n = 1
        self._advance(n)
        self.hist.append([I, 0])

    def nop(self, n):
        while n > 0:
            k = min(n, 16)
            self._emit(classify('s_nop %d' % (k - 1)))
            self.n_nops += 1
            n -= k

    def _need(self, I):
        need = 0
        rd = set(I.rd)
        wr = set(I.wr)
        isvalu = I.cls == 'valu'
        ismfma = I.cls == 'mfma'
        for P, d in self.hist:
            pw = set(P.wr)
            req = 0
            if P.cls == 'valu':
                vw = {r for r in pw if r[0] in 'va'}
                sw = {r for r in pw if r[0] == 's'}
                if ismfma and vw & rd:
                    req = max(req, 2)
                if isvalu and vw & rd:
                    if I.dpp:
                        req = max(req, 2)
                    if I.mn.startswith('v_permlane'):
                        req = max(req, 2)
                    if I.mn.startswith(('v_readlane', 'v_readfirstlane')):
                        req = max(req, 1)
                    if P.mn.split('_e')[0] in TRANS or P.mn in TRANS:
                        if not (I.mn in TRANS):
                            req = max(req, 1)
                        else:
                            req = max(req, 1)
                    if 'op_sel' in P.mods and not P.mn.startswith('v_pk_') or 'sdwa' in P.mn:
                        req = max(req, 1)
                if P.mn.startswith('v_dot') and (vw & (rd | wr)):
                    if I.mn == P.mn and I.mn.startswith('v_dot2c') and not (vw & set(sum([parse_reg(o) for o in I.ops[1:]], []))):
                        pass
                    else:
                        req = max(req, 3)
                if sw:
                    execw = ('s', 126) in sw
                    if isvalu and (sw & rd - {('s', 126), ('s', 127)}):
                        req = max(req, 2)
                        if I.mn.startswith(('v_readlane', 'v_writelane')):
                            req = max(req, 4)
                    if I.cls == 'vmem' and (sw & rd):
                        req = max(req, 5)
                    if execw and (isvalu or ismfma):
                        req = max(req, 5)
                    if I.cls in ('salu', 'ctl', 'smem') and (sw & rd):
                        req = max(req, 2)
            elif P.cls == 'mfma':
                big = 12 if P.passes == 8 else 8
                if ismfma:
                    if pw & set(I.srcab):
                        req = max(req, big)
                    sc = set(I.srcc)
                    if pw & sc:
                        if pw == sc and P.passes == I.passes:
                            pass
                        else:
                            req = max(req, big - 2)
                    if (pw & wr) and not (pw == sc and P.passes == I.passes):
                        req = max(req, big)
                else:
                    if (pw & rd) or (pw & wr):
                        req = max(req, big)
                    if isvalu and (set(P.srcc) & wr):
                        req = max(req, 7 if P.passes == 8 else 3)
            elif P.cls == 'salu':
                if ('s', 124) in pw and (I.lds_dma or 'addtid' in I.mn):
                    req = max(req, 1)
            elif P.cls == 'vmem':
                if is_wide_store(P) and (set(P.data) & wr):
                    req = max(req, 2)
            if req > d:
                need = max(need, req - d)
        return need

    def fence(self):
        need = 0
        for P, d in self.hist:
            r = 0
            if P.cls == 'mfma':
                r = 12 if P.passes == 8 else 8
            elif P.cls == 'valu':
                r = 5
            elif P.cls in ('salu', 'vmem'):
                r = 2
            need = max(need, r - d)
        if need > 0:
            self.nop(need)

    def _wait(self, vm=None, lg=None):
        parts = []
        if vm is not None:
            vm = min(vm, 63)
            if vm < len(self.vm):
                parts.append('vmcnt(%d)' % vm)
                self.vm = self.vm[len(self.vm) - vm:] if vm > 0 else []
        if lg is not None:
            tot = len(self.lg) + len(self.sm)
            if self.sm and lg < tot:
                lg = 0
            lg = min(lg, 15)
            if lg < tot:
                parts.append('lgkmcnt(%d)' % lg)
                if lg == 0:
                    self.lg = []
                    self.sm = []
                else:
                    self.lg = self.lg[len(self.lg) - lg:]
        if parts:
            self._emit(classify('s_waitcnt ' + ' '.join(parts)))

    def _auto_wait(self, I):
        touch = set(I.rd) | set(I.wr)
        vm = None
        for idx in range(len(self.vm) - 1, -1, -1):
            P = self.vm[idx]
            if set(P.wr) & touch:
                vm = len(self.vm) - 1 - idx
                break
        lg = None
        for idx in range(len(self.lg) - 1, -1, -1):
            P = self.lg[idx]
            if set(P.wr) & touch:
                lg = len(self.lg) - 1 - idx
                sl = getattr(self, 'lg_slack', 0)
                if sl and lg > 8:
                    lg = max(min(lg, 15) - sl, 8)
                break
        for P in self.sm:
            if set(P.wr) & touch:
                lg = 0
        self._wait(vm, lg)

    def wait_tag(self, tag):
        for idx in range(len(self.vm) - 1, -1, -1):
            if self.vm[idx].tag == tag:
                self._wait(vm=len(self.vm) - 1 - idx)
                return

    def wait_vm(self, n=0):
        self._wait(vm=n)

    def wait_lg(self, n=0):
        self._wait(lg=n)

    def wait_lg_tag(self, tag):
        for idx in range(len(self.lg) - 1, -1, -1):
            if self.lg[idx].tag == tag:
                self._wait(lg=len(self.lg) - 1 - idx)
                return

    def force_wait(self, vm=None, lg=None):
        parts = []
        if vm is not None:
            parts.append('vmcnt(%d)' % vm)
            self.vm = self.vm[len(self.vm) - vm:] if vm > 0 else []
        if lg is not None:
            parts.append('lgkmcnt(%d)' % lg)
            assert lg == 0
            self.lg = []
            self.sm = []
        self._emit(classify('s_waitcnt ' + ' '.join(parts)))

    def __call__(self, text, tag=None, note=None):
        I = classify(text, tag)
        I.note = note
        self._auto_wait(I)
        if I.cls == 'ds' and len(self.lg) + len(self.sm) >= 15:
            pass
        n = self._need(I)
        if n:
            self.nop(n)
        self._emit(I)
        if I.cls == 'vmem':
            self.vm.append(I)
        elif I.cls == 'ds':
            self.lg.append(I)
        elif I.cls == 'smem':
            self.sm.append(I)
        return I

    def bg_push(self, fn):
        if not hasattr(self, 'bgq'):
            self.bgq = []
        self.bgq.append(fn)

    def bg(self, n=1):
        q = getattr(self, 'bgq', [])
        while n > 0 and q:
            q.pop(0)()
            n -= 1

    def bg_flush(self):
        self.bg(1 << 30)

    def barrier(self):
        self('s_barrier')

    def newlabel(self, base='L'):
        self.nlabel += 1
        return '%s_%s_%d' % (base, self.name, self.nlabel)

    def branch_fwd(self, mn, label):
        self(mn + ' ' + label)
        self.pending_labels.setdefault(label, []).append(
            ([[h[0], h[1]] for h in self.hist], list(self.vm), list(self.lg), list(self.sm)))

    def label(self, label):
        saved = self.pending_labels.pop(label, [])
        for hist, vm, lg, sm in saved:
            self.hist = self.hist + hist
            self.vm = self._merge_q(self.vm, vm)
            self.lg = self._merge_q(self.lg, lg)
            self.sm = self.sm + [x for x in sm if x not in self.sm]
        self.out.append(label + ':')

    @staticmethod
    def _merge_q(a, b):
        if len(a) == len(b) and all(x is y for x, y in zip(a, b)):
            return a
        if not a:
            return b
        if not b:
            return a
        raise AssertionError('counter queues differ at label merge: %r vs %r' % (a, b))

    def loop_label(self, label):
        self.fence()
        self.out.append(label + ':')

    def text(self):
        return '\n'.join(self.out) + '\n'


def vr(base, n=1):
    return 'v%d' % base if n == 1 else 'v[%d:%d]' % (base, base + n - 1)


def ar(base, n=1):
    return 'a%d' % base if n == 1 else 'a[%d:%d]' % (base, base + n - 1)


def sr(base, n=1):
    return 's%d' % base if n == 1 else 's[%d:%d]' % (base, base + n - 1)
```

```python
import struct
from dsl import Kernel, vr, ar, sr

S, D, H, DH, F = 2048, 448, 16, 28, 1792

OF_OFF = 0x000000
HH_OFF = 0x200000
U_OFF = 0x3C0000
STAT_OFF = 0x548000
FLAG_OFF = 0x588000
WS_SIZE = 0x590000
OOB = 0x40000000

SRD_X, SRD_WQKV, SRD_WO, SRD_W1, SRD_W2, SRD_B1, SRD_B2, SRD_OUT, SRD_WS, SRD_DBG = 8, 12, 16, 20, 24, 28, 32, 36, 40, 44
SRD_A = 96
S_WG, S_WAVE = 2, 3
S_EPOCH = 4
S_SPIN = 6
S_ONES = 5
S_T = 86
V_LANE, V_T16, V_G, V_L16 = 1, 2, 3, 4


def f32(x):
    return '0x%08x' % struct.unpack('<I', struct.pack('<f', x))[0]


def srd(base):
    return sr(base, 4)


def prologue(k, nwg, end_label, need):
    k('s_cmp_ge_u32 s2, %d' % nwg)
    k('s_cbranch_scc1 %s' % end_label)
    for base, off, size in need:
        k('s_load_dwordx2 %s, s[0:1], %d' % (sr(base, 2), off))
    k('v_lshrrev_b32 v1, 6, v0')
    k('v_readfirstlane_b32 s3, v1')
    k('v_and_b32 v1, 63, v0')
    k('v_and_b32 v2, 15, v0')
    k('v_lshrrev_b32 v3, 4, v1')
    k('v_lshlrev_b32 v4, 4, v1')
    for base, off, size in need:
        k('s_mov_b32 s%d, 0x%x' % (base + 2, size))
        k('s_mov_b32 s%d, 0x00020000' % (base + 3))
    k('s_mov_b32 s%d, 0x3f803f80' % S_ONES)
    k('s_mov_b32 s%d, 0x40000' % S_SPIN)
    k.end_label = end_label


ARG = dict(x=(SRD_X, 0, S * D * 2), wqkv=(SRD_WQKV, 8, D * 3 * D * 2), wo=(SRD_WO, 16, D * D * 2),
           w1=(SRD_W1, 32, S * F * 2), b1=(SRD_B1, 40, F * 2), w2=(SRD_W2, 48, F * S * 2), b2=(SRD_B2, 56, S * 2),
           out=(SRD_OUT, 64, S * D * 2), dbg=(SRD_DBG, 72, 256), ws=(SRD_WS, 80, WS_SIZE))


def xgroup_reduce(k, regs, tmp, op='v_add_f32'):
    for swap in ('v_permlane32_swap_b32', 'v_permlane16_swap_b32'):
        for r, t in zip(regs, tmp):
            k('v_mov_b32 v%d, v%d' % (t, r))
        for r, t in zip(regs, tmp):
            k('%s v%d, v%d' % (swap, r, t))
        for r, t in zip(regs, tmp):
            k('%s v%d, v%d, v%d' % (op, r, r, t))


A_LDS_CS = 0
A_LDS_ST = 512
A_LDS_KV = 2048
A_LDS_W = 12288
A_LDS_X = 61440
A_XSLOT = [2, 1, 0, 3]
A_LDS_END = A_LDS_X + 4 * 18432
LDS_MID = 12288
LDS_STG = 77824
STG_SZ = 20480
NSLOT = 10
LDS_END = 163840
LDS_WO = 106496
TMP = 219


def xslot(grp):
    return A_XSLOT.index(grp % 4) * 18432


def phaseA(k, sc1='', hooks=None):
    hooks = hooks or {}
    XR = 16
    ACC = 136
    WF = 88
    ONES = 40
    SQ, SM = 48, 60
    vXl, vXu, vXh, vW, vA0, vA1, vH1, vH2 = 120, 121, 122, 123, 124, 125, 126, 127
    vRe, vRo, vHe, vHo = 128, 129, 130, 131
    vT = 237
    BP, BC, BPA = 240, 244, 248
    s_rb, s_head, s_t0, s_m0w, s_m0x, s_tmp = 48, 49, 50, 51, 52, 53
    s_hm = 54
    s_m0h = 7

    def hook(name):
        if name in hooks:
            hooks[name]()

    def xreg(j, blk):
        return XR + (j % 2) * 12 + blk * 4

    def acc(blk, nbi):
        return ACC + blk * 24 + nbi * 4
    H1, H2 = ACC + 48, ACC + 52

    k.c('---- phase A setup')
    k('s_bfe_u32 s%d, s2, 0x20001' % s_rb)
    k('s_lshl_b32 s%d, s%d, 2' % (s_rb, s_rb))
    k('s_lshr_b32 s%d, s2, 6' % s_tmp)
    k('s_add_u32 s%d, s%d, s%d' % (s_rb, s_rb, s_tmp))
    k('s_bfe_u32 s%d, s2, 0x30003' % s_head)
    k('s_and_b32 s%d, s2, 1' % s_tmp)
    k('s_lshl_b32 s%d, s%d, 3' % (s_tmp, s_tmp))
    k('s_add_u32 s%d, s%d, s%d' % (s_head, s_head, s_tmp))
    k('v_lshrrev_b32 v%d, 2, v1' % vT)
    k('v_mul_u32_u24 v%d, 2688, v%d' % (vW, vT))
    k('v_lshrrev_b32 v%d, 5, v1' % vT)
    k('v_lshlrev_b32 v%d, 1, v%d' % (vT, vT))
    k('v_and_b32 v%d, 3, v1' % (vT + 1))
    k('v_xor_b32 v%d, v%d, v%d' % (vT, vT, vT + 1))
    k('v_lshl_add_u32 v%d, v%d, 4, v%d' % (vW, vT, vW))
    k('s_mul_i32 s%d, s%d, 56' % (s_tmp, s_head))
    k('s_min_u32 s%d, s%d, 832' % (s_tmp, s_tmp))
    k('s_mul_i32 s%d, s3, %d' % (s_m0w, 16 * 2688))
    k('s_add_u32 s%d, s%d, s%d' % (s_tmp, s_tmp, s_m0w))
    k('v_add_u32 v%d, s%d, v%d' % (vW, s_tmp, vW))
    k('s_lshr_b32 s%d, s3, 1' % s_tmp)
    k('s_mul_i32 s%d, s%d, 6144' % (s_m0w, s_tmp))
    k('s_and_b32 s%d, s3, 1' % s_tmp)
    k('s_lshl_b32 s%d, s%d, 10' % (s_tmp, s_tmp))
    k('s_add_u32 s%d, s%d, s%d' % (s_m0w, s_m0w, s_tmp))
    k('v_lshrrev_b32 v%d, 3, v1' % vT)
    k('v_mul_u32_u24 v%d, 896, v%d' % (vXh, vT))
    k('v_and_b32 v%d, 7, v1' % vT)
    k('v_xor_b32 v%d, v%d, v3' % (vT, vT))
    k('v_lshl_add_u32 v%d, v%d, 4, v%d' % (vXl, vT, vXh))
    k('s_lshl_b32 s%d, s%d, 7' % (s_t0, s_rb))
    k('s_lshl_b32 s%d, s3, 5' % s_tmp)
    k('s_add_u32 s%d, s%d, s%d' % (s_tmp, s_tmp, s_t0))
    k('s_mul_i32 s%d, s%d, 896' % (s_tmp, s_tmp))
    k('v_xor_b32 v%d, 64, v%d' % (vXu, vXl))
    k('v_add_u32 v%d, s%d, v%d' % (vXl, s_tmp, vXl))
    k('s_add_u32 s%d, s%d, %d' % (s_tmp, s_tmp, 8 * 896))
    k('v_add_u32 v%d, s%d, v%d' % (vXu, s_tmp, vXu))
    k('s_lshl_b32 s%d, s3, 1' % s_tmp)
    k('v_xor_b32 v%d, s%d, v%d' % (vT, s_tmp, vT))
    k('v_lshl_add_u32 v%d, v%d, 4, v%d' % (vXh, vT, vXh))
    k('s_lshl_b32 s%d, s3, 2' % s_tmp)
    k('s_add_u32 s%d, s%d, s%d' % (s_tmp, s_tmp, s_t0))
    k('s_sub_u32 s%d, s%d, 16' % (s_tmp, s_tmp))
    k('s_mul_i32 s%d, s%d, 896' % (s_tmp, s_tmp))
    k('s_cmp_eq_u32 s%d, 0' % s_rb)
    k('s_cselect_b32 s%d, 0x%x, s%d' % (s_tmp, OOB, s_tmp))
    k('v_add_u32 v%d, s%d, v%d' % (vXh, s_tmp, vXh))
    k('s_lshl_b32 s%d, s3, 12' % s_m0x)
    k('s_add_u32 s%d, s%d, %d' % (s_m0x, s_m0x, A_LDS_X + 2048))
    k('s_lshl_b32 s%d, s3, 9' % s_m0h)
    k('s_cmp_eq_u32 s3, 0')
    k('s_cselect_b32 s%d, 0xffffff00, -1' % s_hm)
    k('s_mov_b32 s%d, 0' % (s_hm + 1))

    def dma_group(grp, bg=False):
        tag = 'G%d' % grp
        sd = B.s_dma

        def w_(p):
            k('s_add_u32 m0, s%d, %d' % (s_m0w, A_LDS_W + (grp % 4) * 12288 + p * 2048))
            k('s_mov_b32 s%d, %d' % (sd, grp * 64 * 2688 + p * 896))
            k('buffer_load_dwordx4 v%d, %s, s%d offen lds' % (vW, srd(SRD_WQKV), sd), tag=tag)

        def x_(i):
            k('s_add_u32 m0, s%d, %d' % (s_m0x, xslot(grp) + i * 1024))
            k('s_mov_b32 s%d, %d' % (sd, grp * 128 + (i >> 1) * 16 * 896))
            k('buffer_load_dwordx4 v%d, %s, s%d offen lds' % (vXu if i & 1 else vXl, srd(SRD_X), sd), tag=tag)

        def h_():
            k('s_add_u32 m0, s%d, %d' % (s_m0h, A_LDS_X + xslot(grp)))
            k('s_mov_b32 s%d, %d' % (sd, grp * 128))
            k('s_mov_b64 exec, %s' % sr(s_hm, 2))
            k('buffer_load_dwordx4 v%d, %s, s%d offen lds' % (vXh, srd(SRD_X), sd), tag=tag)
            k('s_mov_b64 exec, -1')
        fs = [lambda p=p: w_(p) for p in range(3)] + [lambda i=i: x_(i) for i in range(4)] + [h_]
        for f in fs:
            if bg:
                k.bg_push(f)
            else:
                f()

    hook('A_pre')
    for p in range(2):
        dma_group(p)
    k('s_lshr_b32 s%d, s2, 3' % s_tmp)
    k('s_lshl_b32 s%d, s%d, 2' % (s_tmp, s_tmp))
    k('s_add_u32 s%d, s%d, s3' % (s_tmp, s_tmp))
    k('s_mul_i32 s%d, s%d, 30' % (S_T, s_tmp))
    k('v_add_u32 v%d, s%d, v1' % (vT, S_T))
    k('v_mul_u32_u24 v%d, 43691, v%d' % (vT + 1, vT))
    k('v_lshrrev_b32 v%d, 19, v%d' % (vT + 1, vT + 1))
    k('v_mul_u32_u24 v%d, 12, v%d' % (vT + 2, vT + 1))
    k('v_sub_u32 v%d, v%d, v%d' % (vT + 2, vT, vT + 2))
    k('v_lshrrev_b32 v%d, 2, v%d' % (vT + 2, vT + 2))
    k('v_mul_u32_u24 v%d, 896, v%d' % (vT + 2, vT + 2))
    k('v_mul_u32_u24 v%d, 2688, v%d' % (vT + 1, vT + 1))
    k('v_and_b32 v%d, 3, v%d' % (vT, vT))
    k('v_lshlrev_b32 v%d, 7, v%d' % (vT, vT))
    k('v_add3_u32 v%d, v%d, v%d, v%d' % (vT, vT, vT + 1, vT + 2))
    k('s_and_b32 s%d, s2, 1' % S_T)
    k('s_mul_i32 s%d, s%d, 384' % (S_T, S_T))
    k('s_add_u32 s%d, s%d, %d' % (S_T, S_T, 128 * 2688))
    k('s_mov_b64 exec, 0x3fffffff')
    k('buffer_load_dword v232, v%d, %s, s%d offen' % (vT, srd(SRD_WQKV), S_T))
    k('s_mov_b64 exec, -1')
    k('v_lshlrev_b32 v%d, 7, v1' % vT)
    k('s_mul_i32 s%d, s%d, %d' % (S_T, s_tmp, 29 * 128))
    k('s_bfe_u32 s%d, s2, 0x20001' % (S_T + 1))
    k('s_mul_i32 s%d, s%d, %d' % (S_T + 1, S_T + 1, 512 * 896))
    k('s_add_u32 s%d, s%d, s%d' % (S_T, S_T, S_T + 1))
    k('s_max_u32 s%d, s%d, %d' % (S_T, S_T, 16 * 896))
    k('s_sub_u32 s%d, s%d, %d' % (S_T, S_T, 16 * 896))
    k('s_mov_b64 exec, 0x1fffffff')
    k('buffer_load_dword v233, v%d, %s, s%d offen' % (vT, srd(SRD_X), S_T))
    k('s_mov_b64 exec, -1')
    k('s_mul_i32 s%d, s%d, 14' % (S_T, s_tmp))
    k('v_add_u32 v%d, s%d, v1' % (vT, S_T))
    k('v_lshrrev_b32 v%d, 2, v%d' % (vT + 1, vT))
    k('v_mul_u32_u24 v%d, 896, v%d' % (vT + 1, vT + 1))
    k('v_and_b32 v%d, 3, v%d' % (vT, vT))
    k('v_lshl_add_u32 v%d, v%d, 7, v%d' % (vT, vT, vT + 1))
    k('s_and_b32 s%d, s2, 1' % S_T)
    k('s_lshl_b32 s%d, s%d, 9' % (S_T, S_T))
    k('s_mov_b64 exec, 0x3fff')
    k('buffer_load_dword v234, v%d, %s, s%d offen' % (vT, srd(SRD_WO), S_T))
    k('s_mov_b64 exec, -1')
    k('v_mul_u32_u24 v%d, 18432, v3' % vT)
    k('v_lshl_add_u32 v%d, v2, 3, v%d' % (vT, vT))
    k('v_mov_b32 v%d, s%d' % (vT + 1, S_ONES))
    k('v_add_u32 v%d, %d, v%d' % (vT, A_LDS_X, vT))
    k('ds_write2_b32 v%d, v%d, v%d offset0:0 offset1:1' % (vT, vT + 1, vT + 1))
    hook('A_after_issue')

    k('v_lshlrev_b32 v%d, 9, v3' % vA0)
    k('v_bfe_u32 v%d, v1, 2, 2' % vT)
    k('v_lshl_add_u32 v%d, v%d, 6, v%d' % (vA0, vT, vA0))
    k('v_and_b32 v%d, 3, v1' % vT)
    k('v_lshl_add_u32 v%d, v%d, 3, v%d' % (vA0, vT, vA0))
    k('v_and_b32 v%d, 1, v3' % vT)
    k('v_lshlrev_b32 v%d, 5, v%d' % (vT, vT))
    k('v_add_u32 v%d, v%d, v%d' % (vA0, vA0, vT))
    k('v_add_u32 v%d, %d, v%d' % (vA0, A_LDS_W, vA0))
    k('v_xor_b32 v%d, 32, v%d' % (vA1, vA0))
    k('s_and_b32 s%d, s3, 1' % s_tmp)
    k('s_lshl_b32 s%d, s%d, 5' % (s_tmp, s_tmp))
    k('v_xor_b32 v%d, s%d, v%d' % (vH2, s_tmp, vA0))
    k('s_lshr_b32 s%d, s3, 1' % s_tmp)
    k('s_lshl_b32 s%d, s%d, 11' % (s_tmp, s_tmp))
    k('s_add_u32 s%d, s%d, 2048' % (s_tmp, s_tmp))
    k('v_add_u32 v%d, s%d, v%d' % (vH1, s_tmp, vH2))
    k('v_lshrrev_b32 v%d, 1, v2' % vT)
    k('v_xor_b32 v%d, v%d, v3' % (vT, vT))
    k('v_lshlrev_b32 v%d, 4, v%d' % (vT, vT))
    k('v_lshl_add_u32 v%d, v2, 7, v%d' % (vT, vT))
    k('v_add_u32 v%d, %d, v%d' % (vHe, A_LDS_X, vT))
    k('v_xor_b32 v%d, 64, v%d' % (vHo, vHe))
    k('v_add_u32 v%d, s%d, v%d' % (vRe, s_m0x, vT))
    k('v_xor_b32 v%d, 64, v%d' % (vRo, vRe))
    k('v_lshlrev_b32 v%d, 2, v3' % vT)
    k('v_sub_u32 v%d, v2, v%d' % (vT, vT))
    k('v_mov_b32 v%d, %s' % (vT + 2, f32(-1e30)))
    for which, base in ((16, BP), (0, BC)):
        for r in range(4):
            k('v_add_u32 v%d, %d, v%d' % (vT + 1, which - r, vT))
            k('v_and_b32 v%d, 0xfffffff1, v%d' % (vT + 1, vT + 1))
            k('v_cmp_eq_u32 vcc, 0, v%d' % (vT + 1))
            k('v_cndmask_b32 v%d, v%d, 0, vcc' % (base + r, vT + 2))
    k('s_or_b32 s%d, s%d, s3' % (s_tmp, s_rb))
    k('s_cmp_eq_u32 s%d, 0' % s_tmp)
    k('s_cselect_b64 vcc, -1, 0')
    for r in range(4):
        k('v_cndmask_b32 v%d, v%d, v%d, vcc' % (BPA + r, BP + r, vT + 2))
    for i in range(4):
        k('v_mov_b32 v%d, s%d' % (ONES + i, S_ONES))

    frag_addr = [(vA0, 0), (vA1, 0), (vA0, 2048), (vA1, 2048), (vA0, 4096), (vA1, 4096), (vH1, 0), (vH2, 0)]

    def read_frag(f, j, h=None):
        va, off = frag_addr[f]
        o = (j % 8) * 6144 + off
        for hh in ((0, 1) if h is None else (h,)):
            k('ds_read_b64_tr_b16 %s, v%d offset:%d' % (vr(WF + 4 * f + 2 * hh, 2), va, o + 256 * hh))

    def read_x(j, blk=None):
        o = xslot(j // 2)
        for b_ in (range(3) if blk is None else (blk,)):
            if b_ < 2:
                k('ds_read_b128 %s, v%d offset:%d' % (vr(xreg(j, b_), 4), vRo if j & 1 else vRe, o + 2048 * b_))
            else:
                k('ds_read_b128 %s, v%d offset:%d' % (vr(xreg(j, 2), 4), vHo if j & 1 else vHe, o))

    stamp(k, 1)
    k.wait_tag('G0')
    k.wait_lg(0)
    k.barrier()
    stamp(k, 2)
    read_x(0)
    for f in range(8):
        read_frag(f, 0)
    dma_group(2, bg=True)
    k.lg_slack = 6
    for j in range(14):
        k.c('kstep %d' % j)
        if j + 1 < 14 and (j + 1) % 2 == 0:
            k.bg_flush()
            k.wait_tag('G%d' % ((j + 1) // 2))
            k.barrier()
            if (j + 5) // 2 < 7:
                dma_group((j + 5) // 2, bg=True)
            hook('A_b%d' % j)
        mf = []
        for f in range(8):
            w = vr(WF + 4 * f, 4)
            if f < 6:
                for blk in range(2):
                    a = vr(acc(blk, f), 4)
                    x = vr(xreg(j, blk), 4)
                    c = '0' if j == 0 else a
                    if f < 4:
                        mf.append(('v_mfma_f32_16x16x32_bf16 %s, %s, %s, %s' % (a, w, x, c), f if blk else -1))
                    else:
                        mf.append(('v_mfma_f32_16x16x32_bf16 %s, %s, %s, %s' % (a, x, w, c), f if blk else -1))
            else:
                a = vr(H1 if f == 6 else H2, 4)
                c = '0' if j == 0 else a
                mf.append(('v_mfma_f32_16x16x32_bf16 %s, %s, %s, %s' % (a, w, vr(xreg(j, 2), 4), c), f))
        for f in range(6):
            x = vr(xreg(j, f % 3), 4)
            a = vr((SQ if f < 3 else SM) + 4 * (f % 3), 4)
            mf.append(('v_mfma_f32_16x16x32_bf16 %s, %s, %s, %s' % (a, x if f < 3 else vr(ONES, 4), x, '0' if j == 0 else a), -1))
        fill = []
        if j + 1 < 14:
            fill += [lambda i=i: read_x(j + 1, i) for i in range(3)]
        for i, (txt, done) in enumerate(mf):
            k(txt)
            if done >= 0 and j + 1 < 14:
                fill += [lambda f=done, h=h: read_frag(f, j + 1, h) for h in range(2)]
            if fill:
                fill.pop(0)()
            if i % 5 == 4:
                k.bg()
        for f_ in fill:
            f_()
        if j == 6:
            stamp(k, 3)
        hook('A_k%d' % j)

    k.lg_slack = 0
    k.c('---- phase A epilogue')
    stamp(k, 4)
    T = XR
    s_m = 88
    for i, mk in enumerate((0x22222222, 0x44444444, 0x88888888)):
        k('s_mov_b32 s%d, 0x%x' % (s_m + 2 * i, mk))
        k('s_mov_b32 s%d, 0x%x' % (s_m + 2 * i + 1, mk))
    vAd = T + 16
    k('v_lshlrev_b32 v%d, 4, v3' % vAd)
    k('s_lshl_b32 s%d, s3, 6' % s_tmp)
    k('v_add_u32 v%d, s%d, v%d' % (vAd + 1, s_tmp, vAd))
    k('s_and_b32 s%d, s%d, 64' % (s_tmp, s_tmp))
    k('v_add_u32 v%d, s%d, v%d' % (vAd + 2, s_tmp, vAd))
    k('s_mul_i32 s%d, s3, 384' % s_tmp)
    k('v_lshl_add_u32 v%d, v2, 2, s%d' % (vAd + 3, s_tmp))
    k('v_add_u32 v%d, s%d, v%d' % (vAd + 4, s_tmp, vAd))
    k('s_mov_b32 exec_lo, 0x00010001')
    k('s_mov_b32 exec_hi, 0x00010001')
    k('ds_write_b128 v%d, %s offset:%d' % (vAd + 1, vr(H1, 4), A_LDS_CS + 128))
    k('ds_write_b128 v%d, %s offset:%d' % (vAd + 2, vr(H2, 4), A_LDS_CS))
    k('s_mov_b64 exec, -1')
    RR = T + 8
    for i in range(3):
        for blk in range(3):
            k('v_cndmask_b32 v%d, v%d, v%d, %s' % (SQ + 4 * blk, SQ + 4 * blk, SQ + 4 * blk + 1 + i, sr(s_m + 2 * i, 2)))
    for blk in range(3):
        k('v_mul_f32 v%d, %s, v%d' % (RR + 2 * blk + 1, f32(1.0 / D), SM + 4 * blk))
    for blk in range(3):
        k('v_mul_f32 v%d, v%d, v%d' % (RR + 2 * blk, RR + 2 * blk + 1, RR + 2 * blk + 1))
    for blk in range(3):
        k('v_mul_f32 v%d, %s, v%d' % (SQ + 4 * blk, f32(1.0 / D), SQ + 4 * blk))
    for blk in range(3):
        k('v_sub_f32 v%d, v%d, v%d' % (RR + 2 * blk, SQ + 4 * blk, RR + 2 * blk))
    for blk in range(3):
        k('v_max_f32 v%d, 0, v%d' % (RR + 2 * blk, RR + 2 * blk))
    for blk in range(3):
        k('v_add_f32 v%d, %s, v%d' % (RR + 2 * blk, f32(1e-5), RR + 2 * blk))
    for blk in range(3):
        k('v_rsq_f32 v%d, v%d' % (RR + 2 * blk, RR + 2 * blk))
    k('s_mov_b32 exec_lo, 0x00f0000f')
    k('s_mov_b32 exec_hi, 0xf0000f00')
    for blk in range(3):
        k('ds_write2_b32 v%d, v%d, v%d offset0:%d offset1:%d' % (vAd + 3, RR + 2 * blk, RR + 2 * blk + 1,
                                                               A_LDS_ST // 4 + 32 * blk, A_LDS_ST // 4 + 32 * blk + 16))
    k('s_mov_b64 exec, -1')
    HC = T + 24
    for r in range(4):
        k('v_mov_b32_dpp v%d, v%d row_newbcast:0 row_mask:0xf bank_mask:0xf' % (HC + r, H1 + r))
    vK, vV = T + 28, T + 29
    k('s_and_b32 s%d, s3, 1' % s_tmp)
    k('s_lshl_b32 s%d, s%d, 3' % (s_tmp, s_tmp))
    k('v_add_u32 v%d, s%d, v4' % (vK, s_tmp))
    k('v_lshrrev_b32 v%d, 2, v2' % vV)
    k('v_lshlrev_b32 v%d, 8, v%d' % (vV, vV))
    k('v_lshl_add_u32 v%d, v3, 6, v%d' % (vV, vV))
    k('v_and_b32 v%d, 3, v2' % (vV + 1))
    k('v_lshl_add_u32 v%d, v%d, 1, v%d' % (vV, vV + 1, vV))
    k('v_add_u32 v%d, s%d, v%d' % (vV, s_tmp, vV))
    k('v_add_u32 v%d, 1024, v%d' % (vV, vV))
    k('s_cmp_lt_u32 s3, 2')
    k('s_cselect_b64 vcc, -1, 0')
    k('s_cselect_b32 s%d, 2, 16' % s_tmp)
    k('v_cndmask_b32 v%d, v%d, v%d, vcc' % (vK, vV, vK))
    k('v_add_u32 v%d, s%d, v%d' % (vK + 1, s_tmp, vK))
    k('v_add_u32 v%d, s%d, v%d' % (vK + 2, s_tmp, vK + 1))
    k('v_add_u32 v%d, s%d, v%d' % (vK + 3, s_tmp, vK + 2))
    for r in (0, 2):
        k('v_pk_fma_f32 %s, %s, %s, %s op_sel:[0,1,0] op_sel_hi:[1,1,1] neg_lo:[0,1,0] neg_hi:[0,1,0]' % (
            vr(HC + r, 2), vr(HC + r, 2), vr(RR + 4, 2), vr(H1 + r, 2)))
    k('v_lshlrev_b32 v%d, 2, v2' % (vAd + 1))
    k('s_lshl_b32 s%d, s3, 11' % s_tmp)
    k('v_add_u32 v%d, s%d, v4' % (vAd + 2, s_tmp))
    k('s_cmp_eq_u32 s%d, 15' % s_head)
    k('s_cselect_b32 s%d, 0xffff0000, -1' % s_m)
    k('s_mov_b32 s%d, -1' % (s_m + 1))
    k('s_mov_b32 s%d, -1' % (s_m + 2))
    k('s_cselect_b32 s%d, -1, 0xffff' % (s_m + 3))
    k.wait_lg(0)
    k.barrier()
    stamp(k, 7)
    hook('A_e1')
    CS = T + 32
    CSV = T + 48
    L2 = T + 52
    for blk in (1, 2, 0):
        k('ds_read_b32 v%d, v%d offset:%d' % (RR + 2 * blk, vAd + 3, A_LDS_ST + 128 * blk))
    for s_ in (2, 3):
        k('ds_read_b128 %s, v%d offset:%d' % (vr(CS + 4 * s_, 4), vAd, A_LDS_CS + 64 * s_))
    k('ds_read_b32 v%d, v%d offset:%d' % (CSV, vAd + 1, A_LDS_CS + 256))
    k('ds_read_b32 v%d, v%d offset:%d' % (CSV + 1, vAd + 1, A_LDS_CS + 320))
    for blk in (1, 0):
        k('ds_read_b128 %s, v%d offset:%d' % (vr(L2 + 8 * blk + 4, 4), vAd + 4, A_LDS_ST + blk * 128 + 64))
        k('ds_read_b128 %s, v%d offset:%d' % (vr(L2 + 8 * blk, 4), vAd + 4, A_LDS_ST + blk * 128))
    for s_ in (0, 1):
        k('ds_read_b128 %s, v%d offset:%d' % (vr(CS + 4 * s_, 4), vAd, A_LDS_CS + 64 * s_))
    RQ = T + 68
    qs = (DH ** -0.5) * 1.4426950408889634
    QT = T + 72
    KT = T + 80
    VV = T + 92

    def fix_qk(blk, nbi, scale_reg, dst):
        a = acc(blk, nbi)
        hi = scale_reg & 1
        for r in (0, 2):
            k('v_pk_fma_f32 %s, %s, %s, %s op_sel:[0,1,0] op_sel_hi:[1,1,1] neg_lo:[0,1,0] neg_hi:[0,1,0]' % (
                vr(a + r, 2), vr(CS + 4 * nbi + r, 2), vr(RR + 2 * blk, 2), vr(a + r, 2)))
        for r in (0, 2):
            k('v_pk_mul_f32 %s, %s, %s op_sel:[0,%d] op_sel_hi:[1,%d]' % (vr(a + r, 2), vr(a + r, 2), vr(scale_reg - hi, 2), hi, hi))
        k('v_cvt_pk_bf16_f32 v%d, v%d, v%d' % (dst, a, a + 1))
        k('v_cvt_pk_bf16_f32 v%d, v%d, v%d' % (dst + 1, a + 2, a + 3))
        k.bg()

    def fix_v(blk, nb):
        a = acc(blk, 4 + nb)
        for r in (0, 2):
            k('v_pk_fma_f32 %s, %s, %s, %s op_sel:[0,%d,0] op_sel_hi:[1,%d,1] neg_lo:[0,1,0] neg_hi:[0,1,0]' % (
                vr(a + r, 2), vr(L2 + 8 * blk + 4 + r, 2), vr(CSV, 2), vr(a + r, 2), nb, nb))
        for r in (0, 2):
            k('v_pk_mul_f32 %s, %s, %s' % (vr(a + r, 2), vr(a + r, 2), vr(L2 + 8 * blk + r, 2)))
        dst = VV + 6 * nb + 2 + 2 * blk
        k('v_cvt_pk_bf16_f32 v%d, v%d, v%d' % (dst, a, a + 1))
        k('v_cvt_pk_bf16_f32 v%d, v%d, v%d' % (dst + 1, a + 2, a + 3))
        k.bg()

    fix_qk(1, 2, RR + 2, KT + 8)
    fix_qk(1, 3, RR + 2, KT + 10)
    k('ds_write_b128 v%d, %s offset:%d' % (vAd + 2, vr(KT + 8, 4), A_LDS_KV + 2048))
    for r in (0, 2):
        k('v_pk_mul_f32 %s, %s, %s op_sel_hi:[1,0]' % (vr(HC + r, 2), vr(HC + r, 2), vr(RR + 4, 2)))
    k('v_cvt_pk_bf16_f32 v%d, v%d, v%d' % (HC, HC, HC + 1))
    k('v_cvt_pk_bf16_f32 v%d, v%d, v%d' % (HC + 2, HC + 2, HC + 3))
    k('ds_write_b16 v%d, v%d offset:%d' % (vK, HC, A_LDS_KV))
    k('ds_write_b16_d16_hi v%d, v%d offset:%d' % (vK + 1, HC, A_LDS_KV))
    k('ds_write_b16 v%d, v%d offset:%d' % (vK + 2, HC + 2, A_LDS_KV))
    k('ds_write_b16_d16_hi v%d, v%d offset:%d' % (vK + 3, HC + 2, A_LDS_KV))
    fix_v(1, 0)
    fix_v(1, 1)
    k('ds_write_b64 v%d, %s offset:%d' % (vAd + 2, vr(VV + 4, 2), A_LDS_KV + 2048 + 1024))
    k('ds_write_b64 v%d, %s offset:%d' % (vAd + 2, vr(VV + 10, 2), A_LDS_KV + 2048 + 1024 + 8))
    for blk in range(2):
        k('v_mul_f32 v%d, %s, v%d' % (RQ + 2 * blk, f32(qs), RR + 2 * blk))
    for blk in range(2):
        k('v_cndmask_b32 v%d, 0, v%d, %s' % (RQ + 2 * blk + 1, RQ + 2 * blk, sr(s_m + 2, 2)))
        k('v_cndmask_b32 v%d, 0, v%d, %s' % (RQ + 2 * blk, RQ + 2 * blk, sr(s_m, 2)))
    fix_qk(0, 2, RR + 0, KT + 4)
    fix_qk(0, 3, RR + 0, KT + 6)
    k.wait_lg(0)
    k.barrier()
    stamp(k, 8)
    k('ds_read_b128 %s, v%d offset:%d' % (vr(KT, 4), vAd + 2, A_LDS_KV))
    k('ds_read_b64 %s, v%d offset:%d' % (vr(VV, 2), vAd + 2, A_LDS_KV + 1024))
    k('ds_read_b64 %s, v%d offset:%d' % (vr(VV + 6, 2), vAd + 2, A_LDS_KV + 1024 + 8))
    fix_qk(1, 0, RQ + 2, QT + 4)
    fix_qk(1, 1, RQ + 3, QT + 6)
    SS = T + 104
    k('v_mfma_f32_16x16x32_bf16 %s, %s, %s, %s' % (vr(SS + 8, 4), vr(KT + 4, 4), vr(QT + 4, 4), vr(BP, 4)))
    k('v_mfma_f32_16x16x32_bf16 %s, %s, %s, %s' % (vr(SS + 12, 4), vr(KT + 8, 4), vr(QT + 4, 4), vr(BC, 4)))
    fix_qk(0, 0, RQ + 0, QT + 0)
    fix_qk(0, 1, RQ + 1, QT + 2)
    k('v_mfma_f32_16x16x32_bf16 %s, %s, %s, %s' % (vr(SS + 0, 4), vr(KT + 0, 4), vr(QT, 4), vr(BPA, 4)))
    k('v_mfma_f32_16x16x32_bf16 %s, %s, %s, %s' % (vr(SS + 4, 4), vr(KT + 4, 4), vr(QT, 4), vr(BC, 4)))
    fix_v(0, 0)
    fix_v(0, 1)
    MX = ACC
    TM = ACC + 2
    for blk in (1, 0):
        s_ = SS + 8 * blk
        k('v_max3_f32 v%d, v%d, v%d, v%d' % (MX + blk, s_, s_ + 1, s_ + 2))
        k('v_max3_f32 v%d, v%d, v%d, v%d' % (TM + blk, s_ + 3, s_ + 4, s_ + 5))
        k('v_max3_f32 v%d, v%d, v%d, v%d' % (MX + blk, MX + blk, s_ + 6, s_ + 7))
        k('v_max_f32 v%d, v%d, v%d' % (MX + blk, MX + blk, TM + blk))
    k.bg()
    xgroup_reduce(k, [MX, MX + 1], [TM, TM + 1], op='v_max_f32')
    k.bg_flush()
    stamp(k, 9)
    SUM = ACC + 4
    PP = ACC + 8
    OO = ACC + 16
    for blk in (1, 0):
        s_ = SS + 8 * blk
        for i in range(0, 8, 2):
            k('v_pk_add_f32 %s, %s, %s op_sel:[0,%d] op_sel_hi:[1,%d] neg_lo:[0,1] neg_hi:[0,1]' % (vr(s_ + i, 2), vr(s_ + i, 2), vr(MX, 2), blk, blk))
        for i in range(8):
            k('v_exp_f32 v%d, v%d' % (s_ + i, s_ + i))
        for i in range(4):
            k('v_cvt_pk_bf16_f32 v%d, v%d, v%d' % (PP + 4 * blk + i, s_ + 2 * i, s_ + 2 * i + 1))
        for nb in range(2):
            k('v_mfma_f32_16x16x32_bf16 %s, %s, %s, 0' % (vr(OO + 8 * blk + 4 * nb, 4), vr(VV + 6 * nb + 2 * blk, 4),
                                                          vr(PP + 4 * blk, 4)))
    for blk in range(2):
        s_ = SS + 8 * blk
        k('v_pk_add_f32 %s, %s, %s' % (vr(s_, 2), vr(s_, 2), vr(s_ + 2, 2)))
        k('v_pk_add_f32 %s, %s, %s' % (vr(s_ + 4, 2), vr(s_ + 4, 2), vr(s_ + 6, 2)))
    for blk in range(2):
        s_ = SS + 8 * blk
        k('v_pk_add_f32 %s, %s, %s' % (vr(s_, 2), vr(s_, 2), vr(s_ + 4, 2)))
    for blk in range(2):
        s_ = SS + 8 * blk
        k('v_add_f32 v%d, v%d, v%d' % (SUM + 2 * blk, s_, s_ + 1))
    xgroup_reduce(k, [SUM, SUM + 2], [TM, TM + 1])
    for blk in range(2):
        k('v_rcp_f32 v%d, v%d' % (SUM + 2 * blk, SUM + 2 * blk))
    for blk in range(2):
        k('v_cndmask_b32 v%d, 0, v%d, %s' % (SUM + 2 * blk + 1, SUM + 2 * blk, sr(s_m + 2, 2)))
        k('v_cndmask_b32 v%d, 0, v%d, %s' % (SUM + 2 * blk, SUM + 2 * blk, sr(s_m, 2)))
    k('s_lshl_b32 s%d, s%d, 3' % (s_tmp, s_rb))
    k('s_lshl_b32 s%d, s3, 1' % s_t0)
    k('s_add_u32 s%d, s%d, s%d' % (s_tmp, s_tmp, s_t0))
    k('s_lshl_b32 s%d, s%d, 4' % (s_tmp, s_tmp))
    k('s_add_u32 s%d, s%d, s%d' % (s_tmp, s_tmp, s_head))
    k('s_lshl_b32 s%d, s%d, 10' % (s_tmp, s_tmp))
    if OF_OFF:
        k('s_add_u32 s%d, s%d, 0x%x' % (s_tmp, s_tmp, OF_OFF))
    k('s_add_u32 s%d, s%d, 16384' % (s_t0, s_tmp))
    for blk in range(2):
        o = OO + 8 * blk
        for r in (0, 2):
            k('v_pk_mul_f32 %s, %s, %s op_sel_hi:[1,0]' % (vr(o + r, 2), vr(o + r, 2), vr(SUM + 2 * blk, 2)))
        for r in (0, 2):
            k('v_pk_mul_f32 %s, %s, %s op_sel:[0,1] op_sel_hi:[1,1]' % (vr(o + 4 + r, 2), vr(o + 4 + r, 2), vr(SUM + 2 * blk, 2)))
        p = PP + 4 * blk
        for i in range(4):
            k('v_cvt_pk_bf16_f32 v%d, v%d, v%d' % (p + i, o + 2 * i, o + 2 * i + 1))
        k('buffer_store_dwordx4 %s, v4, %s, s%d offen %s' % (vr(p, 4), srd(SRD_WS), s_tmp if blk == 0 else s_t0, sc1), tag='ost')


STAMP_OFF = 0xA00000


DST = {5: 1, 10: 2, 15: 3, 16: 4, 22: 5, 24: 6, 29: 7}


def dstamp(k, idx, vtmp=253, stmp=74):
    if idx not in DST and idx != 0:
        return
    slot = DST.get(idx, 0)
    k('s_memrealtime %s' % sr(stmp, 2))
    k('s_cmp_eq_u32 s2, 131')
    k('s_cselect_b32 s%d, %d, %s' % (stmp + 4, 32 + 4 * slot, '0x%x' % OOB))
    if slot:
        k('s_cmp_eq_u32 s2, 0')
        k('s_cselect_b32 s%d, %d, s%d' % (stmp + 4, 4 * slot, stmp + 4))
    k('v_mov_b32 v%d, s%d' % (vtmp + 2, stmp + 4))
    k('v_mov_b32 v%d, s%d' % (vtmp, stmp))
    k('s_cmp_eq_u32 s3, 0')
    k('s_cselect_b64 exec, 1, 0')
    k('buffer_store_dword v%d, v%d, %s, 0 offen' % (vtmp, vtmp + 2, srd(SRD_DBG)))
    k('s_mov_b64 exec, -1')


def stamp(k, idx, vtmp=253, stmp=74):
    if getattr(k, 'stamps', False) == 'dbg':
        return dstamp(k, idx, vtmp, stmp)
    if not getattr(k, 'stamps', False):
        return
    k('s_memrealtime %s' % sr(stmp, 2))
    k('s_memtime %s' % sr(stmp + 2, 2))
    k('s_lshl_b32 s%d, s2, 2' % (stmp + 4))
    k('s_add_u32 s%d, s%d, s3' % (stmp + 4, stmp + 4))
    k('s_lshl_b32 s%d, s%d, 7' % (stmp + 4, stmp + 4))
    k('s_add_u32 s%d, s%d, 0x%x' % (stmp + 4, stmp + 4, STAMP_OFF + 4 * idx))
    k('v_mov_b32 v%d, s%d' % (vtmp, stmp))
    k('v_mov_b32 v%d, s%d' % (vtmp + 1, stmp + 2))
    k('v_mov_b32 v%d, 0' % (vtmp + 2))
    k('s_mov_b64 exec, 1')
    k('buffer_store_dword v%d, v%d, %s, s%d offen' % (vtmp, vtmp + 2, srd(SRD_WS), stmp + 4))
    k('s_add_u32 s%d, s%d, 0x20000' % (stmp + 4, stmp + 4))
    k('buffer_store_dword v%d, v%d, %s, s%d offen' % (vtmp + 1, vtmp + 2, srd(SRD_WS), stmp + 4))
    k('s_mov_b64 exec, -1')


def spin_guard(k):
    k('s_sub_u32 s%d, s%d, 1' % (S_SPIN, S_SPIN))
    k('s_cbranch_scc1 %s' % k.end_label)


def epoch_publish(k, vt):
    k('s_memrealtime %s' % sr(S_T, 2))
    k('v_mov_b32 v%d, 0' % (vt + 1))
    k('s_or_b32 s%d, s%d, 1' % (S_T, S_T))
    k('v_mov_b32 v%d, s%d' % (vt, S_T))
    k('s_or_b32 s%d, s2, s3' % S_T)
    k('s_cmp_eq_u32 s%d, 0' % S_T)
    k('s_cselect_b64 exec, 1, 0')
    k('buffer_store_dword v%d, v%d, %s, 0 offen sc1' % (vt, vt + 1, srd(SRD_DBG)))
    k('s_mov_b64 exec, -1')


def epoch_load(k, vt):
    k('v_mov_b32 v%d, 0' % (vt + 1))
    k('buffer_load_dword v%d, v%d, %s, 0 offen sc1' % (vt, vt + 1, srd(SRD_DBG)))


def epoch_get(k, vt):
    L = k.newlabel('Lepg')
    done = k.newlabel('Lepd')
    k('v_readfirstlane_b32 s%d, v%d' % (S_EPOCH, vt))
    k('s_cmp_lg_u32 s%d, 0' % S_EPOCH)
    k.branch_fwd('s_cbranch_scc1', done)
    k.loop_label(L)
    spin_guard(k)
    k('buffer_load_dword v%d, v%d, %s, 0 offen sc1' % (vt, vt + 1, srd(SRD_DBG)))
    k.force_wait(vm=0)
    k('v_readfirstlane_b32 s%d, v%d' % (S_EPOCH, vt))
    k('s_cmp_eq_u32 s%d, 0' % S_EPOCH)
    k('s_cbranch_scc1 %s' % L)
    k.label(done)


FLAG_A = FLAG_OFF
FLAG_B = FLAG_OFF + 0x1000
FLAG_C = FLAG_OFF + 0x2000


def flag_store(k, vt, s_off):
    k('v_mov_b32 v%d, s%d' % (vt, S_EPOCH))
    k('s_mov_b64 exec, 1')
    k('buffer_store_dword v%d, v%d, %s, s%d offen sc1' % (vt, vt + 1, srd(SRD_WS), s_off))
    k('s_mov_b64 exec, -1')


def flag_poll(k, vt, voff, s_off):
    L = k.newlabel('Lpoll')
    k.loop_label(L)
    spin_guard(k)
    k('buffer_load_dword v%d, v%d, %s, s%d offen sc1' % (vt, voff, srd(SRD_WS), s_off))
    k.force_wait(vm=0)
    k('v_cmp_ne_u32 vcc, s%d, v%d' % (S_EPOCH, vt))
    k('s_cbranch_vccnz %s' % L)


class B:
    s_tmp, s_wbase, s_t2, s_x = 58, 59, 60, 61
    s_dma = 73
    vWo, vR0, vR1 = 208, 209, 210
    ACC = 192
    OFR = 32
    T = 64
    HK = 240


def B_setup(k):
    b, g = B, G
    k.c('---- phase B setup')
    t = TMP
    k('v_lshrrev_b32 v%d, 3, v1' % t)
    k('v_mul_u32_u24 v%d, 896, v%d' % (b.vWo, t))
    k('v_and_b32 v%d, 1, v3' % t)
    k('v_lshlrev_b32 v%d, 2, v%d' % (t, t))
    k('v_and_b32 v%d, 7, v1' % (t + 1))
    k('v_xor_b32 v%d, v%d, v%d' % (t, t, t + 1))
    k('v_lshl_add_u32 v%d, v%d, 4, v%d' % (b.vWo, t, b.vWo))
    k('s_lshl_b32 s%d, s%d, 7' % (b.s_tmp, g.s_dtD))
    k('s_mul_i32 s%d, s3, %d' % (b.s_t2, 112 * 896))
    k('s_add_u32 s%d, s%d, s%d' % (b.s_tmp, b.s_tmp, b.s_t2))
    k('v_add_u32 v%d, s%d, v%d' % (b.vWo, b.s_tmp, b.vWo))
    k('s_mul_i32 s%d, s3, %d' % (b.s_wbase, 112 * 128))
    k('s_add_u32 s%d, s%d, %d' % (b.s_wbase, b.s_wbase, LDS_WO))
    k('v_lshrrev_b32 v%d, 5, v1' % t)
    k('v_lshlrev_b32 v%d, 9, v%d' % (b.vR0, t))
    k('v_bfe_u32 v%d, v1, 2, 2' % t)
    k('v_lshl_add_u32 v%d, v%d, 7, v%d' % (b.vR0, t, b.vR0))
    k('v_lshrrev_b32 v%d, 1, v%d' % (t, t))
    k('s_and_b32 s%d, s3, 1' % b.s_tmp)
    k('v_xor_b32 v%d, s%d, v%d' % (t, b.s_tmp, t))
    k('v_lshl_add_u32 v%d, v%d, 6, v%d' % (b.vR0, t, b.vR0))
    k('v_and_b32 v%d, 1, v3' % t)
    k('v_lshl_add_u32 v%d, v%d, 5, v%d' % (b.vR0, t, b.vR0))
    k('v_and_b32 v%d, 3, v1' % t)
    k('v_lshl_add_u32 v%d, v%d, 3, v%d' % (b.vR0, t, b.vR0))
    k('v_add_u32 v%d, %d, v%d' % (b.vR0, LDS_WO, b.vR0))


def B_wo_dma(k):
    b = B
    for i in range(14):
        k('s_add_u32 m0, s%d, %d' % (b.s_wbase, i * 1024))
        k('s_mov_b32 s%d, %d' % (b.s_dma, 8 * i * 896))
        k('buffer_load_dwordx4 v%d, %s, s%d offen lds' % (b.vWo, srd(SRD_WO), b.s_dma), tag='wo')


def B_wo_read(k, abase):
    b = B
    for h in range(16):
        for ks in range(2):
            a = abase + 8 * h + 4 * ks
            o = h * 3584 + ks * 1024 - (512 if h == 15 else 0)
            k('ds_read_b64_tr_b16 %s, v%d offset:%d' % (ar(a, 2), b.vR0, o))
            k('ds_read_b64_tr_b16 %s, v%d offset:%d' % (ar(a + 2, 2), b.vR0, o + 2048))


def B_xinit(k):
    b, g = B, G
    t = TMP + 2
    k('v_lshrrev_b32 v%d, 5, v1' % t)
    k('v_mul_u32_u24 v%d, %d, v%d' % (t, 4 * 896, t))
    k('v_and_b32 v%d, 31, v1' % (t + 1))
    k('v_lshl_add_u32 v%d, v%d, 1, v%d' % (t, t + 1, t))
    k('s_lshl_b32 s%d, s%d, 1' % (b.s_tmp, g.s_st))
    k('s_lshr_b32 s%d, s3, 1' % b.s_t2)
    k('s_add_u32 s%d, s%d, s%d' % (b.s_tmp, b.s_tmp, b.s_t2))
    k('s_mul_i32 s%d, s%d, %d' % (b.s_tmp, b.s_tmp, 32 * 896))
    k('s_lshl_b32 s%d, s%d, 7' % (b.s_t2, g.s_dtD))
    k('s_add_u32 s%d, s%d, s%d' % (b.s_tmp, b.s_tmp, b.s_t2))
    k('s_and_b32 s%d, s3, 1' % b.s_t2)
    k('s_lshl_b32 s%d, s%d, 6' % (b.s_t2, b.s_t2))
    k('s_add_u32 s%d, s%d, s%d' % (b.s_tmp, b.s_tmp, b.s_t2))
    for q in range(4):
        for r in range(4):
            k('buffer_load_ushort v%d, v%d, %s, s%d offen offset:%d' % (b.ACC + 4 * q + r, t, srd(SRD_X), b.s_tmp, r * 896))
        if q < 3:
            k('s_add_u32 s%d, s%d, %d' % (b.s_tmp, b.s_tmp, 8 * 896))


def B_xinit_finish(k):
    b = B
    for i in range(16):
        k('v_lshlrev_b32 v%d, 16, v%d' % (b.ACC + i, b.ACC + i))


def B_main(k, abase, lds_o, lds_small, sc1='', hooks=None):
    b, g = B, G
    t = b.T
    k.c('---- phase B main')
    hooks = hooks or {}

    def hook(name):
        if name in hooks:
            hooks[name]()
    k('s_lshl_b32 s%d, s%d, 16' % (b.s_tmp, g.s_st))
    k('s_lshl_b32 s%d, s3, 14' % b.s_t2)
    k('s_add_u32 s%d, s%d, s%d' % (b.s_tmp, b.s_tmp, b.s_t2))
    if OF_OFF:
        k('s_add_u32 s%d, s%d, 0x%x' % (b.s_tmp, b.s_tmp, OF_OFF))
    for i in range(16):
        if i % 4 == 0:
            k('s_add_u32 m0, s%d, %d' % (b.s_t2, lds_o + i * 1024))
            if i:
                k('s_add_u32 s%d, s%d, 4096' % (b.s_tmp, b.s_tmp))
        k('buffer_load_dwordx4 v4, %s, s%d offen offset:%d %s lds' % (srd(SRD_WS), b.s_tmp, (i % 4) * 1024, sc1), tag='of%d' % (i // 8))
    k('v_and_b32 v%d, 1, v3' % t)
    k('v_lshlrev_b32 v%d, 14, v%d' % (t, t))
    k('v_lshl_add_u32 v%d, v2, 4, v%d' % (t, t))
    k('v_lshrrev_b32 v%d, 5, v1' % (t + 1))
    k('v_lshl_add_u32 v%d, v%d, 8, v%d' % (t, t + 1, t))
    k('s_lshr_b32 s%d, s3, 1' % b.s_t2)
    k('s_lshl_b32 s%d, s%d, 15' % (b.s_t2, b.s_t2))
    k('s_add_u32 s%d, s%d, %d' % (b.s_t2, b.s_t2, lds_o))
    k('v_add_u32 v%d, s%d, v%d' % (t, b.s_t2, t))
    hook('B_after_of')
    a = vr(b.ACC, 16)

    def rd(i):
        k('ds_read_b128 %s, v%d offset:%d' % (vr(b.OFR + 4 * (i % 8), 4), t, i * 512))
    for half in range(2):
        k.wait_tag('of%d' % half)
        k.barrier()
        if half == 0:
            stamp(k, 11)
        for i in range(16 * half, 16 * half + (6 if half == 0 else 2)):
            rd(i)
        for i in range(16 * half - (4 if half else 0), 16 * half + (12 if half == 0 else 16)):
            k('v_mfma_f32_32x32x16_bf16 %s, %s, %s, %s' % (a, vr(b.OFR + 4 * (i % 8), 4), ar(abase + 4 * i, 4), a))
            if i + 6 < 16 * half + 16 and i + 6 >= 16 * half + (6 if half == 0 else 2):
                rd(i + 6)
            k.bg()
    stamp(k, 12)
    Q = t + 4
    V = t + 20
    A = b.ACC
    for i in range(0, 16, 2):
        k('v_pk_mul_f32 %s, %s, %s' % (vr(Q + i, 2), vr(A + i, 2), vr(A + i, 2)))
    def src(base, q, idx):
        r = ((idx & 1) << 1) | (idx >> 1)
        return base + 4 * q + r
    for base, dst in ((A, V), (Q, V + 8)):
        for q in range(4):
            for p in range(2):
                x = src(base, q, 2 * p)
                k('v_add_f32_dpp v%d, v%d, v%d row_mirror row_mask:0xf bank_mask:0x3' % (dst + 2 * q + p, x, x))
    for base, dst in ((A, V), (Q, V + 8)):
        for q in range(4):
            for p in range(2):
                x = src(base, q, 2 * p + 1)
                k('v_add_f32_dpp v%d, v%d, v%d row_mirror row_mask:0xf bank_mask:0xc' % (dst + 2 * q + p, x, x))
    for i in range(8):
        k('v_add_f32_dpp v%d, v%d, v%d row_half_mirror row_mask:0xf bank_mask:0x5' % (V + 2 * i, V + 2 * i, V + 2 * i))
    for i in range(8):
        k('v_add_f32_dpp v%d, v%d, v%d row_half_mirror row_mask:0xf bank_mask:0xa' % (V + 2 * i, V + 2 * i + 1, V + 2 * i + 1))
    for i in range(8):
        k('v_add_f32_dpp v%d, v%d, v%d quad_perm:[1,0,3,2] row_mask:0xf bank_mask:0xf' % (V + 2 * i + 1, V + 2 * i, V + 2 * i))
    U = Q
    for i in range(8):
        k('v_add_f32_dpp v%d, v%d, v%d quad_perm:[2,3,0,1] row_mask:0xf bank_mask:0xf' % (U + i, V + 2 * i + 1, V + 2 * i + 1))
    for kind in range(2):
        for i in range(2):
            k('v_permlane16_swap_b32 v%d, v%d' % (U + 4 * kind + 2 * i, U + 4 * kind + 2 * i + 1))
    W_ = V
    for i in range(2):
        for kind in range(2):
            k('v_add_f32 v%d, v%d, v%d' % (W_ + 2 * i + kind, U + 4 * kind + 2 * i, U + 4 * kind + 2 * i + 1))
    vA, vC, vG = t + 1, t + 2, t + 3
    k('v_and_b32 v%d, 1, v3' % vA)
    k('v_lshlrev_b32 v%d, 6, v%d' % (vA, vA))
    k('v_lshrrev_b32 v%d, 5, v1' % vC)
    k('v_lshl_add_u32 v%d, v%d, 5, v%d' % (vA, vC, vA))
    k('v_bfe_u32 v%d, v1, 2, 2' % vG)
    k('v_lshl_add_u32 v%d, v%d, 3, v%d' % (vA, vG, vA))
    k('s_lshl_b32 s%d, s3, 8' % b.s_tmp)
    k('v_add_u32 v%d, s%d, v%d' % (vA, b.s_tmp, vA))
    k('ds_write_b64 v%d, %s offset:%d' % (vA, vr(W_, 2), lds_small))
    k('ds_write_b64 v%d, %s offset:%d' % (vA, vr(W_ + 2, 2), lds_small + 128))
    k('v_and_b32 v%d, 31, v1' % vG)
    k('v_lshlrev_b32 v%d, 9, v%d' % (vA, vC))
    k('v_lshl_add_u32 v%d, v%d, 4, v%d' % (vA, vG, vA))
    k('v_lshlrev_b32 v%d, 8, v%d' % (vC, vC))
    k('v_lshl_add_u32 v%d, v%d, 3, v%d' % (vC, vG, vC))
    k('s_and_b32 s%d, s%d, 512' % (b.s_tmp, b.s_tmp))
    k('v_add_u32 v%d, s%d, v%d' % (vC, b.s_tmp, vC))
    k('s_lshl_b32 s%d, s%d, 1' % (b.s_tmp, g.s_st))
    k('s_lshr_b32 s%d, s3, 1' % b.s_t2)
    k('s_add_u32 s%d, s%d, s%d' % (b.s_tmp, b.s_tmp, b.s_t2))
    k('s_lshl_b32 s%d, s%d, 12' % (b.s_tmp, b.s_tmp))
    k('s_add_u32 s%d, s%d, 0x%x' % (b.s_tmp, b.s_tmp, STAT_OFF))
    k('s_lshl_b32 s%d, s%d, 9' % (b.s_t2, g.s_dtD))
    k('s_add_u32 s%d, s%d, s%d' % (b.s_t2, b.s_t2, b.s_tmp))
    k.wait_lg(0)
    k.barrier()
    k('ds_read_b64 %s, v%d offset:%d' % (vr(V, 2), vC, lds_small))
    G_ = V + 4
    k('v_mov_b32 v%d, s%d' % (G_ + 1, S_EPOCH))
    k('v_mov_b32 v%d, s%d' % (G_ + 3, S_EPOCH))
    k('v_mov_b32 v%d, v%d' % (G_, V))
    k('v_mov_b32 v%d, v%d' % (G_ + 2, V + 1))
    k('v_permlane32_swap_b32 v%d, v%d' % (G_, V))
    k('v_permlane32_swap_b32 v%d, v%d' % (G_ + 2, V + 1))
    k('v_add_f32 v%d, v%d, v%d' % (G_, G_, V))
    k('v_add_f32 v%d, v%d, v%d' % (G_ + 2, G_ + 2, V + 1))
    k('s_bitcmp0_b32 s3, 0')
    k('s_cselect_b32 exec_lo, -1, 0')
    k('s_mov_b32 exec_hi, 0')
    k('buffer_store_dwordx4 %s, v%d, %s, s%d offen sc1' % (vr(G_, 4), vA, srd(SRD_WS), b.s_t2))
    k('s_mov_b64 exec, -1')
    for i in range(8):
        k('v_cvt_pk_bf16_f32 v%d, v%d, v%d' % (b.HK + i, A + 2 * i, A + 2 * i + 1))
    k('s_lshl_b32 s%d, s%d, 1' % (b.s_x, g.s_dtD))
    k('s_and_b32 s%d, s3, 1' % b.s_t2)
    k('s_add_u32 s%d, s%d, s%d' % (b.s_x, b.s_x, b.s_t2))
    k('s_lshl_b32 s%d, s%d, 7' % (b.s_x, b.s_x))
    k('s_lshl_b32 s%d, s%d, 2' % (b.s_t2, g.s_st))
    k('s_add_u32 s%d, s%d, s%d' % (b.s_x, b.s_x, b.s_t2))
    k('s_and_b32 s%d, s3, 2' % b.s_t2)
    k('s_add_u32 s%d, s%d, s%d' % (b.s_x, b.s_x, b.s_t2))
    k('s_lshl_b32 s%d, s%d, 10' % (b.s_x, b.s_x))
    k('s_add_u32 s%d, s%d, 0x%x' % (b.s_x, b.s_x, HH_OFF))
    k('v_lshlrev_b32 v%d, 4, v%d' % (vC, vG))
    k('v_cmp_gt_u32 %s, 32, v1' % sr(S_T, 2))
    hook('B_before_poll')
    P0 = t + 32
    L = k.newlabel('Lst')
    k.loop_label(L)
    spin_guard(k)
    for i in range(4):
        k('buffer_load_dwordx4 %s, v%d, %s, s%d offen offset:%d sc1' % (vr(P0 + 4 * i, 4), vA if i < 3 else vC, srd(SRD_WS), b.s_tmp, i * 1024))
    k.force_wait(vm=0)
    for i in range(8):
        k('v_xor_b32 v%d, s%d, v%d' % (P0 + 2 * i + 1, S_EPOCH, P0 + 2 * i + 1))
    k('v_or3_b32 v%d, v%d, v%d, v%d' % (P0 + 1, P0 + 1, P0 + 3, P0 + 5))
    k('v_or3_b32 v%d, v%d, v%d, v%d' % (P0 + 7, P0 + 7, P0 + 9, P0 + 11))
    k('v_or3_b32 v%d, v%d, v%d, v%d' % (P0 + 1, P0 + 1, P0 + 13, P0 + 15))
    k('v_or_b32 v%d, v%d, v%d' % (P0 + 1, P0 + 1, P0 + 7))
    k('v_cmp_ne_u32 vcc, 0, v%d' % (P0 + 1))
    k('s_cbranch_vccnz %s' % L)
    stamp(k, 13)
    Sx, Qx = P0, P0 + 2
    k('v_cndmask_b32 v%d, 0, v%d, %s' % (P0 + 12, P0 + 12, sr(S_T, 2)))
    k('v_cndmask_b32 v%d, 0, v%d, %s' % (P0 + 14, P0 + 14, sr(S_T, 2)))
    for x in (Sx, Qx):
        k('v_add_f32 v%d, v%d, v%d' % (x, x, x + 4))
        k('v_add_f32 v%d, v%d, v%d' % (x + 8, x + 8, x + 12))
    for x in (Sx, Qx):
        k('v_add_f32 v%d, v%d, v%d' % (x, x, x + 8))
    k('v_mov_b32 v%d, v%d' % (P0 + 4, Sx))
    k('v_mov_b32 v%d, v%d' % (P0 + 6, Qx))
    k('v_permlane32_swap_b32 v%d, v%d' % (Sx, P0 + 4))
    k('v_permlane32_swap_b32 v%d, v%d' % (Qx, P0 + 6))
    k('v_add_f32 v%d, v%d, v%d' % (Sx, Sx, P0 + 4))
    k('v_add_f32 v%d, v%d, v%d' % (Qx, Qx, P0 + 6))
    M, R = P0 + 1, P0 + 3
    k('v_mul_f32 v%d, %s, v%d' % (M, f32(1.0 / D), Sx))
    k('v_mul_f32 v%d, %s, v%d' % (Qx, f32(1.0 / D), Qx))
    k('v_fma_f32 v%d, -v%d, v%d, v%d' % (Qx, M, M, Qx))
    k('v_max_f32 v%d, 0, v%d' % (Qx, Qx))
    k('v_add_f32 v%d, %s, v%d' % (R, f32(1e-5), Qx))
    k('v_rsq_f32 v%d, v%d' % (R, R))
    k('v_mul_f32 v%d, v%d, v%d' % (Qx, Qx, R))
    k('v_fmaak_f32 v%d, v%d, v%d, %s' % (Qx, Qx, R, f32(1e-5)))
    k('v_rsq_f32 v%d, v%d' % (Qx, Qx))
    k('v_mul_f32 v%d, v%d, v%d' % (R, R, Qx))
    k('s_lshl_b32 s%d, s3, 8' % b.s_t2)
    k('v_lshl_add_u32 v%d, v%d, 2, s%d' % (vC, vG, b.s_t2))
    k('ds_write_b32 v%d, v%d offset:%d' % (vC, M, lds_small + 1024))
    k('ds_write_b32 v%d, v%d offset:%d' % (vC, R, lds_small + 1024 + 128))
    k('v_lshrrev_b32 v%d, 5, v1' % vC)
    k('v_lshl_add_u32 v%d, v%d, 4, s%d' % (vC, vC, b.s_t2))
    MM = P0 + 16
    k.wait_lg(0)
    for q in range(4):
        k('ds_read_b128 %s, v%d offset:%d' % (vr(MM + 4 * q, 4), vC, lds_small + 1024 + 32 * q))
        k('ds_read_b128 %s, v%d offset:%d' % (vr(MM + 16 + 4 * q, 4), vC, lds_small + 1024 + 128 + 32 * q))
    for tp in range(2):
        for i in range(8 * tp, 8 * tp + 8, 2):
            k('v_pk_add_f32 %s, %s, %s neg_lo:[0,1] neg_hi:[0,1]' % (vr(A + i, 2), vr(A + i, 2), vr(MM + i, 2)))
        for i in range(8 * tp, 8 * tp + 8, 2):
            k('v_pk_mul_f32 %s, %s, %s' % (vr(A + i, 2), vr(A + i, 2), vr(MM + 16 + i, 2)))
        p = V + 4 * tp
        for i in range(4):
            k('v_cvt_pk_bf16_f32 v%d, v%d, v%d' % (p + i, A + 8 * tp + 2 * i, A + 8 * tp + 2 * i + 1))
        k('buffer_store_dwordx4 %s, v4, %s, s%d offen offset:%d %s' % (vr(p, 4), srd(SRD_WS), b.s_x, tp * 1024, sc1), tag='hst')


def agent(k):
    g = G
    k.c('---- agent: W2 warm-up')
    k('s_lshr_b32 s%d, s2, 3' % g.s_tmp)
    k('s_bfe_u32 s%d, s2, 0x20001' % g.s_t2)
    k('s_lshl_b32 s%d, s%d, 3' % (g.s_t2, g.s_t2))
    k('s_add_u32 s%d, s%d, s%d' % (g.s_tmp, g.s_tmp, g.s_t2))
    k('s_sub_u32 s%d, s%d, 24' % (g.s_tmp, g.s_tmp))
    k('s_lshl_b32 s%d, s%d, 2' % (g.s_tmp, g.s_tmp))
    k('s_add_u32 s%d, s%d, s3' % (g.s_tmp, g.s_tmp))
    k('s_mul_i32 s%d, s%d, 57344' % (g.s_tmp, g.s_tmp))
    k('v_lshlrev_b32 v16, 7, v1')
    for i in range(7):
        k('buffer_load_dword v%d, v16, %s, s%d offen' % (17 + i, srd(SRD_W2), g.s_tmp))
        k('s_add_u32 s%d, s%d, 8192' % (g.s_tmp, g.s_tmp))
    k.wait_vm(0)


class G:
    ACC = 16
    RING = 80
    NR = 16
    vW1, vW2 = 213, 214
    vRa, vRb = 215, 216
    vSa, vSb = 217, 218
    vCl = 5
    T = 220
    s_dtC, s_ft, s_dtD, s_st, s_tmp, s_t2, s_stage, s_a0, s_a1 = 64, 65, 66, 67, 68, 69, 70, 71, 72


def G_map(k):
    g = G
    k.c('---- C/D tile map')
    k('s_lshr_b32 s%d, s2, 3' % g.s_tmp)
    k('s_mul_i32 s%d, s%d, 86' % (g.s_t2, g.s_tmp))
    k('s_lshr_b32 s%d, s%d, 8' % (g.s_t2, g.s_t2))
    k('s_lshr_b32 s%d, s%d, 2' % (g.s_a0, g.s_tmp))
    k('s_and_b32 s%d, s2, 1' % g.s_a1)
    k('s_cmp_eq_u32 s%d, 1' % g.s_a1)
    k('s_cselect_b32 s%d, s%d, s%d' % (g.s_t2, g.s_t2, g.s_a0))
    k('s_sub_u32 s%d, 4, s%d' % (g.s_a0, g.s_a1))
    k('s_mul_i32 s%d, s%d, s%d' % (g.s_a0, g.s_a0, g.s_t2))
    k('s_sub_u32 s%d, s%d, s%d' % (g.s_dtC, g.s_tmp, g.s_a0))
    k('s_lshl_b32 s%d, s%d, 2' % (g.s_a1, g.s_a1))
    k('s_add_u32 s%d, s%d, s%d' % (g.s_dtC, g.s_dtC, g.s_a1))
    k('s_mov_b32 s%d, s%d' % (g.s_dtD, g.s_dtC))
    k('s_bfe_u32 s%d, s2, 0x20001' % g.s_tmp)
    k('s_lshl_b32 s%d, s%d, 3' % (g.s_st, g.s_tmp))
    k('s_add_u32 s%d, s%d, s%d' % (g.s_st, g.s_st, g.s_t2))
    k('s_sub_u32 s%d, s%d, s%d' % (g.s_ft, g.s_st, g.s_tmp))
    k('s_cmp_ge_u32 s%d, 8' % g.s_t2)
    k('s_cselect_b32 s%d, 99, s%d' % (g.s_st, g.s_st))
    k('s_cmp_ge_u32 s%d, 7' % g.s_t2)
    k('s_cselect_b32 s%d, 99, s%d' % (g.s_ft, g.s_ft))


def G_w_setup(k, which, lds_base, per_wave):
    g = G
    t = TMP
    stride = F * 2 if which == 1 else S * 2
    krows = 512 if which == 1 else 448
    vW = g.vW1 if which == 1 else g.vW2
    va, vb = (g.vRa, g.vRb) if which == 1 else (g.vSa, g.vSb)
    s_tile = g.s_ft if which == 1 else g.s_st
    k('s_mul_i32 s%d, s3, %d' % (g.s_stage, per_wave))
    k('s_add_u32 s%d, s%d, %d' % (g.s_stage, g.s_stage, lds_base))
    k('v_lshrrev_b32 v%d, 3, v1' % t)
    k('v_mul_u32_u24 v%d, %d, v%d' % (vW, stride, t))
    k('v_and_b32 v%d, 1, v3' % t)
    k('v_lshlrev_b32 v%d, 2, v%d' % (t, t))
    k('v_and_b32 v%d, 7, v1' % (t + 1))
    k('v_xor_b32 v%d, v%d, v%d' % (t, t, t + 1))
    k('v_lshl_add_u32 v%d, v%d, 4, v%d' % (vW, t, vW))
    k('s_mul_i32 s%d, s3, %d' % (g.s_tmp, krows * stride))
    k('s_lshl_b32 s%d, s%d, 7' % (g.s_t2, s_tile))
    k('s_add_u32 s%d, s%d, s%d' % (g.s_tmp, g.s_tmp, g.s_t2))
    k('s_cmp_ge_u32 s%d, 99' % s_tile)
    k('s_cselect_b32 s%d, 0x%x, s%d' % (g.s_tmp, OOB, g.s_tmp))
    k('v_add_u32 v%d, s%d, v%d' % (vW, g.s_tmp, vW))
    if which == 1:
        k('s_cselect_b32 s%d, 0x%x, 0' % (g.s_tmp, OOB))
        k('v_add_u32 v%d, s%d, v4' % (g.vCl, g.s_tmp))
    k('v_lshrrev_b32 v%d, 5, v1' % t)
    k('v_lshlrev_b32 v%d, 9, v%d' % (va, t))
    k('v_bfe_u32 v%d, v1, 2, 2' % t)
    k('v_lshl_add_u32 v%d, v%d, 7, v%d' % (va, t, va))
    k('v_lshrrev_b32 v%d, 1, v%d' % (t, t))
    k('s_lshr_b32 s%d, s3, 1' % g.s_tmp)
    k('v_xor_b32 v%d, s%d, v%d' % (t, g.s_tmp, t))
    k('v_lshl_add_u32 v%d, v%d, 6, v%d' % (va, t, va))
    k('v_and_b32 v%d, 1, v3' % t)
    k('v_lshl_add_u32 v%d, v%d, 5, v%d' % (va, t, va))
    k('v_and_b32 v%d, 3, v1' % t)
    k('v_lshl_add_u32 v%d, v%d, 3, v%d' % (va, t, va))
    k('v_add_u32 v%d, s%d, v%d' % (va, g.s_stage, va))
    k('v_xor_b32 v%d, 64, v%d' % (vb, va))


def G_w_dma(k, which, t0, nt, slot0, tag=None, bg=False):
    g = G
    stride = F * 2 if which == 1 else S * 2

    def one(i):
        slot = slot0 + i // 2
        assert slot < NSLOT
        k.wait_lg_tag('rd%d' % slot)
        k.slot_content = getattr(k, 'slot_content', {})
        k.slot_content[slot] = (which, t0 + i // 2, i % 2)
        k('s_add_u32 m0, s%d, %d' % (g.s_stage, slot0 * 2048 + i * 1024))
        k('s_mov_b32 s%d, %d' % (B.s_dma, (16 * t0 + 8 * i) * stride))
        k('buffer_load_dwordx4 v%d, %s, s%d offen lds' % (g.vW1 if which == 1 else g.vW2, srd(SRD_W1 if which == 1 else SRD_W2), B.s_dma), tag='slot%d' % slot)
    for i in range(2 * nt):
        if bg:
            k.bg_push(lambda i=i: one(i))
        else:
            one(i)


def W1_warm(k, vdst, full=True):
    g = G
    t = TMP
    k('s_lshr_b32 s%d, s2, 3' % g.s_tmp)
    k('s_lshl_b32 s%d, s%d, 2' % (g.s_tmp, g.s_tmp))
    k('s_add_u32 s%d, s%d, s3' % (g.s_tmp, g.s_tmp))
    k('v_lshrrev_b32 v%d, 3, v1' % t)
    k('v_mul_u32_u24 v%d, %d, v%d' % (t, F * 2, t))
    k('v_and_b32 v%d, 7, v1' % (t + 1))
    k('v_lshl_add_u32 v%d, v%d, 7, v%d' % (t, t + 1, t))
    if full:
        k('s_mul_i32 s%d, s%d, %d' % (S_T, g.s_tmp, 16 * F * 2))
    else:
        k('s_and_b32 s%d, s2, 1' % S_T)
        k('s_lshl_b32 s%d, s%d, 7' % (S_T, S_T))
        k('s_add_u32 s%d, s%d, s%d' % (S_T, S_T, g.s_tmp))
        k('s_mul_i32 s%d, s%d, %d' % (S_T, S_T, 8 * F * 2))
    k('s_bfe_u32 s%d, s2, 0x20001' % (S_T + 1))
    k('s_mul_i32 s%d, s%d, 896' % (S_T + 1, S_T + 1))
    k('s_add_u32 s%d, s%d, s%d' % (S_T, S_T, S_T + 1))
    k('s_mov_b32 exec_lo, 0x7f7f7f7f')
    k('s_mov_b32 exec_hi, 0x7f7f7f7f')
    k('buffer_load_dword v%d, v%d, %s, s%d offen' % (vdst, t, srd(SRD_W1), S_T))
    if full:
        k('s_add_u32 s%d, s%d, %d' % (S_T, S_T, 8 * F * 2))
        k('buffer_load_dword v%d, v%d, %s, s%d offen' % (vdst + 1, t, srd(SRD_W1), S_T))
    k('s_mov_b64 exec, -1')


def G_w_read(k, which, t, slot, areg):
    g = G
    va, vb = (g.vRa, g.vRb) if which == 1 else (g.vSa, g.vSb)
    sec = 1024
    assert k.slot_content[slot] == (which, t, 1), (k.slot_content[slot], which, t)
    k.wait_tag('slot%d' % slot)
    for i, v in enumerate((va, vb)):
        k('ds_read_b64_tr_b16 %s, v%d offset:%d' % (ar(areg + 4 * i, 2), v, slot * 2048), tag='rd%d' % slot)
        k('ds_read_b64_tr_b16 %s, v%d offset:%d' % (ar(areg + 4 * i + 2, 2), v, slot * 2048 + sec), tag='rd%d' % slot)


def G_a_setup(k, which):
    g = G
    nks = 128 if which == 1 else 112
    per = 32 if which == 1 else 28
    base = HH_OFF if which == 1 else U_OFF
    s_dt = g.s_dtC if which == 1 else g.s_dtD
    k('s_lshl_b32 s%d, s%d, 1' % (g.s_tmp, s_dt))
    k('s_and_b32 s%d, s3, 1' % g.s_t2)
    k('s_add_u32 s%d, s%d, s%d' % (g.s_a0, g.s_tmp, g.s_t2))
    k('s_xor_b32 s%d, s%d, 1' % (g.s_a1, g.s_a0))
    k('s_mul_i32 s%d, s3, %d' % (g.s_tmp, per * 1024))
    k('s_add_u32 s%d, s%d, 0x%x' % (g.s_tmp, g.s_tmp, base))
    for s_ in (g.s_a0, g.s_a1):
        k('s_mul_i32 s%d, s%d, %d' % (s_, s_, nks * 1024))
        k('s_add_u32 s%d, s%d, s%d' % (s_, s_, g.s_tmp))


def G_a_load(k, t, sc1='', vo=4, sd=SRD_WS):
    g = G
    if t and t % 4 == 0:
        k('s_add_u32 s%d, s%d, 4096' % (g.s_a0, g.s_a0))
        k('s_add_u32 s%d, s%d, 4096' % (g.s_a1, g.s_a1))
    r = g.RING + 8 * (t % g.NR)
    for i, s_ in enumerate((g.s_a0, g.s_a1)):
        k('buffer_load_dwordx4 %s, v%d, %s, s%d offen offset:%d %s' % (vr(r + 4 * i, 4), vo, srd(sd), s_, (t % 4) * 1024, sc1))


def G_mfma(k, t, areg):
    g = G
    r = g.RING + 8 * (t % g.NR)
    for iw in range(2):
        for ia in range(2):
            L = 2 * iw + ia
            a = vr(g.ACC + 16 * L, 16)
            c = '0' if (t == 0 and L != 0) else a
            k('v_mfma_f32_32x32x16_bf16 %s, %s, %s, %s' % (a, ar(areg + 4 * iw, 4), vr(r + 4 * ia, 4), c))


def C_init(k):
    g = G
    t = g.T
    k('v_lshrrev_b32 v%d, 5, v1' % t)
    k('v_lshlrev_b32 v%d, 3, v%d' % (t, t))
    k('s_lshl_b32 s%d, s%d, 7' % (g.s_tmp, g.s_ft))
    k('s_lshr_b32 s%d, s3, 1' % g.s_t2)
    k('s_lshl_b32 s%d, s%d, 6' % (g.s_t2, g.s_t2))
    k('s_add_u32 s%d, s%d, s%d' % (g.s_tmp, g.s_tmp, g.s_t2))
    for q in range(4):
        k('buffer_load_dwordx2 %s, v%d, %s, s%d offen offset:%d' % (vr(t + 2 + 2 * q, 2), t, srd(SRD_B1), g.s_tmp, 16 * q))


def C_init_finish(k):
    g = G
    t = g.T
    for q in range(4):
        for i in range(2):
            k('v_lshlrev_b32 v%d, 16, v%d' % (g.ACC + 4 * q + 2 * i, t + 2 + 2 * q + i))
            k('v_and_b32 v%d, 0xffff0000, v%d' % (g.ACC + 4 * q + 2 * i + 1, t + 2 + 2 * q + i))


def C_epilogue(k, lds_red, sc1=''):
    g = G
    t = g.T
    k.c('---- phase C epilogue')
    for L in range(1, 4):
        k('s_xor_b32 s%d, s3, %d' % (g.s_tmp, L))
        k('s_mul_i32 s%d, s%d, 12288' % (g.s_tmp, g.s_tmp))
        k('s_add_u32 s%d, s%d, %d' % (g.s_tmp, g.s_tmp, lds_red + (L - 1) * 4096))
        k('v_add_u32 v%d, s%d, v4' % (t + L, g.s_tmp))
    for L in range(1, 4):
        for q in range(4):
            k('ds_write_b128 v%d, %s offset:%d' % (t + L, vr(g.ACC + 16 * L + 4 * q, 4), q * 1024))
    k('s_mul_i32 s%d, s3, 12288' % g.s_tmp)
    k('s_add_u32 s%d, s%d, %d' % (g.s_tmp, g.s_tmp, lds_red))
    k('v_add_u32 v%d, s%d, v4' % (t, g.s_tmp))
    k('s_lshl_b32 s%d, s%d, 1' % (g.s_tmp, g.s_dtC))
    k('s_and_b32 s%d, s3, 1' % g.s_t2)
    k('s_add_u32 s%d, s%d, s%d' % (g.s_tmp, g.s_tmp, g.s_t2))
    k('s_mul_i32 s%d, s%d, 112' % (g.s_tmp, g.s_tmp))
    k('s_lshl_b32 s%d, s%d, 2' % (g.s_t2, g.s_ft))
    k('s_add_u32 s%d, s%d, s%d' % (g.s_tmp, g.s_tmp, g.s_t2))
    k('s_and_b32 s%d, s3, 2' % g.s_t2)
    k('s_add_u32 s%d, s%d, s%d' % (g.s_tmp, g.s_tmp, g.s_t2))
    k('s_lshl_b32 s%d, s%d, 10' % (g.s_tmp, g.s_tmp))
    k('s_add_u32 s%d, s%d, 0x%x' % (g.s_tmp, g.s_tmp, U_OFF))
    k.wait_lg(0)
    k.barrier()
    R = g.ACC + 16
    for q in range(4):
        for L in range(3):
            k('ds_read_b128 %s, v%d offset:%d' % (vr(R + 16 * L + 4 * q, 4), t, L * 4096 + q * 1024))
    c1 = -2.0 * 0.7978845608028654 * 1.4426950408889634
    c2 = c1 * 0.044715
    sc = 88
    k('s_mov_b32 s%d, %s' % (sc, f32(c1)))
    k('s_mov_b32 s%d, %s' % (sc + 2, f32(c2)))
    X2 = g.RING
    k('v_mov_b32 v%d, s%d' % (t + 4, sc))
    k('v_mov_b32 v%d, s%d' % (t + 5, sc))
    for half in range(2):
        for i in range(8 * half, 8 * half + 8, 2):
            a = g.ACC + i
            k('v_pk_add_f32 %s, %s, %s' % (vr(R + i, 2), vr(R + i, 2), vr(R + 16 + i, 2)))
            k('v_pk_add_f32 %s, %s, %s' % (vr(a, 2), vr(a, 2), vr(R + 32 + i, 2)))
        for i in range(8 * half, 8 * half + 8, 2):
            a = g.ACC + i
            k('v_pk_add_f32 %s, %s, %s' % (vr(a, 2), vr(a, 2), vr(R + i, 2)))
        for i in range(8 * half, 8 * half + 8, 2):
            a = g.ACC + i
            k('v_pk_mul_f32 %s, %s, %s' % (vr(X2 + i, 2), vr(a, 2), vr(a, 2)))
        for i in range(8 * half, 8 * half + 8, 2):
            k('v_pk_fma_f32 %s, %s, %s, %s op_sel_hi:[1,0,1]' % (vr(X2 + i, 2), vr(X2 + i, 2), sr(sc + 2, 2), vr(t + 4, 2)))
        for i in range(8 * half, 8 * half + 8, 2):
            k('v_pk_mul_f32 %s, %s, %s' % (vr(X2 + i, 2), vr(X2 + i, 2), vr(g.ACC + i, 2)))
        for i in range(8 * half, 8 * half + 8):
            k('v_exp_f32 v%d, v%d' % (X2 + i, X2 + i))
        for i in range(8 * half, 8 * half + 8, 2):
            k('v_pk_add_f32 %s, %s, 1.0 op_sel_hi:[1,0]' % (vr(X2 + i, 2), vr(X2 + i, 2)))
        for i in range(8 * half, 8 * half + 8):
            k('v_rcp_f32 v%d, v%d' % (X2 + i, X2 + i))
        for i in range(8 * half, 8 * half + 8, 2):
            k('v_pk_mul_f32 %s, %s, %s' % (vr(X2 + i, 2), vr(X2 + i, 2), vr(g.ACC + i, 2)))
        p = X2 + 16 + 4 * half
        for i in range(4):
            k('v_cvt_pk_bf16_f32 v%d, v%d, v%d' % (p + i, X2 + 8 * half + 2 * i, X2 + 8 * half + 2 * i + 1))
        k('buffer_store_dwordx4 %s, v%d, %s, s%d offen offset:%d %s' % (vr(p, 4), g.vCl, srd(SRD_WS), g.s_tmp, half * 1024, sc1), tag='ust')


def D_init(k, sc1=''):
    g = G
    t = g.T
    k('v_lshrrev_b32 v%d, 5, v1' % t)
    k('v_lshlrev_b32 v%d, 3, v%d' % (t, t))
    k('s_lshl_b32 s%d, s%d, 7' % (g.s_tmp, g.s_st))
    k('s_lshr_b32 s%d, s3, 1' % g.s_t2)
    k('s_lshl_b32 s%d, s%d, 6' % (g.s_t2, g.s_t2))
    k('s_add_u32 s%d, s%d, s%d' % (g.s_tmp, g.s_tmp, g.s_t2))
    for q in range(4):
        k('buffer_load_dwordx2 %s, v%d, %s, s%d offen offset:%d' % (vr(t + 2 + 2 * q, 2), t, srd(SRD_B2), g.s_tmp, 16 * q))


def D_init_finish(k):
    g = G
    t = g.T
    for q in range(4):
        for i in range(2):
            a = g.ACC + 4 * q + 2 * i
            k('v_lshlrev_b32 v%d, 16, v%d' % (a, t + 2 + 2 * q + i))
            k('v_and_b32 v%d, 0xffff0000, v%d' % (a + 1, t + 2 + 2 * q + i))
            k('v_lshlrev_b32 v%d, 16, v%d' % (t + 18, B.HK + 2 * q + i))
            k('v_and_b32 v%d, 0xffff0000, v%d' % (t + 19, B.HK + 2 * q + i))
            k('v_pk_add_f32 %s, %s, %s' % (vr(a, 2), vr(a, 2), vr(t + 18, 2)))


def D_epilogue(k, lds_red, stride):
    g = G
    t = g.T
    k.c('---- phase D epilogue')
    k('v_lshrrev_b32 v%d, 5, v1' % t)
    k('v_lshlrev_b32 v%d, 10, v%d' % (t, t))
    k('v_and_b32 v%d, 31, v1' % (t + 1))
    k('v_lshl_add_u32 v%d, v%d, 2, v%d' % (t, t + 1, t))
    k('s_lshr_b32 s%d, s3, 1' % g.s_t2)
    k('s_lshl_b32 s%d, s%d, 13' % (g.s_tmp, g.s_t2))
    k('s_and_b32 s%d, s3, 1' % g.s_t2)
    k('s_lshl_b32 s%d, s%d, 7' % (g.s_t2, g.s_t2))
    k('s_add_u32 s%d, s%d, s%d' % (g.s_tmp, g.s_tmp, g.s_t2))
    k('v_add_u32 v%d, s%d, v%d' % (t, g.s_tmp, t))
    k('v_xor_b32 v%d, 128, v%d' % (t + 1, t))
    k('v_xor_b32 v%d, 0x2000, v%d' % (t + 2, t))
    k('v_xor_b32 v%d, 0x2080, v%d' % (t + 3, t))
    k('s_mul_i32 s%d, s3, %d' % (g.s_tmp, stride))
    k('s_add_u32 s%d, s%d, %d' % (g.s_tmp, g.s_tmp, lds_red))
    for L in range(4):
        k('v_add_u32 v%d, s%d, v%d' % (t + L, g.s_tmp, t + L))
    k('s_lshl_b32 s%d, s3, 12' % g.s_tmp)
    k('s_add_u32 s%d, s%d, %d' % (g.s_tmp, g.s_tmp, lds_red))
    k('v_add_u32 v%d, s%d, v4' % (t + 4, g.s_tmp))
    k('v_add_u32 v%d, %d, v%d' % (t + 6, 2 * stride, t + 4))
    k('v_mul_u32_u24 v%d, 896, v3' % (t + 5))
    k('v_lshl_add_u32 v%d, v2, 3, v%d' % (t + 5, t + 5))
    k('s_lshl_b32 s%d, s%d, 2' % (g.s_tmp, g.s_st))
    k('s_add_u32 s%d, s%d, s3' % (g.s_tmp, g.s_tmp))
    k('s_mul_i32 s%d, s%d, %d' % (g.s_tmp, g.s_tmp, 16 * 896))
    k('s_lshl_b32 s%d, s%d, 7' % (g.s_t2, g.s_dtD))
    k('s_add_u32 s%d, s%d, s%d' % (g.s_tmp, g.s_tmp, g.s_t2))
    k('s_add_u32 s%d, s%d, %d' % (g.s_t2, g.s_tmp, 8 * 896))


def D_epilogue2(k, stride):
    g = G
    t = g.T
    for L in range(4):
        for q in range(4):
            for r in (0, 2):
                a = g.ACC + 16 * L + 4 * q + r
                k('ds_write2st64_b32 v%d, v%d, v%d offset0:%d offset1:%d' % (t + L, a, a + 1, 8 * q + r, 8 * q + r + 1))
    k.wait_lg(0)
    k.barrier()
    R = g.ACC
    for i in range(4):
        for w in range(4):
            k('ds_read_b128 %s, v%d offset:%d' % (vr(R + 16 * i + 4 * w, 4), t + 4 if w < 2 else t + 6, (w & 1) * stride + i * 1024))
    for i in range(4):
        r = R + 16 * i
        for j in (0, 2):
            k('v_pk_add_f32 %s, %s, %s' % (vr(r + j, 2), vr(r + j, 2), vr(r + 4 + j, 2)))
            k('v_pk_add_f32 %s, %s, %s' % (vr(r + 8 + j, 2), vr(r + 8 + j, 2), vr(r + 12 + j, 2)))
        for j in (0, 2):
            k('v_pk_add_f32 %s, %s, %s' % (vr(r + j, 2), vr(r + j, 2), vr(r + 8 + j, 2)))
        k('v_cvt_pk_bf16_f32 v%d, v%d, v%d' % (r + 4, r, r + 1))
        k('v_cvt_pk_bf16_f32 v%d, v%d, v%d' % (r + 5, r + 2, r + 3))
        k('buffer_store_dwordx2 %s, v%d, %s, s%d offen offset:%d' % (vr(r + 4, 2), t + 5, srd(SRD_OUT), g.s_t2 if i >= 2 else g.s_tmp, (i % 2) * 4 * 896))
```

```python
import sys, os
sys.path.insert(0, os.path.dirname(os.path.abspath(__file__)))
from dsl import Kernel
import phases as P

NAME = 'sequential_preLN__sliding_local_dilated__mixer_token_mlp__prompt'
HEADER = open(os.path.join(os.path.dirname(os.path.abspath(__file__)), '..', NAME + '.s.ref')).read().split('; Override launch')[0]


def wrap(kernels):
    out = [HEADER.rstrip('\n')]
    for label, k, grid, lds in kernels:
        if len(kernels) == 1 and label == NAME + '_kernel':
            out.append('; @launch grid=(%d,1,1) block=(256,1,1) lds=%d' % (grid, lds))
        else:
            out.append('; @launch kernel=%s grid=(%d,1,1) block=(256,1,1) lds=%d' % (label, grid, lds))
    out.append('.amdgcn_target "amdgcn-amd-amdhsa--gfx950"')
    out.append('.text')
    seen = []
    for label, k, grid, lds in kernels:
        if label in seen:
            continue
        seen.append(label)
        out.append('.globl %s\n.p2align 8\n.type %s,@function\n%s:' % (label, label, label))
        out.append(k.text())
    out.append('.section .rodata,"a"')
    seen = []
    for label, k, grid, lds in kernels:
        if label in seen:
            continue
        seen.append(label)
        nv = k.max_v + 1
        acc = (nv + 3) // 4 * 4
        tot = acc + k.max_a + 1 if k.max_a >= 0 else nv
        out.append('.p2align 6\n.amdhsa_kernel %s\n  .amdhsa_next_free_vgpr %d\n  .amdhsa_next_free_sgpr 102\n'
                   '  .amdhsa_accum_offset %d\n  .amdhsa_group_segment_fixed_size 0\n  .amdhsa_kernarg_size 88\n'
                   '  .amdhsa_user_sgpr_count 2\n  .amdhsa_user_sgpr_kernarg_segment_ptr 1\n'
                   '  .amdhsa_system_sgpr_workgroup_id_x 1\n.end_amdhsa_kernel' % (label, tot, acc))
        sys.stderr.write('%s: %d instrs, %d nops, v<=%d a<=%d s<=%d\n' % (label, k.n_ins, k.n_nops, k.max_v, k.max_a, k.max_s))
    return '\n'.join(out) + '\n'


def kernel_A(stamps=False):
    k = Kernel('A'); k.stamps = stamps
    P.prologue(k, 256, 'L_end_A', [P.ARG[n] for n in ('x', 'wqkv', 'ws')])
    P.stamp(k, 0)
    P.phaseA(k)
    P.stamp(k, 5)
    k.wait_vm(0)
    P.stamp(k, 6)
    k.label('L_end_A')
    k('s_endpgm')
    return ('phaseA_kernel', k, 256, P.A_LDS_END)


OPT = {}


def persist(stamps=False):
    k = Kernel('P'); k.stamps = stamps; k.scramble = OPT.get('scramble', False); k.xcctest = OPT.get('xcctest', False)
    end = 'L_end_P'
    g, b = P.G, P.B
    SC = 'sc1'
    vE, vF, vPA, vPB, vPC = 6, 8, 10, 11, 12
    sFA, sFB, sFC, sPA, sPB, sPC = 80, 81, 82, 83, 84, 85
    P.prologue(k, 256, end, [P.ARG[n] for n in ('x', 'wqkv', 'dbg', 'ws', 'wo', 'w1', 'w2', 'b1', 'b2', 'out')])
    P.stamp(k, 0)

    def areg(t):
        return 128 + 8 * t if t < 16 else 8 * (t - 16)

    def setup():
        P.G_map(k)
        P.B_setup(k)
        P.G_w_setup(k, 1, P.LDS_STG, P.STG_SZ)
        P.G_w_setup(k, 2, P.LDS_STG, P.STG_SZ)
        t = 79
        k('s_lshl_b32 s%d, s48, 2' % sFA)
        k('s_add_u32 s%d, s%d, s3' % (sFA, sFA))
        k('s_lshl_b32 s%d, s%d, 4' % (sFA, sFA))
        k('s_add_u32 s%d, s%d, s49' % (sFA, sFA))
        k('s_lshl_b32 s%d, s%d, 2' % (sFA, sFA))
        k('s_add_u32 s%d, s%d, 0x%x' % (sFA, sFA, P.FLAG_A))
        k('s_lshl_b32 s%d, s%d, 1' % (sPA, g.s_st))
        k('s_lshr_b32 s%d, s3, 1' % t)
        k('s_add_u32 s%d, s%d, s%d' % (sPA, sPA, t))
        k('s_lshl_b32 s%d, s%d, 6' % (sPA, sPA))
        k('s_add_u32 s%d, s%d, 0x%x' % (sPA, sPA, P.FLAG_A))
        k('v_lshlrev_b32 v%d, 2, v2' % vPA)
        k('s_lshl_b32 s%d, s%d, 9' % (sPB, g.s_dtC))
        k('s_add_u32 s%d, s%d, 0x%x' % (sPB, sPB, P.FLAG_B))
        k('s_lshl_b32 s%d, s%d, 2' % (sFB, g.s_st))
        k('s_add_u32 s%d, s%d, s3' % (sFB, sFB))
        k('s_lshl_b32 s%d, s%d, 2' % (sFB, sFB))
        k('s_add_u32 s%d, s%d, s%d' % (sFB, sFB, sPB))
        k('s_lshl_b32 s%d, s3, 7' % t)
        k('s_add_u32 s%d, s%d, s%d' % (sPB, sPB, t))
        k('v_and_b32 v%d, 31, v1' % vPB)
        k('v_lshlrev_b32 v%d, 2, v%d' % (vPB, vPB))
        k('s_lshl_b32 s%d, s%d, 9' % (sPC, g.s_dtC))
        k('s_add_u32 s%d, s%d, 0x%x' % (sPC, sPC, P.FLAG_C))
        k('s_lshl_b32 s%d, s%d, 2' % (sFC, g.s_ft))
        k('s_add_u32 s%d, s%d, s3' % (sFC, sFC))
        k('s_lshl_b32 s%d, s%d, 2' % (sFC, sFC))
        k('s_add_u32 s%d, s%d, s%d' % (sFC, sFC, sPC))
        k('s_mul_i32 s%d, s3, 112' % t)
        k('s_add_u32 s%d, s%d, s%d' % (sPC, sPC, t))
        k('v_min_u32 v%d, 27, v1' % vPC)
        k('v_lshlrev_b32 v%d, 2, v%d' % (vPC, vPC))
        k('v_mov_b32 v%d, 0' % (vF + 1))

    hooksA = {
        'A_pre': lambda: P.epoch_publish(k, vE),
        'A_after_issue': setup,
        'A_k8': lambda: (P.epoch_load(k, vE), P.B_xinit(k), P.W1_warm(k, 235, OPT.get('w1full', False))),
    }
    P.phaseA(k, SC, hooksA)
    P.stamp(k, 5)
    P.B_wo_dma(k)
    P.epoch_get(k, vE)
    P.B_xinit_finish(k)
    k.wait_tag('ost')
    P.flag_store(k, vF, sFA)
    P.stamp(k, 6)
    notag = k.newlabel('Lnotag')
    k('s_cmp_lt_u32 s%d, 99' % g.s_st)
    k.branch_fwd('s_cbranch_scc1', notag)
    P.agent(k)
    k('s_branch %s' % end)
    k.label(notag)
    k.wait_tag('wo')
    k.barrier()
    P.B_wo_read(k, 0)
    k.wait_lg(0)
    k.barrier()
    NS = P.NSLOT
    N1 = OPT.get('n1', 6)
    P.G_w_dma(k, 1, 0, N1, 0, 'w1a')
    P.flag_poll(k, vF, vPA, sPA)
    P.stamp(k, 10)

    def after_of():
        P.G_w_dma(k, 1, N1, NS - N1, N1, 'w1b', bg=True)
        for t in range(N1):
            P.G_w_read(k, 1, t, t, areg(t))
        P.G_w_dma(k, 1, NS, N1, 0, 'w1b', bg=True)

    def before_poll():
        k.bg_flush()
        for t in range(N1, NS + N1):
            P.G_w_read(k, 1, t, t % NS, areg(t))
        P.G_w_dma(k, 1, NS + N1, NS, 0, 'w1c')

    P.B_main(k, 0, P.LDS_MID, 0, SC, {'B_after_of': after_of, 'B_before_poll': before_poll})
    P.stamp(k, 14)
    for t in range(NS + N1, 2 * NS + N1):
        P.G_w_read(k, 1, t, t - NS - N1, areg(t))
    k.wait_vm(0)
    P.flag_store(k, vF, sFB)
    P.stamp(k, 15)
    R1 = 2 * NS + N1
    P.G_w_dma(k, 1, R1, 32 - R1, 0, 'w1d')
    P.C_init(k)
    P.G_a_setup(k, 1)
    P.flag_poll(k, vF, vPB, sPB)
    P.stamp(k, 16)
    UP = OPT.get('up', 6)
    for t in range(UP):
        P.G_a_load(k, t, SC, g.vCl)
    for tt in range(R1, 32):
        P.G_w_read(k, 1, tt, tt - R1, areg(tt))
    P.C_init_finish(k)
    nxt = UP
    for t in range(32):
        for _ in range(2):
            if nxt < 32 and nxt < t + 16:
                P.G_a_load(k, nxt, SC, g.vCl)
                nxt += 1
        P.G_mfma(k, t, areg(t))
        if t == 16:
            pass
        if 16 <= t < 16 + NS:
            P.G_w_dma(k, 2, t - 16, 1, t - 16, 'w2a')
        if t in (0, 7, 15):
            P.stamp(k, {0: 17, 7: 19, 15: 18}[t])
    P.stamp(k, 20)
    P.C_epilogue(k, P.LDS_MID, SC)
    P.stamp(k, 21)
    k('v_mov_b32 v%d, v%d' % (vF + 1, g.vCl))
    for t in range(NS):
        P.G_w_read(k, 2, t, t, areg(t))
    k.wait_tag('ust')
    P.flag_store(k, vF, sFC)
    P.stamp(k, 22)
    P.D_init(k, SC)
    P.G_w_dma(k, 2, NS, NS, 0, 'w2b')
    P.G_a_setup(k, 2)
    P.flag_poll(k, vF, vPC, sPC)
    P.stamp(k, 24)
    for t in range(UP):
        P.G_a_load(k, t, SC)
    P.D_init_finish(k)
    nxt = UP
    for t in range(28):
        for _ in range(2):
            if nxt < 28 and nxt < t + 16:
                P.G_a_load(k, nxt, SC)
                nxt += 1
        if t == 18:
            for tt in range(2 * NS, 28):
                P.G_w_read(k, 2, tt, tt - 2 * NS, areg(tt))
        P.G_mfma(k, t, areg(t))
        if t < NS // 2:
            for tt in (NS + 2 * t, NS + 1 + 2 * t):
                P.G_w_read(k, 2, tt, tt - NS, areg(tt))
        if t == 6:
            pass
        if 6 <= t < 6 + 28 - 2 * NS:
            P.G_w_dma(k, 2, 2 * NS + t - 6, 1, t - 6, 'w2c')
        if t == 9:
            P.D_epilogue(k, P.LDS_STG, P.STG_SZ)
        if t in (0, 7, 15):
            P.stamp(k, {0: 25, 7: 26, 15: 27}[t])
    P.stamp(k, 28)
    P.D_epilogue2(k, P.STG_SZ)
    P.stamp(k, 29)
    if stamps:
        k.wait_vm(0)
        P.stamp(k, 30)
    k.label(end)
    k('s_endpgm')
    return (NAME + '_kernel', k, 256, P.LDS_END)


if __name__ == '__main__':
    which = sys.argv[1] if len(sys.argv) > 1 else 'p'
    outp = sys.argv[2] if len(sys.argv) > 2 else os.path.join(os.path.dirname(os.path.abspath(__file__)), '..', NAME + '.s')
    for o in sys.argv[3:]:
        kk, vv = o.split('=')
        OPT[kk] = eval(vv)
    if which == 'p':
        ks = [persist()]
    elif which == 'p_dbg':
        ks = [persist('dbg')]
    elif which == 'p_st':
        P.ARG['ws'] = (P.SRD_WS, 80, 0x1000000)
        ks = [persist(True)]
    open(outp, 'w').write(wrap(ks))
```

```python
import struct
from dsl import Kernel, vr, ar, sr

S, D, H, DH, F = 2048, 448, 16, 28, 1792

OF_OFF = 0x000000
HH_OFF = 0x200000
U_OFF = 0x3C0000
STAT_OFF = 0x548000
FLAG_OFF = 0x588000
WS_SIZE = 0x590000
OOB = 0x40000000

SRD_X, SRD_WQKV, SRD_WO, SRD_W1, SRD_W2, SRD_B1, SRD_B2, SRD_OUT, SRD_WS, SRD_DBG = 8, 12, 16, 20, 24, 28, 32, 36, 40, 44
SRD_A = 96
S_WG, S_WAVE = 2, 3
S_EPOCH = 4
S_SPIN = 6
S_ONES = 5
S_T = 86
V_LANE, V_T16, V_G, V_L16 = 1, 2, 3, 4


def f32(x):
    return '0x%08x' % struct.unpack('<I', struct.pack('<f', x))[0]


def srd(base):
    return sr(base, 4)


def prologue(k, nwg, end_label, need):
    k('s_cmp_ge_u32 s2, %d' % nwg)
    k('s_cbranch_scc1 %s' % end_label)
    if getattr(k, 'scramble', False):
        k('s_and_b32 s3, s2, 7')
        k('s_lshl_b32 s3, s3, 5')
        k('s_lshr_b32 s2, s2, 3')
        k('s_or_b32 s2, s2, s3')
    for base, off, size in need:
        k('s_load_dwordx2 %s, s[0:1], %d' % (sr(base, 2), off))
    k('v_lshrrev_b32 v1, 6, v0')
    k('v_readfirstlane_b32 s3, v1')
    k('v_and_b32 v1, 63, v0')
    k('v_and_b32 v2, 15, v0')
    k('v_lshrrev_b32 v3, 4, v1')
    k('v_lshlrev_b32 v4, 4, v1')
    for base, off, size in need:
        k('s_mov_b32 s%d, 0x%x' % (base + 2, size))
        k('s_mov_b32 s%d, 0x00020000' % (base + 3))
    k('s_mov_b32 s%d, 0x3f803f80' % S_ONES)
    k('s_mov_b32 s%d, 0x40000' % S_SPIN)
    k.end_label = end_label


ARG = dict(x=(SRD_X, 0, S * D * 2), wqkv=(SRD_WQKV, 8, D * 3 * D * 2), wo=(SRD_WO, 16, D * D * 2),
           w1=(SRD_W1, 32, S * F * 2), b1=(SRD_B1, 40, F * 2), w2=(SRD_W2, 48, F * S * 2), b2=(SRD_B2, 56, S * 2),
           out=(SRD_OUT, 64, S * D * 2), dbg=(SRD_DBG, 72, 256), ws=(SRD_WS, 80, WS_SIZE))


def xgroup_reduce(k, regs, tmp, op='v_add_f32'):
    for swap in ('v_permlane32_swap_b32', 'v_permlane16_swap_b32'):
        for r, t in zip(regs, tmp):
            k('v_mov_b32 v%d, v%d' % (t, r))
        for r, t in zip(regs, tmp):
            k('%s v%d, v%d' % (swap, r, t))
        for r, t in zip(regs, tmp):
            k('%s v%d, v%d, v%d' % (op, r, r, t))


A_LDS_CS = 0
A_LDS_ST = 512
A_LDS_KV = 2048
A_LDS_W = 12288
A_LDS_X = 61440
A_XSLOT = [2, 1, 0, 3]
A_LDS_END = A_LDS_X + 4 * 18432
LDS_MID = 12288
LDS_STG = 77824
STG_SZ = 20480
NSLOT = 10
LDS_END = 163840
LDS_WO = 106496
TMP = 219


def xslot(grp):
    return A_XSLOT.index(grp % 4) * 18432


def phaseA(k, sc1='', hooks=None):
    hooks = hooks or {}
    XR = 16
    ACC = 136
    WF = 88
    ONES = 40
    SQ, SM = 48, 60
    vXl, vXu, vXh, vW, vA0, vA1, vH1, vH2 = 120, 121, 122, 123, 124, 125, 126, 127
    vRe, vRo, vHe, vHo = 128, 129, 130, 131
    vT = 237
    BP, BC, BPA = 240, 244, 248
    s_rb, s_head, s_t0, s_m0w, s_m0x, s_tmp = 48, 49, 50, 51, 52, 53
    s_hm = 54
    s_m0h = 7

    def hook(name):
        if name in hooks:
            hooks[name]()

    def xreg(j, blk):
        return XR + (j % 2) * 12 + blk * 4

    def acc(blk, nbi):
        return ACC + blk * 24 + nbi * 4
    H1, H2 = ACC + 48, ACC + 52

    k.c('---- phase A setup')
    k('s_bfe_u32 s%d, s2, 0x20001' % s_rb)
    k('s_lshl_b32 s%d, s%d, 2' % (s_rb, s_rb))
    k('s_lshr_b32 s%d, s2, 6' % s_tmp)
    k('s_add_u32 s%d, s%d, s%d' % (s_rb, s_rb, s_tmp))
    k('s_bfe_u32 s%d, s2, 0x30003' % s_head)
    k('s_and_b32 s%d, s2, 1' % s_tmp)
    k('s_lshl_b32 s%d, s%d, 3' % (s_tmp, s_tmp))
    k('s_add_u32 s%d, s%d, s%d' % (s_head, s_head, s_tmp))
    k('v_lshrrev_b32 v%d, 2, v1' % vT)
    k('v_mul_u32_u24 v%d, 2688, v%d' % (vW, vT))
    k('v_lshrrev_b32 v%d, 5, v1' % vT)
    k('v_lshlrev_b32 v%d, 1, v%d' % (vT, vT))
    k('v_and_b32 v%d, 3, v1' % (vT + 1))
    k('v_xor_b32 v%d, v%d, v%d' % (vT, vT, vT + 1))
    k('v_lshl_add_u32 v%d, v%d, 4, v%d' % (vW, vT, vW))
    k('s_mul_i32 s%d, s%d, 56' % (s_tmp, s_head))
    k('s_min_u32 s%d, s%d, 832' % (s_tmp, s_tmp))
    k('s_mul_i32 s%d, s3, %d' % (s_m0w, 16 * 2688))
    k('s_add_u32 s%d, s%d, s%d' % (s_tmp, s_tmp, s_m0w))
    k('v_add_u32 v%d, s%d, v%d' % (vW, s_tmp, vW))
    k('s_lshr_b32 s%d, s3, 1' % s_tmp)
    k('s_mul_i32 s%d, s%d, 6144' % (s_m0w, s_tmp))
    k('s_and_b32 s%d, s3, 1' % s_tmp)
    k('s_lshl_b32 s%d, s%d, 10' % (s_tmp, s_tmp))
    k('s_add_u32 s%d, s%d, s%d' % (s_m0w, s_m0w, s_tmp))
    k('v_lshrrev_b32 v%d, 3, v1' % vT)
    k('v_mul_u32_u24 v%d, 896, v%d' % (vXh, vT))
    k('v_and_b32 v%d, 7, v1' % vT)
    k('v_xor_b32 v%d, v%d, v3' % (vT, vT))
    k('v_lshl_add_u32 v%d, v%d, 4, v%d' % (vXl, vT, vXh))
    k('s_lshl_b32 s%d, s%d, 7' % (s_t0, s_rb))
    k('s_lshl_b32 s%d, s3, 5' % s_tmp)
    k('s_add_u32 s%d, s%d, s%d' % (s_tmp, s_tmp, s_t0))
    k('s_mul_i32 s%d, s%d, 896' % (s_tmp, s_tmp))
    k('v_xor_b32 v%d, 64, v%d' % (vXu, vXl))
    k('v_add_u32 v%d, s%d, v%d' % (vXl, s_tmp, vXl))
    k('s_add_u32 s%d, s%d, %d' % (s_tmp, s_tmp, 8 * 896))
    k('v_add_u32 v%d, s%d, v%d' % (vXu, s_tmp, vXu))
    k('s_lshl_b32 s%d, s3, 1' % s_tmp)
    k('v_xor_b32 v%d, s%d, v%d' % (vT, s_tmp, vT))
    k('v_lshl_add_u32 v%d, v%d, 4, v%d' % (vXh, vT, vXh))
    k('s_lshl_b32 s%d, s3, 2' % s_tmp)
    k('s_add_u32 s%d, s%d, s%d' % (s_tmp, s_tmp, s_t0))
    k('s_sub_u32 s%d, s%d, 16' % (s_tmp, s_tmp))
    k('s_mul_i32 s%d, s%d, 896' % (s_tmp, s_tmp))
    k('s_cmp_eq_u32 s%d, 0' % s_rb)
    k('s_cselect_b32 s%d, 0x%x, s%d' % (s_tmp, OOB, s_tmp))
    k('v_add_u32 v%d, s%d, v%d' % (vXh, s_tmp, vXh))
    k('s_lshl_b32 s%d, s3, 12' % s_m0x)
    k('s_add_u32 s%d, s%d, %d' % (s_m0x, s_m0x, A_LDS_X + 2048))
    k('s_lshl_b32 s%d, s3, 9' % s_m0h)
    k('s_cmp_eq_u32 s3, 0')
    k('s_cselect_b32 s%d, 0xffffff00, -1' % s_hm)
    k('s_mov_b32 s%d, 0' % (s_hm + 1))

    def dma_group(grp, bg=False):
        tag = 'G%d' % grp
        sd = B.s_dma

        def w_(p):
            k('s_add_u32 m0, s%d, %d' % (s_m0w, A_LDS_W + (grp % 4) * 12288 + p * 2048))
            k('s_mov_b32 s%d, %d' % (sd, grp * 64 * 2688 + p * 896))
            k('buffer_load_dwordx4 v%d, %s, s%d offen lds' % (vW, srd(SRD_WQKV), sd), tag=tag)

        def x_(i):
            k('s_add_u32 m0, s%d, %d' % (s_m0x, xslot(grp) + i * 1024))
            k('s_mov_b32 s%d, %d' % (sd, grp * 128 + (i >> 1) * 16 * 896))
            k('buffer_load_dwordx4 v%d, %s, s%d offen lds' % (vXu if i & 1 else vXl, srd(SRD_X), sd), tag=tag)

        def h_():
            k('s_add_u32 m0, s%d, %d' % (s_m0h, A_LDS_X + xslot(grp)))
            k('s_mov_b32 s%d, %d' % (sd, grp * 128))
            k('s_mov_b64 exec, %s' % sr(s_hm, 2))
            k('buffer_load_dwordx4 v%d, %s, s%d offen lds' % (vXh, srd(SRD_X), sd), tag=tag)
            k('s_mov_b64 exec, -1')
        fs = [lambda p=p: w_(p) for p in range(3)] + [lambda i=i: x_(i) for i in range(4)] + [h_]
        for f in fs:
            if bg:
                k.bg_push(f)
            else:
                f()

    hook('A_pre')
    for p in range(2):
        dma_group(p)
    k('s_lshr_b32 s%d, s2, 3' % s_tmp)
    k('s_lshl_b32 s%d, s%d, 2' % (s_tmp, s_tmp))
    k('s_add_u32 s%d, s%d, s3' % (s_tmp, s_tmp))
    k('s_mul_i32 s%d, s%d, 30' % (S_T, s_tmp))
    k('v_add_u32 v%d, s%d, v1' % (vT, S_T))
    k('v_mul_u32_u24 v%d, 43691, v%d' % (vT + 1, vT))
    k('v_lshrrev_b32 v%d, 19, v%d' % (vT + 1, vT + 1))
    k('v_mul_u32_u24 v%d, 12, v%d' % (vT + 2, vT + 1))
    k('v_sub_u32 v%d, v%d, v%d' % (vT + 2, vT, vT + 2))
    k('v_lshrrev_b32 v%d, 2, v%d' % (vT + 2, vT + 2))
    k('v_mul_u32_u24 v%d, 896, v%d' % (vT + 2, vT + 2))
    k('v_mul_u32_u24 v%d, 2688, v%d' % (vT + 1, vT + 1))
    k('v_and_b32 v%d, 3, v%d' % (vT, vT))
    k('v_lshlrev_b32 v%d, 7, v%d' % (vT, vT))
    k('v_add3_u32 v%d, v%d, v%d, v%d' % (vT, vT, vT + 1, vT + 2))
    k('s_and_b32 s%d, s2, 1' % S_T)
    k('s_mul_i32 s%d, s%d, 384' % (S_T, S_T))
    k('s_add_u32 s%d, s%d, %d' % (S_T, S_T, 128 * 2688))
    k('s_mov_b64 exec, 0x3fffffff')
    k('buffer_load_dword v232, v%d, %s, s%d offen' % (vT, srd(SRD_WQKV), S_T))
    k('s_mov_b64 exec, -1')
    k('v_lshlrev_b32 v%d, 7, v1' % vT)
    k('s_mul_i32 s%d, s%d, %d' % (S_T, s_tmp, 29 * 128))
    k('s_bfe_u32 s%d, s2, 0x20001' % (S_T + 1))
    k('s_mul_i32 s%d, s%d, %d' % (S_T + 1, S_T + 1, 512 * 896))
    k('s_add_u32 s%d, s%d, s%d' % (S_T, S_T, S_T + 1))
    k('s_max_u32 s%d, s%d, %d' % (S_T, S_T, 16 * 896))
    k('s_sub_u32 s%d, s%d, %d' % (S_T, S_T, 16 * 896))
    k('s_mov_b64 exec, 0x1fffffff')
    k('buffer_load_dword v233, v%d, %s, s%d offen' % (vT, srd(SRD_X), S_T))
    k('s_mov_b64 exec, -1')
    k('s_mul_i32 s%d, s%d, 14' % (S_T, s_tmp))
    k('v_add_u32 v%d, s%d, v1' % (vT, S_T))
    k('v_lshrrev_b32 v%d, 2, v%d' % (vT + 1, vT))
    k('v_mul_u32_u24 v%d, 896, v%d' % (vT + 1, vT + 1))
    k('v_and_b32 v%d, 3, v%d' % (vT, vT))
    k('v_lshl_add_u32 v%d, v%d, 7, v%d' % (vT, vT, vT + 1))
    k('s_and_b32 s%d, s2, 1' % S_T)
    k('s_lshl_b32 s%d, s%d, 9' % (S_T, S_T))
    k('s_mov_b64 exec, 0x3fff')
    k('buffer_load_dword v234, v%d, %s, s%d offen' % (vT, srd(SRD_WO), S_T))
    k('s_mov_b64 exec, -1')
    k('v_mul_u32_u24 v%d, 18432, v3' % vT)
    k('v_lshl_add_u32 v%d, v2, 3, v%d' % (vT, vT))
    k('v_mov_b32 v%d, s%d' % (vT + 1, S_ONES))
    k('v_add_u32 v%d, %d, v%d' % (vT, A_LDS_X, vT))
    k('ds_write2_b32 v%d, v%d, v%d offset0:0 offset1:1' % (vT, vT + 1, vT + 1))
    hook('A_after_issue')

    k('v_lshlrev_b32 v%d, 9, v3' % vA0)
    k('v_bfe_u32 v%d, v1, 2, 2' % vT)
    k('v_lshl_add_u32 v%d, v%d, 6, v%d' % (vA0, vT, vA0))
    k('v_and_b32 v%d, 3, v1' % vT)
    k('v_lshl_add_u32 v%d, v%d, 3, v%d' % (vA0, vT, vA0))
    k('v_and_b32 v%d, 1, v3' % vT)
    k('v_lshlrev_b32 v%d, 5, v%d' % (vT, vT))
    k('v_add_u32 v%d, v%d, v%d' % (vA0, vA0, vT))
    k('v_add_u32 v%d, %d, v%d' % (vA0, A_LDS_W, vA0))
    k('v_xor_b32 v%d, 32, v%d' % (vA1, vA0))
    k('s_and_b32 s%d, s3, 1' % s_tmp)
    k('s_lshl_b32 s%d, s%d, 5' % (s_tmp, s_tmp))
    k('v_xor_b32 v%d, s%d, v%d' % (vH2, s_tmp, vA0))
    k('s_lshr_b32 s%d, s3, 1' % s_tmp)
    k('s_lshl_b32 s%d, s%d, 11' % (s_tmp, s_tmp))
    k('s_add_u32 s%d, s%d, 2048' % (s_tmp, s_tmp))
    k('v_add_u32 v%d, s%d, v%d' % (vH1, s_tmp, vH2))
    k('v_lshrrev_b32 v%d, 1, v2' % vT)
    k('v_xor_b32 v%d, v%d, v3' % (vT, vT))
    k('v_lshlrev_b32 v%d, 4, v%d' % (vT, vT))
    k('v_lshl_add_u32 v%d, v2, 7, v%d' % (vT, vT))
    k('v_add_u32 v%d, %d, v%d' % (vHe, A_LDS_X, vT))
    k('v_xor_b32 v%d, 64, v%d' % (vHo, vHe))
    k('v_add_u32 v%d, s%d, v%d' % (vRe, s_m0x, vT))
    k('v_xor_b32 v%d, 64, v%d' % (vRo, vRe))
    k('v_lshlrev_b32 v%d, 2, v3' % vT)
    k('v_sub_u32 v%d, v2, v%d' % (vT, vT))
    k('v_mov_b32 v%d, %s' % (vT + 2, f32(-1e30)))
    for which, base in ((16, BP), (0, BC)):
        for r in range(4):
            k('v_add_u32 v%d, %d, v%d' % (vT + 1, which - r, vT))
            k('v_and_b32 v%d, 0xfffffff1, v%d' % (vT + 1, vT + 1))
            k('v_cmp_eq_u32 vcc, 0, v%d' % (vT + 1))
            k('v_cndmask_b32 v%d, v%d, 0, vcc' % (base + r, vT + 2))
    k('s_or_b32 s%d, s%d, s3' % (s_tmp, s_rb))
    k('s_cmp_eq_u32 s%d, 0' % s_tmp)
    k('s_cselect_b64 vcc, -1, 0')
    for r in range(4):
        k('v_cndmask_b32 v%d, v%d, v%d, vcc' % (BPA + r, BP + r, vT + 2))
    for i in range(4):
        k('v_mov_b32 v%d, s%d' % (ONES + i, S_ONES))

    frag_addr = [(vA0, 0), (vA1, 0), (vA0, 2048), (vA1, 2048), (vA0, 4096), (vA1, 4096), (vH1, 0), (vH2, 0)]

    def read_frag(f, j, h=None):
        va, off = frag_addr[f]
        o = (j % 8) * 6144 + off
        for hh in ((0, 1) if h is None else (h,)):
            k('ds_read_b64_tr_b16 %s, v%d offset:%d' % (vr(WF + 4 * f + 2 * hh, 2), va, o + 256 * hh))

    def read_x(j, blk=None):
        o = xslot(j // 2)
        for b_ in (range(3) if blk is None else (blk,)):
            if b_ < 2:
                k('ds_read_b128 %s, v%d offset:%d' % (vr(xreg(j, b_), 4), vRo if j & 1 else vRe, o + 2048 * b_))
            else:
                k('ds_read_b128 %s, v%d offset:%d' % (vr(xreg(j, 2), 4), vHo if j & 1 else vHe, o))

    stamp(k, 1)
    k.wait_tag('G0')
    k.wait_lg(0)
    k.barrier()
    stamp(k, 2)
    read_x(0)
    for f in range(8):
        read_frag(f, 0)
    dma_group(2, bg=True)
    k.lg_slack = 6
    for j in range(14):
        k.c('kstep %d' % j)
        if j + 1 < 14 and (j + 1) % 2 == 0:
            k.bg_flush()
            k.wait_tag('G%d' % ((j + 1) // 2))
            k.barrier()
            if (j + 5) // 2 < 7:
                dma_group((j + 5) // 2, bg=True)
            hook('A_b%d' % j)
        mf = []
        for f in range(8):
            w = vr(WF + 4 * f, 4)
            if f < 6:
                for blk in range(2):
                    a = vr(acc(blk, f), 4)
                    x = vr(xreg(j, blk), 4)
                    c = '0' if j == 0 else a
                    if f < 4:
                        mf.append(('v_mfma_f32_16x16x32_bf16 %s, %s, %s, %s' % (a, w, x, c), f if blk else -1))
                    else:
                        mf.append(('v_mfma_f32_16x16x32_bf16 %s, %s, %s, %s' % (a, x, w, c), f if blk else -1))
            else:
                a = vr(H1 if f == 6 else H2, 4)
                c = '0' if j == 0 else a
                mf.append(('v_mfma_f32_16x16x32_bf16 %s, %s, %s, %s' % (a, w, vr(xreg(j, 2), 4), c), f))
        for f in range(6):
            x = vr(xreg(j, f % 3), 4)
            a = vr((SQ if f < 3 else SM) + 4 * (f % 3), 4)
            mf.append(('v_mfma_f32_16x16x32_bf16 %s, %s, %s, %s' % (a, x if f < 3 else vr(ONES, 4), x, '0' if j == 0 else a), -1))
        fill = []
        if j + 1 < 14:
            fill += [lambda i=i: read_x(j + 1, i) for i in range(3)]
        for i, (txt, done) in enumerate(mf):
            k(txt)
            if done >= 0 and j + 1 < 14:
                fill += [lambda f=done, h=h: read_frag(f, j + 1, h) for h in range(2)]
            if fill:
                fill.pop(0)()
            if i % 5 == 4:
                k.bg()
        for f_ in fill:
            f_()
        if j == 6:
            stamp(k, 3)
        hook('A_k%d' % j)

    k.lg_slack = 0
    k.c('---- phase A epilogue')
    stamp(k, 4)
    T = XR
    s_m = 88
    for i, mk in enumerate((0x22222222, 0x44444444, 0x88888888)):
        k('s_mov_b32 s%d, 0x%x' % (s_m + 2 * i, mk))
        k('s_mov_b32 s%d, 0x%x' % (s_m + 2 * i + 1, mk))
    vAd = T + 16
    k('v_lshlrev_b32 v%d, 4, v3' % vAd)
    k('s_lshl_b32 s%d, s3, 6' % s_tmp)
    k('v_add_u32 v%d, s%d, v%d' % (vAd + 1, s_tmp, vAd))
    k('s_and_b32 s%d, s%d, 64' % (s_tmp, s_tmp))
    k('v_add_u32 v%d, s%d, v%d' % (vAd + 2, s_tmp, vAd))
    k('s_mul_i32 s%d, s3, 384' % s_tmp)
    k('v_lshl_add_u32 v%d, v2, 2, s%d' % (vAd + 3, s_tmp))
    k('v_add_u32 v%d, s%d, v%d' % (vAd + 4, s_tmp, vAd))
    k('s_mov_b32 exec_lo, 0x00010001')
    k('s_mov_b32 exec_hi, 0x00010001')
    k('ds_write_b128 v%d, %s offset:%d' % (vAd + 1, vr(H1, 4), A_LDS_CS + 128))
    k('ds_write_b128 v%d, %s offset:%d' % (vAd + 2, vr(H2, 4), A_LDS_CS))
    k('s_mov_b64 exec, -1')
    RR = T + 8
    for i in range(3):
        for blk in range(3):
            k('v_cndmask_b32 v%d, v%d, v%d, %s' % (SQ + 4 * blk, SQ + 4 * blk, SQ + 4 * blk + 1 + i, sr(s_m + 2 * i, 2)))
    for blk in range(3):
        k('v_mul_f32 v%d, %s, v%d' % (RR + 2 * blk + 1, f32(1.0 / D), SM + 4 * blk))
    for blk in range(3):
        k('v_mul_f32 v%d, v%d, v%d' % (RR + 2 * blk, RR + 2 * blk + 1, RR + 2 * blk + 1))
    for blk in range(3):
        k('v_mul_f32 v%d, %s, v%d' % (SQ + 4 * blk, f32(1.0 / D), SQ + 4 * blk))
    for blk in range(3):
        k('v_sub_f32 v%d, v%d, v%d' % (RR + 2 * blk, SQ + 4 * blk, RR + 2 * blk))
    for blk in range(3):
        k('v_max_f32 v%d, 0, v%d' % (RR + 2 * blk, RR + 2 * blk))
    for blk in range(3):
        k('v_add_f32 v%d, %s, v%d' % (RR + 2 * blk, f32(1e-5), RR + 2 * blk))
    for blk in range(3):
        k('v_rsq_f32 v%d, v%d' % (RR + 2 * blk, RR + 2 * blk))
    k('s_mov_b32 exec_lo, 0x00f0000f')
    k('s_mov_b32 exec_hi, 0xf0000f00')
    for blk in range(3):
        k('ds_write2_b32 v%d, v%d, v%d offset0:%d offset1:%d' % (vAd + 3, RR + 2 * blk, RR + 2 * blk + 1,
                                                               A_LDS_ST // 4 + 32 * blk, A_LDS_ST // 4 + 32 * blk + 16))
    k('s_mov_b64 exec, -1')
    HC = T + 24
    for r in range(4):
        k('v_mov_b32_dpp v%d, v%d row_newbcast:0 row_mask:0xf bank_mask:0xf' % (HC + r, H1 + r))
    vK, vV = T + 28, T + 29
    k('s_and_b32 s%d, s3, 1' % s_tmp)
    k('s_lshl_b32 s%d, s%d, 3' % (s_tmp, s_tmp))
    k('v_add_u32 v%d, s%d, v4' % (vK, s_tmp))
    k('v_lshrrev_b32 v%d, 2, v2' % vV)
    k('v_lshlrev_b32 v%d, 8, v%d' % (vV, vV))
    k('v_lshl_add_u32 v%d, v3, 6, v%d' % (vV, vV))
    k('v_and_b32 v%d, 3, v2' % (vV + 1))
    k('v_lshl_add_u32 v%d, v%d, 1, v%d' % (vV, vV + 1, vV))
    k('v_add_u32 v%d, s%d, v%d' % (vV, s_tmp, vV))
    k('v_add_u32 v%d, 1024, v%d' % (vV, vV))
    k('s_cmp_lt_u32 s3, 2')
    k('s_cselect_b64 vcc, -1, 0')
    k('s_cselect_b32 s%d, 2, 16' % s_tmp)
    k('v_cndmask_b32 v%d, v%d, v%d, vcc' % (vK, vV, vK))
    k('v_add_u32 v%d, s%d, v%d' % (vK + 1, s_tmp, vK))
    k('v_add_u32 v%d, s%d, v%d' % (vK + 2, s_tmp, vK + 1))
    k('v_add_u32 v%d, s%d, v%d' % (vK + 3, s_tmp, vK + 2))
    for r in (0, 2):
        k('v_pk_fma_f32 %s, %s, %s, %s op_sel:[0,1,0] op_sel_hi:[1,1,1] neg_lo:[0,1,0] neg_hi:[0,1,0]' % (
            vr(HC + r, 2), vr(HC + r, 2), vr(RR + 4, 2), vr(H1 + r, 2)))
    k('v_lshlrev_b32 v%d, 2, v2' % (vAd + 1))
    k('s_lshl_b32 s%d, s3, 11' % s_tmp)
    k('v_add_u32 v%d, s%d, v4' % (vAd + 2, s_tmp))
    k('s_cmp_eq_u32 s%d, 15' % s_head)
    k('s_cselect_b32 s%d, 0xffff0000, -1' % s_m)
    k('s_mov_b32 s%d, -1' % (s_m + 1))
    k('s_mov_b32 s%d, -1' % (s_m + 2))
    k('s_cselect_b32 s%d, -1, 0xffff' % (s_m + 3))
    k.wait_lg(0)
    k.barrier()
    stamp(k, 7)
    hook('A_e1')
    CS = T + 32
    CSV = T + 48
    L2 = T + 52
    for blk in (1, 2, 0):
        k('ds_read_b32 v%d, v%d offset:%d' % (RR + 2 * blk, vAd + 3, A_LDS_ST + 128 * blk))
    for s_ in (2, 3):
        k('ds_read_b128 %s, v%d offset:%d' % (vr(CS + 4 * s_, 4), vAd, A_LDS_CS + 64 * s_))
    k('ds_read_b32 v%d, v%d offset:%d' % (CSV, vAd + 1, A_LDS_CS + 256))
    k('ds_read_b32 v%d, v%d offset:%d' % (CSV + 1, vAd + 1, A_LDS_CS + 320))
    for blk in (1, 0):
        k('ds_read_b128 %s, v%d offset:%d' % (vr(L2 + 8 * blk + 4, 4), vAd + 4, A_LDS_ST + blk * 128 + 64))
        k('ds_read_b128 %s, v%d offset:%d' % (vr(L2 + 8 * blk, 4), vAd + 4, A_LDS_ST + blk * 128))
    for s_ in (0, 1):
        k('ds_read_b128 %s, v%d offset:%d' % (vr(CS + 4 * s_, 4), vAd, A_LDS_CS + 64 * s_))
    RQ = T + 68
    qs = (DH ** -0.5) * 1.4426950408889634
    QT = T + 72
    KT = T + 80
    VV = T + 92

    def fix_qk(blk, nbi, scale_reg, dst):
        a = acc(blk, nbi)
        hi = scale_reg & 1
        for r in (0, 2):
            k('v_pk_fma_f32 %s, %s, %s, %s op_sel:[0,1,0] op_sel_hi:[1,1,1] neg_lo:[0,1,0] neg_hi:[0,1,0]' % (
                vr(a + r, 2), vr(CS + 4 * nbi + r, 2), vr(RR + 2 * blk, 2), vr(a + r, 2)))
        for r in (0, 2):
            k('v_pk_mul_f32 %s, %s, %s op_sel:[0,%d] op_sel_hi:[1,%d]' % (vr(a + r, 2), vr(a + r, 2), vr(scale_reg - hi, 2), hi, hi))
        k('v_cvt_pk_bf16_f32 v%d, v%d, v%d' % (dst, a, a + 1))
        k('v_cvt_pk_bf16_f32 v%d, v%d, v%d' % (dst + 1, a + 2, a + 3))
        k.bg()

    def fix_v(blk, nb):
        a = acc(blk, 4 + nb)
        for r in (0, 2):
            k('v_pk_fma_f32 %s, %s, %s, %s op_sel:[0,%d,0] op_sel_hi:[1,%d,1] neg_lo:[0,1,0] neg_hi:[0,1,0]' % (
                vr(a + r, 2), vr(L2 + 8 * blk + 4 + r, 2), vr(CSV, 2), vr(a + r, 2), nb, nb))
        for r in (0, 2):
            k('v_pk_mul_f32 %s, %s, %s' % (vr(a + r, 2), vr(a + r, 2), vr(L2 + 8 * blk + r, 2)))
        dst = VV + 6 * nb + 2 + 2 * blk
        k('v_cvt_pk_bf16_f32 v%d, v%d, v%d' % (dst, a, a + 1))
        k('v_cvt_pk_bf16_f32 v%d, v%d, v%d' % (dst + 1, a + 2, a + 3))
        k.bg()

    fix_qk(1, 2, RR + 2, KT + 8)
    fix_qk(1, 3, RR + 2, KT + 10)
    k('ds_write_b128 v%d, %s offset:%d' % (vAd + 2, vr(KT + 8, 4), A_LDS_KV + 2048))
    for r in (0, 2):
        k('v_pk_mul_f32 %s, %s, %s op_sel_hi:[1,0]' % (vr(HC + r, 2), vr(HC + r, 2), vr(RR + 4, 2)))
    k('v_cvt_pk_bf16_f32 v%d, v%d, v%d' % (HC, HC, HC + 1))
    k('v_cvt_pk_bf16_f32 v%d, v%d, v%d' % (HC + 2, HC + 2, HC + 3))
    k('ds_write_b16 v%d, v%d offset:%d' % (vK, HC, A_LDS_KV))
    k('ds_write_b16_d16_hi v%d, v%d offset:%d' % (vK + 1, HC, A_LDS_KV))
    k('ds_write_b16 v%d, v%d offset:%d' % (vK + 2, HC + 2, A_LDS_KV))
    k('ds_write_b16_d16_hi v%d, v%d offset:%d' % (vK + 3, HC + 2, A_LDS_KV))
    fix_v(1, 0)
    fix_v(1, 1)
    k('ds_write_b64 v%d, %s offset:%d' % (vAd + 2, vr(VV + 4, 2), A_LDS_KV + 2048 + 1024))
    k('ds_write_b64 v%d, %s offset:%d' % (vAd + 2, vr(VV + 10, 2), A_LDS_KV + 2048 + 1024 + 8))
    for blk in range(2):
        k('v_mul_f32 v%d, %s, v%d' % (RQ + 2 * blk, f32(qs), RR + 2 * blk))
    for blk in range(2):
        k('v_cndmask_b32 v%d, 0, v%d, %s' % (RQ + 2 * blk + 1, RQ + 2 * blk, sr(s_m + 2, 2)))
        k('v_cndmask_b32 v%d, 0, v%d, %s' % (RQ + 2 * blk, RQ + 2 * blk, sr(s_m, 2)))
    fix_qk(0, 2, RR + 0, KT + 4)
    fix_qk(0, 3, RR + 0, KT + 6)
    k.wait_lg(0)
    k.barrier()
    stamp(k, 8)
    k('ds_read_b128 %s, v%d offset:%d' % (vr(KT, 4), vAd + 2, A_LDS_KV))
    k('ds_read_b64 %s, v%d offset:%d' % (vr(VV, 2), vAd + 2, A_LDS_KV + 1024))
    k('ds_read_b64 %s, v%d offset:%d' % (vr(VV + 6, 2), vAd + 2, A_LDS_KV + 1024 + 8))
    fix_qk(1, 0, RQ + 2, QT + 4)
    fix_qk(1, 1, RQ + 3, QT + 6)
    SS = T + 104
    k('v_mfma_f32_16x16x32_bf16 %s, %s, %s, %s' % (vr(SS + 8, 4), vr(KT + 4, 4), vr(QT + 4, 4), vr(BP, 4)))
    k('v_mfma_f32_16x16x32_bf16 %s, %s, %s, %s' % (vr(SS + 12, 4), vr(KT + 8, 4), vr(QT + 4, 4), vr(BC, 4)))
    fix_qk(0, 0, RQ + 0, QT + 0)
    fix_qk(0, 1, RQ + 1, QT + 2)
    k('v_mfma_f32_16x16x32_bf16 %s, %s, %s, %s' % (vr(SS + 0, 4), vr(KT + 0, 4), vr(QT, 4), vr(BPA, 4)))
    k('v_mfma_f32_16x16x32_bf16 %s, %s, %s, %s' % (vr(SS + 4, 4), vr(KT + 4, 4), vr(QT, 4), vr(BC, 4)))
    fix_v(0, 0)
    fix_v(0, 1)
    MX = ACC
    TM = ACC + 2
    for blk in (1, 0):
        s_ = SS + 8 * blk
        k('v_max3_f32 v%d, v%d, v%d, v%d' % (MX + blk, s_, s_ + 1, s_ + 2))
        k('v_max3_f32 v%d, v%d, v%d, v%d' % (TM + blk, s_ + 3, s_ + 4, s_ + 5))
        k('v_max3_f32 v%d, v%d, v%d, v%d' % (MX + blk, MX + blk, s_ + 6, s_ + 7))
        k('v_max_f32 v%d, v%d, v%d' % (MX + blk, MX + blk, TM + blk))
    k.bg()
    xgroup_reduce(k, [MX, MX + 1], [TM, TM + 1], op='v_max_f32')
    k.bg_flush()
    stamp(k, 9)
    SUM = ACC + 4
    PP = ACC + 8
    OO = ACC + 16
    for blk in (1, 0):
        s_ = SS + 8 * blk
        for i in range(0, 8, 2):
            k('v_pk_add_f32 %s, %s, %s op_sel:[0,%d] op_sel_hi:[1,%d] neg_lo:[0,1] neg_hi:[0,1]' % (vr(s_ + i, 2), vr(s_ + i, 2), vr(MX, 2), blk, blk))
        for i in range(8):
            k('v_exp_f32 v%d, v%d' % (s_ + i, s_ + i))
        for i in range(4):
            k('v_cvt_pk_bf16_f32 v%d, v%d, v%d' % (PP + 4 * blk + i, s_ + 2 * i, s_ + 2 * i + 1))
        for nb in range(2):
            k('v_mfma_f32_16x16x32_bf16 %s, %s, %s, 0' % (vr(OO + 8 * blk + 4 * nb, 4), vr(VV + 6 * nb + 2 * blk, 4),
                                                          vr(PP + 4 * blk, 4)))
    for blk in range(2):
        s_ = SS + 8 * blk
        k('v_pk_add_f32 %s, %s, %s' % (vr(s_, 2), vr(s_, 2), vr(s_ + 2, 2)))
        k('v_pk_add_f32 %s, %s, %s' % (vr(s_ + 4, 2), vr(s_ + 4, 2), vr(s_ + 6, 2)))
    for blk in range(2):
        s_ = SS + 8 * blk
        k('v_pk_add_f32 %s, %s, %s' % (vr(s_, 2), vr(s_, 2), vr(s_ + 4, 2)))
    for blk in range(2):
        s_ = SS + 8 * blk
        k('v_add_f32 v%d, v%d, v%d' % (SUM + 2 * blk, s_, s_ + 1))
    xgroup_reduce(k, [SUM, SUM + 2], [TM, TM + 1])
    for blk in range(2):
        k('v_rcp_f32 v%d, v%d' % (SUM + 2 * blk, SUM + 2 * blk))
    for blk in range(2):
        k('v_cndmask_b32 v%d, 0, v%d, %s' % (SUM + 2 * blk + 1, SUM + 2 * blk, sr(s_m + 2, 2)))
        k('v_cndmask_b32 v%d, 0, v%d, %s' % (SUM + 2 * blk, SUM + 2 * blk, sr(s_m, 2)))
    k('s_lshl_b32 s%d, s%d, 3' % (s_tmp, s_rb))
    k('s_lshl_b32 s%d, s3, 1' % s_t0)
    k('s_add_u32 s%d, s%d, s%d' % (s_tmp, s_tmp, s_t0))
    k('s_lshl_b32 s%d, s%d, 4' % (s_tmp, s_tmp))
    k('s_add_u32 s%d, s%d, s%d' % (s_tmp, s_tmp, s_head))
    k('s_lshl_b32 s%d, s%d, 10' % (s_tmp, s_tmp))
    if OF_OFF:
        k('s_add_u32 s%d, s%d, 0x%x' % (s_tmp, s_tmp, OF_OFF))
    k('s_add_u32 s%d, s%d, 16384' % (s_t0, s_tmp))
    for blk in range(2):
        o = OO + 8 * blk
        for r in (0, 2):
            k('v_pk_mul_f32 %s, %s, %s op_sel_hi:[1,0]' % (vr(o + r, 2), vr(o + r, 2), vr(SUM + 2 * blk, 2)))
        for r in (0, 2):
            k('v_pk_mul_f32 %s, %s, %s op_sel:[0,1] op_sel_hi:[1,1]' % (vr(o + 4 + r, 2), vr(o + 4 + r, 2), vr(SUM + 2 * blk, 2)))
        p = PP + 4 * blk
        for i in range(4):
            k('v_cvt_pk_bf16_f32 v%d, v%d, v%d' % (p + i, o + 2 * i, o + 2 * i + 1))
        k('buffer_store_dwordx4 %s, v4, %s, s%d offen %s' % (vr(p, 4), srd(SRD_WS), s_tmp if blk == 0 else s_t0, sc1), tag='ost')


STAMP_OFF = 0xA00000


DST = {5: 1, 10: 2, 15: 3, 16: 4, 22: 5, 24: 6, 29: 7}


def dstamp(k, idx, vtmp=253, stmp=74):
    if idx not in DST and idx != 0:
        return
    slot = DST.get(idx, 0)
    k('s_memrealtime %s' % sr(stmp, 2))
    k('s_cmp_eq_u32 s2, 131')
    k('s_cselect_b32 s%d, %d, %s' % (stmp + 4, 32 + 4 * slot, '0x%x' % OOB))
    if slot:
        k('s_cmp_eq_u32 s2, 0')
        k('s_cselect_b32 s%d, %d, s%d' % (stmp + 4, 4 * slot, stmp + 4))
    k('v_mov_b32 v%d, s%d' % (vtmp + 2, stmp + 4))
    k('v_mov_b32 v%d, s%d' % (vtmp, stmp))
    k('s_cmp_eq_u32 s3, 0')
    k('s_cselect_b64 exec, 1, 0')
    k('buffer_store_dword v%d, v%d, %s, 0 offen' % (vtmp, vtmp + 2, srd(SRD_DBG)))
    k('s_mov_b64 exec, -1')


def stamp(k, idx, vtmp=253, stmp=74):
    if getattr(k, 'stamps', False) == 'dbg':
        return dstamp(k, idx, vtmp, stmp)
    if not getattr(k, 'stamps', False):
        return
    k('s_memrealtime %s' % sr(stmp, 2))
    k('s_memtime %s' % sr(stmp + 2, 2))
    k('s_lshl_b32 s%d, s2, 2' % (stmp + 4))
    k('s_add_u32 s%d, s%d, s3' % (stmp + 4, stmp + 4))
    k('s_lshl_b32 s%d, s%d, 7' % (stmp + 4, stmp + 4))
    k('s_add_u32 s%d, s%d, 0x%x' % (stmp + 4, stmp + 4, STAMP_OFF + 4 * idx))
    k('v_mov_b32 v%d, s%d' % (vtmp, stmp))
    k('v_mov_b32 v%d, s%d' % (vtmp + 1, stmp + 2))
    k('v_mov_b32 v%d, 0' % (vtmp + 2))
    k('s_mov_b64 exec, 1')
    k('buffer_store_dword v%d, v%d, %s, s%d offen' % (vtmp, vtmp + 2, srd(SRD_WS), stmp + 4))
    k('s_add_u32 s%d, s%d, 0x20000' % (stmp + 4, stmp + 4))
    k('buffer_store_dword v%d, v%d, %s, s%d offen' % (vtmp + 1, vtmp + 2, srd(SRD_WS), stmp + 4))
    k('s_mov_b64 exec, -1')


def spin_guard(k):
    k('s_sub_u32 s%d, s%d, 1' % (S_SPIN, S_SPIN))
    k('s_cbranch_scc1 %s' % k.end_label)


def epoch_publish(k, vt):
    k('s_memrealtime %s' % sr(S_T, 2))
    k('v_mov_b32 v%d, 0' % (vt + 1))
    k('s_or_b32 s%d, s%d, 1' % (S_T, S_T))
    k('v_mov_b32 v%d, s%d' % (vt, S_T))
    k('s_or_b32 s%d, s2, s3' % S_T)
    k('s_cmp_eq_u32 s%d, 0' % S_T)
    k('s_cselect_b64 exec, 1, 0')
    k('buffer_store_dword v%d, v%d, %s, 0 offen sc1' % (vt, vt + 1, srd(SRD_DBG)))
    k('s_mov_b64 exec, -1')


def epoch_load(k, vt):
    k('v_mov_b32 v%d, 0' % (vt + 1))
    k('buffer_load_dword v%d, v%d, %s, 0 offen sc1' % (vt, vt + 1, srd(SRD_DBG)))


def epoch_get(k, vt):
    L = k.newlabel('Lepg')
    done = k.newlabel('Lepd')
    k('v_readfirstlane_b32 s%d, v%d' % (S_EPOCH, vt))
    k('s_cmp_lg_u32 s%d, 0' % S_EPOCH)
    k.branch_fwd('s_cbranch_scc1', done)
    k.loop_label(L)
    spin_guard(k)
    k('buffer_load_dword v%d, v%d, %s, 0 offen sc1' % (vt, vt + 1, srd(SRD_DBG)))
    k.force_wait(vm=0)
    k('v_readfirstlane_b32 s%d, v%d' % (S_EPOCH, vt))
    k('s_cmp_eq_u32 s%d, 0' % S_EPOCH)
    k('s_cbranch_scc1 %s' % L)
    k.label(done)


FLAG_A = FLAG_OFF
FLAG_B = FLAG_OFF + 0x1000
FLAG_C = FLAG_OFF + 0x2000


def flag_store(k, vt, s_off):
    k('v_mov_b32 v%d, s%d' % (vt, S_EPOCH))
    k('s_mov_b64 exec, 1')
    k('buffer_store_dword v%d, v%d, %s, s%d offen sc1' % (vt, vt + 1, srd(SRD_WS), s_off))
    k('s_mov_b64 exec, -1')


def flag_poll(k, vt, voff, s_off):
    L = k.newlabel('Lpoll')
    k.loop_label(L)
    spin_guard(k)
    k('buffer_load_dword v%d, v%d, %s, s%d offen sc1' % (vt, voff, srd(SRD_WS), s_off))
    k.force_wait(vm=0)
    k('v_cmp_ne_u32 vcc, s%d, v%d' % (S_EPOCH, vt))
    k('s_cbranch_vccnz %s' % L)


class B:
    s_tmp, s_wbase, s_t2, s_x = 58, 59, 60, 61
    s_dma = 73
    vWo, vR0, vR1 = 208, 209, 210
    ACC = 192
    OFR = 32
    T = 64
    HK = 240


def B_setup(k):
    b, g = B, G
    k.c('---- phase B setup')
    t = TMP
    k('v_lshrrev_b32 v%d, 3, v1' % t)
    k('v_mul_u32_u24 v%d, 896, v%d' % (b.vWo, t))
    k('v_and_b32 v%d, 1, v3' % t)
    k('v_lshlrev_b32 v%d, 2, v%d' % (t, t))
    k('v_and_b32 v%d, 7, v1' % (t + 1))
    k('v_xor_b32 v%d, v%d, v%d' % (t, t, t + 1))
    k('v_lshl_add_u32 v%d, v%d, 4, v%d' % (b.vWo, t, b.vWo))
    k('s_lshl_b32 s%d, s%d, 7' % (b.s_tmp, g.s_dtD))
    k('s_mul_i32 s%d, s3, %d' % (b.s_t2, 112 * 896))
    k('s_add_u32 s%d, s%d, s%d' % (b.s_tmp, b.s_tmp, b.s_t2))
    k('v_add_u32 v%d, s%d, v%d' % (b.vWo, b.s_tmp, b.vWo))
    k('s_mul_i32 s%d, s3, %d' % (b.s_wbase, 112 * 128))
    k('s_add_u32 s%d, s%d, %d' % (b.s_wbase, b.s_wbase, LDS_WO))
    k('v_lshrrev_b32 v%d, 5, v1' % t)
    k('v_lshlrev_b32 v%d, 9, v%d' % (b.vR0, t))
    k('v_bfe_u32 v%d, v1, 2, 2' % t)
    k('v_lshl_add_u32 v%d, v%d, 7, v%d' % (b.vR0, t, b.vR0))
    k('v_lshrrev_b32 v%d, 1, v%d' % (t, t))
    k('s_and_b32 s%d, s3, 1' % b.s_tmp)
    k('v_xor_b32 v%d, s%d, v%d' % (t, b.s_tmp, t))
    k('v_lshl_add_u32 v%d, v%d, 6, v%d' % (b.vR0, t, b.vR0))
    k('v_and_b32 v%d, 1, v3' % t)
    k('v_lshl_add_u32 v%d, v%d, 5, v%d' % (b.vR0, t, b.vR0))
    k('v_and_b32 v%d, 3, v1' % t)
    k('v_lshl_add_u32 v%d, v%d, 3, v%d' % (b.vR0, t, b.vR0))
    k('v_add_u32 v%d, %d, v%d' % (b.vR0, LDS_WO, b.vR0))


def B_wo_dma(k):
    b = B
    for i in range(14):
        k('s_add_u32 m0, s%d, %d' % (b.s_wbase, i * 1024))
        k('s_mov_b32 s%d, %d' % (b.s_dma, 8 * i * 896))
        k('buffer_load_dwordx4 v%d, %s, s%d offen lds' % (b.vWo, srd(SRD_WO), b.s_dma), tag='wo')


def B_wo_read(k, abase):
    b = B
    for h in range(16):
        for ks in range(2):
            a = abase + 8 * h + 4 * ks
            o = h * 3584 + ks * 1024 - (512 if h == 15 else 0)
            k('ds_read_b64_tr_b16 %s, v%d offset:%d' % (ar(a, 2), b.vR0, o))
            k('ds_read_b64_tr_b16 %s, v%d offset:%d' % (ar(a + 2, 2), b.vR0, o + 2048))


def B_xinit(k):
    b, g = B, G
    t = TMP + 2
    k('v_lshrrev_b32 v%d, 5, v1' % t)
    k('v_mul_u32_u24 v%d, %d, v%d' % (t, 4 * 896, t))
    k('v_and_b32 v%d, 31, v1' % (t + 1))
    k('v_lshl_add_u32 v%d, v%d, 1, v%d' % (t, t + 1, t))
    k('s_lshl_b32 s%d, s%d, 1' % (b.s_tmp, g.s_st))
    k('s_lshr_b32 s%d, s3, 1' % b.s_t2)
    k('s_add_u32 s%d, s%d, s%d' % (b.s_tmp, b.s_tmp, b.s_t2))
    k('s_mul_i32 s%d, s%d, %d' % (b.s_tmp, b.s_tmp, 32 * 896))
    k('s_lshl_b32 s%d, s%d, 7' % (b.s_t2, g.s_dtD))
    k('s_add_u32 s%d, s%d, s%d' % (b.s_tmp, b.s_tmp, b.s_t2))
    k('s_and_b32 s%d, s3, 1' % b.s_t2)
    k('s_lshl_b32 s%d, s%d, 6' % (b.s_t2, b.s_t2))
    k('s_add_u32 s%d, s%d, s%d' % (b.s_tmp, b.s_tmp, b.s_t2))
    for q in range(4):
        for r in range(4):
            k('buffer_load_ushort v%d, v%d, %s, s%d offen offset:%d' % (b.ACC + 4 * q + r, t, srd(SRD_X), b.s_tmp, r * 896))
        if q < 3:
            k('s_add_u32 s%d, s%d, %d' % (b.s_tmp, b.s_tmp, 8 * 896))


def B_xinit_finish(k):
    b = B
    for i in range(16):
        k('v_lshlrev_b32 v%d, 16, v%d' % (b.ACC + i, b.ACC + i))


def B_main(k, abase, lds_o, lds_small, sc1='', hooks=None):
    b, g = B, G
    t = b.T
    k.c('---- phase B main')
    hooks = hooks or {}

    def hook(name):
        if name in hooks:
            hooks[name]()
    k('s_lshl_b32 s%d, s%d, 16' % (b.s_tmp, g.s_st))
    k('s_lshl_b32 s%d, s3, 14' % b.s_t2)
    k('s_add_u32 s%d, s%d, s%d' % (b.s_tmp, b.s_tmp, b.s_t2))
    if OF_OFF:
        k('s_add_u32 s%d, s%d, 0x%x' % (b.s_tmp, b.s_tmp, OF_OFF))
    for i in range(16):
        if i % 4 == 0:
            k('s_add_u32 m0, s%d, %d' % (b.s_t2, lds_o + i * 1024))
            if i:
                k('s_add_u32 s%d, s%d, 4096' % (b.s_tmp, b.s_tmp))
        k('buffer_load_dwordx4 v4, %s, s%d offen offset:%d %s lds' % (srd(SRD_WS), b.s_tmp, (i % 4) * 1024, sc1), tag='of%d' % (i // 8))
    k('v_and_b32 v%d, 1, v3' % t)
    k('v_lshlrev_b32 v%d, 14, v%d' % (t, t))
    k('v_lshl_add_u32 v%d, v2, 4, v%d' % (t, t))
    k('v_lshrrev_b32 v%d, 5, v1' % (t + 1))
    k('v_lshl_add_u32 v%d, v%d, 8, v%d' % (t, t + 1, t))
    k('s_lshr_b32 s%d, s3, 1' % b.s_t2)
    k('s_lshl_b32 s%d, s%d, 15' % (b.s_t2, b.s_t2))
    k('s_add_u32 s%d, s%d, %d' % (b.s_t2, b.s_t2, lds_o))
    k('v_add_u32 v%d, s%d, v%d' % (t, b.s_t2, t))
    hook('B_after_of')
    a = vr(b.ACC, 16)

    def rd(i):
        k('ds_read_b128 %s, v%d offset:%d' % (vr(b.OFR + 4 * (i % 8), 4), t, i * 512))
    for half in range(2):
        k.wait_tag('of%d' % half)
        k.barrier()
        if half == 0:
            stamp(k, 11)
        for i in range(16 * half, 16 * half + (6 if half == 0 else 2)):
            rd(i)
        for i in range(16 * half - (4 if half else 0), 16 * half + (12 if half == 0 else 16)):
            k('v_mfma_f32_32x32x16_bf16 %s, %s, %s, %s' % (a, vr(b.OFR + 4 * (i % 8), 4), ar(abase + 4 * i, 4), a))
            if i + 6 < 16 * half + 16 and i + 6 >= 16 * half + (6 if half == 0 else 2):
                rd(i + 6)
            k.bg()
    stamp(k, 12)
    Q = t + 4
    V = t + 20
    A = b.ACC
    for i in range(0, 16, 2):
        k('v_pk_mul_f32 %s, %s, %s' % (vr(Q + i, 2), vr(A + i, 2), vr(A + i, 2)))
    def src(base, q, idx):
        r = ((idx & 1) << 1) | (idx >> 1)
        return base + 4 * q + r
    for base, dst in ((A, V), (Q, V + 8)):
        for q in range(4):
            for p in range(2):
                x = src(base, q, 2 * p)
                k('v_add_f32_dpp v%d, v%d, v%d row_mirror row_mask:0xf bank_mask:0x3' % (dst + 2 * q + p, x, x))
    for base, dst in ((A, V), (Q, V + 8)):
        for q in range(4):
            for p in range(2):
                x = src(base, q, 2 * p + 1)
                k('v_add_f32_dpp v%d, v%d, v%d row_mirror row_mask:0xf bank_mask:0xc' % (dst + 2 * q + p, x, x))
    for i in range(8):
        k('v_add_f32_dpp v%d, v%d, v%d row_half_mirror row_mask:0xf bank_mask:0x5' % (V + 2 * i, V + 2 * i, V + 2 * i))
    for i in range(8):
        k('v_add_f32_dpp v%d, v%d, v%d row_half_mirror row_mask:0xf bank_mask:0xa' % (V + 2 * i, V + 2 * i + 1, V + 2 * i + 1))
    for i in range(8):
        k('v_add_f32_dpp v%d, v%d, v%d quad_perm:[1,0,3,2] row_mask:0xf bank_mask:0xf' % (V + 2 * i + 1, V + 2 * i, V + 2 * i))
    U = Q
    for i in range(8):
        k('v_add_f32_dpp v%d, v%d, v%d quad_perm:[2,3,0,1] row_mask:0xf bank_mask:0xf' % (U + i, V + 2 * i + 1, V + 2 * i + 1))
    for kind in range(2):
        for i in range(2):
            k('v_permlane16_swap_b32 v%d, v%d' % (U + 4 * kind + 2 * i, U + 4 * kind + 2 * i + 1))
    W_ = V
    for i in range(2):
        for kind in range(2):
            k('v_add_f32 v%d, v%d, v%d' % (W_ + 2 * i + kind, U + 4 * kind + 2 * i, U + 4 * kind + 2 * i + 1))
    vA, vC, vG = t + 1, t + 2, t + 3
    k('v_and_b32 v%d, 1, v3' % vA)
    k('v_lshlrev_b32 v%d, 6, v%d' % (vA, vA))
    k('v_lshrrev_b32 v%d, 5, v1' % vC)
    k('v_lshl_add_u32 v%d, v%d, 5, v%d' % (vA, vC, vA))
    k('v_bfe_u32 v%d, v1, 2, 2' % vG)
    k('v_lshl_add_u32 v%d, v%d, 3, v%d' % (vA, vG, vA))
    k('s_lshl_b32 s%d, s3, 8' % b.s_tmp)
    k('v_add_u32 v%d, s%d, v%d' % (vA, b.s_tmp, vA))
    k('ds_write_b64 v%d, %s offset:%d' % (vA, vr(W_, 2), lds_small))
    k('ds_write_b64 v%d, %s offset:%d' % (vA, vr(W_ + 2, 2), lds_small + 128))
    k('v_and_b32 v%d, 31, v1' % vG)
    k('v_lshlrev_b32 v%d, 9, v%d' % (vA, vC))
    k('v_lshl_add_u32 v%d, v%d, 4, v%d' % (vA, vG, vA))
    k('v_lshlrev_b32 v%d, 8, v%d' % (vC, vC))
    k('v_lshl_add_u32 v%d, v%d, 3, v%d' % (vC, vG, vC))
    k('s_and_b32 s%d, s%d, 512' % (b.s_tmp, b.s_tmp))
    k('v_add_u32 v%d, s%d, v%d' % (vC, b.s_tmp, vC))
    k('s_lshl_b32 s%d, s%d, 1' % (b.s_tmp, g.s_st))
    k('s_lshr_b32 s%d, s3, 1' % b.s_t2)
    k('s_add_u32 s%d, s%d, s%d' % (b.s_tmp, b.s_tmp, b.s_t2))
    k('s_lshl_b32 s%d, s%d, 12' % (b.s_tmp, b.s_tmp))
    k('s_add_u32 s%d, s%d, 0x%x' % (b.s_tmp, b.s_tmp, STAT_OFF))
    k('s_lshl_b32 s%d, s%d, 9' % (b.s_t2, g.s_dtD))
    k('s_add_u32 s%d, s%d, s%d' % (b.s_t2, b.s_t2, b.s_tmp))
    k.wait_lg(0)
    k.barrier()
    k('ds_read_b64 %s, v%d offset:%d' % (vr(V, 2), vC, lds_small))
    G_ = V + 4
    k('v_mov_b32 v%d, s%d' % (G_ + 1, S_EPOCH))
    k('v_mov_b32 v%d, s%d' % (G_ + 3, S_EPOCH))
    k('v_mov_b32 v%d, v%d' % (G_, V))
    k('v_mov_b32 v%d, v%d' % (G_ + 2, V + 1))
    k('v_permlane32_swap_b32 v%d, v%d' % (G_, V))
    k('v_permlane32_swap_b32 v%d, v%d' % (G_ + 2, V + 1))
    k('v_add_f32 v%d, v%d, v%d' % (G_, G_, V))
    k('v_add_f32 v%d, v%d, v%d' % (G_ + 2, G_ + 2, V + 1))
    k('s_bitcmp0_b32 s3, 0')
    k('s_cselect_b32 exec_lo, -1, 0')
    k('s_mov_b32 exec_hi, 0')
    k('buffer_store_dwordx4 %s, v%d, %s, s%d offen sc1' % (vr(G_, 4), vA, srd(SRD_WS), b.s_t2))
    k('s_mov_b64 exec, -1')
    for i in range(8):
        k('v_cvt_pk_bf16_f32 v%d, v%d, v%d' % (b.HK + i, A + 2 * i, A + 2 * i + 1))
    k('s_lshl_b32 s%d, s%d, 1' % (b.s_x, g.s_dtD))
    k('s_and_b32 s%d, s3, 1' % b.s_t2)
    k('s_add_u32 s%d, s%d, s%d' % (b.s_x, b.s_x, b.s_t2))
    k('s_lshl_b32 s%d, s%d, 7' % (b.s_x, b.s_x))
    k('s_lshl_b32 s%d, s%d, 2' % (b.s_t2, g.s_st))
    k('s_add_u32 s%d, s%d, s%d' % (b.s_x, b.s_x, b.s_t2))
    k('s_and_b32 s%d, s3, 2' % b.s_t2)
    k('s_add_u32 s%d, s%d, s%d' % (b.s_x, b.s_x, b.s_t2))
    k('s_lshl_b32 s%d, s%d, 10' % (b.s_x, b.s_x))
    k('s_add_u32 s%d, s%d, 0x%x' % (b.s_x, b.s_x, HH_OFF))
    k('v_lshlrev_b32 v%d, 4, v%d' % (vC, vG))
    k('v_cmp_gt_u32 %s, 32, v1' % sr(S_T, 2))
    hook('B_before_poll')
    P0 = t + 32
    L = k.newlabel('Lst')
    k.loop_label(L)
    spin_guard(k)
    for i in range(4):
        k('buffer_load_dwordx4 %s, v%d, %s, s%d offen offset:%d sc1' % (vr(P0 + 4 * i, 4), vA if i < 3 else vC, srd(SRD_WS), b.s_tmp, i * 1024))
    k.force_wait(vm=0)
    for i in range(8):
        k('v_xor_b32 v%d, s%d, v%d' % (P0 + 2 * i + 1, S_EPOCH, P0 + 2 * i + 1))
    k('v_or3_b32 v%d, v%d, v%d, v%d' % (P0 + 1, P0 + 1, P0 + 3, P0 + 5))
    k('v_or3_b32 v%d, v%d, v%d, v%d' % (P0 + 7, P0 + 7, P0 + 9, P0 + 11))
    k('v_or3_b32 v%d, v%d, v%d, v%d' % (P0 + 1, P0 + 1, P0 + 13, P0 + 15))
    k('v_or_b32 v%d, v%d, v%d' % (P0 + 1, P0 + 1, P0 + 7))
    k('v_cmp_ne_u32 vcc, 0, v%d' % (P0 + 1))
    k('s_cbranch_vccnz %s' % L)
    stamp(k, 13)
    Sx, Qx = P0, P0 + 2
    k('v_cndmask_b32 v%d, 0, v%d, %s' % (P0 + 12, P0 + 12, sr(S_T, 2)))
    k('v_cndmask_b32 v%d, 0, v%d, %s' % (P0 + 14, P0 + 14, sr(S_T, 2)))
    for x in (Sx, Qx):
        k('v_add_f32 v%d, v%d, v%d' % (x, x, x + 4))
        k('v_add_f32 v%d, v%d, v%d' % (x + 8, x + 8, x + 12))
    for x in (Sx, Qx):
        k('v_add_f32 v%d, v%d, v%d' % (x, x, x + 8))
    k('v_mov_b32 v%d, v%d' % (P0 + 4, Sx))
    k('v_mov_b32 v%d, v%d' % (P0 + 6, Qx))
    k('v_permlane32_swap_b32 v%d, v%d' % (Sx, P0 + 4))
    k('v_permlane32_swap_b32 v%d, v%d' % (Qx, P0 + 6))
    k('v_add_f32 v%d, v%d, v%d' % (Sx, Sx, P0 + 4))
    k('v_add_f32 v%d, v%d, v%d' % (Qx, Qx, P0 + 6))
    M, R = P0 + 1, P0 + 3
    k('v_mul_f32 v%d, %s, v%d' % (M, f32(1.0 / D), Sx))
    k('v_mul_f32 v%d, %s, v%d' % (Qx, f32(1.0 / D), Qx))
    k('v_fma_f32 v%d, -v%d, v%d, v%d' % (Qx, M, M, Qx))
    k('v_max_f32 v%d, 0, v%d' % (Qx, Qx))
    k('v_add_f32 v%d, %s, v%d' % (R, f32(1e-5), Qx))
    k('v_rsq_f32 v%d, v%d' % (R, R))
    k('v_mul_f32 v%d, v%d, v%d' % (Qx, Qx, R))
    k('v_fmaak_f32 v%d, v%d, v%d, %s' % (Qx, Qx, R, f32(1e-5)))
    k('v_rsq_f32 v%d, v%d' % (Qx, Qx))
    k('v_mul_f32 v%d, v%d, v%d' % (R, R, Qx))
    k('s_lshl_b32 s%d, s3, 8' % b.s_t2)
    k('v_lshl_add_u32 v%d, v%d, 2, s%d' % (vC, vG, b.s_t2))
    k('ds_write_b32 v%d, v%d offset:%d' % (vC, M, lds_small + 1024))
    k('ds_write_b32 v%d, v%d offset:%d' % (vC, R, lds_small + 1024 + 128))
    k('v_lshrrev_b32 v%d, 5, v1' % vC)
    k('v_lshl_add_u32 v%d, v%d, 4, s%d' % (vC, vC, b.s_t2))
    MM = P0 + 16
    k.wait_lg(0)
    for q in range(4):
        k('ds_read_b128 %s, v%d offset:%d' % (vr(MM + 4 * q, 4), vC, lds_small + 1024 + 32 * q))
        k('ds_read_b128 %s, v%d offset:%d' % (vr(MM + 16 + 4 * q, 4), vC, lds_small + 1024 + 128 + 32 * q))
    for tp in range(2):
        for i in range(8 * tp, 8 * tp + 8, 2):
            k('v_pk_add_f32 %s, %s, %s neg_lo:[0,1] neg_hi:[0,1]' % (vr(A + i, 2), vr(A + i, 2), vr(MM + i, 2)))
        for i in range(8 * tp, 8 * tp + 8, 2):
            k('v_pk_mul_f32 %s, %s, %s' % (vr(A + i, 2), vr(A + i, 2), vr(MM + 16 + i, 2)))
        p = V + 4 * tp
        for i in range(4):
            k('v_cvt_pk_bf16_f32 v%d, v%d, v%d' % (p + i, A + 8 * tp + 2 * i, A + 8 * tp + 2 * i + 1))
        k('buffer_store_dwordx4 %s, v4, %s, s%d offen offset:%d %s' % (vr(p, 4), srd(SRD_WS), b.s_x, tp * 1024, sc1), tag='hst')


def agent(k):
    g = G
    k.c('---- agent: W2 warm-up')
    k('s_lshr_b32 s%d, s2, 3' % g.s_tmp)
    k('s_bfe_u32 s%d, s2, 0x20001' % g.s_t2)
    k('s_lshl_b32 s%d, s%d, 3' % (g.s_t2, g.s_t2))
    k('s_add_u32 s%d, s%d, s%d' % (g.s_tmp, g.s_tmp, g.s_t2))
    k('s_sub_u32 s%d, s%d, 24' % (g.s_tmp, g.s_tmp))
    k('s_lshl_b32 s%d, s%d, 2' % (g.s_tmp, g.s_tmp))
    k('s_add_u32 s%d, s%d, s3' % (g.s_tmp, g.s_tmp))
    k('s_mul_i32 s%d, s%d, 57344' % (g.s_tmp, g.s_tmp))
    k('v_lshlrev_b32 v16, 7, v1')
    for i in range(7):
        k('buffer_load_dword v%d, v16, %s, s%d offen' % (17 + i, srd(SRD_W2), g.s_tmp))
        k('s_add_u32 s%d, s%d, 8192' % (g.s_tmp, g.s_tmp))
    k.wait_vm(0)


class G:
    ACC = 16
    RING = 80
    NR = 16
    vW1, vW2 = 213, 214
    vRa, vRb = 215, 216
    vSa, vSb = 217, 218
    vCl = 5
    T = 220
    s_dtC, s_ft, s_dtD, s_st, s_tmp, s_t2, s_stage, s_a0, s_a1 = 64, 65, 66, 67, 68, 69, 70, 71, 72


def G_map(k):
    g = G
    k.c('---- C/D tile map')
    k('s_lshr_b32 s%d, s2, 3' % g.s_tmp)
    k('s_mul_i32 s%d, s%d, 86' % (g.s_t2, g.s_tmp))
    k('s_lshr_b32 s%d, s%d, 8' % (g.s_t2, g.s_t2))
    k('s_lshr_b32 s%d, s%d, 2' % (g.s_a0, g.s_tmp))
    k('s_and_b32 s%d, s2, 1' % g.s_a1)
    k('s_cmp_eq_u32 s%d, 1' % g.s_a1)
    k('s_cselect_b32 s%d, s%d, s%d' % (g.s_t2, g.s_t2, g.s_a0))
    k('s_sub_u32 s%d, 4, s%d' % (g.s_a0, g.s_a1))
    k('s_mul_i32 s%d, s%d, s%d' % (g.s_a0, g.s_a0, g.s_t2))
    k('s_sub_u32 s%d, s%d, s%d' % (g.s_dtC, g.s_tmp, g.s_a0))
    k('s_lshl_b32 s%d, s%d, 2' % (g.s_a1, g.s_a1))
    k('s_add_u32 s%d, s%d, s%d' % (g.s_dtC, g.s_dtC, g.s_a1))
    k('s_mov_b32 s%d, s%d' % (g.s_dtD, g.s_dtC))
    k('s_bfe_u32 s%d, s2, 0x20001' % g.s_tmp)
    k('s_lshl_b32 s%d, s%d, 3' % (g.s_st, g.s_tmp))
    k('s_add_u32 s%d, s%d, s%d' % (g.s_st, g.s_st, g.s_t2))
    k('s_sub_u32 s%d, s%d, s%d' % (g.s_ft, g.s_st, g.s_tmp))
    k('s_cmp_ge_u32 s%d, 8' % g.s_t2)
    k('s_cselect_b32 s%d, 99, s%d' % (g.s_st, g.s_st))
    k('s_cmp_ge_u32 s%d, 7' % g.s_t2)
    k('s_cselect_b32 s%d, 99, s%d' % (g.s_ft, g.s_ft))


def G_w_setup(k, which, lds_base, per_wave):
    g = G
    t = TMP
    stride = F * 2 if which == 1 else S * 2
    krows = 512 if which == 1 else 448
    vW = g.vW1 if which == 1 else g.vW2
    va, vb = (g.vRa, g.vRb) if which == 1 else (g.vSa, g.vSb)
    s_tile = g.s_ft if which == 1 else g.s_st
    k('s_mul_i32 s%d, s3, %d' % (g.s_stage, per_wave))
    k('s_add_u32 s%d, s%d, %d' % (g.s_stage, g.s_stage, lds_base))
    k('v_lshrrev_b32 v%d, 3, v1' % t)
    k('v_mul_u32_u24 v%d, %d, v%d' % (vW, stride, t))
    k('v_and_b32 v%d, 1, v3' % t)
    k('v_lshlrev_b32 v%d, 2, v%d' % (t, t))
    k('v_and_b32 v%d, 7, v1' % (t + 1))
    k('v_xor_b32 v%d, v%d, v%d' % (t, t, t + 1))
    k('v_lshl_add_u32 v%d, v%d, 4, v%d' % (vW, t, vW))
    k('s_mul_i32 s%d, s3, %d' % (g.s_tmp, krows * stride))
    k('s_lshl_b32 s%d, s%d, 7' % (g.s_t2, s_tile))
    k('s_add_u32 s%d, s%d, s%d' % (g.s_tmp, g.s_tmp, g.s_t2))
    k('s_cmp_ge_u32 s%d, 99' % s_tile)
    k('s_cselect_b32 s%d, 0x%x, s%d' % (g.s_tmp, OOB, g.s_tmp))
    k('v_add_u32 v%d, s%d, v%d' % (vW, g.s_tmp, vW))
    if which == 1:
        k('s_cselect_b32 s%d, 0x%x, 0' % (g.s_tmp, OOB))
        k('v_add_u32 v%d, s%d, v4' % (g.vCl, g.s_tmp))
    k('v_lshrrev_b32 v%d, 5, v1' % t)
    k('v_lshlrev_b32 v%d, 9, v%d' % (va, t))
    k('v_bfe_u32 v%d, v1, 2, 2' % t)
    k('v_lshl_add_u32 v%d, v%d, 7, v%d' % (va, t, va))
    k('v_lshrrev_b32 v%d, 1, v%d' % (t, t))
    k('s_lshr_b32 s%d, s3, 1' % g.s_tmp)
    k('v_xor_b32 v%d, s%d, v%d' % (t, g.s_tmp, t))
    k('v_lshl_add_u32 v%d, v%d, 6, v%d' % (va, t, va))
    k('v_and_b32 v%d, 1, v3' % t)
    k('v_lshl_add_u32 v%d, v%d, 5, v%d' % (va, t, va))
    k('v_and_b32 v%d, 3, v1' % t)
    k('v_lshl_add_u32 v%d, v%d, 3, v%d' % (va, t, va))
    k('v_add_u32 v%d, s%d, v%d' % (va, g.s_stage, va))
    k('v_xor_b32 v%d, 64, v%d' % (vb, va))


def G_w_dma(k, which, t0, nt, slot0, tag=None, bg=False):
    g = G
    stride = F * 2 if which == 1 else S * 2

    def one(i):
        slot = slot0 + i // 2
        assert slot < NSLOT
        k.wait_lg_tag('rd%d' % slot)
        k.slot_content = getattr(k, 'slot_content', {})
        k.slot_content[slot] = (which, t0 + i // 2, i % 2)
        k('s_add_u32 m0, s%d, %d' % (g.s_stage, slot0 * 2048 + i * 1024))
        k('s_mov_b32 s%d, %d' % (B.s_dma, (16 * t0 + 8 * i) * stride))
        k('buffer_load_dwordx4 v%d, %s, s%d offen lds' % (g.vW1 if which == 1 else g.vW2, srd(SRD_W1 if which == 1 else SRD_W2), B.s_dma), tag='slot%d' % slot)
    for i in range(2 * nt):
        if bg:
            k.bg_push(lambda i=i: one(i))
        else:
            one(i)


def W1_warm(k, vdst, full=True):
    g = G
    t = TMP
    k('s_lshr_b32 s%d, s2, 3' % g.s_tmp)
    k('s_lshl_b32 s%d, s%d, 2' % (g.s_tmp, g.s_tmp))
    k('s_add_u32 s%d, s%d, s3' % (g.s_tmp, g.s_tmp))
    k('v_lshrrev_b32 v%d, 3, v1' % t)
    k('v_mul_u32_u24 v%d, %d, v%d' % (t, F * 2, t))
    k('v_and_b32 v%d, 7, v1' % (t + 1))
    k('v_lshl_add_u32 v%d, v%d, 7, v%d' % (t, t + 1, t))
    if full:
        k('s_mul_i32 s%d, s%d, %d' % (S_T, g.s_tmp, 16 * F * 2))
    else:
        k('s_and_b32 s%d, s2, 1' % S_T)
        k('s_lshl_b32 s%d, s%d, 7' % (S_T, S_T))
        k('s_add_u32 s%d, s%d, s%d' % (S_T, S_T, g.s_tmp))
        k('s_mul_i32 s%d, s%d, %d' % (S_T, S_T, 8 * F * 2))
    k('s_bfe_u32 s%d, s2, 0x20001' % (S_T + 1))
    k('s_mul_i32 s%d, s%d, 896' % (S_T + 1, S_T + 1))
    k('s_add_u32 s%d, s%d, s%d' % (S_T, S_T, S_T + 1))
    k('s_mov_b32 exec_lo, 0x7f7f7f7f')
    k('s_mov_b32 exec_hi, 0x7f7f7f7f')
    k('buffer_load_dword v%d, v%d, %s, s%d offen' % (vdst, t, srd(SRD_W1), S_T))
    if full:
        k('s_add_u32 s%d, s%d, %d' % (S_T, S_T, 8 * F * 2))
        k('buffer_load_dword v%d, v%d, %s, s%d offen' % (vdst + 1, t, srd(SRD_W1), S_T))
    k('s_mov_b64 exec, -1')


def G_w_read(k, which, t, slot, areg):
    g = G
    va, vb = (g.vRa, g.vRb) if which == 1 else (g.vSa, g.vSb)
    sec = 1024
    assert k.slot_content[slot] == (which, t, 1), (k.slot_content[slot], which, t)
    k.wait_tag('slot%d' % slot)
    for i, v in enumerate((va, vb)):
        k('ds_read_b64_tr_b16 %s, v%d offset:%d' % (ar(areg + 4 * i, 2), v, slot * 2048), tag='rd%d' % slot)
        k('ds_read_b64_tr_b16 %s, v%d offset:%d' % (ar(areg + 4 * i + 2, 2), v, slot * 2048 + sec), tag='rd%d' % slot)


def G_a_setup(k, which):
    g = G
    nks = 128 if which == 1 else 112
    per = 32 if which == 1 else 28
    base = HH_OFF if which == 1 else U_OFF
    s_dt = g.s_dtC if which == 1 else g.s_dtD
    k('s_lshl_b32 s%d, s%d, 1' % (g.s_tmp, s_dt))
    k('s_and_b32 s%d, s3, 1' % g.s_t2)
    k('s_add_u32 s%d, s%d, s%d' % (g.s_a0, g.s_tmp, g.s_t2))
    k('s_xor_b32 s%d, s%d, 1' % (g.s_a1, g.s_a0))
    k('s_mul_i32 s%d, s3, %d' % (g.s_tmp, per * 1024))
    k('s_add_u32 s%d, s%d, 0x%x' % (g.s_tmp, g.s_tmp, base))
    for s_ in (g.s_a0, g.s_a1):
        k('s_mul_i32 s%d, s%d, %d' % (s_, s_, nks * 1024))
        k('s_add_u32 s%d, s%d, s%d' % (s_, s_, g.s_tmp))


def G_a_load(k, t, sc1='', vo=4, sd=SRD_WS):
    g = G
    if t and t % 4 == 0:
        k('s_add_u32 s%d, s%d, 4096' % (g.s_a0, g.s_a0))
        k('s_add_u32 s%d, s%d, 4096' % (g.s_a1, g.s_a1))
    r = g.RING + 8 * (t % g.NR)
    for i, s_ in enumerate((g.s_a0, g.s_a1)):
        k('buffer_load_dwordx4 %s, v%d, %s, s%d offen offset:%d %s' % (vr(r + 4 * i, 4), vo, srd(sd), s_, (t % 4) * 1024, sc1))


def G_mfma(k, t, areg):
    g = G
    r = g.RING + 8 * (t % g.NR)
    for iw in range(2):
        for ia in range(2):
            L = 2 * iw + ia
            a = vr(g.ACC + 16 * L, 16)
            c = '0' if (t == 0 and L != 0) else a
            k('v_mfma_f32_32x32x16_bf16 %s, %s, %s, %s' % (a, ar(areg + 4 * iw, 4), vr(r + 4 * ia, 4), c))


def C_init(k):
    g = G
    t = g.T
    k('v_lshrrev_b32 v%d, 5, v1' % t)
    k('v_lshlrev_b32 v%d, 3, v%d' % (t, t))
    k('s_lshl_b32 s%d, s%d, 7' % (g.s_tmp, g.s_ft))
    k('s_lshr_b32 s%d, s3, 1' % g.s_t2)
    k('s_lshl_b32 s%d, s%d, 6' % (g.s_t2, g.s_t2))
    k('s_add_u32 s%d, s%d, s%d' % (g.s_tmp, g.s_tmp, g.s_t2))
    for q in range(4):
        k('buffer_load_dwordx2 %s, v%d, %s, s%d offen offset:%d' % (vr(t + 2 + 2 * q, 2), t, srd(SRD_B1), g.s_tmp, 16 * q))


def C_init_finish(k):
    g = G
    t = g.T
    for q in range(4):
        for i in range(2):
            k('v_lshlrev_b32 v%d, 16, v%d' % (g.ACC + 4 * q + 2 * i, t + 2 + 2 * q + i))
            k('v_and_b32 v%d, 0xffff0000, v%d' % (g.ACC + 4 * q + 2 * i + 1, t + 2 + 2 * q + i))


def C_epilogue(k, lds_red, sc1=''):
    g = G
    t = g.T
    k.c('---- phase C epilogue')
    for L in range(1, 4):
        k('s_xor_b32 s%d, s3, %d' % (g.s_tmp, L))
        k('s_mul_i32 s%d, s%d, 12288' % (g.s_tmp, g.s_tmp))
        k('s_add_u32 s%d, s%d, %d' % (g.s_tmp, g.s_tmp, lds_red + (L - 1) * 4096))
        k('v_add_u32 v%d, s%d, v4' % (t + L, g.s_tmp))
    for L in range(1, 4):
        for q in range(4):
            k('ds_write_b128 v%d, %s offset:%d' % (t + L, vr(g.ACC + 16 * L + 4 * q, 4), q * 1024))
    k('s_mul_i32 s%d, s3, 12288' % g.s_tmp)
    k('s_add_u32 s%d, s%d, %d' % (g.s_tmp, g.s_tmp, lds_red))
    k('v_add_u32 v%d, s%d, v4' % (t, g.s_tmp))
    k('s_lshl_b32 s%d, s%d, 1' % (g.s_tmp, g.s_dtC))
    k('s_and_b32 s%d, s3, 1' % g.s_t2)
    k('s_add_u32 s%d, s%d, s%d' % (g.s_tmp, g.s_tmp, g.s_t2))
    k('s_mul_i32 s%d, s%d, 112' % (g.s_tmp, g.s_tmp))
    k('s_lshl_b32 s%d, s%d, 2' % (g.s_t2, g.s_ft))
    k('s_add_u32 s%d, s%d, s%d' % (g.s_tmp, g.s_tmp, g.s_t2))
    k('s_and_b32 s%d, s3, 2' % g.s_t2)
    k('s_add_u32 s%d, s%d, s%d' % (g.s_tmp, g.s_tmp, g.s_t2))
    k('s_lshl_b32 s%d, s%d, 10' % (g.s_tmp, g.s_tmp))
    k('s_add_u32 s%d, s%d, 0x%x' % (g.s_tmp, g.s_tmp, U_OFF))
    k.wait_lg(0)
    k.barrier()
    R = g.ACC + 16
    for q in range(4):
        for L in range(3):
            k('ds_read_b128 %s, v%d offset:%d' % (vr(R + 16 * L + 4 * q, 4), t, L * 4096 + q * 1024))
    c1 = -2.0 * 0.7978845608028654 * 1.4426950408889634
    c2 = c1 * 0.044715
    sc = 88
    k('s_mov_b32 s%d, %s' % (sc, f32(c1)))
    k('s_mov_b32 s%d, %s' % (sc + 2, f32(c2)))
    X2 = g.RING
    k('v_mov_b32 v%d, s%d' % (t + 4, sc))
    k('v_mov_b32 v%d, s%d' % (t + 5, sc))
    for half in range(2):
        for i in range(8 * half, 8 * half + 8, 2):
            a = g.ACC + i
            k('v_pk_add_f32 %s, %s, %s' % (vr(R + i, 2), vr(R + i, 2), vr(R + 16 + i, 2)))
            k('v_pk_add_f32 %s, %s, %s' % (vr(a, 2), vr(a, 2), vr(R + 32 + i, 2)))
        for i in range(8 * half, 8 * half + 8, 2):
            a = g.ACC + i
            k('v_pk_add_f32 %s, %s, %s' % (vr(a, 2), vr(a, 2), vr(R + i, 2)))
        for i in range(8 * half, 8 * half + 8, 2):
            a = g.ACC + i
            k('v_pk_mul_f32 %s, %s, %s' % (vr(X2 + i, 2), vr(a, 2), vr(a, 2)))
        for i in range(8 * half, 8 * half + 8, 2):
            k('v_pk_fma_f32 %s, %s, %s, %s op_sel_hi:[1,0,1]' % (vr(X2 + i, 2), vr(X2 + i, 2), sr(sc + 2, 2), vr(t + 4, 2)))
        for i in range(8 * half, 8 * half + 8, 2):
            k('v_pk_mul_f32 %s, %s, %s' % (vr(X2 + i, 2), vr(X2 + i, 2), vr(g.ACC + i, 2)))
        for i in range(8 * half, 8 * half + 8):
            k('v_exp_f32 v%d, v%d' % (X2 + i, X2 + i))
        for i in range(8 * half, 8 * half + 8, 2):
            k('v_pk_add_f32 %s, %s, 1.0 op_sel_hi:[1,0]' % (vr(X2 + i, 2), vr(X2 + i, 2)))
        for i in range(8 * half, 8 * half + 8):
            k('v_rcp_f32 v%d, v%d' % (X2 + i, X2 + i))
        for i in range(8 * half, 8 * half + 8, 2):
            k('v_pk_mul_f32 %s, %s, %s' % (vr(X2 + i, 2), vr(X2 + i, 2), vr(g.ACC + i, 2)))
        p = X2 + 16 + 4 * half
        for i in range(4):
            k('v_cvt_pk_bf16_f32 v%d, v%d, v%d' % (p + i, X2 + 8 * half + 2 * i, X2 + 8 * half + 2 * i + 1))
        k('buffer_store_dwordx4 %s, v%d, %s, s%d offen offset:%d %s' % (vr(p, 4), g.vCl, srd(SRD_WS), g.s_tmp, half * 1024, sc1), tag='ust')


def D_init(k, sc1=''):
    g = G
    t = g.T
    k('v_lshrrev_b32 v%d, 5, v1' % t)
    k('v_lshlrev_b32 v%d, 3, v%d' % (t, t))
    k('s_lshl_b32 s%d, s%d, 7' % (g.s_tmp, g.s_st))
    k('s_lshr_b32 s%d, s3, 1' % g.s_t2)
    k('s_lshl_b32 s%d, s%d, 6' % (g.s_t2, g.s_t2))
    k('s_add_u32 s%d, s%d, s%d' % (g.s_tmp, g.s_tmp, g.s_t2))
    for q in range(4):
        k('buffer_load_dwordx2 %s, v%d, %s, s%d offen offset:%d' % (vr(t + 2 + 2 * q, 2), t, srd(SRD_B2), g.s_tmp, 16 * q))


def D_init_finish(k):
    g = G
    t = g.T
    for q in range(4):
        for i in range(2):
            a = g.ACC + 4 * q + 2 * i
            k('v_lshlrev_b32 v%d, 16, v%d' % (a, t + 2 + 2 * q + i))
            k('v_and_b32 v%d, 0xffff0000, v%d' % (a + 1, t + 2 + 2 * q + i))
            k('v_lshlrev_b32 v%d, 16, v%d' % (t + 18, B.HK + 2 * q + i))
            k('v_and_b32 v%d, 0xffff0000, v%d' % (t + 19, B.HK + 2 * q + i))
            k('v_pk_add_f32 %s, %s, %s' % (vr(a, 2), vr(a, 2), vr(t + 18, 2)))


def D_epilogue(k, lds_red, stride):
    g = G
    t = g.T
    k.c('---- phase D epilogue')
    k('v_lshrrev_b32 v%d, 5, v1' % t)
    k('v_lshlrev_b32 v%d, 10, v%d' % (t, t))
    k('v_and_b32 v%d, 31, v1' % (t + 1))
    k('v_lshl_add_u32 v%d, v%d, 2, v%d' % (t, t + 1, t))
    k('s_lshr_b32 s%d, s3, 1' % g.s_t2)
    k('s_lshl_b32 s%d, s%d, 13' % (g.s_tmp, g.s_t2))
    k('s_and_b32 s%d, s3, 1' % g.s_t2)
    k('s_lshl_b32 s%d, s%d, 7' % (g.s_t2, g.s_t2))
    k('s_add_u32 s%d, s%d, s%d' % (g.s_tmp, g.s_tmp, g.s_t2))
    k('v_add_u32 v%d, s%d, v%d' % (t, g.s_tmp, t))
    k('v_xor_b32 v%d, 128, v%d' % (t + 1, t))
    k('v_xor_b32 v%d, 0x2000, v%d' % (t + 2, t))
    k('v_xor_b32 v%d, 0x2080, v%d' % (t + 3, t))
    k('s_mul_i32 s%d, s3, %d' % (g.s_tmp, stride))
    k('s_add_u32 s%d, s%d, %d' % (g.s_tmp, g.s_tmp, lds_red))
    for L in range(4):
        k('v_add_u32 v%d, s%d, v%d' % (t + L, g.s_tmp, t + L))
    k('s_lshl_b32 s%d, s3, 12' % g.s_tmp)
    k('s_add_u32 s%d, s%d, %d' % (g.s_tmp, g.s_tmp, lds_red))
    k('v_add_u32 v%d, s%d, v4' % (t + 4, g.s_tmp))
    k('v_add_u32 v%d, %d, v%d' % (t + 6, 2 * stride, t + 4))
    k('v_mul_u32_u24 v%d, 896, v3' % (t + 5))
    k('v_lshl_add_u32 v%d, v2, 3, v%d' % (t + 5, t + 5))
    k('s_lshl_b32 s%d, s%d, 2' % (g.s_tmp, g.s_st))
    k('s_add_u32 s%d, s%d, s3' % (g.s_tmp, g.s_tmp))
    k('s_mul_i32 s%d, s%d, %d' % (g.s_tmp, g.s_tmp, 16 * 896))
    k('s_lshl_b32 s%d, s%d, 7' % (g.s_t2, g.s_dtD))
    k('s_add_u32 s%d, s%d, s%d' % (g.s_tmp, g.s_tmp, g.s_t2))
    k('s_add_u32 s%d, s%d, %d' % (g.s_t2, g.s_tmp, 8 * 896))


def D_epilogue2(k, stride):
    g = G
    t = g.T
    for L in range(4):
        for q in range(4):
            for r in (0, 2):
                a = g.ACC + 16 * L + 4 * q + r
                k('ds_write2st64_b32 v%d, v%d, v%d offset0:%d offset1:%d' % (t + L, a, a + 1, 8 * q + r, 8 * q + r + 1))
    k.wait_lg(0)
    k.barrier()
    R = g.ACC
    for i in range(4):
        for w in range(4):
            k('ds_read_b128 %s, v%d offset:%d' % (vr(R + 16 * i + 4 * w, 4), t + 4 if w < 2 else t + 6, (w & 1) * stride + i * 1024))
    for i in range(4):
        r = R + 16 * i
        for j in (0, 2):
            k('v_pk_add_f32 %s, %s, %s' % (vr(r + j, 2), vr(r + j, 2), vr(r + 4 + j, 2)))
            k('v_pk_add_f32 %s, %s, %s' % (vr(r + 8 + j, 2), vr(r + 8 + j, 2), vr(r + 12 + j, 2)))
        for j in (0, 2):
            k('v_pk_add_f32 %s, %s, %s' % (vr(r + j, 2), vr(r + j, 2), vr(r + 8 + j, 2)))
        k('v_cvt_pk_bf16_f32 v%d, v%d, v%d' % (r + 4, r, r + 1))
        k('v_cvt_pk_bf16_f32 v%d, v%d, v%d' % (r + 5, r + 2, r + 3))
        k('buffer_store_dwordx2 %s, v%d, %s, s%d offen offset:%d' % (vr(r + 4, 2), t + 5, srd(SRD_OUT), g.s_t2 if i >= 2 else g.s_tmp, (i % 2) * 4 * 896))
```

```python
import struct
from dsl import Kernel, vr, ar, sr

S, D, H, DH, F = 2048, 448, 16, 28, 1792

OF_OFF = 0x000000
HH_OFF = 0x200000
U_OFF = 0x3C0000
STAT_OFF = 0x548000
FLAG_OFF = 0x588000
WS_SIZE = 0x590000
OOB = 0x40000000

SRD_X, SRD_WQKV, SRD_WO, SRD_W1, SRD_W2, SRD_B1, SRD_B2, SRD_OUT, SRD_WS, SRD_DBG = 8, 12, 16, 20, 24, 28, 32, 36, 40, 44
SRD_A = 96
S_WG, S_WAVE = 2, 3
S_EPOCH = 4
S_SPIN = 6
S_ONES = 5
S_T = 86
V_LANE, V_T16, V_G, V_L16 = 1, 2, 3, 4


def f32(x):
    return '0x%08x' % struct.unpack('<I', struct.pack('<f', x))[0]


def srd(base):
    return sr(base, 4)


def prologue(k, nwg, end_label, need):
    k('s_cmp_ge_u32 s2, %d' % nwg)
    k('s_cbranch_scc1 %s' % end_label)
    if getattr(k, 'xcctest', False):
        k('s_getreg_b32 s3, hwreg(HW_REG_XCC_ID)')
        k('s_and_b32 s3, s3, 15')
        k('s_and_b32 s4, s2, 7')
        k('s_cmp_eq_u32 s3, s4')
        k('s_cbranch_scc1 Lxcc_ok')
        for _ in range(8):
            k('s_sleep 127')
        k.raw('Lxcc_ok:')
    if getattr(k, 'scramble', False):
        k('s_and_b32 s3, s2, 7')
        k('s_lshl_b32 s3, s3, 5')
        k('s_lshr_b32 s2, s2, 3')
        k('s_or_b32 s2, s2, s3')
    for base, off, size in need:
        k('s_load_dwordx2 %s, s[0:1], %d' % (sr(base, 2), off))
    k('v_lshrrev_b32 v1, 6, v0')
    k('v_readfirstlane_b32 s3, v1')
    k('v_and_b32 v1, 63, v0')
    k('v_and_b32 v2, 15, v0')
    k('v_lshrrev_b32 v3, 4, v1')
    k('v_lshlrev_b32 v4, 4, v1')
    for base, off, size in need:
        k('s_mov_b32 s%d, 0x%x' % (base + 2, size))
        k('s_mov_b32 s%d, 0x00020000' % (base + 3))
    k('s_mov_b32 s%d, 0x3f803f80' % S_ONES)
    k('s_mov_b32 s%d, 0x40000' % S_SPIN)
    k.end_label = end_label


ARG = dict(x=(SRD_X, 0, S * D * 2), wqkv=(SRD_WQKV, 8, D * 3 * D * 2), wo=(SRD_WO, 16, D * D * 2),
           w1=(SRD_W1, 32, S * F * 2), b1=(SRD_B1, 40, F * 2), w2=(SRD_W2, 48, F * S * 2), b2=(SRD_B2, 56, S * 2),
           out=(SRD_OUT, 64, S * D * 2), dbg=(SRD_DBG, 72, 256), ws=(SRD_WS, 80, WS_SIZE))


def xgroup_reduce(k, regs, tmp, op='v_add_f32'):
    for swap in ('v_permlane32_swap_b32', 'v_permlane16_swap_b32'):
        for r, t in zip(regs, tmp):
            k('v_mov_b32 v%d, v%d' % (t, r))
        for r, t in zip(regs, tmp):
            k('%s v%d, v%d' % (swap, r, t))
        for r, t in zip(regs, tmp):
            k('%s v%d, v%d, v%d' % (op, r, r, t))


A_LDS_CS = 0
A_LDS_ST = 512
A_LDS_KV = 2048
A_LDS_W = 12288
A_LDS_X = 61440
A_XSLOT = [2, 1, 0, 3]
A_LDS_END = A_LDS_X + 4 * 18432
LDS_MID = 12288
LDS_STG = 77824
STG_SZ = 20480
NSLOT = 10
LDS_END = 163840
LDS_WO = 106496
TMP = 219


def xslot(grp):
    return A_XSLOT.index(grp % 4) * 18432


def phaseA(k, sc1='', hooks=None):
    hooks = hooks or {}
    XR = 16
    ACC = 136
    WF = 88
    ONES = 40
    SQ, SM = 48, 60
    vXl, vXu, vXh, vW, vA0, vA1, vH1, vH2 = 120, 121, 122, 123, 124, 125, 126, 127
    vRe, vRo, vHe, vHo = 128, 129, 130, 131
    vT = 237
    BP, BC, BPA = 240, 244, 248
    s_rb, s_head, s_t0, s_m0w, s_m0x, s_tmp = 48, 49, 50, 51, 52, 53
    s_hm = 54
    s_m0h = 7

    def hook(name):
        if name in hooks:
            hooks[name]()

    def xreg(j, blk):
        return XR + (j % 2) * 12 + blk * 4

    def acc(blk, nbi):
        return ACC + blk * 24 + nbi * 4
    H1, H2 = ACC + 48, ACC + 52

    k.c('---- phase A setup')
    k('s_bfe_u32 s%d, s2, 0x20001' % s_rb)
    k('s_lshl_b32 s%d, s%d, 2' % (s_rb, s_rb))
    k('s_lshr_b32 s%d, s2, 6' % s_tmp)
    k('s_add_u32 s%d, s%d, s%d' % (s_rb, s_rb, s_tmp))
    k('s_bfe_u32 s%d, s2, 0x30003' % s_head)
    k('s_and_b32 s%d, s2, 1' % s_tmp)
    k('s_lshl_b32 s%d, s%d, 3' % (s_tmp, s_tmp))
    k('s_add_u32 s%d, s%d, s%d' % (s_head, s_head, s_tmp))
    k('v_lshrrev_b32 v%d, 2, v1' % vT)
    k('v_mul_u32_u24 v%d, 2688, v%d' % (vW, vT))
    k('v_lshrrev_b32 v%d, 5, v1' % vT)
    k('v_lshlrev_b32 v%d, 1, v%d' % (vT, vT))
    k('v_and_b32 v%d, 3, v1' % (vT + 1))
    k('v_xor_b32 v%d, v%d, v%d' % (vT, vT, vT + 1))
    k('v_lshl_add_u32 v%d, v%d, 4, v%d' % (vW, vT, vW))
    k('s_mul_i32 s%d, s%d, 56' % (s_tmp, s_head))
    k('s_min_u32 s%d, s%d, 832' % (s_tmp, s_tmp))
    k('s_mul_i32 s%d, s3, %d' % (s_m0w, 16 * 2688))
    k('s_add_u32 s%d, s%d, s%d' % (s_tmp, s_tmp, s_m0w))
    k('v_add_u32 v%d, s%d, v%d' % (vW, s_tmp, vW))
    k('s_lshr_b32 s%d, s3, 1' % s_tmp)
    k('s_mul_i32 s%d, s%d, 6144' % (s_m0w, s_tmp))
    k('s_and_b32 s%d, s3, 1' % s_tmp)
    k('s_lshl_b32 s%d, s%d, 10' % (s_tmp, s_tmp))
    k('s_add_u32 s%d, s%d, s%d' % (s_m0w, s_m0w, s_tmp))
    k('v_lshrrev_b32 v%d, 3, v1' % vT)
    k('v_mul_u32_u24 v%d, 896, v%d' % (vXh, vT))
    k('v_and_b32 v%d, 7, v1' % vT)
    k('v_xor_b32 v%d, v%d, v3' % (vT, vT))
    k('v_lshl_add_u32 v%d, v%d, 4, v%d' % (vXl, vT, vXh))
    k('s_lshl_b32 s%d, s%d, 7' % (s_t0, s_rb))
    k('s_lshl_b32 s%d, s3, 5' % s_tmp)
    k('s_add_u32 s%d, s%d, s%d' % (s_tmp, s_tmp, s_t0))
    k('s_mul_i32 s%d, s%d, 896' % (s_tmp, s_tmp))
    k('v_xor_b32 v%d, 64, v%d' % (vXu, vXl))
    k('v_add_u32 v%d, s%d, v%d' % (vXl, s_tmp, vXl))
    k('s_add_u32 s%d, s%d, %d' % (s_tmp, s_tmp, 8 * 896))
    k('v_add_u32 v%d, s%d, v%d' % (vXu, s_tmp, vXu))
    k('s_lshl_b32 s%d, s3, 1' % s_tmp)
    k('v_xor_b32 v%d, s%d, v%d' % (vT, s_tmp, vT))
    k('v_lshl_add_u32 v%d, v%d, 4, v%d' % (vXh, vT, vXh))
    k('s_lshl_b32 s%d, s3, 2' % s_tmp)
    k('s_add_u32 s%d, s%d, s%d' % (s_tmp, s_tmp, s_t0))
    k('s_sub_u32 s%d, s%d, 16' % (s_tmp, s_tmp))
    k('s_mul_i32 s%d, s%d, 896' % (s_tmp, s_tmp))
    k('s_cmp_eq_u32 s%d, 0' % s_rb)
    k('s_cselect_b32 s%d, 0x%x, s%d' % (s_tmp, OOB, s_tmp))
    k('v_add_u32 v%d, s%d, v%d' % (vXh, s_tmp, vXh))
    k('s_lshl_b32 s%d, s3, 12' % s_m0x)
    k('s_add_u32 s%d, s%d, %d' % (s_m0x, s_m0x, A_LDS_X + 2048))
    k('s_lshl_b32 s%d, s3, 9' % s_m0h)
    k('s_cmp_eq_u32 s3, 0')
    k('s_cselect_b32 s%d, 0xffffff00, -1' % s_hm)
    k('s_mov_b32 s%d, 0' % (s_hm + 1))

    def dma_group(grp, bg=False):
        tag = 'G%d' % grp
        sd = B.s_dma

        def w_(p):
            k('s_add_u32 m0, s%d, %d' % (s_m0w, A_LDS_W + (grp % 4) * 12288 + p * 2048))
            k('s_mov_b32 s%d, %d' % (sd, grp * 64 * 2688 + p * 896))
            k('buffer_load_dwordx4 v%d, %s, s%d offen lds' % (vW, srd(SRD_WQKV), sd), tag=tag)

        def x_(i):
            k('s_add_u32 m0, s%d, %d' % (s_m0x, xslot(grp) + i * 1024))
            k('s_mov_b32 s%d, %d' % (sd, grp * 128 + (i >> 1) * 16 * 896))
            k('buffer_load_dwordx4 v%d, %s, s%d offen lds' % (vXu if i & 1 else vXl, srd(SRD_X), sd), tag=tag)

        def h_():
            k('s_add_u32 m0, s%d, %d' % (s_m0h, A_LDS_X + xslot(grp)))
            k('s_mov_b32 s%d, %d' % (sd, grp * 128))
            k('s_mov_b64 exec, %s' % sr(s_hm, 2))
            k('buffer_load_dwordx4 v%d, %s, s%d offen lds' % (vXh, srd(SRD_X), sd), tag=tag)
            k('s_mov_b64 exec, -1')
        fs = [lambda p=p: w_(p) for p in range(3)] + [lambda i=i: x_(i) for i in range(4)] + [h_]
        for f in fs:
            if bg:
                k.bg_push(f)
            else:
                f()

    hook('A_pre')
    for p in range(2):
        dma_group(p)
    k('s_lshr_b32 s%d, s2, 3' % s_tmp)
    k('s_lshl_b32 s%d, s%d, 2' % (s_tmp, s_tmp))
    k('s_add_u32 s%d, s%d, s3' % (s_tmp, s_tmp))
    k('s_mul_i32 s%d, s%d, 30' % (S_T, s_tmp))
    k('v_add_u32 v%d, s%d, v1' % (vT, S_T))
    k('v_mul_u32_u24 v%d, 43691, v%d' % (vT + 1, vT))
    k('v_lshrrev_b32 v%d, 19, v%d' % (vT + 1, vT + 1))
    k('v_mul_u32_u24 v%d, 12, v%d' % (vT + 2, vT + 1))
    k('v_sub_u32 v%d, v%d, v%d' % (vT + 2, vT, vT + 2))
    k('v_lshrrev_b32 v%d, 2, v%d' % (vT + 2, vT + 2))
    k('v_mul_u32_u24 v%d, 896, v%d' % (vT + 2, vT + 2))
    k('v_mul_u32_u24 v%d, 2688, v%d' % (vT + 1, vT + 1))
    k('v_and_b32 v%d, 3, v%d' % (vT, vT))
    k('v_lshlrev_b32 v%d, 7, v%d' % (vT, vT))
    k('v_add3_u32 v%d, v%d, v%d, v%d' % (vT, vT, vT + 1, vT + 2))
    k('s_and_b32 s%d, s2, 1' % S_T)
    k('s_mul_i32 s%d, s%d, 384' % (S_T, S_T))
    k('s_add_u32 s%d, s%d, %d' % (S_T, S_T, 128 * 2688))
    k('s_mov_b64 exec, 0x3fffffff')
    k('buffer_load_dword v232, v%d, %s, s%d offen' % (vT, srd(SRD_WQKV), S_T))
    k('s_mov_b64 exec, -1')
    k('v_lshlrev_b32 v%d, 7, v1' % vT)
    k('s_mul_i32 s%d, s%d, %d' % (S_T, s_tmp, 29 * 128))
    k('s_bfe_u32 s%d, s2, 0x20001' % (S_T + 1))
    k('s_mul_i32 s%d, s%d, %d' % (S_T + 1, S_T + 1, 512 * 896))
    k('s_add_u32 s%d, s%d, s%d' % (S_T, S_T, S_T + 1))
    k('s_max_u32 s%d, s%d, %d' % (S_T, S_T, 16 * 896))
    k('s_sub_u32 s%d, s%d, %d' % (S_T, S_T, 16 * 896))
    k('s_mov_b64 exec, 0x1fffffff')
    k('buffer_load_dword v233, v%d, %s, s%d offen' % (vT, srd(SRD_X), S_T))
    k('s_mov_b64 exec, -1')
    k('s_mul_i32 s%d, s%d, 14' % (S_T, s_tmp))
    k('v_add_u32 v%d, s%d, v1' % (vT, S_T))
    k('v_lshrrev_b32 v%d, 2, v%d' % (vT + 1, vT))
    k('v_mul_u32_u24 v%d, 896, v%d' % (vT + 1, vT + 1))
    k('v_and_b32 v%d, 3, v%d' % (vT, vT))
    k('v_lshl_add_u32 v%d, v%d, 7, v%d' % (vT, vT, vT + 1))
    k('s_and_b32 s%d, s2, 1' % S_T)
    k('s_lshl_b32 s%d, s%d, 9' % (S_T, S_T))
    k('s_mov_b64 exec, 0x3fff')
    k('buffer_load_dword v234, v%d, %s, s%d offen' % (vT, srd(SRD_WO), S_T))
    k('s_mov_b64 exec, -1')
    k('v_mul_u32_u24 v%d, 18432, v3' % vT)
    k('v_lshl_add_u32 v%d, v2, 3, v%d' % (vT, vT))
    k('v_mov_b32 v%d, s%d' % (vT + 1, S_ONES))
    k('v_add_u32 v%d, %d, v%d' % (vT, A_LDS_X, vT))
    k('ds_write2_b32 v%d, v%d, v%d offset0:0 offset1:1' % (vT, vT + 1, vT + 1))
    hook('A_after_issue')

    k('v_lshlrev_b32 v%d, 9, v3' % vA0)
    k('v_bfe_u32 v%d, v1, 2, 2' % vT)
    k('v_lshl_add_u32 v%d, v%d, 6, v%d' % (vA0, vT, vA0))
    k('v_and_b32 v%d, 3, v1' % vT)
    k('v_lshl_add_u32 v%d, v%d, 3, v%d' % (vA0, vT, vA0))
    k('v_and_b32 v%d, 1, v3' % vT)
    k('v_lshlrev_b32 v%d, 5, v%d' % (vT, vT))
    k('v_add_u32 v%d, v%d, v%d' % (vA0, vA0, vT))
    k('v_add_u32 v%d, %d, v%d' % (vA0, A_LDS_W, vA0))
    k('v_xor_b32 v%d, 32, v%d' % (vA1, vA0))
    k('s_and_b32 s%d, s3, 1' % s_tmp)
    k('s_lshl_b32 s%d, s%d, 5' % (s_tmp, s_tmp))
    k('v_xor_b32 v%d, s%d, v%d' % (vH2, s_tmp, vA0))
    k('s_lshr_b32 s%d, s3, 1' % s_tmp)
    k('s_lshl_b32 s%d, s%d, 11' % (s_tmp, s_tmp))
    k('s_add_u32 s%d, s%d, 2048' % (s_tmp, s_tmp))
    k('v_add_u32 v%d, s%d, v%d' % (vH1, s_tmp, vH2))
    k('v_lshrrev_b32 v%d, 1, v2' % vT)
    k('v_xor_b32 v%d, v%d, v3' % (vT, vT))
    k('v_lshlrev_b32 v%d, 4, v%d' % (vT, vT))
    k('v_lshl_add_u32 v%d, v2, 7, v%d' % (vT, vT))
    k('v_add_u32 v%d, %d, v%d' % (vHe, A_LDS_X, vT))
    k('v_xor_b32 v%d, 64, v%d' % (vHo, vHe))
    k('v_add_u32 v%d, s%d, v%d' % (vRe, s_m0x, vT))
    k('v_xor_b32 v%d, 64, v%d' % (vRo, vRe))
    k('v_lshlrev_b32 v%d, 2, v3' % vT)
    k('v_sub_u32 v%d, v2, v%d' % (vT, vT))
    k('v_mov_b32 v%d, %s' % (vT + 2, f32(-1e30)))
    for which, base in ((16, BP), (0, BC)):
        for r in range(4):
            k('v_add_u32 v%d, %d, v%d' % (vT + 1, which - r, vT))
            k('v_and_b32 v%d, 0xfffffff1, v%d' % (vT + 1, vT + 1))
            k('v_cmp_eq_u32 vcc, 0, v%d' % (vT + 1))
            k('v_cndmask_b32 v%d, v%d, 0, vcc' % (base + r, vT + 2))
    k('s_or_b32 s%d, s%d, s3' % (s_tmp, s_rb))
    k('s_cmp_eq_u32 s%d, 0' % s_tmp)
    k('s_cselect_b64 vcc, -1, 0')
    for r in range(4):
        k('v_cndmask_b32 v%d, v%d, v%d, vcc' % (BPA + r, BP + r, vT + 2))
    for i in range(4):
        k('v_mov_b32 v%d, s%d' % (ONES + i, S_ONES))

    frag_addr = [(vA0, 0), (vA1, 0), (vA0, 2048), (vA1, 2048), (vA0, 4096), (vA1, 4096), (vH1, 0), (vH2, 0)]

    def read_frag(f, j, h=None):
        va, off = frag_addr[f]
        o = (j % 8) * 6144 + off
        for hh in ((0, 1) if h is None else (h,)):
            k('ds_read_b64_tr_b16 %s, v%d offset:%d' % (vr(WF + 4 * f + 2 * hh, 2), va, o + 256 * hh))

    def read_x(j, blk=None):
        o = xslot(j // 2)
        for b_ in (range(3) if blk is None else (blk,)):
            if b_ < 2:
                k('ds_read_b128 %s, v%d offset:%d' % (vr(xreg(j, b_), 4), vRo if j & 1 else vRe, o + 2048 * b_))
            else:
                k('ds_read_b128 %s, v%d offset:%d' % (vr(xreg(j, 2), 4), vHo if j & 1 else vHe, o))

    stamp(k, 1)
    k.wait_tag('G0')
    k.wait_lg(0)
    k.barrier()
    stamp(k, 2)
    read_x(0)
    for f in range(8):
        read_frag(f, 0)
    dma_group(2, bg=True)
    k.lg_slack = 6
    for j in range(14):
        k.c('kstep %d' % j)
        if j + 1 < 14 and (j + 1) % 2 == 0:
            k.bg_flush()
            k.wait_tag('G%d' % ((j + 1) // 2))
            k.barrier()
            if (j + 5) // 2 < 7:
                dma_group((j + 5) // 2, bg=True)
            hook('A_b%d' % j)
        mf = []
        for f in range(8):
            w = vr(WF + 4 * f, 4)
            if f < 6:
                for blk in range(2):
                    a = vr(acc(blk, f), 4)
                    x = vr(xreg(j, blk), 4)
                    c = '0' if j == 0 else a
                    if f < 4:
                        mf.append(('v_mfma_f32_16x16x32_bf16 %s, %s, %s, %s' % (a, w, x, c), f if blk else -1))
                    else:
                        mf.append(('v_mfma_f32_16x16x32_bf16 %s, %s, %s, %s' % (a, x, w, c), f if blk else -1))
            else:
                a = vr(H1 if f == 6 else H2, 4)
                c = '0' if j == 0 else a
                mf.append(('v_mfma_f32_16x16x32_bf16 %s, %s, %s, %s' % (a, w, vr(xreg(j, 2), 4), c), f))
        for f in range(6):
            x = vr(xreg(j, f % 3), 4)
            a = vr((SQ if f < 3 else SM) + 4 * (f % 3), 4)
            mf.append(('v_mfma_f32_16x16x32_bf16 %s, %s, %s, %s' % (a, x if f < 3 else vr(ONES, 4), x, '0' if j == 0 else a), -1))
        fill = []
        if j + 1 < 14:
            fill += [lambda i=i: read_x(j + 1, i) for i in range(3)]
        for i, (txt, done) in enumerate(mf):
            k(txt)
            if done >= 0 and j + 1 < 14:
                fill += [lambda f=done, h=h: read_frag(f, j + 1, h) for h in range(2)]
            if fill:
                fill.pop(0)()
            if i % 5 == 4:
                k.bg()
        for f_ in fill:
            f_()
        if j == 6:
            stamp(k, 3)
        hook('A_k%d' % j)

    k.lg_slack = 0
    k.c('---- phase A epilogue')
    stamp(k, 4)
    T = XR
    s_m = 88
    for i, mk in enumerate((0x22222222, 0x44444444, 0x88888888)):
        k('s_mov_b32 s%d, 0x%x' % (s_m + 2 * i, mk))
        k('s_mov_b32 s%d, 0x%x' % (s_m + 2 * i + 1, mk))
    vAd = T + 16
    k('v_lshlrev_b32 v%d, 4, v3' % vAd)
    k('s_lshl_b32 s%d, s3, 6' % s_tmp)
    k('v_add_u32 v%d, s%d, v%d' % (vAd + 1, s_tmp, vAd))
    k('s_and_b32 s%d, s%d, 64' % (s_tmp, s_tmp))
    k('v_add_u32 v%d, s%d, v%d' % (vAd + 2, s_tmp, vAd))
    k('s_mul_i32 s%d, s3, 384' % s_tmp)
    k('v_lshl_add_u32 v%d, v2, 2, s%d' % (vAd + 3, s_tmp))
    k('v_add_u32 v%d, s%d, v%d' % (vAd + 4, s_tmp, vAd))
    k('s_mov_b32 exec_lo, 0x00010001')
    k('s_mov_b32 exec_hi, 0x00010001')
    k('ds_write_b128 v%d, %s offset:%d' % (vAd + 1, vr(H1, 4), A_LDS_CS + 128))
    k('ds_write_b128 v%d, %s offset:%d' % (vAd + 2, vr(H2, 4), A_LDS_CS))
    k('s_mov_b64 exec, -1')
    RR = T + 8
    for i in range(3):
        for blk in range(3):
            k('v_cndmask_b32 v%d, v%d, v%d, %s' % (SQ + 4 * blk, SQ + 4 * blk, SQ + 4 * blk + 1 + i, sr(s_m + 2 * i, 2)))
    for blk in range(3):
        k('v_mul_f32 v%d, %s, v%d' % (RR + 2 * blk + 1, f32(1.0 / D), SM + 4 * blk))
    for blk in range(3):
        k('v_mul_f32 v%d, v%d, v%d' % (RR + 2 * blk, RR + 2 * blk + 1, RR + 2 * blk + 1))
    for blk in range(3):
        k('v_mul_f32 v%d, %s, v%d' % (SQ + 4 * blk, f32(1.0 / D), SQ + 4 * blk))
    for blk in range(3):
        k('v_sub_f32 v%d, v%d, v%d' % (RR + 2 * blk, SQ + 4 * blk, RR + 2 * blk))
    for blk in range(3):
        k('v_max_f32 v%d, 0, v%d' % (RR + 2 * blk, RR + 2 * blk))
    for blk in range(3):
        k('v_add_f32 v%d, %s, v%d' % (RR + 2 * blk, f32(1e-5), RR + 2 * blk))
    for blk in range(3):
        k('v_rsq_f32 v%d, v%d' % (RR + 2 * blk, RR + 2 * blk))
    k('s_mov_b32 exec_lo, 0x00f0000f')
    k('s_mov_b32 exec_hi, 0xf0000f00')
    for blk in range(3):
        k('ds_write2_b32 v%d, v%d, v%d offset0:%d offset1:%d' % (vAd + 3, RR + 2 * blk, RR + 2 * blk + 1,
                                                               A_LDS_ST // 4 + 32 * blk, A_LDS_ST // 4 + 32 * blk + 16))
    k('s_mov_b64 exec, -1')
    HC = T + 24
    for r in range(4):
        k('v_mov_b32_dpp v%d, v%d row_newbcast:0 row_mask:0xf bank_mask:0xf' % (HC + r, H1 + r))
    vK, vV = T + 28, T + 29
    k('s_and_b32 s%d, s3, 1' % s_tmp)
    k('s_lshl_b32 s%d, s%d, 3' % (s_tmp, s_tmp))
    k('v_add_u32 v%d, s%d, v4' % (vK, s_tmp))
    k('v_lshrrev_b32 v%d, 2, v2' % vV)
    k('v_lshlrev_b32 v%d, 8, v%d' % (vV, vV))
    k('v_lshl_add_u32 v%d, v3, 6, v%d' % (vV, vV))
    k('v_and_b32 v%d, 3, v2' % (vV + 1))
    k('v_lshl_add_u32 v%d, v%d, 1, v%d' % (vV, vV + 1, vV))
    k('v_add_u32 v%d, s%d, v%d' % (vV, s_tmp, vV))
    k('v_add_u32 v%d, 1024, v%d' % (vV, vV))
    k('s_cmp_lt_u32 s3, 2')
    k('s_cselect_b64 vcc, -1, 0')
    k('s_cselect_b32 s%d, 2, 16' % s_tmp)
    k('v_cndmask_b32 v%d, v%d, v%d, vcc' % (vK, vV, vK))
    k('v_add_u32 v%d, s%d, v%d' % (vK + 1, s_tmp, vK))
    k('v_add_u32 v%d, s%d, v%d' % (vK + 2, s_tmp, vK + 1))
    k('v_add_u32 v%d, s%d, v%d' % (vK + 3, s_tmp, vK + 2))
    for r in (0, 2):
        k('v_pk_fma_f32 %s, %s, %s, %s op_sel:[0,1,0] op_sel_hi:[1,1,1] neg_lo:[0,1,0] neg_hi:[0,1,0]' % (
            vr(HC + r, 2), vr(HC + r, 2), vr(RR + 4, 2), vr(H1 + r, 2)))
    k('v_lshlrev_b32 v%d, 2, v2' % (vAd + 1))
    k('s_lshl_b32 s%d, s3, 11' % s_tmp)
    k('v_add_u32 v%d, s%d, v4' % (vAd + 2, s_tmp))
    k('s_cmp_eq_u32 s%d, 15' % s_head)
    k('s_cselect_b32 s%d, 0xffff0000, -1' % s_m)
    k('s_mov_b32 s%d, -1' % (s_m + 1))
    k('s_mov_b32 s%d, -1' % (s_m + 2))
    k('s_cselect_b32 s%d, -1, 0xffff' % (s_m + 3))
    k.wait_lg(0)
    k.barrier()
    stamp(k, 7)
    hook('A_e1')
    CS = T + 32
    CSV = T + 48
    L2 = T + 52
    for blk in (1, 2, 0):
        k('ds_read_b32 v%d, v%d offset:%d' % (RR + 2 * blk, vAd + 3, A_LDS_ST + 128 * blk))
    for s_ in (2, 3):
        k('ds_read_b128 %s, v%d offset:%d' % (vr(CS + 4 * s_, 4), vAd, A_LDS_CS + 64 * s_))
    k('ds_read_b32 v%d, v%d offset:%d' % (CSV, vAd + 1, A_LDS_CS + 256))
    k('ds_read_b32 v%d, v%d offset:%d' % (CSV + 1, vAd + 1, A_LDS_CS + 320))
    for blk in (1, 0):
        k('ds_read_b128 %s, v%d offset:%d' % (vr(L2 + 8 * blk + 4, 4), vAd + 4, A_LDS_ST + blk * 128 + 64))
        k('ds_read_b128 %s, v%d offset:%d' % (vr(L2 + 8 * blk, 4), vAd + 4, A_LDS_ST + blk * 128))
    for s_ in (0, 1):
        k('ds_read_b128 %s, v%d offset:%d' % (vr(CS + 4 * s_, 4), vAd, A_LDS_CS + 64 * s_))
    RQ = T + 68
    qs = (DH ** -0.5) * 1.4426950408889634
    QT = T + 72
    KT = T + 80
    VV = T + 92

    def fix_qk(blk, nbi, scale_reg, dst):
        a = acc(blk, nbi)
        hi = scale_reg & 1
        for r in (0, 2):
            k('v_pk_fma_f32 %s, %s, %s, %s op_sel:[0,1,0] op_sel_hi:[1,1,1] neg_lo:[0,1,0] neg_hi:[0,1,0]' % (
                vr(a + r, 2), vr(CS + 4 * nbi + r, 2), vr(RR + 2 * blk, 2), vr(a + r, 2)))
        for r in (0, 2):
            k('v_pk_mul_f32 %s, %s, %s op_sel:[0,%d] op_sel_hi:[1,%d]' % (vr(a + r, 2), vr(a + r, 2), vr(scale_reg - hi, 2), hi, hi))
        k('v_cvt_pk_bf16_f32 v%d, v%d, v%d' % (dst, a, a + 1))
        k('v_cvt_pk_bf16_f32 v%d, v%d, v%d' % (dst + 1, a + 2, a + 3))
        k.bg()

    def fix_v(blk, nb):
        a = acc(blk, 4 + nb)
        for r in (0, 2):
            k('v_pk_fma_f32 %s, %s, %s, %s op_sel:[0,%d,0] op_sel_hi:[1,%d,1] neg_lo:[0,1,0] neg_hi:[0,1,0]' % (
                vr(a + r, 2), vr(L2 + 8 * blk + 4 + r, 2), vr(CSV, 2), vr(a + r, 2), nb, nb))
        for r in (0, 2):
            k('v_pk_mul_f32 %s, %s, %s' % (vr(a + r, 2), vr(a + r, 2), vr(L2 + 8 * blk + r, 2)))
        dst = VV + 6 * nb + 2 + 2 * blk
        k('v_cvt_pk_bf16_f32 v%d, v%d, v%d' % (dst, a, a + 1))
        k('v_cvt_pk_bf16_f32 v%d, v%d, v%d' % (dst + 1, a + 2, a + 3))
        k.bg()

    fix_qk(1, 2, RR + 2, KT + 8)
    fix_qk(1, 3, RR + 2, KT + 10)
    k('ds_write_b128 v%d, %s offset:%d' % (vAd + 2, vr(KT + 8, 4), A_LDS_KV + 2048))
    for r in (0, 2):
        k('v_pk_mul_f32 %s, %s, %s op_sel_hi:[1,0]' % (vr(HC + r, 2), vr(HC + r, 2), vr(RR + 4, 2)))
    k('v_cvt_pk_bf16_f32 v%d, v%d, v%d' % (HC, HC, HC + 1))
    k('v_cvt_pk_bf16_f32 v%d, v%d, v%d' % (HC + 2, HC + 2, HC + 3))
    k('ds_write_b16 v%d, v%d offset:%d' % (vK, HC, A_LDS_KV))
    k('ds_write_b16_d16_hi v%d, v%d offset:%d' % (vK + 1, HC, A_LDS_KV))
    k('ds_write_b16 v%d, v%d offset:%d' % (vK + 2, HC + 2, A_LDS_KV))
    k('ds_write_b16_d16_hi v%d, v%d offset:%d' % (vK + 3, HC + 2, A_LDS_KV))
    fix_v(1, 0)
    fix_v(1, 1)
    k('ds_write_b64 v%d, %s offset:%d' % (vAd + 2, vr(VV + 4, 2), A_LDS_KV + 2048 + 1024))
    k('ds_write_b64 v%d, %s offset:%d' % (vAd + 2, vr(VV + 10, 2), A_LDS_KV + 2048 + 1024 + 8))
    for blk in range(2):
        k('v_mul_f32 v%d, %s, v%d' % (RQ + 2 * blk, f32(qs), RR + 2 * blk))
    for blk in range(2):
        k('v_cndmask_b32 v%d, 0, v%d, %s' % (RQ + 2 * blk + 1, RQ + 2 * blk, sr(s_m + 2, 2)))
        k('v_cndmask_b32 v%d, 0, v%d, %s' % (RQ + 2 * blk, RQ + 2 * blk, sr(s_m, 2)))
    fix_qk(0, 2, RR + 0, KT + 4)
    fix_qk(0, 3, RR + 0, KT + 6)
    k.wait_lg(0)
    k.barrier()
    stamp(k, 8)
    k('ds_read_b128 %s, v%d offset:%d' % (vr(KT, 4), vAd + 2, A_LDS_KV))
    k('ds_read_b64 %s, v%d offset:%d' % (vr(VV, 2), vAd + 2, A_LDS_KV + 1024))
    k('ds_read_b64 %s, v%d offset:%d' % (vr(VV + 6, 2), vAd + 2, A_LDS_KV + 1024 + 8))
    fix_qk(1, 0, RQ + 2, QT + 4)
    fix_qk(1, 1, RQ + 3, QT + 6)
    SS = T + 104
    k('v_mfma_f32_16x16x32_bf16 %s, %s, %s, %s' % (vr(SS + 8, 4), vr(KT + 4, 4), vr(QT + 4, 4), vr(BP, 4)))
    k('v_mfma_f32_16x16x32_bf16 %s, %s, %s, %s' % (vr(SS + 12, 4), vr(KT + 8, 4), vr(QT + 4, 4), vr(BC, 4)))
    fix_qk(0, 0, RQ + 0, QT + 0)
    fix_qk(0, 1, RQ + 1, QT + 2)
    k('v_mfma_f32_16x16x32_bf16 %s, %s, %s, %s' % (vr(SS + 0, 4), vr(KT + 0, 4), vr(QT, 4), vr(BPA, 4)))
    k('v_mfma_f32_16x16x32_bf16 %s, %s, %s, %s' % (vr(SS + 4, 4), vr(KT + 4, 4), vr(QT, 4), vr(BC, 4)))
    fix_v(0, 0)
    fix_v(0, 1)
    MX = ACC
    TM = ACC + 2
    for blk in (1, 0):
        s_ = SS + 8 * blk
        k('v_max3_f32 v%d, v%d, v%d, v%d' % (MX + blk, s_, s_ + 1, s_ + 2))
        k('v_max3_f32 v%d, v%d, v%d, v%d' % (TM + blk, s_ + 3, s_ + 4, s_ + 5))
        k('v_max3_f32 v%d, v%d, v%d, v%d' % (MX + blk, MX + blk, s_ + 6, s_ + 7))
        k('v_max_f32 v%d, v%d, v%d' % (MX + blk, MX + blk, TM + blk))
    k.bg()
    xgroup_reduce(k, [MX, MX + 1], [TM, TM + 1], op='v_max_f32')
    k.bg_flush()
    stamp(k, 9)
    SUM = ACC + 4
    PP = ACC + 8
    OO = ACC + 16
    for blk in (1, 0):
        s_ = SS + 8 * blk
        for i in range(0, 8, 2):
            k('v_pk_add_f32 %s, %s, %s op_sel:[0,%d] op_sel_hi:[1,%d] neg_lo:[0,1] neg_hi:[0,1]' % (vr(s_ + i, 2), vr(s_ + i, 2), vr(MX, 2), blk, blk))
        for i in range(8):
            k('v_exp_f32 v%d, v%d' % (s_ + i, s_ + i))
        for i in range(4):
            k('v_cvt_pk_bf16_f32 v%d, v%d, v%d' % (PP + 4 * blk + i, s_ + 2 * i, s_ + 2 * i + 1))
        for nb in range(2):
            k('v_mfma_f32_16x16x32_bf16 %s, %s, %s, 0' % (vr(OO + 8 * blk + 4 * nb, 4), vr(VV + 6 * nb + 2 * blk, 4),
                                                          vr(PP + 4 * blk, 4)))
    for blk in range(2):
        s_ = SS + 8 * blk
        k('v_pk_add_f32 %s, %s, %s' % (vr(s_, 2), vr(s_, 2), vr(s_ + 2, 2)))
        k('v_pk_add_f32 %s, %s, %s' % (vr(s_ + 4, 2), vr(s_ + 4, 2), vr(s_ + 6, 2)))
    for blk in range(2):
        s_ = SS + 8 * blk
        k('v_pk_add_f32 %s, %s, %s' % (vr(s_, 2), vr(s_, 2), vr(s_ + 4, 2)))
    for blk in range(2):
        s_ = SS + 8 * blk
        k('v_add_f32 v%d, v%d, v%d' % (SUM + 2 * blk, s_, s_ + 1))
    xgroup_reduce(k, [SUM, SUM + 2], [TM, TM + 1])
    for blk in range(2):
        k('v_rcp_f32 v%d, v%d' % (SUM + 2 * blk, SUM + 2 * blk))
    for blk in range(2):
        k('v_cndmask_b32 v%d, 0, v%d, %s' % (SUM + 2 * blk + 1, SUM + 2 * blk, sr(s_m + 2, 2)))
        k('v_cndmask_b32 v%d, 0, v%d, %s' % (SUM + 2 * blk, SUM + 2 * blk, sr(s_m, 2)))
    k('s_lshl_b32 s%d, s%d, 3' % (s_tmp, s_rb))
    k('s_lshl_b32 s%d, s3, 1' % s_t0)
    k('s_add_u32 s%d, s%d, s%d' % (s_tmp, s_tmp, s_t0))
    k('s_lshl_b32 s%d, s%d, 4' % (s_tmp, s_tmp))
    k('s_add_u32 s%d, s%d, s%d' % (s_tmp, s_tmp, s_head))
    k('s_lshl_b32 s%d, s%d, 10' % (s_tmp, s_tmp))
    if OF_OFF:
        k('s_add_u32 s%d, s%d, 0x%x' % (s_tmp, s_tmp, OF_OFF))
    k('s_add_u32 s%d, s%d, 16384' % (s_t0, s_tmp))
    for blk in range(2):
        o = OO + 8 * blk
        for r in (0, 2):
            k('v_pk_mul_f32 %s, %s, %s op_sel_hi:[1,0]' % (vr(o + r, 2), vr(o + r, 2), vr(SUM + 2 * blk, 2)))
        for r in (0, 2):
            k('v_pk_mul_f32 %s, %s, %s op_sel:[0,1] op_sel_hi:[1,1]' % (vr(o + 4 + r, 2), vr(o + 4 + r, 2), vr(SUM + 2 * blk, 2)))
        p = PP + 4 * blk
        for i in range(4):
            k('v_cvt_pk_bf16_f32 v%d, v%d, v%d' % (p + i, o + 2 * i, o + 2 * i + 1))
        k('buffer_store_dwordx4 %s, v4, %s, s%d offen %s' % (vr(p, 4), srd(SRD_WS), s_tmp if blk == 0 else s_t0, sc1), tag='ost')


STAMP_OFF = 0xA00000


DST = {5: 1, 10: 2, 15: 3, 16: 4, 22: 5, 24: 6, 29: 7}


def dstamp(k, idx, vtmp=253, stmp=74):
    if idx not in DST and idx != 0:
        return
    slot = DST.get(idx, 0)
    k('s_memrealtime %s' % sr(stmp, 2))
    k('s_cmp_eq_u32 s2, 131')
    k('s_cselect_b32 s%d, %d, %s' % (stmp + 4, 32 + 4 * slot, '0x%x' % OOB))
    if slot:
        k('s_cmp_eq_u32 s2, 0')
        k('s_cselect_b32 s%d, %d, s%d' % (stmp + 4, 4 * slot, stmp + 4))
    k('v_mov_b32 v%d, s%d' % (vtmp + 2, stmp + 4))
    k('v_mov_b32 v%d, s%d' % (vtmp, stmp))
    k('s_cmp_eq_u32 s3, 0')
    k('s_cselect_b64 exec, 1, 0')
    k('buffer_store_dword v%d, v%d, %s, 0 offen' % (vtmp, vtmp + 2, srd(SRD_DBG)))
    k('s_mov_b64 exec, -1')


def stamp(k, idx, vtmp=253, stmp=74):
    if getattr(k, 'stamps', False) == 'dbg':
        return dstamp(k, idx, vtmp, stmp)
    if not getattr(k, 'stamps', False):
        return
    k('s_memrealtime %s' % sr(stmp, 2))
    k('s_memtime %s' % sr(stmp + 2, 2))
    k('s_lshl_b32 s%d, s2, 2' % (stmp + 4))
    k('s_add_u32 s%d, s%d, s3' % (stmp + 4, stmp + 4))
    k('s_lshl_b32 s%d, s%d, 7' % (stmp + 4, stmp + 4))
    k('s_add_u32 s%d, s%d, 0x%x' % (stmp + 4, stmp + 4, STAMP_OFF + 4 * idx))
    k('v_mov_b32 v%d, s%d' % (vtmp, stmp))
    k('v_mov_b32 v%d, s%d' % (vtmp + 1, stmp + 2))
    k('v_mov_b32 v%d, 0' % (vtmp + 2))
    k('s_mov_b64 exec, 1')
    k('buffer_store_dword v%d, v%d, %s, s%d offen' % (vtmp, vtmp + 2, srd(SRD_WS), stmp + 4))
    k('s_add_u32 s%d, s%d, 0x20000' % (stmp + 4, stmp + 4))
    k('buffer_store_dword v%d, v%d, %s, s%d offen' % (vtmp + 1, vtmp + 2, srd(SRD_WS), stmp + 4))
    k('s_mov_b64 exec, -1')


def spin_guard(k):
    k('s_sub_u32 s%d, s%d, 1' % (S_SPIN, S_SPIN))
    k('s_cbranch_scc1 %s' % k.end_label)


def epoch_publish(k, vt):
    k('s_memrealtime %s' % sr(S_T, 2))
    k('v_mov_b32 v%d, 0' % (vt + 1))
    k('s_or_b32 s%d, s%d, 1' % (S_T, S_T))
    k('v_mov_b32 v%d, s%d' % (vt, S_T))
    k('s_or_b32 s%d, s2, s3' % S_T)
    k('s_cmp_eq_u32 s%d, 0' % S_T)
    k('s_cselect_b64 exec, 1, 0')
    k('buffer_store_dword v%d, v%d, %s, 0 offen sc1' % (vt, vt + 1, srd(SRD_DBG)))
    k('s_mov_b64 exec, -1')


def epoch_load(k, vt):
    k('v_mov_b32 v%d, 0' % (vt + 1))
    k('buffer_load_dword v%d, v%d, %s, 0 offen sc1' % (vt, vt + 1, srd(SRD_DBG)))


def epoch_get(k, vt):
    L = k.newlabel('Lepg')
    done = k.newlabel('Lepd')
    k('v_readfirstlane_b32 s%d, v%d' % (S_EPOCH, vt))
    k('s_cmp_lg_u32 s%d, 0' % S_EPOCH)
    k.branch_fwd('s_cbranch_scc1', done)
    k.loop_label(L)
    spin_guard(k)
    k('buffer_load_dword v%d, v%d, %s, 0 offen sc1' % (vt, vt + 1, srd(SRD_DBG)))
    k.force_wait(vm=0)
    k('v_readfirstlane_b32 s%d, v%d' % (S_EPOCH, vt))
    k('s_cmp_eq_u32 s%d, 0' % S_EPOCH)
    k('s_cbranch_scc1 %s' % L)
    k.label(done)


FLAG_A = FLAG_OFF
FLAG_B = FLAG_OFF + 0x1000
FLAG_C = FLAG_OFF + 0x2000


def flag_store(k, vt, s_off):
    k('v_mov_b32 v%d, s%d' % (vt, S_EPOCH))
    k('s_mov_b64 exec, 1')
    k('buffer_store_dword v%d, v%d, %s, s%d offen sc1' % (vt, vt + 1, srd(SRD_WS), s_off))
    k('s_mov_b64 exec, -1')


def flag_poll(k, vt, voff, s_off):
    L = k.newlabel('Lpoll')
    k.loop_label(L)
    spin_guard(k)
    k('buffer_load_dword v%d, v%d, %s, s%d offen sc1' % (vt, voff, srd(SRD_WS), s_off))
    k.force_wait(vm=0)
    k('v_cmp_ne_u32 vcc, s%d, v%d' % (S_EPOCH, vt))
    k('s_cbranch_vccnz %s' % L)


class B:
    s_tmp, s_wbase, s_t2, s_x = 58, 59, 60, 61
    s_dma = 73
    vWo, vR0, vR1 = 208, 209, 210
    ACC = 192
    OFR = 32
    T = 64
    HK = 240


def B_setup(k):
    b, g = B, G
    k.c('---- phase B setup')
    t = TMP
    k('v_lshrrev_b32 v%d, 3, v1' % t)
    k('v_mul_u32_u24 v%d, 896, v%d' % (b.vWo, t))
    k('v_and_b32 v%d, 1, v3' % t)
    k('v_lshlrev_b32 v%d, 2, v%d' % (t, t))
    k('v_and_b32 v%d, 7, v1' % (t + 1))
    k('v_xor_b32 v%d, v%d, v%d' % (t, t, t + 1))
    k('v_lshl_add_u32 v%d, v%d, 4, v%d' % (b.vWo, t, b.vWo))
    k('s_lshl_b32 s%d, s%d, 7' % (b.s_tmp, g.s_dtD))
    k('s_mul_i32 s%d, s3, %d' % (b.s_t2, 112 * 896))
    k('s_add_u32 s%d, s%d, s%d' % (b.s_tmp, b.s_tmp, b.s_t2))
    k('v_add_u32 v%d, s%d, v%d' % (b.vWo, b.s_tmp, b.vWo))
    k('s_mul_i32 s%d, s3, %d' % (b.s_wbase, 112 * 128))
    k('s_add_u32 s%d, s%d, %d' % (b.s_wbase, b.s_wbase, LDS_WO))
    k('v_lshrrev_b32 v%d, 5, v1' % t)
    k('v_lshlrev_b32 v%d, 9, v%d' % (b.vR0, t))
    k('v_bfe_u32 v%d, v1, 2, 2' % t)
    k('v_lshl_add_u32 v%d, v%d, 7, v%d' % (b.vR0, t, b.vR0))
    k('v_lshrrev_b32 v%d, 1, v%d' % (t, t))
    k('s_and_b32 s%d, s3, 1' % b.s_tmp)
    k('v_xor_b32 v%d, s%d, v%d' % (t, b.s_tmp, t))
    k('v_lshl_add_u32 v%d, v%d, 6, v%d' % (b.vR0, t, b.vR0))
    k('v_and_b32 v%d, 1, v3' % t)
    k('v_lshl_add_u32 v%d, v%d, 5, v%d' % (b.vR0, t, b.vR0))
    k('v_and_b32 v%d, 3, v1' % t)
    k('v_lshl_add_u32 v%d, v%d, 3, v%d' % (b.vR0, t, b.vR0))
    k('v_add_u32 v%d, %d, v%d' % (b.vR0, LDS_WO, b.vR0))


def B_wo_dma(k):
    b = B
    for i in range(14):
        k('s_add_u32 m0, s%d, %d' % (b.s_wbase, i * 1024))
        k('s_mov_b32 s%d, %d' % (b.s_dma, 8 * i * 896))
        k('buffer_load_dwordx4 v%d, %s, s%d offen lds' % (b.vWo, srd(SRD_WO), b.s_dma), tag='wo')


def B_wo_read(k, abase):
    b = B
    for h in range(16):
        for ks in range(2):
            a = abase + 8 * h + 4 * ks
            o = h * 3584 + ks * 1024 - (512 if h == 15 else 0)
            k('ds_read_b64_tr_b16 %s, v%d offset:%d' % (ar(a, 2), b.vR0, o))
            k('ds_read_b64_tr_b16 %s, v%d offset:%d' % (ar(a + 2, 2), b.vR0, o + 2048))


def B_xinit(k):
    b, g = B, G
    t = TMP + 2
    k('v_lshrrev_b32 v%d, 5, v1' % t)
    k('v_mul_u32_u24 v%d, %d, v%d' % (t, 4 * 896, t))
    k('v_and_b32 v%d, 31, v1' % (t + 1))
    k('v_lshl_add_u32 v%d, v%d, 1, v%d' % (t, t + 1, t))
    k('s_lshl_b32 s%d, s%d, 1' % (b.s_tmp, g.s_st))
    k('s_lshr_b32 s%d, s3, 1' % b.s_t2)
    k('s_add_u32 s%d, s%d, s%d' % (b.s_tmp, b.s_tmp, b.s_t2))
    k('s_mul_i32 s%d, s%d, %d' % (b.s_tmp, b.s_tmp, 32 * 896))
    k('s_lshl_b32 s%d, s%d, 7' % (b.s_t2, g.s_dtD))
    k('s_add_u32 s%d, s%d, s%d' % (b.s_tmp, b.s_tmp, b.s_t2))
    k('s_and_b32 s%d, s3, 1' % b.s_t2)
    k('s_lshl_b32 s%d, s%d, 6' % (b.s_t2, b.s_t2))
    k('s_add_u32 s%d, s%d, s%d' % (b.s_tmp, b.s_tmp, b.s_t2))
    for q in range(4):
        for r in range(4):
            k('buffer_load_ushort v%d, v%d, %s, s%d offen offset:%d' % (b.ACC + 4 * q + r, t, srd(SRD_X), b.s_tmp, r * 896))
        if q < 3:
            k('s_add_u32 s%d, s%d, %d' % (b.s_tmp, b.s_tmp, 8 * 896))


def B_xinit_finish(k):
    b = B
    for i in range(16):
        k('v_lshlrev_b32 v%d, 16, v%d' % (b.ACC + i, b.ACC + i))


def B_main(k, abase, lds_o, lds_small, sc1='', hooks=None):
    b, g = B, G
    t = b.T
    k.c('---- phase B main')
    hooks = hooks or {}

    def hook(name):
        if name in hooks:
            hooks[name]()
    k('s_lshl_b32 s%d, s%d, 16' % (b.s_tmp, g.s_st))
    k('s_lshl_b32 s%d, s3, 14' % b.s_t2)
    k('s_add_u32 s%d, s%d, s%d' % (b.s_tmp, b.s_tmp, b.s_t2))
    if OF_OFF:
        k('s_add_u32 s%d, s%d, 0x%x' % (b.s_tmp, b.s_tmp, OF_OFF))
    for i in range(16):
        if i % 4 == 0:
            k('s_add_u32 m0, s%d, %d' % (b.s_t2, lds_o + i * 1024))
            if i:
                k('s_add_u32 s%d, s%d, 4096' % (b.s_tmp, b.s_tmp))
        k('buffer_load_dwordx4 v4, %s, s%d offen offset:%d %s lds' % (srd(SRD_WS), b.s_tmp, (i % 4) * 1024, sc1), tag='of%d' % (i // 8))
    k('v_and_b32 v%d, 1, v3' % t)
    k('v_lshlrev_b32 v%d, 14, v%d' % (t, t))
    k('v_lshl_add_u32 v%d, v2, 4, v%d' % (t, t))
    k('v_lshrrev_b32 v%d, 5, v1' % (t + 1))
    k('v_lshl_add_u32 v%d, v%d, 8, v%d' % (t, t + 1, t))
    k('s_lshr_b32 s%d, s3, 1' % b.s_t2)
    k('s_lshl_b32 s%d, s%d, 15' % (b.s_t2, b.s_t2))
    k('s_add_u32 s%d, s%d, %d' % (b.s_t2, b.s_t2, lds_o))
    k('v_add_u32 v%d, s%d, v%d' % (t, b.s_t2, t))
    hook('B_after_of')
    a = vr(b.ACC, 16)

    def rd(i):
        k('ds_read_b128 %s, v%d offset:%d' % (vr(b.OFR + 4 * (i % 8), 4), t, i * 512))
    for half in range(2):
        k.wait_tag('of%d' % half)
        k.barrier()
        if half == 0:
            stamp(k, 11)
        for i in range(16 * half, 16 * half + (6 if half == 0 else 2)):
            rd(i)
        for i in range(16 * half - (4 if half else 0), 16 * half + (12 if half == 0 else 16)):
            k('v_mfma_f32_32x32x16_bf16 %s, %s, %s, %s' % (a, vr(b.OFR + 4 * (i % 8), 4), ar(abase + 4 * i, 4), a))
            if i + 6 < 16 * half + 16 and i + 6 >= 16 * half + (6 if half == 0 else 2):
                rd(i + 6)
            k.bg()
    stamp(k, 12)
    Q = t + 4
    V = t + 20
    A = b.ACC
    for i in range(0, 16, 2):
        k('v_pk_mul_f32 %s, %s, %s' % (vr(Q + i, 2), vr(A + i, 2), vr(A + i, 2)))
    def src(base, q, idx):
        r = ((idx & 1) << 1) | (idx >> 1)
        return base + 4 * q + r
    for base, dst in ((A, V), (Q, V + 8)):
        for q in range(4):
            for p in range(2):
                x = src(base, q, 2 * p)
                k('v_add_f32_dpp v%d, v%d, v%d row_mirror row_mask:0xf bank_mask:0x3' % (dst + 2 * q + p, x, x))
    for base, dst in ((A, V), (Q, V + 8)):
        for q in range(4):
            for p in range(2):
                x = src(base, q, 2 * p + 1)
                k('v_add_f32_dpp v%d, v%d, v%d row_mirror row_mask:0xf bank_mask:0xc' % (dst + 2 * q + p, x, x))
    for i in range(8):
        k('v_add_f32_dpp v%d, v%d, v%d row_half_mirror row_mask:0xf bank_mask:0x5' % (V + 2 * i, V + 2 * i, V + 2 * i))
    for i in range(8):
        k('v_add_f32_dpp v%d, v%d, v%d row_half_mirror row_mask:0xf bank_mask:0xa' % (V + 2 * i, V + 2 * i + 1, V + 2 * i + 1))
    for i in range(8):
        k('v_add_f32_dpp v%d, v%d, v%d quad_perm:[1,0,3,2] row_mask:0xf bank_mask:0xf' % (V + 2 * i + 1, V + 2 * i, V + 2 * i))
    U = Q
    for i in range(8):
        k('v_add_f32_dpp v%d, v%d, v%d quad_perm:[2,3,0,1] row_mask:0xf bank_mask:0xf' % (U + i, V + 2 * i + 1, V + 2 * i + 1))
    for kind in range(2):
        for i in range(2):
            k('v_permlane16_swap_b32 v%d, v%d' % (U + 4 * kind + 2 * i, U + 4 * kind + 2 * i + 1))
    W_ = V
    for i in range(2):
        for kind in range(2):
            k('v_add_f32 v%d, v%d, v%d' % (W_ + 2 * i + kind, U + 4 * kind + 2 * i, U + 4 * kind + 2 * i + 1))
    vA, vC, vG = t + 1, t + 2, t + 3
    k('v_and_b32 v%d, 1, v3' % vA)
    k('v_lshlrev_b32 v%d, 6, v%d' % (vA, vA))
    k('v_lshrrev_b32 v%d, 5, v1' % vC)
    k('v_lshl_add_u32 v%d, v%d, 5, v%d' % (vA, vC, vA))
    k('v_bfe_u32 v%d, v1, 2, 2' % vG)
    k('v_lshl_add_u32 v%d, v%d, 3, v%d' % (vA, vG, vA))
    k('s_lshl_b32 s%d, s3, 8' % b.s_tmp)
    k('v_add_u32 v%d, s%d, v%d' % (vA, b.s_tmp, vA))
    k('ds_write_b64 v%d, %s offset:%d' % (vA, vr(W_, 2), lds_small))
    k('ds_write_b64 v%d, %s offset:%d' % (vA, vr(W_ + 2, 2), lds_small + 128))
    k('v_and_b32 v%d, 31, v1' % vG)
    k('v_lshlrev_b32 v%d, 9, v%d' % (vA, vC))
    k('v_lshl_add_u32 v%d, v%d, 4, v%d' % (vA, vG, vA))
    k('v_lshlrev_b32 v%d, 8, v%d' % (vC, vC))
    k('v_lshl_add_u32 v%d, v%d, 3, v%d' % (vC, vG, vC))
    k('s_and_b32 s%d, s%d, 512' % (b.s_tmp, b.s_tmp))
    k('v_add_u32 v%d, s%d, v%d' % (vC, b.s_tmp, vC))
    k('s_lshl_b32 s%d, s%d, 1' % (b.s_tmp, g.s_st))
    k('s_lshr_b32 s%d, s3, 1' % b.s_t2)
    k('s_add_u32 s%d, s%d, s%d' % (b.s_tmp, b.s_tmp, b.s_t2))
    k('s_lshl_b32 s%d, s%d, 12' % (b.s_tmp, b.s_tmp))
    k('s_add_u32 s%d, s%d, 0x%x' % (b.s_tmp, b.s_tmp, STAT_OFF))
    k('s_lshl_b32 s%d, s%d, 9' % (b.s_t2, g.s_dtD))
    k('s_add_u32 s%d, s%d, s%d' % (b.s_t2, b.s_t2, b.s_tmp))
    k.wait_lg(0)
    k.barrier()
    k('ds_read_b64 %s, v%d offset:%d' % (vr(V, 2), vC, lds_small))
    G_ = V + 4
    k('v_mov_b32 v%d, s%d' % (G_ + 1, S_EPOCH))
    k('v_mov_b32 v%d, s%d' % (G_ + 3, S_EPOCH))
    k('v_mov_b32 v%d, v%d' % (G_, V))
    k('v_mov_b32 v%d, v%d' % (G_ + 2, V + 1))
    k('v_permlane32_swap_b32 v%d, v%d' % (G_, V))
    k('v_permlane32_swap_b32 v%d, v%d' % (G_ + 2, V + 1))
    k('v_add_f32 v%d, v%d, v%d' % (G_, G_, V))
    k('v_add_f32 v%d, v%d, v%d' % (G_ + 2, G_ + 2, V + 1))
    k('s_bitcmp0_b32 s3, 0')
    k('s_cselect_b32 exec_lo, -1, 0')
    k('s_mov_b32 exec_hi, 0')
    k('buffer_store_dwordx4 %s, v%d, %s, s%d offen sc1' % (vr(G_, 4), vA, srd(SRD_WS), b.s_t2))
    k('s_mov_b64 exec, -1')
    for i in range(8):
        k('v_cvt_pk_bf16_f32 v%d, v%d, v%d' % (b.HK + i, A + 2 * i, A + 2 * i + 1))
    k('s_lshl_b32 s%d, s%d, 1' % (b.s_x, g.s_dtD))
    k('s_and_b32 s%d, s3, 1' % b.s_t2)
    k('s_add_u32 s%d, s%d, s%d' % (b.s_x, b.s_x, b.s_t2))
    k('s_lshl_b32 s%d, s%d, 7' % (b.s_x, b.s_x))
    k('s_lshl_b32 s%d, s%d, 2' % (b.s_t2, g.s_st))
    k('s_add_u32 s%d, s%d, s%d' % (b.s_x, b.s_x, b.s_t2))
    k('s_and_b32 s%d, s3, 2' % b.s_t2)
    k('s_add_u32 s%d, s%d, s%d' % (b.s_x, b.s_x, b.s_t2))
    k('s_lshl_b32 s%d, s%d, 10' % (b.s_x, b.s_x))
    k('s_add_u32 s%d, s%d, 0x%x' % (b.s_x, b.s_x, HH_OFF))
    k('v_lshlrev_b32 v%d, 4, v%d' % (vC, vG))
    k('v_cmp_gt_u32 %s, 32, v1' % sr(S_T, 2))
    hook('B_before_poll')
    P0 = t + 32
    L = k.newlabel('Lst')
    k.loop_label(L)
    spin_guard(k)
    for i in range(4):
        k('buffer_load_dwordx4 %s, v%d, %s, s%d offen offset:%d sc1' % (vr(P0 + 4 * i, 4), vA if i < 3 else vC, srd(SRD_WS), b.s_tmp, i * 1024))
    k.force_wait(vm=0)
    for i in range(8):
        k('v_xor_b32 v%d, s%d, v%d' % (P0 + 2 * i + 1, S_EPOCH, P0 + 2 * i + 1))
    k('v_or3_b32 v%d, v%d, v%d, v%d' % (P0 + 1, P0 + 1, P0 + 3, P0 + 5))
    k('v_or3_b32 v%d, v%d, v%d, v%d' % (P0 + 7, P0 + 7, P0 + 9, P0 + 11))
    k('v_or3_b32 v%d, v%d, v%d, v%d' % (P0 + 1, P0 + 1, P0 + 13, P0 + 15))
    k('v_or_b32 v%d, v%d, v%d' % (P0 + 1, P0 + 1, P0 + 7))
    k('v_cmp_ne_u32 vcc, 0, v%d' % (P0 + 1))
    k('s_cbranch_vccnz %s' % L)
    stamp(k, 13)
    Sx, Qx = P0, P0 + 2
    k('v_cndmask_b32 v%d, 0, v%d, %s' % (P0 + 12, P0 + 12, sr(S_T, 2)))
    k('v_cndmask_b32 v%d, 0, v%d, %s' % (P0 + 14, P0 + 14, sr(S_T, 2)))
    for x in (Sx, Qx):
        k('v_add_f32 v%d, v%d, v%d' % (x, x, x + 4))
        k('v_add_f32 v%d, v%d, v%d' % (x + 8, x + 8, x + 12))
    for x in (Sx, Qx):
        k('v_add_f32 v%d, v%d, v%d' % (x, x, x + 8))
    k('v_mov_b32 v%d, v%d' % (P0 + 4, Sx))
    k('v_mov_b32 v%d, v%d' % (P0 + 6, Qx))
    k('v_permlane32_swap_b32 v%d, v%d' % (Sx, P0 + 4))
    k('v_permlane32_swap_b32 v%d, v%d' % (Qx, P0 + 6))
    k('v_add_f32 v%d, v%d, v%d' % (Sx, Sx, P0 + 4))
    k('v_add_f32 v%d, v%d, v%d' % (Qx, Qx, P0 + 6))
    M, R = P0 + 1, P0 + 3
    k('v_mul_f32 v%d, %s, v%d' % (M, f32(1.0 / D), Sx))
    k('v_mul_f32 v%d, %s, v%d' % (Qx, f32(1.0 / D), Qx))
    k('v_fma_f32 v%d, -v%d, v%d, v%d' % (Qx, M, M, Qx))
    k('v_max_f32 v%d, 0, v%d' % (Qx, Qx))
    k('v_add_f32 v%d, %s, v%d' % (R, f32(1e-5), Qx))
    k('v_rsq_f32 v%d, v%d' % (R, R))
    k('v_mul_f32 v%d, v%d, v%d' % (Qx, Qx, R))
    k('v_fmaak_f32 v%d, v%d, v%d, %s' % (Qx, Qx, R, f32(1e-5)))
    k('v_rsq_f32 v%d, v%d' % (Qx, Qx))
    k('v_mul_f32 v%d, v%d, v%d' % (R, R, Qx))
    k('s_lshl_b32 s%d, s3, 8' % b.s_t2)
    k('v_lshl_add_u32 v%d, v%d, 2, s%d' % (vC, vG, b.s_t2))
    k('ds_write_b32 v%d, v%d offset:%d' % (vC, M, lds_small + 1024))
    k('ds_write_b32 v%d, v%d offset:%d' % (vC, R, lds_small + 1024 + 128))
    k('v_lshrrev_b32 v%d, 5, v1' % vC)
    k('v_lshl_add_u32 v%d, v%d, 4, s%d' % (vC, vC, b.s_t2))
    MM = P0 + 16
    k.wait_lg(0)
    for q in range(4):
        k('ds_read_b128 %s, v%d offset:%d' % (vr(MM + 4 * q, 4), vC, lds_small + 1024 + 32 * q))
        k('ds_read_b128 %s, v%d offset:%d' % (vr(MM + 16 + 4 * q, 4), vC, lds_small + 1024 + 128 + 32 * q))
    for tp in range(2):
        for i in range(8 * tp, 8 * tp + 8, 2):
            k('v_pk_add_f32 %s, %s, %s neg_lo:[0,1] neg_hi:[0,1]' % (vr(A + i, 2), vr(A + i, 2), vr(MM + i, 2)))
        for i in range(8 * tp, 8 * tp + 8, 2):
            k('v_pk_mul_f32 %s, %s, %s' % (vr(A + i, 2), vr(A + i, 2), vr(MM + 16 + i, 2)))
        p = V + 4 * tp
        for i in range(4):
            k('v_cvt_pk_bf16_f32 v%d, v%d, v%d' % (p + i, A + 8 * tp + 2 * i, A + 8 * tp + 2 * i + 1))
        k('buffer_store_dwordx4 %s, v4, %s, s%d offen offset:%d %s' % (vr(p, 4), srd(SRD_WS), b.s_x, tp * 1024, sc1), tag='hst')


def agent(k):
    g = G
    k.c('---- agent: W2 warm-up')
    k('s_lshr_b32 s%d, s2, 3' % g.s_tmp)
    k('s_bfe_u32 s%d, s2, 0x20001' % g.s_t2)
    k('s_lshl_b32 s%d, s%d, 3' % (g.s_t2, g.s_t2))
    k('s_add_u32 s%d, s%d, s%d' % (g.s_tmp, g.s_tmp, g.s_t2))
    k('s_sub_u32 s%d, s%d, 24' % (g.s_tmp, g.s_tmp))
    k('s_lshl_b32 s%d, s%d, 2' % (g.s_tmp, g.s_tmp))
    k('s_add_u32 s%d, s%d, s3' % (g.s_tmp, g.s_tmp))
    k('s_mul_i32 s%d, s%d, 57344' % (g.s_tmp, g.s_tmp))
    k('v_lshlrev_b32 v16, 7, v1')
    for i in range(7):
        k('buffer_load_dword v%d, v16, %s, s%d offen' % (17 + i, srd(SRD_W2), g.s_tmp))
        k('s_add_u32 s%d, s%d, 8192' % (g.s_tmp, g.s_tmp))
    k.wait_vm(0)


class G:
    ACC = 16
    RING = 80
    NR = 16
    vW1, vW2 = 213, 214
    vRa, vRb = 215, 216
    vSa, vSb = 217, 218
    vCl = 5
    T = 220
    s_dtC, s_ft, s_dtD, s_st, s_tmp, s_t2, s_stage, s_a0, s_a1 = 64, 65, 66, 67, 68, 69, 70, 71, 72


def G_map(k):
    g = G
    k.c('---- C/D tile map')
    k('s_lshr_b32 s%d, s2, 3' % g.s_tmp)
    k('s_mul_i32 s%d, s%d, 86' % (g.s_t2, g.s_tmp))
    k('s_lshr_b32 s%d, s%d, 8' % (g.s_t2, g.s_t2))
    k('s_lshr_b32 s%d, s%d, 2' % (g.s_a0, g.s_tmp))
    k('s_and_b32 s%d, s2, 1' % g.s_a1)
    k('s_cmp_eq_u32 s%d, 1' % g.s_a1)
    k('s_cselect_b32 s%d, s%d, s%d' % (g.s_t2, g.s_t2, g.s_a0))
    k('s_sub_u32 s%d, 4, s%d' % (g.s_a0, g.s_a1))
    k('s_mul_i32 s%d, s%d, s%d' % (g.s_a0, g.s_a0, g.s_t2))
    k('s_sub_u32 s%d, s%d, s%d' % (g.s_dtC, g.s_tmp, g.s_a0))
    k('s_lshl_b32 s%d, s%d, 2' % (g.s_a1, g.s_a1))
    k('s_add_u32 s%d, s%d, s%d' % (g.s_dtC, g.s_dtC, g.s_a1))
    k('s_mov_b32 s%d, s%d' % (g.s_dtD, g.s_dtC))
    k('s_bfe_u32 s%d, s2, 0x20001' % g.s_tmp)
    k('s_lshl_b32 s%d, s%d, 3' % (g.s_st, g.s_tmp))
    k('s_add_u32 s%d, s%d, s%d' % (g.s_st, g.s_st, g.s_t2))
    k('s_sub_u32 s%d, s%d, s%d' % (g.s_ft, g.s_st, g.s_tmp))
    k('s_cmp_ge_u32 s%d, 8' % g.s_t2)
    k('s_cselect_b32 s%d, 99, s%d' % (g.s_st, g.s_st))
    k('s_cmp_ge_u32 s%d, 7' % g.s_t2)
    k('s_cselect_b32 s%d, 99, s%d' % (g.s_ft, g.s_ft))


def G_w_setup(k, which, lds_base, per_wave):
    g = G
    t = TMP
    stride = F * 2 if which == 1 else S * 2
    krows = 512 if which == 1 else 448
    vW = g.vW1 if which == 1 else g.vW2
    va, vb = (g.vRa, g.vRb) if which == 1 else (g.vSa, g.vSb)
    s_tile = g.s_ft if which == 1 else g.s_st
    k('s_mul_i32 s%d, s3, %d' % (g.s_stage, per_wave))
    k('s_add_u32 s%d, s%d, %d' % (g.s_stage, g.s_stage, lds_base))
    k('v_lshrrev_b32 v%d, 3, v1' % t)
    k('v_mul_u32_u24 v%d, %d, v%d' % (vW, stride, t))
    k('v_and_b32 v%d, 1, v3' % t)
    k('v_lshlrev_b32 v%d, 2, v%d' % (t, t))
    k('v_and_b32 v%d, 7, v1' % (t + 1))
    k('v_xor_b32 v%d, v%d, v%d' % (t, t, t + 1))
    k('v_lshl_add_u32 v%d, v%d, 4, v%d' % (vW, t, vW))
    k('s_mul_i32 s%d, s3, %d' % (g.s_tmp, krows * stride))
    k('s_lshl_b32 s%d, s%d, 7' % (g.s_t2, s_tile))
    k('s_add_u32 s%d, s%d, s%d' % (g.s_tmp, g.s_tmp, g.s_t2))
    k('s_cmp_ge_u32 s%d, 99' % s_tile)
    k('s_cselect_b32 s%d, 0x%x, s%d' % (g.s_tmp, OOB, g.s_tmp))
    k('v_add_u32 v%d, s%d, v%d' % (vW, g.s_tmp, vW))
    if which == 1:
        k('s_cselect_b32 s%d, 0x%x, 0' % (g.s_tmp, OOB))
        k('v_add_u32 v%d, s%d, v4' % (g.vCl, g.s_tmp))
    k('v_lshrrev_b32 v%d, 5, v1' % t)
    k('v_lshlrev_b32 v%d, 9, v%d' % (va, t))
    k('v_bfe_u32 v%d, v1, 2, 2' % t)
    k('v_lshl_add_u32 v%d, v%d, 7, v%d' % (va, t, va))
    k('v_lshrrev_b32 v%d, 1, v%d' % (t, t))
    k('s_lshr_b32 s%d, s3, 1' % g.s_tmp)
    k('v_xor_b32 v%d, s%d, v%d' % (t, g.s_tmp, t))
    k('v_lshl_add_u32 v%d, v%d, 6, v%d' % (va, t, va))
    k('v_and_b32 v%d, 1, v3' % t)
    k('v_lshl_add_u32 v%d, v%d, 5, v%d' % (va, t, va))
    k('v_and_b32 v%d, 3, v1' % t)
    k('v_lshl_add_u32 v%d, v%d, 3, v%d' % (va, t, va))
    k('v_add_u32 v%d, s%d, v%d' % (va, g.s_stage, va))
    k('v_xor_b32 v%d, 64, v%d' % (vb, va))


def G_w_dma(k, which, t0, nt, slot0, tag=None, bg=False):
    g = G
    stride = F * 2 if which == 1 else S * 2

    def one(i):
        slot = slot0 + i // 2
        assert slot < NSLOT
        k.wait_lg_tag('rd%d' % slot)
        k.slot_content = getattr(k, 'slot_content', {})
        k.slot_content[slot] = (which, t0 + i // 2, i % 2)
        k('s_add_u32 m0, s%d, %d' % (g.s_stage, slot0 * 2048 + i * 1024))
        k('s_mov_b32 s%d, %d' % (B.s_dma, (16 * t0 + 8 * i) * stride))
        k('buffer_load_dwordx4 v%d, %s, s%d offen lds' % (g.vW1 if which == 1 else g.vW2, srd(SRD_W1 if which == 1 else SRD_W2), B.s_dma), tag='slot%d' % slot)
    for i in range(2 * nt):
        if bg:
            k.bg_push(lambda i=i: one(i))
        else:
            one(i)


def W1_warm(k, vdst, full=True):
    g = G
    t = TMP
    k('s_lshr_b32 s%d, s2, 3' % g.s_tmp)
    k('s_lshl_b32 s%d, s%d, 2' % (g.s_tmp, g.s_tmp))
    k('s_add_u32 s%d, s%d, s3' % (g.s_tmp, g.s_tmp))
    k('v_lshrrev_b32 v%d, 3, v1' % t)
    k('v_mul_u32_u24 v%d, %d, v%d' % (t, F * 2, t))
    k('v_and_b32 v%d, 7, v1' % (t + 1))
    k('v_lshl_add_u32 v%d, v%d, 7, v%d' % (t, t + 1, t))
    if full:
        k('s_mul_i32 s%d, s%d, %d' % (S_T, g.s_tmp, 16 * F * 2))
    else:
        k('s_and_b32 s%d, s2, 1' % S_T)
        k('s_lshl_b32 s%d, s%d, 7' % (S_T, S_T))
        k('s_add_u32 s%d, s%d, s%d' % (S_T, S_T, g.s_tmp))
        k('s_mul_i32 s%d, s%d, %d' % (S_T, S_T, 8 * F * 2))
    k('s_bfe_u32 s%d, s2, 0x20001' % (S_T + 1))
    k('s_mul_i32 s%d, s%d, 896' % (S_T + 1, S_T + 1))
    k('s_add_u32 s%d, s%d, s%d' % (S_T, S_T, S_T + 1))
    k('s_mov_b32 exec_lo, 0x7f7f7f7f')
    k('s_mov_b32 exec_hi, 0x7f7f7f7f')
    k('buffer_load_dword v%d, v%d, %s, s%d offen' % (vdst, t, srd(SRD_W1), S_T))
    if full:
        k('s_add_u32 s%d, s%d, %d' % (S_T, S_T, 8 * F * 2))
        k('buffer_load_dword v%d, v%d, %s, s%d offen' % (vdst + 1, t, srd(SRD_W1), S_T))
    k('s_mov_b64 exec, -1')


def G_w_read(k, which, t, slot, areg):
    g = G
    va, vb = (g.vRa, g.vRb) if which == 1 else (g.vSa, g.vSb)
    sec = 1024
    assert k.slot_content[slot] == (which, t, 1), (k.slot_content[slot], which, t)
    k.wait_tag('slot%d' % slot)
    for i, v in enumerate((va, vb)):
        k('ds_read_b64_tr_b16 %s, v%d offset:%d' % (ar(areg + 4 * i, 2), v, slot * 2048), tag='rd%d' % slot)
        k('ds_read_b64_tr_b16 %s, v%d offset:%d' % (ar(areg + 4 * i + 2, 2), v, slot * 2048 + sec), tag='rd%d' % slot)


def G_a_setup(k, which):
    g = G
    nks = 128 if which == 1 else 112
    per = 32 if which == 1 else 28
    base = HH_OFF if which == 1 else U_OFF
    s_dt = g.s_dtC if which == 1 else g.s_dtD
    k('s_lshl_b32 s%d, s%d, 1' % (g.s_tmp, s_dt))
    k('s_and_b32 s%d, s3, 1' % g.s_t2)
    k('s_add_u32 s%d, s%d, s%d' % (g.s_a0, g.s_tmp, g.s_t2))
    k('s_xor_b32 s%d, s%d, 1' % (g.s_a1, g.s_a0))
    k('s_mul_i32 s%d, s3, %d' % (g.s_tmp, per * 1024))
    k('s_add_u32 s%d, s%d, 0x%x' % (g.s_tmp, g.s_tmp, base))
    for s_ in (g.s_a0, g.s_a1):
        k('s_mul_i32 s%d, s%d, %d' % (s_, s_, nks * 1024))
        k('s_add_u32 s%d, s%d, s%d' % (s_, s_, g.s_tmp))


def G_a_load(k, t, sc1='', vo=4, sd=SRD_WS):
    g = G
    if t and t % 4 == 0:
        k('s_add_u32 s%d, s%d, 4096' % (g.s_a0, g.s_a0))
        k('s_add_u32 s%d, s%d, 4096' % (g.s_a1, g.s_a1))
    r = g.RING + 8 * (t % g.NR)
    for i, s_ in enumerate((g.s_a0, g.s_a1)):
        k('buffer_load_dwordx4 %s, v%d, %s, s%d offen offset:%d %s' % (vr(r + 4 * i, 4), vo, srd(sd), s_, (t % 4) * 1024, sc1))


def G_mfma(k, t, areg):
    g = G
    r = g.RING + 8 * (t % g.NR)
    for iw in range(2):
        for ia in range(2):
            L = 2 * iw + ia
            a = vr(g.ACC + 16 * L, 16)
            c = '0' if (t == 0 and L != 0) else a
            k('v_mfma_f32_32x32x16_bf16 %s, %s, %s, %s' % (a, ar(areg + 4 * iw, 4), vr(r + 4 * ia, 4), c))


def C_init(k):
    g = G
    t = g.T
    k('v_lshrrev_b32 v%d, 5, v1' % t)
    k('v_lshlrev_b32 v%d, 3, v%d' % (t, t))
    k('s_lshl_b32 s%d, s%d, 7' % (g.s_tmp, g.s_ft))
    k('s_lshr_b32 s%d, s3, 1' % g.s_t2)
    k('s_lshl_b32 s%d, s%d, 6' % (g.s_t2, g.s_t2))
    k('s_add_u32 s%d, s%d, s%d' % (g.s_tmp, g.s_tmp, g.s_t2))
    for q in range(4):
        k('buffer_load_dwordx2 %s, v%d, %s, s%d offen offset:%d' % (vr(t + 2 + 2 * q, 2), t, srd(SRD_B1), g.s_tmp, 16 * q))


def C_init_finish(k):
    g = G
    t = g.T
    for q in range(4):
        for i in range(2):
            k('v_lshlrev_b32 v%d, 16, v%d' % (g.ACC + 4 * q + 2 * i, t + 2 + 2 * q + i))
            k('v_and_b32 v%d, 0xffff0000, v%d' % (g.ACC + 4 * q + 2 * i + 1, t + 2 + 2 * q + i))


def C_epilogue(k, lds_red, sc1=''):
    g = G
    t = g.T
    k.c('---- phase C epilogue')
    for L in range(1, 4):
        k('s_xor_b32 s%d, s3, %d' % (g.s_tmp, L))
        k('s_mul_i32 s%d, s%d, 12288' % (g.s_tmp, g.s_tmp))
        k('s_add_u32 s%d, s%d, %d' % (g.s_tmp, g.s_tmp, lds_red + (L - 1) * 4096))
        k('v_add_u32 v%d, s%d, v4' % (t + L, g.s_tmp))
    for L in range(1, 4):
        for q in range(4):
            k('ds_write_b128 v%d, %s offset:%d' % (t + L, vr(g.ACC + 16 * L + 4 * q, 4), q * 1024))
    k('s_mul_i32 s%d, s3, 12288' % g.s_tmp)
    k('s_add_u32 s%d, s%d, %d' % (g.s_tmp, g.s_tmp, lds_red))
    k('v_add_u32 v%d, s%d, v4' % (t, g.s_tmp))
    k('s_lshl_b32 s%d, s%d, 1' % (g.s_tmp, g.s_dtC))
    k('s_and_b32 s%d, s3, 1' % g.s_t2)
    k('s_add_u32 s%d, s%d, s%d' % (g.s_tmp, g.s_tmp, g.s_t2))
    k('s_mul_i32 s%d, s%d, 112' % (g.s_tmp, g.s_tmp))
    k('s_lshl_b32 s%d, s%d, 2' % (g.s_t2, g.s_ft))
    k('s_add_u32 s%d, s%d, s%d' % (g.s_tmp, g.s_tmp, g.s_t2))
    k('s_and_b32 s%d, s3, 2' % g.s_t2)
    k('s_add_u32 s%d, s%d, s%d' % (g.s_tmp, g.s_tmp, g.s_t2))
    k('s_lshl_b32 s%d, s%d, 10' % (g.s_tmp, g.s_tmp))
    k('s_add_u32 s%d, s%d, 0x%x' % (g.s_tmp, g.s_tmp, U_OFF))
    k.wait_lg(0)
    k.barrier()
    R = g.ACC + 16
    for q in range(4):
        for L in range(3):
            k('ds_read_b128 %s, v%d offset:%d' % (vr(R + 16 * L + 4 * q, 4), t, L * 4096 + q * 1024))
    c1 = -2.0 * 0.7978845608028654 * 1.4426950408889634
    c2 = c1 * 0.044715
    sc = 88
    k('s_mov_b32 s%d, %s' % (sc, f32(c1)))
    k('s_mov_b32 s%d, %s' % (sc + 2, f32(c2)))
    X2 = g.RING
    k('v_mov_b32 v%d, s%d' % (t + 4, sc))
    k('v_mov_b32 v%d, s%d' % (t + 5, sc))
    for half in range(2):
        for i in range(8 * half, 8 * half + 8, 2):
            a = g.ACC + i
            k('v_pk_add_f32 %s, %s, %s' % (vr(R + i, 2), vr(R + i, 2), vr(R + 16 + i, 2)))
            k('v_pk_add_f32 %s, %s, %s' % (vr(a, 2), vr(a, 2), vr(R + 32 + i, 2)))
        for i in range(8 * half, 8 * half + 8, 2):
            a = g.ACC + i
            k('v_pk_add_f32 %s, %s, %s' % (vr(a, 2), vr(a, 2), vr(R + i, 2)))
        for i in range(8 * half, 8 * half + 8, 2):
            a = g.ACC + i
            k('v_pk_mul_f32 %s, %s, %s' % (vr(X2 + i, 2), vr(a, 2), vr(a, 2)))
        for i in range(8 * half, 8 * half + 8, 2):
            k('v_pk_fma_f32 %s, %s, %s, %s op_sel_hi:[1,0,1]' % (vr(X2 + i, 2), vr(X2 + i, 2), sr(sc + 2, 2), vr(t + 4, 2)))
        for i in range(8 * half, 8 * half + 8, 2):
            k('v_pk_mul_f32 %s, %s, %s' % (vr(X2 + i, 2), vr(X2 + i, 2), vr(g.ACC + i, 2)))
        for i in range(8 * half, 8 * half + 8):
            k('v_exp_f32 v%d, v%d' % (X2 + i, X2 + i))
        for i in range(8 * half, 8 * half + 8, 2):
            k('v_pk_add_f32 %s, %s, 1.0 op_sel_hi:[1,0]' % (vr(X2 + i, 2), vr(X2 + i, 2)))
        for i in range(8 * half, 8 * half + 8):
            k('v_rcp_f32 v%d, v%d' % (X2 + i, X2 + i))
        for i in range(8 * half, 8 * half + 8, 2):
            k('v_pk_mul_f32 %s, %s, %s' % (vr(X2 + i, 2), vr(X2 + i, 2), vr(g.ACC + i, 2)))
        p = X2 + 16 + 4 * half
        for i in range(4):
            k('v_cvt_pk_bf16_f32 v%d, v%d, v%d' % (p + i, X2 + 8 * half + 2 * i, X2 + 8 * half + 2 * i + 1))
        k('buffer_store_dwordx4 %s, v%d, %s, s%d offen offset:%d %s' % (vr(p, 4), g.vCl, srd(SRD_WS), g.s_tmp, half * 1024, sc1), tag='ust')


def D_init(k, sc1=''):
    g = G
    t = g.T
    k('v_lshrrev_b32 v%d, 5, v1' % t)
    k('v_lshlrev_b32 v%d, 3, v%d' % (t, t))
    k('s_lshl_b32 s%d, s%d, 7' % (g.s_tmp, g.s_st))
    k('s_lshr_b32 s%d, s3, 1' % g.s_t2)
    k('s_lshl_b32 s%d, s%d, 6' % (g.s_t2, g.s_t2))
    k('s_add_u32 s%d, s%d, s%d' % (g.s_tmp, g.s_tmp, g.s_t2))
    for q in range(4):
        k('buffer_load_dwordx2 %s, v%d, %s, s%d offen offset:%d' % (vr(t + 2 + 2 * q, 2), t, srd(SRD_B2), g.s_tmp, 16 * q))


def D_init_finish(k):
    g = G
    t = g.T
    for q in range(4):
        for i in range(2):
            a = g.ACC + 4 * q + 2 * i
            k('v_lshlrev_b32 v%d, 16, v%d' % (a, t + 2 + 2 * q + i))
            k('v_and_b32 v%d, 0xffff0000, v%d' % (a + 1, t + 2 + 2 * q + i))
            k('v_lshlrev_b32 v%d, 16, v%d' % (t + 18, B.HK + 2 * q + i))
            k('v_and_b32 v%d, 0xffff0000, v%d' % (t + 19, B.HK + 2 * q + i))
            k('v_pk_add_f32 %s, %s, %s' % (vr(a, 2), vr(a, 2), vr(t + 18, 2)))


def D_epilogue(k, lds_red, stride):
    g = G
    t = g.T
    k.c('---- phase D epilogue')
    k('v_lshrrev_b32 v%d, 5, v1' % t)
    k('v_lshlrev_b32 v%d, 10, v%d' % (t, t))
    k('v_and_b32 v%d, 31, v1' % (t + 1))
    k('v_lshl_add_u32 v%d, v%d, 2, v%d' % (t, t + 1, t))
    k('s_lshr_b32 s%d, s3, 1' % g.s_t2)
    k('s_lshl_b32 s%d, s%d, 13' % (g.s_tmp, g.s_t2))
    k('s_and_b32 s%d, s3, 1' % g.s_t2)
    k('s_lshl_b32 s%d, s%d, 7' % (g.s_t2, g.s_t2))
    k('s_add_u32 s%d, s%d, s%d' % (g.s_tmp, g.s_tmp, g.s_t2))
    k('v_add_u32 v%d, s%d, v%d' % (t, g.s_tmp, t))
    k('v_xor_b32 v%d, 128, v%d' % (t + 1, t))
    k('v_xor_b32 v%d, 0x2000, v%d' % (t + 2, t))
    k('v_xor_b32 v%d, 0x2080, v%d' % (t + 3, t))
    k('s_mul_i32 s%d, s3, %d' % (g.s_tmp, stride))
    k('s_add_u32 s%d, s%d, %d' % (g.s_tmp, g.s_tmp, lds_red))
    for L in range(4):
        k('v_add_u32 v%d, s%d, v%d' % (t + L, g.s_tmp, t + L))
    k('s_lshl_b32 s%d, s3, 12' % g.s_tmp)
    k('s_add_u32 s%d, s%d, %d' % (g.s_tmp, g.s_tmp, lds_red))
    k('v_add_u32 v%d, s%d, v4' % (t + 4, g.s_tmp))
    k('v_add_u32 v%d, %d, v%d' % (t + 6, 2 * stride, t + 4))
    k('v_mul_u32_u24 v%d, 896, v3' % (t + 5))
    k('v_lshl_add_u32 v%d, v2, 3, v%d' % (t + 5, t + 5))
    k('s_lshl_b32 s%d, s%d, 2' % (g.s_tmp, g.s_st))
    k('s_add_u32 s%d, s%d, s3' % (g.s_tmp, g.s_tmp))
    k('s_mul_i32 s%d, s%d, %d' % (g.s_tmp, g.s_tmp, 16 * 896))
    k('s_lshl_b32 s%d, s%d, 7' % (g.s_t2, g.s_dtD))
    k('s_add_u32 s%d, s%d, s%d' % (g.s_tmp, g.s_tmp, g.s_t2))
    k('s_add_u32 s%d, s%d, %d' % (g.s_t2, g.s_tmp, 8 * 896))


def D_epilogue2(k, stride):
    g = G
    t = g.T
    for L in range(4):
        for q in range(4):
            for r in (0, 2):
                a = g.ACC + 16 * L + 4 * q + r
                k('ds_write2st64_b32 v%d, v%d, v%d offset0:%d offset1:%d' % (t + L, a, a + 1, 8 * q + r, 8 * q + r + 1))
    k.wait_lg(0)
    k.barrier()
    R = g.ACC
    for i in range(4):
        for w in range(4):
            k('ds_read_b128 %s, v%d offset:%d' % (vr(R + 16 * i + 4 * w, 4), t + 4 if w < 2 else t + 6, (w & 1) * stride + i * 1024))
    for i in range(4):
        r = R + 16 * i
        for j in (0, 2):
            k('v_pk_add_f32 %s, %s, %s' % (vr(r + j, 2), vr(r + j, 2), vr(r + 4 + j, 2)))
            k('v_pk_add_f32 %s, %s, %s' % (vr(r + 8 + j, 2), vr(r + 8 + j, 2), vr(r + 12 + j, 2)))
        for j in (0, 2):
            k('v_pk_add_f32 %s, %s, %s' % (vr(r + j, 2), vr(r + j, 2), vr(r + 8 + j, 2)))
        k('v_cvt_pk_bf16_f32 v%d, v%d, v%d' % (r + 4, r, r + 1))
        k('v_cvt_pk_bf16_f32 v%d, v%d, v%d' % (r + 5, r + 2, r + 3))
        k('buffer_store_dwordx2 %s, v%d, %s, s%d offen offset:%d' % (vr(r + 4, 2), t + 5, srd(SRD_OUT), g.s_t2 if i >= 2 else g.s_tmp, (i % 2) * 4 * 896))
```

```python
import struct
from dsl import Kernel, vr, ar, sr, classify

S, D, H, DH, F = 2048, 448, 16, 28, 1792

OF_OFF = 0x000000
HH_OFF = 0x200000
U_OFF = 0x3C0000
STAT_OFF = 0x548000
FLAG_OFF = 0x588000
WS_SIZE = 0x590000
OOB = 0x40000000

SRD_X, SRD_WQKV, SRD_WO, SRD_W1, SRD_W2, SRD_B1, SRD_B2, SRD_OUT, SRD_WS, SRD_DBG = 8, 12, 16, 20, 24, 28, 32, 36, 40, 44
SRD_A = 96
S_WG, S_WAVE = 2, 3
S_EPOCH = 4
S_SPIN = 6
S_ONES = 5
S_T = 86
V_LANE, V_T16, V_G, V_L16 = 1, 2, 3, 4


def f32(x):
    return '0x%08x' % struct.unpack('<I', struct.pack('<f', x))[0]


def srd(base):
    return sr(base, 4)


def prologue(k, nwg, end_label, need):
    k('s_cmp_ge_u32 s2, %d' % nwg)
    k('s_cbranch_scc1 %s' % end_label)
    if getattr(k, 'xcctest', False):
        k('s_getreg_b32 s3, hwreg(HW_REG_XCC_ID)')
        k('s_and_b32 s3, s3, 15')
        k('s_and_b32 s4, s2, 7')
        k('s_cmp_eq_u32 s3, s4')
        k('s_cbranch_scc1 Lxcc_ok')
        for _ in range(8):
            k('s_sleep 127')
        k.raw('Lxcc_ok:')
    if getattr(k, 'scramble', False):
        k('s_and_b32 s3, s2, 7')
        k('s_lshl_b32 s3, s3, 5')
        k('s_lshr_b32 s2, s2, 3')
        k('s_or_b32 s2, s2, s3')
    for base, off, size in need:
        k('s_load_dwordx2 %s, s[0:1], %d' % (sr(base, 2), off))
    k('v_lshrrev_b32 v1, 6, v0')
    k('v_readfirstlane_b32 s3, v1')
    k('v_and_b32 v1, 63, v0')
    k('v_and_b32 v2, 15, v0')
    k('v_lshrrev_b32 v3, 4, v1')
    k('v_lshlrev_b32 v4, 4, v1')
    for base, off, size in need:
        k('s_mov_b32 s%d, 0x%x' % (base + 2, size))
        k('s_mov_b32 s%d, 0x00020000' % (base + 3))
    k('s_mov_b32 s%d, 0x3f803f80' % S_ONES)
    k('s_mov_b32 s%d, 0x40000' % S_SPIN)
    k.end_label = end_label


ARG = dict(x=(SRD_X, 0, S * D * 2), wqkv=(SRD_WQKV, 8, D * 3 * D * 2), wo=(SRD_WO, 16, D * D * 2),
           w1=(SRD_W1, 32, S * F * 2), b1=(SRD_B1, 40, F * 2), w2=(SRD_W2, 48, F * S * 2), b2=(SRD_B2, 56, S * 2),
           out=(SRD_OUT, 64, S * D * 2), dbg=(SRD_DBG, 72, 256), ws=(SRD_WS, 80, WS_SIZE))


def xgroup_reduce(k, regs, tmp, op='v_add_f32'):
    for swap in ('v_permlane32_swap_b32', 'v_permlane16_swap_b32'):
        for r, t in zip(regs, tmp):
            k('v_mov_b32 v%d, v%d' % (t, r))
        for r, t in zip(regs, tmp):
            k('%s v%d, v%d' % (swap, r, t))
        for r, t in zip(regs, tmp):
            k('%s v%d, v%d, v%d' % (op, r, r, t))


A_LDS_CS = 0
A_LDS_ST = 512
A_LDS_KV = 2048
A_LDS_W = 12288
A_LDS_X = 61440
A_XSLOT = [2, 1, 0, 3]
A_LDS_END = A_LDS_X + 4 * 18432
LDS_STG = 12288
STG_SZ = 36864
NSLOT = 18
LDS_END = 163840
LDS_WO = 106496
TMP = 219


def xslot(grp):
    return A_XSLOT.index(grp % 4) * 18432


def phaseA(k, sc1='', hooks=None):
    hooks = hooks or {}
    XR = 16
    ACC = 136
    WF = 88
    ONES = 40
    SQ, SM = 48, 60
    vXl, vXu, vXh, vW, vA0, vA1, vH1, vH2 = 120, 121, 122, 123, 124, 125, 126, 127
    vRe, vRo, vHe, vHo = 128, 129, 130, 131
    vT = 237
    BP, BC, BPA = 240, 244, 248
    s_rb, s_head, s_t0, s_m0w, s_m0x, s_tmp = 48, 49, 50, 51, 52, 53
    s_hm = 54
    s_m0h = 7

    def hook(name):
        if name in hooks:
            hooks[name]()

    def xreg(j, blk):
        return XR + (j % 2) * 12 + blk * 4

    def acc(blk, nbi):
        return ACC + blk * 24 + nbi * 4
    H1, H2 = ACC + 48, ACC + 52

    k.c('---- phase A setup')
    k('s_bfe_u32 s%d, s2, 0x20001' % s_rb)
    k('s_lshl_b32 s%d, s%d, 2' % (s_rb, s_rb))
    k('s_lshr_b32 s%d, s2, 6' % s_tmp)
    k('s_add_u32 s%d, s%d, s%d' % (s_rb, s_rb, s_tmp))
    k('s_bfe_u32 s%d, s2, 0x30003' % s_head)
    k('s_and_b32 s%d, s2, 1' % s_tmp)
    k('s_lshl_b32 s%d, s%d, 3' % (s_tmp, s_tmp))
    k('s_add_u32 s%d, s%d, s%d' % (s_head, s_head, s_tmp))
    k('v_lshrrev_b32 v%d, 2, v1' % vT)
    k('v_mul_u32_u24 v%d, 2688, v%d' % (vW, vT))
    k('v_lshrrev_b32 v%d, 5, v1' % vT)
    k('v_lshlrev_b32 v%d, 1, v%d' % (vT, vT))
    k('v_and_b32 v%d, 3, v1' % (vT + 1))
    k('v_xor_b32 v%d, v%d, v%d' % (vT, vT, vT + 1))
    k('v_lshl_add_u32 v%d, v%d, 4, v%d' % (vW, vT, vW))
    k('s_mul_i32 s%d, s%d, 56' % (s_tmp, s_head))
    k('s_min_u32 s%d, s%d, 832' % (s_tmp, s_tmp))
    k('s_mul_i32 s%d, s3, %d' % (s_m0w, 16 * 2688))
    k('s_add_u32 s%d, s%d, s%d' % (s_tmp, s_tmp, s_m0w))
    k('v_add_u32 v%d, s%d, v%d' % (vW, s_tmp, vW))
    k('s_lshr_b32 s%d, s3, 1' % s_tmp)
    k('s_mul_i32 s%d, s%d, 6144' % (s_m0w, s_tmp))
    k('s_and_b32 s%d, s3, 1' % s_tmp)
    k('s_lshl_b32 s%d, s%d, 10' % (s_tmp, s_tmp))
    k('s_add_u32 s%d, s%d, s%d' % (s_m0w, s_m0w, s_tmp))
    k('v_lshrrev_b32 v%d, 3, v1' % vT)
    k('v_mul_u32_u24 v%d, 896, v%d' % (vXh, vT))
    k('v_and_b32 v%d, 7, v1' % vT)
    k('v_xor_b32 v%d, v%d, v3' % (vT, vT))
    k('v_lshl_add_u32 v%d, v%d, 4, v%d' % (vXl, vT, vXh))
    k('s_lshl_b32 s%d, s%d, 7' % (s_t0, s_rb))
    k('s_lshl_b32 s%d, s3, 5' % s_tmp)
    k('s_add_u32 s%d, s%d, s%d' % (s_tmp, s_tmp, s_t0))
    k('s_mul_i32 s%d, s%d, 896' % (s_tmp, s_tmp))
    k('v_xor_b32 v%d, 64, v%d' % (vXu, vXl))
    k('v_add_u32 v%d, s%d, v%d' % (vXl, s_tmp, vXl))
    k('s_add_u32 s%d, s%d, %d' % (s_tmp, s_tmp, 8 * 896))
    k('v_add_u32 v%d, s%d, v%d' % (vXu, s_tmp, vXu))
    k('s_lshl_b32 s%d, s3, 1' % s_tmp)
    k('v_xor_b32 v%d, s%d, v%d' % (vT, s_tmp, vT))
    k('v_lshl_add_u32 v%d, v%d, 4, v%d' % (vXh, vT, vXh))
    k('s_lshl_b32 s%d, s3, 2' % s_tmp)
    k('s_add_u32 s%d, s%d, s%d' % (s_tmp, s_tmp, s_t0))
    k('s_sub_u32 s%d, s%d, 16' % (s_tmp, s_tmp))
    k('s_mul_i32 s%d, s%d, 896' % (s_tmp, s_tmp))
    k('s_cmp_eq_u32 s%d, 0' % s_rb)
    k('s_cselect_b32 s%d, 0x%x, s%d' % (s_tmp, OOB, s_tmp))
    k('v_add_u32 v%d, s%d, v%d' % (vXh, s_tmp, vXh))
    k('s_lshl_b32 s%d, s3, 12' % s_m0x)
    k('s_add_u32 s%d, s%d, %d' % (s_m0x, s_m0x, A_LDS_X + 2048))
    k('s_lshl_b32 s%d, s3, 9' % s_m0h)
    k('s_cmp_eq_u32 s3, 0')
    k('s_cselect_b32 s%d, 0xffffff00, -1' % s_hm)
    k('s_mov_b32 s%d, 0' % (s_hm + 1))

    def dma_group(grp, bg=False):
        tag = 'G%d' % grp
        sd = B.s_dma

        def w_(p):
            k('s_add_u32 m0, s%d, %d' % (s_m0w, A_LDS_W + (grp % 4) * 12288 + p * 2048))
            k('s_mov_b32 s%d, %d' % (sd, grp * 64 * 2688 + p * 896))
            k('buffer_load_dwordx4 v%d, %s, s%d offen lds' % (vW, srd(SRD_WQKV), sd), tag=tag)

        def x_(i):
            k('s_add_u32 m0, s%d, %d' % (s_m0x, xslot(grp) + i * 1024))
            k('s_mov_b32 s%d, %d' % (sd, grp * 128 + (i >> 1) * 16 * 896))
            k('buffer_load_dwordx4 v%d, %s, s%d offen lds' % (vXu if i & 1 else vXl, srd(SRD_X), sd), tag=tag)

        def h_():
            k('s_add_u32 m0, s%d, %d' % (s_m0h, A_LDS_X + xslot(grp)))
            k('s_mov_b32 s%d, %d' % (sd, grp * 128))
            k('s_mov_b64 exec, %s' % sr(s_hm, 2))
            k('buffer_load_dwordx4 v%d, %s, s%d offen lds' % (vXh, srd(SRD_X), sd), tag=tag)
            k('s_mov_b64 exec, -1')
        fs = [lambda p=p: w_(p) for p in range(3)] + [lambda i=i: x_(i) for i in range(4)] + [h_]
        for f in fs:
            if bg:
                k.bg_push(f)
            else:
                f()

    def warm():
        k('s_lshr_b32 s%d, s2, 3' % s_tmp)
        k('s_lshl_b32 s%d, s%d, 2' % (s_tmp, s_tmp))
        k('s_add_u32 s%d, s%d, s3' % (s_tmp, s_tmp))
        k('s_mul_i32 s%d, s%d, 30' % (S_T, s_tmp))
        k('v_add_u32 v%d, s%d, v1' % (vT, S_T))
        k('v_mul_u32_u24 v%d, 43691, v%d' % (vT + 1, vT))
        k('v_lshrrev_b32 v%d, 19, v%d' % (vT + 1, vT + 1))
        k('v_mul_u32_u24 v%d, 12, v%d' % (vT + 2, vT + 1))
        k('v_sub_u32 v%d, v%d, v%d' % (vT + 2, vT, vT + 2))
        k('v_lshrrev_b32 v%d, 2, v%d' % (vT + 2, vT + 2))
        k('v_mul_u32_u24 v%d, 896, v%d' % (vT + 2, vT + 2))
        k('v_mul_u32_u24 v%d, 2688, v%d' % (vT + 1, vT + 1))
        k('v_and_b32 v%d, 3, v%d' % (vT, vT))
        k('v_lshlrev_b32 v%d, 7, v%d' % (vT, vT))
        k('v_add3_u32 v%d, v%d, v%d, v%d' % (vT, vT, vT + 1, vT + 2))
        k('s_and_b32 s%d, s2, 1' % S_T)
        k('s_mul_i32 s%d, s%d, 384' % (S_T, S_T))
        k('s_add_u32 s%d, s%d, %d' % (S_T, S_T, 128 * 2688))
        k('s_mov_b64 exec, 0x3fffffff')
        k('buffer_load_dword v232, v%d, %s, s%d offen' % (vT, srd(SRD_WQKV), S_T))
        k('s_mov_b64 exec, -1')
        k('v_lshlrev_b32 v%d, 7, v1' % vT)
        k('s_mul_i32 s%d, s%d, %d' % (S_T, s_tmp, 29 * 128))
        k('s_bfe_u32 s%d, s2, 0x20001' % (S_T + 1))
        k('s_mul_i32 s%d, s%d, %d' % (S_T + 1, S_T + 1, 512 * 896))
        k('s_add_u32 s%d, s%d, s%d' % (S_T, S_T, S_T + 1))
        k('s_max_u32 s%d, s%d, %d' % (S_T, S_T, 16 * 896))
        k('s_sub_u32 s%d, s%d, %d' % (S_T, S_T, 16 * 896))
        k('s_mov_b64 exec, 0x1fffffff')
        k('buffer_load_dword v233, v%d, %s, s%d offen' % (vT, srd(SRD_X), S_T))
        if not WO_LATE:
            k('s_mul_i32 s%d, s%d, 3200' % (S_T, s_tmp))
            k('s_mov_b64 exec, 0x1ffffff')
            k('buffer_load_dword v234, v%d, %s, s%d offen' % (vT, srd(SRD_WO), S_T))
        k('s_mov_b64 exec, -1')
        k('s_getpc_b64 %s' % sr(S_T, 2))
        k.raw('Lpc_%s:' % k.name)
        k('v_lshlrev_b32 v%d, 7, v1' % vT)
        k('s_lshl_b32 s%d, s%d, 8' % (s_tmp, s_tmp))
        k('v_add_u32 v%d, s%d, v%d' % (vT, s_tmp, vT))
        k('v_min_u32 v%d, %s-Lpc_%s, v%d' % (vT, k.end_label, k.name, vT))
        k('s_mov_b64 exec, 3')
        k('global_load_dword v236, v%d, %s' % (vT, sr(S_T, 2)))
        k('s_mov_b64 exec, -1')

    hook('A_pre')
    pre, post = START_ORDER.split('|')
    for ch in pre:
        warm() if ch == 'w' else dma_group(int(ch))
    k('v_mul_u32_u24 v%d, 18432, v3' % vT)
    k('v_lshl_add_u32 v%d, v2, 3, v%d' % (vT, vT))
    k('v_mov_b32 v%d, s%d' % (vT + 1, S_ONES))
    k('v_add_u32 v%d, %d, v%d' % (vT, A_LDS_X, vT))
    k('ds_write2_b32 v%d, v%d, v%d offset0:0 offset1:1' % (vT, vT + 1, vT + 1))
    hook('A_after_issue')

    k('v_lshlrev_b32 v%d, 9, v3' % vA0)
    k('v_bfe_u32 v%d, v1, 2, 2' % vT)
    k('v_lshl_add_u32 v%d, v%d, 6, v%d' % (vA0, vT, vA0))
    k('v_and_b32 v%d, 3, v1' % vT)
    k('v_lshl_add_u32 v%d, v%d, 3, v%d' % (vA0, vT, vA0))
    k('v_and_b32 v%d, 1, v3' % vT)
    k('v_lshlrev_b32 v%d, 5, v%d' % (vT, vT))
    k('v_add_u32 v%d, v%d, v%d' % (vA0, vA0, vT))
    k('v_add_u32 v%d, %d, v%d' % (vA0, A_LDS_W, vA0))
    k('v_xor_b32 v%d, 32, v%d' % (vA1, vA0))
    k('s_and_b32 s%d, s3, 1' % s_tmp)
    k('s_lshl_b32 s%d, s%d, 5' % (s_tmp, s_tmp))
    k('v_xor_b32 v%d, s%d, v%d' % (vH2, s_tmp, vA0))
    k('s_lshr_b32 s%d, s3, 1' % s_tmp)
    k('s_lshl_b32 s%d, s%d, 11' % (s_tmp, s_tmp))
    k('s_add_u32 s%d, s%d, 2048' % (s_tmp, s_tmp))
    k('v_add_u32 v%d, s%d, v%d' % (vH1, s_tmp, vH2))
    k('v_lshrrev_b32 v%d, 1, v2' % vT)
    k('v_xor_b32 v%d, v%d, v3' % (vT, vT))
    k('v_lshlrev_b32 v%d, 4, v%d' % (vT, vT))
    k('v_lshl_add_u32 v%d, v2, 7, v%d' % (vT, vT))
    k('v_add_u32 v%d, %d, v%d' % (vHe, A_LDS_X, vT))
    k('v_xor_b32 v%d, 64, v%d' % (vHo, vHe))
    k('v_add_u32 v%d, s%d, v%d' % (vRe, s_m0x, vT))
    k('v_xor_b32 v%d, 64, v%d' % (vRo, vRe))
    k('v_lshlrev_b32 v%d, 2, v3' % vT)
    k('v_sub_u32 v%d, v2, v%d' % (vT, vT))
    k('v_mov_b32 v%d, %s' % (vT + 2, f32(-1e30)))
    for which, base in ((16, BP), (0, BC)):
        for r in range(4):
            k('v_add_u32 v%d, %d, v%d' % (vT + 1, which - r, vT))
            k('v_and_b32 v%d, 0xfffffff1, v%d' % (vT + 1, vT + 1))
            k('v_cmp_eq_u32 vcc, 0, v%d' % (vT + 1))
            k('v_cndmask_b32 v%d, v%d, 0, vcc' % (base + r, vT + 2))
    k('s_or_b32 s%d, s%d, s3' % (s_tmp, s_rb))
    k('s_cmp_eq_u32 s%d, 0' % s_tmp)
    k('s_cselect_b64 vcc, -1, 0')
    for r in range(4):
        k('v_cndmask_b32 v%d, v%d, v%d, vcc' % (BPA + r, BP + r, vT + 2))
    for i in range(4):
        k('v_mov_b32 v%d, s%d' % (ONES + i, S_ONES))

    frag_addr = [(vA0, 0), (vA1, 0), (vA0, 2048), (vA1, 2048), (vA0, 4096), (vA1, 4096), (vH1, 0), (vH2, 0)]

    def read_frag(f, j, h=None):
        va, off = frag_addr[f]
        o = (j % 8) * 6144 + off
        for hh in ((0, 1) if h is None else (h,)):
            k('ds_read_b64_tr_b16 %s, v%d offset:%d' % (vr(WF + 4 * f + 2 * hh, 2), va, o + 256 * hh))

    def read_x(j, blk=None):
        o = xslot(j // 2)
        for b_ in (range(3) if blk is None else (blk,)):
            if b_ < 2:
                k('ds_read_b128 %s, v%d offset:%d' % (vr(xreg(j, b_), 4), vRo if j & 1 else vRe, o + 2048 * b_))
            else:
                k('ds_read_b128 %s, v%d offset:%d' % (vr(xreg(j, 2), 4), vHo if j & 1 else vHe, o))

    for ch in post:
        warm() if ch == 'w' else dma_group(int(ch))
    stamp(k, 1)
    k.wait_tag('G0')
    k.wait_lg(0)
    k.barrier()
    stamp(k, 2)
    read_x(0)
    for f in range(8):
        read_frag(f, 0)
    dma_group(2, bg=True)
    k.lg_slack = 6
    for j in range(14):
        k.c('kstep %d' % j)
        if j + 1 < 14 and (j + 1) % 2 == 0:
            k.bg_flush()
            k.wait_tag('G%d' % ((j + 1) // 2))
            k.barrier()
            if (j + 5) // 2 < 7:
                dma_group((j + 5) // 2, bg=True)
            hook('A_b%d' % j)
        mf = []
        for f in range(8):
            w = vr(WF + 4 * f, 4)
            if f < 6:
                for blk in range(2):
                    a = vr(acc(blk, f), 4)
                    x = vr(xreg(j, blk), 4)
                    c = '0' if j == 0 else a
                    if f < 4:
                        mf.append(('v_mfma_f32_16x16x32_bf16 %s, %s, %s, %s' % (a, w, x, c), f if blk else -1))
                    else:
                        mf.append(('v_mfma_f32_16x16x32_bf16 %s, %s, %s, %s' % (a, x, w, c), f if blk else -1))
            else:
                a = vr(H1 if f == 6 else H2, 4)
                c = '0' if j == 0 else a
                mf.append(('v_mfma_f32_16x16x32_bf16 %s, %s, %s, %s' % (a, w, vr(xreg(j, 2), 4), c), f))
        for f in range(6):
            x = vr(xreg(j, f % 3), 4)
            a = vr((SQ if f < 3 else SM) + 4 * (f % 3), 4)
            mf.append(('v_mfma_f32_16x16x32_bf16 %s, %s, %s, %s' % (a, x if f < 3 else vr(ONES, 4), x, '0' if j == 0 else a), -1))
        fill = []
        if j + 1 < 14:
            fill += [lambda i=i: read_x(j + 1, i) for i in range(3)]
        for i, (txt, done) in enumerate(mf):
            k(txt)
            if done >= 0 and j + 1 < 14:
                fill += [lambda f=done, h=h: read_frag(f, j + 1, h) for h in range(2)]
            if fill:
                fill.pop(0)()
            if i % 5 == 4:
                k.bg()
        for f_ in fill:
            f_()
        if j == 6:
            stamp(k, 3)
        hook('A_k%d' % j)

    k.lg_slack = 0
    k.c('---- phase A epilogue')
    stamp(k, 4)
    T = XR
    s_m = 88
    for i, mk in enumerate((0x22222222, 0x44444444, 0x88888888)):
        k('s_mov_b32 s%d, 0x%x' % (s_m + 2 * i, mk))
        k('s_mov_b32 s%d, 0x%x' % (s_m + 2 * i + 1, mk))
    vAd = T + 16
    k('v_lshlrev_b32 v%d, 4, v3' % vAd)
    k('s_lshl_b32 s%d, s3, 6' % s_tmp)
    k('v_add_u32 v%d, s%d, v%d' % (vAd + 1, s_tmp, vAd))
    k('s_and_b32 s%d, s%d, 64' % (s_tmp, s_tmp))
    k('v_add_u32 v%d, s%d, v%d' % (vAd + 2, s_tmp, vAd))
    k('s_mul_i32 s%d, s3, 384' % s_tmp)
    k('v_lshl_add_u32 v%d, v2, 2, s%d' % (vAd + 3, s_tmp))
    k('v_add_u32 v%d, s%d, v%d' % (vAd + 4, s_tmp, vAd))
    k('s_mov_b32 exec_lo, 0x00010001')
    k('s_mov_b32 exec_hi, 0x00010001')
    k('ds_write_b128 v%d, %s offset:%d' % (vAd + 1, vr(H1, 4), A_LDS_CS + 128))
    k('ds_write_b128 v%d, %s offset:%d' % (vAd + 2, vr(H2, 4), A_LDS_CS))
    k('s_mov_b64 exec, -1')
    RR = T + 8
    for i in range(3):
        for blk in range(3):
            k('v_cndmask_b32 v%d, v%d, v%d, %s' % (SQ + 4 * blk, SQ + 4 * blk, SQ + 4 * blk + 1 + i, sr(s_m + 2 * i, 2)))
    for blk in range(3):
        k('v_mul_f32 v%d, %s, v%d' % (RR + 2 * blk + 1, f32(1.0 / D), SM + 4 * blk))
    for blk in range(3):
        k('v_mul_f32 v%d, v%d, v%d' % (RR + 2 * blk, RR + 2 * blk + 1, RR + 2 * blk + 1))
    for blk in range(3):
        k('v_mul_f32 v%d, %s, v%d' % (SQ + 4 * blk, f32(1.0 / D), SQ + 4 * blk))
    for blk in range(3):
        k('v_sub_f32 v%d, v%d, v%d' % (RR + 2 * blk, SQ + 4 * blk, RR + 2 * blk))
    for blk in range(3):
        k('v_max_f32 v%d, 0, v%d' % (RR + 2 * blk, RR + 2 * blk))
    for blk in range(3):
        k('v_add_f32 v%d, %s, v%d' % (RR + 2 * blk, f32(1e-5), RR + 2 * blk))
    for blk in range(3):
        k('v_rsq_f32 v%d, v%d' % (RR + 2 * blk, RR + 2 * blk))
    k('s_mov_b32 exec_lo, 0x00f0000f')
    k('s_mov_b32 exec_hi, 0xf0000f00')
    for blk in range(3):
        k('ds_write2_b32 v%d, v%d, v%d offset0:%d offset1:%d' % (vAd + 3, RR + 2 * blk, RR + 2 * blk + 1,
                                                               A_LDS_ST // 4 + 32 * blk, A_LDS_ST // 4 + 32 * blk + 16))
    k('s_mov_b64 exec, -1')
    HC = T + 24
    for r in range(4):
        k('v_mov_b32_dpp v%d, v%d row_newbcast:0 row_mask:0xf bank_mask:0xf' % (HC + r, H1 + r))
    vK, vV = T + 28, T + 29
    k('s_and_b32 s%d, s3, 1' % s_tmp)
    k('s_lshl_b32 s%d, s%d, 3' % (s_tmp, s_tmp))
    k('v_add_u32 v%d, s%d, v4' % (vK, s_tmp))
    k('v_lshrrev_b32 v%d, 2, v2' % vV)
    k('v_lshlrev_b32 v%d, 8, v%d' % (vV, vV))
    k('v_lshl_add_u32 v%d, v3, 6, v%d' % (vV, vV))
    k('v_and_b32 v%d, 3, v2' % (vV + 1))
    k('v_lshl_add_u32 v%d, v%d, 1, v%d' % (vV, vV + 1, vV))
    k('v_add_u32 v%d, s%d, v%d' % (vV, s_tmp, vV))
    k('v_add_u32 v%d, 1024, v%d' % (vV, vV))
    k('s_cmp_lt_u32 s3, 2')
    k('s_cselect_b64 vcc, -1, 0')
    k('s_cselect_b32 s%d, 2, 16' % s_tmp)
    k('v_cndmask_b32 v%d, v%d, v%d, vcc' % (vK, vV, vK))
    k('v_add_u32 v%d, s%d, v%d' % (vK + 1, s_tmp, vK))
    k('v_add_u32 v%d, s%d, v%d' % (vK + 2, s_tmp, vK + 1))
    k('v_add_u32 v%d, s%d, v%d' % (vK + 3, s_tmp, vK + 2))
    for r in (0, 2):
        k('v_pk_fma_f32 %s, %s, %s, %s op_sel:[0,1,0] op_sel_hi:[1,1,1] neg_lo:[0,1,0] neg_hi:[0,1,0]' % (
            vr(HC + r, 2), vr(HC + r, 2), vr(RR + 4, 2), vr(H1 + r, 2)))
    k('v_lshlrev_b32 v%d, 2, v2' % (vAd + 1))
    k('s_lshl_b32 s%d, s3, 11' % s_tmp)
    k('v_add_u32 v%d, s%d, v4' % (vAd + 2, s_tmp))
    k('s_cmp_eq_u32 s%d, 15' % s_head)
    k('s_cselect_b32 s%d, 0xffff0000, -1' % s_m)
    k('s_mov_b32 s%d, -1' % (s_m + 1))
    k('s_mov_b32 s%d, -1' % (s_m + 2))
    k('s_cselect_b32 s%d, -1, 0xffff' % (s_m + 3))
    k.wait_lg(0)
    k.barrier()
    stamp(k, 7)
    hook('A_e1')
    CS = T + 32
    CSV = T + 48
    L2 = T + 52
    for blk in (1, 2, 0):
        k('ds_read_b32 v%d, v%d offset:%d' % (RR + 2 * blk, vAd + 3, A_LDS_ST + 128 * blk))
    for s_ in (2, 3):
        k('ds_read_b128 %s, v%d offset:%d' % (vr(CS + 4 * s_, 4), vAd, A_LDS_CS + 64 * s_))
    k('ds_read_b32 v%d, v%d offset:%d' % (CSV, vAd + 1, A_LDS_CS + 256))
    k('ds_read_b32 v%d, v%d offset:%d' % (CSV + 1, vAd + 1, A_LDS_CS + 320))
    for blk in (1, 0):
        k('ds_read_b128 %s, v%d offset:%d' % (vr(L2 + 8 * blk + 4, 4), vAd + 4, A_LDS_ST + blk * 128 + 64))
        k('ds_read_b128 %s, v%d offset:%d' % (vr(L2 + 8 * blk, 4), vAd + 4, A_LDS_ST + blk * 128))
    for s_ in (0, 1):
        k('ds_read_b128 %s, v%d offset:%d' % (vr(CS + 4 * s_, 4), vAd, A_LDS_CS + 64 * s_))
    RQ = T + 68
    qs = (DH ** -0.5) * 1.4426950408889634
    QT = T + 72
    KT = T + 80
    VV = T + 92

    def fix_qk(blk, nbi, scale_reg, dst):
        a = acc(blk, nbi)
        hi = scale_reg & 1
        for r in (0, 2):
            k('v_pk_fma_f32 %s, %s, %s, %s op_sel:[0,1,0] op_sel_hi:[1,1,1] neg_lo:[0,1,0] neg_hi:[0,1,0]' % (
                vr(a + r, 2), vr(CS + 4 * nbi + r, 2), vr(RR + 2 * blk, 2), vr(a + r, 2)))
        for r in (0, 2):
            k('v_pk_mul_f32 %s, %s, %s op_sel:[0,%d] op_sel_hi:[1,%d]' % (vr(a + r, 2), vr(a + r, 2), vr(scale_reg - hi, 2), hi, hi))
        k('v_cvt_pk_bf16_f32 v%d, v%d, v%d' % (dst, a, a + 1))
        k('v_cvt_pk_bf16_f32 v%d, v%d, v%d' % (dst + 1, a + 2, a + 3))
        k.bg()

    def fix_v(blk, nb):
        a = acc(blk, 4 + nb)
        for r in (0, 2):
            k('v_pk_fma_f32 %s, %s, %s, %s op_sel:[0,%d,0] op_sel_hi:[1,%d,1] neg_lo:[0,1,0] neg_hi:[0,1,0]' % (
                vr(a + r, 2), vr(L2 + 8 * blk + 4 + r, 2), vr(CSV, 2), vr(a + r, 2), nb, nb))
        for r in (0, 2):
            k('v_pk_mul_f32 %s, %s, %s' % (vr(a + r, 2), vr(a + r, 2), vr(L2 + 8 * blk + r, 2)))
        dst = VV + 6 * nb + 2 + 2 * blk
        k('v_cvt_pk_bf16_f32 v%d, v%d, v%d' % (dst, a, a + 1))
        k('v_cvt_pk_bf16_f32 v%d, v%d, v%d' % (dst + 1, a + 2, a + 3))
        k.bg()

    fix_qk(1, 2, RR + 2, KT + 8)
    fix_qk(1, 3, RR + 2, KT + 10)
    k('ds_write_b128 v%d, %s offset:%d' % (vAd + 2, vr(KT + 8, 4), A_LDS_KV + 2048))
    for r in (0, 2):
        k('v_pk_mul_f32 %s, %s, %s op_sel_hi:[1,0]' % (vr(HC + r, 2), vr(HC + r, 2), vr(RR + 4, 2)))
    k('v_cvt_pk_bf16_f32 v%d, v%d, v%d' % (HC, HC, HC + 1))
    k('v_cvt_pk_bf16_f32 v%d, v%d, v%d' % (HC + 2, HC + 2, HC + 3))
    k('ds_write_b16 v%d, v%d offset:%d' % (vK, HC, A_LDS_KV))
    k('ds_write_b16_d16_hi v%d, v%d offset:%d' % (vK + 1, HC, A_LDS_KV))
    k('ds_write_b16 v%d, v%d offset:%d' % (vK + 2, HC + 2, A_LDS_KV))
    k('ds_write_b16_d16_hi v%d, v%d offset:%d' % (vK + 3, HC + 2, A_LDS_KV))
    fix_v(1, 0)
    fix_v(1, 1)
    k('ds_write_b64 v%d, %s offset:%d' % (vAd + 2, vr(VV + 4, 2), A_LDS_KV + 2048 + 1024))
    k('ds_write_b64 v%d, %s offset:%d' % (vAd + 2, vr(VV + 10, 2), A_LDS_KV + 2048 + 1024 + 8))
    for blk in range(2):
        k('v_mul_f32 v%d, %s, v%d' % (RQ + 2 * blk, f32(qs), RR + 2 * blk))
    for blk in range(2):
        k('v_cndmask_b32 v%d, 0, v%d, %s' % (RQ + 2 * blk + 1, RQ + 2 * blk, sr(s_m + 2, 2)))
        k('v_cndmask_b32 v%d, 0, v%d, %s' % (RQ + 2 * blk, RQ + 2 * blk, sr(s_m, 2)))
    fix_qk(0, 2, RR + 0, KT + 4)
    fix_qk(0, 3, RR + 0, KT + 6)
    k.wait_lg(0)
    k.barrier()
    stamp(k, 8)
    k('ds_read_b128 %s, v%d offset:%d' % (vr(KT, 4), vAd + 2, A_LDS_KV))
    k('ds_read_b64 %s, v%d offset:%d' % (vr(VV, 2), vAd + 2, A_LDS_KV + 1024))
    k('ds_read_b64 %s, v%d offset:%d' % (vr(VV + 6, 2), vAd + 2, A_LDS_KV + 1024 + 8))
    fix_qk(1, 0, RQ + 2, QT + 4)
    fix_qk(1, 1, RQ + 3, QT + 6)
    SS = T + 104
    k('v_mfma_f32_16x16x32_bf16 %s, %s, %s, %s' % (vr(SS + 8, 4), vr(KT + 4, 4), vr(QT + 4, 4), vr(BP, 4)))
    k('v_mfma_f32_16x16x32_bf16 %s, %s, %s, %s' % (vr(SS + 12, 4), vr(KT + 8, 4), vr(QT + 4, 4), vr(BC, 4)))
    fix_qk(0, 0, RQ + 0, QT + 0)
    fix_qk(0, 1, RQ + 1, QT + 2)
    k('v_mfma_f32_16x16x32_bf16 %s, %s, %s, %s' % (vr(SS + 0, 4), vr(KT + 0, 4), vr(QT, 4), vr(BPA, 4)))
    k('v_mfma_f32_16x16x32_bf16 %s, %s, %s, %s' % (vr(SS + 4, 4), vr(KT + 4, 4), vr(QT, 4), vr(BC, 4)))
    fix_v(0, 0)
    fix_v(0, 1)
    MX = ACC
    TM = ACC + 2
    for blk in (1, 0):
        s_ = SS + 8 * blk
        k('v_max3_f32 v%d, v%d, v%d, v%d' % (MX + blk, s_, s_ + 1, s_ + 2))
        k('v_max3_f32 v%d, v%d, v%d, v%d' % (TM + blk, s_ + 3, s_ + 4, s_ + 5))
        k('v_max3_f32 v%d, v%d, v%d, v%d' % (MX + blk, MX + blk, s_ + 6, s_ + 7))
        k('v_max_f32 v%d, v%d, v%d' % (MX + blk, MX + blk, TM + blk))
    k.bg()
    xgroup_reduce(k, [MX, MX + 1], [TM, TM + 1], op='v_max_f32')
    k.bg_flush()
    stamp(k, 9)
    SUM = ACC + 4
    PP = ACC + 8
    OO = ACC + 16
    for blk in (1, 0):
        s_ = SS + 8 * blk
        for i in range(0, 8, 2):
            k('v_pk_add_f32 %s, %s, %s op_sel:[0,%d] op_sel_hi:[1,%d] neg_lo:[0,1] neg_hi:[0,1]' % (vr(s_ + i, 2), vr(s_ + i, 2), vr(MX, 2), blk, blk))
        for i in range(8):
            k('v_exp_f32 v%d, v%d' % (s_ + i, s_ + i))
        for i in range(4):
            k('v_cvt_pk_bf16_f32 v%d, v%d, v%d' % (PP + 4 * blk + i, s_ + 2 * i, s_ + 2 * i + 1))
        for nb in range(2):
            k('v_mfma_f32_16x16x32_bf16 %s, %s, %s, 0' % (vr(OO + 8 * blk + 4 * nb, 4), vr(VV + 6 * nb + 2 * blk, 4),
                                                          vr(PP + 4 * blk, 4)))
    for blk in range(2):
        s_ = SS + 8 * blk
        k('v_pk_add_f32 %s, %s, %s' % (vr(s_, 2), vr(s_, 2), vr(s_ + 2, 2)))
        k('v_pk_add_f32 %s, %s, %s' % (vr(s_ + 4, 2), vr(s_ + 4, 2), vr(s_ + 6, 2)))
    for blk in range(2):
        s_ = SS + 8 * blk
        k('v_pk_add_f32 %s, %s, %s' % (vr(s_, 2), vr(s_, 2), vr(s_ + 4, 2)))
    for blk in range(2):
        s_ = SS + 8 * blk
        k('v_add_f32 v%d, v%d, v%d' % (SUM + 2 * blk, s_, s_ + 1))
    xgroup_reduce(k, [SUM, SUM + 2], [TM, TM + 1])
    for blk in range(2):
        k('v_rcp_f32 v%d, v%d' % (SUM + 2 * blk, SUM + 2 * blk))
    for blk in range(2):
        k('v_cndmask_b32 v%d, 0, v%d, %s' % (SUM + 2 * blk + 1, SUM + 2 * blk, sr(s_m + 2, 2)))
        k('v_cndmask_b32 v%d, 0, v%d, %s' % (SUM + 2 * blk, SUM + 2 * blk, sr(s_m, 2)))
    k('s_lshl_b32 s%d, s%d, 3' % (s_tmp, s_rb))
    k('s_lshl_b32 s%d, s3, 1' % s_t0)
    k('s_add_u32 s%d, s%d, s%d' % (s_tmp, s_tmp, s_t0))
    k('s_lshl_b32 s%d, s%d, 4' % (s_tmp, s_tmp))
    k('s_add_u32 s%d, s%d, s%d' % (s_tmp, s_tmp, s_head))
    k('s_lshl_b32 s%d, s%d, 10' % (s_tmp, s_tmp))
    if OF_OFF:
        k('s_add_u32 s%d, s%d, 0x%x' % (s_tmp, s_tmp, OF_OFF))
    k('s_add_u32 s%d, s%d, 16384' % (s_t0, s_tmp))
    for blk in range(2):
        o = OO + 8 * blk
        for r in (0, 2):
            k('v_pk_mul_f32 %s, %s, %s op_sel_hi:[1,0]' % (vr(o + r, 2), vr(o + r, 2), vr(SUM + 2 * blk, 2)))
        for r in (0, 2):
            k('v_pk_mul_f32 %s, %s, %s op_sel:[0,1] op_sel_hi:[1,1]' % (vr(o + 4 + r, 2), vr(o + 4 + r, 2), vr(SUM + 2 * blk, 2)))
        p = PP + 4 * blk
        for i in range(4):
            k('v_cvt_pk_bf16_f32 v%d, v%d, v%d' % (p + i, o + 2 * i, o + 2 * i + 1))
        k('buffer_store_dwordx4 %s, v4, %s, s%d offen %s' % (vr(p, 4), srd(SRD_WS), s_tmp if blk == 0 else s_t0, sc1), tag='ost')


STAMP_OFF = 0xA00000


DST = {5: 1, 10: 2, 15: 3, 16: 4, 22: 5, 24: 6, 29: 7}


def dstamp(k, idx, vtmp=253, stmp=74):
    if idx not in DST and idx != 0:
        return
    slot = DST.get(idx, 0)
    k('s_memrealtime %s' % sr(stmp, 2))
    k('s_cmp_eq_u32 s2, 131')
    k('s_cselect_b32 s%d, %d, %s' % (stmp + 4, 32 + 4 * slot, '0x%x' % OOB))
    if slot:
        k('s_cmp_eq_u32 s2, 0')
        k('s_cselect_b32 s%d, %d, s%d' % (stmp + 4, 4 * slot, stmp + 4))
    k('v_mov_b32 v%d, s%d' % (vtmp + 2, stmp + 4))
    k('v_mov_b32 v%d, s%d' % (vtmp, stmp))
    k('s_cmp_eq_u32 s3, 0')
    k('s_cselect_b64 exec, 1, 0')
    k('buffer_store_dword v%d, v%d, %s, 0 offen' % (vtmp, vtmp + 2, srd(SRD_DBG)))
    k('s_mov_b64 exec, -1')


def stamp(k, idx, vtmp=253, stmp=74):
    if idx >= 32:
        return
    if getattr(k, 'stamps', False) == 'dbg':
        return dstamp(k, idx, vtmp, stmp)
    if not getattr(k, 'stamps', False):
        return
    k('s_memrealtime %s' % sr(stmp, 2))
    k('s_memtime %s' % sr(stmp + 2, 2))
    k('s_lshl_b32 s%d, s2, 2' % (stmp + 4))
    k('s_add_u32 s%d, s%d, s3' % (stmp + 4, stmp + 4))
    k('s_lshl_b32 s%d, s%d, 7' % (stmp + 4, stmp + 4))
    k('s_add_u32 s%d, s%d, 0x%x' % (stmp + 4, stmp + 4, STAMP_OFF + 4 * idx))
    k('v_mov_b32 v%d, s%d' % (vtmp, stmp))
    k('v_mov_b32 v%d, s%d' % (vtmp + 1, stmp + 2))
    k('v_mov_b32 v%d, 0' % (vtmp + 2))
    k('s_mov_b64 exec, 1')
    k('buffer_store_dword v%d, v%d, %s, s%d offen' % (vtmp, vtmp + 2, srd(SRD_WS), stmp + 4))
    k('s_add_u32 s%d, s%d, 0x20000' % (stmp + 4, stmp + 4))
    k('buffer_store_dword v%d, v%d, %s, s%d offen' % (vtmp + 1, vtmp + 2, srd(SRD_WS), stmp + 4))
    k('s_mov_b64 exec, -1')


def spin_guard(k):
    k('s_sub_u32 s%d, s%d, 1' % (S_SPIN, S_SPIN))
    k('s_cbranch_scc1 %s' % k.end_label)


def epoch_publish(k, vt):
    k('s_memrealtime %s' % sr(S_T, 2))
    k('v_mov_b32 v%d, 0' % (vt + 1))
    k('s_or_b32 s%d, s%d, 1' % (S_T, S_T))
    k('v_mov_b32 v%d, s%d' % (vt, S_T))
    k('s_or_b32 s%d, s2, s3' % S_T)
    k('s_cmp_eq_u32 s%d, 0' % S_T)
    k('s_cselect_b64 exec, 1, 0')
    k('buffer_store_dword v%d, v%d, %s, 0 offen sc1' % (vt, vt + 1, srd(SRD_DBG)))
    k('s_mov_b64 exec, -1')


def epoch_load(k, vt):
    k('v_mov_b32 v%d, 0' % (vt + 1))
    k('buffer_load_dword v%d, v%d, %s, 0 offen sc1' % (vt, vt + 1, srd(SRD_DBG)))


def epoch_get(k, vt):
    L = k.newlabel('Lepg')
    done = k.newlabel('Lepd')
    k('v_readfirstlane_b32 s%d, v%d' % (S_EPOCH, vt))
    k('s_cmp_lg_u32 s%d, 0' % S_EPOCH)
    k.branch_fwd('s_cbranch_scc1', done)
    k.loop_label(L)
    spin_guard(k)
    k('buffer_load_dword v%d, v%d, %s, 0 offen sc1' % (vt, vt + 1, srd(SRD_DBG)))
    k.force_wait(vm=0)
    k('v_readfirstlane_b32 s%d, v%d' % (S_EPOCH, vt))
    k('s_cmp_eq_u32 s%d, 0' % S_EPOCH)
    k('s_cbranch_scc1 %s' % L)
    k.label(done)


FLAG_A = FLAG_OFF
FLAG_B = FLAG_OFF + 0x1000
FLAG_C = FLAG_OFF + 0x2000


def flag_store(k, vt, s_off):
    k('v_mov_b32 v%d, s%d' % (vt, S_EPOCH))
    k('s_mov_b64 exec, 1')
    k('buffer_store_dword v%d, v%d, %s, s%d offen sc1' % (vt, vt + 1, srd(SRD_WS), s_off))
    k('s_mov_b64 exec, -1')


POLL_DEPTH = 3
POLL_GAP = 3
OUT_SC = ''
POLL_SLEEP = 0
WO_LATE = False
START_ORDER = '01w|'
AGENT_DEPTH = 2
ST_SLEEP = 0
V_POLL = 249


def flag_poll(k, vt, voff, s_off):
    L = k.newlabel('Lpoll')
    done = k.newlabel('Lpd')
    n = POLL_DEPTH

    def ld(i):
        return k('buffer_load_dword v%d, v%d, %s, s%d offen sc1' % (V_POLL + i, voff, srd(SRD_WS), s_off))
    for i in range(n - 1):
        ld(i)
        k('s_sleep %d' % POLL_GAP)
    k.loop_label(L)
    spin_guard(k)
    last = []
    for i in range(n):
        k.vm = []
        if POLL_SLEEP:
            k('s_sleep %d' % POLL_SLEEP)
        last.append(ld((i + n - 1) % n))
        k._emit(classify('s_waitcnt vmcnt(%d)' % (n - 1)))
        k.vm = []
        k('v_cmp_ne_u32 vcc, s%d, v%d' % (S_EPOCH, V_POLL + i))
        if i < n - 1:
            k('s_cbranch_vccz %s' % done)
        else:
            k('s_cbranch_vccnz %s' % L)
    k.fence()
    k.raw(done + ':')
    k.vm = list(last)


class B:
    s_tmp, s_wbase, s_t2, s_x = 58, 59, 60, 61
    s_dma = 73
    vWo, vR0, vR1 = 208, 209, 210
    ACC = 192
    OFR = 32
    T = 64
    HK = 240


def B_setup(k):
    b, g = B, G
    k.c('---- phase B setup')
    t = TMP
    k('v_lshrrev_b32 v%d, 3, v1' % t)
    k('v_mul_u32_u24 v%d, 896, v%d' % (b.vWo, t))
    k('v_and_b32 v%d, 1, v3' % t)
    k('v_lshlrev_b32 v%d, 2, v%d' % (t, t))
    k('v_and_b32 v%d, 7, v1' % (t + 1))
    k('v_xor_b32 v%d, v%d, v%d' % (t, t, t + 1))
    k('v_lshl_add_u32 v%d, v%d, 4, v%d' % (b.vWo, t, b.vWo))
    k('s_lshl_b32 s%d, s%d, 7' % (b.s_tmp, g.s_dtD))
    k('s_mul_i32 s%d, s3, %d' % (b.s_t2, 112 * 896))
    k('s_add_u32 s%d, s%d, s%d' % (b.s_tmp, b.s_tmp, b.s_t2))
    k('v_add_u32 v%d, s%d, v%d' % (b.vWo, b.s_tmp, b.vWo))
    k('s_mul_i32 s%d, s3, %d' % (b.s_wbase, 112 * 128))
    k('s_add_u32 s%d, s%d, %d' % (b.s_wbase, b.s_wbase, LDS_WO))
    k('v_lshrrev_b32 v%d, 5, v1' % t)
    k('v_lshlrev_b32 v%d, 9, v%d' % (b.vR0, t))
    k('v_bfe_u32 v%d, v1, 2, 2' % t)
    k('v_lshl_add_u32 v%d, v%d, 7, v%d' % (b.vR0, t, b.vR0))
    k('v_lshrrev_b32 v%d, 1, v%d' % (t, t))
    k('s_and_b32 s%d, s3, 1' % b.s_tmp)
    k('v_xor_b32 v%d, s%d, v%d' % (t, b.s_tmp, t))
    k('v_lshl_add_u32 v%d, v%d, 6, v%d' % (b.vR0, t, b.vR0))
    k('v_and_b32 v%d, 1, v3' % t)
    k('v_lshl_add_u32 v%d, v%d, 5, v%d' % (b.vR0, t, b.vR0))
    k('v_and_b32 v%d, 3, v1' % t)
    k('v_lshl_add_u32 v%d, v%d, 3, v%d' % (b.vR0, t, b.vR0))
    k('v_add_u32 v%d, %d, v%d' % (b.vR0, LDS_WO, b.vR0))


def B_wo_dma(k):
    b = B

    def one(i):
        k('s_add_u32 m0, s%d, %d' % (b.s_wbase, i * 1024))
        k('s_mov_b32 s%d, %d' % (b.s_dma, 8 * i * 896))
        k('buffer_load_dwordx4 v%d, %s, s%d offen lds' % (b.vWo, srd(SRD_WO), b.s_dma), tag='wo')
    for i in range(14):
        k.bg_push(lambda i=i: one(i))


def B_wo_read(k, abase):
    b = B
    for h in range(16):
        for ks in range(2):
            a = abase + 8 * h + 4 * ks
            o = h * 3584 + ks * 1024 - (512 if h == 15 else 0)
            k('ds_read_b64_tr_b16 %s, v%d offset:%d' % (ar(a, 2), b.vR0, o))
            k('ds_read_b64_tr_b16 %s, v%d offset:%d' % (ar(a + 2, 2), b.vR0, o + 2048))


def B_xinit(k):
    b, g = B, G
    t = TMP + 2
    k('v_lshrrev_b32 v%d, 5, v1' % t)
    k('v_mul_u32_u24 v%d, %d, v%d' % (t, 4 * 896, t))
    k('v_and_b32 v%d, 31, v1' % (t + 1))
    k('v_lshl_add_u32 v%d, v%d, 1, v%d' % (t, t + 1, t))
    k('s_lshl_b32 s%d, s%d, 1' % (b.s_tmp, g.s_st))
    k('s_lshr_b32 s%d, s3, 1' % b.s_t2)
    k('s_add_u32 s%d, s%d, s%d' % (b.s_tmp, b.s_tmp, b.s_t2))
    k('s_mul_i32 s%d, s%d, %d' % (b.s_tmp, b.s_tmp, 32 * 896))
    k('s_lshl_b32 s%d, s%d, 7' % (b.s_t2, g.s_dtD))
    k('s_add_u32 s%d, s%d, s%d' % (b.s_tmp, b.s_tmp, b.s_t2))
    k('s_and_b32 s%d, s3, 1' % b.s_t2)
    k('s_lshl_b32 s%d, s%d, 6' % (b.s_t2, b.s_t2))
    k('s_add_u32 s%d, s%d, s%d' % (b.s_tmp, b.s_tmp, b.s_t2))
    for q in range(4):
        for r in range(4):
            k('buffer_load_ushort v%d, v%d, %s, s%d offen offset:%d' % (b.ACC + 4 * q + r, t, srd(SRD_X), b.s_tmp, r * 896))
        if q < 3:
            k('s_add_u32 s%d, s%d, %d' % (b.s_tmp, b.s_tmp, 8 * 896))


def B_xinit_finish(k):
    b = B
    for i in range(16):
        k('v_lshlrev_b32 v%d, 16, v%d' % (b.ACC + i, b.ACC + i))


def B_main(k, abase, lds_small, sc1='', hooks=None):
    b, g = B, G
    t = b.T
    k.c('---- phase B main')
    hooks = hooks or {}

    def hook(name):
        if name in hooks:
            hooks[name]()
    k('s_lshl_b32 s%d, s%d, 16' % (b.s_tmp, g.s_st))
    k('s_lshl_b32 s%d, s3, 14' % b.s_t2)
    k('s_add_u32 s%d, s%d, s%d' % (b.s_tmp, b.s_tmp, b.s_t2))
    if OF_OFF:
        k('s_add_u32 s%d, s%d, 0x%x' % (b.s_tmp, b.s_tmp, OF_OFF))
    for i in range(16):
        if i % 4 == 0:
            k('s_add_u32 m0, s%d, %d' % (g.s_stage, i * 1024))
            if i:
                k('s_add_u32 s%d, s%d, 4096' % (b.s_tmp, b.s_tmp))
        k('buffer_load_dwordx4 v4, %s, s%d offen offset:%d %s lds' % (srd(SRD_WS), b.s_tmp, (i % 4) * 1024, sc1), tag='of%d' % (i // 8))
    k('v_and_b32 v%d, 1, v3' % t)
    k('v_mul_u32_u24 v%d, %d, v%d' % (t, STG_SZ, t))
    k('v_lshl_add_u32 v%d, v2, 4, v%d' % (t, t))
    k('v_lshrrev_b32 v%d, 5, v1' % (t + 1))
    k('v_lshl_add_u32 v%d, v%d, 8, v%d' % (t, t + 1, t))
    k('s_lshr_b32 s%d, s3, 1' % b.s_t2)
    k('s_mul_i32 s%d, s%d, %d' % (b.s_t2, b.s_t2, 2 * STG_SZ))
    k('s_add_u32 s%d, s%d, %d' % (b.s_t2, b.s_t2, LDS_STG))
    k('v_add_u32 v%d, s%d, v%d' % (t, b.s_t2, t))
    hook('B_after_of')
    a = vr(b.ACC, 16)

    def rd(i):
        k('ds_read_b128 %s, v%d offset:%d' % (vr(b.OFR + 4 * (i % 8), 4), t, i * 512))
    for half in range(2):
        k.wait_tag('of%d' % half)
        k.barrier()
        if half == 0:
            stamp(k, 11)
        for i in range(16 * half, 16 * half + (6 if half == 0 else 2)):
            rd(i)
        for i in range(16 * half - (4 if half else 0), 16 * half + (12 if half == 0 else 16)):
            k('v_mfma_f32_32x32x16_bf16 %s, %s, %s, %s' % (a, vr(b.OFR + 4 * (i % 8), 4), ar(abase + 4 * i, 4), a))
            if i + 6 < 16 * half + 16 and i + 6 >= 16 * half + (6 if half == 0 else 2):
                rd(i + 6)
            if i % 3 == 0:
                k.bg()
    stamp(k, 12)
    Q = t + 4
    V = t + 20
    A = b.ACC
    for i in range(0, 16, 2):
        k('v_pk_mul_f32 %s, %s, %s' % (vr(Q + i, 2), vr(A + i, 2), vr(A + i, 2)))
    def src(base, q, idx):
        r = ((idx & 1) << 1) | (idx >> 1)
        return base + 4 * q + r
    for base, dst in ((A, V), (Q, V + 8)):
        k.bg()
        for q in range(4):
            for p in range(2):
                x = src(base, q, 2 * p)
                k('v_add_f32_dpp v%d, v%d, v%d row_mirror row_mask:0xf bank_mask:0x3' % (dst + 2 * q + p, x, x))
    for base, dst in ((A, V), (Q, V + 8)):
        k.bg()
        for q in range(4):
            for p in range(2):
                x = src(base, q, 2 * p + 1)
                k('v_add_f32_dpp v%d, v%d, v%d row_mirror row_mask:0xf bank_mask:0xc' % (dst + 2 * q + p, x, x))
    k.bg(2)
    for i in range(8):
        k('v_add_f32_dpp v%d, v%d, v%d row_half_mirror row_mask:0xf bank_mask:0x5' % (V + 2 * i, V + 2 * i, V + 2 * i))
    for i in range(8):
        k('v_add_f32_dpp v%d, v%d, v%d row_half_mirror row_mask:0xf bank_mask:0xa' % (V + 2 * i, V + 2 * i + 1, V + 2 * i + 1))
    for i in range(8):
        k('v_add_f32_dpp v%d, v%d, v%d quad_perm:[1,0,3,2] row_mask:0xf bank_mask:0xf' % (V + 2 * i + 1, V + 2 * i, V + 2 * i))
    U = Q
    k.bg(2)
    for i in range(8):
        k('v_add_f32_dpp v%d, v%d, v%d quad_perm:[2,3,0,1] row_mask:0xf bank_mask:0xf' % (U + i, V + 2 * i + 1, V + 2 * i + 1))
    for kind in range(2):
        for i in range(2):
            k('v_permlane16_swap_b32 v%d, v%d' % (U + 4 * kind + 2 * i, U + 4 * kind + 2 * i + 1))
    W_ = V
    for i in range(2):
        for kind in range(2):
            k('v_add_f32 v%d, v%d, v%d' % (W_ + 2 * i + kind, U + 4 * kind + 2 * i, U + 4 * kind + 2 * i + 1))
    k.bg_flush()
    vA, vC, vG = t + 1, t + 2, t + 3
    k('v_and_b32 v%d, 1, v3' % vA)
    k('v_lshlrev_b32 v%d, 6, v%d' % (vA, vA))
    k('v_lshrrev_b32 v%d, 5, v1' % vC)
    k('v_lshl_add_u32 v%d, v%d, 5, v%d' % (vA, vC, vA))
    k('v_bfe_u32 v%d, v1, 2, 2' % vG)
    k('v_lshl_add_u32 v%d, v%d, 3, v%d' % (vA, vG, vA))
    k('s_lshl_b32 s%d, s3, 8' % b.s_tmp)
    k('v_add_u32 v%d, s%d, v%d' % (vA, b.s_tmp, vA))
    k('ds_write_b64 v%d, %s offset:%d' % (vA, vr(W_, 2), lds_small))
    k('ds_write_b64 v%d, %s offset:%d' % (vA, vr(W_ + 2, 2), lds_small + 128))
    k('v_and_b32 v%d, 31, v1' % vG)
    k('v_lshlrev_b32 v%d, 9, v%d' % (vA, vC))
    k('v_lshl_add_u32 v%d, v%d, 4, v%d' % (vA, vG, vA))
    k('v_lshlrev_b32 v%d, 8, v%d' % (vC, vC))
    k('v_lshl_add_u32 v%d, v%d, 3, v%d' % (vC, vG, vC))
    k('s_and_b32 s%d, s%d, 512' % (b.s_tmp, b.s_tmp))
    k('v_add_u32 v%d, s%d, v%d' % (vC, b.s_tmp, vC))
    k('s_lshl_b32 s%d, s%d, 1' % (b.s_tmp, g.s_st))
    k('s_lshr_b32 s%d, s3, 1' % b.s_t2)
    k('s_add_u32 s%d, s%d, s%d' % (b.s_tmp, b.s_tmp, b.s_t2))
    k('s_lshl_b32 s%d, s%d, 12' % (b.s_tmp, b.s_tmp))
    k('s_add_u32 s%d, s%d, 0x%x' % (b.s_tmp, b.s_tmp, STAT_OFF))
    k('s_lshl_b32 s%d, s%d, 9' % (b.s_t2, g.s_dtD))
    k('s_add_u32 s%d, s%d, s%d' % (b.s_t2, b.s_t2, b.s_tmp))
    stamp(k, 23)
    k.wait_lg(0)
    k.barrier()
    k('ds_read_b64 %s, v%d offset:%d' % (vr(V, 2), vC, lds_small))
    G_ = V + 4
    k('v_mov_b32 v%d, s%d' % (G_ + 1, S_EPOCH))
    k('v_mov_b32 v%d, s%d' % (G_ + 3, S_EPOCH))
    k('v_mov_b32 v%d, v%d' % (G_, V))
    k('v_mov_b32 v%d, v%d' % (G_ + 2, V + 1))
    k('v_permlane32_swap_b32 v%d, v%d' % (G_, V))
    k('v_permlane32_swap_b32 v%d, v%d' % (G_ + 2, V + 1))
    k('v_add_f32 v%d, v%d, v%d' % (G_, G_, V))
    k('v_add_f32 v%d, v%d, v%d' % (G_ + 2, G_ + 2, V + 1))
    k('s_bitcmp0_b32 s3, 0')
    k('s_cselect_b32 exec_lo, -1, 0')
    k('s_mov_b32 exec_hi, 0')
    k('buffer_store_dwordx4 %s, v%d, %s, s%d offen sc1' % (vr(G_, 4), vA, srd(SRD_WS), b.s_t2))
    k('s_mov_b64 exec, -1')
    for i in range(8):
        k('v_cvt_pk_bf16_f32 v%d, v%d, v%d' % (b.HK + i, A + 2 * i, A + 2 * i + 1))
    k('s_lshl_b32 s%d, s%d, 1' % (b.s_x, g.s_dtD))
    k('s_and_b32 s%d, s3, 1' % b.s_t2)
    k('s_add_u32 s%d, s%d, s%d' % (b.s_x, b.s_x, b.s_t2))
    k('s_lshl_b32 s%d, s%d, 7' % (b.s_x, b.s_x))
    k('s_lshl_b32 s%d, s%d, 2' % (b.s_t2, g.s_st))
    k('s_add_u32 s%d, s%d, s%d' % (b.s_x, b.s_x, b.s_t2))
    k('s_and_b32 s%d, s3, 2' % b.s_t2)
    k('s_add_u32 s%d, s%d, s%d' % (b.s_x, b.s_x, b.s_t2))
    k('s_lshl_b32 s%d, s%d, 10' % (b.s_x, b.s_x))
    k('s_add_u32 s%d, s%d, 0x%x' % (b.s_x, b.s_x, HH_OFF))
    k('v_lshlrev_b32 v%d, 4, v%d' % (vC, vG))
    k('v_cmp_gt_u32 %s, 32, v1' % sr(S_T, 2))
    hook('B_before_poll')
    stamp(k, 31)
    P0 = t + 32
    L = k.newlabel('Lst')
    done = k.newlabel('Lstd')
    Sx, Qx = t + 64, t + 66

    def ld(s_):
        r = []
        for i in range(4):
            r.append(k('buffer_load_dwordx4 %s, v%d, %s, s%d offen offset:%d sc1' % (
                vr(P0 + 16 * s_ + 4 * i, 4), vA if i < 3 else vC, srd(SRD_WS), b.s_tmp, i * 1024)))
        return r
    ld(0)
    k('s_sleep 5')
    k.loop_label(L)
    spin_guard(k)
    last = []
    for s_ in range(2):
        k.vm = []
        if ST_SLEEP:
            k('s_sleep %d' % ST_SLEEP)
        last += ld(1 - s_)
        k._emit(classify('s_waitcnt vmcnt(4)'))
        k.vm = []
        p = P0 + 16 * s_
        for i in range(8):
            k('v_xor_b32 v%d, s%d, v%d' % (p + 2 * i + 1, S_EPOCH, p + 2 * i + 1))
        k('v_cndmask_b32 v%d, 0, v%d, %s' % (p + 12, p + 12, sr(S_T, 2)))
        k('v_cndmask_b32 v%d, 0, v%d, %s' % (p + 14, p + 14, sr(S_T, 2)))
        k('v_or3_b32 v%d, v%d, v%d, v%d' % (p + 1, p + 1, p + 3, p + 5))
        k('v_or3_b32 v%d, v%d, v%d, v%d' % (p + 7, p + 7, p + 9, p + 11))
        k('v_or3_b32 v%d, v%d, v%d, v%d' % (p + 1, p + 1, p + 13, p + 15))
        k('v_or_b32 v%d, v%d, v%d' % (p + 1, p + 1, p + 7))
        k('v_cmp_ne_u32 vcc, 0, v%d' % (p + 1))
        for x, o in ((Sx, 0), (Qx, 2)):
            k('v_add_f32 v%d, v%d, v%d' % (x, p + o, p + o + 4))
            k('v_add_f32 v%d, v%d, v%d' % (x + 1, p + o + 8, p + o + 12))
        if s_ == 0:
            k('s_cbranch_vccz %s' % done)
        else:
            k('s_cbranch_vccnz %s' % L)
    k.fence()
    k.raw(done + ':')
    k.vm = list(last)
    stamp(k, 13)
    P0 = t + 68
    for x in (Sx, Qx):
        k('v_add_f32 v%d, v%d, v%d' % (x, x, x + 1))
    k('v_mov_b32 v%d, v%d' % (P0 + 4, Sx))
    k('v_mov_b32 v%d, v%d' % (P0 + 6, Qx))
    k('v_permlane32_swap_b32 v%d, v%d' % (Sx, P0 + 4))
    k('v_permlane32_swap_b32 v%d, v%d' % (Qx, P0 + 6))
    k('v_add_f32 v%d, v%d, v%d' % (Sx, Sx, P0 + 4))
    k('v_add_f32 v%d, v%d, v%d' % (Qx, Qx, P0 + 6))
    M, R = P0 + 1, P0 + 3
    k('v_mul_f32 v%d, %s, v%d' % (M, f32(1.0 / D), Sx))
    k('v_mul_f32 v%d, %s, v%d' % (Qx, f32(1.0 / D), Qx))
    k('v_fma_f32 v%d, -v%d, v%d, v%d' % (Qx, M, M, Qx))
    k('v_max_f32 v%d, 0, v%d' % (Qx, Qx))
    k('v_add_f32 v%d, %s, v%d' % (R, f32(1e-5), Qx))
    k('v_rsq_f32 v%d, v%d' % (R, R))
    k('v_mul_f32 v%d, v%d, v%d' % (Qx, Qx, R))
    k('v_fmaak_f32 v%d, v%d, v%d, %s' % (Qx, Qx, R, f32(1e-5)))
    k('v_rsq_f32 v%d, v%d' % (Qx, Qx))
    k('v_mul_f32 v%d, v%d, v%d' % (R, R, Qx))
    k('s_lshl_b32 s%d, s3, 8' % b.s_t2)
    k('v_lshl_add_u32 v%d, v%d, 2, s%d' % (vC, vG, b.s_t2))
    k('ds_write_b32 v%d, v%d offset:%d' % (vC, M, lds_small + 1024))
    k('ds_write_b32 v%d, v%d offset:%d' % (vC, R, lds_small + 1024 + 128))
    k('v_lshrrev_b32 v%d, 5, v1' % vC)
    k('v_lshl_add_u32 v%d, v%d, 4, s%d' % (vC, vC, b.s_t2))
    MM = P0 + 8
    k.wait_lg(0)
    for q in range(4):
        k('ds_read_b128 %s, v%d offset:%d' % (vr(MM + 4 * q, 4), vC, lds_small + 1024 + 32 * q))
        k('ds_read_b128 %s, v%d offset:%d' % (vr(MM + 16 + 4 * q, 4), vC, lds_small + 1024 + 128 + 32 * q))
    for tp in range(2):
        for i in range(8 * tp, 8 * tp + 8, 2):
            k('v_pk_add_f32 %s, %s, %s neg_lo:[0,1] neg_hi:[0,1]' % (vr(A + i, 2), vr(A + i, 2), vr(MM + i, 2)))
        for i in range(8 * tp, 8 * tp + 8, 2):
            k('v_pk_mul_f32 %s, %s, %s' % (vr(A + i, 2), vr(A + i, 2), vr(MM + 16 + i, 2)))
        p = V + 4 * tp
        for i in range(4):
            k('v_cvt_pk_bf16_f32 v%d, v%d, v%d' % (p + i, A + 8 * tp + 2 * i, A + 8 * tp + 2 * i + 1))
        k('buffer_store_dwordx4 %s, v4, %s, s%d offen offset:%d %s' % (vr(p, 4), srd(SRD_WS), b.s_x, tp * 1024, sc1), tag='hst')


def agent(k):
    g = G
    k.c('---- agent: W2 warm-up')
    k('s_lshr_b32 s%d, s2, 3' % g.s_tmp)
    k('s_sub_u32 s%d, s%d, 28' % (g.s_tmp, g.s_tmp))
    k('s_lshl_b32 s%d, s%d, 2' % (g.s_tmp, g.s_tmp))
    k('s_add_u32 s%d, s%d, s3' % (g.s_tmp, g.s_tmp))
    k('s_lshl_b32 s%d, s%d, 16' % (g.s_tmp, g.s_tmp))
    k('s_and_b32 s%d, s2, 7' % g.s_t2)
    k('s_lshl_b32 s%d, s%d, 9' % (g.s_t2, g.s_t2))
    k('s_add_u32 s%d, s%d, s%d' % (g.s_tmp, g.s_tmp, g.s_t2))
    k('v_lshrrev_b32 v16, 2, v1')
    k('v_lshlrev_b32 v16, 12, v16')
    k('v_and_b32 v17, 3, v1')
    k('v_lshl_add_u32 v16, v17, 7, v16')
    for i in range(7):
        k('buffer_load_dword v%d, v16, %s, s%d offen' % (18 + i, srd(SRD_W2), g.s_tmp))
        k('s_add_u32 s%d, s%d, 0x100000' % (g.s_tmp, g.s_tmp))
        k.wait_vm(AGENT_DEPTH - 1)
    k.wait_vm(0)


class G:
    ACC = 16
    RING = 80
    NR = 16
    vW1, vW2 = 213, 214
    vRa, vRb = 215, 216
    vSa, vSb = 217, 218
    vCl = 5
    T = 220
    s_dtC, s_ft, s_dtD, s_st, s_tmp, s_t2, s_stage, s_a0, s_a1 = 64, 65, 66, 67, 68, 69, 70, 71, 72


def G_map(k):
    g = G
    k.c('---- C/D tile map')
    k('s_lshr_b32 s%d, s2, 3' % g.s_tmp)
    k('s_mul_i32 s%d, s%d, 37' % (g.s_t2, g.s_tmp))
    k('s_lshr_b32 s%d, s%d, 8' % (g.s_t2, g.s_t2))
    k('s_mul_i32 s%d, s%d, 7' % (g.s_dtC, g.s_t2))
    k('s_sub_u32 s%d, s%d, s%d' % (g.s_dtC, g.s_tmp, g.s_dtC))
    k('s_mov_b32 s%d, s%d' % (g.s_dtD, g.s_dtC))
    k('s_and_b32 s%d, s2, 7' % g.s_tmp)
    k('s_lshl_b32 s%d, s%d, 2' % (g.s_st, g.s_tmp))
    k('s_add_u32 s%d, s%d, s%d' % (g.s_st, g.s_st, g.s_t2))
    k('s_cmp_ge_u32 s%d, 4' % g.s_t2)
    k('s_cselect_b32 s%d, 99, s%d' % (g.s_st, g.s_st))
    k('s_mul_i32 s%d, s%d, 3' % (g.s_a0, g.s_tmp))
    k('s_add_u32 s%d, s%d, 4' % (g.s_a0, g.s_a0))
    k('s_lshl_b32 s%d, s%d, 2' % (g.s_a1, g.s_tmp))
    k('s_cmp_lt_u32 s%d, 4' % g.s_tmp)
    k('s_cselect_b32 s%d, s%d, s%d' % (g.s_ft, g.s_a1, g.s_a0))
    k('s_cselect_b32 s%d, 4, 3' % g.s_a0)
    k('s_add_u32 s%d, s%d, s%d' % (g.s_ft, g.s_ft, g.s_t2))
    k('s_cmp_ge_u32 s%d, s%d' % (g.s_t2, g.s_a0))
    k('s_cselect_b32 s%d, 99, s%d' % (g.s_ft, g.s_ft))


def G_w_setup(k, which, lds_base, per_wave):
    g = G
    t = TMP
    stride = F * 2 if which == 1 else S * 2
    krows = 512 if which == 1 else 448
    vW = g.vW1 if which == 1 else g.vW2
    va, vb = (g.vRa, g.vRb) if which == 1 else (g.vSa, g.vSb)
    s_tile = g.s_ft if which == 1 else g.s_st
    k('s_mul_i32 s%d, s3, %d' % (g.s_stage, per_wave))
    k('s_add_u32 s%d, s%d, %d' % (g.s_stage, g.s_stage, lds_base))
    k('v_lshrrev_b32 v%d, 3, v1' % t)
    k('v_mul_u32_u24 v%d, %d, v%d' % (vW, stride, t))
    k('v_and_b32 v%d, 1, v3' % t)
    k('v_lshlrev_b32 v%d, 2, v%d' % (t, t))
    k('v_and_b32 v%d, 7, v1' % (t + 1))
    k('v_xor_b32 v%d, v%d, v%d' % (t, t, t + 1))
    k('v_lshl_add_u32 v%d, v%d, 4, v%d' % (vW, t, vW))
    k('s_mul_i32 s%d, s3, %d' % (g.s_tmp, krows * stride))
    k('s_lshl_b32 s%d, s%d, 7' % (g.s_t2, s_tile))
    k('s_add_u32 s%d, s%d, s%d' % (g.s_tmp, g.s_tmp, g.s_t2))
    k('s_cmp_ge_u32 s%d, 99' % s_tile)
    k('s_cselect_b32 s%d, 0x%x, s%d' % (g.s_tmp, OOB, g.s_tmp))
    k('v_add_u32 v%d, s%d, v%d' % (vW, g.s_tmp, vW))
    if which == 1:
        k('s_cselect_b32 s%d, 0x%x, 0' % (g.s_tmp, OOB))
        k('v_add_u32 v%d, s%d, v4' % (g.vCl, g.s_tmp))
    k('v_lshrrev_b32 v%d, 5, v1' % t)
    k('v_lshlrev_b32 v%d, 9, v%d' % (va, t))
    k('v_bfe_u32 v%d, v1, 2, 2' % t)
    k('v_lshl_add_u32 v%d, v%d, 7, v%d' % (va, t, va))
    k('v_lshrrev_b32 v%d, 1, v%d' % (t, t))
    k('s_lshr_b32 s%d, s3, 1' % g.s_tmp)
    k('v_xor_b32 v%d, s%d, v%d' % (t, g.s_tmp, t))
    k('v_lshl_add_u32 v%d, v%d, 6, v%d' % (va, t, va))
    k('v_and_b32 v%d, 1, v3' % t)
    k('v_lshl_add_u32 v%d, v%d, 5, v%d' % (va, t, va))
    k('v_and_b32 v%d, 3, v1' % t)
    k('v_lshl_add_u32 v%d, v%d, 3, v%d' % (va, t, va))
    k('v_add_u32 v%d, s%d, v%d' % (va, g.s_stage, va))
    k('v_xor_b32 v%d, 64, v%d' % (vb, va))


def G_w_dma(k, which, t0, nt, slot0, tag=None, bg=False):
    g = G
    stride = F * 2 if which == 1 else S * 2

    def one(i):
        slot = slot0 + i // 2
        assert slot < NSLOT
        k.wait_lg_tag('rd%d' % slot)
        k.slot_content = getattr(k, 'slot_content', {})
        k.slot_content[slot] = (which, t0 + i // 2, i % 2)
        k('s_add_u32 m0, s%d, %d' % (g.s_stage, slot0 * 2048 + i * 1024))
        k('s_mov_b32 s%d, %d' % (B.s_dma, (16 * t0 + 8 * i) * stride))
        k('buffer_load_dwordx4 v%d, %s, s%d offen lds' % (g.vW1 if which == 1 else g.vW2, srd(SRD_W1 if which == 1 else SRD_W2), B.s_dma), tag='slot%d' % slot)
    for i in range(2 * nt):
        if bg:
            k.bg_push(lambda i=i: one(i))
        else:
            one(i)


def W1_warm(k, vdst):
    g = G
    t = TMP
    k('s_lshr_b32 s%d, s2, 3' % g.s_tmp)
    k('s_lshl_b32 s%d, s%d, 2' % (g.s_tmp, g.s_tmp))
    k('s_add_u32 s%d, s%d, s3' % (g.s_tmp, g.s_tmp))
    if WO_LATE:
        k('v_lshlrev_b32 v%d, 7, v1' % t)
        k('s_mul_i32 s%d, s%d, 3200' % (S_T, g.s_tmp))
        k('s_mov_b64 exec, 0x1ffffff')
        k('buffer_load_dword v234, v%d, %s, s%d offen' % (t, srd(SRD_WO), S_T))
        k('s_mov_b64 exec, -1')
    k('v_lshrrev_b32 v%d, 2, v1' % t)
    k('v_mul_u32_u24 v%d, %d, v%d' % (t, F * 2, t))
    k('v_and_b32 v%d, 3, v1' % (t + 1))
    k('v_lshl_add_u32 v%d, v%d, 7, v%d' % (t, t + 1, t))
    k('s_mul_i32 s%d, s%d, %d' % (g.s_tmp, g.s_tmp, 16 * F * 2))
    k('s_and_b32 s%d, s2, 7' % g.s_t2)
    k('s_mul_i32 s%d, s%d, 3' % (S_T, g.s_t2))
    k('s_add_u32 s%d, s%d, 4' % (S_T, S_T))
    k('s_lshl_b32 s%d, s%d, 2' % (S_T + 1, g.s_t2))
    k('s_min_u32 s%d, s%d, s%d' % (S_T, S_T, S_T + 1))
    k('s_lshl_b32 s%d, s%d, 7' % (S_T, S_T))
    k('s_add_u32 s%d, s%d, s%d' % (S_T, S_T, g.s_tmp))
    k('s_cmp_lt_u32 s%d, 4' % g.s_t2)
    k('s_cselect_b32 exec_lo, -1, 0x77777777')
    k('s_cselect_b32 exec_hi, -1, 0x77777777')
    k('buffer_load_dword v%d, v%d, %s, s%d offen' % (vdst, t, srd(SRD_W1), S_T))
    k('s_mov_b64 exec, -1')


def G_w_read(k, which, t, slot, areg):
    g = G
    va, vb = (g.vRa, g.vRb) if which == 1 else (g.vSa, g.vSb)
    sec = 1024
    assert k.slot_content[slot] == (which, t, 1), (k.slot_content[slot], which, t)
    k.wait_tag('slot%d' % slot)
    for i, v in enumerate((va, vb)):
        k('ds_read_b64_tr_b16 %s, v%d offset:%d' % (ar(areg + 4 * i, 2), v, slot * 2048), tag='rd%d' % slot)
        k('ds_read_b64_tr_b16 %s, v%d offset:%d' % (ar(areg + 4 * i + 2, 2), v, slot * 2048 + sec), tag='rd%d' % slot)


def G_a_setup(k, which):
    g = G
    nks = 128 if which == 1 else 112
    per = 32 if which == 1 else 28
    base = HH_OFF if which == 1 else U_OFF
    s_dt = g.s_dtC if which == 1 else g.s_dtD
    k('s_lshl_b32 s%d, s%d, 1' % (g.s_tmp, s_dt))
    k('s_and_b32 s%d, s3, 1' % g.s_t2)
    k('s_add_u32 s%d, s%d, s%d' % (g.s_a0, g.s_tmp, g.s_t2))
    k('s_xor_b32 s%d, s%d, 1' % (g.s_a1, g.s_a0))
    k('s_mul_i32 s%d, s3, %d' % (g.s_tmp, per * 1024))
    k('s_add_u32 s%d, s%d, 0x%x' % (g.s_tmp, g.s_tmp, base))
    for s_ in (g.s_a0, g.s_a1):
        k('s_mul_i32 s%d, s%d, %d' % (s_, s_, nks * 1024))
        k('s_add_u32 s%d, s%d, s%d' % (s_, s_, g.s_tmp))


def G_a_load(k, t, sc1='', vo=4, sd=SRD_WS):
    g = G
    if t and t % 4 == 0:
        k('s_add_u32 s%d, s%d, 4096' % (g.s_a0, g.s_a0))
        k('s_add_u32 s%d, s%d, 4096' % (g.s_a1, g.s_a1))
    r = g.RING + 8 * (t % g.NR)
    for i, s_ in enumerate((g.s_a0, g.s_a1)):
        k('buffer_load_dwordx4 %s, v%d, %s, s%d offen offset:%d %s' % (vr(r + 4 * i, 4), vo, srd(sd), s_, (t % 4) * 1024, sc1))


def G_mfma(k, t, areg):
    g = G
    r = g.RING + 8 * (t % g.NR)
    for iw in range(2):
        for ia in range(2):
            L = 2 * iw + ia
            a = vr(g.ACC + 16 * L, 16)
            c = '0' if (t == 0 and L != 0) else a
            k('v_mfma_f32_32x32x16_bf16 %s, %s, %s, %s' % (a, ar(areg + 4 * iw, 4), vr(r + 4 * ia, 4), c))


def C_init(k):
    g = G
    t = g.T
    k('v_lshrrev_b32 v%d, 5, v1' % t)
    k('v_lshlrev_b32 v%d, 3, v%d' % (t, t))
    k('s_lshl_b32 s%d, s%d, 7' % (g.s_tmp, g.s_ft))
    k('s_lshr_b32 s%d, s3, 1' % g.s_t2)
    k('s_lshl_b32 s%d, s%d, 6' % (g.s_t2, g.s_t2))
    k('s_add_u32 s%d, s%d, s%d' % (g.s_tmp, g.s_tmp, g.s_t2))
    for q in range(4):
        k('buffer_load_dwordx2 %s, v%d, %s, s%d offen offset:%d' % (vr(t + 2 + 2 * q, 2), t, srd(SRD_B1), g.s_tmp, 16 * q))


def C_init_finish(k):
    g = G
    t = g.T
    for q in range(4):
        for i in range(2):
            k('v_lshlrev_b32 v%d, 16, v%d' % (g.ACC + 4 * q + 2 * i, t + 2 + 2 * q + i))
            k('v_and_b32 v%d, 0xffff0000, v%d' % (g.ACC + 4 * q + 2 * i + 1, t + 2 + 2 * q + i))


def C_epilogue(k, sc1=''):
    g = G
    t = g.T
    k.c('---- phase C epilogue')
    for L in range(1, 4):
        k('s_xor_b32 s%d, s3, %d' % (g.s_tmp, L))
        k('s_mul_i32 s%d, s%d, %d' % (g.s_tmp, g.s_tmp, STG_SZ))
        k('s_add_u32 s%d, s%d, %d' % (g.s_tmp, g.s_tmp, LDS_STG + (L - 1) * 4096))
        k('v_add_u32 v%d, s%d, v4' % (t + L, g.s_tmp))
    for L in range(1, 4):
        for q in range(4):
            k('ds_write_b128 v%d, %s offset:%d' % (t + L, vr(g.ACC + 16 * L + 4 * q, 4), q * 1024))
    k('v_add_u32 v%d, s%d, v4' % (t, g.s_stage))
    k('s_lshl_b32 s%d, s%d, 1' % (g.s_tmp, g.s_dtC))
    k('s_and_b32 s%d, s3, 1' % g.s_t2)
    k('s_add_u32 s%d, s%d, s%d' % (g.s_tmp, g.s_tmp, g.s_t2))
    k('s_mul_i32 s%d, s%d, 112' % (g.s_tmp, g.s_tmp))
    k('s_lshl_b32 s%d, s%d, 2' % (g.s_t2, g.s_ft))
    k('s_add_u32 s%d, s%d, s%d' % (g.s_tmp, g.s_tmp, g.s_t2))
    k('s_and_b32 s%d, s3, 2' % g.s_t2)
    k('s_add_u32 s%d, s%d, s%d' % (g.s_tmp, g.s_tmp, g.s_t2))
    k('s_lshl_b32 s%d, s%d, 10' % (g.s_tmp, g.s_tmp))
    k('s_add_u32 s%d, s%d, 0x%x' % (g.s_tmp, g.s_tmp, U_OFF))
    k.wait_lg(0)
    k.barrier()
    R = g.ACC + 16
    for q in range(4):
        for L in range(3):
            k('ds_read_b128 %s, v%d offset:%d' % (vr(R + 16 * L + 4 * q, 4), t, L * 4096 + q * 1024))
    c1 = -2.0 * 0.7978845608028654 * 1.4426950408889634
    c2 = c1 * 0.044715
    sc = 88
    k('s_mov_b32 s%d, %s' % (sc, f32(c1)))
    k('s_mov_b32 s%d, %s' % (sc + 2, f32(c2)))
    X2 = g.RING
    k('v_mov_b32 v%d, s%d' % (t + 4, sc))
    k('v_mov_b32 v%d, s%d' % (t + 5, sc))
    for half in range(2):
        for i in range(8 * half, 8 * half + 8, 2):
            a = g.ACC + i
            k('v_pk_add_f32 %s, %s, %s' % (vr(R + i, 2), vr(R + i, 2), vr(R + 16 + i, 2)))
            k('v_pk_add_f32 %s, %s, %s' % (vr(a, 2), vr(a, 2), vr(R + 32 + i, 2)))
        for i in range(8 * half, 8 * half + 8, 2):
            a = g.ACC + i
            k('v_pk_add_f32 %s, %s, %s' % (vr(a, 2), vr(a, 2), vr(R + i, 2)))
        for i in range(8 * half, 8 * half + 8, 2):
            a = g.ACC + i
            k('v_pk_mul_f32 %s, %s, %s' % (vr(X2 + i, 2), vr(a, 2), vr(a, 2)))
        for i in range(8 * half, 8 * half + 8, 2):
            k('v_pk_fma_f32 %s, %s, %s, %s op_sel_hi:[1,0,1]' % (vr(X2 + i, 2), vr(X2 + i, 2), sr(sc + 2, 2), vr(t + 4, 2)))
        for i in range(8 * half, 8 * half + 8, 2):
            k('v_pk_mul_f32 %s, %s, %s' % (vr(X2 + i, 2), vr(X2 + i, 2), vr(g.ACC + i, 2)))
        for i in range(8 * half, 8 * half + 8):
            k('v_exp_f32 v%d, v%d' % (X2 + i, X2 + i))
        for i in range(8 * half, 8 * half + 8, 2):
            k('v_pk_add_f32 %s, %s, 1.0 op_sel_hi:[1,0]' % (vr(X2 + i, 2), vr(X2 + i, 2)))
        for i in range(8 * half, 8 * half + 8):
            k('v_rcp_f32 v%d, v%d' % (X2 + i, X2 + i))
        for i in range(8 * half, 8 * half + 8, 2):
            k('v_pk_mul_f32 %s, %s, %s' % (vr(X2 + i, 2), vr(X2 + i, 2), vr(g.ACC + i, 2)))
        p = X2 + 16 + 4 * half
        for i in range(4):
            k('v_cvt_pk_bf16_f32 v%d, v%d, v%d' % (p + i, X2 + 8 * half + 2 * i, X2 + 8 * half + 2 * i + 1))
        k('buffer_store_dwordx4 %s, v%d, %s, s%d offen offset:%d %s' % (vr(p, 4), g.vCl, srd(SRD_WS), g.s_tmp, half * 1024, sc1), tag='ust')


def D_init(k, sc1=''):
    g = G
    t = g.T
    k('v_lshrrev_b32 v%d, 5, v1' % t)
    k('v_lshlrev_b32 v%d, 3, v%d' % (t, t))
    k('s_lshl_b32 s%d, s%d, 7' % (g.s_tmp, g.s_st))
    k('s_lshr_b32 s%d, s3, 1' % g.s_t2)
    k('s_lshl_b32 s%d, s%d, 6' % (g.s_t2, g.s_t2))
    k('s_add_u32 s%d, s%d, s%d' % (g.s_tmp, g.s_tmp, g.s_t2))
    for q in range(4):
        k('buffer_load_dwordx2 %s, v%d, %s, s%d offen offset:%d' % (vr(t + 2 + 2 * q, 2), t, srd(SRD_B2), g.s_tmp, 16 * q))


def D_init_finish(k):
    g = G
    t = g.T
    for q in range(4):
        for i in range(2):
            a = g.ACC + 4 * q + 2 * i
            k('v_lshlrev_b32 v%d, 16, v%d' % (a, t + 2 + 2 * q + i))
            k('v_and_b32 v%d, 0xffff0000, v%d' % (a + 1, t + 2 + 2 * q + i))
            k('v_lshlrev_b32 v%d, 16, v%d' % (t + 18, B.HK + 2 * q + i))
            k('v_and_b32 v%d, 0xffff0000, v%d' % (t + 19, B.HK + 2 * q + i))
            k('v_pk_add_f32 %s, %s, %s' % (vr(a, 2), vr(a, 2), vr(t + 18, 2)))


def D_epilogue(k, lds_red, stride):
    g = G
    t = g.T
    k.c('---- phase D epilogue')
    k('v_lshrrev_b32 v%d, 5, v1' % t)
    k('v_lshlrev_b32 v%d, 10, v%d' % (t, t))
    k('v_and_b32 v%d, 31, v1' % (t + 1))
    k('v_lshl_add_u32 v%d, v%d, 2, v%d' % (t, t + 1, t))
    k('s_lshr_b32 s%d, s3, 1' % g.s_t2)
    k('s_lshl_b32 s%d, s%d, 13' % (g.s_tmp, g.s_t2))
    k('s_and_b32 s%d, s3, 1' % g.s_t2)
    k('s_lshl_b32 s%d, s%d, 7' % (g.s_t2, g.s_t2))
    k('s_add_u32 s%d, s%d, s%d' % (g.s_tmp, g.s_tmp, g.s_t2))
    k('v_add_u32 v%d, s%d, v%d' % (t, g.s_tmp, t))
    k('v_xor_b32 v%d, 128, v%d' % (t + 1, t))
    k('v_xor_b32 v%d, 0x2000, v%d' % (t + 2, t))
    k('v_xor_b32 v%d, 0x2080, v%d' % (t + 3, t))
    k('s_mul_i32 s%d, s3, %d' % (g.s_tmp, stride))
    k('s_add_u32 s%d, s%d, %d' % (g.s_tmp, g.s_tmp, lds_red))
    for L in range(4):
        k('v_add_u32 v%d, s%d, v%d' % (t + L, g.s_tmp, t + L))
    k('s_lshl_b32 s%d, s3, 12' % g.s_tmp)
    k('s_add_u32 s%d, s%d, %d' % (g.s_tmp, g.s_tmp, lds_red))
    k('v_add_u32 v%d, s%d, v4' % (t + 4, g.s_tmp))
    k('v_add_u32 v%d, %d, v%d' % (t + 6, 2 * stride, t + 4))
    k('v_mul_u32_u24 v%d, 896, v3' % (t + 5))
    k('v_lshl_add_u32 v%d, v2, 3, v%d' % (t + 5, t + 5))
    k('s_lshl_b32 s%d, s%d, 2' % (g.s_tmp, g.s_st))
    k('s_add_u32 s%d, s%d, s3' % (g.s_tmp, g.s_tmp))
    k('s_mul_i32 s%d, s%d, %d' % (g.s_tmp, g.s_tmp, 16 * 896))
    k('s_lshl_b32 s%d, s%d, 7' % (g.s_t2, g.s_dtD))
    k('s_add_u32 s%d, s%d, s%d' % (g.s_tmp, g.s_tmp, g.s_t2))
    k('s_add_u32 s%d, s%d, %d' % (g.s_t2, g.s_tmp, 8 * 896))


def D_epilogue2(k, stride):
    g = G
    t = g.T
    for L in range(4):
        for q in range(4):
            for r in (0, 2):
                a = g.ACC + 16 * L + 4 * q + r
                k('ds_write2st64_b32 v%d, v%d, v%d offset0:%d offset1:%d' % (t + L, a, a + 1, 8 * q + r, 8 * q + r + 1))
    k.wait_lg(0)
    k.barrier()
    R = g.ACC
    for i in range(4):
        for w in range(4):
            k('ds_read_b128 %s, v%d offset:%d' % (vr(R + 16 * i + 4 * w, 4), t + 4 if w < 2 else t + 6, (w & 1) * stride + i * 1024))
    for i in range(4):
        r = R + 16 * i
        for j in (0, 2):
            k('v_pk_add_f32 %s, %s, %s' % (vr(r + j, 2), vr(r + j, 2), vr(r + 4 + j, 2)))
            k('v_pk_add_f32 %s, %s, %s' % (vr(r + 8 + j, 2), vr(r + 8 + j, 2), vr(r + 12 + j, 2)))
        for j in (0, 2):
            k('v_pk_add_f32 %s, %s, %s' % (vr(r + j, 2), vr(r + j, 2), vr(r + 8 + j, 2)))
        k('v_cvt_pk_bf16_f32 v%d, v%d, v%d' % (r + 4, r, r + 1))
        k('v_cvt_pk_bf16_f32 v%d, v%d, v%d' % (r + 5, r + 2, r + 3))
        k('buffer_store_dwordx2 %s, v%d, %s, s%d offen offset:%d %s' % (vr(r + 4, 2), t + 5, srd(SRD_OUT), g.s_t2 if i >= 2 else g.s_tmp, (i % 2) * 4 * 896, OUT_SC))
```

```python
import sys, os
sys.path.insert(0, os.path.dirname(os.path.abspath(__file__)))
from dsl import Kernel
import phases as P

NAME = 'sequential_preLN__sliding_local_dilated__mixer_token_mlp__prompt'
HEADER = open(os.path.join(os.path.dirname(os.path.abspath(__file__)), '..', NAME + '.s.ref')).read().split('; Override launch')[0]


def wrap(kernels):
    out = [HEADER.rstrip('\n')]
    for label, k, grid, lds in kernels:
        if len(kernels) == 1 and label == NAME + '_kernel':
            out.append('; @launch grid=(%d,1,1) block=(256,1,1) lds=%d' % (grid, lds))
        else:
            out.append('; @launch kernel=%s grid=(%d,1,1) block=(256,1,1) lds=%d' % (label, grid, lds))
    out.append('.amdgcn_target "amdgcn-amd-amdhsa--gfx950"')
    out.append('.text')
    seen = []
    for label, k, grid, lds in kernels:
        if label in seen:
            continue
        seen.append(label)
        out.append('.globl %s\n.p2align 8\n.type %s,@function\n%s:' % (label, label, label))
        out.append(k.text())
    out.append('.section .rodata,"a"')
    seen = []
    for label, k, grid, lds in kernels:
        if label in seen:
            continue
        seen.append(label)
        nv = k.max_v + 1
        acc = (nv + 3) // 4 * 4
        tot = acc + k.max_a + 1 if k.max_a >= 0 else nv
        out.append('.p2align 6\n.amdhsa_kernel %s\n  .amdhsa_next_free_vgpr %d\n  .amdhsa_next_free_sgpr 102\n'
                   '  .amdhsa_accum_offset %d\n  .amdhsa_group_segment_fixed_size 0\n  .amdhsa_kernarg_size 88\n'
                   '  .amdhsa_user_sgpr_count 2\n  .amdhsa_user_sgpr_kernarg_segment_ptr 1\n'
                   '  .amdhsa_system_sgpr_workgroup_id_x 1\n.end_amdhsa_kernel' % (label, tot, acc))
        sys.stderr.write('%s: %d instrs, %d nops, v<=%d a<=%d s<=%d\n' % (label, k.n_ins, k.n_nops, k.max_v, k.max_a, k.max_s))
    return '\n'.join(out) + '\n'


def kernel_A(stamps=False):
    k = Kernel('A'); k.stamps = stamps
    P.prologue(k, 256, 'L_end_A', [P.ARG[n] for n in ('x', 'wqkv', 'ws')])
    P.stamp(k, 0)
    P.phaseA(k)
    P.stamp(k, 5)
    k.wait_vm(0)
    P.stamp(k, 6)
    k.label('L_end_A')
    k('s_endpgm')
    return ('phaseA_kernel', k, 256, P.A_LDS_END)


OPT = {}


def persist(stamps=False):
    k = Kernel('P'); k.stamps = stamps; k.scramble = OPT.get('scramble', False); k.xcctest = OPT.get('xcctest', False)
    end = 'L_end_P'
    g, b = P.G, P.B
    SC = 'sc1'
    SCL = OPT.get('scl', 'sc1')
    vE, vF, vPA, vPB, vPC = 6, 8, 10, 11, 12
    sFA, sFB, sFC, sPA, sPB, sPC = 80, 81, 82, 83, 84, 85
    P.prologue(k, 256, end, [P.ARG[n] for n in ('x', 'wqkv', 'dbg', 'ws', 'wo', 'w1', 'w2', 'b1', 'b2', 'out')])
    P.stamp(k, 0)

    def areg(t):
        return 128 + 8 * t if t < 16 else 8 * (t - 16)

    def setup():
        P.G_map(k)
        P.B_setup(k)
        P.G_w_setup(k, 1, P.LDS_STG, P.STG_SZ)
        P.G_w_setup(k, 2, P.LDS_STG, P.STG_SZ)
        t = 79
        k('s_lshl_b32 s%d, s48, 2' % sFA)
        k('s_add_u32 s%d, s%d, s3' % (sFA, sFA))
        k('s_lshl_b32 s%d, s%d, 4' % (sFA, sFA))
        k('s_add_u32 s%d, s%d, s49' % (sFA, sFA))
        k('s_lshl_b32 s%d, s%d, 2' % (sFA, sFA))
        k('s_add_u32 s%d, s%d, 0x%x' % (sFA, sFA, P.FLAG_A))
        k('s_lshl_b32 s%d, s%d, 1' % (sPA, g.s_st))
        k('s_lshr_b32 s%d, s3, 1' % t)
        k('s_add_u32 s%d, s%d, s%d' % (sPA, sPA, t))
        k('s_lshl_b32 s%d, s%d, 6' % (sPA, sPA))
        k('s_add_u32 s%d, s%d, 0x%x' % (sPA, sPA, P.FLAG_A))
        k('v_lshlrev_b32 v%d, 2, v2' % vPA)
        k('s_lshl_b32 s%d, s%d, 9' % (sPB, g.s_dtC))
        k('s_add_u32 s%d, s%d, 0x%x' % (sPB, sPB, P.FLAG_B))
        k('s_lshl_b32 s%d, s%d, 2' % (sFB, g.s_st))
        k('s_add_u32 s%d, s%d, s3' % (sFB, sFB))
        k('s_lshl_b32 s%d, s%d, 2' % (sFB, sFB))
        k('s_add_u32 s%d, s%d, s%d' % (sFB, sFB, sPB))
        k('s_lshl_b32 s%d, s3, 7' % t)
        k('s_add_u32 s%d, s%d, s%d' % (sPB, sPB, t))
        k('v_and_b32 v%d, 31, v1' % vPB)
        k('v_lshlrev_b32 v%d, 2, v%d' % (vPB, vPB))
        k('s_lshl_b32 s%d, s%d, 9' % (sPC, g.s_dtC))
        k('s_add_u32 s%d, s%d, 0x%x' % (sPC, sPC, P.FLAG_C))
        k('s_lshl_b32 s%d, s%d, 2' % (sFC, g.s_ft))
        k('s_add_u32 s%d, s%d, s3' % (sFC, sFC))
        k('s_lshl_b32 s%d, s%d, 2' % (sFC, sFC))
        k('s_add_u32 s%d, s%d, s%d' % (sFC, sFC, sPC))
        k('s_mul_i32 s%d, s3, 112' % t)
        k('s_add_u32 s%d, s%d, s%d' % (sPC, sPC, t))
        k('v_min_u32 v%d, 27, v1' % vPC)
        k('v_lshlrev_b32 v%d, 2, v%d' % (vPC, vPC))
        k('v_mov_b32 v%d, 0' % (vF + 1))

    hooksA = {
        'A_pre': lambda: P.epoch_publish(k, vE),
        'A_after_issue': setup,
        'A_k8': lambda: (P.epoch_load(k, vE), P.B_xinit(k), P.W1_warm(k, 235)),
    }
    P.phaseA(k, SC, hooksA)
    P.stamp(k, 5)
    P.B_wo_dma(k)
    k.bg(OPT.get('wo_pre', 14))
    P.epoch_get(k, vE)
    P.B_xinit_finish(k)
    k.wait_tag('ost')
    P.flag_store(k, vF, sFA)
    P.stamp(k, 6)
    k.bg_flush()
    notag = k.newlabel('Lnotag')
    k('s_cmp_lt_u32 s%d, 99' % g.s_st)
    k.branch_fwd('s_cbranch_scc1', notag)
    if OPT.get('agent', True):
        P.agent(k)
    else:
        k.wait_vm(0)
    k('s_branch %s' % end)
    k.label(notag)
    k.wait_tag('wo')
    k.barrier()
    P.B_wo_read(k, 0)
    k.wait_lg(0)
    k.barrier()
    N1 = OPT.get('n1', 10)
    N2 = OPT.get('n2', 4)
    P.G_w_dma(k, 1, 0, N1, 8)
    P.flag_poll(k, vF, vPA, sPA)
    P.stamp(k, 10)

    N3 = OPT.get('n3', 8)

    def after_of():
        for t in range(N1):
            P.G_w_read(k, 1, t, 8 + t, areg(t))
        P.G_w_dma(k, 1, N1, N2, 8, bg=True)

    def before_poll():
        P.G_w_dma(k, 1, N1 + N2, N3, 0)

    P.B_main(k, 0, 0, SC, {'B_after_of': after_of, 'B_before_poll': before_poll})
    P.stamp(k, 14)
    for t in range(N1, N1 + N2):
        P.G_w_read(k, 1, t, 8 + t - N1, areg(t))
    for t in range(N1 + N2, N1 + N2 + N3):
        P.G_w_read(k, 1, t, t - N1 - N2, areg(t))
    k.wait_tag('hst')
    P.flag_store(k, vF, sFB)
    P.stamp(k, 15)
    R1 = N1 + N2 + N3
    P.G_w_dma(k, 1, R1, 32 - R1, 0)
    M1 = OPT.get('m1', 4)
    assert 32 - R1 + M1 <= 18
    P.G_w_dma(k, 2, 0, M1, 18 - M1)
    P.C_init(k)
    P.G_a_setup(k, 1)
    for t in range(R1, 32):
        P.G_w_read(k, 1, t, t - R1, areg(t))
    k.wait_lg(0)
    k.barrier()
    P.C_init_finish(k)
    P.flag_poll(k, vF, vPB, sPB)
    P.stamp(k, 16)
    UP = OPT.get('up', 6)
    for t in range(UP):
        P.G_a_load(k, t, SCL, g.vCl)
    nxt = UP
    T2 = OPT.get('t2', 17)
    for t in range(32):
        for _ in range(2):
            if nxt < 32 and nxt < t + 16:
                P.G_a_load(k, nxt, SCL, g.vCl)
                nxt += 1
        P.G_mfma(k, t, areg(t))
        if 8 <= t < 8 + M1:
            P.G_w_read(k, 2, t - 8, 18 - M1 + t - 8, areg(t - 8))
        if T2 <= t < T2 + 12:
            P.G_w_dma(k, 2, M1 + t - T2, 1, t - T2 + 6)
        if t in (0, 7, 15):
            P.stamp(k, {0: 17, 7: 19, 15: 18}[t])
    P.stamp(k, 20)
    P.C_epilogue(k, SC)
    P.stamp(k, 21)
    k('v_mov_b32 v%d, v%d' % (vF + 1, g.vCl))
    for t in range(M1, M1 + 12):
        P.G_w_read(k, 2, t, t - M1 + 6, areg(t))
    k.wait_tag('ust')
    P.flag_store(k, vF, sFC)
    P.stamp(k, 22)
    R2 = M1 + 12
    P.G_w_dma(k, 2, R2, 28 - R2, 0)
    P.D_init(k, SC)
    P.G_a_setup(k, 2)
    P.flag_poll(k, vF, vPC, sPC)
    P.stamp(k, 24)
    for t in range(UP):
        P.G_a_load(k, t, SCL)
    P.D_init_finish(k)
    nxt = UP
    for t in range(28):
        for _ in range(2):
            if nxt < 28 and nxt < t + 16:
                P.G_a_load(k, nxt, SCL)
                nxt += 1
        P.G_mfma(k, t, areg(t))
        if t < 28 - R2:
            P.G_w_read(k, 2, R2 + t, t, areg(R2 + t))
        if t == 17:
            P.D_epilogue(k, P.LDS_STG, P.STG_SZ)
        if t in (0, 7, 15):
            P.stamp(k, {0: 25, 7: 26, 15: 27}[t])
    P.stamp(k, 28)
    P.D_epilogue2(k, P.STG_SZ)
    P.stamp(k, 29)
    if stamps:
        k.wait_vm(0)
        P.stamp(k, 30)
    k.label(end)
    k('s_endpgm')
    return (NAME + '_kernel', k, 256, P.LDS_END)


if __name__ == '__main__':
    which = sys.argv[1] if len(sys.argv) > 1 else 'p'
    outp = sys.argv[2] if len(sys.argv) > 2 else os.path.join(os.path.dirname(os.path.abspath(__file__)), '..', NAME + '.s')
    for o in sys.argv[3:]:
        kk, vv = o.split('=')
        OPT[kk] = eval(vv)
    P.OUT_SC = OPT.get('osc', ''); P.POLL_DEPTH = OPT.get('pd', 3); P.POLL_GAP = OPT.get('pg', 3); P.POLL_SLEEP = OPT.get('ps', 0); P.ST_SLEEP = OPT.get('sts', 0); P.AGENT_DEPTH = OPT.get('ad', 4); P.START_ORDER = OPT.get('so', '01w|'); P.WO_LATE = OPT.get('wol', True)
    if which == 'p':
        ks = [persist()]
    elif which == 'p_dbg':
        ks = [persist('dbg')]
    elif which == 'p_st':
        P.ARG['ws'] = (P.SRD_WS, 80, 0x1000000)
        ks = [persist(True)]
    open(outp, 'w').write(wrap(ks))
```

```python
import struct
from dsl import Kernel, vr, ar, sr, classify

S, D, H, DH, F = 2048, 448, 16, 28, 1792

OF_OFF = 0x000000
HH_OFF = 0x200000
U_OFF = 0x3C0000
STAT_OFF = 0x548000
FLAG_OFF = 0x588000
WS_SIZE = 0x5C0000
OOB = 0x40000000

SRD_X, SRD_WQKV, SRD_WO, SRD_W1, SRD_W2, SRD_B1, SRD_B2, SRD_OUT, SRD_WS, SRD_DBG = 8, 12, 16, 20, 24, 28, 32, 36, 40, 44
SRD_A = 96
S_WG, S_WAVE = 2, 3
S_EPOCH = 4
S_SPIN = 6
S_ONES = 5
S_T = 86
V_LANE, V_T16, V_G, V_L16 = 1, 2, 3, 4


def f32(x):
    return '0x%08x' % struct.unpack('<I', struct.pack('<f', x))[0]


def srd(base):
    return sr(base, 4)


def prologue(k, nwg, end_label, need):
    k('s_cmp_ge_u32 s2, %d' % nwg)
    k('s_cbranch_scc1 %s' % end_label)
    if getattr(k, 'xcctest', False):
        k('s_getreg_b32 s3, hwreg(HW_REG_XCC_ID)')
        k('s_and_b32 s3, s3, 15')
        k('s_and_b32 s4, s2, 7')
        k('s_cmp_eq_u32 s3, s4')
        k('s_cbranch_scc1 Lxcc_ok')
        for _ in range(8):
            k('s_sleep 127')
        k.raw('Lxcc_ok:')
    if getattr(k, 'scramble', False):
        k('s_and_b32 s3, s2, 7')
        k('s_lshl_b32 s3, s3, 5')
        k('s_lshr_b32 s2, s2, 3')
        k('s_or_b32 s2, s2, s3')
    for base, off, size in need:
        k('s_load_dwordx2 %s, s[0:1], %d' % (sr(base, 2), off))
    k('v_lshrrev_b32 v1, 6, v0')
    k('v_readfirstlane_b32 s3, v1')
    k('v_and_b32 v1, 63, v0')
    k('v_and_b32 v2, 15, v0')
    k('v_lshrrev_b32 v3, 4, v1')
    k('v_lshlrev_b32 v4, 4, v1')
    for base, off, size in need:
        k('s_mov_b32 s%d, 0x%x' % (base + 2, size))
        k('s_mov_b32 s%d, 0x00020000' % (base + 3))
    k('s_mov_b32 s%d, 0x3f803f80' % S_ONES)
    k('s_mov_b32 s%d, 0x40000' % S_SPIN)
    k.end_label = end_label


ARG = dict(x=(SRD_X, 0, S * D * 2), wqkv=(SRD_WQKV, 8, D * 3 * D * 2), wo=(SRD_WO, 16, D * D * 2),
           w1=(SRD_W1, 32, S * F * 2), b1=(SRD_B1, 40, F * 2), w2=(SRD_W2, 48, F * S * 2), b2=(SRD_B2, 56, S * 2),
           out=(SRD_OUT, 64, S * D * 2), dbg=(SRD_DBG, 72, 256), ws=(SRD_WS, 80, WS_SIZE))


def xgroup_reduce(k, regs, tmp, op='v_add_f32'):
    for swap in ('v_permlane32_swap_b32', 'v_permlane16_swap_b32'):
        for r, t in zip(regs, tmp):
            k('v_mov_b32 v%d, v%d' % (t, r))
        for r, t in zip(regs, tmp):
            k('%s v%d, v%d' % (swap, r, t))
        for r, t in zip(regs, tmp):
            k('%s v%d, v%d, v%d' % (op, r, r, t))


A_LDS_CS = 0
A_LDS_ST = 512
A_LDS_KV = 2048
A_LDS_W = 12288
A_LDS_X = 61440
A_XSLOT = [2, 1, 0, 3]
A_LDS_END = A_LDS_X + 4 * 18432
LDS_STG = 12288
STG_SZ = 36864
NSLOT = 18
LDS_END = 163840
LDS_WO = 106496
TMP = 219


def xslot(grp):
    return A_XSLOT.index(grp % 4) * 18432


def phaseA(k, sc1='', hooks=None):
    hooks = hooks or {}
    XR = 16
    ACC = 136
    WF = 88
    ONES = 40
    SQ, SM = 48, 60
    vXl, vXu, vXh, vW, vA0, vA1, vH1, vH2 = 120, 121, 122, 123, 124, 125, 126, 127
    vRe, vRo, vHe, vHo = 128, 129, 130, 131
    vT = 237
    BP, BC, BPA = 240, 244, 248
    s_rb, s_head, s_t0, s_m0w, s_m0x, s_tmp = 48, 49, 50, 51, 52, 53
    s_hm = 54
    s_m0h = 7
    s_hv = 79
    s_o0, s_o1 = 62, 63

    def hook(name):
        if name in hooks:
            hooks[name]()

    def xreg(j, blk):
        return XR + (j % 2) * 12 + blk * 4

    def acc(blk, nbi):
        return ACC + blk * 24 + nbi * 4
    H1, H2 = ACC + 48, ACC + 52

    k.c('---- phase A setup')
    k('s_bfe_u32 s%d, s2, 0x20001' % s_rb)
    k('s_lshl_b32 s%d, s%d, 2' % (s_rb, s_rb))
    k('s_lshr_b32 s%d, s2, 6' % s_tmp)
    k('s_add_u32 s%d, s%d, s%d' % (s_rb, s_rb, s_tmp))
    k('s_bfe_u32 s%d, s2, 0x30003' % s_head)
    k('s_and_b32 s%d, s2, 1' % s_tmp)
    k('s_lshl_b32 s%d, s%d, 3' % (s_tmp, s_tmp))
    k('s_add_u32 s%d, s%d, s%d' % (s_head, s_head, s_tmp))
    k('v_lshrrev_b32 v%d, 2, v1' % vT)
    k('v_mul_u32_u24 v%d, 2688, v%d' % (vW, vT))
    k('v_lshrrev_b32 v%d, 5, v1' % vT)
    k('v_lshlrev_b32 v%d, 1, v%d' % (vT, vT))
    k('v_and_b32 v%d, 3, v1' % (vT + 1))
    k('v_xor_b32 v%d, v%d, v%d' % (vT, vT, vT + 1))
    k('v_lshl_add_u32 v%d, v%d, 4, v%d' % (vW, vT, vW))
    k('s_mul_i32 s%d, s%d, 56' % (s_tmp, s_head))
    k('s_min_u32 s%d, s%d, 832' % (s_tmp, s_tmp))
    k('s_mul_i32 s%d, s3, %d' % (s_m0w, 16 * 2688))
    k('s_add_u32 s%d, s%d, s%d' % (s_tmp, s_tmp, s_m0w))
    k('v_add_u32 v%d, s%d, v%d' % (vW, s_tmp, vW))
    k('s_lshr_b32 s%d, s3, 1' % s_tmp)
    k('s_mul_i32 s%d, s%d, 6144' % (s_m0w, s_tmp))
    k('s_and_b32 s%d, s3, 1' % s_tmp)
    k('s_lshl_b32 s%d, s%d, 10' % (s_tmp, s_tmp))
    k('s_add_u32 s%d, s%d, s%d' % (s_m0w, s_m0w, s_tmp))
    k('v_lshrrev_b32 v%d, 3, v1' % vT)
    k('v_mul_u32_u24 v%d, 896, v%d' % (vXh, vT))
    k('v_and_b32 v%d, 7, v1' % vT)
    k('v_xor_b32 v%d, v%d, v3' % (vT, vT))
    k('v_lshl_add_u32 v%d, v%d, 4, v%d' % (vXl, vT, vXh))
    k('s_lshl_b32 s%d, s%d, 7' % (s_t0, s_rb))
    k('s_lshl_b32 s%d, s3, 5' % s_tmp)
    k('s_add_u32 s%d, s%d, s%d' % (s_tmp, s_tmp, s_t0))
    k('s_mul_i32 s%d, s%d, 896' % (s_tmp, s_tmp))
    k('v_xor_b32 v%d, 64, v%d' % (vXu, vXl))
    k('v_add_u32 v%d, s%d, v%d' % (vXl, s_tmp, vXl))
    k('s_add_u32 s%d, s%d, %d' % (s_tmp, s_tmp, 8 * 896))
    k('v_add_u32 v%d, s%d, v%d' % (vXu, s_tmp, vXu))
    k('s_lshl_b32 s%d, s3, 1' % s_tmp)
    k('v_xor_b32 v%d, s%d, v%d' % (vT, s_tmp, vT))
    k('v_lshl_add_u32 v%d, v%d, 4, v%d' % (vXh, vT, vXh))
    k('s_lshl_b32 s%d, s3, 2' % s_tmp)
    k('s_add_u32 s%d, s%d, s%d' % (s_tmp, s_tmp, s_t0))
    k('s_sub_u32 s%d, s%d, 16' % (s_tmp, s_tmp))
    k('s_mul_i32 s%d, s%d, 896' % (s_tmp, s_tmp))
    k('s_cmp_eq_u32 s%d, 0' % s_rb)
    k('s_cselect_b32 s%d, 0x%x, s%d' % (s_tmp, OOB, s_tmp))
    k('v_add_u32 v%d, s%d, v%d' % (vXh, s_tmp, vXh))
    k('s_lshl_b32 s%d, s3, 12' % s_m0x)
    k('s_add_u32 s%d, s%d, %d' % (s_m0x, s_m0x, A_LDS_X + 2048))
    k('s_lshl_b32 s%d, s3, 9' % s_m0h)
    k('s_cmp_eq_u32 s3, 0')
    k('s_cselect_b32 s%d, 0xffffff00, -1' % s_hm)
    k('s_mov_b32 s%d, 0' % (s_hm + 1))

    def dma_group(grp, bg=False):
        tag = 'G%d' % grp
        sd = B.s_dma

        def w_(p):
            k('s_add_u32 m0, s%d, %d' % (s_m0w, A_LDS_W + (grp % 4) * 12288 + p * 2048))
            k('s_mov_b32 s%d, %d' % (sd, grp * 64 * 2688 + p * 896))
            k('buffer_load_dwordx4 v%d, %s, s%d offen lds' % (vW, srd(SRD_WQKV), sd), tag=tag)

        def x_(i):
            k('s_add_u32 m0, s%d, %d' % (s_m0x, xslot(grp) + i * 1024))
            k('s_mov_b32 s%d, %d' % (sd, grp * 128 + (i >> 1) * 16 * 896))
            k('buffer_load_dwordx4 v%d, %s, s%d offen lds' % (vXu if i & 1 else vXl, srd(SRD_X), sd), tag=tag)

        def h_():
            k('s_add_u32 m0, s%d, %d' % (s_m0h, A_LDS_X + xslot(grp)))
            k('s_mov_b32 s%d, %d' % (sd, grp * 128))
            k('s_mov_b64 exec, %s' % sr(s_hm, 2))
            k('buffer_load_dwordx4 v%d, %s, s%d offen lds' % (vXh, srd(SRD_X), sd), tag=tag)
            k('s_mov_b64 exec, -1')
        fs = [lambda p=p: w_(p) for p in range(3)] + [lambda i=i: x_(i) for i in range(4)] + [h_]
        for f in fs:
            if bg:
                k.bg_push(f)
            else:
                f()

    def warm():
        k('s_bfe_u32 s%d, s2, 0x30003' % s_tmp)
        k('s_add_u32 s%d, s%d, 1' % (S_T, s_tmp))
        k('s_lshr_b32 s%d, s%d, 1' % (S_T, S_T))
        k('s_lshr_b32 s%d, s2, 6' % (S_T + 1))
        k('s_mul_i32 s%d, s%d, 5' % (S_T + 1, S_T + 1))
        k('s_add_u32 s%d, s%d, s%d' % (S_T, S_T, S_T + 1))
        k('s_lshl_b32 s%d, s%d, 2' % (S_T, S_T))
        k('s_add_u32 s%d, s%d, s3' % (s_tmp, S_T))
        k('s_mov_b32 s%d, 0x2a54' % S_T)
        k('s_bitcmp1_b32 s%d, s%d' % (S_T, s_head))
        k('s_cselect_b32 s%d, 0x%x, 0' % (s_hv, OOB))
        k('s_mul_i32 s%d, s%d, 48' % (S_T, s_tmp))
        k('v_add_u32 v%d, s%d, v1' % (vT, S_T))
        k('v_mul_u32_u24 v%d, 43691, v%d' % (vT + 1, vT))
        k('v_lshrrev_b32 v%d, 19, v%d' % (vT + 1, vT + 1))
        k('v_mul_u32_u24 v%d, 12, v%d' % (vT + 2, vT + 1))
        k('v_sub_u32 v%d, v%d, v%d' % (vT + 2, vT, vT + 2))
        k('v_lshrrev_b32 v%d, 2, v%d' % (vT + 2, vT + 2))
        k('v_mul_u32_u24 v%d, 896, v%d' % (vT + 2, vT + 2))
        k('v_mul_u32_u24 v%d, 2688, v%d' % (vT + 1, vT + 1))
        k('v_and_b32 v%d, 3, v%d' % (vT, vT))
        k('v_lshlrev_b32 v%d, 7, v%d' % (vT, vT))
        k('v_add3_u32 v%d, v%d, v%d, v%d' % (vT, vT, vT + 1, vT + 2))
        k('v_add_u32 v%d, s%d, v%d' % (vT, s_hv, vT))
        k('s_and_b32 s%d, s2, 1' % S_T)
        k('s_mul_i32 s%d, s%d, 384' % (S_T, S_T))
        k('s_add_u32 s%d, s%d, %d' % (S_T, S_T, 128 * 2688))
        k('s_mov_b32 exec_hi, 0xffff')
        k('buffer_load_dword v232, v%d, %s, s%d offen' % (vT, srd(SRD_WQKV), S_T))
        k('v_lshlrev_b32 v%d, 7, v1' % vT)
        k('v_add_u32 v%d, s%d, v%d' % (vT + 1, s_hv, vT))
        k('s_mul_i32 s%d, s%d, %d' % (S_T, s_tmp, 47 * 128))
        k('s_bfe_u32 s%d, s2, 0x20001' % (S_T + 1))
        k('s_mul_i32 s%d, s%d, %d' % (S_T + 1, S_T + 1, 512 * 896))
        k('s_add_u32 s%d, s%d, s%d' % (S_T, S_T, S_T + 1))
        k('s_max_u32 s%d, s%d, %d' % (S_T, S_T, 16 * 896))
        k('s_sub_u32 s%d, s%d, %d' % (S_T, S_T, 16 * 896))
        k('s_mov_b32 exec_hi, 0x7fff')
        k('buffer_load_dword v233, v%d, %s, s%d offen' % (vT + 1, srd(SRD_X), S_T))
        k('s_getpc_b64 %s' % sr(S_T, 2))
        k.raw('Lpc_%s:' % k.name)
        k('s_mul_i32 s%d, s%d, 384' % (s_tmp, s_tmp))
        k('v_add_u32 v%d, s%d, v%d' % (vT, s_tmp, vT))
        k('v_min_u32 v%d, %s-Lpc_%s, v%d' % (vT, k.end_label, k.name, vT))
        k('s_mov_b64 exec, 7')
        k('global_load_dword v236, v%d, %s' % (vT, sr(S_T, 2)))
        k('s_mov_b64 exec, -1')

    hook('A_pre')
    pre, post = START_ORDER.split('|')
    for ch in pre:
        warm() if ch == 'w' else dma_group(int(ch))
    k('v_mul_u32_u24 v%d, 18432, v3' % vT)
    k('v_lshl_add_u32 v%d, v2, 3, v%d' % (vT, vT))
    k('v_mov_b32 v%d, s%d' % (vT + 1, S_ONES))
    k('v_add_u32 v%d, %d, v%d' % (vT, A_LDS_X, vT))
    k('ds_write2_b32 v%d, v%d, v%d offset0:0 offset1:1' % (vT, vT + 1, vT + 1))
    hook('A_after_issue')

    k('v_lshlrev_b32 v%d, 9, v3' % vA0)
    k('v_bfe_u32 v%d, v1, 2, 2' % vT)
    k('v_lshl_add_u32 v%d, v%d, 6, v%d' % (vA0, vT, vA0))
    k('v_and_b32 v%d, 3, v1' % vT)
    k('v_lshl_add_u32 v%d, v%d, 3, v%d' % (vA0, vT, vA0))
    k('v_and_b32 v%d, 1, v3' % vT)
    k('v_lshlrev_b32 v%d, 5, v%d' % (vT, vT))
    k('v_add_u32 v%d, v%d, v%d' % (vA0, vA0, vT))
    k('v_add_u32 v%d, %d, v%d' % (vA0, A_LDS_W, vA0))
    k('v_xor_b32 v%d, 32, v%d' % (vA1, vA0))
    k('s_and_b32 s%d, s3, 1' % s_tmp)
    k('s_lshl_b32 s%d, s%d, 5' % (s_tmp, s_tmp))
    k('v_xor_b32 v%d, s%d, v%d' % (vH2, s_tmp, vA0))
    k('s_lshr_b32 s%d, s3, 1' % s_tmp)
    k('s_lshl_b32 s%d, s%d, 11' % (s_tmp, s_tmp))
    k('s_add_u32 s%d, s%d, 2048' % (s_tmp, s_tmp))
    k('v_add_u32 v%d, s%d, v%d' % (vH1, s_tmp, vH2))
    k('v_lshrrev_b32 v%d, 1, v2' % vT)
    k('v_xor_b32 v%d, v%d, v3' % (vT, vT))
    k('v_lshlrev_b32 v%d, 4, v%d' % (vT, vT))
    k('v_lshl_add_u32 v%d, v2, 7, v%d' % (vT, vT))
    k('v_add_u32 v%d, %d, v%d' % (vHe, A_LDS_X, vT))
    k('v_xor_b32 v%d, 64, v%d' % (vHo, vHe))
    k('v_add_u32 v%d, s%d, v%d' % (vRe, s_m0x, vT))
    k('v_xor_b32 v%d, 64, v%d' % (vRo, vRe))
    k('v_lshlrev_b32 v%d, 2, v3' % vT)
    k('v_sub_u32 v%d, v2, v%d' % (vT, vT))
    k('v_mov_b32 v%d, %s' % (vT + 2, f32(-1e30)))
    for which, base in ((16, BP), (0, BC)):
        for r in range(4):
            k('v_add_u32 v%d, %d, v%d' % (vT + 1, which - r, vT))
            k('v_and_b32 v%d, 0xfffffff1, v%d' % (vT + 1, vT + 1))
            k('v_cmp_eq_u32 vcc, 0, v%d' % (vT + 1))
            k('v_cndmask_b32 v%d, v%d, 0, vcc' % (base + r, vT + 2))
    k('s_or_b32 s%d, s%d, s3' % (s_tmp, s_rb))
    k('s_cmp_eq_u32 s%d, 0' % s_tmp)
    k('s_cselect_b64 vcc, -1, 0')
    for r in range(4):
        k('v_cndmask_b32 v%d, v%d, v%d, vcc' % (BPA + r, BP + r, vT + 2))
    for i in range(4):
        k('v_mov_b32 v%d, s%d' % (ONES + i, S_ONES))

    s_m = 88
    for i, mk in enumerate((0x22222222, 0x44444444, 0x88888888)):
        k('s_mov_b32 s%d, 0x%x' % (s_m + 2 * i, mk))
        k('s_mov_b32 s%d, 0x%x' % (s_m + 2 * i + 1, mk))
    vAd = 72
    k('v_lshlrev_b32 v%d, 4, v3' % vAd)
    k('s_lshl_b32 s%d, s3, 6' % s_tmp)
    k('v_add_u32 v%d, s%d, v%d' % (vAd + 1, s_tmp, vAd))
    k('s_and_b32 s%d, s%d, 64' % (s_tmp, s_tmp))
    k('v_add_u32 v%d, s%d, v%d' % (vAd + 2, s_tmp, vAd))
    k('s_mul_i32 s%d, s3, 384' % s_tmp)
    k('v_lshl_add_u32 v%d, v2, 2, s%d' % (vAd + 3, s_tmp))
    k('v_add_u32 v%d, s%d, v%d' % (vAd + 4, s_tmp, vAd))
    vK, vV = 80, 81
    k('s_and_b32 s%d, s3, 1' % s_tmp)
    k('s_lshl_b32 s%d, s%d, 3' % (s_tmp, s_tmp))
    k('v_add_u32 v%d, s%d, v4' % (vK, s_tmp))
    k('v_lshrrev_b32 v%d, 2, v2' % vV)
    k('v_lshlrev_b32 v%d, 8, v%d' % (vV, vV))
    k('v_lshl_add_u32 v%d, v3, 6, v%d' % (vV, vV))
    k('v_and_b32 v%d, 3, v2' % (vV + 1))
    k('v_lshl_add_u32 v%d, v%d, 1, v%d' % (vV, vV + 1, vV))
    k('v_add_u32 v%d, s%d, v%d' % (vV, s_tmp, vV))
    k('v_add_u32 v%d, 1024, v%d' % (vV, vV))
    k('s_cmp_lt_u32 s3, 2')
    k('s_cselect_b64 vcc, -1, 0')
    k('s_cselect_b32 s%d, 2, 16' % s_tmp)
    k('v_cndmask_b32 v%d, v%d, v%d, vcc' % (vK, vV, vK))
    k('v_add_u32 v%d, s%d, v%d' % (vK + 1, s_tmp, vK))
    k('v_add_u32 v%d, s%d, v%d' % (vK + 2, s_tmp, vK + 1))
    k('v_add_u32 v%d, s%d, v%d' % (vK + 3, s_tmp, vK + 2))
    k('v_lshlrev_b32 v%d, 2, v2' % (vAd + 5))
    k('s_lshl_b32 s%d, s3, 11' % s_tmp)
    k('v_add_u32 v%d, s%d, v4' % (vAd + 6, s_tmp))

    k('s_lshl_b32 s%d, s%d, 3' % (s_o0, s_rb))
    k('s_lshl_b32 s%d, s3, 1' % s_o1)
    k('s_add_u32 s%d, s%d, s%d' % (s_o0, s_o0, s_o1))
    k('s_lshl_b32 s%d, s%d, 4' % (s_o0, s_o0))
    k('s_add_u32 s%d, s%d, s%d' % (s_o0, s_o0, s_head))
    k('s_lshl_b32 s%d, s%d, 10' % (s_o0, s_o0))
    if OF_OFF:
        k('s_add_u32 s%d, s%d, 0x%x' % (s_o0, s_o0, OF_OFF))
    k('s_add_u32 s%d, s%d, 16384' % (s_o1, s_o0))

    frag_addr = [(vA0, 0), (vA1, 0), (vA0, 2048), (vA1, 2048), (vA0, 4096), (vA1, 4096), (vH1, 0), (vH2, 0)]

    def read_frag(f, j, h=None):
        va, off = frag_addr[f]
        o = (j % 8) * 6144 + off
        for hh in ((0, 1) if h is None else (h,)):
            k('ds_read_b64_tr_b16 %s, v%d offset:%d' % (vr(WF + 4 * f + 2 * hh, 2), va, o + 256 * hh))

    def read_x(j, blk=None):
        o = xslot(j // 2)
        for b_ in (range(3) if blk is None else (blk,)):
            if b_ < 2:
                k('ds_read_b128 %s, v%d offset:%d' % (vr(xreg(j, b_), 4), vRo if j & 1 else vRe, o + 2048 * b_))
            else:
                k('ds_read_b128 %s, v%d offset:%d' % (vr(xreg(j, 2), 4), vHo if j & 1 else vHe, o))

    for ch in post:
        warm() if ch == 'w' else dma_group(int(ch))
    stamp(k, 1)
    k.wait_tag('G0')
    k.wait_lg(0)
    k.barrier()
    stamp(k, 2)
    read_x(0)
    for f in range(8):
        read_frag(f, 0)
    dma_group(2, bg=True)
    k.lg_slack = 6
    for j in range(14):
        k.c('kstep %d' % j)
        if j + 1 < 14 and (j + 1) % 2 == 0:
            k.bg_flush()
            k.wait_tag('G%d' % ((j + 1) // 2))
            k.barrier()
            if (j + 5) // 2 < 7:
                dma_group((j + 5) // 2, bg=True)
            hook('A_b%d' % j)
        mf = []
        for f in range(8):
            w = vr(WF + 4 * f, 4)
            if f < 6:
                for blk in range(2):
                    a = vr(acc(blk, f), 4)
                    x = vr(xreg(j, blk), 4)
                    c = '0' if j == 0 else a
                    if f < 4:
                        mf.append(('v_mfma_f32_16x16x32_bf16 %s, %s, %s, %s' % (a, w, x, c), f if blk else -1))
                    else:
                        mf.append(('v_mfma_f32_16x16x32_bf16 %s, %s, %s, %s' % (a, x, w, c), f if blk else -1))
            else:
                a = vr(H1 if f == 6 else H2, 4)
                c = '0' if j == 0 else a
                mf.append(('v_mfma_f32_16x16x32_bf16 %s, %s, %s, %s' % (a, w, vr(xreg(j, 2), 4), c), f))
        for f in range(EXP_NSTAT):
            x = vr(xreg(j, f % 3), 4)
            a = vr((SQ if f < 3 else SM) + 4 * (f % 3), 4)
            mf.append(('v_mfma_f32_16x16x32_bf16 %s, %s, %s, %s' % (a, x if f < 3 else vr(ONES, 4), x, '0' if j == 0 else a), -1))
        fill = []
        if j + 1 < 14:
            fill += [lambda i=i: read_x(j + 1, i) for i in range(3)]
        for i, (txt, done) in enumerate(mf):
            k(txt)
            if done >= 0 and j + 1 < 14 and done < EXP_NFRAG:
                fill += [lambda f=done, h=h: read_frag(f, j + 1, h) for h in range(2)]
            if fill:
                fill.pop(0)()
            if i % 5 == 4:
                k.bg()
        for f_ in fill:
            f_()
        if j == 6:
            stamp(k, 3)

        hook('A_k%d' % j)

    k.lg_slack = 0
    k.c('---- phase A epilogue')
    stamp(k, 4)
    T = XR
    k('s_mov_b32 exec_lo, 0x00010001')
    k('s_mov_b32 exec_hi, 0x00010001')
    k('ds_write_b128 v%d, %s offset:%d' % (vAd + 1, vr(H1, 4), A_LDS_CS + 128))
    k('ds_write_b128 v%d, %s offset:%d' % (vAd + 2, vr(H2, 4), A_LDS_CS))
    k('s_mov_b64 exec, -1')
    RR = T + 8
    for i in range(3):
        for blk in range(3):
            k('v_cndmask_b32 v%d, v%d, v%d, %s' % (SQ + 4 * blk, SQ + 4 * blk, SQ + 4 * blk + 1 + i, sr(s_m + 2 * i, 2)))
    for blk in range(3):
        k('v_mul_f32 v%d, %s, v%d' % (RR + 2 * blk + 1, f32(1.0 / D), SM + 4 * blk))
    for blk in range(3):
        k('v_mul_f32 v%d, v%d, v%d' % (RR + 2 * blk, RR + 2 * blk + 1, RR + 2 * blk + 1))
    for blk in range(3):
        k('v_mul_f32 v%d, %s, v%d' % (SQ + 4 * blk, f32(1.0 / D), SQ + 4 * blk))
    for blk in range(3):
        k('v_sub_f32 v%d, v%d, v%d' % (RR + 2 * blk, SQ + 4 * blk, RR + 2 * blk))
    for blk in range(3):
        k('v_max_f32 v%d, 0, v%d' % (RR + 2 * blk, RR + 2 * blk))
    for blk in range(3):
        k('v_add_f32 v%d, %s, v%d' % (RR + 2 * blk, f32(1e-5), RR + 2 * blk))
    for blk in range(3):
        k('v_rsq_f32 v%d, v%d' % (RR + 2 * blk, RR + 2 * blk))
    k('s_mov_b32 exec_lo, 0x00f0000f')
    k('s_mov_b32 exec_hi, 0xf0000f00')
    for blk in range(3):
        k('ds_write2_b32 v%d, v%d, v%d offset0:%d offset1:%d' % (vAd + 3, RR + 2 * blk, RR + 2 * blk + 1,
                                                               A_LDS_ST // 4 + 32 * blk, A_LDS_ST // 4 + 32 * blk + 16))
    k('s_mov_b64 exec, -1')
    HC = T + 0
    for r in range(4):
        k('v_mov_b32_dpp v%d, v%d row_newbcast:0 row_mask:0xf bank_mask:0xf' % (HC + r, H1 + r))
    for r in (0, 2):
        k('v_pk_fma_f32 %s, %s, %s, %s op_sel:[0,1,0] op_sel_hi:[1,1,1] neg_lo:[0,1,0] neg_hi:[0,1,0]' % (
            vr(HC + r, 2), vr(HC + r, 2), vr(RR + 4, 2), vr(H1 + r, 2)))
    k('s_cmp_eq_u32 s%d, 15' % s_head)
    k('s_cselect_b32 s%d, 0xffff0000, -1' % s_m)
    k('s_mov_b32 s%d, -1' % (s_m + 1))
    k('s_mov_b32 s%d, -1' % (s_m + 2))
    k('s_cselect_b32 s%d, -1, 0xffff' % (s_m + 3))
    k.wait_lg(0)
    k.barrier()
    stamp(k, 7)
    hook('A_e1')
    CS = T + 32
    CSV = T + 48
    L2 = T + 16
    for blk in (1, 2, 0):
        k('ds_read_b32 v%d, v%d offset:%d' % (RR + 2 * blk, vAd + 3, A_LDS_ST + 128 * blk))
    for s_ in (2, 3):
        k('ds_read_b128 %s, v%d offset:%d' % (vr(CS + 4 * s_, 4), vAd, A_LDS_CS + 64 * s_))
    k('ds_read_b32 v%d, v%d offset:%d' % (CSV, vAd + 5, A_LDS_CS + 256))
    k('ds_read_b32 v%d, v%d offset:%d' % (CSV + 1, vAd + 5, A_LDS_CS + 320))
    for blk in (1, 0):
        k('ds_read_b128 %s, v%d offset:%d' % (vr(L2 + 8 * blk + 4, 4), vAd + 4, A_LDS_ST + blk * 128 + 64))
        k('ds_read_b128 %s, v%d offset:%d' % (vr(L2 + 8 * blk, 4), vAd + 4, A_LDS_ST + blk * 128))
    for s_ in (0, 1):
        k('ds_read_b128 %s, v%d offset:%d' % (vr(CS + 4 * s_, 4), vAd, A_LDS_CS + 64 * s_))
    RQ = T + 52
    qs = (DH ** -0.5) * 1.4426950408889634
    QT = T + 72
    KT = T + 80
    VV = T + 92

    def fix_qk(blk, nbi, scale_reg, dst):
        a = acc(blk, nbi)
        hi = scale_reg & 1
        for r in (0, 2):
            k('v_pk_fma_f32 %s, %s, %s, %s op_sel:[0,1,0] op_sel_hi:[1,1,1] neg_lo:[0,1,0] neg_hi:[0,1,0]' % (
                vr(a + r, 2), vr(CS + 4 * nbi + r, 2), vr(RR + 2 * blk, 2), vr(a + r, 2)))
        for r in (0, 2):
            k('v_pk_mul_f32 %s, %s, %s op_sel:[0,%d] op_sel_hi:[1,%d]' % (vr(a + r, 2), vr(a + r, 2), vr(scale_reg - hi, 2), hi, hi))
        k('v_cvt_pk_bf16_f32 v%d, v%d, v%d' % (dst, a, a + 1))
        k('v_cvt_pk_bf16_f32 v%d, v%d, v%d' % (dst + 1, a + 2, a + 3))
        k.bg()

    def fix_v(blk, nb):
        a = acc(blk, 4 + nb)
        for r in (0, 2):
            k('v_pk_fma_f32 %s, %s, %s, %s op_sel:[0,%d,0] op_sel_hi:[1,%d,1] neg_lo:[0,1,0] neg_hi:[0,1,0]' % (
                vr(a + r, 2), vr(L2 + 8 * blk + 4 + r, 2), vr(CSV, 2), vr(a + r, 2), nb, nb))
        for r in (0, 2):
            k('v_pk_mul_f32 %s, %s, %s' % (vr(a + r, 2), vr(a + r, 2), vr(L2 + 8 * blk + r, 2)))
        dst = VV + 6 * nb + 2 + 2 * blk
        k('v_cvt_pk_bf16_f32 v%d, v%d, v%d' % (dst, a, a + 1))
        k('v_cvt_pk_bf16_f32 v%d, v%d, v%d' % (dst + 1, a + 2, a + 3))
        k.bg()

    fix_qk(1, 2, RR + 2, KT + 8)
    fix_qk(1, 3, RR + 2, KT + 10)
    k('ds_write_b128 v%d, %s offset:%d' % (vAd + 6, vr(KT + 8, 4), A_LDS_KV + 2048))
    for r in (0, 2):
        k('v_pk_mul_f32 %s, %s, %s op_sel_hi:[1,0]' % (vr(HC + r, 2), vr(HC + r, 2), vr(RR + 4, 2)))
    k('v_cvt_pk_bf16_f32 v%d, v%d, v%d' % (HC, HC, HC + 1))
    k('v_cvt_pk_bf16_f32 v%d, v%d, v%d' % (HC + 2, HC + 2, HC + 3))
    k('ds_write_b16 v%d, v%d offset:%d' % (vK, HC, A_LDS_KV))
    k('ds_write_b16_d16_hi v%d, v%d offset:%d' % (vK + 1, HC, A_LDS_KV))
    k('ds_write_b16 v%d, v%d offset:%d' % (vK + 2, HC + 2, A_LDS_KV))
    k('ds_write_b16_d16_hi v%d, v%d offset:%d' % (vK + 3, HC + 2, A_LDS_KV))
    fix_v(1, 0)
    fix_v(1, 1)
    k('ds_write_b64 v%d, %s offset:%d' % (vAd + 6, vr(VV + 4, 2), A_LDS_KV + 2048 + 1024))
    k('ds_write_b64 v%d, %s offset:%d' % (vAd + 6, vr(VV + 10, 2), A_LDS_KV + 2048 + 1024 + 8))
    for blk in range(2):
        k('v_mul_f32 v%d, %s, v%d' % (RQ + 2 * blk, f32(qs), RR + 2 * blk))
    for blk in range(2):
        k('v_cndmask_b32 v%d, 0, v%d, %s' % (RQ + 2 * blk + 1, RQ + 2 * blk, sr(s_m + 2, 2)))
        k('v_cndmask_b32 v%d, 0, v%d, %s' % (RQ + 2 * blk, RQ + 2 * blk, sr(s_m, 2)))
    fix_qk(0, 2, RR + 0, KT + 4)
    fix_qk(0, 3, RR + 0, KT + 6)
    k.wait_lg(0)
    k.barrier()
    stamp(k, 8)
    k('ds_read_b128 %s, v%d offset:%d' % (vr(KT, 4), vAd + 6, A_LDS_KV))
    k('ds_read_b64 %s, v%d offset:%d' % (vr(VV, 2), vAd + 6, A_LDS_KV + 1024))
    k('ds_read_b64 %s, v%d offset:%d' % (vr(VV + 6, 2), vAd + 6, A_LDS_KV + 1024 + 8))
    fix_qk(1, 0, RQ + 2, QT + 4)
    fix_qk(1, 1, RQ + 3, QT + 6)
    SS = T + 104
    k('v_mfma_f32_16x16x32_bf16 %s, %s, %s, %s' % (vr(SS + 8, 4), vr(KT + 4, 4), vr(QT + 4, 4), vr(BP, 4)))
    k('v_mfma_f32_16x16x32_bf16 %s, %s, %s, %s' % (vr(SS + 12, 4), vr(KT + 8, 4), vr(QT + 4, 4), vr(BC, 4)))
    fix_qk(0, 0, RQ + 0, QT + 0)
    fix_qk(0, 1, RQ + 1, QT + 2)
    k('v_mfma_f32_16x16x32_bf16 %s, %s, %s, %s' % (vr(SS + 0, 4), vr(KT + 0, 4), vr(QT, 4), vr(BPA, 4)))
    k('v_mfma_f32_16x16x32_bf16 %s, %s, %s, %s' % (vr(SS + 4, 4), vr(KT + 4, 4), vr(QT, 4), vr(BC, 4)))
    fix_v(0, 0)
    fix_v(0, 1)
    MX = ACC
    TM = ACC + 2
    for blk in (1, 0):
        s_ = SS + 8 * blk
        k('v_max3_f32 v%d, v%d, v%d, v%d' % (MX + blk, s_, s_ + 1, s_ + 2))
        k('v_max3_f32 v%d, v%d, v%d, v%d' % (TM + blk, s_ + 3, s_ + 4, s_ + 5))
        k('v_max3_f32 v%d, v%d, v%d, v%d' % (MX + blk, MX + blk, s_ + 6, s_ + 7))
        k('v_max_f32 v%d, v%d, v%d' % (MX + blk, MX + blk, TM + blk))
    k.bg()
    xgroup_reduce(k, [MX, MX + 1], [TM, TM + 1], op='v_max_f32')
    k.bg_flush()
    stamp(k, 9)
    SUM = ACC + 4
    PP = ACC + 8
    OO = ACC + 16
    for blk in (1, 0):
        s_ = SS + 8 * blk
        for i in range(0, 8, 2):
            k('v_pk_add_f32 %s, %s, %s op_sel:[0,%d] op_sel_hi:[1,%d] neg_lo:[0,1] neg_hi:[0,1]' % (vr(s_ + i, 2), vr(s_ + i, 2), vr(MX, 2), blk, blk))
        for i in range(8):
            k('v_exp_f32 v%d, v%d' % (s_ + i, s_ + i))
        for i in range(4):
            k('v_cvt_pk_bf16_f32 v%d, v%d, v%d' % (PP + 4 * blk + i, s_ + 2 * i, s_ + 2 * i + 1))
        for nb in range(2):
            k('v_mfma_f32_16x16x32_bf16 %s, %s, %s, 0' % (vr(OO + 8 * blk + 4 * nb, 4), vr(VV + 6 * nb + 2 * blk, 4),
                                                          vr(PP + 4 * blk, 4)))
    for blk in range(2):
        s_ = SS + 8 * blk
        k('v_pk_add_f32 %s, %s, %s' % (vr(s_, 2), vr(s_, 2), vr(s_ + 2, 2)))
        k('v_pk_add_f32 %s, %s, %s' % (vr(s_ + 4, 2), vr(s_ + 4, 2), vr(s_ + 6, 2)))
    for blk in range(2):
        s_ = SS + 8 * blk
        k('v_pk_add_f32 %s, %s, %s' % (vr(s_, 2), vr(s_, 2), vr(s_ + 4, 2)))
    for blk in range(2):
        s_ = SS + 8 * blk
        k('v_add_f32 v%d, v%d, v%d' % (SUM + 2 * blk, s_, s_ + 1))
    xgroup_reduce(k, [SUM, SUM + 2], [TM, TM + 1])
    for blk in range(2):
        k('v_rcp_f32 v%d, v%d' % (SUM + 2 * blk, SUM + 2 * blk))
    for blk in range(2):
        k('v_cndmask_b32 v%d, 0, v%d, %s' % (SUM + 2 * blk + 1, SUM + 2 * blk, sr(s_m + 2, 2)))
        k('v_cndmask_b32 v%d, 0, v%d, %s' % (SUM + 2 * blk, SUM + 2 * blk, sr(s_m, 2)))
    for blk in range(2):
        o = OO + 8 * blk
        for r in (0, 2):
            k('v_pk_mul_f32 %s, %s, %s op_sel_hi:[1,0]' % (vr(o + r, 2), vr(o + r, 2), vr(SUM + 2 * blk, 2)))
        for r in (0, 2):
            k('v_pk_mul_f32 %s, %s, %s op_sel:[0,1] op_sel_hi:[1,1]' % (vr(o + 4 + r, 2), vr(o + 4 + r, 2), vr(SUM + 2 * blk, 2)))
        p = PP + 4 * blk
        for i in range(4):
            k('v_cvt_pk_bf16_f32 v%d, v%d, v%d' % (p + i, o + 2 * i, o + 2 * i + 1))
        k('buffer_store_dwordx4 %s, v4, %s, s%d offen %s' % (vr(p, 4), srd(SRD_WS), s_o0 if blk == 0 else s_o1, sc1), tag='ost')


STAMP_OFF = 0xA00000


DST = {5: 1, 10: 2, 15: 3, 16: 4, 22: 5, 24: 6, 29: 7}


def dstamp(k, idx, vtmp=253, stmp=74):
    if idx not in DST and idx != 0:
        return
    slot = DST.get(idx, 0)
    k('s_memrealtime %s' % sr(stmp, 2))
    k('s_cmp_eq_u32 s2, 131')
    k('s_cselect_b32 s%d, %d, %s' % (stmp + 4, 32 + 4 * slot, '0x%x' % OOB))
    if slot:
        k('s_cmp_eq_u32 s2, 0')
        k('s_cselect_b32 s%d, %d, s%d' % (stmp + 4, 4 * slot, stmp + 4))
    k('v_mov_b32 v%d, s%d' % (vtmp + 2, stmp + 4))
    k('v_mov_b32 v%d, s%d' % (vtmp, stmp))
    k('s_cmp_eq_u32 s3, 0')
    k('s_cselect_b64 exec, 1, 0')
    k('buffer_store_dword v%d, v%d, %s, 0 offen' % (vtmp, vtmp + 2, srd(SRD_DBG)))
    k('s_mov_b64 exec, -1')


def stamp(k, idx, vtmp=253, stmp=74):
    if idx >= 32:
        return
    if getattr(k, 'stamps', False) == 'dbg':
        return dstamp(k, idx, vtmp, stmp)
    if not getattr(k, 'stamps', False):
        return
    k('s_memrealtime %s' % sr(stmp, 2))
    k('s_memtime %s' % sr(stmp + 2, 2))
    k('s_lshl_b32 s%d, s2, 2' % (stmp + 4))
    k('s_add_u32 s%d, s%d, s3' % (stmp + 4, stmp + 4))
    k('s_lshl_b32 s%d, s%d, 7' % (stmp + 4, stmp + 4))
    k('s_add_u32 s%d, s%d, 0x%x' % (stmp + 4, stmp + 4, STAMP_OFF + 4 * idx))
    k('v_mov_b32 v%d, s%d' % (vtmp, stmp))
    k('v_mov_b32 v%d, s%d' % (vtmp + 1, stmp + 2))
    k('v_mov_b32 v%d, 0' % (vtmp + 2))
    k('s_mov_b64 exec, 1')
    k('buffer_store_dword v%d, v%d, %s, s%d offen' % (vtmp, vtmp + 2, srd(SRD_WS), stmp + 4))
    k('s_add_u32 s%d, s%d, 0x20000' % (stmp + 4, stmp + 4))
    k('buffer_store_dword v%d, v%d, %s, s%d offen' % (vtmp + 1, vtmp + 2, srd(SRD_WS), stmp + 4))
    k('s_mov_b64 exec, -1')


def spin_guard(k):
    k('s_sub_u32 s%d, s%d, 1' % (S_SPIN, S_SPIN))
    k('s_cbranch_scc1 %s' % k.end_label)


def epoch_publish(k, vt):
    k('s_memrealtime %s' % sr(S_T, 2))
    k('v_mov_b32 v%d, 0' % (vt + 1))
    k('s_or_b32 s%d, s%d, 1' % (S_T, S_T))
    k('v_mov_b32 v%d, s%d' % (vt, S_T))
    k('s_or_b32 s%d, s2, s3' % S_T)
    k('s_cmp_eq_u32 s%d, 0' % S_T)
    k('s_cselect_b64 exec, 1, 0')
    k('buffer_store_dword v%d, v%d, %s, 0 offen sc1' % (vt, vt + 1, srd(SRD_DBG)))
    k('s_mov_b64 exec, -1')


def epoch_load(k, vt):
    k('v_mov_b32 v%d, 0' % (vt + 1))
    k('buffer_load_dword v%d, v%d, %s, 0 offen sc1' % (vt, vt + 1, srd(SRD_DBG)))


def epoch_get(k, vt):
    L = k.newlabel('Lepg')
    done = k.newlabel('Lepd')
    k('v_readfirstlane_b32 s%d, v%d' % (S_EPOCH, vt))
    k('s_cmp_lg_u32 s%d, 0' % S_EPOCH)
    k.branch_fwd('s_cbranch_scc1', done)
    k.loop_label(L)
    spin_guard(k)
    k('buffer_load_dword v%d, v%d, %s, 0 offen sc1' % (vt, vt + 1, srd(SRD_DBG)))
    k.force_wait(vm=0)
    k('v_readfirstlane_b32 s%d, v%d' % (S_EPOCH, vt))
    k('s_cmp_eq_u32 s%d, 0' % S_EPOCH)
    k('s_cbranch_scc1 %s' % L)
    k.label(done)


FLAG_A = FLAG_OFF
FLAG_B = FLAG_OFF + 0x20000
FLAG_C = FLAG_OFF + 0x28000


def flag_store(k, vt, s_off):
    k('v_mov_b32 v%d, s%d' % (vt, S_EPOCH))
    k('s_mov_b64 exec, 1')
    k('buffer_store_dword v%d, v%d, %s, s%d offen sc1' % (vt, vt + 1, srd(SRD_WS), s_off))
    k('s_mov_b64 exec, -1')


POLL_DEPTH = 3
POLL_GAP = 3
EXP_NSTAT = 6
EXP_NFRAG = 8
POLL_SLEEP = 0
WO_LATE = False
START_ORDER = '01w|'
AGENT_DEPTH = 2
ST_SLEEP = 0
V_POLL = 249


def flag_poll(k, vt, voff, s_off):
    L = k.newlabel('Lpoll')
    done = k.newlabel('Lpd')
    n = POLL_DEPTH

    def ld(i):
        return k('buffer_load_dword v%d, v%d, %s, s%d offen sc1' % (V_POLL + i, voff, srd(SRD_WS), s_off))
    for i in range(n - 1):
        ld(i)
        k('s_sleep %d' % POLL_GAP)
    k.loop_label(L)
    spin_guard(k)
    last = []
    for i in range(n):
        k.vm = []
        if POLL_SLEEP:
            k('s_sleep %d' % POLL_SLEEP)
        last.append(ld((i + n - 1) % n))
        k._emit(classify('s_waitcnt vmcnt(%d)' % (n - 1)))
        k.vm = []
        k('v_cmp_ne_u32 vcc, s%d, v%d' % (S_EPOCH, V_POLL + i))
        if i < n - 1:
            k('s_cbranch_vccz %s' % done)
        else:
            k('s_cbranch_vccnz %s' % L)
    k.fence()
    k.raw(done + ':')
    k.vm = list(last)


class B:
    s_tmp, s_wbase, s_t2, s_x = 58, 59, 60, 61
    s_dma = 73
    vWo, vR0, vR1 = 208, 209, 210
    ACC = 192
    OFR = 32
    T = 64
    HK = 240


def B_setup(k):
    b, g = B, G
    k.c('---- phase B setup')
    t = TMP
    k('v_lshrrev_b32 v%d, 3, v1' % t)
    k('v_mul_u32_u24 v%d, 896, v%d' % (b.vWo, t))
    k('v_and_b32 v%d, 1, v3' % t)
    k('v_lshlrev_b32 v%d, 2, v%d' % (t, t))
    k('v_and_b32 v%d, 7, v1' % (t + 1))
    k('v_xor_b32 v%d, v%d, v%d' % (t, t, t + 1))
    k('v_lshl_add_u32 v%d, v%d, 4, v%d' % (b.vWo, t, b.vWo))
    k('s_lshl_b32 s%d, s%d, 7' % (b.s_tmp, g.s_dtD))
    k('s_mul_i32 s%d, s3, %d' % (b.s_t2, 112 * 896))
    k('s_add_u32 s%d, s%d, s%d' % (b.s_tmp, b.s_tmp, b.s_t2))
    k('v_add_u32 v%d, s%d, v%d' % (b.vWo, b.s_tmp, b.vWo))
    k('s_mul_i32 s%d, s3, %d' % (b.s_wbase, 112 * 128))
    k('s_add_u32 s%d, s%d, %d' % (b.s_wbase, b.s_wbase, LDS_WO))
    k('v_lshrrev_b32 v%d, 5, v1' % t)
    k('v_lshlrev_b32 v%d, 9, v%d' % (b.vR0, t))
    k('v_bfe_u32 v%d, v1, 2, 2' % t)
    k('v_lshl_add_u32 v%d, v%d, 7, v%d' % (b.vR0, t, b.vR0))
    k('v_lshrrev_b32 v%d, 1, v%d' % (t, t))
    k('s_and_b32 s%d, s3, 1' % b.s_tmp)
    k('v_xor_b32 v%d, s%d, v%d' % (t, b.s_tmp, t))
    k('v_lshl_add_u32 v%d, v%d, 6, v%d' % (b.vR0, t, b.vR0))
    k('v_and_b32 v%d, 1, v3' % t)
    k('v_lshl_add_u32 v%d, v%d, 5, v%d' % (b.vR0, t, b.vR0))
    k('v_and_b32 v%d, 3, v1' % t)
    k('v_lshl_add_u32 v%d, v%d, 3, v%d' % (b.vR0, t, b.vR0))
    k('v_add_u32 v%d, %d, v%d' % (b.vR0, LDS_WO, b.vR0))


def B_wo_dma(k):
    b = B

    def one(i):
        k('s_add_u32 m0, s%d, %d' % (b.s_wbase, i * 1024))
        k('s_mov_b32 s%d, %d' % (b.s_dma, 8 * i * 896))
        k('buffer_load_dwordx4 v%d, %s, s%d offen lds' % (b.vWo, srd(SRD_WO), b.s_dma), tag='wo')
    for i in range(14):
        k.bg_push(lambda i=i: one(i))


def B_wo_read(k, abase):
    b = B
    for h in range(16):
        for ks in range(2):
            a = abase + 8 * h + 4 * ks
            o = h * 3584 + ks * 1024 - (512 if h == 15 else 0)
            k('ds_read_b64_tr_b16 %s, v%d offset:%d' % (ar(a, 2), b.vR0, o))
            k('ds_read_b64_tr_b16 %s, v%d offset:%d' % (ar(a + 2, 2), b.vR0, o + 2048))


def B_xinit(k):
    b, g = B, G
    t = TMP + 2
    k('v_lshrrev_b32 v%d, 5, v1' % t)
    k('v_mul_u32_u24 v%d, %d, v%d' % (t, 4 * 896, t))
    k('v_and_b32 v%d, 31, v1' % (t + 1))
    k('v_lshl_add_u32 v%d, v%d, 1, v%d' % (t, t + 1, t))
    k('s_lshl_b32 s%d, s%d, 1' % (b.s_tmp, g.s_st))
    k('s_lshr_b32 s%d, s3, 1' % b.s_t2)
    k('s_add_u32 s%d, s%d, s%d' % (b.s_tmp, b.s_tmp, b.s_t2))
    k('s_mul_i32 s%d, s%d, %d' % (b.s_tmp, b.s_tmp, 32 * 896))
    k('s_lshl_b32 s%d, s%d, 7' % (b.s_t2, g.s_dtD))
    k('s_add_u32 s%d, s%d, s%d' % (b.s_tmp, b.s_tmp, b.s_t2))
    k('s_and_b32 s%d, s3, 1' % b.s_t2)
    k('s_lshl_b32 s%d, s%d, 6' % (b.s_t2, b.s_t2))
    k('s_add_u32 s%d, s%d, s%d' % (b.s_tmp, b.s_tmp, b.s_t2))
    for q in range(4):
        for r in range(4):
            k('buffer_load_ushort v%d, v%d, %s, s%d offen offset:%d' % (b.ACC + 4 * q + r, t, srd(SRD_X), b.s_tmp, r * 896))
        if q < 3:
            k('s_add_u32 s%d, s%d, %d' % (b.s_tmp, b.s_tmp, 8 * 896))


def B_xinit_finish(k):
    b = B
    for i in range(16):
        k('v_lshlrev_b32 v%d, 16, v%d' % (b.ACC + i, b.ACC + i))


def B_main(k, abase, lds_small, sc1='', hooks=None):
    b, g = B, G
    t = b.T
    k.c('---- phase B main')
    hooks = hooks or {}

    def hook(name):
        if name in hooks:
            hooks[name]()
    k('s_lshl_b32 s%d, s%d, 16' % (b.s_tmp, g.s_st))
    k('s_lshl_b32 s%d, s3, 14' % b.s_t2)
    k('s_add_u32 s%d, s%d, s%d' % (b.s_tmp, b.s_tmp, b.s_t2))
    if OF_OFF:
        k('s_add_u32 s%d, s%d, 0x%x' % (b.s_tmp, b.s_tmp, OF_OFF))
    for i in range(16):
        if i % 4 == 0:
            k('s_add_u32 m0, s%d, %d' % (g.s_stage, i * 1024))
            if i:
                k('s_add_u32 s%d, s%d, 4096' % (b.s_tmp, b.s_tmp))
        k('buffer_load_dwordx4 v4, %s, s%d offen offset:%d %s lds' % (srd(SRD_WS), b.s_tmp, (i % 4) * 1024, sc1), tag='of%d' % (i // 8))
    k('v_and_b32 v%d, 1, v3' % t)
    k('v_mul_u32_u24 v%d, %d, v%d' % (t, STG_SZ, t))
    k('v_lshl_add_u32 v%d, v2, 4, v%d' % (t, t))
    k('v_lshrrev_b32 v%d, 5, v1' % (t + 1))
    k('v_lshl_add_u32 v%d, v%d, 8, v%d' % (t, t + 1, t))
    k('s_lshr_b32 s%d, s3, 1' % b.s_t2)
    k('s_mul_i32 s%d, s%d, %d' % (b.s_t2, b.s_t2, 2 * STG_SZ))
    k('s_add_u32 s%d, s%d, %d' % (b.s_t2, b.s_t2, LDS_STG))
    k('v_add_u32 v%d, s%d, v%d' % (t, b.s_t2, t))
    hook('B_after_of')
    a = vr(b.ACC, 16)

    def rd(i):
        k('ds_read_b128 %s, v%d offset:%d' % (vr(b.OFR + 4 * (i % 8), 4), t, i * 512))
    for half in range(2):
        k.wait_tag('of%d' % half)
        k.barrier()
        if half == 0:
            stamp(k, 11)
        for i in range(16 * half, 16 * half + (6 if half == 0 else 2)):
            rd(i)
        for i in range(16 * half - (4 if half else 0), 16 * half + (12 if half == 0 else 16)):
            k('v_mfma_f32_32x32x16_bf16 %s, %s, %s, %s' % (a, vr(b.OFR + 4 * (i % 8), 4), ar(abase + 4 * i, 4), a))
            if i + 6 < 16 * half + 16 and i + 6 >= 16 * half + (6 if half == 0 else 2):
                rd(i + 6)
            if i % 3 == 0:
                k.bg()
    stamp(k, 12)
    Q = t + 4
    V = t + 20
    A = b.ACC
    for i in range(0, 16, 2):
        k('v_pk_mul_f32 %s, %s, %s' % (vr(Q + i, 2), vr(A + i, 2), vr(A + i, 2)))
    def src(base, q, idx):
        r = ((idx & 1) << 1) | (idx >> 1)
        return base + 4 * q + r
    for base, dst in ((A, V), (Q, V + 8)):
        k.bg()
        for q in range(4):
            for p in range(2):
                x = src(base, q, 2 * p)
                k('v_add_f32_dpp v%d, v%d, v%d row_mirror row_mask:0xf bank_mask:0x3' % (dst + 2 * q + p, x, x))
    for base, dst in ((A, V), (Q, V + 8)):
        k.bg()
        for q in range(4):
            for p in range(2):
                x = src(base, q, 2 * p + 1)
                k('v_add_f32_dpp v%d, v%d, v%d row_mirror row_mask:0xf bank_mask:0xc' % (dst + 2 * q + p, x, x))
    k.bg(2)
    for i in range(8):
        k('v_add_f32_dpp v%d, v%d, v%d row_half_mirror row_mask:0xf bank_mask:0x5' % (V + 2 * i, V + 2 * i, V + 2 * i))
    for i in range(8):
        k('v_add_f32_dpp v%d, v%d, v%d row_half_mirror row_mask:0xf bank_mask:0xa' % (V + 2 * i, V + 2 * i + 1, V + 2 * i + 1))
    for i in range(8):
        k('v_add_f32_dpp v%d, v%d, v%d quad_perm:[1,0,3,2] row_mask:0xf bank_mask:0xf' % (V + 2 * i + 1, V + 2 * i, V + 2 * i))
    U = Q
    k.bg(2)
    for i in range(8):
        k('v_add_f32_dpp v%d, v%d, v%d quad_perm:[2,3,0,1] row_mask:0xf bank_mask:0xf' % (U + i, V + 2 * i + 1, V + 2 * i + 1))
    for kind in range(2):
        for i in range(2):
            k('v_permlane16_swap_b32 v%d, v%d' % (U + 4 * kind + 2 * i, U + 4 * kind + 2 * i + 1))
    W_ = V
    for i in range(2):
        for kind in range(2):
            k('v_add_f32 v%d, v%d, v%d' % (W_ + 2 * i + kind, U + 4 * kind + 2 * i, U + 4 * kind + 2 * i + 1))
    k.bg_flush()
    vA, vC, vG = t + 1, t + 2, t + 3
    k('v_and_b32 v%d, 1, v3' % vA)
    k('v_lshlrev_b32 v%d, 6, v%d' % (vA, vA))
    k('v_lshrrev_b32 v%d, 5, v1' % vC)
    k('v_lshl_add_u32 v%d, v%d, 5, v%d' % (vA, vC, vA))
    k('v_bfe_u32 v%d, v1, 2, 2' % vG)
    k('v_lshl_add_u32 v%d, v%d, 3, v%d' % (vA, vG, vA))
    k('s_lshl_b32 s%d, s3, 8' % b.s_tmp)
    k('v_add_u32 v%d, s%d, v%d' % (vA, b.s_tmp, vA))
    k('ds_write_b64 v%d, %s offset:%d' % (vA, vr(W_, 2), lds_small))
    k('ds_write_b64 v%d, %s offset:%d' % (vA, vr(W_ + 2, 2), lds_small + 128))
    k('v_and_b32 v%d, 31, v1' % vG)
    k('v_lshlrev_b32 v%d, 9, v%d' % (vA, vC))
    k('v_lshl_add_u32 v%d, v%d, 4, v%d' % (vA, vG, vA))
    k('v_lshlrev_b32 v%d, 8, v%d' % (vC, vC))
    k('v_lshl_add_u32 v%d, v%d, 3, v%d' % (vC, vG, vC))
    k('s_and_b32 s%d, s%d, 512' % (b.s_tmp, b.s_tmp))
    k('v_add_u32 v%d, s%d, v%d' % (vC, b.s_tmp, vC))
    k('s_lshl_b32 s%d, s%d, 1' % (b.s_tmp, g.s_st))
    k('s_lshr_b32 s%d, s3, 1' % b.s_t2)
    k('s_add_u32 s%d, s%d, s%d' % (b.s_tmp, b.s_tmp, b.s_t2))
    k('s_lshl_b32 s%d, s%d, 12' % (b.s_tmp, b.s_tmp))
    k('s_add_u32 s%d, s%d, 0x%x' % (b.s_tmp, b.s_tmp, STAT_OFF))
    k('s_lshl_b32 s%d, s%d, 9' % (b.s_t2, g.s_dtD))
    k('s_add_u32 s%d, s%d, s%d' % (b.s_t2, b.s_t2, b.s_tmp))
    stamp(k, 23)
    k.wait_lg(0)
    k.barrier()
    k('ds_read_b64 %s, v%d offset:%d' % (vr(V, 2), vC, lds_small))
    G_ = V + 4
    k('v_mov_b32 v%d, s%d' % (G_ + 1, S_EPOCH))
    k('v_mov_b32 v%d, s%d' % (G_ + 3, S_EPOCH))
    k('v_mov_b32 v%d, v%d' % (G_, V))
    k('v_mov_b32 v%d, v%d' % (G_ + 2, V + 1))
    k('v_permlane32_swap_b32 v%d, v%d' % (G_, V))
    k('v_permlane32_swap_b32 v%d, v%d' % (G_ + 2, V + 1))
    k('v_add_f32 v%d, v%d, v%d' % (G_, G_, V))
    k('v_add_f32 v%d, v%d, v%d' % (G_ + 2, G_ + 2, V + 1))
    k('s_bitcmp0_b32 s3, 0')
    k('s_cselect_b32 exec_lo, -1, 0')
    k('s_mov_b32 exec_hi, 0')
    k('buffer_store_dwordx4 %s, v%d, %s, s%d offen sc1' % (vr(G_, 4), vA, srd(SRD_WS), b.s_t2))
    k('s_mov_b64 exec, -1')
    for i in range(8):
        k('v_cvt_pk_bf16_f32 v%d, v%d, v%d' % (b.HK + i, A + 2 * i, A + 2 * i + 1))
    k('s_lshl_b32 s%d, s%d, 1' % (b.s_x, g.s_dtD))
    k('s_and_b32 s%d, s3, 1' % b.s_t2)
    k('s_add_u32 s%d, s%d, s%d' % (b.s_x, b.s_x, b.s_t2))
    k('s_lshl_b32 s%d, s%d, 7' % (b.s_x, b.s_x))
    k('s_lshl_b32 s%d, s%d, 2' % (b.s_t2, g.s_st))
    k('s_add_u32 s%d, s%d, s%d' % (b.s_x, b.s_x, b.s_t2))
    k('s_and_b32 s%d, s3, 2' % b.s_t2)
    k('s_add_u32 s%d, s%d, s%d' % (b.s_x, b.s_x, b.s_t2))
    k('s_lshl_b32 s%d, s%d, 10' % (b.s_x, b.s_x))
    k('s_add_u32 s%d, s%d, 0x%x' % (b.s_x, b.s_x, HH_OFF))
    k('v_lshlrev_b32 v%d, 4, v%d' % (vC, vG))
    k('v_cmp_gt_u32 %s, 32, v1' % sr(S_T, 2))
    hook('B_before_poll')
    stamp(k, 31)
    P0 = t + 32
    L = k.newlabel('Lst')
    done = k.newlabel('Lstd')
    Sx, Qx = t + 64, t + 66

    def ld(s_):
        r = []
        for i in range(4):
            r.append(k('buffer_load_dwordx4 %s, v%d, %s, s%d offen offset:%d sc1' % (
                vr(P0 + 16 * s_ + 4 * i, 4), vA if i < 3 else vC, srd(SRD_WS), b.s_tmp, i * 1024)))
        return r
    ld(0)
    k('s_sleep 5')
    k.loop_label(L)
    spin_guard(k)
    last = []
    for s_ in range(2):
        k.vm = []
        if ST_SLEEP:
            k('s_sleep %d' % ST_SLEEP)
        last += ld(1 - s_)
        k._emit(classify('s_waitcnt vmcnt(4)'))
        k.vm = []
        p = P0 + 16 * s_
        for i in range(8):
            k('v_xor_b32 v%d, s%d, v%d' % (p + 2 * i + 1, S_EPOCH, p + 2 * i + 1))
        k('v_cndmask_b32 v%d, 0, v%d, %s' % (p + 12, p + 12, sr(S_T, 2)))
        k('v_cndmask_b32 v%d, 0, v%d, %s' % (p + 14, p + 14, sr(S_T, 2)))
        k('v_or3_b32 v%d, v%d, v%d, v%d' % (p + 1, p + 1, p + 3, p + 5))
        k('v_or3_b32 v%d, v%d, v%d, v%d' % (p + 7, p + 7, p + 9, p + 11))
        k('v_or3_b32 v%d, v%d, v%d, v%d' % (p + 1, p + 1, p + 13, p + 15))
        k('v_or_b32 v%d, v%d, v%d' % (p + 1, p + 1, p + 7))
        k('v_cmp_ne_u32 vcc, 0, v%d' % (p + 1))
        for x, o in ((Sx, 0), (Qx, 2)):
            k('v_add_f32 v%d, v%d, v%d' % (x, p + o, p + o + 4))
            k('v_add_f32 v%d, v%d, v%d' % (x + 1, p + o + 8, p + o + 12))
        if s_ == 0:
            k('s_cbranch_vccz %s' % done)
        else:
            k('s_cbranch_vccnz %s' % L)
    k.fence()
    k.raw(done + ':')
    k.vm = list(last)
    stamp(k, 13)
    P0 = t + 68
    for x in (Sx, Qx):
        k('v_add_f32 v%d, v%d, v%d' % (x, x, x + 1))
    k('v_mov_b32 v%d, v%d' % (P0 + 4, Sx))
    k('v_mov_b32 v%d, v%d' % (P0 + 6, Qx))
    k('v_permlane32_swap_b32 v%d, v%d' % (Sx, P0 + 4))
    k('v_permlane32_swap_b32 v%d, v%d' % (Qx, P0 + 6))
    k('v_add_f32 v%d, v%d, v%d' % (Sx, Sx, P0 + 4))
    k('v_add_f32 v%d, v%d, v%d' % (Qx, Qx, P0 + 6))
    M, R = P0 + 1, P0 + 3
    k('v_mul_f32 v%d, %s, v%d' % (M, f32(1.0 / D), Sx))
    k('v_mul_f32 v%d, %s, v%d' % (Qx, f32(1.0 / D), Qx))
    k('v_fma_f32 v%d, -v%d, v%d, v%d' % (Qx, M, M, Qx))
    k('v_max_f32 v%d, 0, v%d' % (Qx, Qx))
    k('v_add_f32 v%d, %s, v%d' % (R, f32(1e-5), Qx))
    k('v_rsq_f32 v%d, v%d' % (R, R))
    k('v_mul_f32 v%d, v%d, v%d' % (Qx, Qx, R))
    k('v_fmaak_f32 v%d, v%d, v%d, %s' % (Qx, Qx, R, f32(1e-5)))
    k('v_rsq_f32 v%d, v%d' % (Qx, Qx))
    k('v_mul_f32 v%d, v%d, v%d' % (R, R, Qx))
    k('s_lshl_b32 s%d, s3, 8' % b.s_t2)
    k('v_lshl_add_u32 v%d, v%d, 2, s%d' % (vC, vG, b.s_t2))
    k('ds_write_b32 v%d, v%d offset:%d' % (vC, M, lds_small + 1024))
    k('ds_write_b32 v%d, v%d offset:%d' % (vC, R, lds_small + 1024 + 128))
    k('v_lshrrev_b32 v%d, 5, v1' % vC)
    k('v_lshl_add_u32 v%d, v%d, 4, s%d' % (vC, vC, b.s_t2))
    MM = P0 + 8
    k.wait_lg(0)
    for q in range(4):
        k('ds_read_b128 %s, v%d offset:%d' % (vr(MM + 4 * q, 4), vC, lds_small + 1024 + 32 * q))
        k('ds_read_b128 %s, v%d offset:%d' % (vr(MM + 16 + 4 * q, 4), vC, lds_small + 1024 + 128 + 32 * q))
    for tp in range(2):
        for i in range(8 * tp, 8 * tp + 8, 2):
            k('v_pk_add_f32 %s, %s, %s neg_lo:[0,1] neg_hi:[0,1]' % (vr(A + i, 2), vr(A + i, 2), vr(MM + i, 2)))
        for i in range(8 * tp, 8 * tp + 8, 2):
            k('v_pk_mul_f32 %s, %s, %s' % (vr(A + i, 2), vr(A + i, 2), vr(MM + 16 + i, 2)))
        p = V + 4 * tp
        for i in range(4):
            k('v_cvt_pk_bf16_f32 v%d, v%d, v%d' % (p + i, A + 8 * tp + 2 * i, A + 8 * tp + 2 * i + 1))
        k('buffer_store_dwordx4 %s, v4, %s, s%d offen offset:%d %s' % (vr(p, 4), srd(SRD_WS), b.s_x, tp * 1024, sc1), tag='hst')


def agent(k):
    g = G
    k.c('---- agent: W2 warm-up')
    k('s_lshr_b32 s%d, s2, 3' % g.s_tmp)
    k('s_sub_u32 s%d, s%d, 28' % (g.s_tmp, g.s_tmp))
    k('s_lshl_b32 s%d, s%d, 2' % (g.s_tmp, g.s_tmp))
    k('s_add_u32 s%d, s%d, s3' % (g.s_tmp, g.s_tmp))
    k('s_lshl_b32 s%d, s%d, 16' % (g.s_tmp, g.s_tmp))
    k('s_and_b32 s%d, s2, 7' % g.s_t2)
    k('s_lshl_b32 s%d, s%d, 9' % (g.s_t2, g.s_t2))
    k('s_add_u32 s%d, s%d, s%d' % (g.s_tmp, g.s_tmp, g.s_t2))
    k('v_lshrrev_b32 v16, 2, v1')
    k('v_lshlrev_b32 v16, 12, v16')
    k('v_and_b32 v17, 3, v1')
    k('v_lshl_add_u32 v16, v17, 7, v16')
    for i in range(7):
        k('buffer_load_dword v%d, v16, %s, s%d offen' % (18 + i, srd(SRD_W2), g.s_tmp))
        k('s_add_u32 s%d, s%d, 0x100000' % (g.s_tmp, g.s_tmp))
        k.wait_vm(AGENT_DEPTH - 1)
    k.wait_vm(0)


class G:
    ACC = 16
    RING = 80
    NR = 16
    vW1, vW2 = 213, 214
    vRa, vRb = 215, 216
    vSa, vSb = 217, 218
    vCl = 5
    T = 220
    s_dtC, s_ft, s_dtD, s_st, s_tmp, s_t2, s_stage, s_a0, s_a1 = 64, 65, 66, 67, 68, 69, 70, 71, 72
    s_b0, s_b1 = 56, 57


def G_map(k):
    g = G
    k.c('---- C/D tile map')
    k('s_lshr_b32 s%d, s2, 3' % g.s_tmp)
    k('s_mul_i32 s%d, s%d, 37' % (g.s_t2, g.s_tmp))
    k('s_lshr_b32 s%d, s%d, 8' % (g.s_t2, g.s_t2))
    k('s_mul_i32 s%d, s%d, 7' % (g.s_dtC, g.s_t2))
    k('s_sub_u32 s%d, s%d, s%d' % (g.s_dtC, g.s_tmp, g.s_dtC))
    k('s_mov_b32 s%d, s%d' % (g.s_dtD, g.s_dtC))
    k('s_and_b32 s%d, s2, 7' % g.s_tmp)
    k('s_lshl_b32 s%d, s%d, 2' % (g.s_st, g.s_tmp))
    k('s_add_u32 s%d, s%d, s%d' % (g.s_st, g.s_st, g.s_t2))
    k('s_cmp_ge_u32 s%d, 4' % g.s_t2)
    k('s_cselect_b32 s%d, 99, s%d' % (g.s_st, g.s_st))
    k('s_mul_i32 s%d, s%d, 3' % (g.s_a0, g.s_tmp))
    k('s_add_u32 s%d, s%d, 4' % (g.s_a0, g.s_a0))
    k('s_lshl_b32 s%d, s%d, 2' % (g.s_a1, g.s_tmp))
    k('s_cmp_lt_u32 s%d, 4' % g.s_tmp)
    k('s_cselect_b32 s%d, s%d, s%d' % (g.s_ft, g.s_a1, g.s_a0))
    k('s_cselect_b32 s%d, 4, 3' % g.s_a0)
    k('s_add_u32 s%d, s%d, s%d' % (g.s_ft, g.s_ft, g.s_t2))
    k('s_cmp_ge_u32 s%d, s%d' % (g.s_t2, g.s_a0))
    k('s_cselect_b32 s%d, 99, s%d' % (g.s_ft, g.s_ft))


def G_w_setup(k, which, lds_base, per_wave):
    g = G
    t = TMP
    stride = F * 2 if which == 1 else S * 2
    krows = 512 if which == 1 else 448
    vW = g.vW1 if which == 1 else g.vW2
    va, vb = (g.vRa, g.vRb) if which == 1 else (g.vSa, g.vSb)
    s_tile = g.s_ft if which == 1 else g.s_st
    k('s_mul_i32 s%d, s3, %d' % (g.s_stage, per_wave))
    k('s_add_u32 s%d, s%d, %d' % (g.s_stage, g.s_stage, lds_base))
    k('v_lshrrev_b32 v%d, 3, v1' % t)
    k('v_mul_u32_u24 v%d, %d, v%d' % (vW, stride, t))
    k('v_and_b32 v%d, 1, v3' % t)
    k('v_lshlrev_b32 v%d, 2, v%d' % (t, t))
    k('v_and_b32 v%d, 7, v1' % (t + 1))
    k('v_xor_b32 v%d, v%d, v%d' % (t, t, t + 1))
    k('v_lshl_add_u32 v%d, v%d, 4, v%d' % (vW, t, vW))
    k('s_mul_i32 s%d, s3, %d' % (g.s_tmp, krows * stride))
    k('s_lshl_b32 s%d, s%d, 7' % (g.s_t2, s_tile))
    k('s_add_u32 s%d, s%d, s%d' % (g.s_tmp, g.s_tmp, g.s_t2))
    k('s_cmp_ge_u32 s%d, 99' % s_tile)
    k('s_cselect_b32 s%d, 0x%x, s%d' % (g.s_tmp, OOB, g.s_tmp))
    k('v_add_u32 v%d, s%d, v%d' % (vW, g.s_tmp, vW))
    if which == 1:
        k('s_cselect_b32 s%d, 0x%x, 0' % (g.s_tmp, OOB))
        k('v_add_u32 v%d, s%d, v4' % (g.vCl, g.s_tmp))
    k('v_lshrrev_b32 v%d, 5, v1' % t)
    k('v_lshlrev_b32 v%d, 9, v%d' % (va, t))
    k('v_bfe_u32 v%d, v1, 2, 2' % t)
    k('v_lshl_add_u32 v%d, v%d, 7, v%d' % (va, t, va))
    k('v_lshrrev_b32 v%d, 1, v%d' % (t, t))
    k('s_lshr_b32 s%d, s3, 1' % g.s_tmp)
    k('v_xor_b32 v%d, s%d, v%d' % (t, g.s_tmp, t))
    k('v_lshl_add_u32 v%d, v%d, 6, v%d' % (va, t, va))
    k('v_and_b32 v%d, 1, v3' % t)
    k('v_lshl_add_u32 v%d, v%d, 5, v%d' % (va, t, va))
    k('v_and_b32 v%d, 3, v1' % t)
    k('v_lshl_add_u32 v%d, v%d, 3, v%d' % (va, t, va))
    k('v_add_u32 v%d, s%d, v%d' % (va, g.s_stage, va))
    k('v_xor_b32 v%d, 64, v%d' % (vb, va))


ROT = True
S_GC, S_GD = 94, 48


def G_rot_setup(k, which):
    n, base = (8, S_GC) if which == 1 else (7, S_GD)
    t = G.s_tmp
    if ROT in ('x', 'x2'):
        k('s_lshr_b32 s%d, s2, 3' % t)
        k('s_mul_i32 s%d, s%d, 37' % (t, t))
        k('s_lshr_b32 s%d, s%d, 8' % (t, t))
        k('s_and_b32 s%d, s%d, %d' % (t, t, 3 if ROT == 'x' else 1))
        for g_ in range(n):
            if n == 8 or g_ < 4:
                k('s_xor_b32 s%d, s%d, %d' % (base + g_, t, g_))
            elif g_ < 6:
                k('s_and_b32 s%d, s%d, 1' % (base + g_, t))
                k('s_xor_b32 s%d, s%d, %d' % (base + g_, base + g_, g_))
            else:
                k('s_mov_b32 s%d, %d' % (base + g_, g_))
            k('s_lshl_b32 s%d, s%d, 12' % (base + g_, base + g_))
        return
    if ROT == 'q':
        k('s_lshr_b32 s%d, s2, 3' % t)
        k('s_mul_i32 s%d, s%d, 37' % (t, t))
        k('s_lshr_b32 s%d, s%d, 8' % (t, t))
        k('s_and_b32 s%d, s%d, 3' % (t, t))
        k('s_mul_i32 s%d, s%d, %d' % (t, t, n))
        k('s_add_u32 s%d, s%d, 2' % (t, t))
        k('s_lshr_b32 s%d, s%d, 2' % (t, t))
    elif ROT:
        k('s_and_b32 s%d, s2, 7' % t)
    else:
        k('s_mov_b32 s%d, 0' % t)
    for g_ in range(n):
        if g_:
            k('s_add_u32 s%d, s%d, 1' % (t, t))
        k('s_cmp_ge_u32 s%d, %d' % (t, n))
        k('s_cselect_b32 s%d, %d, 0' % (base + g_, n))
        k('s_sub_u32 s%d, s%d, s%d' % (t, t, base + g_))
        k('s_lshl_b32 s%d, s%d, 12' % (base + g_, t))


def G_w_dma(k, which, t0, nt, slot0, tag=None, bg=False):
    g = G
    stride = F * 2 if which == 1 else S * 2

    def one(i):
        slot = slot0 + i // 2
        assert slot < NSLOT
        k.wait_lg_tag('rd%d' % slot)
        k.slot_content = getattr(k, 'slot_content', {})
        k.slot_content[slot] = (which, t0 + i // 2, i % 2)
        k('s_add_u32 m0, s%d, %d' % (g.s_stage, slot0 * 2048 + i * 1024))
        t = t0 + i // 2
        k('s_mul_i32 s%d, s%d, %d' % (B.s_dma, (S_GC if which == 1 else S_GD) + t // 4, 64 * stride // 4096))
        k('s_add_u32 s%d, s%d, %d' % (B.s_dma, B.s_dma, (16 * (t % 4) + 8 * (i % 2)) * stride))
        k('buffer_load_dwordx4 v%d, %s, s%d offen lds' % (g.vW1 if which == 1 else g.vW2, srd(SRD_W1 if which == 1 else SRD_W2), B.s_dma), tag='slot%d' % slot)
    for i in range(2 * nt):
        if bg:
            k.bg_push(lambda i=i: one(i))
        else:
            one(i)


def W1_warm(k, vdst):
    g = G
    t = TMP
    k('s_lshr_b32 s%d, s2, 3' % g.s_tmp)
    k('s_lshl_b32 s%d, s%d, 2' % (g.s_tmp, g.s_tmp))
    k('s_add_u32 s%d, s%d, s3' % (g.s_tmp, g.s_tmp))
    if True:
        k('v_lshlrev_b32 v%d, 7, v1' % t)
        k('s_mul_i32 s%d, s%d, 3200' % (S_T, g.s_tmp))
        k('s_mov_b64 exec, 0x1ffffff')
        k('buffer_load_dword v234, v%d, %s, s%d offen' % (t, srd(SRD_WO), S_T))
        k('s_mov_b64 exec, -1')
    k('v_lshrrev_b32 v%d, 2, v1' % t)
    k('v_mul_u32_u24 v%d, %d, v%d' % (t, F * 2, t))
    k('v_and_b32 v%d, 3, v1' % (t + 1))
    k('v_lshl_add_u32 v%d, v%d, 7, v%d' % (t, t + 1, t))
    k('s_mul_i32 s%d, s%d, %d' % (g.s_tmp, g.s_tmp, 16 * F * 2))
    k('s_and_b32 s%d, s2, 7' % g.s_t2)
    k('s_mul_i32 s%d, s%d, 3' % (S_T, g.s_t2))
    k('s_add_u32 s%d, s%d, 4' % (S_T, S_T))
    k('s_lshl_b32 s%d, s%d, 2' % (S_T + 1, g.s_t2))
    k('s_min_u32 s%d, s%d, s%d' % (S_T, S_T, S_T + 1))
    k('s_lshl_b32 s%d, s%d, 7' % (S_T, S_T))
    k('s_add_u32 s%d, s%d, s%d' % (S_T, S_T, g.s_tmp))
    k('s_cmp_lt_u32 s%d, 4' % g.s_t2)
    k('s_cselect_b32 exec_lo, -1, 0x77777777')
    k('s_cselect_b32 exec_hi, -1, 0x77777777')
    k('buffer_load_dword v%d, v%d, %s, s%d offen' % (vdst, t, srd(SRD_W1), S_T))
    k('s_mov_b64 exec, -1')


def G_w_read(k, which, t, slot, areg):
    g = G
    va, vb = (g.vRa, g.vRb) if which == 1 else (g.vSa, g.vSb)
    sec = 1024
    assert k.slot_content[slot] == (which, t, 1), (k.slot_content[slot], which, t)
    k.wait_tag('slot%d' % slot)
    for i, v in enumerate((va, vb)):
        k('ds_read_b64_tr_b16 %s, v%d offset:%d' % (ar(areg + 4 * i, 2), v, slot * 2048), tag='rd%d' % slot)
        k('ds_read_b64_tr_b16 %s, v%d offset:%d' % (ar(areg + 4 * i + 2, 2), v, slot * 2048 + sec), tag='rd%d' % slot)


def G_a_setup(k, which):
    g = G
    nks = 128 if which == 1 else 112
    per = 32 if which == 1 else 28
    base = HH_OFF if which == 1 else U_OFF
    s_dt = g.s_dtC if which == 1 else g.s_dtD
    k('s_lshl_b32 s%d, s%d, 1' % (g.s_tmp, s_dt))
    k('s_and_b32 s%d, s3, 1' % g.s_t2)
    k('s_add_u32 s%d, s%d, s%d' % (g.s_a0, g.s_tmp, g.s_t2))
    k('s_xor_b32 s%d, s%d, 1' % (g.s_a1, g.s_a0))
    k('s_mul_i32 s%d, s3, %d' % (g.s_tmp, per * 1024))
    k('s_add_u32 s%d, s%d, 0x%x' % (g.s_tmp, g.s_tmp, base))
    for s_ in (g.s_a0, g.s_a1):
        k('s_mul_i32 s%d, s%d, %d' % (s_, s_, nks * 1024))
        k('s_add_u32 s%d, s%d, s%d' % (s_, s_, g.s_tmp))


def G_a_load(k, t, sc1='', vo=4, which=1):
    g = G
    if t % 4 == 0:
        gr = (S_GC if which == 1 else S_GD) + t // 4
        k('s_add_u32 s%d, s%d, s%d' % (g.s_b0, g.s_a0, gr))
        k('s_add_u32 s%d, s%d, s%d' % (g.s_b1, g.s_a1, gr))
    r = g.RING + 8 * (t % g.NR)
    for i, s_ in enumerate((g.s_b0, g.s_b1)):
        k('buffer_load_dwordx4 %s, v%d, %s, s%d offen offset:%d %s' % (vr(r + 4 * i, 4), vo, srd(SRD_WS), s_, (t % 4) * 1024, sc1))


def G_mfma(k, t, areg):
    g = G
    r = g.RING + 8 * (t % g.NR)
    for iw in range(2):
        for ia in range(2):
            L = 2 * iw + ia
            a = vr(g.ACC + 16 * L, 16)
            c = '0' if (t == 0 and L != 0) else a
            k('v_mfma_f32_32x32x16_bf16 %s, %s, %s, %s' % (a, ar(areg + 4 * iw, 4), vr(r + 4 * ia, 4), c))


def G_mfma_tail(k, ts, areg, order, writes):
    g = G
    pend = []
    for L in order:
        iw, ia = L >> 1, L & 1
        a = vr(g.ACC + 16 * L, 16)
        for n, t in enumerate(ts):
            r = g.RING + 8 * (t % g.NR)
            k('v_mfma_f32_32x32x16_bf16 %s, %s, %s, %s' % (a, ar(areg(t) + 4 * iw, 4), vr(r + 4 * ia, 4), a))
            if n >= 1:
                per = -(-len(pend) // (len(ts) - n))
                for f in pend[:per]:
                    f()
                pend = pend[per:]
        pend = pend + list(writes.get(L, []))
    for f in pend:
        f()


def C_init(k):
    g = G
    t = g.T
    k('v_lshrrev_b32 v%d, 5, v1' % t)
    k('v_lshlrev_b32 v%d, 3, v%d' % (t, t))
    k('s_lshl_b32 s%d, s%d, 7' % (g.s_tmp, g.s_ft))
    k('s_lshr_b32 s%d, s3, 1' % g.s_t2)
    k('s_lshl_b32 s%d, s%d, 6' % (g.s_t2, g.s_t2))
    k('s_add_u32 s%d, s%d, s%d' % (g.s_tmp, g.s_tmp, g.s_t2))
    for q in range(4):
        k('buffer_load_dwordx2 %s, v%d, %s, s%d offen offset:%d' % (vr(t + 2 + 2 * q, 2), t, srd(SRD_B1), g.s_tmp, 16 * q))


def C_init_finish(k):
    g = G
    t = g.T
    for q in range(4):
        for i in range(2):
            k('v_lshlrev_b32 v%d, 16, v%d' % (g.ACC + 4 * q + 2 * i, t + 2 + 2 * q + i))
            k('v_and_b32 v%d, 0xffff0000, v%d' % (g.ACC + 4 * q + 2 * i + 1, t + 2 + 2 * q + i))


def C_epi_addr(k):
    g = G
    t = g.T
    for L in range(1, 4):
        k('s_xor_b32 s%d, s3, %d' % (g.s_tmp, L))
        k('s_mul_i32 s%d, s%d, %d' % (g.s_tmp, g.s_tmp, STG_SZ))
        k('s_add_u32 s%d, s%d, %d' % (g.s_tmp, g.s_tmp, LDS_STG + (L - 1) * 4096))
        k('v_add_u32 v%d, s%d, v4' % (t + L, g.s_tmp))
    k('v_add_u32 v%d, s%d, v4' % (t, g.s_stage))
    k('s_lshl_b32 s%d, s%d, 1' % (g.s_tmp, g.s_dtC))
    k('s_and_b32 s%d, s3, 1' % g.s_t2)
    k('s_add_u32 s%d, s%d, s%d' % (g.s_tmp, g.s_tmp, g.s_t2))
    k('s_mul_i32 s%d, s%d, 112' % (g.s_tmp, g.s_tmp))
    k('s_lshl_b32 s%d, s%d, 2' % (g.s_t2, g.s_ft))
    k('s_add_u32 s%d, s%d, s%d' % (g.s_tmp, g.s_tmp, g.s_t2))
    k('s_and_b32 s%d, s3, 2' % g.s_t2)
    k('s_add_u32 s%d, s%d, s%d' % (g.s_tmp, g.s_tmp, g.s_t2))
    k('s_lshl_b32 s%d, s%d, 10' % (g.s_tmp, g.s_tmp))
    k('s_add_u32 s%d, s%d, 0x%x' % (g.s_tmp, g.s_tmp, U_OFF))
    c1 = -2.0 * 0.7978845608028654 * 1.4426950408889634
    c2 = c1 * 0.044715
    k('s_mov_b32 s88, %s' % f32(c1))
    k('s_mov_b32 s90, %s' % f32(c2))
    k('v_mov_b32 v%d, s88' % (t + 4))
    k('v_mov_b32 v%d, s88' % (t + 5))


def C_epi_writes(k):
    g = G
    t = g.T
    return {L: [lambda L=L, q=q: k('ds_write_b128 v%d, %s offset:%d' % (t + L, vr(g.ACC + 16 * L + 4 * q, 4), q * 1024))
                for q in range(4)] for L in range(1, 4)}


def C_epilogue(k, sc1=''):
    g = G
    t = g.T
    k.c('---- phase C epilogue')
    k.wait_lg(0)
    k.barrier()
    R = g.ACC + 16
    for q in range(4):
        for L in range(3):
            k('ds_read_b128 %s, v%d offset:%d' % (vr(R + 16 * L + 4 * q, 4), t, L * 4096 + q * 1024))
    sc = 88
    X2 = g.RING
    for half in range(2):
        for i in range(8 * half, 8 * half + 8, 2):
            a = g.ACC + i
            k('v_pk_add_f32 %s, %s, %s' % (vr(R + i, 2), vr(R + i, 2), vr(R + 16 + i, 2)))
            k('v_pk_add_f32 %s, %s, %s' % (vr(a, 2), vr(a, 2), vr(R + 32 + i, 2)))
        for i in range(8 * half, 8 * half + 8, 2):
            a = g.ACC + i
            k('v_pk_add_f32 %s, %s, %s' % (vr(a, 2), vr(a, 2), vr(R + i, 2)))
        for i in range(8 * half, 8 * half + 8, 2):
            a = g.ACC + i
            k('v_pk_mul_f32 %s, %s, %s' % (vr(X2 + i, 2), vr(a, 2), vr(a, 2)))
        for i in range(8 * half, 8 * half + 8, 2):
            k('v_pk_fma_f32 %s, %s, %s, %s op_sel_hi:[1,0,1]' % (vr(X2 + i, 2), vr(X2 + i, 2), sr(sc + 2, 2), vr(t + 4, 2)))
        for i in range(8 * half, 8 * half + 8, 2):
            k('v_pk_mul_f32 %s, %s, %s' % (vr(X2 + i, 2), vr(X2 + i, 2), vr(g.ACC + i, 2)))
        for i in range(8 * half, 8 * half + 8):
            k('v_exp_f32 v%d, v%d' % (X2 + i, X2 + i))
        for i in range(8 * half, 8 * half + 8, 2):
            k('v_pk_add_f32 %s, %s, 1.0 op_sel_hi:[1,0]' % (vr(X2 + i, 2), vr(X2 + i, 2)))
        for i in range(8 * half, 8 * half + 8):
            k('v_rcp_f32 v%d, v%d' % (X2 + i, X2 + i))
        for i in range(8 * half, 8 * half + 8, 2):
            k('v_pk_mul_f32 %s, %s, %s' % (vr(X2 + i, 2), vr(X2 + i, 2), vr(g.ACC + i, 2)))
        p = X2 + 16 + 4 * half
        for i in range(4):
            k('v_cvt_pk_bf16_f32 v%d, v%d, v%d' % (p + i, X2 + 8 * half + 2 * i, X2 + 8 * half + 2 * i + 1))
        k('buffer_store_dwordx4 %s, v%d, %s, s%d offen offset:%d %s' % (vr(p, 4), g.vCl, srd(SRD_WS), g.s_tmp, half * 1024, sc1), tag='ust')


def D_init(k, sc1=''):
    g = G
    t = g.T
    k('v_lshrrev_b32 v%d, 5, v1' % t)
    k('v_lshlrev_b32 v%d, 3, v%d' % (t, t))
    k('s_lshl_b32 s%d, s%d, 7' % (g.s_tmp, g.s_st))
    k('s_lshr_b32 s%d, s3, 1' % g.s_t2)
    k('s_lshl_b32 s%d, s%d, 6' % (g.s_t2, g.s_t2))
    k('s_add_u32 s%d, s%d, s%d' % (g.s_tmp, g.s_tmp, g.s_t2))
    for q in range(4):
        k('buffer_load_dwordx2 %s, v%d, %s, s%d offen offset:%d' % (vr(t + 2 + 2 * q, 2), t, srd(SRD_B2), g.s_tmp, 16 * q))


def D_init_finish(k):
    g = G
    t = g.T
    for q in range(4):
        for i in range(2):
            a = g.ACC + 4 * q + 2 * i
            k('v_lshlrev_b32 v%d, 16, v%d' % (a, t + 2 + 2 * q + i))
            k('v_and_b32 v%d, 0xffff0000, v%d' % (a + 1, t + 2 + 2 * q + i))
            k('v_lshlrev_b32 v%d, 16, v%d' % (t + 18, B.HK + 2 * q + i))
            k('v_and_b32 v%d, 0xffff0000, v%d' % (t + 19, B.HK + 2 * q + i))
            k('v_pk_add_f32 %s, %s, %s' % (vr(a, 2), vr(a, 2), vr(t + 18, 2)))


def D_epilogue(k, lds_red, stride):
    g = G
    t = g.T
    k.c('---- phase D epilogue')
    k('v_lshrrev_b32 v%d, 5, v1' % t)
    k('v_lshlrev_b32 v%d, 10, v%d' % (t, t))
    k('v_and_b32 v%d, 31, v1' % (t + 1))
    k('v_lshl_add_u32 v%d, v%d, 2, v%d' % (t, t + 1, t))
    k('s_lshr_b32 s%d, s3, 1' % g.s_t2)
    k('s_lshl_b32 s%d, s%d, 13' % (g.s_tmp, g.s_t2))
    k('s_and_b32 s%d, s3, 1' % g.s_t2)
    k('s_lshl_b32 s%d, s%d, 7' % (g.s_t2, g.s_t2))
    k('s_add_u32 s%d, s%d, s%d' % (g.s_tmp, g.s_tmp, g.s_t2))
    k('v_add_u32 v%d, s%d, v%d' % (t, g.s_tmp, t))
    k('v_xor_b32 v%d, 128, v%d' % (t + 1, t))
    k('v_xor_b32 v%d, 0x2000, v%d' % (t + 2, t))
    k('v_xor_b32 v%d, 0x2080, v%d' % (t + 3, t))
    k('s_mul_i32 s%d, s3, %d' % (g.s_tmp, stride))
    k('s_add_u32 s%d, s%d, %d' % (g.s_tmp, g.s_tmp, lds_red))
    for L in range(4):
        k('v_add_u32 v%d, s%d, v%d' % (t + L, g.s_tmp, t + L))
    k('s_lshl_b32 s%d, s3, 12' % g.s_tmp)
    k('s_add_u32 s%d, s%d, %d' % (g.s_tmp, g.s_tmp, lds_red))
    k('v_add_u32 v%d, s%d, v4' % (t + 4, g.s_tmp))
    k('v_add_u32 v%d, %d, v%d' % (t + 6, 2 * stride, t + 4))
    k('v_mul_u32_u24 v%d, 896, v3' % (t + 5))
    k('v_lshl_add_u32 v%d, v2, 3, v%d' % (t + 5, t + 5))
    k('s_lshl_b32 s%d, s%d, 2' % (g.s_tmp, g.s_st))
    k('s_add_u32 s%d, s%d, s3' % (g.s_tmp, g.s_tmp))
    k('s_mul_i32 s%d, s%d, %d' % (g.s_tmp, g.s_tmp, 16 * 896))
    k('s_lshl_b32 s%d, s%d, 7' % (g.s_t2, g.s_dtD))
    k('s_add_u32 s%d, s%d, s%d' % (g.s_tmp, g.s_tmp, g.s_t2))
    k('s_add_u32 s%d, s%d, %d' % (g.s_t2, g.s_tmp, 8 * 896))


def D_epi_writes(k):
    g = G
    t = g.T
    return {L: [lambda L=L, q=q, r=r: k('ds_write2st64_b32 v%d, v%d, v%d offset0:%d offset1:%d' % (
        t + L, g.ACC + 16 * L + 4 * q + r, g.ACC + 16 * L + 4 * q + r + 1, 8 * q + r, 8 * q + r + 1))
        for q in range(4) for r in (0, 2)] for L in range(4)}


def D_epilogue2(k, stride):
    g = G
    t = g.T
    k.wait_lg(0)
    k.barrier()
    R = g.ACC
    for i in range(4):
        for w in range(4):
            k('ds_read_b128 %s, v%d offset:%d' % (vr(R + 16 * i + 4 * w, 4), t + 4 if w < 2 else t + 6, (w & 1) * stride + i * 1024))
    for i in range(4):
        r = R + 16 * i
        for j in (0, 2):
            k('v_pk_add_f32 %s, %s, %s' % (vr(r + j, 2), vr(r + j, 2), vr(r + 4 + j, 2)))
            k('v_pk_add_f32 %s, %s, %s' % (vr(r + 8 + j, 2), vr(r + 8 + j, 2), vr(r + 12 + j, 2)))
        for j in (0, 2):
            k('v_pk_add_f32 %s, %s, %s' % (vr(r + j, 2), vr(r + j, 2), vr(r + 8 + j, 2)))
        k('v_cvt_pk_bf16_f32 v%d, v%d, v%d' % (r + 4, r, r + 1))
        k('v_cvt_pk_bf16_f32 v%d, v%d, v%d' % (r + 5, r + 2, r + 3))
        k('buffer_store_dwordx2 %s, v%d, %s, s%d offen offset:%d' % (vr(r + 4, 2), t + 5, srd(SRD_OUT), g.s_t2 if i >= 2 else g.s_tmp, (i % 2) * 4 * 896))
```

```python
import sys, os
sys.path.insert(0, os.path.dirname(os.path.abspath(__file__)))
from dsl import Kernel
import phases as P

NAME = 'sequential_preLN__sliding_local_dilated__mixer_token_mlp__prompt'
HEADER = open(os.path.join(os.path.dirname(os.path.abspath(__file__)), '..', NAME + '.s.ref')).read().split('; Override launch')[0]


def wrap(kernels):
    out = [HEADER.rstrip('\n')]
    for label, k, grid, lds in kernels:
        if len(kernels) == 1 and label == NAME + '_kernel':
            out.append('; @launch grid=(%d,1,1) block=(256,1,1) lds=%d' % (grid, lds))
        else:
            out.append('; @launch kernel=%s grid=(%d,1,1) block=(256,1,1) lds=%d' % (label, grid, lds))
    out.append('.amdgcn_target "amdgcn-amd-amdhsa--gfx950"')
    out.append('.text')
    seen = []
    for label, k, grid, lds in kernels:
        if label in seen:
            continue
        seen.append(label)
        out.append('.globl %s\n.p2align 8\n.type %s,@function\n%s:' % (label, label, label))
        out.append(k.text())
    out.append('.section .rodata,"a"')
    seen = []
    for label, k, grid, lds in kernels:
        if label in seen:
            continue
        seen.append(label)
        nv = k.max_v + 1
        acc = (nv + 3) // 4 * 4
        tot = acc + k.max_a + 1 if k.max_a >= 0 else nv
        out.append('.p2align 6\n.amdhsa_kernel %s\n  .amdhsa_next_free_vgpr %d\n  .amdhsa_next_free_sgpr 102\n'
                   '  .amdhsa_accum_offset %d\n  .amdhsa_group_segment_fixed_size 0\n  .amdhsa_kernarg_size 88\n'
                   '  .amdhsa_user_sgpr_count 2\n  .amdhsa_user_sgpr_kernarg_segment_ptr 1\n'
                   '  .amdhsa_system_sgpr_workgroup_id_x 1\n.end_amdhsa_kernel' % (label, tot, acc))
        sys.stderr.write('%s: %d instrs, %d nops, v<=%d a<=%d s<=%d\n' % (label, k.n_ins, k.n_nops, k.max_v, k.max_a, k.max_s))
    return '\n'.join(out) + '\n'


def kernel_A(stamps=False):
    k = Kernel('A'); k.stamps = stamps
    P.prologue(k, 256, 'L_end_A', [P.ARG[n] for n in ('x', 'wqkv', 'ws')])
    P.stamp(k, 0)
    P.phaseA(k)
    P.stamp(k, 5)
    k.wait_vm(0)
    P.stamp(k, 6)
    k.label('L_end_A')
    k('s_endpgm')
    return ('phaseA_kernel', k, 256, P.A_LDS_END)


OPT = {}


def persist(stamps=False):
    k = Kernel('P'); k.stamps = stamps; k.scramble = OPT.get('scramble', False); k.xcctest = OPT.get('xcctest', False)
    end = 'L_end_P'
    g, b = P.G, P.B
    SC = 'sc1'
    SCL = OPT.get('scl', 'sc1')
    vE, vF, vPA, vPB, vPC = 6, 8, 10, 11, 12
    sFA, sFB, sFC, sPA, sPB, sPC = 80, 81, 82, 83, 84, 85
    P.prologue(k, 256, end, [P.ARG[n] for n in ('x', 'wqkv', 'dbg', 'ws', 'wo', 'w1', 'w2', 'b1', 'b2', 'out')])
    P.stamp(k, 0)

    def areg(t):
        return 128 + 8 * t if t < 16 else 8 * (t - 16)

    def setup():
        P.G_map(k)
        P.B_setup(k)
        P.G_w_setup(k, 1, P.LDS_STG, P.STG_SZ)
        P.G_w_setup(k, 2, P.LDS_STG, P.STG_SZ)
        P.G_rot_setup(k, 1)
        t = 79
        AG = OPT.get('ag', 2)
        k('s_lshl_b32 s%d, s48, 2' % sFA)
        k('s_add_u32 s%d, s%d, s3' % (sFA, sFA))
        k('s_lshl_b32 s%d, s%d, 11' % (sFA, sFA))
        k('s_lshr_b32 s%d, s49, %d' % (t, AG))
        k('s_lshl_b32 s%d, s%d, 7' % (t, t))
        k('s_add_u32 s%d, s%d, s%d' % (sFA, sFA, t))
        k('s_and_b32 s%d, s49, %d' % (t, (1 << AG) - 1))
        k('s_lshl_b32 s%d, s%d, 2' % (t, t))
        k('s_add_u32 s%d, s%d, s%d' % (sFA, sFA, t))
        k('s_add_u32 s%d, s%d, 0x%x' % (sFA, sFA, P.FLAG_A))
        k('s_lshl_b32 s%d, s%d, 1' % (sPA, g.s_st))
        k('s_lshr_b32 s%d, s3, 1' % t)
        k('s_add_u32 s%d, s%d, s%d' % (sPA, sPA, t))
        k('s_lshl_b32 s%d, s%d, 11' % (sPA, sPA))
        k('s_add_u32 s%d, s%d, 0x%x' % (sPA, sPA, P.FLAG_A))
        k('v_lshrrev_b32 v%d, %d, v2' % (vPA, AG))
        k('v_lshlrev_b32 v%d, 7, v%d' % (vPA, vPA))
        k('v_and_b32 v%d, %d, v2' % (P.TMP, (1 << AG) - 1))
        k('v_lshl_add_u32 v%d, v%d, 2, v%d' % (vPA, P.TMP, vPA))
        k('s_lshl_b32 s%d, s%d, 12' % (sPB, g.s_dtC))
        k('s_add_u32 s%d, s%d, 0x%x' % (sPC, sPB, P.FLAG_C))
        k('s_add_u32 s%d, s%d, 0x%x' % (sPB, sPB, P.FLAG_B))
        k('s_lshl_b32 s%d, s%d, 5' % (sFB, g.s_st))
        k('s_add_u32 s%d, s%d, s3' % (sFB, sFB))
        k('s_lshl_b32 s%d, s%d, 2' % (sFB, sFB))
        k('s_add_u32 s%d, s%d, s%d' % (sFB, sFB, sPB))
        k('s_lshl_b32 s%d, s3, 10' % t)
        k('s_add_u32 s%d, s%d, s%d' % (sPB, sPB, t))
        k('v_bfe_u32 v%d, v1, 2, 3' % vPB)
        k('v_min_u32 v%d, 6, v%d' % (vPC, vPB))
        k('v_and_b32 v%d, 3, v1' % P.TMP)
        k('v_lshlrev_b32 v%d, 2, v%d' % (P.TMP, P.TMP))
        k('v_lshl_add_u32 v%d, v%d, 7, v%d' % (vPB, vPB, P.TMP))
        k('v_lshl_add_u32 v%d, v%d, 7, v%d' % (vPC, vPC, P.TMP))
        k('s_lshl_b32 s%d, s%d, 5' % (sFC, g.s_ft))
        k('s_add_u32 s%d, s%d, s3' % (sFC, sFC))
        k('s_lshl_b32 s%d, s%d, 2' % (sFC, sFC))
        k('s_add_u32 s%d, s%d, s%d' % (sFC, sFC, sPC))
        k('s_mul_i32 s%d, s3, 896' % t)
        k('s_add_u32 s%d, s%d, s%d' % (sPC, sPC, t))
        k('v_mov_b32 v%d, 0' % (vF + 1))

    hooksA = {
        'A_pre': lambda: P.epoch_publish(k, vE),
        'A_after_issue': setup,
        'A_k8': lambda: (P.epoch_load(k, vE), P.W1_warm(k, 235)),
    }
    P.phaseA(k, SC, hooksA)
    P.stamp(k, 5)
    P.B_wo_dma(k)
    k.bg(OPT.get('wo_pre', 14))
    P.epoch_get(k, vE)
    k.wait_tag('ost')
    P.flag_store(k, vF, sFA)
    P.stamp(k, 6)
    k.bg_flush()
    notag = k.newlabel('Lnotag')
    k('s_cmp_lt_u32 s%d, 99' % g.s_st)
    k.branch_fwd('s_cbranch_scc1', notag)
    if OPT.get('agent', True):
        P.agent(k)
    else:
        k.wait_vm(0)
    k('s_branch %s' % end)
    k.label(notag)
    P.B_xinit(k)
    P.G_rot_setup(k, 2)
    k.wait_tag('wo')
    k.barrier()
    P.B_wo_read(k, 0)
    k.wait_lg(0)
    k.barrier()
    N1 = OPT.get('n1', 10)
    N2 = OPT.get('n2', 8)
    P.G_w_dma(k, 1, 0, N1, 8)
    P.flag_poll(k, vF, vPA, sPA)
    P.stamp(k, 10)

    N3 = OPT.get('n3', 8)

    def after_of():
        for t in range(N1):
            P.G_w_read(k, 1, t, 8 + t, areg(t))
        P.G_w_dma(k, 1, N1, N2, 8, bg=True)
        P.B_xinit_finish(k)

    def before_poll():
        P.G_w_dma(k, 1, N1 + N2, N3, 0)

    P.B_main(k, 0, 0, SC, {'B_after_of': after_of, 'B_before_poll': before_poll})
    P.stamp(k, 14)
    for t in range(N1, N1 + N2):
        P.G_w_read(k, 1, t, 8 + t - N1, areg(t))
    for t in range(N1 + N2, N1 + N2 + N3):
        P.G_w_read(k, 1, t, t - N1 - N2, areg(t))
    k.wait_tag('hst')
    P.flag_store(k, vF, sFB)
    P.stamp(k, 15)
    R1 = N1 + N2 + N3
    M1 = OPT.get('m1', 6)
    assert 6 + 32 - R1 + M1 <= 18
    P.G_w_dma(k, 1, R1, 32 - R1, 6)
    P.G_w_dma(k, 2, 0, M1, 18 - M1)
    P.C_init(k)
    P.G_a_setup(k, 1)
    P.flag_poll(k, vF, vPB, sPB)
    P.stamp(k, 16)
    UP = OPT.get('up', 6)
    for t in range(UP):
        P.G_a_load(k, t, SCL, g.vCl)
    P.C_init_finish(k)
    for t in range(R1, 32):
        P.G_w_read(k, 1, t, 6 + t - R1, areg(t))
    nxt = UP
    T2 = OPT.get('t2', 16)
    TL = OPT.get('tl', 4)
    for t in range(32 - TL):
        for _ in range(2):
            if nxt < 32 and nxt < t + 16:
                P.G_a_load(k, nxt, SCL, g.vCl)
                nxt += 1
        P.G_mfma(k, t, areg(t))
        if 8 <= t < 8 + M1:
            P.G_w_read(k, 2, t - 8, 18 - M1 + t - 8, areg(t - 8))
        if t == OPT.get('tb', 16):
            k.barrier()
        if T2 <= t < T2 + 12:
            P.G_w_dma(k, 2, M1 + t - T2, 1, t - T2 + 6)
        if t in (0, 7, 15):
            P.stamp(k, {0: 17, 7: 19, 15: 18}[t])
        if t == 14:
            P.C_epi_addr(k)
    P.G_mfma_tail(k, list(range(32 - TL, 32)), areg, [3, 2, 1, 0], P.C_epi_writes(k))
    P.stamp(k, 20)
    P.C_epilogue(k, SC)
    P.stamp(k, 21)
    k('v_mov_b32 v%d, v%d' % (vF + 1, g.vCl))
    for t in range(M1, M1 + 12):
        P.G_w_read(k, 2, t, t - M1 + 6, areg(t))
    k.wait_tag('ust')
    P.flag_store(k, vF, sFC)
    P.stamp(k, 22)
    R2 = M1 + 12
    P.G_w_dma(k, 2, R2, 28 - R2, 0)
    P.D_init(k, SC)
    P.G_a_setup(k, 2)
    P.flag_poll(k, vF, vPC, sPC)
    P.stamp(k, 24)
    for t in range(UP):
        P.G_a_load(k, t, SCL, 4, 2)
    P.D_init_finish(k)
    nxt = UP
    for t in range(28 - TL):
        for _ in range(2):
            if nxt < 28 and nxt < t + 16:
                P.G_a_load(k, nxt, SCL, 4, 2)
                nxt += 1
        P.G_mfma(k, t, areg(t))
        if t < 28 - R2:
            P.G_w_read(k, 2, R2 + t, t, areg(R2 + t))
        if t == 17:
            P.D_epilogue(k, P.LDS_STG, P.STG_SZ)
        if t in (0, 7, 15):
            P.stamp(k, {0: 25, 7: 26, 15: 27}[t])
    P.G_mfma_tail(k, list(range(28 - TL, 28)), areg, [3, 2, 1, 0], P.D_epi_writes(k))
    P.stamp(k, 28)
    P.D_epilogue2(k, P.STG_SZ)
    P.stamp(k, 29)
    if stamps:
        k.wait_vm(0)
        P.stamp(k, 30)
    k.label(end)
    k('s_endpgm')
    return (NAME + '_kernel', k, 256, P.LDS_END)


if __name__ == '__main__':
    which = sys.argv[1] if len(sys.argv) > 1 else 'p'
    outp = sys.argv[2] if len(sys.argv) > 2 else os.path.join(os.path.dirname(os.path.abspath(__file__)), '..', NAME + '.s')
    for o in sys.argv[3:]:
        kk, vv = o.split('=')
        OPT[kk] = eval(vv)
    P.OUT_SC = OPT.get('osc', ''); P.ROT = OPT.get('rot', True); P.POLL_DEPTH = OPT.get('pd', 3); P.POLL_GAP = OPT.get('pg', 3); P.POLL_SLEEP = OPT.get('ps', 0); P.ST_SLEEP = OPT.get('sts', 0); P.AGENT_DEPTH = OPT.get('ad', 4); P.START_ORDER = OPT.get('so', '01w|'); P.WO_LATE = OPT.get('wol', True)
    if which == 'p':
        ks = [persist()]
    elif which == 'p_dbg':
        ks = [persist('dbg')]
    elif which == 'p_st':
        P.ARG['ws'] = (P.SRD_WS, 80, 0x1000000)
        ks = [persist(True)]
    open(outp, 'w').write(wrap(ks))
```

```python
from dsl import vr, ar, sr, classify
import phases as P
from phases import G, B, srd, f32, SRD_WS, SRD_B1, SRD_B2, SRD_OUT, S_EPOCH, STG_SZ, LDS_STG, HH_OFF, U_OFF

RING, NRS = 80, 32
SLEEP = 0
OSC = ['', '']
sA0, sA1, sU0, sU1 = 71, 72, 58, 59
sB = 56
sUst, sO0, sO1 = 57, 68, 69
sH = 60
BI = 220
B2 = 224
VA = 232
TT = 208


def acc(half, L):
    return 16 + 32 * half + 16 * L


def setup(k):
    g = G
    t, t2 = 86, 87
    k('s_lshl_b32 s%d, s%d, 18' % (sA0, g.s_dtC))
    k('s_lshl_b32 s%d, s3, 15' % t)
    k('s_add_u32 s%d, s%d, s%d' % (sA0, sA0, t))
    k('s_add_u32 s%d, s%d, 0x%x' % (sA0, sA0, HH_OFF))
    k('s_add_u32 s%d, s%d, 0x20000' % (sA1, sA0))
    k('s_mul_i32 s%d, s%d, %d' % (sU0, g.s_dtD, 2 * 112 * 1024))
    k('s_add_u32 s%d, s%d, 0x%x' % (sU0, sU0, U_OFF))
    k('s_lshl_b32 s%d, s%d, 2' % (t, g.s_ft))
    k('s_add_u32 s%d, s%d, s3' % (t, t))
    k('s_lshl_b32 s%d, s%d, 10' % (t, t))
    k('s_add_u32 s%d, s%d, s%d' % (sUst, sU0, t))
    k('s_mul_i32 s%d, s3, %d' % (t, 28 * 1024))
    k('s_add_u32 s%d, s%d, s%d' % (sU0, sU0, t))
    k('s_add_u32 s%d, s%d, %d' % (sU1, sU0, 112 * 1024))
    k('v_lshrrev_b32 v%d, 5, v1' % TT)
    k('v_lshlrev_b32 v%d, 3, v%d' % (TT, TT))
    k('s_lshl_b32 s%d, s%d, 7' % (t, g.s_ft))
    k('s_lshl_b32 s%d, s3, 5' % t2)
    k('s_add_u32 s%d, s%d, s%d' % (t, t, t2))
    for q in range(2):
        k('buffer_load_dwordx2 %s, v%d, %s, s%d offen offset:%d' % (vr(BI + 2 * q, 2), TT, srd(SRD_B1), t, 16 * q))
    k('s_lshl_b32 s%d, s%d, 7' % (t, g.s_st))
    k('s_lshr_b32 s%d, s3, 1' % t2)
    k('s_lshl_b32 s%d, s%d, 6' % (t2, t2))
    k('s_add_u32 s%d, s%d, s%d' % (t, t, t2))
    for q in range(4):
        k('buffer_load_dwordx2 %s, v%d, %s, s%d offen offset:%d' % (vr(B2 + 2 * q, 2), TT, srd(SRD_B2), t, 16 * q))
    k('v_add_u32 v%d, s%d, v4' % (VA, g.s_stage))
    for p in range(1, 4):
        k('s_xor_b32 s%d, s3, %d' % (t, p))
        k('s_mul_i32 s%d, s%d, %d' % (t, t, STG_SZ))
        k('s_add_u32 s%d, s%d, %d' % (t, t, LDS_STG + (p - 1) * 2048))
        k('v_add_u32 v%d, s%d, v4' % (VA + p, t))
    k('v_lshrrev_b32 v%d, 5, v1' % TT)
    k('v_lshlrev_b32 v%d, 9, v%d' % (TT, TT))
    k('v_and_b32 v%d, 31, v1' % (TT + 1))
    k('v_lshl_add_u32 v%d, v%d, 2, v%d' % (TT, TT + 1, TT))
    k('s_lshr_b32 s%d, s3, 1' % t)
    k('s_lshl_b32 s%d, s%d, 12' % (t, t))
    k('v_add_u32 v%d, s%d, v%d' % (TT, t, TT))
    k('v_xor_b32 v%d, 0x1000, v%d' % (TT + 1, TT))
    k('v_add_u32 v%d, s%d, v%d' % (VA + 4, g.s_stage, TT))
    k('v_add_u32 v%d, s%d, v%d' % (VA + 5, g.s_stage, TT + 1))
    k('s_lshl_b32 s%d, s3, 11' % t)
    k('s_add_u32 s%d, s%d, %d' % (t, t, LDS_STG))
    k('v_add_u32 v%d, s%d, v4' % (VA + 6, t))
    k('v_add_u32 v%d, %d, v%d' % (VA + 7, 2 * STG_SZ, VA + 6))
    k('v_lshrrev_b32 v%d, 3, v1' % TT)
    k('v_mul_u32_u24 v%d, 896, v%d' % (TT + 4, TT))
    k('v_and_b32 v%d, 7, v1' % TT)
    k('v_lshl_add_u32 v%d, v%d, 3, v%d' % (TT + 4, TT, TT + 4))
    k('s_lshl_b32 s%d, s%d, 2' % (sO0, g.s_st))
    k('s_add_u32 s%d, s%d, s3' % (sO0, sO0))
    k('s_mul_i32 s%d, s%d, %d' % (sO0, sO0, 16 * 896))
    k('s_lshl_b32 s%d, s%d, 7' % (t, g.s_dtD))
    k('s_add_u32 s%d, s%d, s%d' % (sO0, sO0, t))
    k('s_add_u32 s%d, s%d, %d' % (sO1, sO0, 8 * 896))
    c1 = -2.0 * 0.7978845608028654 * 1.4426950408889634
    k('s_mov_b32 s88, %s' % f32(c1))
    k('s_mov_b32 s89, %s' % f32(c1))
    k('s_mov_b32 s90, %s' % f32(c1 * 0.044715))
    k('s_mov_b32 s91, 0xffff0000')


def c_init_ops(k, half):
    a = acc(half, 0)
    ops = []
    for i in range(4):
        ops.append(lambda i=i: k('v_lshlrev_b32 v%d, 16, v%d' % (a + 2 * i, BI + i)))
        ops.append(lambda i=i: k('v_and_b32 v%d, s91, v%d' % (a + 2 * i + 1, BI + i)))
    for i in range(8, 16, 2):
        ops.append(lambda i=i: k('v_mov_b64 %s, 0' % vr(a + i, 2)))
    return ops


def d_init_ops(k, half):
    a = acc(half, 0)
    ops = [lambda: (k('s_and_b32 s%d, s3, 1' % sH), k('s_cmp_eq_u32 s%d, %d' % (sH, half)),
                    k('s_cselect_b32 s%d, 1.0, 0' % sH))]
    for i in range(8):
        ops.append(lambda i=i: k('v_lshlrev_b32 v%d, 16, v%d' % (a + 2 * i, B2 + i)))
        ops.append(lambda i=i: k('v_and_b32 v%d, s91, v%d' % (a + 2 * i + 1, B2 + i)))
        ops.append(lambda i=i: k('v_lshlrev_b32 v%d, 16, v%d' % (TT + 2 * (i & 1), B.HK + i)))
        ops.append(lambda i=i: k('v_and_b32 v%d, s91, v%d' % (TT + 2 * (i & 1) + 1, B.HK + i)))
        for j in range(2):
            ops.append(lambda i=i, j=j: k('v_add_f32 v%d, v%d, v%d' % (a + 2 * i + j, a + 2 * i + j, TT + 2 * (i & 1) + j)))
        for j in range(2):
            ops.append(lambda i=i, j=j: k('v_mul_f32 v%d, s%d, v%d' % (a + 2 * i + j, sH, a + 2 * i + j)))
    return ops


def nmap(n):
    if n < 64:
        return 1, n >> 5, n & 31
    m = n - 64
    return 2, m // 28, m % 28


def a_load(k, n, sc):
    which, half, t = nmap(n)
    if t % 4 == 0:
        base = ((sA0, sA1), (sU0, sU1))[which - 1][half]
        k('s_add_u32 s%d, s%d, s%d' % (sB, base, (P.S_GC if which == 1 else P.S_GD) + t // 4))
    k('buffer_load_dwordx4 %s, v%d, %s, s%d offen offset:%d %s' % (
        vr(RING + 4 * (n % NRS), 4), G.vCl if which == 1 else 4, srd(SRD_WS), sB, (t % 4) * 1024, sc))


def mfma(k, n, iw, areg):
    which, half, t = nmap(n)
    a = vr(acc(half, iw), 16)
    c = '0' if (t == 0 and iw == 1) else a
    k('v_mfma_f32_32x32x16_bf16 %s, %s, %s, %s' % (a, ar(areg(t) + 4 * iw, 4), vr(RING + 4 * (n % NRS), 4), c))


def c_writes(k, half):
    ops = []
    for p in (3, 2, 1):
        r = acc(half, p >> 1) + 8 * (p & 1)
        for j in range(2):
            ops.append(lambda p=p, r=r, j=j: k('ds_write_b128 v%d, %s offset:%d' % (VA + p, vr(r + 4 * j, 4), half * 6144 + j * 1024), tag='cw'))
    return ops


def c_reads(k, half):
    a = acc(half, 0)
    return [lambda p=p, j=j: k('ds_read_b128 %s, v%d offset:%d' % (vr(a + 8 * p + 4 * j, 4), VA, half * 6144 + (p - 1) * 2048 + j * 1024))
            for j in range(2) for p in (1, 2, 3)]


def c_final_ops(k, half, sc, pk):
    a = acc(half, 0)
    X = a + 8
    ops = []

    def o(txt):
        ops.append(lambda: k(txt))
    if pk:
        for i in range(0, 8, 2):
            o('v_pk_add_f32 %s, %s, %s' % (vr(a + 8 + i, 2), vr(a + 8 + i, 2), vr(a + 16 + i, 2)))
            o('v_pk_add_f32 %s, %s, %s' % (vr(a + i, 2), vr(a + i, 2), vr(a + 24 + i, 2)))
        for i in range(0, 8, 2):
            o('v_pk_add_f32 %s, %s, %s' % (vr(a + i, 2), vr(a + i, 2), vr(a + 8 + i, 2)))
        for i in range(0, 8, 2):
            o('v_pk_mul_f32 %s, %s, %s' % (vr(X + i, 2), vr(a + i, 2), vr(a + i, 2)))
        for i in range(8):
            o('v_fma_f32 v%d, v%d, s90, v%d' % (X + i, X + i, TT + 3))
        for i in range(0, 8, 2):
            o('v_pk_mul_f32 %s, %s, %s' % (vr(X + i, 2), vr(X + i, 2), vr(a + i, 2)))
    else:
        for i in range(8):
            o('v_add_f32 v%d, v%d, v%d' % (a + 8 + i, a + 8 + i, a + 16 + i))
            o('v_add_f32 v%d, v%d, v%d' % (a + i, a + i, a + 24 + i))
        for i in range(8):
            o('v_add_f32 v%d, v%d, v%d' % (a + i, a + i, a + 8 + i))
        for i in range(8):
            o('v_mul_f32 v%d, v%d, v%d' % (X + i, a + i, a + i))
        for i in range(8):
            o('v_fma_f32 v%d, v%d, s90, v%d' % (X + i, X + i, TT + 3))
        for i in range(8):
            o('v_mul_f32 v%d, v%d, v%d' % (X + i, X + i, a + i))
    for i in range(8):
        o('v_exp_f32 v%d, v%d' % (X + i, X + i))
    for i in range(8):
        o('v_add_f32 v%d, 1.0, v%d' % (X + i, X + i))
    for i in range(8):
        o('v_rcp_f32 v%d, v%d' % (X + i, X + i))
    for i in range(8):
        o('v_mul_f32 v%d, v%d, v%d' % (X + i, X + i, a + i))
    for i in range(4):
        o('v_cvt_pk_bf16_f32 v%d, v%d, v%d' % (a + 16 + i, X + 2 * i, X + 2 * i + 1))
    ops.insert(0, lambda: k('v_mov_b32 v%d, s88' % (TT + 3)))

    def st():
        if half:
            k('s_add_u32 s%d, s%d, %d' % (sUst, sUst, 112 * 1024))
        k('buffer_store_dwordx4 %s, v%d, %s, s%d offen %s' % (vr(a + 16, 4), G.vCl, srd(SRD_WS), sUst, sc), tag='ust%d' % half)
    ops.append(st)
    return ops


def d_writes(k, half):
    ops = []
    for L in (1, 0):
        for q in range(4):
            for r in range(2):
                a = acc(half, L) + 4 * q + r
                ops.append(lambda L=L, q=q, r=r, a=a: k('ds_write_b32 v%d, v%d offset:%d' % (
                    VA + 4 + L, a, half * 8192 + (8 * q + r) * 128)))
                ops.append(lambda L=L, q=q, r=r, a=a: k('ds_write_b32 v%d, v%d offset:%d' % (
                    VA + 4 + L, a + 2, half * 8192 + (8 * q + r + 2) * 128)))
    return ops


def d_reads(k, half):
    a = acc(half, 0)
    return [lambda i=i, w=w: k('ds_read_b128 %s, v%d offset:%d' % (vr(a + 16 * i + 4 * w, 4), VA + 6 + (w >> 1),
                                                                   (w & 1) * STG_SZ + half * 8192 + i * 1024))
            for i in range(2) for w in range(4)]


def d_final_ops(k, half, pk):
    a = acc(half, 0)
    ops = []

    def o(txt):
        ops.append(lambda: k(txt))
    for i in range(2):
        r = a + 16 * i
        if pk:
            for j in (0, 2):
                o('v_pk_add_f32 %s, %s, %s' % (vr(r + j, 2), vr(r + j, 2), vr(r + 4 + j, 2)))
                o('v_pk_add_f32 %s, %s, %s' % (vr(r + 8 + j, 2), vr(r + 8 + j, 2), vr(r + 12 + j, 2)))
            for j in (0, 2):
                o('v_pk_add_f32 %s, %s, %s' % (vr(r + j, 2), vr(r + j, 2), vr(r + 8 + j, 2)))
        else:
            for j in range(4):
                o('v_add_f32 v%d, v%d, v%d' % (r + j, r + j, r + 4 + j))
                o('v_add_f32 v%d, v%d, v%d' % (r + 8 + j, r + 8 + j, r + 12 + j))
            for j in range(4):
                o('v_add_f32 v%d, v%d, v%d' % (r + j, r + j, r + 8 + j))
        o('v_cvt_pk_bf16_f32 v%d, v%d, v%d' % (r + 4, r, r + 1))
        o('v_cvt_pk_bf16_f32 v%d, v%d, v%d' % (r + 5, r + 2, r + 3))
        o('buffer_store_dwordx2 %s, v%d, %s, s%d offen offset:%d' % (vr(r + 4, 2), TT + 4, srd(SRD_OUT), sO1 if i else sO0, half * 64) + ' ' + OSC[half])
    return ops


def probe(k, reg, voff, s_off, imm):
    k('buffer_load_dword v%d, v%d, %s, s%d offen offset:%d %s' % (reg, voff, srd(SRD_WS), s_off, imm, P.POLL_SC))


def probe_check(k, reg, voff, s_off, imm):
    L, done = k.newlabel('Lpc'), k.newlabel('Lpcd')
    k('v_cmp_ne_u32 vcc, s%d, v%d' % (S_EPOCH, reg))
    k('s_cbranch_vccz %s' % done)
    hist, vm = [[h[0], h[1]] for h in k.hist], list(k.vm)
    k.loop_label(L)
    P.spin_guard(k)
    if SLEEP:
        k('s_sleep %d' % SLEEP)
    probe(k, reg, voff, s_off, imm)
    k.force_wait(vm=0)
    k('v_cmp_ne_u32 vcc, s%d, v%d' % (S_EPOCH, reg))
    k('s_cbranch_vccnz %s' % L)
    k.raw(done + ':')
    k.hist = k.hist + hist
    k.vm = vm
```

```python
import struct
from dsl import Kernel, vr, ar, sr, classify

S, D, H, DH, F = 2048, 448, 16, 28, 1792

OF_OFF = 0x000000
HH_OFF = 0x200000
U_OFF = 0x3C0000
STAT_OFF = 0x548000
FLAG_OFF = 0x588000
WS_SIZE = 0x5C0000
OOB = 0x40000000

SRD_X, SRD_WQKV, SRD_WO, SRD_W1, SRD_W2, SRD_B1, SRD_B2, SRD_OUT, SRD_WS, SRD_DBG = 8, 12, 16, 20, 24, 28, 32, 36, 40, 44
SRD_A = 96
S_WG, S_WAVE = 2, 3
S_EPOCH = 4
S_SPIN = 6
S_ONES = 5
S_T = 86
V_LANE, V_T16, V_G, V_L16 = 1, 2, 3, 4


def f32(x):
    return '0x%08x' % struct.unpack('<I', struct.pack('<f', x))[0]


def srd(base):
    return sr(base, 4)


def prologue(k, nwg, end_label, need):
    k('s_cmp_ge_u32 s2, %d' % nwg)
    k('s_cbranch_scc1 %s' % end_label)
    if getattr(k, 'xcctest', False):
        k('s_getreg_b32 s3, hwreg(HW_REG_XCC_ID)')
        k('s_and_b32 s3, s3, 15')
        k('s_and_b32 s4, s2, 7')
        k('s_cmp_eq_u32 s3, s4')
        k('s_cbranch_scc1 Lxcc_ok')
        for _ in range(8):
            k('s_sleep 127')
        k.raw('Lxcc_ok:')
    if getattr(k, 'scramble', False):
        k('s_and_b32 s3, s2, 7')
        k('s_lshl_b32 s3, s3, 5')
        k('s_lshr_b32 s2, s2, 3')
        k('s_or_b32 s2, s2, s3')
    for base, off, size in need:
        k('s_load_dwordx2 %s, s[0:1], %d' % (sr(base, 2), off))
    k('v_lshrrev_b32 v1, 6, v0')
    k('v_readfirstlane_b32 s3, v1')
    k('v_and_b32 v1, 63, v0')
    k('v_and_b32 v2, 15, v0')
    k('v_lshrrev_b32 v3, 4, v1')
    k('v_lshlrev_b32 v4, 4, v1')
    for base, off, size in need:
        k('s_mov_b32 s%d, 0x%x' % (base + 2, size))
        k('s_mov_b32 s%d, 0x00020000' % (base + 3))
    k('s_mov_b32 s%d, 0x3f803f80' % S_ONES)
    k('s_mov_b32 s%d, 0x40000' % S_SPIN)
    k.end_label = end_label


ARG = dict(x=(SRD_X, 0, S * D * 2), wqkv=(SRD_WQKV, 8, D * 3 * D * 2), wo=(SRD_WO, 16, D * D * 2),
           w1=(SRD_W1, 32, S * F * 2), b1=(SRD_B1, 40, F * 2), w2=(SRD_W2, 48, F * S * 2), b2=(SRD_B2, 56, S * 2),
           out=(SRD_OUT, 64, S * D * 2), dbg=(SRD_DBG, 72, 256), ws=(SRD_WS, 80, WS_SIZE))


def xgroup_reduce(k, regs, tmp, op='v_add_f32'):
    for swap in ('v_permlane32_swap_b32', 'v_permlane16_swap_b32'):
        for r, t in zip(regs, tmp):
            k('v_mov_b32 v%d, v%d' % (t, r))
        for r, t in zip(regs, tmp):
            k('%s v%d, v%d' % (swap, r, t))
        for r, t in zip(regs, tmp):
            k('%s v%d, v%d, v%d' % (op, r, r, t))


A_LDS_CS = 0
A_LDS_ST = 512
A_LDS_KV = 2048
A_LDS_W = 12288
A_LDS_X = 61440
A_XSLOT = [2, 1, 0, 3]
A_LDS_END = A_LDS_X + 4 * 18432
LDS_STG = 12288
STG_SZ = 36864
NSLOT = 18
LDS_END = 163840
LDS_WO = 106496
TMP = 219


def xslot(grp):
    return A_XSLOT.index(grp % 4) * 18432


def phaseA(k, sc1='', hooks=None):
    hooks = hooks or {}
    XR = 16
    ACC = 136
    WF = 88
    ONES = 40
    SQ, SM = 48, 60
    vXl, vXu, vXh, vW, vA0, vA1, vH1, vH2 = 120, 121, 122, 123, 124, 125, 126, 127
    vRe, vRo, vHe, vHo = 128, 129, 130, 131
    vT = 237
    BP, BC, BPA = 240, 244, 248
    s_rb, s_head, s_t0, s_m0w, s_m0x, s_tmp = 48, 49, 50, 51, 52, 53
    s_hm = 54
    s_m0h = 7
    s_hv = S_HV
    s_o0, s_o1 = 62, 63

    def hook(name):
        if name in hooks:
            hooks[name]()

    def xreg(j, blk):
        return XR + (j % 2) * 12 + blk * 4

    def acc(blk, nbi):
        return ACC + blk * 24 + nbi * 4
    H1, H2 = ACC + 48, ACC + 52

    k.c('---- phase A setup')
    k('s_bfe_u32 s%d, s2, 0x20001' % s_rb)
    k('s_lshl_b32 s%d, s%d, 2' % (s_rb, s_rb))
    k('s_lshr_b32 s%d, s2, 6' % s_tmp)
    k('s_add_u32 s%d, s%d, s%d' % (s_rb, s_rb, s_tmp))
    k('s_bfe_u32 s%d, s2, 0x30003' % s_head)
    k('s_and_b32 s%d, s2, 1' % s_tmp)
    k('s_lshl_b32 s%d, s%d, 3' % (s_tmp, s_tmp))
    k('s_add_u32 s%d, s%d, s%d' % (s_head, s_head, s_tmp))
    k('v_lshrrev_b32 v%d, 2, v1' % vT)
    k('v_mul_u32_u24 v%d, 2688, v%d' % (vW, vT))
    k('v_lshrrev_b32 v%d, 5, v1' % vT)
    k('v_lshlrev_b32 v%d, 1, v%d' % (vT, vT))
    k('v_and_b32 v%d, 3, v1' % (vT + 1))
    k('v_xor_b32 v%d, v%d, v%d' % (vT, vT, vT + 1))
    k('v_lshl_add_u32 v%d, v%d, 4, v%d' % (vW, vT, vW))
    k('s_mul_i32 s%d, s%d, 56' % (s_tmp, s_head))
    k('s_min_u32 s%d, s%d, 832' % (s_tmp, s_tmp))
    k('s_mul_i32 s%d, s3, %d' % (s_m0w, 16 * 2688))
    k('s_add_u32 s%d, s%d, s%d' % (s_tmp, s_tmp, s_m0w))
    k('v_add_u32 v%d, s%d, v%d' % (vW, s_tmp, vW))
    k('s_lshr_b32 s%d, s3, 1' % s_tmp)
    k('s_mul_i32 s%d, s%d, 6144' % (s_m0w, s_tmp))
    k('s_and_b32 s%d, s3, 1' % s_tmp)
    k('s_lshl_b32 s%d, s%d, 10' % (s_tmp, s_tmp))
    k('s_add_u32 s%d, s%d, s%d' % (s_m0w, s_m0w, s_tmp))
    k('v_lshrrev_b32 v%d, 3, v1' % vT)
    k('v_mul_u32_u24 v%d, 896, v%d' % (vXh, vT))
    k('v_and_b32 v%d, 7, v1' % vT)
    k('v_xor_b32 v%d, v%d, v3' % (vT, vT))
    k('v_lshl_add_u32 v%d, v%d, 4, v%d' % (vXl, vT, vXh))
    k('s_lshl_b32 s%d, s%d, 7' % (s_t0, s_rb))
    k('s_lshl_b32 s%d, s3, 5' % s_tmp)
    k('s_add_u32 s%d, s%d, s%d' % (s_tmp, s_tmp, s_t0))
    k('s_mul_i32 s%d, s%d, 896' % (s_tmp, s_tmp))
    k('v_xor_b32 v%d, 64, v%d' % (vXu, vXl))
    k('v_add_u32 v%d, s%d, v%d' % (vXl, s_tmp, vXl))
    k('s_add_u32 s%d, s%d, %d' % (s_tmp, s_tmp, 8 * 896))
    k('v_add_u32 v%d, s%d, v%d' % (vXu, s_tmp, vXu))
    k('s_lshl_b32 s%d, s3, 1' % s_tmp)
    k('v_xor_b32 v%d, s%d, v%d' % (vT, s_tmp, vT))
    k('v_lshl_add_u32 v%d, v%d, 4, v%d' % (vXh, vT, vXh))
    k('s_lshl_b32 s%d, s3, 2' % s_tmp)
    k('s_add_u32 s%d, s%d, s%d' % (s_tmp, s_tmp, s_t0))
    k('s_sub_u32 s%d, s%d, 16' % (s_tmp, s_tmp))
    k('s_mul_i32 s%d, s%d, 896' % (s_tmp, s_tmp))
    k('s_cmp_eq_u32 s%d, 0' % s_rb)
    k('s_cselect_b32 s%d, 0x%x, s%d' % (s_tmp, OOB, s_tmp))
    k('v_add_u32 v%d, s%d, v%d' % (vXh, s_tmp, vXh))
    k('s_lshl_b32 s%d, s3, 12' % s_m0x)
    k('s_add_u32 s%d, s%d, %d' % (s_m0x, s_m0x, A_LDS_X + 2048))
    k('s_lshl_b32 s%d, s3, 9' % s_m0h)
    k('s_cmp_eq_u32 s3, 0')
    k('s_cselect_b32 s%d, 0xffffff00, -1' % s_hm)
    k('s_mov_b32 s%d, 0' % (s_hm + 1))

    def dma_group(grp, bg=False):
        tag = 'G%d' % grp
        sd = B.s_dma

        def w_(p):
            k('s_add_u32 m0, s%d, %d' % (s_m0w, A_LDS_W + (grp % 4) * 12288 + p * 2048))
            k('s_mov_b32 s%d, %d' % (sd, grp * 64 * 2688 + p * 896))
            k('buffer_load_dwordx4 v%d, %s, s%d offen lds' % (vW, srd(SRD_WQKV), sd), tag=tag)

        def x_(i):
            k('s_add_u32 m0, s%d, %d' % (s_m0x, xslot(grp) + i * 1024))
            k('s_mov_b32 s%d, %d' % (sd, grp * 128 + (i >> 1) * 16 * 896))
            k('buffer_load_dwordx4 v%d, %s, s%d offen lds' % (vXu if i & 1 else vXl, srd(SRD_X), sd), tag=tag)

        def h_():
            k('s_add_u32 m0, s%d, %d' % (s_m0h, A_LDS_X + xslot(grp)))
            k('s_mov_b32 s%d, %d' % (sd, grp * 128))
            k('s_mov_b64 exec, %s' % sr(s_hm, 2))
            k('buffer_load_dwordx4 v%d, %s, s%d offen lds' % (vXh, srd(SRD_X), sd), tag=tag)
            k('s_mov_b64 exec, -1')
        fs = [lambda p=p: w_(p) for p in range(3)] + [lambda i=i: x_(i) for i in range(4)] + [h_]
        for f in fs:
            if bg:
                k.bg_push(f)
            else:
                f()

    def warm():
        k('s_bfe_u32 s%d, s2, 0x30003' % s_tmp)
        k('s_add_u32 s%d, s%d, 1' % (S_T, s_tmp))
        k('s_lshr_b32 s%d, s%d, 1' % (S_T, S_T))
        k('s_lshr_b32 s%d, s2, 6' % (S_T + 1))
        k('s_mul_i32 s%d, s%d, 5' % (S_T + 1, S_T + 1))
        k('s_add_u32 s%d, s%d, s%d' % (S_T, S_T, S_T + 1))
        k('s_lshl_b32 s%d, s%d, 2' % (S_T, S_T))
        k('s_add_u32 s%d, s%d, s3' % (s_tmp, S_T))
        k('s_mov_b32 s%d, s%d' % (S_WR, s_tmp))
        k('s_mov_b32 s%d, 0x2a54' % S_T)
        k('s_bitcmp1_b32 s%d, s%d' % (S_T, s_head))
        k('s_cselect_b32 s%d, 0x%x, 0' % (s_hv, OOB))
        k('s_mul_i32 s%d, s%d, 48' % (S_T, s_tmp))
        k('v_add_u32 v%d, s%d, v1' % (vT, S_T))
        k('v_mul_u32_u24 v%d, 43691, v%d' % (vT + 1, vT))
        k('v_lshrrev_b32 v%d, 19, v%d' % (vT + 1, vT + 1))
        k('v_mul_u32_u24 v%d, 12, v%d' % (vT + 2, vT + 1))
        k('v_sub_u32 v%d, v%d, v%d' % (vT + 2, vT, vT + 2))
        k('v_lshrrev_b32 v%d, 2, v%d' % (vT + 2, vT + 2))
        k('v_mul_u32_u24 v%d, 896, v%d' % (vT + 2, vT + 2))
        k('v_mul_u32_u24 v%d, 2688, v%d' % (vT + 1, vT + 1))
        k('v_and_b32 v%d, 3, v%d' % (vT, vT))
        k('v_lshlrev_b32 v%d, 7, v%d' % (vT, vT))
        k('v_add3_u32 v%d, v%d, v%d, v%d' % (vT, vT, vT + 1, vT + 2))
        k('v_add_u32 v%d, s%d, v%d' % (vT, s_hv, vT))
        k('s_and_b32 s%d, s2, 1' % S_T)
        k('s_mul_i32 s%d, s%d, 384' % (S_T, S_T))
        k('s_add_u32 s%d, s%d, %d' % (S_T, S_T, 128 * 2688))
        k('s_mov_b32 exec_hi, 0xffff')
        k('buffer_load_dword v232, v%d, %s, s%d offen' % (vT, srd(SRD_WQKV), S_T))
        k('v_lshlrev_b32 v%d, 7, v1' % vT)
        k('v_add_u32 v%d, s%d, v%d' % (vT + 1, s_hv, vT))
        k('s_mul_i32 s%d, s%d, %d' % (S_T, s_tmp, 47 * 128))
        k('s_bfe_u32 s%d, s2, 0x20001' % (S_T + 1))
        k('s_mul_i32 s%d, s%d, %d' % (S_T + 1, S_T + 1, 512 * 896))
        k('s_add_u32 s%d, s%d, s%d' % (S_T, S_T, S_T + 1))
        k('s_max_u32 s%d, s%d, %d' % (S_T, S_T, 16 * 896))
        k('s_sub_u32 s%d, s%d, %d' % (S_T, S_T, 16 * 896))
        k('s_mov_b32 exec_hi, 0x7fff')
        k('buffer_load_dword v233, v%d, %s, s%d offen' % (vT + 1, srd(SRD_X), S_T))
        k('s_getpc_b64 %s' % sr(S_T, 2))
        k.raw('Lpc_%s:' % k.name)
        k('s_mul_i32 s%d, s%d, 384' % (s_tmp, s_tmp))
        k('v_add_u32 v%d, s%d, v%d' % (vT, s_tmp, vT))
        k('v_min_u32 v%d, %s-Lpc_%s, v%d' % (vT, k.end_label, k.name, vT))
        k('s_mov_b64 exec, 7')
        k('global_load_dword v236, v%d, %s' % (vT, sr(S_T, 2)))
        k('s_mov_b64 exec, -1')

    hook('A_pre')
    pre, post = START_ORDER.split('|')
    for ch in pre:
        warm() if ch == 'w' else dma_group(int(ch))
    k('v_mul_u32_u24 v%d, 18432, v3' % vT)
    k('v_lshl_add_u32 v%d, v2, 3, v%d' % (vT, vT))
    k('v_mov_b32 v%d, s%d' % (vT + 1, S_ONES))
    k('v_add_u32 v%d, %d, v%d' % (vT, A_LDS_X, vT))
    k('ds_write2_b32 v%d, v%d, v%d offset0:0 offset1:1' % (vT, vT + 1, vT + 1))
    hook('A_after_issue')

    k('v_lshlrev_b32 v%d, 9, v3' % vA0)
    k('v_bfe_u32 v%d, v1, 2, 2' % vT)
    k('v_lshl_add_u32 v%d, v%d, 6, v%d' % (vA0, vT, vA0))
    k('v_and_b32 v%d, 3, v1' % vT)
    k('v_lshl_add_u32 v%d, v%d, 3, v%d' % (vA0, vT, vA0))
    k('v_and_b32 v%d, 1, v3' % vT)
    k('v_lshlrev_b32 v%d, 5, v%d' % (vT, vT))
    k('v_add_u32 v%d, v%d, v%d' % (vA0, vA0, vT))
    k('v_add_u32 v%d, %d, v%d' % (vA0, A_LDS_W, vA0))
    k('v_xor_b32 v%d, 32, v%d' % (vA1, vA0))
    k('s_and_b32 s%d, s3, 1' % s_tmp)
    k('s_lshl_b32 s%d, s%d, 5' % (s_tmp, s_tmp))
    k('v_xor_b32 v%d, s%d, v%d' % (vH2, s_tmp, vA0))
    k('s_lshr_b32 s%d, s3, 1' % s_tmp)
    k('s_lshl_b32 s%d, s%d, 11' % (s_tmp, s_tmp))
    k('s_add_u32 s%d, s%d, 2048' % (s_tmp, s_tmp))
    k('v_add_u32 v%d, s%d, v%d' % (vH1, s_tmp, vH2))
    k('v_lshrrev_b32 v%d, 1, v2' % vT)
    k('v_xor_b32 v%d, v%d, v3' % (vT, vT))
    k('v_lshlrev_b32 v%d, 4, v%d' % (vT, vT))
    k('v_lshl_add_u32 v%d, v2, 7, v%d' % (vT, vT))
    k('v_add_u32 v%d, %d, v%d' % (vHe, A_LDS_X, vT))
    k('v_xor_b32 v%d, 64, v%d' % (vHo, vHe))
    k('v_add_u32 v%d, s%d, v%d' % (vRe, s_m0x, vT))
    k('v_xor_b32 v%d, 64, v%d' % (vRo, vRe))
    k('v_lshlrev_b32 v%d, 2, v3' % vT)
    k('v_sub_u32 v%d, v2, v%d' % (vT, vT))
    k('v_mov_b32 v%d, %s' % (vT + 2, f32(-1e30)))
    for which, base in ((16, BP), (0, BC)):
        for r in range(4):
            k('v_add_u32 v%d, %d, v%d' % (vT + 1, which - r, vT))
            k('v_and_b32 v%d, 0xfffffff1, v%d' % (vT + 1, vT + 1))
            k('v_cmp_eq_u32 vcc, 0, v%d' % (vT + 1))
            k('v_cndmask_b32 v%d, v%d, 0, vcc' % (base + r, vT + 2))
    k('s_or_b32 s%d, s%d, s3' % (s_tmp, s_rb))
    k('s_cmp_eq_u32 s%d, 0' % s_tmp)
    k('s_cselect_b64 vcc, -1, 0')
    for r in range(4):
        k('v_cndmask_b32 v%d, v%d, v%d, vcc' % (BPA + r, BP + r, vT + 2))
    for i in range(4):
        k('v_mov_b32 v%d, s%d' % (ONES + i, S_ONES))

    s_m = 88
    for i, mk in enumerate((0x22222222, 0x44444444, 0x88888888)):
        k('s_mov_b32 s%d, 0x%x' % (s_m + 2 * i, mk))
        k('s_mov_b32 s%d, 0x%x' % (s_m + 2 * i + 1, mk))
    vAd = 72
    k('v_lshlrev_b32 v%d, 4, v3' % vAd)
    k('s_lshl_b32 s%d, s3, 6' % s_tmp)
    k('v_add_u32 v%d, s%d, v%d' % (vAd + 1, s_tmp, vAd))
    k('s_and_b32 s%d, s%d, 64' % (s_tmp, s_tmp))
    k('v_add_u32 v%d, s%d, v%d' % (vAd + 2, s_tmp, vAd))
    k('s_mul_i32 s%d, s3, 384' % s_tmp)
    k('v_lshl_add_u32 v%d, v2, 2, s%d' % (vAd + 3, s_tmp))
    k('v_add_u32 v%d, s%d, v%d' % (vAd + 4, s_tmp, vAd))
    vK, vV = 80, 81
    k('s_and_b32 s%d, s3, 1' % s_tmp)
    k('s_lshl_b32 s%d, s%d, 3' % (s_tmp, s_tmp))
    k('v_add_u32 v%d, s%d, v4' % (vK, s_tmp))
    k('v_lshrrev_b32 v%d, 2, v2' % vV)
    k('v_lshlrev_b32 v%d, 8, v%d' % (vV, vV))
    k('v_lshl_add_u32 v%d, v3, 6, v%d' % (vV, vV))
    k('v_and_b32 v%d, 3, v2' % (vV + 1))
    k('v_lshl_add_u32 v%d, v%d, 1, v%d' % (vV, vV + 1, vV))
    k('v_add_u32 v%d, s%d, v%d' % (vV, s_tmp, vV))
    k('v_add_u32 v%d, 1024, v%d' % (vV, vV))
    k('s_cmp_lt_u32 s3, 2')
    k('s_cselect_b64 vcc, -1, 0')
    k('s_cselect_b32 s%d, 2, 16' % s_tmp)
    k('v_cndmask_b32 v%d, v%d, v%d, vcc' % (vK, vV, vK))
    k('v_add_u32 v%d, s%d, v%d' % (vK + 1, s_tmp, vK))
    k('v_add_u32 v%d, s%d, v%d' % (vK + 2, s_tmp, vK + 1))
    k('v_add_u32 v%d, s%d, v%d' % (vK + 3, s_tmp, vK + 2))
    k('v_lshlrev_b32 v%d, 2, v2' % (vAd + 5))
    k('s_lshl_b32 s%d, s3, 11' % s_tmp)
    k('v_add_u32 v%d, s%d, v4' % (vAd + 6, s_tmp))

    k('s_lshl_b32 s%d, s%d, 3' % (s_o0, s_rb))
    k('s_lshl_b32 s%d, s3, 1' % s_o1)
    k('s_add_u32 s%d, s%d, s%d' % (s_o0, s_o0, s_o1))
    k('s_lshl_b32 s%d, s%d, 4' % (s_o0, s_o0))
    k('s_add_u32 s%d, s%d, s%d' % (s_o0, s_o0, s_head))
    k('s_lshl_b32 s%d, s%d, 10' % (s_o0, s_o0))
    if OF_OFF:
        k('s_add_u32 s%d, s%d, 0x%x' % (s_o0, s_o0, OF_OFF))
    k('s_add_u32 s%d, s%d, 16384' % (s_o1, s_o0))

    frag_addr = [(vA0, 0), (vA1, 0), (vA0, 2048), (vA1, 2048), (vA0, 4096), (vA1, 4096), (vH1, 0), (vH2, 0)]

    def read_frag(f, j, h=None):
        va, off = frag_addr[f]
        o = (j % 8) * 6144 + off
        for hh in ((0, 1) if h is None else (h,)):
            k('ds_read_b64_tr_b16 %s, v%d offset:%d' % (vr(WF + 4 * f + 2 * hh, 2), va, o + 256 * hh))

    def read_x(j, blk=None):
        o = xslot(j // 2)
        for b_ in (range(3) if blk is None else (blk,)):
            if b_ < 2:
                k('ds_read_b128 %s, v%d offset:%d' % (vr(xreg(j, b_), 4), vRo if j & 1 else vRe, o + 2048 * b_))
            else:
                k('ds_read_b128 %s, v%d offset:%d' % (vr(xreg(j, 2), 4), vHo if j & 1 else vHe, o))

    for ch in post:
        warm() if ch == 'w' else dma_group(int(ch))
    T = XR
    RR = 132
    RH = 84
    HC = 224
    pre_ops = []

    def rr(blk):
        return RR + 2 * blk if blk < 2 else RH

    def cs_write():
        k('s_mov_b32 exec_lo, 0x00010001')
        k('s_mov_b32 exec_hi, 0x00010001')
        k('ds_write_b128 v%d, %s offset:%d' % (vAd + 1, vr(H1, 4), A_LDS_CS + 128))
        k('ds_write_b128 v%d, %s offset:%d' % (vAd + 2, vr(H2, 4), A_LDS_CS))
        k('s_mov_b64 exec, -1')

    def st_write():
        k('s_mov_b32 exec_lo, 0x00f0000f')
        k('s_mov_b32 exec_hi, 0xf0000f00')
        for blk in range(3):
            k('ds_write2_b32 v%d, v%d, v%d offset0:%d offset1:%d' % (vAd + 3, rr(blk), rr(blk) + 1,
                                                                   A_LDS_ST // 4 + 32 * blk, A_LDS_ST // 4 + 32 * blk + 16))
        k('s_mov_b64 exec, -1')

    def op(txt):
        pre_ops.append(lambda: k(txt))
    for i in range(3):
        for blk in range(3):
            op('v_cndmask_b32 v%d, v%d, v%d, %s' % (SQ + 4 * blk, SQ + 4 * blk, SQ + 4 * blk + 1 + i, sr(s_m + 2 * i, 2)))
    for blk in range(3):
        op('v_mul_f32 v%d, %s, v%d' % (rr(blk) + 1, f32(1.0 / D), SM + 4 * blk))
    for blk in range(3):
        op('v_mul_f32 v%d, v%d, v%d' % (rr(blk), rr(blk) + 1, rr(blk) + 1))
    for blk in range(3):
        op('v_mul_f32 v%d, %s, v%d' % (SQ + 4 * blk, f32(1.0 / D), SQ + 4 * blk))
    pre_ops.append(cs_write)
    for blk in range(3):
        op('v_sub_f32 v%d, v%d, v%d' % (rr(blk), SQ + 4 * blk, rr(blk)))
    for blk in range(3):
        op('v_max_f32 v%d, 0, v%d' % (rr(blk), rr(blk)))
    for blk in range(3):
        op('v_add_f32 v%d, %s, v%d' % (rr(blk), f32(1e-5), rr(blk)))
    for blk in range(3):
        op('v_rsq_f32 v%d, v%d' % (rr(blk), rr(blk)))
    pre_ops.append(st_write)
    for r in range(4):
        op('v_mov_b32_dpp v%d, v%d row_newbcast:0 row_mask:0xf bank_mask:0xf' % (HC + r, H1 + r))
    for r in range(4):
        op('v_fma_f32 v%d, -v%d, v%d, v%d' % (HC + r, HC + r, RH + 1, H1 + r))

    def keep_masks():
        k('s_cmp_eq_u32 s%d, 15' % s_head)
        k('s_cselect_b32 s%d, 0xffff0000, -1' % s_m)
        k('s_mov_b32 s%d, -1' % (s_m + 1))
        k('s_mov_b32 s%d, -1' % (s_m + 2))
        k('s_cselect_b32 s%d, -1, 0xffff' % (s_m + 3))
    pre_ops.append(keep_masks)

    stamp(k, 1)
    k.wait_tag('G0')
    k.wait_lg(0)
    k.barrier()
    stamp(k, 2)
    read_x(0)
    for f in range(8):
        read_frag(f, 0)
    dma_group(2, bg=True)
    k.lg_slack = 6
    for j in range(14):
        k.c('kstep %d' % j)
        if j + 1 < 14 and (j + 1) % 2 == 0:
            k.bg_flush()
            k.wait_tag('G%d' % ((j + 1) // 2))
            k.barrier()
            if (j + 5) // 2 < 7:
                dma_group((j + 5) // 2, bg=True)
            hook('A_b%d' % j)
        mf = []
        for f in range(8):
            w = vr(WF + 4 * f, 4)
            if f < 6:
                for blk in range(2):
                    a = vr(acc(blk, f), 4)
                    x = vr(xreg(j, blk), 4)
                    c = '0' if j == 0 else a
                    if f < 4:
                        mf.append(('v_mfma_f32_16x16x32_bf16 %s, %s, %s, %s' % (a, w, x, c), f if blk else -1))
                    else:
                        mf.append(('v_mfma_f32_16x16x32_bf16 %s, %s, %s, %s' % (a, x, w, c), f if blk else -1))
            else:
                a = vr(H1 if f == 6 else H2, 4)
                c = '0' if j == 0 else a
                mf.append(('v_mfma_f32_16x16x32_bf16 %s, %s, %s, %s' % (a, w, vr(xreg(j, 2), 4), c), f))
        for f in range(EXP_NSTAT):
            x = vr(xreg(j, f % 3), 4)
            a = vr((SQ if f < 3 else SM) + 4 * (f % 3), 4)
            mf.append(('v_mfma_f32_16x16x32_bf16 %s, %s, %s, %s' % (a, x if f < 3 else vr(ONES, 4), x, '0' if j == 0 else a), -1))
        fill = []
        if j + 1 < 14:
            fill += [lambda i=i: read_x(j + 1, i) for i in range(3)]
        if j == 13:
            mf = mf[14:] + mf[12:14] + mf[4:12] + mf[0:4]
        for i, (txt, done) in enumerate(mf):
            k(txt)
            if j == 13 and i >= 8:
                for f_ in pre_ops[:3]:
                    f_()
                del pre_ops[:3]
            if done >= 0 and j + 1 < 14 and done < EXP_NFRAG:
                fill += [lambda f=done, h=h: read_frag(f, j + 1, h) for h in range(2)]
            if fill:
                fill.pop(0)()
            if i % 5 == 4:
                k.bg()
        for f_ in fill:
            f_()
        if j == 6:
            stamp(k, 3)

        hook('A_k%d' % j)

    k.lg_slack = 0
    k.c('---- phase A epilogue')
    stamp(k, 4)
    for f_ in pre_ops:
        f_()
    k.wait_lg(0)
    k.barrier()
    stamp(k, 7)
    hook('A_e1')
    CS = T + 32
    CSV = T + 48
    L2 = T + 16
    for blk in (1, 2, 0):
        k('ds_read_b32 v%d, v%d offset:%d' % (rr(blk), vAd + 3, A_LDS_ST + 128 * blk))
    for s_ in (2, 3):
        k('ds_read_b128 %s, v%d offset:%d' % (vr(CS + 4 * s_, 4), vAd, A_LDS_CS + 64 * s_))
    k('ds_read_b32 v%d, v%d offset:%d' % (CSV, vAd + 5, A_LDS_CS + 256))
    k('ds_read_b32 v%d, v%d offset:%d' % (CSV + 1, vAd + 5, A_LDS_CS + 320))
    for blk in (1, 0):
        k('ds_read_b128 %s, v%d offset:%d' % (vr(L2 + 8 * blk + 4, 4), vAd + 4, A_LDS_ST + blk * 128 + 64))
        k('ds_read_b128 %s, v%d offset:%d' % (vr(L2 + 8 * blk, 4), vAd + 4, A_LDS_ST + blk * 128))
    for s_ in (0, 1):
        k('ds_read_b128 %s, v%d offset:%d' % (vr(CS + 4 * s_, 4), vAd, A_LDS_CS + 64 * s_))
    RQ = T + 52
    qs = (DH ** -0.5) * 1.4426950408889634
    QT = T + 72
    KT = T + 80
    VV = T + 92

    def fix_qk(blk, nbi, scale_reg, dst):
        a = acc(blk, nbi)
        hi = scale_reg & 1
        for r in (0, 2):
            k('v_pk_fma_f32 %s, %s, %s, %s op_sel:[0,1,0] op_sel_hi:[1,1,1] neg_lo:[0,1,0] neg_hi:[0,1,0]' % (
                vr(a + r, 2), vr(CS + 4 * nbi + r, 2), vr(RR + 2 * blk, 2), vr(a + r, 2)))
        for r in (0, 2):
            k('v_pk_mul_f32 %s, %s, %s op_sel:[0,%d] op_sel_hi:[1,%d]' % (vr(a + r, 2), vr(a + r, 2), vr(scale_reg - hi, 2), hi, hi))
        k('v_cvt_pk_bf16_f32 v%d, v%d, v%d' % (dst, a, a + 1))
        k('v_cvt_pk_bf16_f32 v%d, v%d, v%d' % (dst + 1, a + 2, a + 3))
        k.bg()

    def fix_v(blk, nb):
        a = acc(blk, 4 + nb)
        for r in (0, 2):
            k('v_pk_fma_f32 %s, %s, %s, %s op_sel:[0,%d,0] op_sel_hi:[1,%d,1] neg_lo:[0,1,0] neg_hi:[0,1,0]' % (
                vr(a + r, 2), vr(L2 + 8 * blk + 4 + r, 2), vr(CSV, 2), vr(a + r, 2), nb, nb))
        for r in (0, 2):
            k('v_pk_mul_f32 %s, %s, %s' % (vr(a + r, 2), vr(a + r, 2), vr(L2 + 8 * blk + r, 2)))
        dst = VV + 6 * nb + 2 + 2 * blk
        k('v_cvt_pk_bf16_f32 v%d, v%d, v%d' % (dst, a, a + 1))
        k('v_cvt_pk_bf16_f32 v%d, v%d, v%d' % (dst + 1, a + 2, a + 3))
        k.bg()

    fix_qk(1, 2, RR + 2, KT + 8)
    fix_qk(1, 3, RR + 2, KT + 10)
    k('ds_write_b128 v%d, %s offset:%d' % (vAd + 6, vr(KT + 8, 4), A_LDS_KV + 2048))
    for r in (0, 2):
        k('v_pk_mul_f32 %s, %s, %s op_sel_hi:[1,0]' % (vr(HC + r, 2), vr(HC + r, 2), vr(RH, 2)))
    k('v_cvt_pk_bf16_f32 v%d, v%d, v%d' % (HC, HC, HC + 1))
    k('v_cvt_pk_bf16_f32 v%d, v%d, v%d' % (HC + 2, HC + 2, HC + 3))
    k('ds_write_b16 v%d, v%d offset:%d' % (vK, HC, A_LDS_KV))
    k('ds_write_b16_d16_hi v%d, v%d offset:%d' % (vK + 1, HC, A_LDS_KV))
    k('ds_write_b16 v%d, v%d offset:%d' % (vK + 2, HC + 2, A_LDS_KV))
    k('ds_write_b16_d16_hi v%d, v%d offset:%d' % (vK + 3, HC + 2, A_LDS_KV))
    fix_v(1, 0)
    fix_v(1, 1)
    k('ds_write_b64 v%d, %s offset:%d' % (vAd + 6, vr(VV + 4, 2), A_LDS_KV + 2048 + 1024))
    k('ds_write_b64 v%d, %s offset:%d' % (vAd + 6, vr(VV + 10, 2), A_LDS_KV + 2048 + 1024 + 8))
    for blk in range(2):
        k('v_mul_f32 v%d, %s, v%d' % (RQ + 2 * blk, f32(qs), RR + 2 * blk))
    for blk in range(2):
        k('v_cndmask_b32 v%d, 0, v%d, %s' % (RQ + 2 * blk + 1, RQ + 2 * blk, sr(s_m + 2, 2)))
        k('v_cndmask_b32 v%d, 0, v%d, %s' % (RQ + 2 * blk, RQ + 2 * blk, sr(s_m, 2)))
    fix_qk(0, 2, RR + 0, KT + 4)
    fix_qk(0, 3, RR + 0, KT + 6)
    k.wait_lg(0)
    k.barrier()
    stamp(k, 8)
    k('ds_read_b128 %s, v%d offset:%d' % (vr(KT, 4), vAd + 6, A_LDS_KV))
    k('ds_read_b64 %s, v%d offset:%d' % (vr(VV, 2), vAd + 6, A_LDS_KV + 1024))
    k('ds_read_b64 %s, v%d offset:%d' % (vr(VV + 6, 2), vAd + 6, A_LDS_KV + 1024 + 8))
    fix_qk(1, 0, RQ + 2, QT + 4)
    fix_qk(1, 1, RQ + 3, QT + 6)
    SS = T
    k('v_mfma_f32_16x16x32_bf16 %s, %s, %s, %s' % (vr(SS + 8, 4), vr(KT + 4, 4), vr(QT + 4, 4), vr(BP, 4)))
    k('v_mfma_f32_16x16x32_bf16 %s, %s, %s, %s' % (vr(SS + 12, 4), vr(KT + 8, 4), vr(QT + 4, 4), vr(BC, 4)))
    fix_qk(0, 0, RQ + 0, QT + 0)
    fix_qk(0, 1, RQ + 1, QT + 2)
    k('v_mfma_f32_16x16x32_bf16 %s, %s, %s, %s' % (vr(SS + 0, 4), vr(KT + 0, 4), vr(QT, 4), vr(BPA, 4)))
    k('v_mfma_f32_16x16x32_bf16 %s, %s, %s, %s' % (vr(SS + 4, 4), vr(KT + 4, 4), vr(QT, 4), vr(BC, 4)))
    fix_v(0, 0)
    fix_v(0, 1)
    MX = ACC
    TM = ACC + 2
    for blk in (1, 0):
        s_ = SS + 8 * blk
        k('v_max3_f32 v%d, v%d, v%d, v%d' % (MX + blk, s_, s_ + 1, s_ + 2))
        k('v_max3_f32 v%d, v%d, v%d, v%d' % (TM + blk, s_ + 3, s_ + 4, s_ + 5))
        k('v_max3_f32 v%d, v%d, v%d, v%d' % (MX + blk, MX + blk, s_ + 6, s_ + 7))
        k('v_max_f32 v%d, v%d, v%d' % (MX + blk, MX + blk, TM + blk))
    k.bg()
    xgroup_reduce(k, [MX, MX + 1], [TM, TM + 1], op='v_max_f32')
    k.bg_flush()
    stamp(k, 9)
    SUM = ACC + 4
    PP = ACC + 8
    OO = ACC + 16
    for blk in (1, 0):
        s_ = SS + 8 * blk
        for i in range(0, 8, 2):
            k('v_pk_add_f32 %s, %s, %s op_sel:[0,%d] op_sel_hi:[1,%d] neg_lo:[0,1] neg_hi:[0,1]' % (vr(s_ + i, 2), vr(s_ + i, 2), vr(MX, 2), blk, blk))
        for i in range(8):
            k('v_exp_f32 v%d, v%d' % (s_ + i, s_ + i))
        for i in range(4):
            k('v_cvt_pk_bf16_f32 v%d, v%d, v%d' % (PP + 4 * blk + i, s_ + 2 * i, s_ + 2 * i + 1))
        for nb in range(2):
            k('v_mfma_f32_16x16x32_bf16 %s, %s, %s, 0' % (vr(OO + 8 * blk + 4 * nb, 4), vr(VV + 6 * nb + 2 * blk, 4),
                                                          vr(PP + 4 * blk, 4)))
    for blk in range(2):
        s_ = SS + 8 * blk
        k('v_pk_add_f32 %s, %s, %s' % (vr(s_, 2), vr(s_, 2), vr(s_ + 2, 2)))
        k('v_pk_add_f32 %s, %s, %s' % (vr(s_ + 4, 2), vr(s_ + 4, 2), vr(s_ + 6, 2)))
    for blk in range(2):
        s_ = SS + 8 * blk
        k('v_pk_add_f32 %s, %s, %s' % (vr(s_, 2), vr(s_, 2), vr(s_ + 4, 2)))
    for blk in range(2):
        s_ = SS + 8 * blk
        k('v_add_f32 v%d, v%d, v%d' % (SUM + 2 * blk, s_, s_ + 1))
    xgroup_reduce(k, [SUM, SUM + 2], [TM, TM + 1])
    for blk in range(2):
        k('v_rcp_f32 v%d, v%d' % (SUM + 2 * blk, SUM + 2 * blk))
    for blk in range(2):
        k('v_cndmask_b32 v%d, 0, v%d, %s' % (SUM + 2 * blk + 1, SUM + 2 * blk, sr(s_m + 2, 2)))
        k('v_cndmask_b32 v%d, 0, v%d, %s' % (SUM + 2 * blk, SUM + 2 * blk, sr(s_m, 2)))
    for blk in range(2):
        o = OO + 8 * blk
        for r in (0, 2):
            k('v_pk_mul_f32 %s, %s, %s op_sel_hi:[1,0]' % (vr(o + r, 2), vr(o + r, 2), vr(SUM + 2 * blk, 2)))
        for r in (0, 2):
            k('v_pk_mul_f32 %s, %s, %s op_sel:[0,1] op_sel_hi:[1,1]' % (vr(o + 4 + r, 2), vr(o + 4 + r, 2), vr(SUM + 2 * blk, 2)))
        p = PP + 4 * blk
        for i in range(4):
            k('v_cvt_pk_bf16_f32 v%d, v%d, v%d' % (p + i, o + 2 * i, o + 2 * i + 1))
        k('buffer_store_dwordx4 %s, v4, %s, s%d offen %s' % (vr(p, 4), srd(SRD_WS), s_o0 if blk == 0 else s_o1, sc1), tag='ost')


STAMP_OFF = 0xA00000


DST = {5: 1, 10: 2, 15: 3, 16: 4, 22: 5, 24: 6, 29: 7}


def dstamp(k, idx, vtmp=253, stmp=74):
    if idx not in DST and idx != 0:
        return
    slot = DST.get(idx, 0)
    k('s_memrealtime %s' % sr(stmp, 2))
    k('s_cmp_eq_u32 s2, 131')
    k('s_cselect_b32 s%d, %d, %s' % (stmp + 4, 32 + 4 * slot, '0x%x' % OOB))
    if slot:
        k('s_cmp_eq_u32 s2, 0')
        k('s_cselect_b32 s%d, %d, s%d' % (stmp + 4, 4 * slot, stmp + 4))
    k('v_mov_b32 v%d, s%d' % (vtmp + 2, stmp + 4))
    k('v_mov_b32 v%d, s%d' % (vtmp, stmp))
    k('s_cmp_eq_u32 s3, 0')
    k('s_cselect_b64 exec, 1, 0')
    k('buffer_store_dword v%d, v%d, %s, 0 offen' % (vtmp, vtmp + 2, srd(SRD_DBG)))
    k('s_mov_b64 exec, -1')


def stamp(k, idx, vtmp=253, stmp=74):
    if idx >= 32 or (STAMP_SET is not None and idx not in STAMP_SET):
        return
    if getattr(k, 'stamps', False) == 'dbg':
        return dstamp(k, idx, vtmp, stmp)
    if not getattr(k, 'stamps', False):
        return
    k('s_memrealtime %s' % sr(stmp, 2))
    k('s_memtime %s' % sr(stmp + 2, 2))
    k('s_lshl_b32 s%d, s2, 2' % (stmp + 4))
    k('s_add_u32 s%d, s%d, s3' % (stmp + 4, stmp + 4))
    k('s_lshl_b32 s%d, s%d, 7' % (stmp + 4, stmp + 4))
    k('s_add_u32 s%d, s%d, 0x%x' % (stmp + 4, stmp + 4, STAMP_OFF + 4 * idx))
    k('v_mov_b32 v%d, s%d' % (vtmp, stmp))
    k('v_mov_b32 v%d, s%d' % (vtmp + 1, stmp + 2))
    k('v_mov_b32 v%d, 0' % (vtmp + 2))
    k('s_mov_b64 exec, 1')
    k('buffer_store_dword v%d, v%d, %s, s%d offen' % (vtmp, vtmp + 2, srd(SRD_WS), stmp + 4))
    k('s_add_u32 s%d, s%d, 0x20000' % (stmp + 4, stmp + 4))
    k('buffer_store_dword v%d, v%d, %s, s%d offen' % (vtmp + 1, vtmp + 2, srd(SRD_WS), stmp + 4))
    k('s_mov_b64 exec, -1')


def spin_guard(k):
    k('s_sub_u32 s%d, s%d, 1' % (S_SPIN, S_SPIN))
    k('s_cbranch_scc1 %s' % k.end_label)


def epoch_publish(k, vt):
    k('s_memrealtime %s' % sr(S_T, 2))
    k('v_mov_b32 v%d, 0' % (vt + 1))
    k('s_or_b32 s%d, s%d, 1' % (S_T, S_T))
    k('v_mov_b32 v%d, s%d' % (vt, S_T))
    k('s_or_b32 s%d, s2, s3' % S_T)
    k('s_cmp_eq_u32 s%d, 0' % S_T)
    k('s_cselect_b64 exec, 1, 0')
    k('buffer_store_dword v%d, v%d, %s, 0 offen sc1' % (vt, vt + 1, srd(SRD_DBG)))
    k('s_mov_b64 exec, -1')


def epoch_load(k, vt):
    k('v_mov_b32 v%d, 0' % (vt + 1))
    k('buffer_load_dword v%d, v%d, %s, 0 offen sc1' % (vt, vt + 1, srd(SRD_DBG)))


def epoch_get(k, vt):
    L = k.newlabel('Lepg')
    done = k.newlabel('Lepd')
    k('v_readfirstlane_b32 s%d, v%d' % (S_EPOCH, vt))
    k('s_cmp_lg_u32 s%d, 0' % S_EPOCH)
    k.branch_fwd('s_cbranch_scc1', done)
    k.loop_label(L)
    spin_guard(k)
    k('buffer_load_dword v%d, v%d, %s, 0 offen sc1' % (vt, vt + 1, srd(SRD_DBG)))
    k.force_wait(vm=0)
    k('v_readfirstlane_b32 s%d, v%d' % (S_EPOCH, vt))
    k('s_cmp_eq_u32 s%d, 0' % S_EPOCH)
    k('s_cbranch_scc1 %s' % L)
    k.label(done)


FLAG_A = FLAG_OFF
FLAG_B = FLAG_OFF + 0x20000
FLAG_C = FLAG_OFF + 0x28000


def flag_store(k, vt, s_off):
    k('v_mov_b32 v%d, s%d' % (vt, S_EPOCH))
    k('s_mov_b64 exec, 1')
    k('buffer_store_dword v%d, v%d, %s, s%d offen sc1' % (vt, vt + 1, srd(SRD_WS), s_off))
    if DBL & 2:
        k('buffer_store_dword v%d, v%d, %s, s%d offen' % (vt, vt + 1, srd(SRD_WS), s_off))
    k('s_mov_b64 exec, -1')


POLL_DEPTH = 3
POLL_GAP = 3
CD2 = True
DBL = 0
STAMP_SET = None
S_WR, S_HV = 56, 57
EXP_NSTAT = 6
EXP_NFRAG = 8
POLL_SLEEP = 0
WO_LATE = False
START_ORDER = '01w|'
AGENT_DEPTH = 2
ST_SLEEP = 0
V_POLL = 249


def flag_poll(k, vt, voff, s_off):
    L = k.newlabel('Lpoll')
    done = k.newlabel('Lpd')
    n = POLL_DEPTH

    def ld(i):
        return k('buffer_load_dword v%d, v%d, %s, s%d offen sc1' % (V_POLL + i, voff, srd(SRD_WS), s_off))
    for i in range(n - 1):
        ld(i)
        k('s_sleep %d' % POLL_GAP)
    k.loop_label(L)
    spin_guard(k)
    last = []
    for i in range(n):
        k.vm = []
        if POLL_SLEEP:
            k('s_sleep %d' % POLL_SLEEP)
        last.append(ld((i + n - 1) % n))
        k._emit(classify('s_waitcnt vmcnt(%d)' % (n - 1)))
        k.vm = []
        k('v_cmp_ne_u32 vcc, s%d, v%d' % (S_EPOCH, V_POLL + i))
        if i < n - 1:
            k('s_cbranch_vccz %s' % done)
        else:
            k('s_cbranch_vccnz %s' % L)
    k.fence()
    k.raw(done + ':')
    k.vm = list(last)


class B:
    s_tmp, s_wbase, s_t2, s_x = 58, 59, 60, 61
    s_dma = 73
    vWo, vR0, vR1 = 208, 209, 210
    ACC = 192
    OFR = 32
    T = 64
    HK = 240


def B_setup(k):
    b, g = B, G
    k.c('---- phase B setup')
    t = TMP
    k('v_lshrrev_b32 v%d, 3, v1' % t)
    k('v_mul_u32_u24 v%d, 896, v%d' % (b.vWo, t))
    k('v_and_b32 v%d, 1, v3' % t)
    k('v_lshlrev_b32 v%d, 2, v%d' % (t, t))
    k('v_and_b32 v%d, 7, v1' % (t + 1))
    k('v_xor_b32 v%d, v%d, v%d' % (t, t, t + 1))
    k('v_lshl_add_u32 v%d, v%d, 4, v%d' % (b.vWo, t, b.vWo))
    k('s_lshl_b32 s%d, s%d, 7' % (b.s_tmp, g.s_dtD))
    k('s_mul_i32 s%d, s3, %d' % (b.s_t2, 112 * 896))
    k('s_add_u32 s%d, s%d, s%d' % (b.s_tmp, b.s_tmp, b.s_t2))
    k('v_add_u32 v%d, s%d, v%d' % (b.vWo, b.s_tmp, b.vWo))
    k('s_mul_i32 s%d, s3, %d' % (b.s_wbase, 112 * 128))
    k('s_add_u32 s%d, s%d, %d' % (b.s_wbase, b.s_wbase, LDS_WO))
    k('v_lshrrev_b32 v%d, 5, v1' % t)
    k('v_lshlrev_b32 v%d, 9, v%d' % (b.vR0, t))
    k('v_bfe_u32 v%d, v1, 2, 2' % t)
    k('v_lshl_add_u32 v%d, v%d, 7, v%d' % (b.vR0, t, b.vR0))
    k('v_lshrrev_b32 v%d, 1, v%d' % (t, t))
    k('s_and_b32 s%d, s3, 1' % b.s_tmp)
    k('v_xor_b32 v%d, s%d, v%d' % (t, b.s_tmp, t))
    k('v_lshl_add_u32 v%d, v%d, 6, v%d' % (b.vR0, t, b.vR0))
    k('v_and_b32 v%d, 1, v3' % t)
    k('v_lshl_add_u32 v%d, v%d, 5, v%d' % (b.vR0, t, b.vR0))
    k('v_and_b32 v%d, 3, v1' % t)
    k('v_lshl_add_u32 v%d, v%d, 3, v%d' % (b.vR0, t, b.vR0))
    k('v_add_u32 v%d, %d, v%d' % (b.vR0, LDS_WO, b.vR0))


def B_wo_dma(k):
    b = B

    def one(i):
        k('s_add_u32 m0, s%d, %d' % (b.s_wbase, i * 1024))
        k('s_mov_b32 s%d, %d' % (b.s_dma, 8 * i * 896))
        k('buffer_load_dwordx4 v%d, %s, s%d offen lds' % (b.vWo, srd(SRD_WO), b.s_dma), tag='wo')
    for i in range(14):
        k.bg_push(lambda i=i: one(i))


def B_wo_read(k, abase):
    b = B
    for h in range(16):
        for ks in range(2):
            a = abase + 8 * h + 4 * ks
            o = h * 3584 + ks * 1024 - (512 if h == 15 else 0)
            k('ds_read_b64_tr_b16 %s, v%d offset:%d' % (ar(a, 2), b.vR0, o))
            k('ds_read_b64_tr_b16 %s, v%d offset:%d' % (ar(a + 2, 2), b.vR0, o + 2048))


def B_xinit(k):
    b, g = B, G
    t = TMP + 2
    k('v_lshrrev_b32 v%d, 5, v1' % t)
    k('v_mul_u32_u24 v%d, %d, v%d' % (t, 4 * 896, t))
    k('v_and_b32 v%d, 31, v1' % (t + 1))
    k('v_lshl_add_u32 v%d, v%d, 1, v%d' % (t, t + 1, t))
    k('s_lshl_b32 s%d, s%d, 1' % (b.s_tmp, g.s_st))
    k('s_lshr_b32 s%d, s3, 1' % b.s_t2)
    k('s_add_u32 s%d, s%d, s%d' % (b.s_tmp, b.s_tmp, b.s_t2))
    k('s_mul_i32 s%d, s%d, %d' % (b.s_tmp, b.s_tmp, 32 * 896))
    k('s_lshl_b32 s%d, s%d, 7' % (b.s_t2, g.s_dtD))
    k('s_add_u32 s%d, s%d, s%d' % (b.s_tmp, b.s_tmp, b.s_t2))
    k('s_and_b32 s%d, s3, 1' % b.s_t2)
    k('s_lshl_b32 s%d, s%d, 6' % (b.s_t2, b.s_t2))
    k('s_add_u32 s%d, s%d, s%d' % (b.s_tmp, b.s_tmp, b.s_t2))
    for q in range(4):
        for r in range(4):
            k('buffer_load_ushort v%d, v%d, %s, s%d offen offset:%d' % (b.ACC + 4 * q + r, t, srd(SRD_X), b.s_tmp, r * 896))
        if q < 3:
            k('s_add_u32 s%d, s%d, %d' % (b.s_tmp, b.s_tmp, 8 * 896))


def B_xinit_finish(k):
    b = B
    for i in range(16):
        k('v_lshlrev_b32 v%d, 16, v%d' % (b.ACC + i, b.ACC + i))


def B_main(k, abase, lds_small, sc1='', hooks=None):
    b, g = B, G
    t = b.T
    k.c('---- phase B main')
    hooks = hooks or {}

    def hook(name):
        if name in hooks:
            hooks[name]()
    k('s_lshl_b32 s%d, s%d, 16' % (b.s_tmp, g.s_st))
    k('s_lshl_b32 s%d, s3, 14' % b.s_t2)
    k('s_add_u32 s%d, s%d, s%d' % (b.s_tmp, b.s_tmp, b.s_t2))
    if OF_OFF:
        k('s_add_u32 s%d, s%d, 0x%x' % (b.s_tmp, b.s_tmp, OF_OFF))
    for i in range(16):
        if i % 4 == 0:
            k('s_add_u32 m0, s%d, %d' % (g.s_stage, i * 1024))
            if i:
                k('s_add_u32 s%d, s%d, 4096' % (b.s_tmp, b.s_tmp))
        k('buffer_load_dwordx4 v4, %s, s%d offen offset:%d %s lds' % (srd(SRD_WS), b.s_tmp, (i % 4) * 1024, sc1), tag='of%d' % (i // 8))
    k('v_and_b32 v%d, 1, v3' % t)
    k('v_mul_u32_u24 v%d, %d, v%d' % (t, STG_SZ, t))
    k('v_lshl_add_u32 v%d, v2, 4, v%d' % (t, t))
    k('v_lshrrev_b32 v%d, 5, v1' % (t + 1))
    k('v_lshl_add_u32 v%d, v%d, 8, v%d' % (t, t + 1, t))
    k('s_lshr_b32 s%d, s3, 1' % b.s_t2)
    k('s_mul_i32 s%d, s%d, %d' % (b.s_t2, b.s_t2, 2 * STG_SZ))
    k('s_add_u32 s%d, s%d, %d' % (b.s_t2, b.s_t2, LDS_STG))
    k('v_add_u32 v%d, s%d, v%d' % (t, b.s_t2, t))
    hook('B_after_of')
    a = vr(b.ACC, 16)

    def rd(i):
        k('ds_read_b128 %s, v%d offset:%d' % (vr(b.OFR + 4 * (i % 8), 4), t, i * 512))
    for half in range(2):
        k.wait_tag('of%d' % half)
        k.barrier()
        if half == 0:
            stamp(k, 11)
        for i in range(16 * half, 16 * half + (6 if half == 0 else 2)):
            rd(i)
        for i in range(16 * half - (4 if half else 0), 16 * half + (12 if half == 0 else 16)):
            k('v_mfma_f32_32x32x16_bf16 %s, %s, %s, %s' % (a, vr(b.OFR + 4 * (i % 8), 4), ar(abase + 4 * i, 4), a))
            if i + 6 < 16 * half + 16 and i + 6 >= 16 * half + (6 if half == 0 else 2):
                rd(i + 6)
            if i % 3 == 0:
                k.bg()
    stamp(k, 12)
    Q = t + 4
    V = t + 20
    A = b.ACC
    for i in range(0, 16, 2):
        k('v_pk_mul_f32 %s, %s, %s' % (vr(Q + i, 2), vr(A + i, 2), vr(A + i, 2)))
    def src(base, q, idx):
        r = ((idx & 1) << 1) | (idx >> 1)
        return base + 4 * q + r
    for base, dst in ((A, V), (Q, V + 8)):
        k.bg()
        for q in range(4):
            for p in range(2):
                x = src(base, q, 2 * p)
                k('v_add_f32_dpp v%d, v%d, v%d row_mirror row_mask:0xf bank_mask:0x3' % (dst + 2 * q + p, x, x))
    for base, dst in ((A, V), (Q, V + 8)):
        k.bg()
        for q in range(4):
            for p in range(2):
                x = src(base, q, 2 * p + 1)
                k('v_add_f32_dpp v%d, v%d, v%d row_mirror row_mask:0xf bank_mask:0xc' % (dst + 2 * q + p, x, x))
    k.bg(2)
    for i in range(8):
        k('v_add_f32_dpp v%d, v%d, v%d row_half_mirror row_mask:0xf bank_mask:0x5' % (V + 2 * i, V + 2 * i, V + 2 * i))
    for i in range(8):
        k('v_add_f32_dpp v%d, v%d, v%d row_half_mirror row_mask:0xf bank_mask:0xa' % (V + 2 * i, V + 2 * i + 1, V + 2 * i + 1))
    for i in range(8):
        k('v_add_f32_dpp v%d, v%d, v%d quad_perm:[1,0,3,2] row_mask:0xf bank_mask:0xf' % (V + 2 * i + 1, V + 2 * i, V + 2 * i))
    U = Q
    k.bg(2)
    for i in range(8):
        k('v_add_f32_dpp v%d, v%d, v%d quad_perm:[2,3,0,1] row_mask:0xf bank_mask:0xf' % (U + i, V + 2 * i + 1, V + 2 * i + 1))
    for kind in range(2):
        for i in range(2):
            k('v_permlane16_swap_b32 v%d, v%d' % (U + 4 * kind + 2 * i, U + 4 * kind + 2 * i + 1))
    W_ = V
    for i in range(2):
        for kind in range(2):
            k('v_add_f32 v%d, v%d, v%d' % (W_ + 2 * i + kind, U + 4 * kind + 2 * i, U + 4 * kind + 2 * i + 1))
    k.bg_flush()
    vA, vC, vG = t + 1, t + 2, t + 3
    k('v_and_b32 v%d, 1, v3' % vA)
    k('v_lshlrev_b32 v%d, 6, v%d' % (vA, vA))
    k('v_lshrrev_b32 v%d, 5, v1' % vC)
    k('v_lshl_add_u32 v%d, v%d, 5, v%d' % (vA, vC, vA))
    k('v_bfe_u32 v%d, v1, 2, 2' % vG)
    k('v_lshl_add_u32 v%d, v%d, 3, v%d' % (vA, vG, vA))
    k('s_lshl_b32 s%d, s3, 8' % b.s_tmp)
    k('v_add_u32 v%d, s%d, v%d' % (vA, b.s_tmp, vA))
    k('ds_write_b64 v%d, %s offset:%d' % (vA, vr(W_, 2), lds_small))
    k('ds_write_b64 v%d, %s offset:%d' % (vA, vr(W_ + 2, 2), lds_small + 128))
    k('v_and_b32 v%d, 31, v1' % vG)
    k('v_lshlrev_b32 v%d, 9, v%d' % (vA, vC))
    k('v_lshl_add_u32 v%d, v%d, 4, v%d' % (vA, vG, vA))
    k('v_lshlrev_b32 v%d, 8, v%d' % (vC, vC))
    k('v_lshl_add_u32 v%d, v%d, 3, v%d' % (vC, vG, vC))
    k('s_and_b32 s%d, s%d, 512' % (b.s_tmp, b.s_tmp))
    k('v_add_u32 v%d, s%d, v%d' % (vC, b.s_tmp, vC))
    k('s_lshl_b32 s%d, s%d, 1' % (b.s_tmp, g.s_st))
    k('s_lshr_b32 s%d, s3, 1' % b.s_t2)
    k('s_add_u32 s%d, s%d, s%d' % (b.s_tmp, b.s_tmp, b.s_t2))
    k('s_lshl_b32 s%d, s%d, 12' % (b.s_tmp, b.s_tmp))
    k('s_add_u32 s%d, s%d, 0x%x' % (b.s_tmp, b.s_tmp, STAT_OFF))
    k('s_lshl_b32 s%d, s%d, 9' % (b.s_t2, g.s_dtD))
    k('s_add_u32 s%d, s%d, s%d' % (b.s_t2, b.s_t2, b.s_tmp))
    stamp(k, 23)
    k.wait_lg(0)
    k.barrier()
    k('ds_read_b64 %s, v%d offset:%d' % (vr(V, 2), vC, lds_small))
    G_ = V + 4
    k('v_mov_b32 v%d, s%d' % (G_ + 1, S_EPOCH))
    k('v_mov_b32 v%d, s%d' % (G_ + 3, S_EPOCH))
    k('v_mov_b32 v%d, v%d' % (G_, V))
    k('v_mov_b32 v%d, v%d' % (G_ + 2, V + 1))
    k('v_permlane32_swap_b32 v%d, v%d' % (G_, V))
    k('v_permlane32_swap_b32 v%d, v%d' % (G_ + 2, V + 1))
    k('v_add_f32 v%d, v%d, v%d' % (G_, G_, V))
    k('v_add_f32 v%d, v%d, v%d' % (G_ + 2, G_ + 2, V + 1))
    k('s_bitcmp0_b32 s3, 0')
    k('s_cselect_b32 exec_lo, -1, 0')
    k('s_mov_b32 exec_hi, 0')
    k('buffer_store_dwordx4 %s, v%d, %s, s%d offen sc1' % (vr(G_, 4), vA, srd(SRD_WS), b.s_t2))
    if DBL & 1:
        k('buffer_store_dwordx4 %s, v%d, %s, s%d offen' % (vr(G_, 4), vA, srd(SRD_WS), b.s_t2))
    k('s_mov_b64 exec, -1')
    for i in range(8):
        k('v_cvt_pk_bf16_f32 v%d, v%d, v%d' % (b.HK + i, A + 2 * i, A + 2 * i + 1))
    k('s_lshl_b32 s%d, s%d, 1' % (b.s_x, g.s_dtD))
    k('s_and_b32 s%d, s3, 1' % b.s_t2)
    k('s_add_u32 s%d, s%d, s%d' % (b.s_x, b.s_x, b.s_t2))
    k('s_lshl_b32 s%d, s%d, 7' % (b.s_x, b.s_x))
    k('s_lshl_b32 s%d, s%d, 2' % (b.s_t2, g.s_st))
    k('s_add_u32 s%d, s%d, s%d' % (b.s_x, b.s_x, b.s_t2))
    k('s_and_b32 s%d, s3, 2' % b.s_t2)
    k('s_add_u32 s%d, s%d, s%d' % (b.s_x, b.s_x, b.s_t2))
    k('s_lshl_b32 s%d, s%d, 10' % (b.s_x, b.s_x))
    k('s_add_u32 s%d, s%d, 0x%x' % (b.s_x, b.s_x, HH_OFF))
    k('v_lshlrev_b32 v%d, 4, v%d' % (vC, vG))
    k('v_cmp_gt_u32 %s, 32, v1' % sr(S_T, 2))
    hook('B_before_poll')
    stamp(k, 31)
    P0 = t + 32
    L = k.newlabel('Lst')
    done = k.newlabel('Lstd')
    Sx, Qx = t + 64, t + 66

    def ld(s_):
        r = []
        for i in range(4):
            r.append(k('buffer_load_dwordx4 %s, v%d, %s, s%d offen offset:%d sc1' % (
                vr(P0 + 16 * s_ + 4 * i, 4), vA if i < 3 else vC, srd(SRD_WS), b.s_tmp, i * 1024)))
        return r
    ld(0)
    k('s_sleep 5')
    k.loop_label(L)
    spin_guard(k)
    last = []
    for s_ in range(2):
        k.vm = []
        if ST_SLEEP:
            k('s_sleep %d' % ST_SLEEP)
        last += ld(1 - s_)
        k._emit(classify('s_waitcnt vmcnt(4)'))
        k.vm = []
        p = P0 + 16 * s_
        for i in range(8):
            k('v_xor_b32 v%d, s%d, v%d' % (p + 2 * i + 1, S_EPOCH, p + 2 * i + 1))
        k('v_cndmask_b32 v%d, 0, v%d, %s' % (p + 12, p + 12, sr(S_T, 2)))
        k('v_cndmask_b32 v%d, 0, v%d, %s' % (p + 14, p + 14, sr(S_T, 2)))
        k('v_or3_b32 v%d, v%d, v%d, v%d' % (p + 1, p + 1, p + 3, p + 5))
        k('v_or3_b32 v%d, v%d, v%d, v%d' % (p + 7, p + 7, p + 9, p + 11))
        k('v_or3_b32 v%d, v%d, v%d, v%d' % (p + 1, p + 1, p + 13, p + 15))
        k('v_or_b32 v%d, v%d, v%d' % (p + 1, p + 1, p + 7))
        k('v_cmp_ne_u32 vcc, 0, v%d' % (p + 1))
        for x, o in ((Sx, 0), (Qx, 2)):
            k('v_add_f32 v%d, v%d, v%d' % (x, p + o, p + o + 4))
            k('v_add_f32 v%d, v%d, v%d' % (x + 1, p + o + 8, p + o + 12))
        if s_ == 0:
            k('s_cbranch_vccz %s' % done)
        else:
            k('s_cbranch_vccnz %s' % L)
    k.fence()
    k.raw(done + ':')
    k.vm = list(last)
    stamp(k, 13)
    P0 = t + 68
    for x in (Sx, Qx):
        k('v_add_f32 v%d, v%d, v%d' % (x, x, x + 1))
    k('v_mov_b32 v%d, v%d' % (P0 + 4, Sx))
    k('v_mov_b32 v%d, v%d' % (P0 + 6, Qx))
    k('v_permlane32_swap_b32 v%d, v%d' % (Sx, P0 + 4))
    k('v_permlane32_swap_b32 v%d, v%d' % (Qx, P0 + 6))
    k('v_add_f32 v%d, v%d, v%d' % (Sx, Sx, P0 + 4))
    k('v_add_f32 v%d, v%d, v%d' % (Qx, Qx, P0 + 6))
    M, R = P0 + 1, P0 + 3
    k('v_mul_f32 v%d, %s, v%d' % (M, f32(1.0 / D), Sx))
    k('v_mul_f32 v%d, %s, v%d' % (Qx, f32(1.0 / D), Qx))
    k('v_fma_f32 v%d, -v%d, v%d, v%d' % (Qx, M, M, Qx))
    k('v_max_f32 v%d, 0, v%d' % (Qx, Qx))
    k('v_add_f32 v%d, %s, v%d' % (R, f32(1e-5), Qx))
    k('v_rsq_f32 v%d, v%d' % (R, R))
    k('v_mul_f32 v%d, v%d, v%d' % (Qx, Qx, R))
    k('v_fmaak_f32 v%d, v%d, v%d, %s' % (Qx, Qx, R, f32(1e-5)))
    k('v_rsq_f32 v%d, v%d' % (Qx, Qx))
    k('v_mul_f32 v%d, v%d, v%d' % (R, R, Qx))
    k('s_lshl_b32 s%d, s3, 8' % b.s_t2)
    k('v_lshl_add_u32 v%d, v%d, 2, s%d' % (vC, vG, b.s_t2))
    k('ds_write_b32 v%d, v%d offset:%d' % (vC, M, lds_small + 1024))
    k('ds_write_b32 v%d, v%d offset:%d' % (vC, R, lds_small + 1024 + 128))
    k('v_lshrrev_b32 v%d, 5, v1' % vC)
    k('v_lshl_add_u32 v%d, v%d, 4, s%d' % (vC, vC, b.s_t2))
    MM = P0 + 8
    k.wait_lg(0)
    for q in range(4):
        k('ds_read_b128 %s, v%d offset:%d' % (vr(MM + 4 * q, 4), vC, lds_small + 1024 + 32 * q))
        k('ds_read_b128 %s, v%d offset:%d' % (vr(MM + 16 + 4 * q, 4), vC, lds_small + 1024 + 128 + 32 * q))
    for tp in range(2):
        for i in range(8 * tp, 8 * tp + 8, 2):
            k('v_pk_add_f32 %s, %s, %s neg_lo:[0,1] neg_hi:[0,1]' % (vr(A + i, 2), vr(A + i, 2), vr(MM + i, 2)))
        for i in range(8 * tp, 8 * tp + 8, 2):
            k('v_pk_mul_f32 %s, %s, %s' % (vr(A + i, 2), vr(A + i, 2), vr(MM + 16 + i, 2)))
        p = V + 4 * tp
        for i in range(4):
            k('v_cvt_pk_bf16_f32 v%d, v%d, v%d' % (p + i, A + 8 * tp + 2 * i, A + 8 * tp + 2 * i + 1))
        k('buffer_store_dwordx4 %s, v4, %s, s%d offen offset:%d %s' % (vr(p, 4), srd(SRD_WS), b.s_x, tp * 1024, sc1), tag='hst')


def agent(k):
    g = G
    k.c('---- agent: W2 warm-up')
    k('s_lshr_b32 s%d, s2, 3' % g.s_tmp)
    k('s_sub_u32 s%d, s%d, 28' % (g.s_tmp, g.s_tmp))
    k('s_lshl_b32 s%d, s%d, 2' % (g.s_tmp, g.s_tmp))
    k('s_add_u32 s%d, s%d, s3' % (g.s_tmp, g.s_tmp))
    k('s_lshl_b32 s%d, s%d, 16' % (g.s_tmp, g.s_tmp))
    k('s_and_b32 s%d, s2, 7' % g.s_t2)
    k('s_lshl_b32 s%d, s%d, 9' % (g.s_t2, g.s_t2))
    k('s_add_u32 s%d, s%d, s%d' % (g.s_tmp, g.s_tmp, g.s_t2))
    k('v_lshrrev_b32 v16, 2, v1')
    k('v_lshlrev_b32 v16, 12, v16')
    k('v_and_b32 v17, 3, v1')
    k('v_lshl_add_u32 v16, v17, 7, v16')
    for i in range(7):
        k('buffer_load_dword v%d, v16, %s, s%d offen' % (18 + i, srd(SRD_W2), g.s_tmp))
        k('s_add_u32 s%d, s%d, 0x100000' % (g.s_tmp, g.s_tmp))
        k.wait_vm(AGENT_DEPTH - 1)
    k.wait_vm(0)


class G:
    ACC = 16
    RING = 80
    NR = 16
    vW1, vW2 = 213, 214
    vRa, vRb = 215, 216
    vSa, vSb = 217, 218
    vCl = 5
    T = 220
    s_dtC, s_ft, s_dtD, s_st, s_tmp, s_t2, s_stage, s_a0, s_a1 = 64, 65, 66, 67, 68, 69, 70, 71, 72
    s_b0, s_b1 = 56, 57


def G_map(k):
    g = G
    k.c('---- C/D tile map')
    k('s_lshr_b32 s%d, s2, 3' % g.s_tmp)
    k('s_mul_i32 s%d, s%d, 37' % (g.s_t2, g.s_tmp))
    k('s_lshr_b32 s%d, s%d, 8' % (g.s_t2, g.s_t2))
    k('s_mul_i32 s%d, s%d, 7' % (g.s_dtC, g.s_t2))
    k('s_sub_u32 s%d, s%d, s%d' % (g.s_dtC, g.s_tmp, g.s_dtC))
    k('s_mov_b32 s%d, s%d' % (g.s_dtD, g.s_dtC))
    k('s_and_b32 s%d, s2, 7' % g.s_tmp)
    k('s_lshl_b32 s%d, s%d, 2' % (g.s_st, g.s_tmp))
    k('s_add_u32 s%d, s%d, s%d' % (g.s_st, g.s_st, g.s_t2))
    k('s_cmp_ge_u32 s%d, 4' % g.s_t2)
    k('s_cselect_b32 s%d, 99, s%d' % (g.s_st, g.s_st))
    k('s_mul_i32 s%d, s%d, 3' % (g.s_a0, g.s_tmp))
    k('s_add_u32 s%d, s%d, 4' % (g.s_a0, g.s_a0))
    k('s_lshl_b32 s%d, s%d, 2' % (g.s_a1, g.s_tmp))
    k('s_cmp_lt_u32 s%d, 4' % g.s_tmp)
    k('s_cselect_b32 s%d, s%d, s%d' % (g.s_ft, g.s_a1, g.s_a0))
    k('s_cselect_b32 s%d, 4, 3' % g.s_a0)
    k('s_add_u32 s%d, s%d, s%d' % (g.s_ft, g.s_ft, g.s_t2))
    k('s_cmp_ge_u32 s%d, s%d' % (g.s_t2, g.s_a0))
    k('s_cselect_b32 s%d, 99, s%d' % (g.s_ft, g.s_ft))


def G_w_setup(k, which, lds_base, per_wave):
    g = G
    t = TMP
    stride = F * 2 if which == 1 else S * 2
    krows = 512 if which == 1 else 448
    vW = g.vW1 if which == 1 else g.vW2
    va, vb = (g.vRa, g.vRb) if which == 1 else (g.vSa, g.vSb)
    s_tile = g.s_ft if which == 1 else g.s_st
    k('s_mul_i32 s%d, s3, %d' % (g.s_stage, per_wave))
    k('s_add_u32 s%d, s%d, %d' % (g.s_stage, g.s_stage, lds_base))
    k('v_lshrrev_b32 v%d, 3, v1' % t)
    k('v_mul_u32_u24 v%d, %d, v%d' % (vW, stride, t))
    k('v_and_b32 v%d, 1, v3' % t)
    k('v_lshlrev_b32 v%d, 2, v%d' % (t, t))
    k('v_and_b32 v%d, 7, v1' % (t + 1))
    k('v_xor_b32 v%d, v%d, v%d' % (t, t, t + 1))
    k('v_lshl_add_u32 v%d, v%d, 4, v%d' % (vW, t, vW))
    k('s_mul_i32 s%d, s3, %d' % (g.s_tmp, krows * stride))
    k('s_lshl_b32 s%d, s%d, 7' % (g.s_t2, s_tile))
    k('s_add_u32 s%d, s%d, s%d' % (g.s_tmp, g.s_tmp, g.s_t2))
    k('s_cmp_ge_u32 s%d, 99' % s_tile)
    k('s_cselect_b32 s%d, 0x%x, s%d' % (g.s_tmp, OOB, g.s_tmp))
    k('v_add_u32 v%d, s%d, v%d' % (vW, g.s_tmp, vW))
    if which == 1:
        k('s_cselect_b32 s%d, 0x%x, 0' % (g.s_tmp, OOB))
        k('v_add_u32 v%d, s%d, v4' % (g.vCl, g.s_tmp))
    k('v_lshrrev_b32 v%d, 5, v1' % t)
    k('v_lshlrev_b32 v%d, 9, v%d' % (va, t))
    k('v_bfe_u32 v%d, v1, 2, 2' % t)
    k('v_lshl_add_u32 v%d, v%d, 7, v%d' % (va, t, va))
    k('v_lshrrev_b32 v%d, 1, v%d' % (t, t))
    k('s_lshr_b32 s%d, s3, 1' % g.s_tmp)
    k('v_xor_b32 v%d, s%d, v%d' % (t, g.s_tmp, t))
    k('v_lshl_add_u32 v%d, v%d, 6, v%d' % (va, t, va))
    k('v_and_b32 v%d, 1, v3' % t)
    k('v_lshl_add_u32 v%d, v%d, 5, v%d' % (va, t, va))
    k('v_and_b32 v%d, 3, v1' % t)
    k('v_lshl_add_u32 v%d, v%d, 3, v%d' % (va, t, va))
    if CD2 and which == 1:
        k('s_and_b32 s%d, s3, 1' % g.s_tmp)
        k('s_lshl_b32 s%d, s%d, 5' % (g.s_tmp, g.s_tmp))
        k('v_xor_b32 v%d, s%d, v%d' % (va, g.s_tmp, va))
    k('v_add_u32 v%d, s%d, v%d' % (va, g.s_stage, va))
    k('v_xor_b32 v%d, 64, v%d' % (vb, va))


ROT = True
S_GC, S_GD = 94, 48


def G_rot_setup(k, which):
    n, base = (8, S_GC) if which == 1 else (7, S_GD)
    t = G.s_tmp
    if ROT in ('x', 'x2'):
        k('s_lshr_b32 s%d, s2, 3' % t)
        k('s_mul_i32 s%d, s%d, 37' % (t, t))
        k('s_lshr_b32 s%d, s%d, 8' % (t, t))
        k('s_and_b32 s%d, s%d, %d' % (t, t, 3 if ROT == 'x' else 1))
        for g_ in range(n):
            if n == 8 or g_ < 4:
                k('s_xor_b32 s%d, s%d, %d' % (base + g_, t, g_))
            elif g_ < 6:
                k('s_and_b32 s%d, s%d, 1' % (base + g_, t))
                k('s_xor_b32 s%d, s%d, %d' % (base + g_, base + g_, g_))
            else:
                k('s_mov_b32 s%d, %d' % (base + g_, g_))
            k('s_lshl_b32 s%d, s%d, 12' % (base + g_, base + g_))
        return
    if ROT == 'q':
        k('s_lshr_b32 s%d, s2, 3' % t)
        k('s_mul_i32 s%d, s%d, 37' % (t, t))
        k('s_lshr_b32 s%d, s%d, 8' % (t, t))
        k('s_and_b32 s%d, s%d, 3' % (t, t))
        k('s_mul_i32 s%d, s%d, %d' % (t, t, n))
        k('s_add_u32 s%d, s%d, 2' % (t, t))
        k('s_lshr_b32 s%d, s%d, 2' % (t, t))
    elif ROT:
        k('s_and_b32 s%d, s2, 7' % t)
    else:
        k('s_mov_b32 s%d, 0' % t)
    for g_ in range(n):
        if g_:
            k('s_add_u32 s%d, s%d, 1' % (t, t))
        k('s_cmp_ge_u32 s%d, %d' % (t, n))
        k('s_cselect_b32 s%d, %d, 0' % (base + g_, n))
        k('s_sub_u32 s%d, s%d, s%d' % (t, t, base + g_))
        k('s_lshl_b32 s%d, s%d, 12' % (base + g_, t))


def G_w_dma(k, which, t0, nt, slot0, tag=None, bg=False):
    g = G
    stride = F * 2 if which == 1 else S * 2

    def one(i):
        slot = slot0 + i // 2
        assert slot < NSLOT
        k.wait_lg_tag('rd%d' % slot)
        k.slot_content = getattr(k, 'slot_content', {})
        k.slot_content[slot] = (which, t0 + i // 2, i % 2)
        k('s_add_u32 m0, s%d, %d' % (g.s_stage, slot0 * 2048 + i * 1024))
        t = t0 + i // 2
        k('s_mul_i32 s%d, s%d, %d' % (B.s_dma, (S_GC if which == 1 else S_GD) + t // 4, 64 * stride // 4096))
        k('s_add_u32 s%d, s%d, %d' % (B.s_dma, B.s_dma, (16 * (t % 4) + 8 * (i % 2)) * stride))
        k('buffer_load_dwordx4 v%d, %s, s%d offen lds' % (g.vW1 if which == 1 else g.vW2, srd(SRD_W1 if which == 1 else SRD_W2), B.s_dma), tag='slot%d' % slot)
    for i in range(2 * nt):
        if bg:
            k.bg_push(lambda i=i: one(i))
        else:
            one(i)


def W1_warm(k, vdst):
    g = G
    t = TMP
    k('s_lshr_b32 s%d, s2, 3' % g.s_tmp)
    k('s_lshl_b32 s%d, s%d, 2' % (g.s_tmp, g.s_tmp))
    k('s_add_u32 s%d, s%d, s3' % (g.s_tmp, g.s_tmp))
    if True:
        k('v_lshlrev_b32 v%d, 7, v1' % t)
        k('s_mul_i32 s%d, s%d, 3200' % (S_T, g.s_tmp))
        k('s_mov_b64 exec, 0x1ffffff')
        k('buffer_load_dword v234, v%d, %s, s%d offen' % (t, srd(SRD_WO), S_T))
        k('s_mov_b64 exec, -1')
    k('v_lshrrev_b32 v%d, 2, v1' % t)
    k('v_mul_u32_u24 v%d, %d, v%d' % (t, F * 2, t))
    k('v_and_b32 v%d, 3, v1' % (t + 1))
    k('v_lshl_add_u32 v%d, v%d, 7, v%d' % (t, t + 1, t))
    k('s_mul_i32 s%d, s%d, %d' % (g.s_tmp, g.s_tmp, 16 * F * 2))
    k('s_and_b32 s%d, s2, 7' % g.s_t2)
    k('s_mul_i32 s%d, s%d, 3' % (S_T, g.s_t2))
    k('s_add_u32 s%d, s%d, 4' % (S_T, S_T))
    k('s_lshl_b32 s%d, s%d, 2' % (S_T + 1, g.s_t2))
    k('s_min_u32 s%d, s%d, s%d' % (S_T, S_T, S_T + 1))
    k('s_lshl_b32 s%d, s%d, 7' % (S_T, S_T))
    k('s_add_u32 s%d, s%d, s%d' % (S_T, S_T, g.s_tmp))
    k('s_cmp_lt_u32 s%d, 4' % g.s_t2)
    k('s_cselect_b32 exec_lo, -1, 0x77777777')
    k('s_cselect_b32 exec_hi, -1, 0x77777777')
    k('buffer_load_dword v%d, v%d, %s, s%d offen' % (vdst, t, srd(SRD_W1), S_T))
    k('s_mov_b64 exec, -1')


def G_w_read(k, which, t, slot, areg):
    g = G
    va, vb = (g.vRa, g.vRb) if which == 1 else (g.vSa, g.vSb)
    sec = 1024
    assert k.slot_content[slot] == (which, t, 1), (k.slot_content[slot], which, t)
    k.wait_tag('slot%d' % slot)
    for i, v in enumerate((va, vb)):
        k('ds_read_b64_tr_b16 %s, v%d offset:%d' % (ar(areg + 4 * i, 2), v, slot * 2048), tag='rd%d' % slot)
        k('ds_read_b64_tr_b16 %s, v%d offset:%d' % (ar(areg + 4 * i + 2, 2), v, slot * 2048 + sec), tag='rd%d' % slot)


def G_a_setup(k, which):
    g = G
    nks = 128 if which == 1 else 112
    per = 32 if which == 1 else 28
    base = HH_OFF if which == 1 else U_OFF
    s_dt = g.s_dtC if which == 1 else g.s_dtD
    k('s_lshl_b32 s%d, s%d, 1' % (g.s_tmp, s_dt))
    k('s_and_b32 s%d, s3, 1' % g.s_t2)
    k('s_add_u32 s%d, s%d, s%d' % (g.s_a0, g.s_tmp, g.s_t2))
    k('s_xor_b32 s%d, s%d, 1' % (g.s_a1, g.s_a0))
    k('s_mul_i32 s%d, s3, %d' % (g.s_tmp, per * 1024))
    k('s_add_u32 s%d, s%d, 0x%x' % (g.s_tmp, g.s_tmp, base))
    for s_ in (g.s_a0, g.s_a1):
        k('s_mul_i32 s%d, s%d, %d' % (s_, s_, nks * 1024))
        k('s_add_u32 s%d, s%d, s%d' % (s_, s_, g.s_tmp))


def G_a_load(k, t, sc1='', vo=4, which=1):
    g = G
    if t % 4 == 0:
        gr = (S_GC if which == 1 else S_GD) + t // 4
        k('s_add_u32 s%d, s%d, s%d' % (g.s_b0, g.s_a0, gr))
        k('s_add_u32 s%d, s%d, s%d' % (g.s_b1, g.s_a1, gr))
    r = g.RING + 8 * (t % g.NR)
    for i, s_ in enumerate((g.s_b0, g.s_b1)):
        k('buffer_load_dwordx4 %s, v%d, %s, s%d offen offset:%d %s' % (vr(r + 4 * i, 4), vo, srd(SRD_WS), s_, (t % 4) * 1024, sc1))


def G_mfma(k, t, areg):
    g = G
    r = g.RING + 8 * (t % g.NR)
    for iw in range(2):
        for ia in range(2):
            L = 2 * iw + ia
            a = vr(g.ACC + 16 * L, 16)
            c = '0' if (t == 0 and L != 0) else a
            k('v_mfma_f32_32x32x16_bf16 %s, %s, %s, %s' % (a, ar(areg + 4 * iw, 4), vr(r + 4 * ia, 4), c))


def G_mfma_tail(k, ts, areg, order, writes):
    g = G
    pend = []
    for L in order:
        iw, ia = L >> 1, L & 1
        a = vr(g.ACC + 16 * L, 16)
        for n, t in enumerate(ts):
            r = g.RING + 8 * (t % g.NR)
            k('v_mfma_f32_32x32x16_bf16 %s, %s, %s, %s' % (a, ar(areg(t) + 4 * iw, 4), vr(r + 4 * ia, 4), a))
            if n >= 1:
                per = -(-len(pend) // (len(ts) - n))
                for f in pend[:per]:
                    f()
                pend = pend[per:]
        pend = pend + list(writes.get(L, []))
    for f in pend:
        f()


def C_init(k):
    g = G
    t = g.T
    k('v_lshrrev_b32 v%d, 5, v1' % t)
    k('v_lshlrev_b32 v%d, 3, v%d' % (t, t))
    k('s_lshl_b32 s%d, s%d, 7' % (g.s_tmp, g.s_ft))
    k('s_lshr_b32 s%d, s3, 1' % g.s_t2)
    k('s_lshl_b32 s%d, s%d, 6' % (g.s_t2, g.s_t2))
    k('s_add_u32 s%d, s%d, s%d' % (g.s_tmp, g.s_tmp, g.s_t2))
    for q in range(4):
        k('buffer_load_dwordx2 %s, v%d, %s, s%d offen offset:%d' % (vr(t + 2 + 2 * q, 2), t, srd(SRD_B1), g.s_tmp, 16 * q))


def C_init_finish(k):
    g = G
    t = g.T
    for q in range(4):
        for i in range(2):
            k('v_lshlrev_b32 v%d, 16, v%d' % (g.ACC + 4 * q + 2 * i, t + 2 + 2 * q + i))
            k('v_and_b32 v%d, 0xffff0000, v%d' % (g.ACC + 4 * q + 2 * i + 1, t + 2 + 2 * q + i))


def C_epi_addr(k):
    g = G
    t = g.T
    for L in range(1, 4):
        k('s_xor_b32 s%d, s3, %d' % (g.s_tmp, L))
        k('s_mul_i32 s%d, s%d, %d' % (g.s_tmp, g.s_tmp, STG_SZ))
        k('s_add_u32 s%d, s%d, %d' % (g.s_tmp, g.s_tmp, LDS_STG + (L - 1) * 4096))
        k('v_add_u32 v%d, s%d, v4' % (t + L, g.s_tmp))
    k('v_add_u32 v%d, s%d, v4' % (t, g.s_stage))
    k('s_lshl_b32 s%d, s%d, 1' % (g.s_tmp, g.s_dtC))
    k('s_and_b32 s%d, s3, 1' % g.s_t2)
    k('s_add_u32 s%d, s%d, s%d' % (g.s_tmp, g.s_tmp, g.s_t2))
    k('s_mul_i32 s%d, s%d, 112' % (g.s_tmp, g.s_tmp))
    k('s_lshl_b32 s%d, s%d, 2' % (g.s_t2, g.s_ft))
    k('s_add_u32 s%d, s%d, s%d' % (g.s_tmp, g.s_tmp, g.s_t2))
    k('s_and_b32 s%d, s3, 2' % g.s_t2)
    k('s_add_u32 s%d, s%d, s%d' % (g.s_tmp, g.s_tmp, g.s_t2))
    k('s_lshl_b32 s%d, s%d, 10' % (g.s_tmp, g.s_tmp))
    k('s_add_u32 s%d, s%d, 0x%x' % (g.s_tmp, g.s_tmp, U_OFF))
    c1 = -2.0 * 0.7978845608028654 * 1.4426950408889634
    c2 = c1 * 0.044715
    k('s_mov_b32 s88, %s' % f32(c1))
    k('s_mov_b32 s90, %s' % f32(c2))
    k('v_mov_b32 v%d, s88' % (t + 4))
    k('v_mov_b32 v%d, s88' % (t + 5))


def C_epi_writes(k):
    g = G
    t = g.T
    return {L: [lambda L=L, q=q: k('ds_write_b128 v%d, %s offset:%d' % (t + L, vr(g.ACC + 16 * L + 4 * q, 4), q * 1024))
                for q in range(4)] for L in range(1, 4)}


def C_epilogue(k, sc1=''):
    g = G
    t = g.T
    k.c('---- phase C epilogue')
    k.wait_lg(0)
    k.barrier()
    R = g.ACC + 16
    for q in range(4):
        for L in range(3):
            k('ds_read_b128 %s, v%d offset:%d' % (vr(R + 16 * L + 4 * q, 4), t, L * 4096 + q * 1024))
    sc = 88
    X2 = g.RING
    for half in range(2):
        for i in range(8 * half, 8 * half + 8, 2):
            a = g.ACC + i
            k('v_pk_add_f32 %s, %s, %s' % (vr(R + i, 2), vr(R + i, 2), vr(R + 16 + i, 2)))
            k('v_pk_add_f32 %s, %s, %s' % (vr(a, 2), vr(a, 2), vr(R + 32 + i, 2)))
        for i in range(8 * half, 8 * half + 8, 2):
            a = g.ACC + i
            k('v_pk_add_f32 %s, %s, %s' % (vr(a, 2), vr(a, 2), vr(R + i, 2)))
        for i in range(8 * half, 8 * half + 8, 2):
            a = g.ACC + i
            k('v_pk_mul_f32 %s, %s, %s' % (vr(X2 + i, 2), vr(a, 2), vr(a, 2)))
        for i in range(8 * half, 8 * half + 8, 2):
            k('v_pk_fma_f32 %s, %s, %s, %s op_sel_hi:[1,0,1]' % (vr(X2 + i, 2), vr(X2 + i, 2), sr(sc + 2, 2), vr(t + 4, 2)))
        for i in range(8 * half, 8 * half + 8, 2):
            k('v_pk_mul_f32 %s, %s, %s' % (vr(X2 + i, 2), vr(X2 + i, 2), vr(g.ACC + i, 2)))
        for i in range(8 * half, 8 * half + 8):
            k('v_exp_f32 v%d, v%d' % (X2 + i, X2 + i))
        for i in range(8 * half, 8 * half + 8, 2):
            k('v_pk_add_f32 %s, %s, 1.0 op_sel_hi:[1,0]' % (vr(X2 + i, 2), vr(X2 + i, 2)))
        for i in range(8 * half, 8 * half + 8):
            k('v_rcp_f32 v%d, v%d' % (X2 + i, X2 + i))
        for i in range(8 * half, 8 * half + 8, 2):
            k('v_pk_mul_f32 %s, %s, %s' % (vr(X2 + i, 2), vr(X2 + i, 2), vr(g.ACC + i, 2)))
        p = X2 + 16 + 4 * half
        for i in range(4):
            k('v_cvt_pk_bf16_f32 v%d, v%d, v%d' % (p + i, X2 + 8 * half + 2 * i, X2 + 8 * half + 2 * i + 1))
        k('buffer_store_dwordx4 %s, v%d, %s, s%d offen offset:%d %s' % (vr(p, 4), g.vCl, srd(SRD_WS), g.s_tmp, half * 1024, sc1), tag='ust')


def D_init(k, sc1=''):
    g = G
    t = g.T
    k('v_lshrrev_b32 v%d, 5, v1' % t)
    k('v_lshlrev_b32 v%d, 3, v%d' % (t, t))
    k('s_lshl_b32 s%d, s%d, 7' % (g.s_tmp, g.s_st))
    k('s_lshr_b32 s%d, s3, 1' % g.s_t2)
    k('s_lshl_b32 s%d, s%d, 6' % (g.s_t2, g.s_t2))
    k('s_add_u32 s%d, s%d, s%d' % (g.s_tmp, g.s_tmp, g.s_t2))
    for q in range(4):
        k('buffer_load_dwordx2 %s, v%d, %s, s%d offen offset:%d' % (vr(t + 2 + 2 * q, 2), t, srd(SRD_B2), g.s_tmp, 16 * q))


def D_init_finish(k):
    g = G
    t = g.T
    for q in range(4):
        for i in range(2):
            a = g.ACC + 4 * q + 2 * i
            k('v_lshlrev_b32 v%d, 16, v%d' % (a, t + 2 + 2 * q + i))
            k('v_and_b32 v%d, 0xffff0000, v%d' % (a + 1, t + 2 + 2 * q + i))
            k('v_lshlrev_b32 v%d, 16, v%d' % (t + 18, B.HK + 2 * q + i))
            k('v_and_b32 v%d, 0xffff0000, v%d' % (t + 19, B.HK + 2 * q + i))
            k('v_pk_add_f32 %s, %s, %s' % (vr(a, 2), vr(a, 2), vr(t + 18, 2)))


def D_epilogue(k, lds_red, stride):
    g = G
    t = g.T
    k.c('---- phase D epilogue')
    k('v_lshrrev_b32 v%d, 5, v1' % t)
    k('v_lshlrev_b32 v%d, 10, v%d' % (t, t))
    k('v_and_b32 v%d, 31, v1' % (t + 1))
    k('v_lshl_add_u32 v%d, v%d, 2, v%d' % (t, t + 1, t))
    k('s_lshr_b32 s%d, s3, 1' % g.s_t2)
    k('s_lshl_b32 s%d, s%d, 13' % (g.s_tmp, g.s_t2))
    k('s_and_b32 s%d, s3, 1' % g.s_t2)
    k('s_lshl_b32 s%d, s%d, 7' % (g.s_t2, g.s_t2))
    k('s_add_u32 s%d, s%d, s%d' % (g.s_tmp, g.s_tmp, g.s_t2))
    k('v_add_u32 v%d, s%d, v%d' % (t, g.s_tmp, t))
    k('v_xor_b32 v%d, 128, v%d' % (t + 1, t))
    k('v_xor_b32 v%d, 0x2000, v%d' % (t + 2, t))
    k('v_xor_b32 v%d, 0x2080, v%d' % (t + 3, t))
    k('s_mul_i32 s%d, s3, %d' % (g.s_tmp, stride))
    k('s_add_u32 s%d, s%d, %d' % (g.s_tmp, g.s_tmp, lds_red))
    for L in range(4):
        k('v_add_u32 v%d, s%d, v%d' % (t + L, g.s_tmp, t + L))
    k('s_lshl_b32 s%d, s3, 12' % g.s_tmp)
    k('s_add_u32 s%d, s%d, %d' % (g.s_tmp, g.s_tmp, lds_red))
    k('v_add_u32 v%d, s%d, v4' % (t + 4, g.s_tmp))
    k('v_add_u32 v%d, %d, v%d' % (t + 6, 2 * stride, t + 4))
    k('v_mul_u32_u24 v%d, 896, v3' % (t + 5))
    k('v_lshl_add_u32 v%d, v2, 3, v%d' % (t + 5, t + 5))
    k('s_lshl_b32 s%d, s%d, 2' % (g.s_tmp, g.s_st))
    k('s_add_u32 s%d, s%d, s3' % (g.s_tmp, g.s_tmp))
    k('s_mul_i32 s%d, s%d, %d' % (g.s_tmp, g.s_tmp, 16 * 896))
    k('s_lshl_b32 s%d, s%d, 7' % (g.s_t2, g.s_dtD))
    k('s_add_u32 s%d, s%d, s%d' % (g.s_tmp, g.s_tmp, g.s_t2))
    k('s_add_u32 s%d, s%d, %d' % (g.s_t2, g.s_tmp, 8 * 896))


def D_epi_writes(k):
    g = G
    t = g.T
    return {L: [lambda L=L, q=q, r=r: k('ds_write2st64_b32 v%d, v%d, v%d offset0:%d offset1:%d' % (
        t + L, g.ACC + 16 * L + 4 * q + r, g.ACC + 16 * L + 4 * q + r + 1, 8 * q + r, 8 * q + r + 1))
        for q in range(4) for r in (0, 2)] for L in range(4)}


def D_epilogue2(k, stride):
    g = G
    t = g.T
    k.wait_lg(0)
    k.barrier()
    R = g.ACC
    for i in range(4):
        for w in range(4):
            k('ds_read_b128 %s, v%d offset:%d' % (vr(R + 16 * i + 4 * w, 4), t + 4 if w < 2 else t + 6, (w & 1) * stride + i * 1024))
    for i in range(4):
        r = R + 16 * i
        for j in (0, 2):
            k('v_pk_add_f32 %s, %s, %s' % (vr(r + j, 2), vr(r + j, 2), vr(r + 4 + j, 2)))
            k('v_pk_add_f32 %s, %s, %s' % (vr(r + 8 + j, 2), vr(r + 8 + j, 2), vr(r + 12 + j, 2)))
        for j in (0, 2):
            k('v_pk_add_f32 %s, %s, %s' % (vr(r + j, 2), vr(r + j, 2), vr(r + 8 + j, 2)))
        k('v_cvt_pk_bf16_f32 v%d, v%d, v%d' % (r + 4, r, r + 1))
        k('v_cvt_pk_bf16_f32 v%d, v%d, v%d' % (r + 5, r + 2, r + 3))
        k('buffer_store_dwordx2 %s, v%d, %s, s%d offen offset:%d' % (vr(r + 4, 2), t + 5, srd(SRD_OUT), g.s_t2 if i >= 2 else g.s_tmp, (i % 2) * 4 * 896))
```

```python
import sys, os
sys.path.insert(0, os.path.dirname(os.path.abspath(__file__)))
from dsl import Kernel
import phases as P
import cd2

NAME = 'sequential_preLN__sliding_local_dilated__mixer_token_mlp__prompt'
HEADER = open(os.path.join(os.path.dirname(os.path.abspath(__file__)), '..', NAME + '.s.ref')).read().split('; Override launch')[0]


def wrap(kernels):
    out = [HEADER.rstrip('\n')]
    for label, k, grid, lds in kernels:
        if len(kernels) == 1 and label == NAME + '_kernel':
            out.append('; @launch grid=(%d,1,1) block=(256,1,1) lds=%d' % (grid, lds))
        else:
            out.append('; @launch kernel=%s grid=(%d,1,1) block=(256,1,1) lds=%d' % (label, grid, lds))
    out.append('.amdgcn_target "amdgcn-amd-amdhsa--gfx950"')
    out.append('.text')
    seen = []
    for label, k, grid, lds in kernels:
        if label in seen:
            continue
        seen.append(label)
        out.append('.globl %s\n.p2align 8\n.type %s,@function\n%s:' % (label, label, label))
        out.append(k.text())
    out.append('.section .rodata,"a"')
    seen = []
    for label, k, grid, lds in kernels:
        if label in seen:
            continue
        seen.append(label)
        nv = k.max_v + 1
        acc = (nv + 3) // 4 * 4
        tot = acc + k.max_a + 1 if k.max_a >= 0 else nv
        out.append('.p2align 6\n.amdhsa_kernel %s\n  .amdhsa_next_free_vgpr %d\n  .amdhsa_next_free_sgpr 102\n'
                   '  .amdhsa_accum_offset %d\n  .amdhsa_group_segment_fixed_size 0\n  .amdhsa_kernarg_size 88\n'
                   '  .amdhsa_user_sgpr_count 2\n  .amdhsa_user_sgpr_kernarg_segment_ptr 1\n'
                   '  .amdhsa_system_sgpr_workgroup_id_x 1\n.end_amdhsa_kernel' % (label, tot, acc))
        sys.stderr.write('%s: %d instrs, %d nops, v<=%d a<=%d s<=%d\n' % (label, k.n_ins, k.n_nops, k.max_v, k.max_a, k.max_s))
    return '\n'.join(out) + '\n'


def kernel_A(stamps=False):
    k = Kernel('A'); k.stamps = stamps
    P.prologue(k, 256, 'L_end_A', [P.ARG[n] for n in ('x', 'wqkv', 'ws')])
    P.stamp(k, 0)
    P.phaseA(k)
    P.stamp(k, 5)
    k.wait_vm(0)
    P.stamp(k, 6)
    k.label('L_end_A')
    k('s_endpgm')
    return ('phaseA_kernel', k, 256, P.A_LDS_END)


OPT = {}


def persist(stamps=False):
    k = Kernel('P'); k.stamps = stamps; k.scramble = OPT.get('scramble', False); k.xcctest = OPT.get('xcctest', False)
    end = 'L_end_P'
    g, b = P.G, P.B
    SC = 'sc1'
    SCL = OPT.get('scl', 'sc1')
    vE, vF, vPA, vPB, vPC = 6, 8, 10, 11, 12
    sFA, sFB, sFC, sPA, sPB, sPC = 80, 81, 82, 83, 84, 85
    P.prologue(k, 256, end, [P.ARG[n] for n in ('x', 'wqkv', 'dbg', 'ws', 'wo', 'w1', 'w2', 'b1', 'b2', 'out')])
    P.stamp(k, 0)

    def areg(t):
        return 128 + 8 * t if t < 16 else 8 * (t - 16)

    def setup():
        P.G_map(k)
        P.B_setup(k)
        P.G_w_setup(k, 1, P.LDS_STG, P.STG_SZ)
        P.G_w_setup(k, 2, P.LDS_STG, P.STG_SZ)
        P.G_rot_setup(k, 1)
        t = 79
        AG = OPT.get('ag', 2)
        k('s_lshl_b32 s%d, s48, 2' % sFA)
        k('s_add_u32 s%d, s%d, s3' % (sFA, sFA))
        k('s_lshl_b32 s%d, s%d, 11' % (sFA, sFA))
        k('s_lshr_b32 s%d, s49, %d' % (t, AG))
        k('s_lshl_b32 s%d, s%d, 7' % (t, t))
        k('s_add_u32 s%d, s%d, s%d' % (sFA, sFA, t))
        k('s_and_b32 s%d, s49, %d' % (t, (1 << AG) - 1))
        k('s_lshl_b32 s%d, s%d, 2' % (t, t))
        k('s_add_u32 s%d, s%d, s%d' % (sFA, sFA, t))
        k('s_add_u32 s%d, s%d, 0x%x' % (sFA, sFA, P.FLAG_A))
        k('s_lshl_b32 s%d, s%d, 1' % (sPA, g.s_st))
        k('s_lshr_b32 s%d, s3, 1' % t)
        k('s_add_u32 s%d, s%d, s%d' % (sPA, sPA, t))
        k('s_lshl_b32 s%d, s%d, 11' % (sPA, sPA))
        k('s_add_u32 s%d, s%d, 0x%x' % (sPA, sPA, P.FLAG_A))
        k('v_lshrrev_b32 v%d, %d, v2' % (vPA, AG))
        k('v_lshlrev_b32 v%d, 7, v%d' % (vPA, vPA))
        k('v_and_b32 v%d, %d, v2' % (P.TMP, (1 << AG) - 1))
        k('v_lshl_add_u32 v%d, v%d, 2, v%d' % (vPA, P.TMP, vPA))
        k('s_lshl_b32 s%d, s%d, 12' % (sPB, g.s_dtC))
        k('s_lshl_b32 s%d, s%d, 1' % (sPC, sPB))
        k('s_add_u32 s%d, s%d, 0x%x' % (sPC, sPC, P.FLAG_C))
        k('s_add_u32 s%d, s%d, 0x%x' % (sPB, sPB, P.FLAG_B))
        k('s_lshl_b32 s%d, s%d, 5' % (sFB, g.s_st))
        k('s_add_u32 s%d, s%d, s3' % (sFB, sFB))
        k('s_lshl_b32 s%d, s%d, 2' % (sFB, sFB))
        k('s_add_u32 s%d, s%d, s%d' % (sFB, sFB, sPB))
        k('s_lshl_b32 s%d, s3, 10' % t)
        k('s_add_u32 s%d, s%d, s%d' % (sPB, sPB, t))
        k('v_bfe_u32 v%d, v1, 2, 3' % vPB)
        k('v_min_u32 v%d, 6, v%d' % (vPC, vPB))
        k('v_and_b32 v%d, 3, v1' % P.TMP)
        k('v_lshlrev_b32 v%d, 2, v%d' % (P.TMP, P.TMP))
        k('v_lshl_add_u32 v%d, v%d, 7, v%d' % (vPB, vPB, P.TMP))
        k('v_lshl_add_u32 v%d, v%d, 7, v%d' % (vPC, vPC, P.TMP))
        k('s_lshl_b32 s%d, s%d, 5' % (sFC, g.s_ft))
        k('s_add_u32 s%d, s%d, s3' % (sFC, sFC))
        k('s_lshl_b32 s%d, s%d, 2' % (sFC, sFC))
        k('s_add_u32 s%d, s%d, s%d' % (sFC, sFC, sPC))
        k('s_mul_i32 s%d, s3, 896' % t)
        k('s_add_u32 s%d, s%d, s%d' % (sPC, sPC, t))
        k('v_mov_b32 v%d, 0' % (vF + 1))

    hooksA = {
        'A_pre': lambda: P.epoch_publish(k, vE),
        'A_after_issue': setup,
        'A_k%d' % OPT.get('wk', 9): lambda: (P.epoch_load(k, vE), P.W1_warm(k, 235)),
        'A_e1': lambda: P.B_wo_dma(k) if OPT.get('wo_e1', False) else None,
    }
    P.phaseA(k, SC, hooksA)
    P.stamp(k, 5)
    if not OPT.get('wo_e1', False):
        P.B_wo_dma(k)
    k.bg(OPT.get('wo_pre', 14))
    P.epoch_get(k, vE)
    k.wait_tag('ost')
    P.flag_store(k, vF, sFA)
    P.stamp(k, 6)
    k.bg_flush()
    notag = k.newlabel('Lnotag')
    k('s_cmp_lt_u32 s%d, 99' % g.s_st)
    k.branch_fwd('s_cbranch_scc1', notag)
    if OPT.get('agent', True):
        P.agent(k)
    else:
        k.wait_vm(0)
    k('s_branch %s' % end)
    k.label(notag)
    P.B_xinit(k)
    P.G_rot_setup(k, 2)
    k.wait_tag('wo')
    k.barrier()
    P.B_wo_read(k, 0)
    k.wait_lg(0)
    k.barrier()
    N1 = OPT.get('n1', 10)
    N2 = OPT.get('n2', 8)
    P.G_w_dma(k, 1, 0, N1, 8)
    P.flag_poll(k, vF, vPA, sPA)
    P.stamp(k, 10)

    N3 = OPT.get('n3', 8)

    def after_of():
        for t in range(N1):
            P.G_w_read(k, 1, t, 8 + t, areg(t))
        P.G_w_dma(k, 1, N1, N2, 8, bg=True)
        P.B_xinit_finish(k)

    def before_poll():
        P.G_w_dma(k, 1, N1 + N2, N3, 0)

    P.B_main(k, 0, 0, SC, {'B_after_of': after_of, 'B_before_poll': before_poll})
    P.stamp(k, 14)
    for t in range(N1, N1 + N2):
        P.G_w_read(k, 1, t, 8 + t - N1, areg(t))
    for t in range(N1 + N2, N1 + N2 + N3):
        P.G_w_read(k, 1, t, t - N1 - N2, areg(t))
    k.wait_tag('hst')
    P.flag_store(k, vF, sFB)
    P.stamp(k, 15)
    R1 = N1 + N2 + N3
    M1 = OPT.get('m1', 6)
    assert 6 + 32 - R1 + M1 <= 18
    P.G_w_dma(k, 1, R1, 32 - R1, 6)
    P.G_w_dma(k, 2, 0, M1, 18 - M1)
    cd2.setup(k)
    P.flag_poll(k, vF, vPB, sPB)
    P.stamp(k, 16)
    UP = OPT.get('up', 8)
    for n in range(UP):
        cd2.a_load(k, n, SCL)
    for f in cd2.c_init_ops(k, 0):
        f()
    for t in range(R1, 32):
        P.G_w_read(k, 1, t, 6 + t - R1, areg(t))
    k('v_mov_b32 v%d, v%d' % (vF + 1, g.vCl))
    assert M1 == 6

    def w2slot(j):
        return 12 + j if j < 6 else (j if j < 12 else w2slot(j - 12))
    at = {}
    q = []

    def add(s_, *fs):
        at.setdefault(s_, []).extend(fs)

    def spread(s0, ops, per):
        for i, f in enumerate(ops):
            add(s0 + i // per, f)
    add(16, k.barrier)
    S2 = OPT.get('s2', 24)
    for j in range(6, 12):
        add(S2 + j - 6, lambda j=j: P.G_w_dma(k, 2, j, 1, w2slot(j)))
    spread(20, cd2.c_init_ops(k, 1), 4)
    spread(32, cd2.c_writes(k, 0), 3)
    add(34, lambda: k.wait_lg_tag('cw'), k.barrier, *cd2.c_reads(k, 0))
    EP = OPT.get('ep', 16)
    fin = cd2.c_final_ops(k, 0, SC, False)
    spread(36, fin, EP)
    e0 = 36 + (len(fin) - 1) // EP
    add(e0 + OPT.get('f0', 4), lambda: k.wait_tag('ust0'), lambda: P.flag_store(k, vF, sFC), lambda: P.stamp(k, 21))
    for j in range(12):
        add(e0 - 2 + j // 2 if j // 2 + e0 - 2 >= 32 + j else 32 + j, lambda j=j: P.G_w_read(k, 2, j, w2slot(j), areg(j)))
    WA, WB, NA = OPT.get('wa', 44), OPT.get('wb', 64), OPT.get('na', 8)
    for j in range(12, 28):
        sd = WA + (j - 12) if j < 12 + NA else WB + (j - 12 - NA)
        add(sd, lambda j=j: P.G_w_dma(k, 2, j, 1, w2slot(j)))
        add(max(sd + OPT.get('wl', 8), 32 + j), lambda j=j: P.G_w_read(k, 2, j, w2slot(j), areg(j)))
    spread(e0 + 1, cd2.d_init_ops(k, 0), 6)
    PA, CA = OPT.get('pa', 50), OPT.get('ca', 54)
    add(PA, lambda: cd2.probe(k, 248, vPC, sPC, 0))
    add(CA, lambda: cd2.probe_check(k, 248, vPC, sPC, 0))
    lim = {0: 64, CA + 1: 92}

    TL = OPT.get('tl', 4)

    def tail(n0, writes1):
        for n in range(n0, n0 + TL):
            cd2.mfma(k, n, 1, areg)
        per = -(-len(writes1) // max(TL - 1, 1))
        for i, n in enumerate(range(n0, n0 + TL)):
            cd2.mfma(k, n, 0, areg)
            if i:
                for f in writes1[per * (i - 1): per * i]:
                    f()

    def c1_epi():
        P.stamp(k, 20)
        for f in cd2.c_writes(k, 1)[4:]:
            f()
        k.wait_lg(0)
        k.barrier()
        for f in cd2.c_reads(k, 1) + cd2.c_final_ops(k, 1, SC, True):
            f()
        k('s_add_u32 s%d, s%d, 4096' % (sFC, sFC))
        k('s_add_u32 s%d, s%d, 4096' % (sPC, sPC))
    add(64 + OPT.get('f1', 4), lambda: k.wait_tag('ust1'), lambda: P.flag_store(k, vF, sFC), lambda: P.stamp(k, 22))
    spread(70, cd2.d_init_ops(k, 1), 6)
    PB, CB = OPT.get('pb', 80), OPT.get('cb', 84)
    add(PB, lambda: cd2.probe(k, 248, vPC, sPC, 0))
    add(CB, lambda: cd2.probe_check(k, 248, vPC, sPC, 0), lambda: P.stamp(k, 24))
    lim[CB + 1] = 120
    spread(92, cd2.d_writes(k, 0), 6)
    add(99, lambda: k.wait_lg(0), k.barrier, *cd2.d_reads(k, 0))
    spread(101, cd2.d_final_ops(k, 0, False), 6)
    nxt, cur = UP, 64
    late = []
    for n in range(120):
        cur = lim.get(n, cur)
        for _ in range(2):
            if nxt < cur and nxt < n + OPT.get('la', 10):
                cd2.a_load(k, nxt, SCL)
                nxt += 1
        fs = at.get(n, [])
        if 64 - TL <= n < 64 or n >= 120 - TL:
            for f in fs:
                assert n >= 120 - TL or True
                late.append(f)
            if n == 63:
                tail(64 - TL, cd2.c_writes(k, 1)[:4])
                for f in late:
                    f()
                late = []
                c1_epi()
            if n == 119:
                tail(120 - TL, cd2.d_writes(k, 1)[:16])
                for f in late:
                    f()
            continue
        cd2.mfma(k, n, 0, areg)
        cd2.mfma(k, n, 1, areg)
        for f in fs:
            f()
        if n in (0, 31, 64, 91):
            P.stamp(k, {0: 17, 31: 18, 64: 25, 91: 26}[n])
    P.stamp(k, 28)
    for f in cd2.d_writes(k, 1)[16:]:
        f()
    k.wait_lg(0)
    k.barrier()
    for f in cd2.d_reads(k, 1) + cd2.d_final_ops(k, 1, True):
        f()
    P.stamp(k, 29)
    if stamps:
        k.wait_vm(0)
        P.stamp(k, 30)
    k.label(end)
    k('s_endpgm')
    return (NAME + '_kernel', k, 256, P.LDS_END)


if __name__ == '__main__':
    which = sys.argv[1] if len(sys.argv) > 1 else 'p'
    outp = sys.argv[2] if len(sys.argv) > 2 else os.path.join(os.path.dirname(os.path.abspath(__file__)), '..', NAME + '.s')
    for o in sys.argv[3:]:
        kk, vv = o.split('=')
        OPT[kk] = eval(vv)
    P.OUT_SC = OPT.get('osc', ''); P.ROT = OPT.get('rot', True); P.POLL_DEPTH = OPT.get('pd', 3); P.POLL_GAP = OPT.get('pg', 3); P.POLL_SLEEP = OPT.get('ps', 0); P.ST_SLEEP = OPT.get('sts', 0); P.AGENT_DEPTH = OPT.get('ad', 4); P.START_ORDER = OPT.get('so', '0w|1'); P.WO_LATE = OPT.get('wol', True)
    P.STAMP_SET = OPT.get('ss', (0, 6, 16, 18, 20, 21, 22, 25, 24, 26, 28, 30))
    P.DBL = OPT.get('dbl', 0)
    cd2.SLEEP = OPT.get('sl', 0)
    if which == 'p':
        ks = [persist()]
    elif which == 'p_dbg':
        ks = [persist('dbg')]
    elif which == 'p_st':
        P.ARG['ws'] = (P.SRD_WS, 80, 0x1000000)
        ks = [persist(True)]
    open(outp, 'w').write(wrap(ks))
```

```python
from dsl import vr, ar, sr
import phases as P
from phases import (srd, f32, stamp, xgroup_reduce, B, D, DH, OOB, OF_OFF, S_ONES, S_T, SRD_X, SRD_WQKV, SRD_WS)

L_CS = 0
L_ST = 768
L_KV = 2560
L_W = 12288
L_X = 110592
S_TB32, S_HEAD = 48, 49


def phaseA(k, sc1='', hooks=None):
    hooks = hooks or {}
    XR, ONES, SQ, SM, WF, ACC = 16, 40, 48, 60, 88, 136
    vAd, vK, RH, RR, HC = 72, 80, 84, 132, 224
    vXl, vXu, vXh, vWl, vWu, vA0, vA1, vH1 = 124, 125, 126, 127, 128, 129, 130, 131
    vH2, vH3, vRe, vRo, vHe, vHo = 196, 197, 198, 199, 200, 201
    vT = 237
    BP, BC, BPA = 240, 244, 248
    s_rb, s_hp, s_t0, s_m0w, s_m0x, s_tmp, s_hm, s_m0h = 50, 79, 92, 51, 52, 53, 54, 7
    s_o0, s_o1, s_m = 62, 63, 88
    s_hh, s_hf = 56, 57

    def hook(name):
        if name in hooks:
            hooks[name]()

    def xreg(j, blk):
        return XR + (j % 2) * 12 + blk * 4

    def acc(blk, nbi):
        return ACC + blk * 24 + nbi * 4
    HH = [ACC + 48, ACC + 52, ACC + 56]

    k.c('---- phase A setup (2 heads x 64 tokens)')
    k('s_bfe_u32 s%d, s2, 0x20001' % s_rb)
    k('s_lshl_b32 s%d, s%d, 3' % (s_rb, s_rb))
    k('s_lshr_b32 s%d, s2, 5' % s_tmp)
    k('s_add_u32 s%d, s%d, s%d' % (s_rb, s_rb, s_tmp))
    k('s_bfe_u32 s%d, s2, 0x20003' % s_hp)
    k('s_and_b32 s%d, s2, 1' % s_tmp)
    k('s_lshl_b32 s%d, s%d, 2' % (s_tmp, s_tmp))
    k('s_add_u32 s%d, s%d, s%d' % (s_hp, s_hp, s_tmp))
    k('s_and_b32 s%d, s3, 1' % s_hh)
    k('s_lshr_b32 s%d, s3, 1' % s_hf)
    k('v_lshrrev_b32 v%d, 3, v1' % vT)
    k('v_mul_u32_u24 v%d, 2688, v%d' % (vWl, vT))
    k('v_mul_u32_u24 v%d, 896, v%d' % (vXh, vT))
    k('v_and_b32 v%d, 1, v3' % vT)
    k('v_lshlrev_b32 v%d, 1, v%d' % (vT, vT))
    k('v_and_b32 v%d, 7, v1' % (vT + 1))
    k('v_xor_b32 v%d, v%d, v%d' % (vT, vT, vT + 1))
    k('s_mul_i32 s%d, s%d, 112' % (s_tmp, s_hp))
    k('s_mul_i32 s%d, s3, %d' % (s_m0w, 16 * 2688))
    k('s_add_u32 s%d, s%d, s%d' % (s_tmp, s_tmp, s_m0w))
    k('v_add_u32 v%d, s%d, v%d' % (vWl, s_tmp, vWl))
    k('v_xor_b32 v%d, 4, v%d' % (vT + 2, vT))
    k('v_lshl_add_u32 v%d, v%d, 4, v%d' % (vWu, vT + 2, vWl))
    k('v_add_u32 v%d, %d, v%d' % (vWu, 8 * 2688, vWu))
    k('v_lshl_add_u32 v%d, v%d, 4, v%d' % (vWl, vT, vWl))
    k('v_mov_b32 v%d, 0x%x' % (vXl, OOB))
    k('v_cmp_eq_u32 vcc, 7, v%d' % vT)
    k('v_cndmask_b32 v%d, v%d, v%d, vcc' % (vWl, vWl, vXl))
    k('v_cmp_eq_u32 vcc, 7, v%d' % (vT + 2))
    k('v_cndmask_b32 v%d, v%d, v%d, vcc' % (vWu, vWu, vXl))
    k('s_mul_i32 s%d, s%d, 12288' % (s_m0w, s_hf))
    k('s_lshl_b32 s%d, s%d, 11' % (s_tmp, s_hh))
    k('s_add_u32 s%d, s%d, s%d' % (s_m0w, s_m0w, s_tmp))
    k('v_xor_b32 v%d, v%d, v3' % (vT, vT + 1))
    k('v_lshl_add_u32 v%d, v%d, 4, v%d' % (vXl, vT, vXh))
    k('s_lshl_b32 s%d, s%d, 6' % (s_t0, s_rb))
    k('s_lshl_b32 s%d, s3, 4' % s_tmp)
    k('s_add_u32 s%d, s%d, s%d' % (s_tmp, s_tmp, s_t0))
    k('s_mul_i32 s%d, s%d, 896' % (s_tmp, s_tmp))
    k('v_xor_b32 v%d, 64, v%d' % (vXu, vXl))
    k('v_add_u32 v%d, s%d, v%d' % (vXl, s_tmp, vXl))
    k('s_add_u32 s%d, s%d, %d' % (s_tmp, s_tmp, 8 * 896))
    k('v_add_u32 v%d, s%d, v%d' % (vXu, s_tmp, vXu))
    k('s_lshl_b32 s%d, s3, 1' % s_tmp)
    k('v_xor_b32 v%d, s%d, v%d' % (vT, s_tmp, vT))
    k('v_lshl_add_u32 v%d, v%d, 4, v%d' % (vXh, vT, vXh))
    k('s_lshl_b32 s%d, s3, 2' % s_tmp)
    k('s_add_u32 s%d, s%d, s%d' % (s_tmp, s_tmp, s_t0))
    k('s_sub_u32 s%d, s%d, 16' % (s_tmp, s_tmp))
    k('s_mul_i32 s%d, s%d, 896' % (s_tmp, s_tmp))
    k('s_cmp_eq_u32 s%d, 0' % s_rb)
    k('s_cselect_b32 s%d, 0x%x, s%d' % (s_tmp, OOB, s_tmp))
    k('v_add_u32 v%d, s%d, v%d' % (vXh, s_tmp, vXh))
    k('s_lshl_b32 s%d, s3, 11' % s_m0x)
    k('s_add_u32 s%d, s%d, %d' % (s_m0x, s_m0x, L_X + 2048))
    k('s_lshl_b32 s%d, s3, 9' % s_m0h)
    k('s_cmp_eq_u32 s3, 0')
    k('s_cselect_b32 s%d, 0xffffff00, -1' % s_hm)
    k('s_mov_b32 s%d, 0' % (s_hm + 1))

    def dma_group(grp, bg=False):
        tag = 'G%d' % grp
        sd = B.s_dma

        def w_(p, i):
            k('s_add_u32 m0, s%d, %d' % (s_m0w, L_W + (grp % 4) * 24576 + p * 4096 + i * 1024))
            k('s_mov_b32 s%d, %d' % (sd, grp * 64 * 2688 + p * 896))
            k('buffer_load_dwordx4 v%d, %s, s%d offen lds' % (vWu if i else vWl, srd(SRD_WQKV), sd), tag=tag)

        def x_(i):
            k('s_add_u32 m0, s%d, %d' % (s_m0x, (grp % 4) * 10240 + i * 1024))
            k('s_mov_b32 s%d, %d' % (sd, grp * 128))
            k('buffer_load_dwordx4 v%d, %s, s%d offen lds' % (vXu if i else vXl, srd(SRD_X), sd), tag=tag)

        def h_():
            k('s_add_u32 m0, s%d, %d' % (s_m0h, L_X + (grp % 4) * 10240))
            k('s_mov_b32 s%d, %d' % (sd, grp * 128))
            k('s_mov_b64 exec, %s' % sr(s_hm, 2))
            k('buffer_load_dwordx4 v%d, %s, s%d offen lds' % (vXh, srd(SRD_X), sd), tag=tag)
            k('s_mov_b64 exec, -1')
        fs = [lambda i=i: x_(i) for i in range(2)] + [h_] + [lambda p=p, i=i: w_(p, i) for p in range(3) for i in range(2)]
        for f in fs:
            if bg:
                k.bg_push(f)
            else:
                f()

    def warm():
        k('s_lshr_b32 s%d, s2, 3' % s_tmp)
        k('s_lshl_b32 s%d, s%d, 2' % (s_tmp, s_tmp))
        k('s_add_u32 s%d, s%d, s3' % (s_tmp, s_tmp))
        k('s_mul_i32 s%d, s%d, 30' % (S_T, s_tmp))
        k('v_add_u32 v%d, s%d, v1' % (vT, S_T))
        k('v_mul_u32_u24 v%d, 43691, v%d' % (vT + 1, vT))
        k('v_lshrrev_b32 v%d, 19, v%d' % (vT + 1, vT + 1))
        k('v_mul_u32_u24 v%d, 12, v%d' % (vT + 2, vT + 1))
        k('v_sub_u32 v%d, v%d, v%d' % (vT + 2, vT, vT + 2))
        k('v_lshrrev_b32 v%d, 2, v%d' % (vT + 2, vT + 2))
        k('v_mul_u32_u24 v%d, 896, v%d' % (vT + 2, vT + 2))
        k('v_mul_u32_u24 v%d, 2688, v%d' % (vT + 1, vT + 1))
        k('v_and_b32 v%d, 3, v%d' % (vT, vT))
        k('v_lshlrev_b32 v%d, 7, v%d' % (vT, vT))
        k('v_add3_u32 v%d, v%d, v%d, v%d' % (vT, vT, vT + 1, vT + 2))
        k('s_and_b32 s%d, s2, 1' % S_T)
        k('s_mul_i32 s%d, s%d, 384' % (S_T, S_T))
        k('s_add_u32 s%d, s%d, %d' % (S_T, S_T, 128 * 2688))
        k('s_mov_b64 exec, 0x3fffffff')
        if P.WARM0:
            k('buffer_load_dword v232, v%d, %s, s%d offen' % (vT, srd(SRD_WQKV), S_T))
        k('s_mov_b64 exec, -1')
        k('v_lshlrev_b32 v%d, 7, v1' % vT)
        k('s_mul_i32 s%d, s%d, %d' % (S_T, s_tmp, 29 * 128))
        k('s_bfe_u32 s%d, s2, 0x20001' % (S_T + 1))
        k('s_mul_i32 s%d, s%d, %d' % (S_T + 1, S_T + 1, 512 * 896))
        k('s_add_u32 s%d, s%d, s%d' % (S_T, S_T, S_T + 1))
        k('s_max_u32 s%d, s%d, %d' % (S_T, S_T, 16 * 896))
        k('s_sub_u32 s%d, s%d, %d' % (S_T, S_T, 16 * 896))
        k('s_mov_b64 exec, 0x1fffffff')
        if P.WARM0:
            k('buffer_load_dword v233, v%d, %s, s%d offen' % (vT, srd(SRD_X), S_T))
        k('s_getpc_b64 %s' % sr(S_T, 2))
        k.raw('Lpc_%s:' % k.name)
        k('s_lshl_b32 s%d, s%d, 8' % (s_tmp, s_tmp))
        k('v_add_u32 v%d, s%d, v%d' % (vT, s_tmp, vT))
        k('v_min_u32 v%d, %s-Lpc_%s, v%d' % (vT, k.end_label, k.name, vT))
        k('s_mov_b64 exec, 3')
        k('global_load_dword v236, v%d, %s' % (vT, sr(S_T, 2)))
        k('s_mov_b64 exec, -1')

    hook('A_pre')
    pre, post = P.START_ORDER.split('|')
    for ch in pre:
        warm() if ch == 'w' else dma_group(int(ch))
    k('v_mul_u32_u24 v%d, 10240, v3' % vT)
    k('v_lshl_add_u32 v%d, v2, 3, v%d' % (vT, vT))
    k('v_mov_b32 v%d, s%d' % (vT + 1, S_ONES))
    k('v_add_u32 v%d, %d, v%d' % (vT, L_X, vT))
    k('ds_write2_b32 v%d, v%d, v%d offset0:0 offset1:1' % (vT, vT + 1, vT + 1))
    k('s_lshl_b32 s%d, s%d, 1' % (S_TB32, s_rb))
    k('s_add_u32 s%d, s%d, s%d' % (S_TB32, S_TB32, s_hf))
    k('s_lshl_b32 s%d, s%d, 1' % (S_HEAD, s_hp))
    k('s_add_u32 s%d, s%d, s%d' % (S_HEAD, S_HEAD, s_hh))
    hook('A_after_issue')

    k('v_bfe_u32 v%d, v1, 3, 1' % vT)
    k('v_lshlrev_b32 v%d, 5, v%d' % (vT, vT))
    k('v_and_b32 v%d, 1, v3' % (vT + 1))
    k('v_lshl_add_u32 v%d, v%d, 6, v%d' % (vT, vT + 1, vT))
    k('v_and_b32 v%d, 3, v1' % (vT + 1))
    k('v_lshlrev_b32 v%d, 3, v%d' % (vT + 1, vT + 1))
    k('s_mul_i32 s%d, s%d, 56' % (s_tmp, s_hh))
    k('v_add_u32 v%d, s%d, v%d' % (vA0, s_tmp, vT + 1))
    k('v_add_u32 v%d, 32, v%d' % (vA1, vA0))
    k('v_xor_b32 v%d, v%d, v%d' % (vA0, vA0, vT))
    k('v_xor_b32 v%d, v%d, v%d' % (vA1, vA1, vT))
    k('v_bfe_u32 v%d, v1, 2, 2' % vT)
    k('v_lshlrev_b32 v%d, 7, v%d' % (vT, vT))
    k('v_lshl_add_u32 v%d, v3, 10, v%d' % (vT, vT))
    k('v_add_u32 v%d, %d, v%d' % (vT, L_W, vT))
    k('v_add_u32 v%d, v%d, v%d' % (vA0, vA0, vT))
    k('v_add_u32 v%d, v%d, v%d' % (vA1, vA1, vT))
    k('s_lshl_b32 s%d, s%d, 12' % (s_tmp, s_hf))
    k('s_add_u32 s%d, s%d, 4096' % (s_tmp, s_tmp))
    k('v_add_u32 v%d, s%d, v%d' % (vH1, s_tmp, vA0))
    k('v_add_u32 v%d, s%d, v%d' % (vH2, s_tmp, vA1))
    k('s_cmp_eq_u32 s%d, 0' % s_hf)
    k('s_cselect_b64 vcc, -1, 0')
    k('v_cndmask_b32 v%d, v%d, v%d, vcc' % (vH3, vA1, vA0))
    k('v_lshrrev_b32 v%d, 1, v2' % vT)
    k('v_xor_b32 v%d, v%d, v3' % (vT, vT))
    k('v_lshlrev_b32 v%d, 4, v%d' % (vT, vT))
    k('v_lshl_add_u32 v%d, v2, 7, v%d' % (vT, vT))
    k('v_add_u32 v%d, %d, v%d' % (vHe, L_X, vT))
    k('v_xor_b32 v%d, 64, v%d' % (vHo, vHe))
    k('s_lshl_b32 s%d, s%d, 12' % (s_tmp, s_hf))
    k('s_add_u32 s%d, s%d, %d' % (s_tmp, s_tmp, L_X + 2048))
    k('v_add_u32 v%d, s%d, v%d' % (vRe, s_tmp, vT))
    k('v_xor_b32 v%d, 64, v%d' % (vRo, vRe))
    k('v_lshlrev_b32 v%d, 2, v3' % vT)
    k('v_sub_u32 v%d, v2, v%d' % (vT, vT))
    k('v_mov_b32 v%d, %s' % (vT + 2, f32(-1e30)))
    for which, base in ((16, BP), (0, BC)):
        for r in range(4):
            k('v_add_u32 v%d, %d, v%d' % (vT + 1, which - r, vT))
            k('v_and_b32 v%d, 0xfffffff1, v%d' % (vT + 1, vT + 1))
            k('v_cmp_eq_u32 vcc, 0, v%d' % (vT + 1))
            k('v_cndmask_b32 v%d, v%d, 0, vcc' % (base + r, vT + 2))
    k('s_cmp_eq_u32 s%d, 0' % S_TB32)
    k('s_cselect_b64 vcc, -1, 0')
    for r in range(4):
        k('v_cndmask_b32 v%d, v%d, v%d, vcc' % (BPA + r, BP + r, vT + 2))
    for i in range(4):
        k('v_mov_b32 v%d, s%d' % (ONES + i, S_ONES))
    for i, mk in enumerate((0x22222222, 0x44444444)):
        k('s_mov_b32 s%d, 0x%x' % (s_m + 2 * i, mk))
        k('s_mov_b32 s%d, 0x%x' % (s_m + 2 * i + 1, mk))
    k('s_mul_i32 s%d, s%d, 384' % (s_tmp, s_hh))
    k('v_lshl_add_u32 v%d, v3, 4, s%d' % (vAd, s_tmp))
    k('v_lshl_add_u32 v%d, v2, 2, s%d' % (vAd + 5, s_tmp))
    k('s_lshl_b32 s%d, s%d, 7' % (s_tmp, s_hf))
    k('v_add_u32 v%d, s%d, v%d' % (vAd + 1, s_tmp, vAd))
    k('s_lshl_b32 s%d, s%d, 6' % (s_tmp, s_hf))
    k('v_add_u32 v%d, s%d, v%d' % (vAd + 2, s_tmp, vAd))
    k('s_mul_i32 s%d, s3, 384' % s_tmp)
    k('s_add_u32 s%d, s%d, %d' % (s_tmp, s_tmp, L_ST))
    k('v_lshl_add_u32 v%d, v2, 2, s%d' % (vAd + 3, s_tmp))
    k('v_lshl_add_u32 v%d, v3, 4, s%d' % (vAd + 4, s_tmp))
    k('s_lshl_b32 s%d, s%d, 12' % (s_tmp, s_hh))
    k('s_lshl_b32 s%d, s%d, 11' % (S_T, s_hf))
    k('s_add_u32 s%d, s%d, s%d' % (S_T, S_T, s_tmp))
    k('v_add_u32 v%d, s%d, v4' % (vAd + 6, S_T))
    k('s_lshl_b32 s%d, s%d, 14' % (S_T, s_hf))
    k('s_add_u32 s%d, s%d, s%d' % (S_T, S_T, s_tmp))
    k('v_add_u32 v%d, s%d, v4' % (vAd + 7, S_T))
    k('v_lshrrev_b32 v%d, 2, v2' % (vK + 1))
    k('v_lshlrev_b32 v%d, 8, v%d' % (vK + 1, vK + 1))
    k('v_lshl_add_u32 v%d, v3, 6, v%d' % (vK + 1, vK + 1))
    k('v_and_b32 v%d, 3, v2' % (vK + 2))
    k('v_lshl_add_u32 v%d, v%d, 1, v%d' % (vK + 1, vK + 2, vK + 1))
    k('v_add_u32 v%d, 1024, v%d' % (vK + 1, vK + 1))
    k('s_cmp_eq_u32 s%d, 0' % s_hf)
    k('s_cselect_b64 vcc, -1, 0')
    k('s_cselect_b32 s%d, 2, 16' % S_T)
    k('v_cndmask_b32 v%d, v%d, v4, vcc' % (vK, vK + 1))
    k('v_add_u32 v%d, s%d, v%d' % (vK, s_tmp, vK))
    for i in range(3):
        k('v_add_u32 v%d, s%d, v%d' % (vK + i + 1, S_T, vK + i))
    k('s_lshl_b32 s%d, s%d, 5' % (s_o0, S_TB32))
    k('s_add_u32 s%d, s%d, s%d' % (s_o0, s_o0, S_HEAD))
    k('s_lshl_b32 s%d, s%d, 10' % (s_o0, s_o0))
    if OF_OFF:
        k('s_add_u32 s%d, s%d, 0x%x' % (s_o0, s_o0, OF_OFF))
    k('s_add_u32 s%d, s%d, 16384' % (s_o1, s_o0))

    frag_addr = [(vA0, 0), (vA1, 0), (vA0, 4096), (vA1, 4096), (vA0, 8192), (vA1, 8192), (vH1, 0), (vH2, 0), (vH3, 0)]

    def read_frag(f, j, h=None):
        va, off = frag_addr[f]
        o = (j % 4) * 12288 + off
        for hh in ((0, 1) if h is None else (h,)):
            k('ds_read_b64_tr_b16 %s, v%d offset:%d' % (vr(WF + 4 * f + 2 * hh, 2), va, o + 512 * hh))

    def read_x(j, blk=None):
        o = ((j // 2) % 4) * 10240
        for b_ in (range(3) if blk is None else (blk,)):
            if b_ < 2:
                k('ds_read_b128 %s, v%d offset:%d' % (vr(xreg(j, b_), 4), vRo if j & 1 else vRe, o + 2048 * b_))
            else:
                k('ds_read_b128 %s, v%d offset:%d' % (vr(xreg(j, 2), 4), vHo if j & 1 else vHe, o))

    pre_ops = []

    def rr(blk):
        return RR + 2 * blk if blk < 2 else RH

    def cs_write():
        k('s_mov_b32 exec_lo, 0x00010001')
        k('s_mov_b32 exec_hi, 0x00010001')
        k('ds_write_b128 v%d, %s offset:%d' % (vAd + 1, vr(HH[0], 4), L_CS + 128))
        k('ds_write_b128 v%d, %s offset:%d' % (vAd + 1, vr(HH[1], 4), L_CS + 192))
        k('ds_write_b128 v%d, %s offset:%d' % (vAd + 2, vr(HH[2], 4), L_CS))
        k('s_mov_b64 exec, -1')

    def st_write():
        k('s_mov_b32 exec_lo, 0x00f0000f')
        k('s_mov_b32 exec_hi, 0xf0000f00')
        for blk in range(3):
            k('ds_write2_b32 v%d, v%d, v%d offset0:%d offset1:%d' % (vAd + 3, rr(blk), rr(blk) + 1, 32 * blk, 32 * blk + 16))
        k('s_mov_b64 exec, -1')

    def op(txt):
        pre_ops.append(lambda: k(txt))
    for blk in range(3):
        op('v_cndmask_b32 v%d, v%d, v%d, %s' % (SQ + 4 * blk, SQ + 4 * blk, SQ + 4 * blk + 1, sr(s_m, 2)))
    for blk in range(3):
        op('v_cndmask_b32 v%d, v%d, v%d, %s' % (SQ + 4 * blk, SQ + 4 * blk, SQ + 4 * blk + 2, sr(s_m + 2, 2)))
    pre_ops.append(lambda: (k('s_mov_b32 s%d, 0x88888888' % s_m), k('s_mov_b32 s%d, 0x88888888' % (s_m + 1))))
    for blk in range(3):
        op('v_cndmask_b32 v%d, v%d, v%d, %s' % (SQ + 4 * blk, SQ + 4 * blk, SQ + 4 * blk + 3, sr(s_m, 2)))
    for blk in range(3):
        op('v_mul_f32 v%d, %s, v%d' % (rr(blk) + 1, f32(1.0 / D), SM + 4 * blk))
    for blk in range(3):
        op('v_mul_f32 v%d, v%d, v%d' % (rr(blk), rr(blk) + 1, rr(blk) + 1))
    for blk in range(3):
        op('v_mul_f32 v%d, %s, v%d' % (SQ + 4 * blk, f32(1.0 / D), SQ + 4 * blk))
    pre_ops.append(cs_write)
    for blk in range(3):
        op('v_sub_f32 v%d, v%d, v%d' % (rr(blk), SQ + 4 * blk, rr(blk)))
    for blk in range(3):
        op('v_max_f32 v%d, 0, v%d' % (rr(blk), rr(blk)))
    for blk in range(3):
        op('v_add_f32 v%d, %s, v%d' % (rr(blk), f32(1e-5), rr(blk)))
    for blk in range(3):
        op('v_rsq_f32 v%d, v%d' % (rr(blk), rr(blk)))
    pre_ops.append(st_write)
    for i in range(8):
        op('v_mov_b32_dpp v%d, v%d row_newbcast:0 row_mask:0xf bank_mask:0xf' % (HC + i, HH[0] + i))
    for i in range(8):
        op('v_fma_f32 v%d, -v%d, v%d, v%d' % (HC + i, HC + i, RH + 1, HH[0] + i))
    pre_ops.append(lambda: (k('s_mov_b32 s%d, -1' % (s_m + 2)), k('s_mov_b32 s%d, 0xffff' % (s_m + 3))))

    for ch in post:
        warm() if ch == 'w' else dma_group(int(ch))
    stamp(k, 1)
    k.wait_tag('G0')
    k.wait_lg(0)
    k.barrier()
    stamp(k, 2)
    read_x(0)
    for f in range(9):
        read_frag(f, 0)
    dma_group(2, bg=True)
    k.lg_slack = 6
    for j in range(14):
        k.c('kstep %d' % j)
        if j + 1 < 14 and (j + 1) % 2 == 0:
            k.bg_flush()
            k.wait_tag('G%d' % ((j + 1) // 2))
            k.barrier()
            if (j + 5) // 2 < 7:
                dma_group((j + 5) // 2, bg=True)
            hook('A_b%d' % j)
        if (j + 1) % 4 == 0 and j + 1 < 14:
            for va in (vA0, vA1, vH1, vH2, vH3):
                k('v_add_u32 v%d, 0x%x, v%d' % (va, (49152 if (j + 1) % 8 else -49152) & 0xffffffff, va))
        mf = []
        for f in range(9):
            w = vr(WF + 4 * f, 4)
            if f < 6:
                for blk in range(2):
                    a = vr(acc(blk, f), 4)
                    x = vr(xreg(j, blk), 4)
                    c = '0' if j == 0 else a
                    mf.append(('v_mfma_f32_16x16x32_bf16 %s, %s, %s, %s' % ((a, w, x, c) if f < 4 else (a, x, w, c)), f if blk else -1))
            else:
                a = vr(HH[f - 6], 4)
                mf.append(('v_mfma_f32_16x16x32_bf16 %s, %s, %s, %s' % (a, w, vr(xreg(j, 2), 4), '0' if j == 0 else a), f))
        for f in range(6):
            x = vr(xreg(j, f % 3), 4)
            a = vr((SQ if f < 3 else SM) + 4 * (f % 3), 4)
            mf.append(('v_mfma_f32_16x16x32_bf16 %s, %s, %s, %s' % (a, x if f < 3 else vr(ONES, 4), x, '0' if j == 0 else a), -1))
        fill = []
        if j + 1 < 14:
            fill += [lambda i=i: read_x(j + 1, i) for i in range(3)]
        if j == 13:
            mf = mf[15:] + mf[12:15] + mf[4:12] + mf[0:4]
        for i, (txt, done) in enumerate(mf):
            k(txt)
            if j == 13 and i >= 8:
                for f_ in pre_ops[:3]:
                    f_()
                del pre_ops[:3]
            if done >= 0 and j + 1 < 14:
                fill += [lambda f=done, h=h: read_frag(f, j + 1, h) for h in range(2)]
            if fill:
                fill.pop(0)()
            if i % 4 == 3:
                k.bg()
        for f_ in fill:
            f_()
        if j == 6:
            stamp(k, 3)
        hook('A_k%d' % j)
    k.lg_slack = 0
    k.c('---- phase A epilogue')
    stamp(k, 4)
    for f_ in pre_ops:
        f_()
    k.wait_lg(0)
    k.barrier()
    hook('A_e1')
    CS, CSV, L2, RQ, QT, KT, VV, SS = 48, 64, 32, 68, 88, 96, 108, 16
    for blk in (1, 2, 0):
        k('ds_read_b32 v%d, v%d offset:%d' % (rr(blk), vAd + 3, 128 * blk))
    for s_ in (2, 3):
        k('ds_read_b128 %s, v%d offset:%d' % (vr(CS + 4 * s_, 4), vAd, L_CS + 64 * s_))
    k('ds_read_b32 v%d, v%d offset:%d' % (CSV, vAd + 5, L_CS + 256))
    k('ds_read_b32 v%d, v%d offset:%d' % (CSV + 1, vAd + 5, L_CS + 320))
    for blk in (1, 0):
        k('ds_read_b128 %s, v%d offset:%d' % (vr(L2 + 8 * blk + 4, 4), vAd + 4, blk * 128 + 64))
        k('ds_read_b128 %s, v%d offset:%d' % (vr(L2 + 8 * blk, 4), vAd + 4, blk * 128))
    for s_ in (0, 1):
        k('ds_read_b128 %s, v%d offset:%d' % (vr(CS + 4 * s_, 4), vAd, L_CS + 64 * s_))
    qs = (DH ** -0.5) * 1.4426950408889634

    def fix_qk(blk, nbi, scale_reg, dst):
        a = acc(blk, nbi)
        hi = scale_reg & 1
        for r in (0, 2):
            k('v_pk_fma_f32 %s, %s, %s, %s op_sel:[0,1,0] op_sel_hi:[1,1,1] neg_lo:[0,1,0] neg_hi:[0,1,0]' % (
                vr(a + r, 2), vr(CS + 4 * nbi + r, 2), vr(RR + 2 * blk, 2), vr(a + r, 2)))
        for r in (0, 2):
            k('v_pk_mul_f32 %s, %s, %s op_sel:[0,%d] op_sel_hi:[1,%d]' % (vr(a + r, 2), vr(a + r, 2), vr(scale_reg - hi, 2), hi, hi))
        k('v_cvt_pk_bf16_f32 v%d, v%d, v%d' % (dst, a, a + 1))
        k('v_cvt_pk_bf16_f32 v%d, v%d, v%d' % (dst + 1, a + 2, a + 3))

    def fix_v(blk, nb):
        a = acc(blk, 4 + nb)
        for r in (0, 2):
            k('v_pk_fma_f32 %s, %s, %s, %s op_sel:[0,%d,0] op_sel_hi:[1,%d,1] neg_lo:[0,1,0] neg_hi:[0,1,0]' % (
                vr(a + r, 2), vr(L2 + 8 * blk + 4 + r, 2), vr(CSV, 2), vr(a + r, 2), nb, nb))
        for r in (0, 2):
            k('v_pk_mul_f32 %s, %s, %s' % (vr(a + r, 2), vr(a + r, 2), vr(L2 + 8 * blk + r, 2)))
        dst = VV + 6 * nb + 2 + 2 * blk
        k('v_cvt_pk_bf16_f32 v%d, v%d, v%d' % (dst, a, a + 1))
        k('v_cvt_pk_bf16_f32 v%d, v%d, v%d' % (dst + 1, a + 2, a + 3))

    fix_qk(1, 2, RR + 2, KT + 8)
    fix_qk(1, 3, RR + 2, KT + 10)
    k('ds_write_b128 v%d, %s offset:%d' % (vAd + 7, vr(KT + 8, 4), L_KV + 2048))
    for r in range(0, 8, 2):
        k('v_pk_mul_f32 %s, %s, %s op_sel_hi:[1,0]' % (vr(HC + r, 2), vr(HC + r, 2), vr(RH, 2)))
    for r in range(0, 8, 2):
        k('v_cvt_pk_bf16_f32 v%d, v%d, v%d' % (HC + r, HC + r, HC + r + 1))
    for nb in range(2):
        k('ds_write_b16 v%d, v%d offset:%d' % (vK, HC + 4 * nb, L_KV + 8 * nb))
        k('ds_write_b16_d16_hi v%d, v%d offset:%d' % (vK + 1, HC + 4 * nb, L_KV + 8 * nb))
        k('ds_write_b16 v%d, v%d offset:%d' % (vK + 2, HC + 4 * nb + 2, L_KV + 8 * nb))
        k('ds_write_b16_d16_hi v%d, v%d offset:%d' % (vK + 3, HC + 4 * nb + 2, L_KV + 8 * nb))
    fix_v(1, 0)
    fix_v(1, 1)
    k('ds_write_b64 v%d, %s offset:%d' % (vAd + 7, vr(VV + 4, 2), L_KV + 2048 + 1024))
    k('ds_write_b64 v%d, %s offset:%d' % (vAd + 7, vr(VV + 10, 2), L_KV + 2048 + 1024 + 8))
    for blk in range(2):
        k('v_mul_f32 v%d, %s, v%d' % (RQ + 2 * blk, f32(qs), RR + 2 * blk))
    for blk in range(2):
        k('v_cndmask_b32 v%d, 0, v%d, %s' % (RQ + 2 * blk + 1, RQ + 2 * blk, sr(s_m + 2, 2)))
    fix_qk(0, 2, RR + 0, KT + 4)
    fix_qk(0, 3, RR + 0, KT + 6)
    k.wait_lg(0)
    k.barrier()
    k('ds_read_b128 %s, v%d offset:%d' % (vr(KT, 4), vAd + 6, L_KV))
    k('ds_read_b64 %s, v%d offset:%d' % (vr(VV, 2), vAd + 6, L_KV + 1024))
    k('ds_read_b64 %s, v%d offset:%d' % (vr(VV + 6, 2), vAd + 6, L_KV + 1024 + 8))
    fix_qk(1, 0, RQ + 2, QT + 4)
    fix_qk(1, 1, RQ + 3, QT + 6)
    k('v_mfma_f32_16x16x32_bf16 %s, %s, %s, %s' % (vr(SS + 8, 4), vr(KT + 4, 4), vr(QT + 4, 4), vr(BP, 4)))
    k('v_mfma_f32_16x16x32_bf16 %s, %s, %s, %s' % (vr(SS + 12, 4), vr(KT + 8, 4), vr(QT + 4, 4), vr(BC, 4)))
    fix_qk(0, 0, RQ + 0, QT + 0)
    fix_qk(0, 1, RQ + 1, QT + 2)
    k('v_mfma_f32_16x16x32_bf16 %s, %s, %s, %s' % (vr(SS + 0, 4), vr(KT + 0, 4), vr(QT, 4), vr(BPA, 4)))
    k('v_mfma_f32_16x16x32_bf16 %s, %s, %s, %s' % (vr(SS + 4, 4), vr(KT + 4, 4), vr(QT, 4), vr(BC, 4)))
    fix_v(0, 0)
    fix_v(0, 1)
    MX, TM, SUM, PP, OO = ACC, ACC + 2, ACC + 4, ACC + 8, ACC + 16
    for blk in (1, 0):
        s_ = SS + 8 * blk
        k('v_max3_f32 v%d, v%d, v%d, v%d' % (MX + blk, s_, s_ + 1, s_ + 2))
        k('v_max3_f32 v%d, v%d, v%d, v%d' % (TM + blk, s_ + 3, s_ + 4, s_ + 5))
        k('v_max3_f32 v%d, v%d, v%d, v%d' % (MX + blk, MX + blk, s_ + 6, s_ + 7))
        k('v_max_f32 v%d, v%d, v%d' % (MX + blk, MX + blk, TM + blk))
    xgroup_reduce(k, [MX, MX + 1], [TM, TM + 1], op='v_max_f32')
    for blk in (1, 0):
        s_ = SS + 8 * blk
        for i in range(0, 8, 2):
            k('v_pk_add_f32 %s, %s, %s op_sel:[0,%d] op_sel_hi:[1,%d] neg_lo:[0,1] neg_hi:[0,1]' % (vr(s_ + i, 2), vr(s_ + i, 2), vr(MX, 2), blk, blk))
        for i in range(8):
            k('v_exp_f32 v%d, v%d' % (s_ + i, s_ + i))
        for i in range(4):
            k('v_cvt_pk_bf16_f32 v%d, v%d, v%d' % (PP + 4 * blk + i, s_ + 2 * i, s_ + 2 * i + 1))
        for nb in range(2):
            k('v_mfma_f32_16x16x32_bf16 %s, %s, %s, 0' % (vr(OO + 8 * blk + 4 * nb, 4), vr(VV + 6 * nb + 2 * blk, 4), vr(PP + 4 * blk, 4)))
    for blk in range(2):
        s_ = SS + 8 * blk
        k('v_pk_add_f32 %s, %s, %s' % (vr(s_, 2), vr(s_, 2), vr(s_ + 2, 2)))
        k('v_pk_add_f32 %s, %s, %s' % (vr(s_ + 4, 2), vr(s_ + 4, 2), vr(s_ + 6, 2)))
    for blk in range(2):
        s_ = SS + 8 * blk
        k('v_pk_add_f32 %s, %s, %s' % (vr(s_, 2), vr(s_, 2), vr(s_ + 4, 2)))
    for blk in range(2):
        s_ = SS + 8 * blk
        k('v_add_f32 v%d, v%d, v%d' % (SUM + 2 * blk, s_, s_ + 1))
    xgroup_reduce(k, [SUM, SUM + 2], [TM, TM + 1])
    for blk in range(2):
        k('v_rcp_f32 v%d, v%d' % (SUM + 2 * blk, SUM + 2 * blk))
    for blk in range(2):
        k('v_cndmask_b32 v%d, 0, v%d, %s' % (SUM + 2 * blk + 1, SUM + 2 * blk, sr(s_m + 2, 2)))
    for blk in range(2):
        o = OO + 8 * blk
        for r in (0, 2):
            k('v_pk_mul_f32 %s, %s, %s op_sel_hi:[1,0]' % (vr(o + r, 2), vr(o + r, 2), vr(SUM + 2 * blk, 2)))
        for r in (0, 2):
            k('v_pk_mul_f32 %s, %s, %s op_sel:[0,1] op_sel_hi:[1,1]' % (vr(o + 4 + r, 2), vr(o + 4 + r, 2), vr(SUM + 2 * blk, 2)))
        p = PP + 4 * blk
        for i in range(4):
            k('v_cvt_pk_bf16_f32 v%d, v%d, v%d' % (p + i, o + 2 * i, o + 2 * i + 1))
        k('buffer_store_dwordx4 %s, v4, %s, s%d offen %s' % (vr(p, 4), srd(SRD_WS), s_o0 if blk == 0 else s_o1, sc1), tag='ost')
```

```python
import struct
from dsl import Kernel, vr, ar, sr, classify

S, D, H, DH, F = 2048, 448, 16, 28, 1792

OF_OFF = 0x000000
HH_OFF = 0x200000
U_OFF = 0x3C0000
STAT_OFF = 0x548000
FLAG_OFF = 0x588000
WS_SIZE = 0x5C0000
OOB = 0x40000000

SRD_X, SRD_WQKV, SRD_WO, SRD_W1, SRD_W2, SRD_B1, SRD_B2, SRD_OUT, SRD_WS, SRD_DBG = 8, 12, 16, 20, 24, 28, 32, 36, 40, 44
SRD_A = 96
S_WG, S_WAVE = 2, 3
S_EPOCH = 4
S_SPIN = 6
S_ONES = 5
S_T = 86
V_LANE, V_T16, V_G, V_L16 = 1, 2, 3, 4


def f32(x):
    return '0x%08x' % struct.unpack('<I', struct.pack('<f', x))[0]


def srd(base):
    return sr(base, 4)


def prologue(k, nwg, end_label, need):
    k('s_cmp_ge_u32 s2, %d' % nwg)
    k('s_cbranch_scc1 %s' % end_label)
    if getattr(k, 'xcctest', False):
        k('s_getreg_b32 s3, hwreg(HW_REG_XCC_ID)')
        k('s_and_b32 s3, s3, 15')
        k('s_and_b32 s4, s2, 7')
        k('s_cmp_eq_u32 s3, s4')
        k('s_cbranch_scc1 Lxcc_ok')
        for _ in range(8):
            k('s_sleep 127')
        k.raw('Lxcc_ok:')
    if getattr(k, 'scramble', False):
        k('s_and_b32 s3, s2, 7')
        k('s_lshl_b32 s3, s3, 5')
        k('s_lshr_b32 s2, s2, 3')
        k('s_or_b32 s2, s2, s3')
    for base, off, size in need:
        k('s_load_dwordx2 %s, s[0:1], %d' % (sr(base, 2), off))
    k('v_lshrrev_b32 v1, 6, v0')
    k('v_readfirstlane_b32 s3, v1')
    k('v_and_b32 v1, 63, v0')
    k('v_and_b32 v2, 15, v0')
    k('v_lshrrev_b32 v3, 4, v1')
    k('v_lshlrev_b32 v4, 4, v1')
    for base, off, size in need:
        k('s_mov_b32 s%d, 0x%x' % (base + 2, size))
        k('s_mov_b32 s%d, 0x00020000' % (base + 3))
    k('s_mov_b32 s%d, 0x3f803f80' % S_ONES)
    k('s_mov_b32 s%d, 0x200000' % S_SPIN)
    k.end_label = end_label


ARG = dict(x=(SRD_X, 0, S * D * 2), wqkv=(SRD_WQKV, 8, D * 3 * D * 2), wo=(SRD_WO, 16, D * D * 2),
           w1=(SRD_W1, 32, S * F * 2), b1=(SRD_B1, 40, F * 2), w2=(SRD_W2, 48, F * S * 2), b2=(SRD_B2, 56, S * 2),
           out=(SRD_OUT, 64, S * D * 2), dbg=(SRD_DBG, 72, 256), ws=(SRD_WS, 80, WS_SIZE))


def xgroup_reduce(k, regs, tmp, op='v_add_f32'):
    for swap in ('v_permlane32_swap_b32', 'v_permlane16_swap_b32'):
        for r, t in zip(regs, tmp):
            k('v_mov_b32 v%d, v%d' % (t, r))
        for r, t in zip(regs, tmp):
            k('%s v%d, v%d' % (swap, r, t))
        for r, t in zip(regs, tmp):
            k('%s v%d, v%d, v%d' % (op, r, r, t))


A_LDS_CS = 0
A_LDS_ST = 512
A_LDS_KV = 2048
A_LDS_W = 12288
A_LDS_X = 61440
A_XSLOT = [2, 1, 0, 3]
A_LDS_END = A_LDS_X + 4 * 18432
LDS_STG = 12288
STG_SZ = 36864
NSLOT = 18
LDS_END = 163840
LDS_WO = 106496
TMP = 219


def xslot(grp):
    return A_XSLOT.index(grp % 4) * 18432


def phaseA(k, sc1='', hooks=None):
    hooks = hooks or {}
    XR = 16
    ACC = 136
    WF = 88
    ONES = 40
    SQ, SM = 48, 60
    vXl, vXu, vXh, vW, vA0, vA1, vH1, vH2 = 120, 121, 122, 123, 124, 125, 126, 127
    vRe, vRo, vHe, vHo = 128, 129, 130, 131
    vT = 237
    BP, BC, BPA = 240, 244, 248
    s_rb, s_head, s_t0, s_m0w, s_m0x, s_tmp = 48, 49, 50, 51, 52, 53
    s_hm = 54
    s_m0h = 7
    s_hv = S_HV
    s_o0, s_o1 = 62, 63

    def hook(name):
        if name in hooks:
            hooks[name]()

    def xreg(j, blk):
        return XR + (j % 2) * 12 + blk * 4

    def acc(blk, nbi):
        return ACC + blk * 24 + nbi * 4
    H1, H2 = ACC + 48, ACC + 52

    k.c('---- phase A setup')
    k('s_bfe_u32 s%d, s2, 0x20001' % s_rb)
    k('s_lshl_b32 s%d, s%d, 2' % (s_rb, s_rb))
    k('s_lshr_b32 s%d, s2, 6' % s_tmp)
    k('s_add_u32 s%d, s%d, s%d' % (s_rb, s_rb, s_tmp))
    k('s_bfe_u32 s%d, s2, 0x30003' % s_head)
    k('s_and_b32 s%d, s2, 1' % s_tmp)
    k('s_lshl_b32 s%d, s%d, 3' % (s_tmp, s_tmp))
    k('s_add_u32 s%d, s%d, s%d' % (s_head, s_head, s_tmp))
    k('v_lshrrev_b32 v%d, 2, v1' % vT)
    k('v_mul_u32_u24 v%d, 2688, v%d' % (vW, vT))
    k('v_lshrrev_b32 v%d, 5, v1' % vT)
    k('v_lshlrev_b32 v%d, 1, v%d' % (vT, vT))
    k('v_and_b32 v%d, 3, v1' % (vT + 1))
    k('v_xor_b32 v%d, v%d, v%d' % (vT, vT, vT + 1))
    k('v_lshl_add_u32 v%d, v%d, 4, v%d' % (vW, vT, vW))
    k('s_mul_i32 s%d, s%d, 56' % (s_tmp, s_head))
    k('s_min_u32 s%d, s%d, 832' % (s_tmp, s_tmp))
    k('s_mul_i32 s%d, s3, %d' % (s_m0w, 16 * 2688))
    k('s_add_u32 s%d, s%d, s%d' % (s_tmp, s_tmp, s_m0w))
    k('v_add_u32 v%d, s%d, v%d' % (vW, s_tmp, vW))
    k('s_lshr_b32 s%d, s3, 1' % s_tmp)
    k('s_mul_i32 s%d, s%d, 6144' % (s_m0w, s_tmp))
    k('s_and_b32 s%d, s3, 1' % s_tmp)
    k('s_lshl_b32 s%d, s%d, 10' % (s_tmp, s_tmp))
    k('s_add_u32 s%d, s%d, s%d' % (s_m0w, s_m0w, s_tmp))
    k('v_lshrrev_b32 v%d, 3, v1' % vT)
    k('v_mul_u32_u24 v%d, 896, v%d' % (vXh, vT))
    k('v_and_b32 v%d, 7, v1' % vT)
    k('v_xor_b32 v%d, v%d, v3' % (vT, vT))
    k('v_lshl_add_u32 v%d, v%d, 4, v%d' % (vXl, vT, vXh))
    k('s_lshl_b32 s%d, s%d, 7' % (s_t0, s_rb))
    k('s_lshl_b32 s%d, s3, 5' % s_tmp)
    k('s_add_u32 s%d, s%d, s%d' % (s_tmp, s_tmp, s_t0))
    k('s_mul_i32 s%d, s%d, 896' % (s_tmp, s_tmp))
    k('v_xor_b32 v%d, 64, v%d' % (vXu, vXl))
    k('v_add_u32 v%d, s%d, v%d' % (vXl, s_tmp, vXl))
    k('s_add_u32 s%d, s%d, %d' % (s_tmp, s_tmp, 8 * 896))
    k('v_add_u32 v%d, s%d, v%d' % (vXu, s_tmp, vXu))
    k('s_lshl_b32 s%d, s3, 1' % s_tmp)
    k('v_xor_b32 v%d, s%d, v%d' % (vT, s_tmp, vT))
    k('v_lshl_add_u32 v%d, v%d, 4, v%d' % (vXh, vT, vXh))
    k('s_lshl_b32 s%d, s3, 2' % s_tmp)
    k('s_add_u32 s%d, s%d, s%d' % (s_tmp, s_tmp, s_t0))
    k('s_sub_u32 s%d, s%d, 16' % (s_tmp, s_tmp))
    k('s_mul_i32 s%d, s%d, 896' % (s_tmp, s_tmp))
    k('s_cmp_eq_u32 s%d, 0' % s_rb)
    k('s_cselect_b32 s%d, 0x%x, s%d' % (s_tmp, OOB, s_tmp))
    k('v_add_u32 v%d, s%d, v%d' % (vXh, s_tmp, vXh))
    k('s_lshl_b32 s%d, s3, 12' % s_m0x)
    k('s_add_u32 s%d, s%d, %d' % (s_m0x, s_m0x, A_LDS_X + 2048))
    k('s_lshl_b32 s%d, s3, 9' % s_m0h)
    k('s_cmp_eq_u32 s3, 0')
    k('s_cselect_b32 s%d, 0xffffff00, -1' % s_hm)
    k('s_mov_b32 s%d, 0' % (s_hm + 1))

    def dma_group(grp, bg=False):
        tag = 'G%d' % grp
        sd = B.s_dma

        def w_(p):
            k('s_add_u32 m0, s%d, %d' % (s_m0w, A_LDS_W + (grp % 4) * 12288 + p * 2048))
            k('s_mov_b32 s%d, %d' % (sd, grp * 64 * 2688 + p * 896))
            k('buffer_load_dwordx4 v%d, %s, s%d offen lds' % (vW, srd(SRD_WQKV), sd), tag=tag)

        def x_(i):
            k('s_add_u32 m0, s%d, %d' % (s_m0x, xslot(grp) + i * 1024))
            k('s_mov_b32 s%d, %d' % (sd, grp * 128 + (i >> 1) * 16 * 896))
            k('buffer_load_dwordx4 v%d, %s, s%d offen lds' % (vXu if i & 1 else vXl, srd(SRD_X), sd), tag=tag)

        def h_():
            k('s_add_u32 m0, s%d, %d' % (s_m0h, A_LDS_X + xslot(grp)))
            k('s_mov_b32 s%d, %d' % (sd, grp * 128))
            k('s_mov_b64 exec, %s' % sr(s_hm, 2))
            k('buffer_load_dwordx4 v%d, %s, s%d offen lds' % (vXh, srd(SRD_X), sd), tag=tag)
            k('s_mov_b64 exec, -1')
        fs = [lambda p=p: w_(p) for p in range(3)] + [lambda i=i: x_(i) for i in range(4)] + [h_]
        for f in fs:
            if bg:
                k.bg_push(f)
            else:
                f()

    def warm():
        k('s_bfe_u32 s%d, s2, 0x30003' % s_tmp)
        k('s_add_u32 s%d, s%d, 1' % (S_T, s_tmp))
        k('s_lshr_b32 s%d, s%d, 1' % (S_T, S_T))
        k('s_lshr_b32 s%d, s2, 6' % (S_T + 1))
        k('s_mul_i32 s%d, s%d, 5' % (S_T + 1, S_T + 1))
        k('s_add_u32 s%d, s%d, s%d' % (S_T, S_T, S_T + 1))
        k('s_lshl_b32 s%d, s%d, 2' % (S_T, S_T))
        k('s_add_u32 s%d, s%d, s3' % (s_tmp, S_T))
        k('s_mov_b32 s%d, s%d' % (S_WR, s_tmp))
        k('s_mov_b32 s%d, 0x2a54' % S_T)
        k('s_bitcmp1_b32 s%d, s%d' % (S_T, s_head))
        k('s_cselect_b32 s%d, 0x%x, %s' % (s_hv, OOB, '0' if WARM0 else '0x%x' % OOB))
        NL = -(-(448 - WROW) * 12 // 80)
        k('s_mul_i32 s%d, s%d, %d' % (S_T, s_tmp, NL))
        for rep in range(2 if NL > 64 else 1):
            k('v_add_u32 v%d, s%d, v1' % (vT, S_T))
            if rep:
                k('v_add_u32 v%d, 64, v%d' % (vT, vT))
            k('v_mul_u32_u24 v%d, 43691, v%d' % (vT + 1, vT))
            k('v_lshrrev_b32 v%d, 19, v%d' % (vT + 1, vT + 1))
            k('v_mul_u32_u24 v%d, 12, v%d' % (vT + 2, vT + 1))
            k('v_sub_u32 v%d, v%d, v%d' % (vT + 2, vT, vT + 2))
            k('v_lshrrev_b32 v%d, 2, v%d' % (vT + 2, vT + 2))
            k('v_mul_u32_u24 v%d, 896, v%d' % (vT + 2, vT + 2))
            k('v_mul_u32_u24 v%d, 2688, v%d' % (vT + 1, vT + 1))
            k('v_and_b32 v%d, 3, v%d' % (vT, vT))
            k('v_lshlrev_b32 v%d, 7, v%d' % (vT, vT))
            k('v_add3_u32 v%d, v%d, v%d, v%d' % (vT, vT, vT + 1, vT + 2))
            k('v_add_u32 v%d, s%d, v%d' % (vT, s_hv, vT))
            k('s_and_b32 s%d, s2, 1' % (S_T + 1))
            k('s_mul_i32 s%d, s%d, 384' % (S_T + 1, S_T + 1))
            k('s_add_u32 s%d, s%d, %d' % (S_T + 1, S_T + 1, WROW * 2688))
            nl = min(NL - 64 * rep, 64)
            m = (1 << nl) - 1
            k('s_mov_b32 exec_lo, 0x%x' % (m & 0xffffffff))
            k('s_mov_b32 exec_hi, 0x%x' % (m >> 32))
            k('buffer_load_dword v%d, v%d, %s, s%d offen' % (232 - rep, vT, srd(SRD_WQKV), S_T + 1))
            k('s_mov_b64 exec, -1')
        k('v_lshlrev_b32 v%d, 7, v1' % vT)
        k('v_add_u32 v%d, s%d, v%d' % (vT + 1, s_hv, vT))
        k('s_mul_i32 s%d, s%d, %d' % (S_T, s_tmp, 47 * 128))
        k('s_bfe_u32 s%d, s2, 0x20001' % (S_T + 1))
        k('s_mul_i32 s%d, s%d, %d' % (S_T + 1, S_T + 1, 512 * 896))
        k('s_add_u32 s%d, s%d, s%d' % (S_T, S_T, S_T + 1))
        k('s_max_u32 s%d, s%d, %d' % (S_T, S_T, 16 * 896))
        k('s_sub_u32 s%d, s%d, %d' % (S_T, S_T, 16 * 896))
        k('s_mov_b32 exec_hi, 0x7fff')
        k('buffer_load_dword v233, v%d, %s, s%d offen' % (vT + 1, srd(SRD_X), S_T))
        k('s_getpc_b64 %s' % sr(S_T, 2))
        k.raw('Lpc_%s:' % k.name)
        k('s_mul_i32 s%d, s%d, 384' % (s_tmp, s_tmp))
        k('v_add_u32 v%d, s%d, v%d' % (vT, s_tmp, vT))
        k('v_min_u32 v%d, %s-Lpc_%s, v%d' % (vT, k.end_label, k.name, vT))
        k('s_mov_b64 exec, 7')
        k('global_load_dword v236, v%d, %s' % (vT, sr(S_T, 2)))
        k('s_mov_b64 exec, -1')

    hook('A_pre')
    pre, post = START_ORDER.split('|')
    for ch in pre:
        warm() if ch == 'w' else dma_group(int(ch))
    k('v_mul_u32_u24 v%d, 18432, v3' % vT)
    k('v_lshl_add_u32 v%d, v2, 3, v%d' % (vT, vT))
    k('v_mov_b32 v%d, s%d' % (vT + 1, S_ONES))
    k('v_add_u32 v%d, %d, v%d' % (vT, A_LDS_X, vT))
    k('ds_write2_b32 v%d, v%d, v%d offset0:0 offset1:1' % (vT, vT + 1, vT + 1))
    hook('A_after_issue')

    k('v_lshlrev_b32 v%d, 9, v3' % vA0)
    k('v_bfe_u32 v%d, v1, 2, 2' % vT)
    k('v_lshl_add_u32 v%d, v%d, 6, v%d' % (vA0, vT, vA0))
    k('v_and_b32 v%d, 3, v1' % vT)
    k('v_lshl_add_u32 v%d, v%d, 3, v%d' % (vA0, vT, vA0))
    k('v_and_b32 v%d, 1, v3' % vT)
    k('v_lshlrev_b32 v%d, 5, v%d' % (vT, vT))
    k('v_add_u32 v%d, v%d, v%d' % (vA0, vA0, vT))
    k('v_add_u32 v%d, %d, v%d' % (vA0, A_LDS_W, vA0))
    k('v_xor_b32 v%d, 32, v%d' % (vA1, vA0))
    k('s_and_b32 s%d, s3, 1' % s_tmp)
    k('s_lshl_b32 s%d, s%d, 5' % (s_tmp, s_tmp))
    k('v_xor_b32 v%d, s%d, v%d' % (vH2, s_tmp, vA0))
    k('s_lshr_b32 s%d, s3, 1' % s_tmp)
    k('s_lshl_b32 s%d, s%d, 11' % (s_tmp, s_tmp))
    k('s_add_u32 s%d, s%d, 2048' % (s_tmp, s_tmp))
    k('v_add_u32 v%d, s%d, v%d' % (vH1, s_tmp, vH2))
    k('v_lshrrev_b32 v%d, 1, v2' % vT)
    k('v_xor_b32 v%d, v%d, v3' % (vT, vT))
    k('v_lshlrev_b32 v%d, 4, v%d' % (vT, vT))
    k('v_lshl_add_u32 v%d, v2, 7, v%d' % (vT, vT))
    k('v_add_u32 v%d, %d, v%d' % (vHe, A_LDS_X, vT))
    k('v_xor_b32 v%d, 64, v%d' % (vHo, vHe))
    k('v_add_u32 v%d, s%d, v%d' % (vRe, s_m0x, vT))
    k('v_xor_b32 v%d, 64, v%d' % (vRo, vRe))
    k('v_lshlrev_b32 v%d, 2, v3' % vT)
    k('v_sub_u32 v%d, v2, v%d' % (vT, vT))
    k('v_mov_b32 v%d, %s' % (vT + 2, f32(-1e30)))
    for which, base in ((16, BP), (0, BC)):
        for r in range(4):
            k('v_add_u32 v%d, %d, v%d' % (vT + 1, which - r, vT))
            k('v_and_b32 v%d, 0xfffffff1, v%d' % (vT + 1, vT + 1))
            k('v_cmp_eq_u32 vcc, 0, v%d' % (vT + 1))
            k('v_cndmask_b32 v%d, v%d, 0, vcc' % (base + r, vT + 2))
    k('s_or_b32 s%d, s%d, s3' % (s_tmp, s_rb))
    k('s_cmp_eq_u32 s%d, 0' % s_tmp)
    k('s_cselect_b64 vcc, -1, 0')
    for r in range(4):
        k('v_cndmask_b32 v%d, v%d, v%d, vcc' % (BPA + r, BP + r, vT + 2))
    for i in range(4):
        k('v_mov_b32 v%d, s%d' % (ONES + i, S_ONES))

    s_m = 88
    for i, mk in enumerate((0x22222222, 0x44444444, 0x88888888)):
        k('s_mov_b32 s%d, 0x%x' % (s_m + 2 * i, mk))
        k('s_mov_b32 s%d, 0x%x' % (s_m + 2 * i + 1, mk))
    vAd = 72
    k('v_lshlrev_b32 v%d, 4, v3' % vAd)
    k('s_lshl_b32 s%d, s3, 6' % s_tmp)
    k('v_add_u32 v%d, s%d, v%d' % (vAd + 1, s_tmp, vAd))
    k('s_and_b32 s%d, s%d, 64' % (s_tmp, s_tmp))
    k('v_add_u32 v%d, s%d, v%d' % (vAd + 2, s_tmp, vAd))
    k('s_mul_i32 s%d, s3, 384' % s_tmp)
    k('v_lshl_add_u32 v%d, v2, 2, s%d' % (vAd + 3, s_tmp))
    k('v_add_u32 v%d, s%d, v%d' % (vAd + 4, s_tmp, vAd))
    vK, vV = 80, 81
    k('s_and_b32 s%d, s3, 1' % s_tmp)
    k('s_lshl_b32 s%d, s%d, 3' % (s_tmp, s_tmp))
    k('v_add_u32 v%d, s%d, v4' % (vK, s_tmp))
    k('v_lshrrev_b32 v%d, 2, v2' % vV)
    k('v_lshlrev_b32 v%d, 8, v%d' % (vV, vV))
    k('v_lshl_add_u32 v%d, v3, 6, v%d' % (vV, vV))
    k('v_and_b32 v%d, 3, v2' % (vV + 1))
    k('v_lshl_add_u32 v%d, v%d, 1, v%d' % (vV, vV + 1, vV))
    k('v_add_u32 v%d, s%d, v%d' % (vV, s_tmp, vV))
    k('v_add_u32 v%d, 1024, v%d' % (vV, vV))
    k('s_cmp_lt_u32 s3, 2')
    k('s_cselect_b64 vcc, -1, 0')
    k('s_cselect_b32 s%d, 2, 16' % s_tmp)
    k('v_cndmask_b32 v%d, v%d, v%d, vcc' % (vK, vV, vK))
    k('v_add_u32 v%d, s%d, v%d' % (vK + 1, s_tmp, vK))
    k('v_add_u32 v%d, s%d, v%d' % (vK + 2, s_tmp, vK + 1))
    k('v_add_u32 v%d, s%d, v%d' % (vK + 3, s_tmp, vK + 2))
    k('v_lshlrev_b32 v%d, 2, v2' % (vAd + 5))
    k('s_lshl_b32 s%d, s3, 11' % s_tmp)
    k('v_add_u32 v%d, s%d, v4' % (vAd + 6, s_tmp))

    k('s_lshl_b32 s%d, s%d, 3' % (s_o0, s_rb))
    k('s_lshl_b32 s%d, s3, 1' % s_o1)
    k('s_add_u32 s%d, s%d, s%d' % (s_o0, s_o0, s_o1))
    k('s_lshl_b32 s%d, s%d, 4' % (s_o0, s_o0))
    k('s_add_u32 s%d, s%d, s%d' % (s_o0, s_o0, s_head))
    k('s_lshl_b32 s%d, s%d, 10' % (s_o0, s_o0))
    if OF_OFF:
        k('s_add_u32 s%d, s%d, 0x%x' % (s_o0, s_o0, OF_OFF))
    k('s_add_u32 s%d, s%d, 16384' % (s_o1, s_o0))

    frag_addr = [(vA0, 0), (vA1, 0), (vA0, 2048), (vA1, 2048), (vA0, 4096), (vA1, 4096), (vH1, 0), (vH2, 0)]

    def read_frag(f, j, h=None):
        va, off = frag_addr[f]
        o = (j % 8) * 6144 + off
        for hh in ((0, 1) if h is None else (h,)):
            k('ds_read_b64_tr_b16 %s, v%d offset:%d' % (vr(WF + 4 * f + 2 * hh, 2), va, o + 256 * hh))

    def read_x(j, blk=None):
        o = xslot(j // 2)
        for b_ in (range(3) if blk is None else (blk,)):
            if b_ < 2:
                k('ds_read_b128 %s, v%d offset:%d' % (vr(xreg(j, b_), 4), vRo if j & 1 else vRe, o + 2048 * b_))
            else:
                k('ds_read_b128 %s, v%d offset:%d' % (vr(xreg(j, 2), 4), vHo if j & 1 else vHe, o))

    for ch in post:
        warm() if ch == 'w' else dma_group(int(ch))
    T = XR
    RR = 132
    RH = 84
    HC = 224
    pre_ops = []

    def rr(blk):
        return RR + 2 * blk if blk < 2 else RH

    def cs_write():
        k('s_mov_b32 exec_lo, 0x00010001')
        k('s_mov_b32 exec_hi, 0x00010001')
        k('ds_write_b128 v%d, %s offset:%d' % (vAd + 1, vr(H1, 4), A_LDS_CS + 128))
        k('ds_write_b128 v%d, %s offset:%d' % (vAd + 2, vr(H2, 4), A_LDS_CS))
        k('s_mov_b64 exec, -1')

    def st_write():
        k('s_mov_b32 exec_lo, 0x00f0000f')
        k('s_mov_b32 exec_hi, 0xf0000f00')
        for blk in range(3):
            k('ds_write2_b32 v%d, v%d, v%d offset0:%d offset1:%d' % (vAd + 3, rr(blk), rr(blk) + 1,
                                                                   A_LDS_ST // 4 + 32 * blk, A_LDS_ST // 4 + 32 * blk + 16))
        k('s_mov_b64 exec, -1')

    def op(txt):
        pre_ops.append(lambda: k(txt))
    for i in range(3):
        for blk in range(3):
            op('v_cndmask_b32 v%d, v%d, v%d, %s' % (SQ + 4 * blk, SQ + 4 * blk, SQ + 4 * blk + 1 + i, sr(s_m + 2 * i, 2)))
    for blk in range(3):
        op('v_mul_f32 v%d, %s, v%d' % (rr(blk) + 1, f32(1.0 / D), SM + 4 * blk))
    for blk in range(3):
        op('v_mul_f32 v%d, v%d, v%d' % (rr(blk), rr(blk) + 1, rr(blk) + 1))
    for blk in range(3):
        op('v_mul_f32 v%d, %s, v%d' % (SQ + 4 * blk, f32(1.0 / D), SQ + 4 * blk))
    pre_ops.append(cs_write)
    for blk in range(3):
        op('v_sub_f32 v%d, v%d, v%d' % (rr(blk), SQ + 4 * blk, rr(blk)))
    for blk in range(3):
        op('v_max_f32 v%d, 0, v%d' % (rr(blk), rr(blk)))
    for blk in range(3):
        op('v_add_f32 v%d, %s, v%d' % (rr(blk), f32(1e-5), rr(blk)))
    for blk in range(3):
        op('v_rsq_f32 v%d, v%d' % (rr(blk), rr(blk)))
    pre_ops.append(st_write)
    for r in range(4):
        op('v_mov_b32_dpp v%d, v%d row_newbcast:0 row_mask:0xf bank_mask:0xf' % (HC + r, H1 + r))
    for r in range(4):
        op('v_fma_f32 v%d, -v%d, v%d, v%d' % (HC + r, HC + r, RH + 1, H1 + r))

    def keep_masks():
        k('s_cmp_eq_u32 s%d, 15' % s_head)
        k('s_cselect_b32 s%d, 0xffff0000, -1' % s_m)
        k('s_mov_b32 s%d, -1' % (s_m + 1))
        k('s_mov_b32 s%d, -1' % (s_m + 2))
        k('s_cselect_b32 s%d, -1, 0xffff' % (s_m + 3))
    pre_ops.append(keep_masks)

    stamp(k, 1)
    k.wait_tag('G0')
    k.wait_lg(0)
    k.barrier()
    stamp(k, 2)
    read_x(0)
    for f in range(8):
        read_frag(f, 0)
    dma_group(2, bg=True)
    k.lg_slack = 6
    for j in range(14):
        k.c('kstep %d' % j)
        if j + 1 < 14 and (j + 1) % 2 == 0:
            k.bg_flush()
            k.wait_tag('G%d' % ((j + 1) // 2))
            k.barrier()
            if (j + 5) // 2 < 7:
                dma_group((j + 5) // 2, bg=True)
            hook('A_b%d' % j)
        mf = []
        for f in range(8):
            w = vr(WF + 4 * f, 4)
            if f < 6:
                for blk in range(2):
                    a = vr(acc(blk, f), 4)
                    x = vr(xreg(j, blk), 4)
                    c = '0' if j == 0 else a
                    if f < 4:
                        mf.append(('v_mfma_f32_16x16x32_bf16 %s, %s, %s, %s' % (a, w, x, c), f if blk else -1))
                    else:
                        mf.append(('v_mfma_f32_16x16x32_bf16 %s, %s, %s, %s' % (a, x, w, c), f if blk else -1))
            else:
                a = vr(H1 if f == 6 else H2, 4)
                c = '0' if j == 0 else a
                mf.append(('v_mfma_f32_16x16x32_bf16 %s, %s, %s, %s' % (a, w, vr(xreg(j, 2), 4), c), f))
        for f in range(EXP_NSTAT):
            x = vr(xreg(j, f % 3), 4)
            a = vr((SQ if f < 3 else SM) + 4 * (f % 3), 4)
            mf.append(('v_mfma_f32_16x16x32_bf16 %s, %s, %s, %s' % (a, x if f < 3 else vr(ONES, 4), x, '0' if j == 0 else a), -1))
        fill = []
        if j + 1 < 14:
            fill += [lambda i=i: read_x(j + 1, i) for i in range(3)]
        if j == 13:
            mf = mf[14:] + mf[12:14] + mf[4:12] + mf[0:4]
        for i, (txt, done) in enumerate(mf):
            k(txt)
            if j == 13 and i >= 8:
                for f_ in pre_ops[:3]:
                    f_()
                del pre_ops[:3]
            if done >= 0 and j + 1 < 14 and done < EXP_NFRAG:
                fill += [lambda f=done, h=h: read_frag(f, j + 1, h) for h in range(2)]
            if fill:
                fill.pop(0)()
            if i % 5 == 4:
                k.bg()
        for f_ in fill:
            f_()
        if j == 6:
            stamp(k, 3)

        hook('A_k%d' % j)

    k.lg_slack = 0
    k.c('---- phase A epilogue')
    stamp(k, 4)
    for f_ in pre_ops:
        f_()
    k.wait_lg(0)
    k.barrier()
    stamp(k, 40)
    hook('A_e1')
    CS = T + 32
    CSV = T + 48
    L2 = T + 16
    for blk in (1, 2, 0):
        k('ds_read_b32 v%d, v%d offset:%d' % (rr(blk), vAd + 3, A_LDS_ST + 128 * blk))
    for s_ in (2, 3):
        k('ds_read_b128 %s, v%d offset:%d' % (vr(CS + 4 * s_, 4), vAd, A_LDS_CS + 64 * s_))
    k('ds_read_b32 v%d, v%d offset:%d' % (CSV, vAd + 5, A_LDS_CS + 256))
    k('ds_read_b32 v%d, v%d offset:%d' % (CSV + 1, vAd + 5, A_LDS_CS + 320))
    for blk in (1, 0):
        k('ds_read_b128 %s, v%d offset:%d' % (vr(L2 + 8 * blk + 4, 4), vAd + 4, A_LDS_ST + blk * 128 + 64))
        k('ds_read_b128 %s, v%d offset:%d' % (vr(L2 + 8 * blk, 4), vAd + 4, A_LDS_ST + blk * 128))
    for s_ in (0, 1):
        k('ds_read_b128 %s, v%d offset:%d' % (vr(CS + 4 * s_, 4), vAd, A_LDS_CS + 64 * s_))
    RQ = T + 52
    qs = (DH ** -0.5) * 1.4426950408889634
    QT = T + 72
    KT = T + 80
    VV = T + 92

    def fix_qk(blk, nbi, scale_reg, dst):
        a = acc(blk, nbi)
        hi = scale_reg & 1
        for r in (0, 2):
            k('v_pk_fma_f32 %s, %s, %s, %s op_sel:[0,1,0] op_sel_hi:[1,1,1] neg_lo:[0,1,0] neg_hi:[0,1,0]' % (
                vr(a + r, 2), vr(CS + 4 * nbi + r, 2), vr(RR + 2 * blk, 2), vr(a + r, 2)))
        for r in (0, 2):
            k('v_pk_mul_f32 %s, %s, %s op_sel:[0,%d] op_sel_hi:[1,%d]' % (vr(a + r, 2), vr(a + r, 2), vr(scale_reg - hi, 2), hi, hi))
        k('v_cvt_pk_bf16_f32 v%d, v%d, v%d' % (dst, a, a + 1))
        k('v_cvt_pk_bf16_f32 v%d, v%d, v%d' % (dst + 1, a + 2, a + 3))
        k.bg()

    def fix_v(blk, nb):
        a = acc(blk, 4 + nb)
        for r in (0, 2):
            k('v_pk_fma_f32 %s, %s, %s, %s op_sel:[0,%d,0] op_sel_hi:[1,%d,1] neg_lo:[0,1,0] neg_hi:[0,1,0]' % (
                vr(a + r, 2), vr(L2 + 8 * blk + 4 + r, 2), vr(CSV, 2), vr(a + r, 2), nb, nb))
        for r in (0, 2):
            k('v_pk_mul_f32 %s, %s, %s' % (vr(a + r, 2), vr(a + r, 2), vr(L2 + 8 * blk + r, 2)))
        dst = VV + 6 * nb + 2 + 2 * blk
        k('v_cvt_pk_bf16_f32 v%d, v%d, v%d' % (dst, a, a + 1))
        k('v_cvt_pk_bf16_f32 v%d, v%d, v%d' % (dst + 1, a + 2, a + 3))
        k.bg()

    fix_qk(1, 2, RR + 2, KT + 8)
    fix_qk(1, 3, RR + 2, KT + 10)
    k('ds_write_b128 v%d, %s offset:%d' % (vAd + 6, vr(KT + 8, 4), A_LDS_KV + 2048))
    for r in (0, 2):
        k('v_pk_mul_f32 %s, %s, %s op_sel_hi:[1,0]' % (vr(HC + r, 2), vr(HC + r, 2), vr(RH, 2)))
    k('v_cvt_pk_bf16_f32 v%d, v%d, v%d' % (HC, HC, HC + 1))
    k('v_cvt_pk_bf16_f32 v%d, v%d, v%d' % (HC + 2, HC + 2, HC + 3))
    k('ds_write_b16 v%d, v%d offset:%d' % (vK, HC, A_LDS_KV))
    k('ds_write_b16_d16_hi v%d, v%d offset:%d' % (vK + 1, HC, A_LDS_KV))
    k('ds_write_b16 v%d, v%d offset:%d' % (vK + 2, HC + 2, A_LDS_KV))
    k('ds_write_b16_d16_hi v%d, v%d offset:%d' % (vK + 3, HC + 2, A_LDS_KV))
    fix_v(1, 0)
    fix_v(1, 1)
    k('ds_write_b64 v%d, %s offset:%d' % (vAd + 6, vr(VV + 4, 2), A_LDS_KV + 2048 + 1024))
    k('ds_write_b64 v%d, %s offset:%d' % (vAd + 6, vr(VV + 10, 2), A_LDS_KV + 2048 + 1024 + 8))
    for blk in range(2):
        k('v_mul_f32 v%d, %s, v%d' % (RQ + 2 * blk, f32(qs), RR + 2 * blk))
    for blk in range(2):
        k('v_cndmask_b32 v%d, 0, v%d, %s' % (RQ + 2 * blk + 1, RQ + 2 * blk, sr(s_m + 2, 2)))
        k('v_cndmask_b32 v%d, 0, v%d, %s' % (RQ + 2 * blk, RQ + 2 * blk, sr(s_m, 2)))
    fix_qk(0, 2, RR + 0, KT + 4)
    fix_qk(0, 3, RR + 0, KT + 6)
    k.wait_lg(0)
    k.barrier()
    stamp(k, 41)
    k('ds_read_b128 %s, v%d offset:%d' % (vr(KT, 4), vAd + 6, A_LDS_KV))
    k('ds_read_b64 %s, v%d offset:%d' % (vr(VV, 2), vAd + 6, A_LDS_KV + 1024))
    k('ds_read_b64 %s, v%d offset:%d' % (vr(VV + 6, 2), vAd + 6, A_LDS_KV + 1024 + 8))
    fix_qk(1, 0, RQ + 2, QT + 4)
    fix_qk(1, 1, RQ + 3, QT + 6)
    SS = T
    k('v_mfma_f32_16x16x32_bf16 %s, %s, %s, %s' % (vr(SS + 8, 4), vr(KT + 4, 4), vr(QT + 4, 4), vr(BP, 4)))
    k('v_mfma_f32_16x16x32_bf16 %s, %s, %s, %s' % (vr(SS + 12, 4), vr(KT + 8, 4), vr(QT + 4, 4), vr(BC, 4)))
    fix_qk(0, 0, RQ + 0, QT + 0)
    fix_qk(0, 1, RQ + 1, QT + 2)
    k('v_mfma_f32_16x16x32_bf16 %s, %s, %s, %s' % (vr(SS + 0, 4), vr(KT + 0, 4), vr(QT, 4), vr(BPA, 4)))
    k('v_mfma_f32_16x16x32_bf16 %s, %s, %s, %s' % (vr(SS + 4, 4), vr(KT + 4, 4), vr(QT, 4), vr(BC, 4)))
    fix_v(0, 0)
    fix_v(0, 1)
    MX = ACC
    TM = ACC + 2
    for blk in (1, 0):
        s_ = SS + 8 * blk
        k('v_max3_f32 v%d, v%d, v%d, v%d' % (MX + blk, s_, s_ + 1, s_ + 2))
        k('v_max3_f32 v%d, v%d, v%d, v%d' % (TM + blk, s_ + 3, s_ + 4, s_ + 5))
        k('v_max3_f32 v%d, v%d, v%d, v%d' % (MX + blk, MX + blk, s_ + 6, s_ + 7))
        k('v_max_f32 v%d, v%d, v%d' % (MX + blk, MX + blk, TM + blk))
    k.bg()
    xgroup_reduce(k, [MX, MX + 1], [TM, TM + 1], op='v_max_f32')
    k.bg_flush()
    stamp(k, 9)
    SUM = ACC + 4
    PP = ACC + 8
    OO = ACC + 16
    for blk in (1, 0):
        s_ = SS + 8 * blk
        for i in range(0, 8, 2):
            k('v_pk_add_f32 %s, %s, %s op_sel:[0,%d] op_sel_hi:[1,%d] neg_lo:[0,1] neg_hi:[0,1]' % (vr(s_ + i, 2), vr(s_ + i, 2), vr(MX, 2), blk, blk))
        for i in range(8):
            k('v_exp_f32 v%d, v%d' % (s_ + i, s_ + i))
        for i in range(4):
            k('v_cvt_pk_bf16_f32 v%d, v%d, v%d' % (PP + 4 * blk + i, s_ + 2 * i, s_ + 2 * i + 1))
        for nb in range(2):
            k('v_mfma_f32_16x16x32_bf16 %s, %s, %s, 0' % (vr(OO + 8 * blk + 4 * nb, 4), vr(VV + 6 * nb + 2 * blk, 4),
                                                          vr(PP + 4 * blk, 4)))
    for blk in range(2):
        s_ = SS + 8 * blk
        k('v_pk_add_f32 %s, %s, %s' % (vr(s_, 2), vr(s_, 2), vr(s_ + 2, 2)))
        k('v_pk_add_f32 %s, %s, %s' % (vr(s_ + 4, 2), vr(s_ + 4, 2), vr(s_ + 6, 2)))
    for blk in range(2):
        s_ = SS + 8 * blk
        k('v_pk_add_f32 %s, %s, %s' % (vr(s_, 2), vr(s_, 2), vr(s_ + 4, 2)))
    for blk in range(2):
        s_ = SS + 8 * blk
        k('v_add_f32 v%d, v%d, v%d' % (SUM + 2 * blk, s_, s_ + 1))
    xgroup_reduce(k, [SUM, SUM + 2], [TM, TM + 1])
    for blk in range(2):
        k('v_rcp_f32 v%d, v%d' % (SUM + 2 * blk, SUM + 2 * blk))
    for blk in range(2):
        k('v_cndmask_b32 v%d, 0, v%d, %s' % (SUM + 2 * blk + 1, SUM + 2 * blk, sr(s_m + 2, 2)))
        k('v_cndmask_b32 v%d, 0, v%d, %s' % (SUM + 2 * blk, SUM + 2 * blk, sr(s_m, 2)))
    for blk in range(2):
        o = OO + 8 * blk
        for r in (0, 2):
            k('v_pk_mul_f32 %s, %s, %s op_sel_hi:[1,0]' % (vr(o + r, 2), vr(o + r, 2), vr(SUM + 2 * blk, 2)))
        for r in (0, 2):
            k('v_pk_mul_f32 %s, %s, %s op_sel:[0,1] op_sel_hi:[1,1]' % (vr(o + 4 + r, 2), vr(o + 4 + r, 2), vr(SUM + 2 * blk, 2)))
        p = PP + 4 * blk
        for i in range(4):
            k('v_cvt_pk_bf16_f32 v%d, v%d, v%d' % (p + i, o + 2 * i, o + 2 * i + 1))
        k('buffer_store_dwordx4 %s, v4, %s, s%d offen %s' % (vr(p, 4), srd(SRD_WS), s_o0 if blk == 0 else s_o1, sc1), tag='ost')


STAMP_OFF = 0xA00000


DST = {5: 1, 10: 2, 15: 3, 16: 4, 22: 5, 24: 6, 29: 7}


def dstamp(k, idx, vtmp=253, stmp=74):
    if idx not in DST and idx != 0:
        return
    slot = DST.get(idx, 0)
    k('s_memrealtime %s' % sr(stmp, 2))
    k('s_cmp_eq_u32 s2, 131')
    k('s_cselect_b32 s%d, %d, %s' % (stmp + 4, 32 + 4 * slot, '0x%x' % OOB))
    if slot:
        k('s_cmp_eq_u32 s2, 0')
        k('s_cselect_b32 s%d, %d, s%d' % (stmp + 4, 4 * slot, stmp + 4))
    k('v_mov_b32 v%d, s%d' % (vtmp + 2, stmp + 4))
    k('v_mov_b32 v%d, s%d' % (vtmp, stmp))
    k('s_cmp_eq_u32 s3, 0')
    k('s_cselect_b64 exec, 1, 0')
    k('buffer_store_dword v%d, v%d, %s, 0 offen' % (vtmp, vtmp + 2, srd(SRD_DBG)))
    k('s_mov_b64 exec, -1')


def stamp(k, idx, vtmp=253, stmp=74):
    if idx >= 32 or (STAMP_SET is not None and idx not in STAMP_SET):
        return
    if getattr(k, 'stamps', False) == 'dbg':
        return dstamp(k, idx, vtmp, stmp)
    if not getattr(k, 'stamps', False):
        return
    k('s_memrealtime %s' % sr(stmp, 2))
    k('s_memtime %s' % sr(stmp + 2, 2))
    k('s_lshl_b32 s%d, s2, 2' % (stmp + 4))
    k('s_add_u32 s%d, s%d, s3' % (stmp + 4, stmp + 4))
    k('s_lshl_b32 s%d, s%d, 7' % (stmp + 4, stmp + 4))
    k('s_add_u32 s%d, s%d, 0x%x' % (stmp + 4, stmp + 4, STAMP_OFF + 4 * idx))
    k('v_mov_b32 v%d, s%d' % (vtmp, stmp))
    k('v_mov_b32 v%d, s%d' % (vtmp + 1, stmp + 2))
    k('v_mov_b32 v%d, 0' % (vtmp + 2))
    k('s_mov_b64 exec, 1')
    k('buffer_store_dword v%d, v%d, %s, s%d offen' % (vtmp, vtmp + 2, srd(SRD_WS), stmp + 4))
    k('s_add_u32 s%d, s%d, 0x20000' % (stmp + 4, stmp + 4))
    k('buffer_store_dword v%d, v%d, %s, s%d offen' % (vtmp + 1, vtmp + 2, srd(SRD_WS), stmp + 4))
    k('s_mov_b64 exec, -1')


def spin_guard(k):
    k('s_sub_u32 s%d, s%d, 1' % (S_SPIN, S_SPIN))
    k('s_cbranch_scc1 %s' % k.end_label)


def epoch_publish(k, vt):
    k('s_memrealtime %s' % sr(S_T, 2))
    k('v_mov_b32 v%d, 0' % (vt + 1))
    k('s_or_b32 s%d, s%d, 1' % (S_T, S_T))
    k('v_mov_b32 v%d, s%d' % (vt, S_T))
    k('s_or_b32 s%d, s2, s3' % S_T)
    k('s_cmp_eq_u32 s%d, 0' % S_T)
    k('s_cselect_b64 exec, 1, 0')
    k('buffer_store_dword v%d, v%d, %s, 0 offen sc1' % (vt, vt + 1, srd(SRD_DBG)))
    k('s_mov_b64 exec, -1')


def epoch_load(k, vt):
    k('v_mov_b32 v%d, 0' % (vt + 1))
    k('buffer_load_dword v%d, v%d, %s, 0 offen sc1' % (vt, vt + 1, srd(SRD_DBG)))


def epoch_get(k, vt):
    L = k.newlabel('Lepg')
    done = k.newlabel('Lepd')
    k('v_readfirstlane_b32 s%d, v%d' % (S_EPOCH, vt))
    k('s_cmp_lg_u32 s%d, 0' % S_EPOCH)
    k.branch_fwd('s_cbranch_scc1', done)
    k.loop_label(L)
    spin_guard(k)
    k('buffer_load_dword v%d, v%d, %s, 0 offen sc1' % (vt, vt + 1, srd(SRD_DBG)))
    k.force_wait(vm=0)
    k('v_readfirstlane_b32 s%d, v%d' % (S_EPOCH, vt))
    k('s_cmp_eq_u32 s%d, 0' % S_EPOCH)
    k('s_cbranch_scc1 %s' % L)
    k.label(done)


FLAG_A = FLAG_OFF
FLAG_B = FLAG_OFF + 0x20000
FLAG_C = FLAG_OFF + 0x28000


def flag_store(k, vt, s_off):
    k('v_mov_b32 v%d, s%d' % (vt, S_EPOCH))
    k('s_mov_b64 exec, 1')
    k('buffer_store_dword v%d, v%d, %s, s%d offen sc1' % (vt, vt + 1, srd(SRD_WS), s_off))
    if DBL & 2:
        k('buffer_store_dword v%d, v%d, %s, s%d offen' % (vt, vt + 1, srd(SRD_WS), s_off))
    k('s_mov_b64 exec, -1')


POLL_DEPTH = 3
POLL_GAP = 3
WROW = 128
M2 = True
WARM0 = True
CD2 = True
DBL = 0
STAMP_SET = None
S_WR, S_HV = 56, 57
EXP_NSTAT = 6
EXP_NFRAG = 8
POLL_SLEEP = 0
WO_LATE = False
START_ORDER = '01w|'
AGENT_DEPTH = 2
ST_SLEEP = 0
V_POLL = 249


def flag_poll(k, vt, voff, s_off):
    L = k.newlabel('Lpoll')
    done = k.newlabel('Lpd')
    n = POLL_DEPTH

    def ld(i):
        return k('buffer_load_dword v%d, v%d, %s, s%d offen sc1' % (V_POLL + i, voff, srd(SRD_WS), s_off))
    for i in range(n - 1):
        ld(i)
        k('s_sleep %d' % POLL_GAP)
    k.loop_label(L)
    spin_guard(k)
    last = []
    for i in range(n):
        k.vm = []
        if POLL_SLEEP:
            k('s_sleep %d' % POLL_SLEEP)
        last.append(ld((i + n - 1) % n))
        k._emit(classify('s_waitcnt vmcnt(%d)' % (n - 1)))
        k.vm = []
        k('v_cmp_ne_u32 vcc, s%d, v%d' % (S_EPOCH, V_POLL + i))
        if i < n - 1:
            k('s_cbranch_vccz %s' % done)
        else:
            k('s_cbranch_vccnz %s' % L)
    k.fence()
    k.raw(done + ':')
    k.vm = list(last)


class B:
    s_tmp, s_wbase, s_t2, s_x = 58, 59, 60, 61
    s_dma = 73
    vWo, vR0, vR1 = 208, 209, 210
    ACC = 192
    OFR = 32
    T = 64
    HK = 240


def B_setup(k):
    b, g = B, G
    k.c('---- phase B setup')
    t = TMP
    k('v_lshrrev_b32 v%d, 3, v1' % t)
    k('v_mul_u32_u24 v%d, 896, v%d' % (b.vWo, t))
    k('v_and_b32 v%d, 1, v3' % t)
    k('v_lshlrev_b32 v%d, 2, v%d' % (t, t))
    k('v_and_b32 v%d, 7, v1' % (t + 1))
    k('v_xor_b32 v%d, v%d, v%d' % (t, t, t + 1))
    k('v_lshl_add_u32 v%d, v%d, 4, v%d' % (b.vWo, t, b.vWo))
    k('s_lshl_b32 s%d, s%d, 7' % (b.s_tmp, g.s_dtD))
    k('s_mul_i32 s%d, s3, %d' % (b.s_t2, 112 * 896))
    k('s_add_u32 s%d, s%d, s%d' % (b.s_tmp, b.s_tmp, b.s_t2))
    k('v_add_u32 v%d, s%d, v%d' % (b.vWo, b.s_tmp, b.vWo))
    k('s_mul_i32 s%d, s3, %d' % (b.s_wbase, STG_SZ))
    k('s_add_u32 s%d, s%d, %d' % (b.s_wbase, b.s_wbase, LDS_STG))
    k('v_lshrrev_b32 v%d, 5, v1' % t)
    k('v_lshlrev_b32 v%d, 9, v%d' % (b.vR0, t))
    k('v_bfe_u32 v%d, v1, 2, 2' % t)
    k('v_lshl_add_u32 v%d, v%d, 7, v%d' % (b.vR0, t, b.vR0))
    k('v_lshrrev_b32 v%d, 1, v%d' % (t, t))
    k('s_and_b32 s%d, s3, 1' % b.s_tmp)
    k('v_xor_b32 v%d, s%d, v%d' % (t, b.s_tmp, t))
    k('v_lshl_add_u32 v%d, v%d, 6, v%d' % (b.vR0, t, b.vR0))
    k('v_and_b32 v%d, 1, v3' % t)
    k('v_lshl_add_u32 v%d, v%d, 5, v%d' % (b.vR0, t, b.vR0))
    k('v_and_b32 v%d, 3, v1' % t)
    k('v_lshl_add_u32 v%d, v%d, 3, v%d' % (b.vR0, t, b.vR0))
    k('v_add_u32 v%d, %d, v%d' % (b.vR0, LDS_STG, b.vR0))
    k('v_lshrrev_b32 v%d, 5, v1' % t)
    k('v_lshlrev_b32 v%d, 10, v%d' % (t, t))
    k('v_sub_u32 v%d, v%d, v%d' % (b.vR1, b.vR0, t))


def B_wo_dma(k):
    b = B

    def one(i):
        k('s_add_u32 m0, s%d, %d' % (b.s_wbase, i * 1024))
        k('s_mov_b32 s%d, %d' % (b.s_dma, 8 * i * 896))
        k('buffer_load_dwordx4 v%d, %s, s%d offen lds' % (b.vWo, srd(SRD_WO), b.s_dma), tag='wo')
    for i in range(14):
        k.bg_push(lambda i=i: one(i))


def B_wo_read(k, abase):
    b = B
    for h in range(16):
        if h == 8:
            k('v_add_u32 v%d, %d, v%d' % (b.vR0, 2 * STG_SZ, b.vR0))
            k('v_add_u32 v%d, %d, v%d' % (b.vR1, 2 * STG_SZ, b.vR1))
        sh = h == 15 and not M2
        for ks in range(2):
            a = abase + 8 * h + 4 * ks
            o = ((h >> 2) & 1) * STG_SZ + (h & 3) * 3584 + ks * 1024 - (512 if sh else 0)
            k('ds_read_b64_tr_b16 %s, v%d offset:%d' % (ar(a, 2), b.vR0, o))
            k('ds_read_b64_tr_b16 %s, v%d offset:%d' % (ar(a + 2, 2), b.vR1 if ((h & 3) == 3 and ks and not sh) else b.vR0, o + 2048))
            if (2 * h + ks) % 3 != 2:
                k.bg()


def B_xinit(k):
    b, g = B, G
    t = TMP + 2
    k('v_lshrrev_b32 v%d, 5, v1' % t)
    k('v_mul_u32_u24 v%d, %d, v%d' % (t, 4 * 896, t))
    k('v_and_b32 v%d, 31, v1' % (t + 1))
    k('v_lshl_add_u32 v%d, v%d, 1, v%d' % (t, t + 1, t))
    k('s_lshl_b32 s%d, s%d, 1' % (b.s_tmp, g.s_st))
    k('s_lshr_b32 s%d, s3, 1' % b.s_t2)
    k('s_add_u32 s%d, s%d, s%d' % (b.s_tmp, b.s_tmp, b.s_t2))
    k('s_mul_i32 s%d, s%d, %d' % (b.s_tmp, b.s_tmp, 32 * 896))
    k('s_lshl_b32 s%d, s%d, 7' % (b.s_t2, g.s_dtD))
    k('s_add_u32 s%d, s%d, s%d' % (b.s_tmp, b.s_tmp, b.s_t2))
    k('s_and_b32 s%d, s3, 1' % b.s_t2)
    k('s_lshl_b32 s%d, s%d, 6' % (b.s_t2, b.s_t2))
    k('s_add_u32 s%d, s%d, s%d' % (b.s_tmp, b.s_tmp, b.s_t2))
    for q in range(4):
        for r in range(4):
            k('buffer_load_ushort v%d, v%d, %s, s%d offen offset:%d' % (b.ACC + 4 * q + r, t, srd(SRD_X), b.s_tmp, r * 896))
        if q < 3:
            k('s_add_u32 s%d, s%d, %d' % (b.s_tmp, b.s_tmp, 8 * 896))


def B_xinit_finish(k):
    b = B
    for i in range(16):
        k('v_lshlrev_b32 v%d, 16, v%d' % (b.ACC + i, b.ACC + i))


def B_main(k, abase, lds_small, sc1='', hooks=None):
    b, g = B, G
    t = b.T
    k.c('---- phase B main')
    hooks = hooks or {}

    def hook(name):
        if name in hooks:
            hooks[name]()
    k('s_lshl_b32 s%d, s%d, 16' % (b.s_tmp, g.s_st))
    k('s_lshl_b32 s%d, s3, 14' % b.s_t2)
    k('s_add_u32 s%d, s%d, s%d' % (b.s_tmp, b.s_tmp, b.s_t2))
    if OF_OFF:
        k('s_add_u32 s%d, s%d, 0x%x' % (b.s_tmp, b.s_tmp, OF_OFF))
    for i in range(16):
        if i % 4 == 0:
            k('s_add_u32 m0, s%d, %d' % (g.s_stage, i * 1024))
            if i:
                k('s_add_u32 s%d, s%d, 4096' % (b.s_tmp, b.s_tmp))
        k('buffer_load_dwordx4 v4, %s, s%d offen offset:%d %s lds' % (srd(SRD_WS), b.s_tmp, (i % 4) * 1024, sc1), tag='of%d' % (i // 8))
    k('v_and_b32 v%d, 1, v3' % t)
    k('v_mul_u32_u24 v%d, %d, v%d' % (t, STG_SZ, t))
    k('v_lshl_add_u32 v%d, v2, 4, v%d' % (t, t))
    k('v_lshrrev_b32 v%d, 5, v1' % (t + 1))
    k('v_lshl_add_u32 v%d, v%d, 8, v%d' % (t, t + 1, t))
    k('s_lshr_b32 s%d, s3, 1' % b.s_t2)
    k('s_mul_i32 s%d, s%d, %d' % (b.s_t2, b.s_t2, 2 * STG_SZ))
    k('s_add_u32 s%d, s%d, %d' % (b.s_t2, b.s_t2, LDS_STG))
    k('v_add_u32 v%d, s%d, v%d' % (t, b.s_t2, t))
    hook('B_after_of')
    a = vr(b.ACC, 16)

    def rd(i):
        k('ds_read_b128 %s, v%d offset:%d' % (vr(b.OFR + 4 * (i % 8), 4), t, i * 512))
    for half in range(2):
        k.wait_tag('of%d' % half)
        k.barrier()
        if half == 0:
            stamp(k, 11)
        for i in range(16 * half, 16 * half + (6 if half == 0 else 2)):
            rd(i)
        for i in range(16 * half - (4 if half else 0), 16 * half + (12 if half == 0 else 16)):
            k('v_mfma_f32_32x32x16_bf16 %s, %s, %s, %s' % (a, vr(b.OFR + 4 * (i % 8), 4), ar(abase + 4 * i, 4), a))
            if i + 6 < 16 * half + 16 and i + 6 >= 16 * half + (6 if half == 0 else 2):
                rd(i + 6)
            if i % 3 == 0:
                k.bg()
    stamp(k, 12)
    Q = t + 4
    V = t + 20
    A = b.ACC
    for i in range(0, 16, 2):
        k('v_pk_mul_f32 %s, %s, %s' % (vr(Q + i, 2), vr(A + i, 2), vr(A + i, 2)))
    def src(base, q, idx):
        r = ((idx & 1) << 1) | (idx >> 1)
        return base + 4 * q + r
    for base, dst in ((A, V), (Q, V + 8)):
        k.bg()
        for q in range(4):
            for p in range(2):
                x = src(base, q, 2 * p)
                k('v_add_f32_dpp v%d, v%d, v%d row_mirror row_mask:0xf bank_mask:0x3' % (dst + 2 * q + p, x, x))
    for base, dst in ((A, V), (Q, V + 8)):
        k.bg()
        for q in range(4):
            for p in range(2):
                x = src(base, q, 2 * p + 1)
                k('v_add_f32_dpp v%d, v%d, v%d row_mirror row_mask:0xf bank_mask:0xc' % (dst + 2 * q + p, x, x))
    k.bg(2)
    for i in range(8):
        k('v_add_f32_dpp v%d, v%d, v%d row_half_mirror row_mask:0xf bank_mask:0x5' % (V + 2 * i, V + 2 * i, V + 2 * i))
    for i in range(8):
        k('v_add_f32_dpp v%d, v%d, v%d row_half_mirror row_mask:0xf bank_mask:0xa' % (V + 2 * i, V + 2 * i + 1, V + 2 * i + 1))
    for i in range(8):
        k('v_add_f32_dpp v%d, v%d, v%d quad_perm:[1,0,3,2] row_mask:0xf bank_mask:0xf' % (V + 2 * i + 1, V + 2 * i, V + 2 * i))
    U = Q
    k.bg(2)
    for i in range(8):
        k('v_add_f32_dpp v%d, v%d, v%d quad_perm:[2,3,0,1] row_mask:0xf bank_mask:0xf' % (U + i, V + 2 * i + 1, V + 2 * i + 1))
    for kind in range(2):
        for i in range(2):
            k('v_permlane16_swap_b32 v%d, v%d' % (U + 4 * kind + 2 * i, U + 4 * kind + 2 * i + 1))
    W_ = V
    for i in range(2):
        for kind in range(2):
            k('v_add_f32 v%d, v%d, v%d' % (W_ + 2 * i + kind, U + 4 * kind + 2 * i, U + 4 * kind + 2 * i + 1))
    k.bg_flush()
    vA, vC, vG = t + 1, t + 2, t + 3
    k('v_and_b32 v%d, 1, v3' % vA)
    k('v_lshlrev_b32 v%d, 6, v%d' % (vA, vA))
    k('v_lshrrev_b32 v%d, 5, v1' % vC)
    k('v_lshl_add_u32 v%d, v%d, 5, v%d' % (vA, vC, vA))
    k('v_bfe_u32 v%d, v1, 2, 2' % vG)
    k('v_lshl_add_u32 v%d, v%d, 3, v%d' % (vA, vG, vA))
    k('s_lshl_b32 s%d, s3, 8' % b.s_tmp)
    k('v_add_u32 v%d, s%d, v%d' % (vA, b.s_tmp, vA))
    k('ds_write_b64 v%d, %s offset:%d' % (vA, vr(W_, 2), lds_small))
    k('ds_write_b64 v%d, %s offset:%d' % (vA, vr(W_ + 2, 2), lds_small + 128))
    k('v_and_b32 v%d, 31, v1' % vG)
    k('v_lshlrev_b32 v%d, 9, v%d' % (vA, vC))
    k('v_lshl_add_u32 v%d, v%d, 4, v%d' % (vA, vG, vA))
    k('v_lshlrev_b32 v%d, 8, v%d' % (vC, vC))
    k('v_lshl_add_u32 v%d, v%d, 3, v%d' % (vC, vG, vC))
    k('s_and_b32 s%d, s%d, 512' % (b.s_tmp, b.s_tmp))
    k('v_add_u32 v%d, s%d, v%d' % (vC, b.s_tmp, vC))
    k('s_lshl_b32 s%d, s%d, 1' % (b.s_tmp, g.s_st))
    k('s_lshr_b32 s%d, s3, 1' % b.s_t2)
    k('s_add_u32 s%d, s%d, s%d' % (b.s_tmp, b.s_tmp, b.s_t2))
    k('s_lshl_b32 s%d, s%d, 12' % (b.s_tmp, b.s_tmp))
    k('s_add_u32 s%d, s%d, 0x%x' % (b.s_tmp, b.s_tmp, STAT_OFF))
    k('s_lshl_b32 s%d, s%d, 9' % (b.s_t2, g.s_dtD))
    k('s_add_u32 s%d, s%d, s%d' % (b.s_t2, b.s_t2, b.s_tmp))
    stamp(k, 23)
    k.wait_lg(0)
    k.barrier()
    k('ds_read_b64 %s, v%d offset:%d' % (vr(V, 2), vC, lds_small))
    G_ = V + 4
    k('v_mov_b32 v%d, s%d' % (G_ + 1, S_EPOCH))
    k('v_mov_b32 v%d, s%d' % (G_ + 3, S_EPOCH))
    k('v_mov_b32 v%d, v%d' % (G_, V))
    k('v_mov_b32 v%d, v%d' % (G_ + 2, V + 1))
    k('v_permlane32_swap_b32 v%d, v%d' % (G_, V))
    k('v_permlane32_swap_b32 v%d, v%d' % (G_ + 2, V + 1))
    k('v_add_f32 v%d, v%d, v%d' % (G_, G_, V))
    k('v_add_f32 v%d, v%d, v%d' % (G_ + 2, G_ + 2, V + 1))
    k('s_bitcmp0_b32 s3, 0')
    k('s_cselect_b32 exec_lo, -1, 0')
    k('s_mov_b32 exec_hi, 0')
    k('buffer_store_dwordx4 %s, v%d, %s, s%d offen sc1' % (vr(G_, 4), vA, srd(SRD_WS), b.s_t2))
    if DBL & 1:
        k('buffer_store_dwordx4 %s, v%d, %s, s%d offen' % (vr(G_, 4), vA, srd(SRD_WS), b.s_t2))
    k('s_mov_b64 exec, -1')
    for i in range(8):
        k('v_cvt_pk_bf16_f32 v%d, v%d, v%d' % (b.HK + i, A + 2 * i, A + 2 * i + 1))
    k('s_lshl_b32 s%d, s%d, 1' % (b.s_x, g.s_dtD))
    k('s_and_b32 s%d, s3, 1' % b.s_t2)
    k('s_add_u32 s%d, s%d, s%d' % (b.s_x, b.s_x, b.s_t2))
    k('s_lshl_b32 s%d, s%d, 7' % (b.s_x, b.s_x))
    k('s_lshl_b32 s%d, s%d, 2' % (b.s_t2, g.s_st))
    k('s_add_u32 s%d, s%d, s%d' % (b.s_x, b.s_x, b.s_t2))
    k('s_and_b32 s%d, s3, 2' % b.s_t2)
    k('s_add_u32 s%d, s%d, s%d' % (b.s_x, b.s_x, b.s_t2))
    k('s_lshl_b32 s%d, s%d, 10' % (b.s_x, b.s_x))
    k('s_add_u32 s%d, s%d, 0x%x' % (b.s_x, b.s_x, HH_OFF))
    k('v_lshlrev_b32 v%d, 4, v%d' % (vC, vG))
    k('v_cmp_gt_u32 %s, 32, v1' % sr(S_T, 2))
    hook('B_before_poll')
    stamp(k, 31)
    P0 = t + 32
    L = k.newlabel('Lst')
    done = k.newlabel('Lstd')
    Sx, Qx = t + 64, t + 66

    def ld(s_):
        r = []
        for i in range(4):
            r.append(k('buffer_load_dwordx4 %s, v%d, %s, s%d offen offset:%d sc1' % (
                vr(P0 + 16 * s_ + 4 * i, 4), vA if i < 3 else vC, srd(SRD_WS), b.s_tmp, i * 1024)))
        return r
    ld(0)
    k('s_sleep 5')
    k.loop_label(L)
    spin_guard(k)
    last = []
    for s_ in range(2):
        k.vm = []
        if ST_SLEEP:
            k('s_sleep %d' % ST_SLEEP)
        last += ld(1 - s_)
        k._emit(classify('s_waitcnt vmcnt(4)'))
        k.vm = []
        p = P0 + 16 * s_
        for i in range(8):
            k('v_xor_b32 v%d, s%d, v%d' % (p + 2 * i + 1, S_EPOCH, p + 2 * i + 1))
        k('v_cndmask_b32 v%d, 0, v%d, %s' % (p + 12, p + 12, sr(S_T, 2)))
        k('v_cndmask_b32 v%d, 0, v%d, %s' % (p + 14, p + 14, sr(S_T, 2)))
        k('v_or3_b32 v%d, v%d, v%d, v%d' % (p + 1, p + 1, p + 3, p + 5))
        k('v_or3_b32 v%d, v%d, v%d, v%d' % (p + 7, p + 7, p + 9, p + 11))
        k('v_or3_b32 v%d, v%d, v%d, v%d' % (p + 1, p + 1, p + 13, p + 15))
        k('v_or_b32 v%d, v%d, v%d' % (p + 1, p + 1, p + 7))
        k('v_cmp_ne_u32 vcc, 0, v%d' % (p + 1))
        for x, o in ((Sx, 0), (Qx, 2)):
            k('v_add_f32 v%d, v%d, v%d' % (x, p + o, p + o + 4))
            k('v_add_f32 v%d, v%d, v%d' % (x + 1, p + o + 8, p + o + 12))
        if s_ == 0:
            k('s_cbranch_vccz %s' % done)
        else:
            k('s_cbranch_vccnz %s' % L)
    k.fence()
    k.raw(done + ':')
    k.vm = list(last)
    stamp(k, 13)
    P0 = t + 68
    for x in (Sx, Qx):
        k('v_add_f32 v%d, v%d, v%d' % (x, x, x + 1))
    k('v_mov_b32 v%d, v%d' % (P0 + 4, Sx))
    k('v_mov_b32 v%d, v%d' % (P0 + 6, Qx))
    k('v_permlane32_swap_b32 v%d, v%d' % (Sx, P0 + 4))
    k('v_permlane32_swap_b32 v%d, v%d' % (Qx, P0 + 6))
    k('v_add_f32 v%d, v%d, v%d' % (Sx, Sx, P0 + 4))
    k('v_add_f32 v%d, v%d, v%d' % (Qx, Qx, P0 + 6))
    M, R = P0 + 1, P0 + 3
    k('v_mul_f32 v%d, %s, v%d' % (M, f32(1.0 / D), Sx))
    k('v_mul_f32 v%d, %s, v%d' % (Qx, f32(1.0 / D), Qx))
    k('v_fma_f32 v%d, -v%d, v%d, v%d' % (Qx, M, M, Qx))
    k('v_max_f32 v%d, 0, v%d' % (Qx, Qx))
    k('v_add_f32 v%d, %s, v%d' % (R, f32(1e-5), Qx))
    k('v_rsq_f32 v%d, v%d' % (R, R))
    k('v_mul_f32 v%d, v%d, v%d' % (Qx, Qx, R))
    k('v_fmaak_f32 v%d, v%d, v%d, %s' % (Qx, Qx, R, f32(1e-5)))
    k('v_rsq_f32 v%d, v%d' % (Qx, Qx))
    k('v_mul_f32 v%d, v%d, v%d' % (R, R, Qx))
    k('s_lshl_b32 s%d, s3, 8' % b.s_t2)
    k('v_lshl_add_u32 v%d, v%d, 2, s%d' % (vC, vG, b.s_t2))
    k('ds_write_b32 v%d, v%d offset:%d' % (vC, M, lds_small + 1024))
    k('ds_write_b32 v%d, v%d offset:%d' % (vC, R, lds_small + 1024 + 128))
    k('v_lshrrev_b32 v%d, 5, v1' % vC)
    k('v_lshl_add_u32 v%d, v%d, 4, s%d' % (vC, vC, b.s_t2))
    MM = P0 + 8
    k.wait_lg(0)
    for q in range(4):
        k('ds_read_b128 %s, v%d offset:%d' % (vr(MM + 4 * q, 4), vC, lds_small + 1024 + 32 * q))
        k('ds_read_b128 %s, v%d offset:%d' % (vr(MM + 16 + 4 * q, 4), vC, lds_small + 1024 + 128 + 32 * q))
    for tp in range(2):
        for i in range(8 * tp, 8 * tp + 8, 2):
            k('v_pk_add_f32 %s, %s, %s neg_lo:[0,1] neg_hi:[0,1]' % (vr(A + i, 2), vr(A + i, 2), vr(MM + i, 2)))
        for i in range(8 * tp, 8 * tp + 8, 2):
            k('v_pk_mul_f32 %s, %s, %s' % (vr(A + i, 2), vr(A + i, 2), vr(MM + 16 + i, 2)))
        p = V + 4 * tp
        for i in range(4):
            k('v_cvt_pk_bf16_f32 v%d, v%d, v%d' % (p + i, A + 8 * tp + 2 * i, A + 8 * tp + 2 * i + 1))
        k('buffer_store_dwordx4 %s, v4, %s, s%d offen offset:%d %s' % (vr(p, 4), srd(SRD_WS), b.s_x, tp * 1024, sc1), tag='hst')


def agent(k):
    g = G
    k.c('---- agent: W2 warm-up')
    k('s_lshr_b32 s%d, s2, 3' % g.s_tmp)
    k('s_sub_u32 s%d, s%d, 28' % (g.s_tmp, g.s_tmp))
    k('s_lshl_b32 s%d, s%d, 2' % (g.s_tmp, g.s_tmp))
    k('s_add_u32 s%d, s%d, s3' % (g.s_tmp, g.s_tmp))
    k('s_lshl_b32 s%d, s%d, 16' % (g.s_tmp, g.s_tmp))
    k('s_and_b32 s%d, s2, 7' % g.s_t2)
    k('s_lshl_b32 s%d, s%d, 9' % (g.s_t2, g.s_t2))
    k('s_add_u32 s%d, s%d, s%d' % (g.s_tmp, g.s_tmp, g.s_t2))
    k('v_lshrrev_b32 v16, 2, v1')
    k('v_lshlrev_b32 v16, 12, v16')
    k('v_and_b32 v17, 3, v1')
    k('v_lshl_add_u32 v16, v17, 7, v16')
    for i in range(7):
        k('buffer_load_dword v%d, v16, %s, s%d offen' % (18 + i, srd(SRD_W2), g.s_tmp))
        k('s_add_u32 s%d, s%d, 0x100000' % (g.s_tmp, g.s_tmp))
        k.wait_vm(AGENT_DEPTH - 1)
    k.wait_vm(0)


class G:
    ACC = 16
    RING = 80
    NR = 16
    vW1, vW2 = 213, 214
    vRa, vRb = 215, 216
    vSa, vSb = 217, 218
    vCl = 5
    T = 220
    s_dtC, s_ft, s_dtD, s_st, s_tmp, s_t2, s_stage, s_a0, s_a1 = 64, 65, 66, 67, 68, 69, 70, 71, 72
    s_b0, s_b1 = 56, 57


def G_map(k):
    g = G
    k.c('---- C/D tile map')
    k('s_lshr_b32 s%d, s2, 3' % g.s_tmp)
    k('s_mul_i32 s%d, s%d, 37' % (g.s_t2, g.s_tmp))
    k('s_lshr_b32 s%d, s%d, 8' % (g.s_t2, g.s_t2))
    k('s_mul_i32 s%d, s%d, 7' % (g.s_dtC, g.s_t2))
    k('s_sub_u32 s%d, s%d, s%d' % (g.s_dtC, g.s_tmp, g.s_dtC))
    k('s_mov_b32 s%d, s%d' % (g.s_dtD, g.s_dtC))
    k('s_and_b32 s%d, s2, 7' % g.s_tmp)
    k('s_lshl_b32 s%d, s%d, 2' % (g.s_st, g.s_tmp))
    k('s_add_u32 s%d, s%d, s%d' % (g.s_st, g.s_st, g.s_t2))
    k('s_cmp_ge_u32 s%d, 4' % g.s_t2)
    k('s_cselect_b32 s%d, 99, s%d' % (g.s_st, g.s_st))
    k('s_mul_i32 s%d, s%d, 3' % (g.s_a0, g.s_tmp))
    k('s_add_u32 s%d, s%d, 4' % (g.s_a0, g.s_a0))
    k('s_lshl_b32 s%d, s%d, 2' % (g.s_a1, g.s_tmp))
    k('s_cmp_lt_u32 s%d, 4' % g.s_tmp)
    k('s_cselect_b32 s%d, s%d, s%d' % (g.s_ft, g.s_a1, g.s_a0))
    k('s_cselect_b32 s%d, 4, 3' % g.s_a0)
    k('s_add_u32 s%d, s%d, s%d' % (g.s_ft, g.s_ft, g.s_t2))
    k('s_cmp_ge_u32 s%d, s%d' % (g.s_t2, g.s_a0))
    k('s_cselect_b32 s%d, 99, s%d' % (g.s_ft, g.s_ft))


def G_w_setup(k, which, lds_base, per_wave):
    g = G
    t = TMP
    stride = F * 2 if which == 1 else S * 2
    krows = 512 if which == 1 else 448
    vW = g.vW1 if which == 1 else g.vW2
    va, vb = (g.vRa, g.vRb) if which == 1 else (g.vSa, g.vSb)
    s_tile = g.s_ft if which == 1 else g.s_st
    k('s_mul_i32 s%d, s3, %d' % (g.s_stage, per_wave))
    k('s_add_u32 s%d, s%d, %d' % (g.s_stage, g.s_stage, lds_base))
    k('v_lshrrev_b32 v%d, 3, v1' % t)
    k('v_mul_u32_u24 v%d, %d, v%d' % (vW, stride, t))
    k('v_and_b32 v%d, 1, v3' % t)
    k('v_lshlrev_b32 v%d, 2, v%d' % (t, t))
    k('v_and_b32 v%d, 7, v1' % (t + 1))
    k('v_xor_b32 v%d, v%d, v%d' % (t, t, t + 1))
    k('v_lshl_add_u32 v%d, v%d, 4, v%d' % (vW, t, vW))
    k('s_mul_i32 s%d, s3, %d' % (g.s_tmp, krows * stride))
    k('s_lshl_b32 s%d, s%d, 7' % (g.s_t2, s_tile))
    k('s_add_u32 s%d, s%d, s%d' % (g.s_tmp, g.s_tmp, g.s_t2))
    k('s_cmp_ge_u32 s%d, 99' % s_tile)
    k('s_cselect_b32 s%d, 0x%x, s%d' % (g.s_tmp, OOB, g.s_tmp))
    k('v_add_u32 v%d, s%d, v%d' % (vW, g.s_tmp, vW))
    if which == 1:
        k('s_cselect_b32 s%d, 0x%x, 0' % (g.s_tmp, OOB))
        k('v_add_u32 v%d, s%d, v4' % (g.vCl, g.s_tmp))
    k('v_lshrrev_b32 v%d, 5, v1' % t)
    k('v_lshlrev_b32 v%d, 9, v%d' % (va, t))
    k('v_bfe_u32 v%d, v1, 2, 2' % t)
    k('v_lshl_add_u32 v%d, v%d, 7, v%d' % (va, t, va))
    k('v_lshrrev_b32 v%d, 1, v%d' % (t, t))
    k('s_lshr_b32 s%d, s3, 1' % g.s_tmp)
    k('v_xor_b32 v%d, s%d, v%d' % (t, g.s_tmp, t))
    k('v_lshl_add_u32 v%d, v%d, 6, v%d' % (va, t, va))
    k('v_and_b32 v%d, 1, v3' % t)
    k('v_lshl_add_u32 v%d, v%d, 5, v%d' % (va, t, va))
    k('v_and_b32 v%d, 3, v1' % t)
    k('v_lshl_add_u32 v%d, v%d, 3, v%d' % (va, t, va))
    if CD2 and which == 1:
        k('s_and_b32 s%d, s3, 1' % g.s_tmp)
        k('s_lshl_b32 s%d, s%d, 5' % (g.s_tmp, g.s_tmp))
        k('v_xor_b32 v%d, s%d, v%d' % (va, g.s_tmp, va))
    k('v_add_u32 v%d, s%d, v%d' % (va, g.s_stage, va))
    k('v_xor_b32 v%d, 64, v%d' % (vb, va))


ROT = True
S_GC, S_GD = 94, 48


def G_rot_setup(k, which):
    n, base = (8, S_GC) if which == 1 else (7, S_GD)
    t = G.s_tmp
    if ROT in ('x', 'x2'):
        k('s_lshr_b32 s%d, s2, 3' % t)
        k('s_mul_i32 s%d, s%d, 37' % (t, t))
        k('s_lshr_b32 s%d, s%d, 8' % (t, t))
        k('s_and_b32 s%d, s%d, %d' % (t, t, 3 if ROT == 'x' else 1))
        for g_ in range(n):
            if n == 8 or g_ < 4:
                k('s_xor_b32 s%d, s%d, %d' % (base + g_, t, g_))
            elif g_ < 6:
                k('s_and_b32 s%d, s%d, 1' % (base + g_, t))
                k('s_xor_b32 s%d, s%d, %d' % (base + g_, base + g_, g_))
            else:
                k('s_mov_b32 s%d, %d' % (base + g_, g_))
            k('s_lshl_b32 s%d, s%d, 12' % (base + g_, base + g_))
        return
    if ROT == 'q':
        k('s_lshr_b32 s%d, s2, 3' % t)
        k('s_mul_i32 s%d, s%d, 37' % (t, t))
        k('s_lshr_b32 s%d, s%d, 8' % (t, t))
        k('s_and_b32 s%d, s%d, 3' % (t, t))
        k('s_mul_i32 s%d, s%d, %d' % (t, t, n))
        k('s_add_u32 s%d, s%d, 2' % (t, t))
        k('s_lshr_b32 s%d, s%d, 2' % (t, t))
    elif ROT:
        k('s_and_b32 s%d, s2, 7' % t)
    else:
        k('s_mov_b32 s%d, 0' % t)
    for g_ in range(n):
        if g_:
            k('s_add_u32 s%d, s%d, 1' % (t, t))
        k('s_cmp_ge_u32 s%d, %d' % (t, n))
        k('s_cselect_b32 s%d, %d, 0' % (base + g_, n))
        k('s_sub_u32 s%d, s%d, s%d' % (t, t, base + g_))
        k('s_lshl_b32 s%d, s%d, 12' % (base + g_, t))


def G_w_dma(k, which, t0, nt, slot0, tag=None, bg=False):
    g = G
    stride = F * 2 if which == 1 else S * 2

    def one(i):
        slot = slot0 + i // 2
        assert slot < NSLOT
        k.wait_lg_tag('rd%d' % slot)
        k.slot_content = getattr(k, 'slot_content', {})
        k.slot_content[slot] = (which, t0 + i // 2, i % 2)
        k('s_add_u32 m0, s%d, %d' % (g.s_stage, slot0 * 2048 + i * 1024))
        t = t0 + i // 2
        k('s_mul_i32 s%d, s%d, %d' % (B.s_dma, (S_GC if which == 1 else S_GD) + t // 4, 64 * stride // 4096))
        k('s_add_u32 s%d, s%d, %d' % (B.s_dma, B.s_dma, (16 * (t % 4) + 8 * (i % 2)) * stride))
        k('buffer_load_dwordx4 v%d, %s, s%d offen lds' % (g.vW1 if which == 1 else g.vW2, srd(SRD_W1 if which == 1 else SRD_W2), B.s_dma), tag='slot%d' % slot)
    for i in range(2 * nt):
        if bg:
            k.bg_push(lambda i=i: one(i))
        else:
            one(i)


def W1_warm(k, vdst):
    g = G
    t = TMP
    k('s_lshr_b32 s%d, s2, 3' % g.s_tmp)
    k('s_lshl_b32 s%d, s%d, 2' % (g.s_tmp, g.s_tmp))
    k('s_add_u32 s%d, s%d, s3' % (g.s_tmp, g.s_tmp))
    if True:
        k('v_lshlrev_b32 v%d, 7, v1' % t)
        k('s_mul_i32 s%d, s%d, 3200' % (S_T, g.s_tmp))
        k('s_mov_b64 exec, 0x1ffffff')
        k('buffer_load_dword v234, v%d, %s, s%d offen' % (t, srd(SRD_WO), S_T))
        k('s_mov_b64 exec, -1')
    k('v_lshrrev_b32 v%d, 2, v1' % t)
    k('v_mul_u32_u24 v%d, %d, v%d' % (t, F * 2, t))
    k('v_and_b32 v%d, 3, v1' % (t + 1))
    k('v_lshl_add_u32 v%d, v%d, 7, v%d' % (t, t + 1, t))
    k('s_mul_i32 s%d, s%d, %d' % (g.s_tmp, g.s_tmp, 16 * F * 2))
    k('s_and_b32 s%d, s2, 7' % g.s_t2)
    k('s_mul_i32 s%d, s%d, 3' % (S_T, g.s_t2))
    k('s_add_u32 s%d, s%d, 4' % (S_T, S_T))
    k('s_lshl_b32 s%d, s%d, 2' % (S_T + 1, g.s_t2))
    k('s_min_u32 s%d, s%d, s%d' % (S_T, S_T, S_T + 1))
    k('s_lshl_b32 s%d, s%d, 7' % (S_T, S_T))
    k('s_add_u32 s%d, s%d, s%d' % (S_T, S_T, g.s_tmp))
    k('s_cmp_lt_u32 s%d, 4' % g.s_t2)
    k('s_cselect_b32 exec_lo, -1, 0x77777777')
    k('s_cselect_b32 exec_hi, -1, 0x77777777')
    k('buffer_load_dword v%d, v%d, %s, s%d offen' % (vdst, t, srd(SRD_W1), S_T))
    k('s_mov_b64 exec, -1')


def G_w_read(k, which, t, slot, areg):
    g = G
    va, vb = (g.vRa, g.vRb) if which == 1 else (g.vSa, g.vSb)
    sec = 1024
    assert k.slot_content[slot] == (which, t, 1), (k.slot_content[slot], which, t)
    k.wait_tag('slot%d' % slot)
    for i, v in enumerate((va, vb)):
        k('ds_read_b64_tr_b16 %s, v%d offset:%d' % (ar(areg + 4 * i, 2), v, slot * 2048), tag='rd%d' % slot)
        k('ds_read_b64_tr_b16 %s, v%d offset:%d' % (ar(areg + 4 * i + 2, 2), v, slot * 2048 + sec), tag='rd%d' % slot)


def G_a_setup(k, which):
    g = G
    nks = 128 if which == 1 else 112
    per = 32 if which == 1 else 28
    base = HH_OFF if which == 1 else U_OFF
    s_dt = g.s_dtC if which == 1 else g.s_dtD
    k('s_lshl_b32 s%d, s%d, 1' % (g.s_tmp, s_dt))
    k('s_and_b32 s%d, s3, 1' % g.s_t2)
    k('s_add_u32 s%d, s%d, s%d' % (g.s_a0, g.s_tmp, g.s_t2))
    k('s_xor_b32 s%d, s%d, 1' % (g.s_a1, g.s_a0))
    k('s_mul_i32 s%d, s3, %d' % (g.s_tmp, per * 1024))
    k('s_add_u32 s%d, s%d, 0x%x' % (g.s_tmp, g.s_tmp, base))
    for s_ in (g.s_a0, g.s_a1):
        k('s_mul_i32 s%d, s%d, %d' % (s_, s_, nks * 1024))
        k('s_add_u32 s%d, s%d, s%d' % (s_, s_, g.s_tmp))


def G_a_load(k, t, sc1='', vo=4, which=1):
    g = G
    if t % 4 == 0:
        gr = (S_GC if which == 1 else S_GD) + t // 4
        k('s_add_u32 s%d, s%d, s%d' % (g.s_b0, g.s_a0, gr))
        k('s_add_u32 s%d, s%d, s%d' % (g.s_b1, g.s_a1, gr))
    r = g.RING + 8 * (t % g.NR)
    for i, s_ in enumerate((g.s_b0, g.s_b1)):
        k('buffer_load_dwordx4 %s, v%d, %s, s%d offen offset:%d %s' % (vr(r + 4 * i, 4), vo, srd(SRD_WS), s_, (t % 4) * 1024, sc1))


def G_mfma(k, t, areg):
    g = G
    r = g.RING + 8 * (t % g.NR)
    for iw in range(2):
        for ia in range(2):
            L = 2 * iw + ia
            a = vr(g.ACC + 16 * L, 16)
            c = '0' if (t == 0 and L != 0) else a
            k('v_mfma_f32_32x32x16_bf16 %s, %s, %s, %s' % (a, ar(areg + 4 * iw, 4), vr(r + 4 * ia, 4), c))


def G_mfma_tail(k, ts, areg, order, writes):
    g = G
    pend = []
    for L in order:
        iw, ia = L >> 1, L & 1
        a = vr(g.ACC + 16 * L, 16)
        for n, t in enumerate(ts):
            r = g.RING + 8 * (t % g.NR)
            k('v_mfma_f32_32x32x16_bf16 %s, %s, %s, %s' % (a, ar(areg(t) + 4 * iw, 4), vr(r + 4 * ia, 4), a))
            if n >= 1:
                per = -(-len(pend) // (len(ts) - n))
                for f in pend[:per]:
                    f()
                pend = pend[per:]
        pend = pend + list(writes.get(L, []))
    for f in pend:
        f()


def C_init(k):
    g = G
    t = g.T
    k('v_lshrrev_b32 v%d, 5, v1' % t)
    k('v_lshlrev_b32 v%d, 3, v%d' % (t, t))
    k('s_lshl_b32 s%d, s%d, 7' % (g.s_tmp, g.s_ft))
    k('s_lshr_b32 s%d, s3, 1' % g.s_t2)
    k('s_lshl_b32 s%d, s%d, 6' % (g.s_t2, g.s_t2))
    k('s_add_u32 s%d, s%d, s%d' % (g.s_tmp, g.s_tmp, g.s_t2))
    for q in range(4):
        k('buffer_load_dwordx2 %s, v%d, %s, s%d offen offset:%d' % (vr(t + 2 + 2 * q, 2), t, srd(SRD_B1), g.s_tmp, 16 * q))


def C_init_finish(k):
    g = G
    t = g.T
    for q in range(4):
        for i in range(2):
            k('v_lshlrev_b32 v%d, 16, v%d' % (g.ACC + 4 * q + 2 * i, t + 2 + 2 * q + i))
            k('v_and_b32 v%d, 0xffff0000, v%d' % (g.ACC + 4 * q + 2 * i + 1, t + 2 + 2 * q + i))


def C_epi_addr(k):
    g = G
    t = g.T
    for L in range(1, 4):
        k('s_xor_b32 s%d, s3, %d' % (g.s_tmp, L))
        k('s_mul_i32 s%d, s%d, %d' % (g.s_tmp, g.s_tmp, STG_SZ))
        k('s_add_u32 s%d, s%d, %d' % (g.s_tmp, g.s_tmp, LDS_STG + (L - 1) * 4096))
        k('v_add_u32 v%d, s%d, v4' % (t + L, g.s_tmp))
    k('v_add_u32 v%d, s%d, v4' % (t, g.s_stage))
    k('s_lshl_b32 s%d, s%d, 1' % (g.s_tmp, g.s_dtC))
    k('s_and_b32 s%d, s3, 1' % g.s_t2)
    k('s_add_u32 s%d, s%d, s%d' % (g.s_tmp, g.s_tmp, g.s_t2))
    k('s_mul_i32 s%d, s%d, 112' % (g.s_tmp, g.s_tmp))
    k('s_lshl_b32 s%d, s%d, 2' % (g.s_t2, g.s_ft))
    k('s_add_u32 s%d, s%d, s%d' % (g.s_tmp, g.s_tmp, g.s_t2))
    k('s_and_b32 s%d, s3, 2' % g.s_t2)
    k('s_add_u32 s%d, s%d, s%d' % (g.s_tmp, g.s_tmp, g.s_t2))
    k('s_lshl_b32 s%d, s%d, 10' % (g.s_tmp, g.s_tmp))
    k('s_add_u32 s%d, s%d, 0x%x' % (g.s_tmp, g.s_tmp, U_OFF))
    c1 = -2.0 * 0.7978845608028654 * 1.4426950408889634
    c2 = c1 * 0.044715
    k('s_mov_b32 s88, %s' % f32(c1))
    k('s_mov_b32 s90, %s' % f32(c2))
    k('v_mov_b32 v%d, s88' % (t + 4))
    k('v_mov_b32 v%d, s88' % (t + 5))


def C_epi_writes(k):
    g = G
    t = g.T
    return {L: [lambda L=L, q=q: k('ds_write_b128 v%d, %s offset:%d' % (t + L, vr(g.ACC + 16 * L + 4 * q, 4), q * 1024))
                for q in range(4)] for L in range(1, 4)}


def C_epilogue(k, sc1=''):
    g = G
    t = g.T
    k.c('---- phase C epilogue')
    k.wait_lg(0)
    k.barrier()
    R = g.ACC + 16
    for q in range(4):
        for L in range(3):
            k('ds_read_b128 %s, v%d offset:%d' % (vr(R + 16 * L + 4 * q, 4), t, L * 4096 + q * 1024))
    sc = 88
    X2 = g.RING
    for half in range(2):
        for i in range(8 * half, 8 * half + 8, 2):
            a = g.ACC + i
            k('v_pk_add_f32 %s, %s, %s' % (vr(R + i, 2), vr(R + i, 2), vr(R + 16 + i, 2)))
            k('v_pk_add_f32 %s, %s, %s' % (vr(a, 2), vr(a, 2), vr(R + 32 + i, 2)))
        for i in range(8 * half, 8 * half + 8, 2):
            a = g.ACC + i
            k('v_pk_add_f32 %s, %s, %s' % (vr(a, 2), vr(a, 2), vr(R + i, 2)))
        for i in range(8 * half, 8 * half + 8, 2):
            a = g.ACC + i
            k('v_pk_mul_f32 %s, %s, %s' % (vr(X2 + i, 2), vr(a, 2), vr(a, 2)))
        for i in range(8 * half, 8 * half + 8, 2):
            k('v_pk_fma_f32 %s, %s, %s, %s op_sel_hi:[1,0,1]' % (vr(X2 + i, 2), vr(X2 + i, 2), sr(sc + 2, 2), vr(t + 4, 2)))
        for i in range(8 * half, 8 * half + 8, 2):
            k('v_pk_mul_f32 %s, %s, %s' % (vr(X2 + i, 2), vr(X2 + i, 2), vr(g.ACC + i, 2)))
        for i in range(8 * half, 8 * half + 8):
            k('v_exp_f32 v%d, v%d' % (X2 + i, X2 + i))
        for i in range(8 * half, 8 * half + 8, 2):
            k('v_pk_add_f32 %s, %s, 1.0 op_sel_hi:[1,0]' % (vr(X2 + i, 2), vr(X2 + i, 2)))
        for i in range(8 * half, 8 * half + 8):
            k('v_rcp_f32 v%d, v%d' % (X2 + i, X2 + i))
        for i in range(8 * half, 8 * half + 8, 2):
            k('v_pk_mul_f32 %s, %s, %s' % (vr(X2 + i, 2), vr(X2 + i, 2), vr(g.ACC + i, 2)))
        p = X2 + 16 + 4 * half
        for i in range(4):
            k('v_cvt_pk_bf16_f32 v%d, v%d, v%d' % (p + i, X2 + 8 * half + 2 * i, X2 + 8 * half + 2 * i + 1))
        k('buffer_store_dwordx4 %s, v%d, %s, s%d offen offset:%d %s' % (vr(p, 4), g.vCl, srd(SRD_WS), g.s_tmp, half * 1024, sc1), tag='ust')


def D_init(k, sc1=''):
    g = G
    t = g.T
    k('v_lshrrev_b32 v%d, 5, v1' % t)
    k('v_lshlrev_b32 v%d, 3, v%d' % (t, t))
    k('s_lshl_b32 s%d, s%d, 7' % (g.s_tmp, g.s_st))
    k('s_lshr_b32 s%d, s3, 1' % g.s_t2)
    k('s_lshl_b32 s%d, s%d, 6' % (g.s_t2, g.s_t2))
    k('s_add_u32 s%d, s%d, s%d' % (g.s_tmp, g.s_tmp, g.s_t2))
    for q in range(4):
        k('buffer_load_dwordx2 %s, v%d, %s, s%d offen offset:%d' % (vr(t + 2 + 2 * q, 2), t, srd(SRD_B2), g.s_tmp, 16 * q))


def D_init_finish(k):
    g = G
    t = g.T
    for q in range(4):
        for i in range(2):
            a = g.ACC + 4 * q + 2 * i
            k('v_lshlrev_b32 v%d, 16, v%d' % (a, t + 2 + 2 * q + i))
            k('v_and_b32 v%d, 0xffff0000, v%d' % (a + 1, t + 2 + 2 * q + i))
            k('v_lshlrev_b32 v%d, 16, v%d' % (t + 18, B.HK + 2 * q + i))
            k('v_and_b32 v%d, 0xffff0000, v%d' % (t + 19, B.HK + 2 * q + i))
            k('v_pk_add_f32 %s, %s, %s' % (vr(a, 2), vr(a, 2), vr(t + 18, 2)))


def D_epilogue(k, lds_red, stride):
    g = G
    t = g.T
    k.c('---- phase D epilogue')
    k('v_lshrrev_b32 v%d, 5, v1' % t)
    k('v_lshlrev_b32 v%d, 10, v%d' % (t, t))
    k('v_and_b32 v%d, 31, v1' % (t + 1))
    k('v_lshl_add_u32 v%d, v%d, 2, v%d' % (t, t + 1, t))
    k('s_lshr_b32 s%d, s3, 1' % g.s_t2)
    k('s_lshl_b32 s%d, s%d, 13' % (g.s_tmp, g.s_t2))
    k('s_and_b32 s%d, s3, 1' % g.s_t2)
    k('s_lshl_b32 s%d, s%d, 7' % (g.s_t2, g.s_t2))
    k('s_add_u32 s%d, s%d, s%d' % (g.s_tmp, g.s_tmp, g.s_t2))
    k('v_add_u32 v%d, s%d, v%d' % (t, g.s_tmp, t))
    k('v_xor_b32 v%d, 128, v%d' % (t + 1, t))
    k('v_xor_b32 v%d, 0x2000, v%d' % (t + 2, t))
    k('v_xor_b32 v%d, 0x2080, v%d' % (t + 3, t))
    k('s_mul_i32 s%d, s3, %d' % (g.s_tmp, stride))
    k('s_add_u32 s%d, s%d, %d' % (g.s_tmp, g.s_tmp, lds_red))
    for L in range(4):
        k('v_add_u32 v%d, s%d, v%d' % (t + L, g.s_tmp, t + L))
    k('s_lshl_b32 s%d, s3, 12' % g.s_tmp)
    k('s_add_u32 s%d, s%d, %d' % (g.s_tmp, g.s_tmp, lds_red))
    k('v_add_u32 v%d, s%d, v4' % (t + 4, g.s_tmp))
    k('v_add_u32 v%d, %d, v%d' % (t + 6, 2 * stride, t + 4))
    k('v_mul_u32_u24 v%d, 896, v3' % (t + 5))
    k('v_lshl_add_u32 v%d, v2, 3, v%d' % (t + 5, t + 5))
    k('s_lshl_b32 s%d, s%d, 2' % (g.s_tmp, g.s_st))
    k('s_add_u32 s%d, s%d, s3' % (g.s_tmp, g.s_tmp))
    k('s_mul_i32 s%d, s%d, %d' % (g.s_tmp, g.s_tmp, 16 * 896))
    k('s_lshl_b32 s%d, s%d, 7' % (g.s_t2, g.s_dtD))
    k('s_add_u32 s%d, s%d, s%d' % (g.s_tmp, g.s_tmp, g.s_t2))
    k('s_add_u32 s%d, s%d, %d' % (g.s_t2, g.s_tmp, 8 * 896))


def D_epi_writes(k):
    g = G
    t = g.T
    return {L: [lambda L=L, q=q, r=r: k('ds_write2st64_b32 v%d, v%d, v%d offset0:%d offset1:%d' % (
        t + L, g.ACC + 16 * L + 4 * q + r, g.ACC + 16 * L + 4 * q + r + 1, 8 * q + r, 8 * q + r + 1))
        for q in range(4) for r in (0, 2)] for L in range(4)}


def D_epilogue2(k, stride):
    g = G
    t = g.T
    k.wait_lg(0)
    k.barrier()
    R = g.ACC
    for i in range(4):
        for w in range(4):
            k('ds_read_b128 %s, v%d offset:%d' % (vr(R + 16 * i + 4 * w, 4), t + 4 if w < 2 else t + 6, (w & 1) * stride + i * 1024))
    for i in range(4):
        r = R + 16 * i
        for j in (0, 2):
            k('v_pk_add_f32 %s, %s, %s' % (vr(r + j, 2), vr(r + j, 2), vr(r + 4 + j, 2)))
            k('v_pk_add_f32 %s, %s, %s' % (vr(r + 8 + j, 2), vr(r + 8 + j, 2), vr(r + 12 + j, 2)))
        for j in (0, 2):
            k('v_pk_add_f32 %s, %s, %s' % (vr(r + j, 2), vr(r + j, 2), vr(r + 8 + j, 2)))
        k('v_cvt_pk_bf16_f32 v%d, v%d, v%d' % (r + 4, r, r + 1))
        k('v_cvt_pk_bf16_f32 v%d, v%d, v%d' % (r + 5, r + 2, r + 3))
        k('buffer_store_dwordx2 %s, v%d, %s, s%d offen offset:%d' % (vr(r + 4, 2), t + 5, srd(SRD_OUT), g.s_t2 if i >= 2 else g.s_tmp, (i % 2) * 4 * 896))
```

```python
import sys, os
sys.path.insert(0, os.path.dirname(os.path.abspath(__file__)))
from dsl import Kernel
import phases as P
import cd2
import a2

NAME = 'sequential_preLN__sliding_local_dilated__mixer_token_mlp__prompt'
HEADER = open(os.path.join(os.path.dirname(os.path.abspath(__file__)), '..', NAME + '.s.ref')).read().split('; Override launch')[0]


def wrap(kernels):
    out = [HEADER.rstrip('\n')]
    for label, k, grid, lds in kernels:
        if len(kernels) == 1 and label == NAME + '_kernel':
            out.append('; @launch grid=(%d,1,1) block=(256,1,1) lds=%d' % (grid, lds))
        else:
            out.append('; @launch kernel=%s grid=(%d,1,1) block=(256,1,1) lds=%d' % (label, grid, lds))
    out.append('.amdgcn_target "amdgcn-amd-amdhsa--gfx950"')
    out.append('.text')
    seen = []
    for label, k, grid, lds in kernels:
        if label in seen:
            continue
        seen.append(label)
        out.append('.globl %s\n.p2align 8\n.type %s,@function\n%s:' % (label, label, label))
        out.append(k.text())
    out.append('.section .rodata,"a"')
    seen = []
    for label, k, grid, lds in kernels:
        if label in seen:
            continue
        seen.append(label)
        nv = k.max_v + 1
        acc = (nv + 3) // 4 * 4
        tot = acc + k.max_a + 1 if k.max_a >= 0 else nv
        out.append('.p2align 6\n.amdhsa_kernel %s\n  .amdhsa_next_free_vgpr %d\n  .amdhsa_next_free_sgpr 102\n'
                   '  .amdhsa_accum_offset %d\n  .amdhsa_group_segment_fixed_size 0\n  .amdhsa_kernarg_size 88\n'
                   '  .amdhsa_user_sgpr_count 2\n  .amdhsa_user_sgpr_kernarg_segment_ptr 1\n'
                   '  .amdhsa_system_sgpr_workgroup_id_x 1\n.end_amdhsa_kernel' % (label, tot, acc))
        sys.stderr.write('%s: %d instrs, %d nops, v<=%d a<=%d s<=%d\n' % (label, k.n_ins, k.n_nops, k.max_v, k.max_a, k.max_s))
    return '\n'.join(out) + '\n'


def kernel_A(stamps=False):
    k = Kernel('A'); k.stamps = stamps
    P.prologue(k, 256, 'L_end_A', [P.ARG[n] for n in ('x', 'wqkv', 'ws')])
    P.stamp(k, 0)
    P.phaseA(k)
    P.stamp(k, 5)
    k.wait_vm(0)
    P.stamp(k, 6)
    k.label('L_end_A')
    k('s_endpgm')
    return ('phaseA_kernel', k, 256, P.A_LDS_END)


OPT = {}


def persist(stamps=False):
    k = Kernel('P'); k.stamps = stamps; k.scramble = OPT.get('scramble', False); k.xcctest = OPT.get('xcctest', False)
    end = 'L_end_P'
    g, b = P.G, P.B
    SC = 'sc1'
    SCL = OPT.get('scl', 'sc1')
    vE, vF, vPA, vPB, vPC = 6, 8, 10, 11, 12
    sFA, sFB, sFC, sPA, sPB, sPC = 80, 81, 82, 83, 84, 85
    P.prologue(k, 256, end, [P.ARG[n] for n in ('x', 'wqkv', 'dbg', 'ws', 'wo', 'w1', 'w2', 'b1', 'b2', 'out')])
    P.stamp(k, 0)

    def areg(t):
        return 128 + 8 * t if t < 16 else 8 * (t - 16)

    def setup():
        P.G_map(k)
        P.B_setup(k)
        P.G_w_setup(k, 1, P.LDS_STG, P.STG_SZ)
        P.G_w_setup(k, 2, P.LDS_STG, P.STG_SZ)
        P.G_rot_setup(k, 1)
        t = 93
        AG = OPT.get('ag', 2)
        if P.M2:
            k('s_lshl_b32 s%d, s48, 11' % sFA)
        else:
            k('s_lshl_b32 s%d, s48, 2' % sFA)
            k('s_add_u32 s%d, s%d, s3' % (sFA, sFA))
            k('s_lshl_b32 s%d, s%d, 11' % (sFA, sFA))
        k('s_lshr_b32 s%d, s49, %d' % (t, AG))
        k('s_lshl_b32 s%d, s%d, 7' % (t, t))
        k('s_add_u32 s%d, s%d, s%d' % (sFA, sFA, t))
        k('s_and_b32 s%d, s49, %d' % (t, (1 << AG) - 1))
        k('s_lshl_b32 s%d, s%d, 2' % (t, t))
        k('s_add_u32 s%d, s%d, s%d' % (sFA, sFA, t))
        k('s_add_u32 s%d, s%d, 0x%x' % (sFA, sFA, P.FLAG_A))
        k('s_lshl_b32 s%d, s%d, 1' % (sPA, g.s_st))
        k('s_lshr_b32 s%d, s3, 1' % t)
        k('s_add_u32 s%d, s%d, s%d' % (sPA, sPA, t))
        k('s_lshl_b32 s%d, s%d, 11' % (sPA, sPA))
        k('s_add_u32 s%d, s%d, 0x%x' % (sPA, sPA, P.FLAG_A))
        k('v_lshrrev_b32 v%d, %d, v2' % (vPA, AG))
        k('v_lshlrev_b32 v%d, 7, v%d' % (vPA, vPA))
        k('v_and_b32 v%d, %d, v2' % (P.TMP, (1 << AG) - 1))
        k('v_lshl_add_u32 v%d, v%d, 2, v%d' % (vPA, P.TMP, vPA))
        k('s_lshl_b32 s%d, s%d, 12' % (sPB, g.s_dtC))
        k('s_lshl_b32 s%d, s%d, 1' % (sPC, sPB))
        k('s_add_u32 s%d, s%d, 0x%x' % (sPC, sPC, P.FLAG_C))
        k('s_add_u32 s%d, s%d, 0x%x' % (sPB, sPB, P.FLAG_B))
        k('s_lshl_b32 s%d, s%d, 5' % (sFB, g.s_st))
        k('s_add_u32 s%d, s%d, s3' % (sFB, sFB))
        k('s_lshl_b32 s%d, s%d, 2' % (sFB, sFB))
        k('s_add_u32 s%d, s%d, s%d' % (sFB, sFB, sPB))
        k('s_lshl_b32 s%d, s3, 10' % t)
        k('s_add_u32 s%d, s%d, s%d' % (sPB, sPB, t))
        k('v_bfe_u32 v%d, v1, 2, 3' % vPB)
        k('v_min_u32 v%d, 6, v%d' % (vPC, vPB))
        k('v_and_b32 v%d, 3, v1' % P.TMP)
        k('v_lshlrev_b32 v%d, 2, v%d' % (P.TMP, P.TMP))
        k('v_lshl_add_u32 v%d, v%d, 7, v%d' % (vPB, vPB, P.TMP))
        k('v_lshl_add_u32 v%d, v%d, 7, v%d' % (vPC, vPC, P.TMP))
        k('s_lshl_b32 s%d, s%d, 5' % (sFC, g.s_ft))
        k('s_add_u32 s%d, s%d, s3' % (sFC, sFC))
        k('s_lshl_b32 s%d, s%d, 2' % (sFC, sFC))
        k('s_add_u32 s%d, s%d, s%d' % (sFC, sFC, sPC))
        k('s_mul_i32 s%d, s3, 896' % t)
        k('s_add_u32 s%d, s%d, s%d' % (sPC, sPC, t))
        k('v_mov_b32 v%d, 0' % (vF + 1))

    hooksA = {
        'A_pre': lambda: P.epoch_publish(k, vE),
        'A_after_issue': setup,
        'A_k%d' % OPT.get('wk', 8): lambda: (P.epoch_load(k, vE), P.W1_warm(k, 235) if OPT.get('w1w', True) else None),
        'A_e1': lambda: P.B_wo_dma(k) if OPT.get('wo_e1', False) else None,
    }
    (a2 if P.M2 else P).phaseA(k, SC, hooksA)
    P.stamp(k, 5)
    if not OPT.get('wo_e1', False):
        P.B_wo_dma(k)
    k.bg(OPT.get('wo_pre', 14))
    P.epoch_get(k, vE)
    k.wait_tag('ost')
    P.flag_store(k, vF, sFA)
    P.stamp(k, 6)
    k.bg_flush()
    notag = k.newlabel('Lnotag')
    k('s_cmp_lt_u32 s%d, 99' % g.s_st)
    k.branch_fwd('s_cbranch_scc1', notag)
    if OPT.get('agent', True):
        P.agent(k)
    else:
        k.wait_vm(0)
    k('s_branch %s' % end)
    k.label(notag)
    P.B_xinit(k)
    P.G_rot_setup(k, 2)
    N1 = OPT.get('n1', 10)
    N2 = OPT.get('n2', 8)
    NP = OPT.get('np', 4)
    P.G_w_dma(k, 1, 0, NP, 8)
    k.wait_tag('wo')
    k.barrier()
    P.stamp(k, 7)
    P.G_w_dma(k, 1, NP, N1 - NP, 8 + NP, bg=True)
    P.B_wo_read(k, 0)
    k.bg_flush()
    k.wait_lg(0)
    k.barrier()
    P.stamp(k, 8)
    P.flag_poll(k, vF, vPA, sPA)
    P.stamp(k, 10)

    N3 = OPT.get('n3', 8)

    def after_of():
        for t in range(N1):
            P.G_w_read(k, 1, t, 8 + t, areg(t))
        P.G_w_dma(k, 1, N1, N2, 8, bg=True)
        P.B_xinit_finish(k)

    def before_poll():
        P.G_w_dma(k, 1, N1 + N2, N3, 0)

    P.B_main(k, 0, 0, SC, {'B_after_of': after_of, 'B_before_poll': before_poll})
    P.stamp(k, 14)
    for t in range(N1, N1 + N2):
        P.G_w_read(k, 1, t, 8 + t - N1, areg(t))
    for t in range(N1 + N2, N1 + N2 + N3):
        P.G_w_read(k, 1, t, t - N1 - N2, areg(t))
    k.wait_tag('hst')
    P.flag_store(k, vF, sFB)
    P.stamp(k, 15)
    R1 = N1 + N2 + N3
    M1 = OPT.get('m1', 6)
    assert 6 + 32 - R1 + M1 <= 18
    P.G_w_dma(k, 1, R1, 32 - R1, 6)
    P.G_w_dma(k, 2, 0, M1, 18 - M1)
    cd2.setup(k)
    P.flag_poll(k, vF, vPB, sPB)
    P.stamp(k, 16)
    UP = OPT.get('up', 8)
    for n in range(UP):
        cd2.a_load(k, n, SCL)
    for f in cd2.c_init_ops(k, 0):
        f()
    for t in range(R1, 32):
        P.G_w_read(k, 1, t, 6 + t - R1, areg(t))
    k('v_mov_b32 v%d, v%d' % (vF + 1, g.vCl))
    assert M1 == 6

    def w2slot(j):
        return 12 + j if j < 6 else (j if j < 12 else w2slot(j - 12))
    at = {}
    q = []

    def add(s_, *fs):
        at.setdefault(s_, []).extend(fs)

    def spread(s0, ops, per):
        for i, f in enumerate(ops):
            add(s0 + i // per, f)
    add(16, k.barrier)
    S2 = OPT.get('s2', 24)
    for j in range(6, 12):
        add(S2 + j - 6, lambda j=j: P.G_w_dma(k, 2, j, 1, w2slot(j)))
    spread(20, cd2.c_init_ops(k, 1), 4)
    spread(32, cd2.c_writes(k, 0), 3)
    add(34, lambda: k.wait_lg_tag('cw'), k.barrier, *cd2.c_reads(k, 0))
    EP = OPT.get('ep', 16)
    fin = cd2.c_final_ops(k, 0, SC, False)
    spread(36, fin, EP)
    e0 = 36 + (len(fin) - 1) // EP
    add(e0 + OPT.get('f0', 4), lambda: k.wait_tag('ust0'), lambda: P.flag_store(k, vF, sFC), lambda: P.stamp(k, 21))
    for j in range(12):
        add(e0 - 2 + j // 2 if j // 2 + e0 - 2 >= 32 + j else 32 + j, lambda j=j: P.G_w_read(k, 2, j, w2slot(j), areg(j)))
    WA, WB, NA = OPT.get('wa', 44), OPT.get('wb', 64), OPT.get('na', 8)
    for j in range(12, 28):
        sd = WA + (j - 12) if j < 12 + NA else WB + (j - 12 - NA)
        add(sd, lambda j=j: P.G_w_dma(k, 2, j, 1, w2slot(j)))
        add(max(sd + OPT.get('wl', 8), 32 + j), lambda j=j: P.G_w_read(k, 2, j, w2slot(j), areg(j)))
    spread(e0 + 1, cd2.d_init_ops(k, 0), 6)
    PA, CA = OPT.get('pa', 50), OPT.get('ca', 54)
    add(PA, lambda: cd2.probe(k, 248, vPC, sPC, 0))
    add(CA, lambda: cd2.probe_check(k, 248, vPC, sPC, 0))
    lim = {0: 64, CA + 1: 92}

    TL = OPT.get('tl', 4)

    def tail(n0, writes1):
        for n in range(n0, n0 + TL):
            cd2.mfma(k, n, 1, areg)
        per = -(-len(writes1) // max(TL - 1, 1))
        for i, n in enumerate(range(n0, n0 + TL)):
            cd2.mfma(k, n, 0, areg)
            if i:
                for f in writes1[per * (i - 1): per * i]:
                    f()

    def c1_epi():
        P.stamp(k, 20)
        for f in cd2.c_writes(k, 1)[4:]:
            f()
        k.wait_lg(0)
        k.barrier()
        for f in cd2.c_reads(k, 1) + cd2.c_final_ops(k, 1, SC, True):
            f()
        k('s_add_u32 s%d, s%d, 4096' % (sFC, sFC))
        k('s_add_u32 s%d, s%d, 4096' % (sPC, sPC))
    add(64 + OPT.get('f1', 4), lambda: k.wait_tag('ust1'), lambda: P.flag_store(k, vF, sFC), lambda: P.stamp(k, 22))
    spread(70, cd2.d_init_ops(k, 1), 6)
    PB, CB = OPT.get('pb', 80), OPT.get('cb', 84)
    add(PB, lambda: cd2.probe(k, 248, vPC, sPC, 0))
    add(CB, lambda: cd2.probe_check(k, 248, vPC, sPC, 0), lambda: P.stamp(k, 24))
    lim[CB + 1] = 120
    spread(92, cd2.d_writes(k, 0), 6)
    add(99, lambda: k.wait_lg(0), k.barrier, *cd2.d_reads(k, 0))
    spread(101, cd2.d_final_ops(k, 0, False), 6)
    nxt, cur = UP, 64
    late = []
    for n in range(120):
        cur = lim.get(n, cur)
        for _ in range(2):
            if nxt < cur and nxt < n + OPT.get('la', 10):
                cd2.a_load(k, nxt, SCL)
                nxt += 1
        fs = at.get(n, [])
        if 64 - TL <= n < 64 or n >= 120 - TL:
            for f in fs:
                assert n >= 120 - TL or True
                late.append(f)
            if n == 63:
                tail(64 - TL, cd2.c_writes(k, 1)[:4])
                for f in late:
                    f()
                late = []
                c1_epi()
            if n == 119:
                tail(120 - TL, cd2.d_writes(k, 1)[:16])
                for f in late:
                    f()
            continue
        cd2.mfma(k, n, 0, areg)
        cd2.mfma(k, n, 1, areg)
        for f in fs:
            f()
        if n in (0, 31, 64, 91):
            P.stamp(k, {0: 17, 31: 18, 64: 25, 91: 26}[n])
    P.stamp(k, 28)
    for f in cd2.d_writes(k, 1)[16:]:
        f()
    k.wait_lg(0)
    k.barrier()
    for f in cd2.d_reads(k, 1) + cd2.d_final_ops(k, 1, True):
        f()
    P.stamp(k, 29)
    if stamps:
        k.wait_vm(0)
        P.stamp(k, 30)
    k.label(end)
    k('s_endpgm')
    return (NAME + '_kernel', k, 256, P.LDS_END)


if __name__ == '__main__':
    which = sys.argv[1] if len(sys.argv) > 1 else 'p'
    outp = sys.argv[2] if len(sys.argv) > 2 else os.path.join(os.path.dirname(os.path.abspath(__file__)), '..', NAME + '.s')
    for o in sys.argv[3:]:
        kk, vv = o.split('=')
        OPT[kk] = eval(vv)
    P.OUT_SC = OPT.get('osc', ''); P.ROT = OPT.get('rot', True); P.POLL_DEPTH = OPT.get('pd', 3); P.POLL_GAP = OPT.get('pg', 3); P.POLL_SLEEP = OPT.get('ps', 0); P.ST_SLEEP = OPT.get('sts', 0); P.AGENT_DEPTH = OPT.get('ad', 4); P.START_ORDER = OPT.get('so', '0w|1'); P.WO_LATE = OPT.get('wol', True)
    P.STAMP_SET = OPT.get('ss', (0, 6, 16, 18, 20, 21, 22, 25, 24, 26, 28, 30))
    P.DBL = OPT.get('dbl', 0)
    cd2.SLEEP = OPT.get('sl', 0)
    P.WARM0 = OPT.get('w0', True)
    P.M2 = OPT.get('m2', False)
    P.WROW = OPT.get('wrow', 64)
    if which == 'p':
        ks = [persist()]
    elif which == 'p_dbg':
        ks = [persist('dbg')]
    elif which == 'p_st':
        P.ARG['ws'] = (P.SRD_WS, 80, 0x1000000)
        ks = [persist(True)]
    open(outp, 'w').write(wrap(ks))
```

```python
import struct
from dsl import Kernel, vr, ar, sr, classify

S, D, H, DH, F = 2048, 448, 16, 28, 1792

OF_OFF = 0x000000
HH_OFF = 0x200000
U_OFF = 0x3C0000
STAT_OFF = 0x548000
FLAG_OFF = 0x5C8000
WS_SIZE = 0x600000
OOB = 0x40000000

SRD_X, SRD_WQKV, SRD_WO, SRD_W1, SRD_W2, SRD_B1, SRD_B2, SRD_OUT, SRD_WS, SRD_DBG = 8, 12, 16, 20, 24, 28, 32, 36, 40, 44
SRD_A = 96
S_WG, S_WAVE = 2, 3
S_EPOCH = 4
S_SPIN = 6
S_ONES = 5
S_T = 86
V_LANE, V_T16, V_G, V_L16 = 1, 2, 3, 4


def f32(x):
    return '0x%08x' % struct.unpack('<I', struct.pack('<f', x))[0]


def srd(base):
    return sr(base, 4)


def prologue(k, nwg, end_label, need):
    k('s_cmp_ge_u32 s2, %d' % nwg)
    k('s_cbranch_scc1 %s' % end_label)
    if getattr(k, 'xcctest', False):
        k('s_getreg_b32 s3, hwreg(HW_REG_XCC_ID)')
        k('s_and_b32 s3, s3, 15')
        k('s_and_b32 s4, s2, 7')
        k('s_cmp_eq_u32 s3, s4')
        k('s_cbranch_scc1 Lxcc_ok')
        for _ in range(8):
            k('s_sleep 127')
        k.raw('Lxcc_ok:')
    if getattr(k, 'scramble', False):
        k('s_and_b32 s3, s2, 7')
        k('s_lshl_b32 s3, s3, 5')
        k('s_lshr_b32 s2, s2, 3')
        k('s_or_b32 s2, s2, s3')
    for base, off, size in need:
        k('s_load_dwordx2 %s, s[0:1], %d' % (sr(base, 2), off))
    k('v_lshrrev_b32 v1, 6, v0')
    k('v_readfirstlane_b32 s3, v1')
    k('v_and_b32 v1, 63, v0')
    k('v_and_b32 v2, 15, v0')
    k('v_lshrrev_b32 v3, 4, v1')
    k('v_lshlrev_b32 v4, 4, v1')
    for base, off, size in need:
        k('s_mov_b32 s%d, 0x%x' % (base + 2, size))
        k('s_mov_b32 s%d, 0x00020000' % (base + 3))
    k('s_mov_b32 s%d, 0x3f803f80' % S_ONES)
    k('s_mov_b32 s%d, 0x200000' % S_SPIN)
    k.end_label = end_label


ARG = dict(x=(SRD_X, 0, S * D * 2), wqkv=(SRD_WQKV, 8, D * 3 * D * 2), wo=(SRD_WO, 16, D * D * 2),
           w1=(SRD_W1, 32, S * F * 2), b1=(SRD_B1, 40, F * 2), w2=(SRD_W2, 48, F * S * 2), b2=(SRD_B2, 56, S * 2),
           out=(SRD_OUT, 64, S * D * 2), dbg=(SRD_DBG, 72, 256), ws=(SRD_WS, 80, WS_SIZE))


def xgroup_reduce(k, regs, tmp, op='v_add_f32'):
    for swap in ('v_permlane32_swap_b32', 'v_permlane16_swap_b32'):
        for r, t in zip(regs, tmp):
            k('v_mov_b32 v%d, v%d' % (t, r))
        for r, t in zip(regs, tmp):
            k('%s v%d, v%d' % (swap, r, t))
        for r, t in zip(regs, tmp):
            k('%s v%d, v%d, v%d' % (op, r, r, t))


A_LDS_CS = 0
A_LDS_ST = 512
A_LDS_KV = 2048
A_LDS_W = 12288
A_LDS_X = 61440
A_XSLOT = [2, 1, 0, 3]
A_LDS_END = A_LDS_X + 4 * 18432
LDS_STG = 12288
STG_SZ = 36864
NSLOT = 18
LDS_END = 163840
LDS_WO = 106496
TMP = 219


def xslot(grp):
    return A_XSLOT.index(grp % 4) * 18432


def phaseA(k, sc1='', hooks=None):
    hooks = hooks or {}
    XR = 16
    ACC = 136
    WF = 88
    ONES = 40
    SQ, SM = 48, 60
    vXl, vXu, vXh, vW, vA0, vA1, vH1, vH2 = 120, 121, 122, 123, 124, 125, 126, 127
    vRe, vRo, vHe, vHo = 128, 129, 130, 131
    vT = 237
    BP, BC, BPA = 240, 244, 248
    s_rb, s_head, s_t0, s_m0w, s_m0x, s_tmp = 48, 49, 50, 51, 52, 53
    s_hm = 54
    s_m0h = 7
    s_hv = S_HV
    s_o0, s_o1 = 62, 63

    def hook(name):
        if name in hooks:
            hooks[name]()

    def xreg(j, blk):
        return XR + (j % 2) * 12 + blk * 4

    def acc(blk, nbi):
        return ACC + blk * 24 + nbi * 4
    H1, H2 = ACC + 48, ACC + 52

    k.c('---- phase A setup')
    k('s_bfe_u32 s%d, s2, 0x20001' % s_rb)
    k('s_lshl_b32 s%d, s%d, 2' % (s_rb, s_rb))
    k('s_lshr_b32 s%d, s2, 6' % s_tmp)
    k('s_add_u32 s%d, s%d, s%d' % (s_rb, s_rb, s_tmp))
    k('s_bfe_u32 s%d, s2, 0x30003' % s_head)
    k('s_and_b32 s%d, s2, 1' % s_tmp)
    k('s_lshl_b32 s%d, s%d, 3' % (s_tmp, s_tmp))
    k('s_add_u32 s%d, s%d, s%d' % (s_head, s_head, s_tmp))
    k('v_lshrrev_b32 v%d, 2, v1' % vT)
    k('v_mul_u32_u24 v%d, 2688, v%d' % (vW, vT))
    k('v_lshrrev_b32 v%d, 5, v1' % vT)
    k('v_lshlrev_b32 v%d, 1, v%d' % (vT, vT))
    k('v_and_b32 v%d, 3, v1' % (vT + 1))
    k('v_xor_b32 v%d, v%d, v%d' % (vT, vT, vT + 1))
    k('v_lshl_add_u32 v%d, v%d, 4, v%d' % (vW, vT, vW))
    k('s_mul_i32 s%d, s%d, 56' % (s_tmp, s_head))
    k('s_min_u32 s%d, s%d, 832' % (s_tmp, s_tmp))
    k('s_mul_i32 s%d, s3, %d' % (s_m0w, 16 * 2688))
    k('s_add_u32 s%d, s%d, s%d' % (s_tmp, s_tmp, s_m0w))
    k('v_add_u32 v%d, s%d, v%d' % (vW, s_tmp, vW))
    k('s_lshr_b32 s%d, s3, 1' % s_tmp)
    k('s_mul_i32 s%d, s%d, 6144' % (s_m0w, s_tmp))
    k('s_and_b32 s%d, s3, 1' % s_tmp)
    k('s_lshl_b32 s%d, s%d, 10' % (s_tmp, s_tmp))
    k('s_add_u32 s%d, s%d, s%d' % (s_m0w, s_m0w, s_tmp))
    k('v_lshrrev_b32 v%d, 3, v1' % vT)
    k('v_mul_u32_u24 v%d, 896, v%d' % (vXh, vT))
    k('v_and_b32 v%d, 7, v1' % vT)
    k('v_xor_b32 v%d, v%d, v3' % (vT, vT))
    k('v_lshl_add_u32 v%d, v%d, 4, v%d' % (vXl, vT, vXh))
    k('s_lshl_b32 s%d, s%d, 7' % (s_t0, s_rb))
    k('s_lshl_b32 s%d, s3, 5' % s_tmp)
    k('s_add_u32 s%d, s%d, s%d' % (s_tmp, s_tmp, s_t0))
    k('s_mul_i32 s%d, s%d, 896' % (s_tmp, s_tmp))
    k('v_xor_b32 v%d, 64, v%d' % (vXu, vXl))
    k('v_add_u32 v%d, s%d, v%d' % (vXl, s_tmp, vXl))
    k('s_add_u32 s%d, s%d, %d' % (s_tmp, s_tmp, 8 * 896))
    k('v_add_u32 v%d, s%d, v%d' % (vXu, s_tmp, vXu))
    k('s_lshl_b32 s%d, s3, 1' % s_tmp)
    k('v_xor_b32 v%d, s%d, v%d' % (vT, s_tmp, vT))
    k('v_lshl_add_u32 v%d, v%d, 4, v%d' % (vXh, vT, vXh))
    k('s_lshl_b32 s%d, s3, 2' % s_tmp)
    k('s_add_u32 s%d, s%d, s%d' % (s_tmp, s_tmp, s_t0))
    k('s_sub_u32 s%d, s%d, 16' % (s_tmp, s_tmp))
    k('s_mul_i32 s%d, s%d, 896' % (s_tmp, s_tmp))
    k('s_cmp_eq_u32 s%d, 0' % s_rb)
    k('s_cselect_b32 s%d, 0x%x, s%d' % (s_tmp, OOB, s_tmp))
    k('v_add_u32 v%d, s%d, v%d' % (vXh, s_tmp, vXh))
    k('s_lshl_b32 s%d, s3, 12' % s_m0x)
    k('s_add_u32 s%d, s%d, %d' % (s_m0x, s_m0x, A_LDS_X + 2048))
    k('s_lshl_b32 s%d, s3, 9' % s_m0h)
    k('s_cmp_eq_u32 s3, 0')
    k('s_cselect_b32 s%d, 0xffffff00, -1' % s_hm)
    k('s_mov_b32 s%d, 0' % (s_hm + 1))

    def dma_group(grp, bg=False):
        tag = 'G%d' % grp
        sd = B.s_dma

        def w_(p):
            k('s_add_u32 m0, s%d, %d' % (s_m0w, A_LDS_W + (grp % 4) * 12288 + p * 2048))
            k('s_mov_b32 s%d, %d' % (sd, grp * 64 * 2688 + p * 896))
            k('buffer_load_dwordx4 v%d, %s, s%d offen lds' % (vW, srd(SRD_WQKV), sd), tag=tag)

        def x_(i):
            k('s_add_u32 m0, s%d, %d' % (s_m0x, xslot(grp) + i * 1024))
            k('s_mov_b32 s%d, %d' % (sd, grp * 128 + (i >> 1) * 16 * 896))
            k('buffer_load_dwordx4 v%d, %s, s%d offen lds' % (vXu if i & 1 else vXl, srd(SRD_X), sd), tag=tag)

        def h_():
            k('s_add_u32 m0, s%d, %d' % (s_m0h, A_LDS_X + xslot(grp)))
            k('s_mov_b32 s%d, %d' % (sd, grp * 128))
            k('s_mov_b64 exec, %s' % sr(s_hm, 2))
            k('buffer_load_dwordx4 v%d, %s, s%d offen lds' % (vXh, srd(SRD_X), sd), tag=tag)
            k('s_mov_b64 exec, -1')
        fs = [lambda p=p: w_(p) for p in range(3)] + [lambda i=i: x_(i) for i in range(4)] + [h_]
        for f in fs:
            if bg:
                k.bg_push(f)
            else:
                f()

    def warm():
        k('s_bfe_u32 s%d, s2, 0x30003' % s_tmp)
        k('s_add_u32 s%d, s%d, 1' % (S_T, s_tmp))
        k('s_lshr_b32 s%d, s%d, 1' % (S_T, S_T))
        k('s_lshr_b32 s%d, s2, 6' % (S_T + 1))
        k('s_mul_i32 s%d, s%d, 5' % (S_T + 1, S_T + 1))
        k('s_add_u32 s%d, s%d, s%d' % (S_T, S_T, S_T + 1))
        k('s_lshl_b32 s%d, s%d, 2' % (S_T, S_T))
        k('s_add_u32 s%d, s%d, s3' % (s_tmp, S_T))
        k('s_mov_b32 s%d, s%d' % (S_WR, s_tmp))
        k('s_mov_b32 s%d, 0x2a54' % S_T)
        k('s_bitcmp1_b32 s%d, s%d' % (S_T, s_head))
        k('s_cselect_b32 s%d, 0x%x, %s' % (s_hv, OOB, '0' if WARM0 else '0x%x' % OOB))
        NL = -(-(448 - WROW) * 12 // 80)
        k('s_mul_i32 s%d, s%d, %d' % (S_T, s_tmp, NL))
        for rep in range(2 if NL > 64 else 1):
            k('v_add_u32 v%d, s%d, v1' % (vT, S_T))
            if rep:
                k('v_add_u32 v%d, 64, v%d' % (vT, vT))
            k('v_mul_u32_u24 v%d, 43691, v%d' % (vT + 1, vT))
            k('v_lshrrev_b32 v%d, 19, v%d' % (vT + 1, vT + 1))
            k('v_mul_u32_u24 v%d, 12, v%d' % (vT + 2, vT + 1))
            k('v_sub_u32 v%d, v%d, v%d' % (vT + 2, vT, vT + 2))
            k('v_lshrrev_b32 v%d, 2, v%d' % (vT + 2, vT + 2))
            k('v_mul_u32_u24 v%d, 896, v%d' % (vT + 2, vT + 2))
            k('v_mul_u32_u24 v%d, 2688, v%d' % (vT + 1, vT + 1))
            k('v_and_b32 v%d, 3, v%d' % (vT, vT))
            k('v_lshlrev_b32 v%d, 7, v%d' % (vT, vT))
            k('v_add3_u32 v%d, v%d, v%d, v%d' % (vT, vT, vT + 1, vT + 2))
            k('v_add_u32 v%d, s%d, v%d' % (vT, s_hv, vT))
            k('s_and_b32 s%d, s2, 1' % (S_T + 1))
            k('s_mul_i32 s%d, s%d, 384' % (S_T + 1, S_T + 1))
            k('s_add_u32 s%d, s%d, %d' % (S_T + 1, S_T + 1, WROW * 2688))
            nl = min(NL - 64 * rep, 64)
            m = (1 << nl) - 1
            k('s_mov_b32 exec_lo, 0x%x' % (m & 0xffffffff))
            k('s_mov_b32 exec_hi, 0x%x' % (m >> 32))
            k('buffer_load_dword v%d, v%d, %s, s%d offen' % (232 - rep, vT, srd(SRD_WQKV), S_T + 1))
            k('s_mov_b64 exec, -1')
        k('v_lshlrev_b32 v%d, 7, v1' % vT)
        k('v_add_u32 v%d, s%d, v%d' % (vT + 1, s_hv, vT))
        k('s_mul_i32 s%d, s%d, %d' % (S_T, s_tmp, 47 * 128))
        k('s_bfe_u32 s%d, s2, 0x20001' % (S_T + 1))
        k('s_mul_i32 s%d, s%d, %d' % (S_T + 1, S_T + 1, 512 * 896))
        k('s_add_u32 s%d, s%d, s%d' % (S_T, S_T, S_T + 1))
        k('s_max_u32 s%d, s%d, %d' % (S_T, S_T, 16 * 896))
        k('s_sub_u32 s%d, s%d, %d' % (S_T, S_T, 16 * 896))
        k('s_mov_b32 exec_hi, 0x7fff')
        k('buffer_load_dword v233, v%d, %s, s%d offen' % (vT + 1, srd(SRD_X), S_T))
        k('s_getpc_b64 %s' % sr(S_T, 2))
        k.raw('Lpc_%s:' % k.name)
        k('s_mul_i32 s%d, s%d, 384' % (s_tmp, s_tmp))
        k('v_add_u32 v%d, s%d, v%d' % (vT, s_tmp, vT))
        k('v_min_u32 v%d, %s-Lpc_%s, v%d' % (vT, k.end_label, k.name, vT))
        k('s_mov_b64 exec, 7')
        k('global_load_dword v236, v%d, %s' % (vT, sr(S_T, 2)))
        k('s_mov_b64 exec, -1')

    hook('A_pre')
    pre, post = START_ORDER.split('|')
    for ch in pre:
        warm() if ch == 'w' else dma_group(int(ch))
    k('v_mul_u32_u24 v%d, 18432, v3' % vT)
    k('v_lshl_add_u32 v%d, v2, 3, v%d' % (vT, vT))
    k('v_mov_b32 v%d, s%d' % (vT + 1, S_ONES))
    k('v_add_u32 v%d, %d, v%d' % (vT, A_LDS_X, vT))
    k('ds_write2_b32 v%d, v%d, v%d offset0:0 offset1:1' % (vT, vT + 1, vT + 1))
    hook('A_after_issue')

    k('v_lshlrev_b32 v%d, 9, v3' % vA0)
    k('v_bfe_u32 v%d, v1, 2, 2' % vT)
    k('v_lshl_add_u32 v%d, v%d, 6, v%d' % (vA0, vT, vA0))
    k('v_and_b32 v%d, 3, v1' % vT)
    k('v_lshl_add_u32 v%d, v%d, 3, v%d' % (vA0, vT, vA0))
    k('v_and_b32 v%d, 1, v3' % vT)
    k('v_lshlrev_b32 v%d, 5, v%d' % (vT, vT))
    k('v_add_u32 v%d, v%d, v%d' % (vA0, vA0, vT))
    k('v_add_u32 v%d, %d, v%d' % (vA0, A_LDS_W, vA0))
    k('v_xor_b32 v%d, 32, v%d' % (vA1, vA0))
    k('s_and_b32 s%d, s3, 1' % s_tmp)
    k('s_lshl_b32 s%d, s%d, 5' % (s_tmp, s_tmp))
    k('v_xor_b32 v%d, s%d, v%d' % (vH2, s_tmp, vA0))
    k('s_lshr_b32 s%d, s3, 1' % s_tmp)
    k('s_lshl_b32 s%d, s%d, 11' % (s_tmp, s_tmp))
    k('s_add_u32 s%d, s%d, 2048' % (s_tmp, s_tmp))
    k('v_add_u32 v%d, s%d, v%d' % (vH1, s_tmp, vH2))
    k('v_lshrrev_b32 v%d, 1, v2' % vT)
    k('v_xor_b32 v%d, v%d, v3' % (vT, vT))
    k('v_lshlrev_b32 v%d, 4, v%d' % (vT, vT))
    k('v_lshl_add_u32 v%d, v2, 7, v%d' % (vT, vT))
    k('v_add_u32 v%d, %d, v%d' % (vHe, A_LDS_X, vT))
    k('v_xor_b32 v%d, 64, v%d' % (vHo, vHe))
    k('v_add_u32 v%d, s%d, v%d' % (vRe, s_m0x, vT))
    k('v_xor_b32 v%d, 64, v%d' % (vRo, vRe))
    k('v_lshlrev_b32 v%d, 2, v3' % vT)
    k('v_sub_u32 v%d, v2, v%d' % (vT, vT))
    k('v_mov_b32 v%d, %s' % (vT + 2, f32(-1e30)))
    for which, base in ((16, BP), (0, BC)):
        for r in range(4):
            k('v_add_u32 v%d, %d, v%d' % (vT + 1, which - r, vT))
            k('v_and_b32 v%d, 0xfffffff1, v%d' % (vT + 1, vT + 1))
            k('v_cmp_eq_u32 vcc, 0, v%d' % (vT + 1))
            k('v_cndmask_b32 v%d, v%d, 0, vcc' % (base + r, vT + 2))
    k('s_or_b32 s%d, s%d, s3' % (s_tmp, s_rb))
    k('s_cmp_eq_u32 s%d, 0' % s_tmp)
    k('s_cselect_b64 vcc, -1, 0')
    for r in range(4):
        k('v_cndmask_b32 v%d, v%d, v%d, vcc' % (BPA + r, BP + r, vT + 2))
    for i in range(4):
        k('v_mov_b32 v%d, s%d' % (ONES + i, S_ONES))

    s_m = 88
    for i, mk in enumerate((0x22222222, 0x44444444, 0x88888888)):
        k('s_mov_b32 s%d, 0x%x' % (s_m + 2 * i, mk))
        k('s_mov_b32 s%d, 0x%x' % (s_m + 2 * i + 1, mk))
    vAd = 72
    k('v_lshlrev_b32 v%d, 4, v3' % vAd)
    k('s_lshl_b32 s%d, s3, 6' % s_tmp)
    k('v_add_u32 v%d, s%d, v%d' % (vAd + 1, s_tmp, vAd))
    k('s_and_b32 s%d, s%d, 64' % (s_tmp, s_tmp))
    k('v_add_u32 v%d, s%d, v%d' % (vAd + 2, s_tmp, vAd))
    k('s_mul_i32 s%d, s3, 384' % s_tmp)
    k('v_lshl_add_u32 v%d, v2, 2, s%d' % (vAd + 3, s_tmp))
    k('v_add_u32 v%d, s%d, v%d' % (vAd + 4, s_tmp, vAd))
    vK, vV = 80, 81
    k('s_and_b32 s%d, s3, 1' % s_tmp)
    k('s_lshl_b32 s%d, s%d, 3' % (s_tmp, s_tmp))
    k('v_add_u32 v%d, s%d, v4' % (vK, s_tmp))
    k('v_lshrrev_b32 v%d, 2, v2' % vV)
    k('v_lshlrev_b32 v%d, 8, v%d' % (vV, vV))
    k('v_lshl_add_u32 v%d, v3, 6, v%d' % (vV, vV))
    k('v_and_b32 v%d, 3, v2' % (vV + 1))
    k('v_lshl_add_u32 v%d, v%d, 1, v%d' % (vV, vV + 1, vV))
    k('v_add_u32 v%d, s%d, v%d' % (vV, s_tmp, vV))
    k('v_add_u32 v%d, 1024, v%d' % (vV, vV))
    k('s_cmp_lt_u32 s3, 2')
    k('s_cselect_b64 vcc, -1, 0')
    k('s_cselect_b32 s%d, 2, 16' % s_tmp)
    k('v_cndmask_b32 v%d, v%d, v%d, vcc' % (vK, vV, vK))
    k('v_add_u32 v%d, s%d, v%d' % (vK + 1, s_tmp, vK))
    k('v_add_u32 v%d, s%d, v%d' % (vK + 2, s_tmp, vK + 1))
    k('v_add_u32 v%d, s%d, v%d' % (vK + 3, s_tmp, vK + 2))
    k('v_lshlrev_b32 v%d, 2, v2' % (vAd + 5))
    k('s_lshl_b32 s%d, s3, 11' % s_tmp)
    k('v_add_u32 v%d, s%d, v4' % (vAd + 6, s_tmp))

    k('s_lshl_b32 s%d, s%d, 3' % (s_o0, s_rb))
    k('s_lshl_b32 s%d, s3, 1' % s_o1)
    k('s_add_u32 s%d, s%d, s%d' % (s_o0, s_o0, s_o1))
    k('s_lshl_b32 s%d, s%d, 4' % (s_o0, s_o0))
    k('s_add_u32 s%d, s%d, s%d' % (s_o0, s_o0, s_head))
    k('s_lshl_b32 s%d, s%d, 10' % (s_o0, s_o0))
    if OF_OFF:
        k('s_add_u32 s%d, s%d, 0x%x' % (s_o0, s_o0, OF_OFF))
    k('s_add_u32 s%d, s%d, 16384' % (s_o1, s_o0))

    frag_addr = [(vA0, 0), (vA1, 0), (vA0, 2048), (vA1, 2048), (vA0, 4096), (vA1, 4096), (vH1, 0), (vH2, 0)]

    def read_frag(f, j, h=None):
        va, off = frag_addr[f]
        o = (j % 8) * 6144 + off
        for hh in ((0, 1) if h is None else (h,)):
            k('ds_read_b64_tr_b16 %s, v%d offset:%d' % (vr(WF + 4 * f + 2 * hh, 2), va, o + 256 * hh))

    def read_x(j, blk=None):
        o = xslot(j // 2)
        for b_ in (range(3) if blk is None else (blk,)):
            if b_ < 2:
                k('ds_read_b128 %s, v%d offset:%d' % (vr(xreg(j, b_), 4), vRo if j & 1 else vRe, o + 2048 * b_))
            else:
                k('ds_read_b128 %s, v%d offset:%d' % (vr(xreg(j, 2), 4), vHo if j & 1 else vHe, o))

    for ch in post:
        warm() if ch == 'w' else dma_group(int(ch))
    T = XR
    RR = 132
    RH = 84
    HC = 224
    pre_ops = []

    def rr(blk):
        return RR + 2 * blk if blk < 2 else RH

    def cs_write():
        k('s_mov_b32 exec_lo, 0x00010001')
        k('s_mov_b32 exec_hi, 0x00010001')
        k('ds_write_b128 v%d, %s offset:%d' % (vAd + 1, vr(H1, 4), A_LDS_CS + 128))
        k('ds_write_b128 v%d, %s offset:%d' % (vAd + 2, vr(H2, 4), A_LDS_CS))
        k('s_mov_b64 exec, -1')

    def st_write():
        k('s_mov_b32 exec_lo, 0x00f0000f')
        k('s_mov_b32 exec_hi, 0xf0000f00')
        for blk in range(3):
            k('ds_write2_b32 v%d, v%d, v%d offset0:%d offset1:%d' % (vAd + 3, rr(blk), rr(blk) + 1,
                                                                   A_LDS_ST // 4 + 32 * blk, A_LDS_ST // 4 + 32 * blk + 16))
        k('s_mov_b64 exec, -1')

    def op(txt):
        pre_ops.append(lambda: k(txt))
    for i in range(3):
        for blk in range(3):
            op('v_cndmask_b32 v%d, v%d, v%d, %s' % (SQ + 4 * blk, SQ + 4 * blk, SQ + 4 * blk + 1 + i, sr(s_m + 2 * i, 2)))
    for blk in range(3):
        op('v_mul_f32 v%d, %s, v%d' % (rr(blk) + 1, f32(1.0 / D), SM + 4 * blk))
    for blk in range(3):
        op('v_mul_f32 v%d, v%d, v%d' % (rr(blk), rr(blk) + 1, rr(blk) + 1))
    for blk in range(3):
        op('v_mul_f32 v%d, %s, v%d' % (SQ + 4 * blk, f32(1.0 / D), SQ + 4 * blk))
    pre_ops.append(cs_write)
    for blk in range(3):
        op('v_sub_f32 v%d, v%d, v%d' % (rr(blk), SQ + 4 * blk, rr(blk)))
    for blk in range(3):
        op('v_max_f32 v%d, 0, v%d' % (rr(blk), rr(blk)))
    for blk in range(3):
        op('v_add_f32 v%d, %s, v%d' % (rr(blk), f32(1e-5), rr(blk)))
    for blk in range(3):
        op('v_rsq_f32 v%d, v%d' % (rr(blk), rr(blk)))
    pre_ops.append(st_write)
    for r in range(4):
        op('v_mov_b32_dpp v%d, v%d row_newbcast:0 row_mask:0xf bank_mask:0xf' % (HC + r, H1 + r))
    for r in range(4):
        op('v_fma_f32 v%d, -v%d, v%d, v%d' % (HC + r, HC + r, RH + 1, H1 + r))

    def keep_masks():
        k('s_cmp_eq_u32 s%d, 15' % s_head)
        k('s_cselect_b32 s%d, 0xffff0000, -1' % s_m)
        k('s_mov_b32 s%d, -1' % (s_m + 1))
        k('s_mov_b32 s%d, -1' % (s_m + 2))
        k('s_cselect_b32 s%d, -1, 0xffff' % (s_m + 3))
    pre_ops.append(keep_masks)

    stamp(k, 1)
    k.wait_tag('G0')
    k.wait_lg(0)
    k.barrier()
    stamp(k, 2)
    read_x(0)
    for f in range(8):
        read_frag(f, 0)
    dma_group(2, bg=True)
    k.lg_slack = 6
    for j in range(14):
        k.c('kstep %d' % j)
        if j + 1 < 14 and (j + 1) % 2 == 0:
            k.bg_flush()
            k.wait_tag('G%d' % ((j + 1) // 2))
            k.barrier()
            if (j + 5) // 2 < 7:
                dma_group((j + 5) // 2, bg=True)
            hook('A_b%d' % j)
        mf = []
        for f in range(8):
            w = vr(WF + 4 * f, 4)
            if f < 6:
                for blk in range(2):
                    a = vr(acc(blk, f), 4)
                    x = vr(xreg(j, blk), 4)
                    c = '0' if j == 0 else a
                    if f < 4:
                        mf.append(('v_mfma_f32_16x16x32_bf16 %s, %s, %s, %s' % (a, w, x, c), f if blk else -1))
                    else:
                        mf.append(('v_mfma_f32_16x16x32_bf16 %s, %s, %s, %s' % (a, x, w, c), f if blk else -1))
            else:
                a = vr(H1 if f == 6 else H2, 4)
                c = '0' if j == 0 else a
                mf.append(('v_mfma_f32_16x16x32_bf16 %s, %s, %s, %s' % (a, w, vr(xreg(j, 2), 4), c), f))
        for f in range(EXP_NSTAT):
            x = vr(xreg(j, f % 3), 4)
            a = vr((SQ if f < 3 else SM) + 4 * (f % 3), 4)
            mf.append(('v_mfma_f32_16x16x32_bf16 %s, %s, %s, %s' % (a, x if f < 3 else vr(ONES, 4), x, '0' if j == 0 else a), -1))
        fill = []
        if j + 1 < 14:
            fill += [lambda i=i: read_x(j + 1, i) for i in range(3)]
        if j == 13:
            mf = mf[14:] + mf[12:14] + mf[4:12] + mf[0:4]
        for i, (txt, done) in enumerate(mf):
            k(txt)
            if j == 13 and i >= 8:
                for f_ in pre_ops[:3]:
                    f_()
                del pre_ops[:3]
            if done >= 0 and j + 1 < 14 and done < EXP_NFRAG:
                fill += [lambda f=done, h=h: read_frag(f, j + 1, h) for h in range(2)]
            if fill:
                fill.pop(0)()
            if i % 5 == 4:
                k.bg()
        for f_ in fill:
            f_()
        if j == 6:
            stamp(k, 3)

        hook('A_k%d' % j)

    k.lg_slack = 0
    k.c('---- phase A epilogue')
    stamp(k, 4)
    for f_ in pre_ops:
        f_()
    k.wait_lg(0)
    k.barrier()
    stamp(k, 40)
    hook('A_e1')
    CS = T + 32
    CSV = T + 48
    L2 = T + 16
    for blk in (1, 2, 0):
        k('ds_read_b32 v%d, v%d offset:%d' % (rr(blk), vAd + 3, A_LDS_ST + 128 * blk))
    for s_ in (2, 3):
        k('ds_read_b128 %s, v%d offset:%d' % (vr(CS + 4 * s_, 4), vAd, A_LDS_CS + 64 * s_))
    k('ds_read_b32 v%d, v%d offset:%d' % (CSV, vAd + 5, A_LDS_CS + 256))
    k('ds_read_b32 v%d, v%d offset:%d' % (CSV + 1, vAd + 5, A_LDS_CS + 320))
    for blk in (1, 0):
        k('ds_read_b128 %s, v%d offset:%d' % (vr(L2 + 8 * blk + 4, 4), vAd + 4, A_LDS_ST + blk * 128 + 64))
        k('ds_read_b128 %s, v%d offset:%d' % (vr(L2 + 8 * blk, 4), vAd + 4, A_LDS_ST + blk * 128))
    for s_ in (0, 1):
        k('ds_read_b128 %s, v%d offset:%d' % (vr(CS + 4 * s_, 4), vAd, A_LDS_CS + 64 * s_))
    RQ = T + 52
    qs = (DH ** -0.5) * 1.4426950408889634
    QT = T + 72
    KT = T + 80
    VV = T + 92

    def fix_qk(blk, nbi, scale_reg, dst):
        a = acc(blk, nbi)
        hi = scale_reg & 1
        for r in (0, 2):
            k('v_pk_fma_f32 %s, %s, %s, %s op_sel:[0,1,0] op_sel_hi:[1,1,1] neg_lo:[0,1,0] neg_hi:[0,1,0]' % (
                vr(a + r, 2), vr(CS + 4 * nbi + r, 2), vr(RR + 2 * blk, 2), vr(a + r, 2)))
        for r in (0, 2):
            k('v_pk_mul_f32 %s, %s, %s op_sel:[0,%d] op_sel_hi:[1,%d]' % (vr(a + r, 2), vr(a + r, 2), vr(scale_reg - hi, 2), hi, hi))
        k('v_cvt_pk_bf16_f32 v%d, v%d, v%d' % (dst, a, a + 1))
        k('v_cvt_pk_bf16_f32 v%d, v%d, v%d' % (dst + 1, a + 2, a + 3))
        k.bg()

    def fix_v(blk, nb):
        a = acc(blk, 4 + nb)
        for r in (0, 2):
            k('v_pk_fma_f32 %s, %s, %s, %s op_sel:[0,%d,0] op_sel_hi:[1,%d,1] neg_lo:[0,1,0] neg_hi:[0,1,0]' % (
                vr(a + r, 2), vr(L2 + 8 * blk + 4 + r, 2), vr(CSV, 2), vr(a + r, 2), nb, nb))
        for r in (0, 2):
            k('v_pk_mul_f32 %s, %s, %s' % (vr(a + r, 2), vr(a + r, 2), vr(L2 + 8 * blk + r, 2)))
        dst = VV + 6 * nb + 2 + 2 * blk
        k('v_cvt_pk_bf16_f32 v%d, v%d, v%d' % (dst, a, a + 1))
        k('v_cvt_pk_bf16_f32 v%d, v%d, v%d' % (dst + 1, a + 2, a + 3))
        k.bg()

    fix_qk(1, 2, RR + 2, KT + 8)
    fix_qk(1, 3, RR + 2, KT + 10)
    k('ds_write_b128 v%d, %s offset:%d' % (vAd + 6, vr(KT + 8, 4), A_LDS_KV + 2048))
    for r in (0, 2):
        k('v_pk_mul_f32 %s, %s, %s op_sel_hi:[1,0]' % (vr(HC + r, 2), vr(HC + r, 2), vr(RH, 2)))
    k('v_cvt_pk_bf16_f32 v%d, v%d, v%d' % (HC, HC, HC + 1))
    k('v_cvt_pk_bf16_f32 v%d, v%d, v%d' % (HC + 2, HC + 2, HC + 3))
    k('ds_write_b16 v%d, v%d offset:%d' % (vK, HC, A_LDS_KV))
    k('ds_write_b16_d16_hi v%d, v%d offset:%d' % (vK + 1, HC, A_LDS_KV))
    k('ds_write_b16 v%d, v%d offset:%d' % (vK + 2, HC + 2, A_LDS_KV))
    k('ds_write_b16_d16_hi v%d, v%d offset:%d' % (vK + 3, HC + 2, A_LDS_KV))
    fix_v(1, 0)
    fix_v(1, 1)
    k('ds_write_b64 v%d, %s offset:%d' % (vAd + 6, vr(VV + 4, 2), A_LDS_KV + 2048 + 1024))
    k('ds_write_b64 v%d, %s offset:%d' % (vAd + 6, vr(VV + 10, 2), A_LDS_KV + 2048 + 1024 + 8))
    for blk in range(2):
        k('v_mul_f32 v%d, %s, v%d' % (RQ + 2 * blk, f32(qs), RR + 2 * blk))
    for blk in range(2):
        k('v_cndmask_b32 v%d, 0, v%d, %s' % (RQ + 2 * blk + 1, RQ + 2 * blk, sr(s_m + 2, 2)))
        k('v_cndmask_b32 v%d, 0, v%d, %s' % (RQ + 2 * blk, RQ + 2 * blk, sr(s_m, 2)))
    fix_qk(0, 2, RR + 0, KT + 4)
    fix_qk(0, 3, RR + 0, KT + 6)
    k.wait_lg(0)
    k.barrier()
    stamp(k, 41)
    k('ds_read_b128 %s, v%d offset:%d' % (vr(KT, 4), vAd + 6, A_LDS_KV))
    k('ds_read_b64 %s, v%d offset:%d' % (vr(VV, 2), vAd + 6, A_LDS_KV + 1024))
    k('ds_read_b64 %s, v%d offset:%d' % (vr(VV + 6, 2), vAd + 6, A_LDS_KV + 1024 + 8))
    fix_qk(1, 0, RQ + 2, QT + 4)
    fix_qk(1, 1, RQ + 3, QT + 6)
    SS = T
    k('v_mfma_f32_16x16x32_bf16 %s, %s, %s, %s' % (vr(SS + 8, 4), vr(KT + 4, 4), vr(QT + 4, 4), vr(BP, 4)))
    k('v_mfma_f32_16x16x32_bf16 %s, %s, %s, %s' % (vr(SS + 12, 4), vr(KT + 8, 4), vr(QT + 4, 4), vr(BC, 4)))
    fix_qk(0, 0, RQ + 0, QT + 0)
    fix_qk(0, 1, RQ + 1, QT + 2)
    k('v_mfma_f32_16x16x32_bf16 %s, %s, %s, %s' % (vr(SS + 0, 4), vr(KT + 0, 4), vr(QT, 4), vr(BPA, 4)))
    k('v_mfma_f32_16x16x32_bf16 %s, %s, %s, %s' % (vr(SS + 4, 4), vr(KT + 4, 4), vr(QT, 4), vr(BC, 4)))
    fix_v(0, 0)
    fix_v(0, 1)
    MX = ACC
    TM = ACC + 2
    for blk in (1, 0):
        s_ = SS + 8 * blk
        k('v_max3_f32 v%d, v%d, v%d, v%d' % (MX + blk, s_, s_ + 1, s_ + 2))
        k('v_max3_f32 v%d, v%d, v%d, v%d' % (TM + blk, s_ + 3, s_ + 4, s_ + 5))
        k('v_max3_f32 v%d, v%d, v%d, v%d' % (MX + blk, MX + blk, s_ + 6, s_ + 7))
        k('v_max_f32 v%d, v%d, v%d' % (MX + blk, MX + blk, TM + blk))
    k.bg()
    xgroup_reduce(k, [MX, MX + 1], [TM, TM + 1], op='v_max_f32')
    k.bg_flush()
    stamp(k, 9)
    SUM = ACC + 4
    PP = ACC + 8
    OO = ACC + 16
    for blk in (1, 0):
        s_ = SS + 8 * blk
        for i in range(0, 8, 2):
            k('v_pk_add_f32 %s, %s, %s op_sel:[0,%d] op_sel_hi:[1,%d] neg_lo:[0,1] neg_hi:[0,1]' % (vr(s_ + i, 2), vr(s_ + i, 2), vr(MX, 2), blk, blk))
        for i in range(8):
            k('v_exp_f32 v%d, v%d' % (s_ + i, s_ + i))
        for i in range(4):
            k('v_cvt_pk_bf16_f32 v%d, v%d, v%d' % (PP + 4 * blk + i, s_ + 2 * i, s_ + 2 * i + 1))
        for nb in range(2):
            k('v_mfma_f32_16x16x32_bf16 %s, %s, %s, 0' % (vr(OO + 8 * blk + 4 * nb, 4), vr(VV + 6 * nb + 2 * blk, 4),
                                                          vr(PP + 4 * blk, 4)))
    for blk in range(2):
        s_ = SS + 8 * blk
        k('v_pk_add_f32 %s, %s, %s' % (vr(s_, 2), vr(s_, 2), vr(s_ + 2, 2)))
        k('v_pk_add_f32 %s, %s, %s' % (vr(s_ + 4, 2), vr(s_ + 4, 2), vr(s_ + 6, 2)))
    for blk in range(2):
        s_ = SS + 8 * blk
        k('v_pk_add_f32 %s, %s, %s' % (vr(s_, 2), vr(s_, 2), vr(s_ + 4, 2)))
    for blk in range(2):
        s_ = SS + 8 * blk
        k('v_add_f32 v%d, v%d, v%d' % (SUM + 2 * blk, s_, s_ + 1))
    xgroup_reduce(k, [SUM, SUM + 2], [TM, TM + 1])
    for blk in range(2):
        k('v_rcp_f32 v%d, v%d' % (SUM + 2 * blk, SUM + 2 * blk))
    for blk in range(2):
        k('v_cndmask_b32 v%d, 0, v%d, %s' % (SUM + 2 * blk + 1, SUM + 2 * blk, sr(s_m + 2, 2)))
        k('v_cndmask_b32 v%d, 0, v%d, %s' % (SUM + 2 * blk, SUM + 2 * blk, sr(s_m, 2)))
    for blk in range(2):
        o = OO + 8 * blk
        for r in (0, 2):
            k('v_pk_mul_f32 %s, %s, %s op_sel_hi:[1,0]' % (vr(o + r, 2), vr(o + r, 2), vr(SUM + 2 * blk, 2)))
        for r in (0, 2):
            k('v_pk_mul_f32 %s, %s, %s op_sel:[0,1] op_sel_hi:[1,1]' % (vr(o + 4 + r, 2), vr(o + 4 + r, 2), vr(SUM + 2 * blk, 2)))
        p = PP + 4 * blk
        for i in range(4):
            k('v_cvt_pk_bf16_f32 v%d, v%d, v%d' % (p + i, o + 2 * i, o + 2 * i + 1))
        k('buffer_store_dwordx4 %s, v4, %s, s%d offen %s' % (vr(p, 4), srd(SRD_WS), s_o0 if blk == 0 else s_o1, sc1), tag='ost')


STAMP_OFF = 0xA00000


DST = {5: 1, 10: 2, 15: 3, 16: 4, 22: 5, 24: 6, 29: 7}


def dstamp(k, idx, vtmp=253, stmp=74):
    if idx not in DST and idx != 0:
        return
    slot = DST.get(idx, 0)
    k('s_memrealtime %s' % sr(stmp, 2))
    k('s_cmp_eq_u32 s2, 131')
    k('s_cselect_b32 s%d, %d, %s' % (stmp + 4, 32 + 4 * slot, '0x%x' % OOB))
    if slot:
        k('s_cmp_eq_u32 s2, 0')
        k('s_cselect_b32 s%d, %d, s%d' % (stmp + 4, 4 * slot, stmp + 4))
    k('v_mov_b32 v%d, s%d' % (vtmp + 2, stmp + 4))
    k('v_mov_b32 v%d, s%d' % (vtmp, stmp))
    k('s_cmp_eq_u32 s3, 0')
    k('s_cselect_b64 exec, 1, 0')
    k('buffer_store_dword v%d, v%d, %s, 0 offen' % (vtmp, vtmp + 2, srd(SRD_DBG)))
    k('s_mov_b64 exec, -1')


def stamp(k, idx, vtmp=253, stmp=74):
    if getattr(k, 'stamps', False) == 'jit':
        L = k.newlabel('Ljit')
        k('s_lshl_b32 s74, s2, 2')
        k('s_add_u32 s74, s74, s3')
        k('s_mul_i32 s74, s74, 0x%x' % ((0x9E3779B1 * (idx + 1 + 64 * JIT_SEED)) & 0xffffffff | 1))
        k('s_lshr_b32 s74, s74, 29')
        k('s_cmp_lg_u32 s74, 0')
        k('s_cbranch_scc1 %s' % L)
        hist = [[h[0], h[1]] for h in k.hist]
        k('s_sleep 100')
        k.raw(L + ':')
        k.hist = k.hist + hist
        return
    if idx >= 32 or (STAMP_SET is not None and idx not in STAMP_SET):
        return
    if getattr(k, 'stamps', False) == 'dbg':
        return dstamp(k, idx, vtmp, stmp)
    if not getattr(k, 'stamps', False):
        return
    k('s_memrealtime %s' % sr(stmp, 2))
    k('s_memtime %s' % sr(stmp + 2, 2))
    k('s_lshl_b32 s%d, s2, 2' % (stmp + 4))
    k('s_add_u32 s%d, s%d, s3' % (stmp + 4, stmp + 4))
    k('s_lshl_b32 s%d, s%d, 7' % (stmp + 4, stmp + 4))
    k('s_add_u32 s%d, s%d, 0x%x' % (stmp + 4, stmp + 4, STAMP_OFF + 4 * idx))
    k('v_mov_b32 v%d, s%d' % (vtmp, stmp))
    k('v_mov_b32 v%d, s%d' % (vtmp + 1, stmp + 2))
    k('v_mov_b32 v%d, 0' % (vtmp + 2))
    k('s_mov_b64 exec, 1')
    k('buffer_store_dword v%d, v%d, %s, s%d offen' % (vtmp, vtmp + 2, srd(SRD_WS), stmp + 4))
    k('s_add_u32 s%d, s%d, 0x20000' % (stmp + 4, stmp + 4))
    k('buffer_store_dword v%d, v%d, %s, s%d offen' % (vtmp + 1, vtmp + 2, srd(SRD_WS), stmp + 4))
    k('s_mov_b64 exec, -1')


def spin_guard(k):
    k('s_sub_u32 s%d, s%d, 1' % (S_SPIN, S_SPIN))
    k('s_cbranch_scc1 %s' % k.end_label)


def epoch_publish(k, vt):
    k('s_memrealtime %s' % sr(S_T, 2))
    k('v_mov_b32 v%d, 0' % (vt + 1))
    k('s_or_b32 s%d, s%d, 1' % (S_T, S_T))
    k('v_mov_b32 v%d, s%d' % (vt, S_T))
    k('s_or_b32 s%d, s2, s3' % S_T)
    k('s_cmp_eq_u32 s%d, 0' % S_T)
    k('s_cselect_b64 exec, 1, 0')
    k('buffer_store_dword v%d, v%d, %s, 0 offen sc1' % (vt, vt + 1, srd(SRD_DBG)))
    k('s_mov_b64 exec, -1')


def epoch_load(k, vt):
    k('v_mov_b32 v%d, 0' % (vt + 1))
    k('buffer_load_dword v%d, v%d, %s, 0 offen sc1' % (vt, vt + 1, srd(SRD_DBG)))


def epoch_get(k, vt):
    L = k.newlabel('Lepg')
    done = k.newlabel('Lepd')
    k('v_readfirstlane_b32 s%d, v%d' % (S_EPOCH, vt))
    k('s_cmp_lg_u32 s%d, 0' % S_EPOCH)
    k.branch_fwd('s_cbranch_scc1', done)
    k.loop_label(L)
    spin_guard(k)
    k('buffer_load_dword v%d, v%d, %s, 0 offen sc1' % (vt, vt + 1, srd(SRD_DBG)))
    k.force_wait(vm=0)
    k('v_readfirstlane_b32 s%d, v%d' % (S_EPOCH, vt))
    k('s_cmp_eq_u32 s%d, 0' % S_EPOCH)
    k('s_cbranch_scc1 %s' % L)
    k.label(done)


FLAG_A = FLAG_OFF
FLAG_B = FLAG_OFF + 0x20000
FLAG_C = FLAG_OFF + 0x28000


def flag_store(k, vt, s_off):
    k('v_mov_b32 v%d, s%d' % (vt, S_EPOCH))
    k('s_mov_b64 exec, 1')
    k('buffer_store_dword v%d, v%d, %s, s%d offen sc1' % (vt, vt + 1, srd(SRD_WS), s_off))
    if DBL & 2:
        k('buffer_store_dword v%d, v%d, %s, s%d offen' % (vt, vt + 1, srd(SRD_WS), s_off))
    k('s_mov_b64 exec, -1')


POLL_DEPTH = 3
POLL_GAP = 3
JIT_SEED = 0
ST14 = True
WROW = 128
M2 = True
WARM0 = True
CD2 = True
DBL = 0
STAMP_SET = None
S_WR, S_HV = 56, 57
EXP_NSTAT = 6
EXP_NFRAG = 8
POLL_SLEEP = 0
WO_LATE = False
START_ORDER = '01w|'
AGENT_DEPTH = 2
ST_SLEEP = 0
V_POLL = 249


def flag_poll(k, vt, voff, s_off):
    L = k.newlabel('Lpoll')
    done = k.newlabel('Lpd')
    n = POLL_DEPTH

    def ld(i):
        return k('buffer_load_dword v%d, v%d, %s, s%d offen sc1' % (V_POLL + i, voff, srd(SRD_WS), s_off))
    for i in range(n - 1):
        ld(i)
        k('s_sleep %d' % POLL_GAP)
    k.loop_label(L)
    spin_guard(k)
    last = []
    for i in range(n):
        k.vm = []
        if POLL_SLEEP:
            k('s_sleep %d' % POLL_SLEEP)
        last.append(ld((i + n - 1) % n))
        k._emit(classify('s_waitcnt vmcnt(%d)' % (n - 1)))
        k.vm = []
        k('v_cmp_ne_u32 vcc, s%d, v%d' % (S_EPOCH, V_POLL + i))
        if i < n - 1:
            k('s_cbranch_vccz %s' % done)
        else:
            k('s_cbranch_vccnz %s' % L)
    k.fence()
    k.raw(done + ':')
    k.vm = list(last)


class B:
    s_tmp, s_wbase, s_t2, s_x = 58, 59, 60, 61
    s_dma = 73
    vWo, vR0, vR1 = 208, 209, 210
    ACC = 192
    OFR = 32
    T = 64
    vSw, vSp = 211, 212
    s_sw, s_sp = 90, 62
    HK = 240


def B_setup(k):
    b, g = B, G
    k.c('---- phase B setup')
    t = TMP
    k('v_lshrrev_b32 v%d, 3, v1' % t)
    k('v_mul_u32_u24 v%d, 896, v%d' % (b.vWo, t))
    k('v_and_b32 v%d, 1, v3' % t)
    k('v_lshlrev_b32 v%d, 2, v%d' % (t, t))
    k('v_and_b32 v%d, 7, v1' % (t + 1))
    k('v_xor_b32 v%d, v%d, v%d' % (t, t, t + 1))
    k('v_lshl_add_u32 v%d, v%d, 4, v%d' % (b.vWo, t, b.vWo))
    k('s_lshl_b32 s%d, s%d, 7' % (b.s_tmp, g.s_dtD))
    k('s_mul_i32 s%d, s3, %d' % (b.s_t2, 112 * 896))
    k('s_add_u32 s%d, s%d, s%d' % (b.s_tmp, b.s_tmp, b.s_t2))
    k('v_add_u32 v%d, s%d, v%d' % (b.vWo, b.s_tmp, b.vWo))
    k('s_mul_i32 s%d, s3, %d' % (b.s_wbase, STG_SZ))
    k('s_add_u32 s%d, s%d, %d' % (b.s_wbase, b.s_wbase, LDS_STG))
    k('v_lshrrev_b32 v%d, 5, v1' % t)
    k('v_lshlrev_b32 v%d, 9, v%d' % (b.vR0, t))
    k('v_bfe_u32 v%d, v1, 2, 2' % t)
    k('v_lshl_add_u32 v%d, v%d, 7, v%d' % (b.vR0, t, b.vR0))
    k('v_lshrrev_b32 v%d, 1, v%d' % (t, t))
    k('s_and_b32 s%d, s3, 1' % b.s_tmp)
    k('v_xor_b32 v%d, s%d, v%d' % (t, b.s_tmp, t))
    k('v_lshl_add_u32 v%d, v%d, 6, v%d' % (b.vR0, t, b.vR0))
    k('v_and_b32 v%d, 1, v3' % t)
    k('v_lshl_add_u32 v%d, v%d, 5, v%d' % (b.vR0, t, b.vR0))
    k('v_and_b32 v%d, 3, v1' % t)
    k('v_lshl_add_u32 v%d, v%d, 3, v%d' % (b.vR0, t, b.vR0))
    k('v_add_u32 v%d, %d, v%d' % (b.vR0, LDS_STG, b.vR0))
    k('v_lshrrev_b32 v%d, 5, v1' % t)
    k('v_lshlrev_b32 v%d, 10, v%d' % (t, t))
    k('v_sub_u32 v%d, v%d, v%d' % (b.vR1, b.vR0, t))


def B_wo_dma(k):
    b = B

    def one(i):
        k('s_add_u32 m0, s%d, %d' % (b.s_wbase, i * 1024))
        k('s_mov_b32 s%d, %d' % (b.s_dma, 8 * i * 896))
        k('buffer_load_dwordx4 v%d, %s, s%d offen lds' % (b.vWo, srd(SRD_WO), b.s_dma), tag='wo')
    for i in range(14):
        k.bg_push(lambda i=i: one(i))


def B_wo_read(k, abase):
    b = B
    for h in range(16):
        if h == 8:
            k('v_add_u32 v%d, %d, v%d' % (b.vR0, 2 * STG_SZ, b.vR0))
            k('v_add_u32 v%d, %d, v%d' % (b.vR1, 2 * STG_SZ, b.vR1))
        sh = h == 15 and not M2
        for ks in range(2):
            a = abase + 8 * h + 4 * ks
            o = ((h >> 2) & 1) * STG_SZ + (h & 3) * 3584 + ks * 1024 - (512 if sh else 0)
            k('ds_read_b64_tr_b16 %s, v%d offset:%d' % (ar(a, 2), b.vR0, o))
            k('ds_read_b64_tr_b16 %s, v%d offset:%d' % (ar(a + 2, 2), b.vR1 if ((h & 3) == 3 and ks and not sh) else b.vR0, o + 2048))
            if (2 * h + ks) % 3 != 2:
                k.bg()


def B_xinit(k):
    b, g = B, G
    t = TMP + 2
    k('v_lshrrev_b32 v%d, 5, v1' % t)
    k('v_mul_u32_u24 v%d, %d, v%d' % (t, 4 * 896, t))
    k('v_and_b32 v%d, 31, v1' % (t + 1))
    k('v_lshl_add_u32 v%d, v%d, 1, v%d' % (t, t + 1, t))
    k('s_lshl_b32 s%d, s%d, 1' % (b.s_tmp, g.s_st))
    k('s_lshr_b32 s%d, s3, 1' % b.s_t2)
    k('s_add_u32 s%d, s%d, s%d' % (b.s_tmp, b.s_tmp, b.s_t2))
    k('s_mul_i32 s%d, s%d, %d' % (b.s_tmp, b.s_tmp, 32 * 896))
    k('s_lshl_b32 s%d, s%d, 7' % (b.s_t2, g.s_dtD))
    k('s_add_u32 s%d, s%d, s%d' % (b.s_tmp, b.s_tmp, b.s_t2))
    k('s_and_b32 s%d, s3, 1' % b.s_t2)
    k('s_lshl_b32 s%d, s%d, 6' % (b.s_t2, b.s_t2))
    k('s_add_u32 s%d, s%d, s%d' % (b.s_tmp, b.s_tmp, b.s_t2))
    for q in range(4):
        for r in range(4):
            k('buffer_load_ushort v%d, v%d, %s, s%d offen offset:%d' % (b.ACC + 4 * q + r, t, srd(SRD_X), b.s_tmp, r * 896))
        if q < 3:
            k('s_add_u32 s%d, s%d, %d' % (b.s_tmp, b.s_tmp, 8 * 896))


def B_xinit_finish(k):
    b = B
    for i in range(16):
        k('v_lshlrev_b32 v%d, 16, v%d' % (b.ACC + i, b.ACC + i))


def B_main(k, abase, lds_small, sc1='', hooks=None):
    b, g = B, G
    t = b.T
    k.c('---- phase B main')
    hooks = hooks or {}

    def hook(name):
        if name in hooks:
            hooks[name]()
    k('s_lshl_b32 s%d, s%d, 16' % (b.s_tmp, g.s_st))
    k('s_lshl_b32 s%d, s3, 14' % b.s_t2)
    k('s_add_u32 s%d, s%d, s%d' % (b.s_tmp, b.s_tmp, b.s_t2))
    if OF_OFF:
        k('s_add_u32 s%d, s%d, 0x%x' % (b.s_tmp, b.s_tmp, OF_OFF))
    for i in range(16):
        if i % 4 == 0:
            k('s_add_u32 m0, s%d, %d' % (g.s_stage, i * 1024))
            if i:
                k('s_add_u32 s%d, s%d, 4096' % (b.s_tmp, b.s_tmp))
        k('buffer_load_dwordx4 v4, %s, s%d offen offset:%d %s lds' % (srd(SRD_WS), b.s_tmp, (i % 4) * 1024, sc1), tag='of%d' % (i // 8))
    k('v_and_b32 v%d, 1, v3' % t)
    k('v_mul_u32_u24 v%d, %d, v%d' % (t, STG_SZ, t))
    k('v_lshl_add_u32 v%d, v2, 4, v%d' % (t, t))
    k('v_lshrrev_b32 v%d, 5, v1' % (t + 1))
    k('v_lshl_add_u32 v%d, v%d, 8, v%d' % (t, t + 1, t))
    k('s_lshr_b32 s%d, s3, 1' % b.s_t2)
    k('s_mul_i32 s%d, s%d, %d' % (b.s_t2, b.s_t2, 2 * STG_SZ))
    k('s_add_u32 s%d, s%d, %d' % (b.s_t2, b.s_t2, LDS_STG))
    k('v_add_u32 v%d, s%d, v%d' % (t, b.s_t2, t))
    hook('B_after_of')
    a = vr(b.ACC, 16)

    def rd(i):
        k('ds_read_b128 %s, v%d offset:%d' % (vr(b.OFR + 4 * (i % 8), 4), t, i * 512))
    for half in range(2):
        k.wait_tag('of%d' % half)
        k.barrier()
        if half == 0:
            stamp(k, 11)
        for i in range(16 * half, 16 * half + (6 if half == 0 else 2)):
            rd(i)
        for i in range(16 * half - (4 if half else 0), 16 * half + (12 if half == 0 else 16)):
            k('v_mfma_f32_32x32x16_bf16 %s, %s, %s, %s' % (a, vr(b.OFR + 4 * (i % 8), 4), ar(abase + 4 * i, 4), a))
            if i + 6 < 16 * half + 16 and i + 6 >= 16 * half + (6 if half == 0 else 2):
                rd(i + 6)
            if i % 3 == 0:
                k.bg()
    stamp(k, 12)
    Q = t + 4
    V = t + 20
    A = b.ACC
    for i in range(0, 16, 2):
        k('v_pk_mul_f32 %s, %s, %s' % (vr(Q + i, 2), vr(A + i, 2), vr(A + i, 2)))
    def src(base, q, idx):
        r = ((idx & 1) << 1) | (idx >> 1)
        return base + 4 * q + r
    for base, dst in ((A, V), (Q, V + 8)):
        k.bg()
        for q in range(4):
            for p in range(2):
                x = src(base, q, 2 * p)
                k('v_add_f32_dpp v%d, v%d, v%d row_mirror row_mask:0xf bank_mask:0x3' % (dst + 2 * q + p, x, x))
    for base, dst in ((A, V), (Q, V + 8)):
        k.bg()
        for q in range(4):
            for p in range(2):
                x = src(base, q, 2 * p + 1)
                k('v_add_f32_dpp v%d, v%d, v%d row_mirror row_mask:0xf bank_mask:0xc' % (dst + 2 * q + p, x, x))
    k.bg(2)
    for i in range(8):
        k('v_add_f32_dpp v%d, v%d, v%d row_half_mirror row_mask:0xf bank_mask:0x5' % (V + 2 * i, V + 2 * i, V + 2 * i))
    for i in range(8):
        k('v_add_f32_dpp v%d, v%d, v%d row_half_mirror row_mask:0xf bank_mask:0xa' % (V + 2 * i, V + 2 * i + 1, V + 2 * i + 1))
    for i in range(8):
        k('v_add_f32_dpp v%d, v%d, v%d quad_perm:[1,0,3,2] row_mask:0xf bank_mask:0xf' % (V + 2 * i + 1, V + 2 * i, V + 2 * i))
    U = Q
    k.bg(2)
    for i in range(8):
        k('v_add_f32_dpp v%d, v%d, v%d quad_perm:[2,3,0,1] row_mask:0xf bank_mask:0xf' % (U + i, V + 2 * i + 1, V + 2 * i + 1))
    for kind in range(2):
        for i in range(2):
            k('v_permlane16_swap_b32 v%d, v%d' % (U + 4 * kind + 2 * i, U + 4 * kind + 2 * i + 1))
    W_ = V
    for i in range(2):
        for kind in range(2):
            k('v_add_f32 v%d, v%d, v%d' % (W_ + 2 * i + kind, U + 4 * kind + 2 * i, U + 4 * kind + 2 * i + 1))
    k.bg_flush()
    if ST14:
        vA, vC, vG = b.vSp, t + 2, t + 3
        G_ = V + 4
        k('v_cndmask_b32 v%d, v%d, v%d, %s' % (G_, W_, W_ + 2, sr(88, 2)))
        k('v_cndmask_b32 v%d, v%d, v%d, %s' % (G_ + 2, W_ + 1, W_ + 3, sr(88, 2)))
        k('v_mov_b32 v%d, s%d' % (G_ + 1, S_EPOCH))
        k('v_mov_b32 v%d, s%d' % (G_ + 3, S_EPOCH))
        k('s_mov_b32 exec_lo, 0x33333333')
        k('s_mov_b32 exec_hi, 0x33333333')
        k('buffer_store_dwordx4 %s, v%d, %s, s%d offen sc1' % (vr(G_, 4), b.vSw, srd(SRD_WS), b.s_sw))
        k('s_mov_b64 exec, -1')
        k.barrier()
        for i in range(8):
            k('v_cvt_pk_bf16_f32 v%d, v%d, v%d' % (b.HK + i, A + 2 * i, A + 2 * i + 1))
        k('v_and_b32 v%d, 31, v1' % vG)
        B_hh_addr(k)
        hook('B_before_poll')
        stamp(k, 31)
        P0 = t + 32
        L = k.newlabel('Lst')
        done = k.newlabel('Lstd')
        Sx, Qx = t + 88, t + 90

        def ld(s_):
            return [k('buffer_load_dwordx4 %s, v%d, %s, s%d offen offset:%d sc1' % (
                vr(P0 + 28 * s_ + 4 * i, 4), vA, srd(SRD_WS), b.s_sp + (i >> 2), (i & 3) * 1024)) for i in range(7)]
        ld(0)
        k('s_sleep 5')
        k.loop_label(L)
        spin_guard(k)
        last = []
        for s_ in range(2):
            k.vm = []
            last += ld(1 - s_)
            k._emit(classify('s_waitcnt vmcnt(7)'))
            k.vm = []
            p = P0 + 28 * s_
            for i in range(14):
                k('v_xor_b32 v%d, s%d, v%d' % (p + 2 * i + 1, S_EPOCH, p + 2 * i + 1))
            for x, o in ((Sx, 0), (Qx, 2)):
                k('v_add_f32 v%d, v%d, v%d' % (x, p + o, p + o + 4))
                k('v_add_f32 v%d, v%d, v%d' % (x + 1, p + o + 8, p + o + 12))
            k('v_or3_b32 v%d, v%d, v%d, v%d' % (p + 1, p + 1, p + 3, p + 5))
            k('v_or3_b32 v%d, v%d, v%d, v%d' % (p + 7, p + 7, p + 9, p + 11))
            k('v_or3_b32 v%d, v%d, v%d, v%d' % (p + 13, p + 13, p + 15, p + 17))
            k('v_or3_b32 v%d, v%d, v%d, v%d' % (p + 19, p + 19, p + 21, p + 23))
            k('v_or3_b32 v%d, v%d, v%d, v%d' % (p + 1, p + 1, p + 25, p + 27))
            k('v_or3_b32 v%d, v%d, v%d, v%d' % (p + 7, p + 7, p + 13, p + 19))
            k('v_or_b32 v%d, v%d, v%d' % (p + 1, p + 1, p + 7))
            k('v_cmp_ne_u32 vcc, 0, v%d' % (p + 1))
            for x, o in ((Sx, 0), (Qx, 2)):
                k('v_add_f32 v%d, v%d, v%d' % (x, x, p + o + 16))
                k('v_add_f32 v%d, v%d, v%d' % (x + 1, x + 1, p + o + 20))
            for x, o in ((Sx, 0), (Qx, 2)):
                k('v_add_f32 v%d, v%d, v%d' % (x, x, p + o + 24))
            k('%s %s' % (('s_cbranch_vccz', 's_cbranch_vccnz')[s_], (done, L)[s_]))
        k.fence()
        k.raw(done + ':')
        k.vm = list(last)
        stamp(k, 13)
        P0 = t + 92
        for x in (Sx, Qx):
            k('v_add_f32 v%d, v%d, v%d' % (x, x, x + 1))
    else:
        vA, vC, vG = t + 1, t + 2, t + 3
        k('v_and_b32 v%d, 1, v3' % vA)
        k('v_lshlrev_b32 v%d, 6, v%d' % (vA, vA))
        k('v_lshrrev_b32 v%d, 5, v1' % vC)
        k('v_lshl_add_u32 v%d, v%d, 5, v%d' % (vA, vC, vA))
        k('v_bfe_u32 v%d, v1, 2, 2' % vG)
        k('v_lshl_add_u32 v%d, v%d, 3, v%d' % (vA, vG, vA))
        k('s_lshl_b32 s%d, s3, 8' % b.s_tmp)
        k('v_add_u32 v%d, s%d, v%d' % (vA, b.s_tmp, vA))
        k('ds_write_b64 v%d, %s offset:%d' % (vA, vr(W_, 2), lds_small))
        k('ds_write_b64 v%d, %s offset:%d' % (vA, vr(W_ + 2, 2), lds_small + 128))
        k('v_and_b32 v%d, 31, v1' % vG)
        k('v_lshlrev_b32 v%d, 9, v%d' % (vA, vC))
        k('v_lshl_add_u32 v%d, v%d, 4, v%d' % (vA, vG, vA))
        k('v_lshlrev_b32 v%d, 8, v%d' % (vC, vC))
        k('v_lshl_add_u32 v%d, v%d, 3, v%d' % (vC, vG, vC))
        k('s_and_b32 s%d, s%d, 512' % (b.s_tmp, b.s_tmp))
        k('v_add_u32 v%d, s%d, v%d' % (vC, b.s_tmp, vC))
        k('s_lshl_b32 s%d, s%d, 1' % (b.s_tmp, g.s_st))
        k('s_lshr_b32 s%d, s3, 1' % b.s_t2)
        k('s_add_u32 s%d, s%d, s%d' % (b.s_tmp, b.s_tmp, b.s_t2))
        k('s_lshl_b32 s%d, s%d, 12' % (b.s_tmp, b.s_tmp))
        k('s_add_u32 s%d, s%d, 0x%x' % (b.s_tmp, b.s_tmp, STAT_OFF))
        k('s_lshl_b32 s%d, s%d, 9' % (b.s_t2, g.s_dtD))
        k('s_add_u32 s%d, s%d, s%d' % (b.s_t2, b.s_t2, b.s_tmp))
        stamp(k, 23)
        k.wait_lg(0)
        k.barrier()
        k('ds_read_b64 %s, v%d offset:%d' % (vr(V, 2), vC, lds_small))
        G_ = V + 4
        k('v_mov_b32 v%d, s%d' % (G_ + 1, S_EPOCH))
        k('v_mov_b32 v%d, s%d' % (G_ + 3, S_EPOCH))
        k('v_mov_b32 v%d, v%d' % (G_, V))
        k('v_mov_b32 v%d, v%d' % (G_ + 2, V + 1))
        k('v_permlane32_swap_b32 v%d, v%d' % (G_, V))
        k('v_permlane32_swap_b32 v%d, v%d' % (G_ + 2, V + 1))
        k('v_add_f32 v%d, v%d, v%d' % (G_, G_, V))
        k('v_add_f32 v%d, v%d, v%d' % (G_ + 2, G_ + 2, V + 1))
        k('s_bitcmp0_b32 s3, 0')
        k('s_cselect_b32 exec_lo, -1, 0')
        k('s_mov_b32 exec_hi, 0')
        k('buffer_store_dwordx4 %s, v%d, %s, s%d offen sc1' % (vr(G_, 4), vA, srd(SRD_WS), b.s_t2))
        if DBL & 1:
            k('buffer_store_dwordx4 %s, v%d, %s, s%d offen' % (vr(G_, 4), vA, srd(SRD_WS), b.s_t2))
        k('s_mov_b64 exec, -1')
        for i in range(8):
            k('v_cvt_pk_bf16_f32 v%d, v%d, v%d' % (b.HK + i, A + 2 * i, A + 2 * i + 1))
        k('s_lshl_b32 s%d, s%d, 1' % (b.s_x, g.s_dtD))
        k('s_and_b32 s%d, s3, 1' % b.s_t2)
        k('s_add_u32 s%d, s%d, s%d' % (b.s_x, b.s_x, b.s_t2))
        k('s_lshl_b32 s%d, s%d, 7' % (b.s_x, b.s_x))
        k('s_lshl_b32 s%d, s%d, 2' % (b.s_t2, g.s_st))
        k('s_add_u32 s%d, s%d, s%d' % (b.s_x, b.s_x, b.s_t2))
        k('s_and_b32 s%d, s3, 2' % b.s_t2)
        k('s_add_u32 s%d, s%d, s%d' % (b.s_x, b.s_x, b.s_t2))
        k('s_lshl_b32 s%d, s%d, 10' % (b.s_x, b.s_x))
        k('s_add_u32 s%d, s%d, 0x%x' % (b.s_x, b.s_x, HH_OFF))
        k('v_lshlrev_b32 v%d, 4, v%d' % (vC, vG))
        k('v_cmp_gt_u32 %s, 32, v1' % sr(S_T, 2))
        hook('B_before_poll')
        stamp(k, 31)
        P0 = t + 32
        L = k.newlabel('Lst')
        done = k.newlabel('Lstd')
        Sx, Qx = t + 64, t + 66

        def ld(s_):
            r = []
            for i in range(4):
                r.append(k('buffer_load_dwordx4 %s, v%d, %s, s%d offen offset:%d sc1' % (
                    vr(P0 + 16 * s_ + 4 * i, 4), vA if i < 3 else vC, srd(SRD_WS), b.s_tmp, i * 1024)))
            return r
        ld(0)
        k('s_sleep 5')
        k.loop_label(L)
        spin_guard(k)
        last = []
        for s_ in range(2):
            k.vm = []
            if ST_SLEEP:
                k('s_sleep %d' % ST_SLEEP)
            last += ld(1 - s_)
            k._emit(classify('s_waitcnt vmcnt(4)'))
            k.vm = []
            p = P0 + 16 * s_
            for i in range(8):
                k('v_xor_b32 v%d, s%d, v%d' % (p + 2 * i + 1, S_EPOCH, p + 2 * i + 1))
            k('v_cndmask_b32 v%d, 0, v%d, %s' % (p + 12, p + 12, sr(S_T, 2)))
            k('v_cndmask_b32 v%d, 0, v%d, %s' % (p + 14, p + 14, sr(S_T, 2)))
            k('v_or3_b32 v%d, v%d, v%d, v%d' % (p + 1, p + 1, p + 3, p + 5))
            k('v_or3_b32 v%d, v%d, v%d, v%d' % (p + 7, p + 7, p + 9, p + 11))
            k('v_or3_b32 v%d, v%d, v%d, v%d' % (p + 1, p + 1, p + 13, p + 15))
            k('v_or_b32 v%d, v%d, v%d' % (p + 1, p + 1, p + 7))
            k('v_cmp_ne_u32 vcc, 0, v%d' % (p + 1))
            for x, o in ((Sx, 0), (Qx, 2)):
                k('v_add_f32 v%d, v%d, v%d' % (x, p + o, p + o + 4))
                k('v_add_f32 v%d, v%d, v%d' % (x + 1, p + o + 8, p + o + 12))
            if s_ == 0:
                k('s_cbranch_vccz %s' % done)
            else:
                k('s_cbranch_vccnz %s' % L)
        k.fence()
        k.raw(done + ':')
        k.vm = list(last)
        stamp(k, 13)
        P0 = t + 68
        for x in (Sx, Qx):
            k('v_add_f32 v%d, v%d, v%d' % (x, x, x + 1))
    k('v_mov_b32 v%d, v%d' % (P0 + 4, Sx))
    k('v_mov_b32 v%d, v%d' % (P0 + 6, Qx))
    k('v_permlane32_swap_b32 v%d, v%d' % (Sx, P0 + 4))
    k('v_permlane32_swap_b32 v%d, v%d' % (Qx, P0 + 6))
    k('v_add_f32 v%d, v%d, v%d' % (Sx, Sx, P0 + 4))
    k('v_add_f32 v%d, v%d, v%d' % (Qx, Qx, P0 + 6))
    M, R = P0 + 1, P0 + 3
    k('v_mul_f32 v%d, %s, v%d' % (M, f32(1.0 / D), Sx))
    k('v_mul_f32 v%d, %s, v%d' % (Qx, f32(1.0 / D), Qx))
    k('v_fma_f32 v%d, -v%d, v%d, v%d' % (Qx, M, M, Qx))
    k('v_max_f32 v%d, 0, v%d' % (Qx, Qx))
    k('v_add_f32 v%d, %s, v%d' % (R, f32(1e-5), Qx))
    k('v_rsq_f32 v%d, v%d' % (R, R))
    k('v_mul_f32 v%d, v%d, v%d' % (Qx, Qx, R))
    k('v_fmaak_f32 v%d, v%d, v%d, %s' % (Qx, Qx, R, f32(1e-5)))
    k('v_rsq_f32 v%d, v%d' % (Qx, Qx))
    k('v_mul_f32 v%d, v%d, v%d' % (R, R, Qx))
    k('s_lshl_b32 s%d, s3, 8' % b.s_t2)
    k('v_lshl_add_u32 v%d, v%d, 2, s%d' % (vC, vG, b.s_t2))
    k('ds_write_b32 v%d, v%d offset:%d' % (vC, M, lds_small + 1024))
    k('ds_write_b32 v%d, v%d offset:%d' % (vC, R, lds_small + 1024 + 128))
    k('v_lshrrev_b32 v%d, 5, v1' % vC)
    k('v_lshl_add_u32 v%d, v%d, 4, s%d' % (vC, vC, b.s_t2))
    MM = 16 if ST14 else P0 + 8
    k.wait_lg(0)
    for q in range(4):
        k('ds_read_b128 %s, v%d offset:%d' % (vr(MM + 4 * q, 4), vC, lds_small + 1024 + 32 * q))
        k('ds_read_b128 %s, v%d offset:%d' % (vr(MM + 16 + 4 * q, 4), vC, lds_small + 1024 + 128 + 32 * q))
    for tp in range(2):
        for i in range(8 * tp, 8 * tp + 8, 2):
            k('v_pk_add_f32 %s, %s, %s neg_lo:[0,1] neg_hi:[0,1]' % (vr(A + i, 2), vr(A + i, 2), vr(MM + i, 2)))
        for i in range(8 * tp, 8 * tp + 8, 2):
            k('v_pk_mul_f32 %s, %s, %s' % (vr(A + i, 2), vr(A + i, 2), vr(MM + 16 + i, 2)))
        p = (P0 + 8 if ST14 else V) + 4 * tp
        for i in range(4):
            k('v_cvt_pk_bf16_f32 v%d, v%d, v%d' % (p + i, A + 8 * tp + 2 * i, A + 8 * tp + 2 * i + 1))
        k('buffer_store_dwordx4 %s, v4, %s, s%d offen offset:%d %s' % (vr(p, 4), srd(SRD_WS), b.s_x, tp * 1024, sc1), tag='hst')


def B_hh_addr(k):
    b, g = B, G
    k('s_lshl_b32 s%d, s%d, 1' % (b.s_x, g.s_dtD))
    k('s_and_b32 s%d, s3, 1' % b.s_t2)
    k('s_add_u32 s%d, s%d, s%d' % (b.s_x, b.s_x, b.s_t2))
    k('s_lshl_b32 s%d, s%d, 7' % (b.s_x, b.s_x))
    k('s_lshl_b32 s%d, s%d, 2' % (b.s_t2, g.s_st))
    k('s_add_u32 s%d, s%d, s%d' % (b.s_x, b.s_x, b.s_t2))
    k('s_and_b32 s%d, s3, 2' % b.s_t2)
    k('s_add_u32 s%d, s%d, s%d' % (b.s_x, b.s_x, b.s_t2))
    k('s_lshl_b32 s%d, s%d, 10' % (b.s_x, b.s_x))
    k('s_add_u32 s%d, s%d, 0x%x' % (b.s_x, b.s_x, HH_OFF))


def B_st14_setup(k):
    b, g = B, G
    t = b.T
    k('v_and_b32 v%d, 1, v1' % t)
    k('v_lshlrev_b32 v%d, 8, v%d' % (b.vSw, t))
    k('v_and_b32 v%d, 1, v3' % t)
    k('v_lshl_add_u32 v%d, v%d, 7, v%d' % (b.vSw, t, b.vSw))
    k('v_lshrrev_b32 v%d, 5, v1' % t)
    k('v_lshl_add_u32 v%d, v%d, 6, v%d' % (b.vSw, t, b.vSw))
    k('v_lshlrev_b32 v%d, 9, v%d' % (b.vSp, t))
    k('v_bfe_u32 v%d, v1, 2, 2' % t)
    k('v_lshl_add_u32 v%d, v%d, 4, v%d' % (b.vSw, t, b.vSw))
    k('v_and_b32 v%d, 31, v1' % t)
    k('v_lshl_add_u32 v%d, v%d, 4, v%d' % (b.vSp, t, b.vSp))
    k('s_lshl_b32 s%d, s%d, 1' % (b.s_sp, g.s_st))
    k('s_lshr_b32 s%d, s3, 1' % b.s_sw)
    k('s_add_u32 s%d, s%d, s%d' % (b.s_sp, b.s_sp, b.s_sw))
    k('s_lshl_b32 s%d, s%d, 13' % (b.s_sp, b.s_sp))
    k('s_add_u32 s%d, s%d, 0x%x' % (b.s_sp, b.s_sp, STAT_OFF))
    k('s_add_u32 s%d, s%d, 4096' % (b.s_sp + 1, b.s_sp))
    k('s_lshl_b32 s%d, s%d, 1' % (b.s_sw, g.s_dtD))
    k('s_and_b32 s88, s3, 1')
    k('s_add_u32 s%d, s%d, s88' % (b.s_sw, b.s_sw))
    k('s_lshl_b32 s%d, s%d, 9' % (b.s_sw, b.s_sw))
    k('s_add_u32 s%d, s%d, s%d' % (b.s_sw, b.s_sw, b.s_sp))
    k('s_mov_b32 s88, 0xaaaaaaaa')
    k('s_mov_b32 s89, 0xaaaaaaaa')


def agent(k):
    g = G
    k.c('---- agent: W2 warm-up')
    k('s_lshr_b32 s%d, s2, 3' % g.s_tmp)
    k('s_sub_u32 s%d, s%d, 28' % (g.s_tmp, g.s_tmp))
    k('s_lshl_b32 s%d, s%d, 2' % (g.s_tmp, g.s_tmp))
    k('s_add_u32 s%d, s%d, s3' % (g.s_tmp, g.s_tmp))
    k('s_lshl_b32 s%d, s%d, 16' % (g.s_tmp, g.s_tmp))
    k('s_and_b32 s%d, s2, 7' % g.s_t2)
    k('s_lshl_b32 s%d, s%d, 9' % (g.s_t2, g.s_t2))
    k('s_add_u32 s%d, s%d, s%d' % (g.s_tmp, g.s_tmp, g.s_t2))
    k('v_lshrrev_b32 v16, 2, v1')
    k('v_lshlrev_b32 v16, 12, v16')
    k('v_and_b32 v17, 3, v1')
    k('v_lshl_add_u32 v16, v17, 7, v16')
    for i in range(7):
        k('buffer_load_dword v%d, v16, %s, s%d offen' % (18 + i, srd(SRD_W2), g.s_tmp))
        k('s_add_u32 s%d, s%d, 0x100000' % (g.s_tmp, g.s_tmp))
        k.wait_vm(AGENT_DEPTH - 1)
    k.wait_vm(0)


class G:
    ACC = 16
    RING = 80
    NR = 16
    vW1, vW2 = 213, 214
    vRa, vRb = 215, 216
    vSa, vSb = 217, 218
    vCl = 5
    T = 220
    s_dtC, s_ft, s_dtD, s_st, s_tmp, s_t2, s_stage, s_a0, s_a1 = 64, 65, 66, 67, 68, 69, 70, 71, 72
    s_b0, s_b1 = 56, 57


def G_map(k):
    g = G
    k.c('---- C/D tile map')
    k('s_lshr_b32 s%d, s2, 3' % g.s_tmp)
    k('s_mul_i32 s%d, s%d, 37' % (g.s_t2, g.s_tmp))
    k('s_lshr_b32 s%d, s%d, 8' % (g.s_t2, g.s_t2))
    k('s_mul_i32 s%d, s%d, 7' % (g.s_dtC, g.s_t2))
    k('s_sub_u32 s%d, s%d, s%d' % (g.s_dtC, g.s_tmp, g.s_dtC))
    k('s_mov_b32 s%d, s%d' % (g.s_dtD, g.s_dtC))
    k('s_and_b32 s%d, s2, 7' % g.s_tmp)
    k('s_lshl_b32 s%d, s%d, 2' % (g.s_st, g.s_tmp))
    k('s_add_u32 s%d, s%d, s%d' % (g.s_st, g.s_st, g.s_t2))
    k('s_cmp_ge_u32 s%d, 4' % g.s_t2)
    k('s_cselect_b32 s%d, 99, s%d' % (g.s_st, g.s_st))
    k('s_mul_i32 s%d, s%d, 3' % (g.s_a0, g.s_tmp))
    k('s_add_u32 s%d, s%d, 4' % (g.s_a0, g.s_a0))
    k('s_lshl_b32 s%d, s%d, 2' % (g.s_a1, g.s_tmp))
    k('s_cmp_lt_u32 s%d, 4' % g.s_tmp)
    k('s_cselect_b32 s%d, s%d, s%d' % (g.s_ft, g.s_a1, g.s_a0))
    k('s_cselect_b32 s%d, 4, 3' % g.s_a0)
    k('s_add_u32 s%d, s%d, s%d' % (g.s_ft, g.s_ft, g.s_t2))
    k('s_cmp_ge_u32 s%d, s%d' % (g.s_t2, g.s_a0))
    k('s_cselect_b32 s%d, 99, s%d' % (g.s_ft, g.s_ft))


def G_w_setup(k, which, lds_base, per_wave):
    g = G
    t = TMP
    stride = F * 2 if which == 1 else S * 2
    krows = 512 if which == 1 else 448
    vW = g.vW1 if which == 1 else g.vW2
    va, vb = (g.vRa, g.vRb) if which == 1 else (g.vSa, g.vSb)
    s_tile = g.s_ft if which == 1 else g.s_st
    k('s_mul_i32 s%d, s3, %d' % (g.s_stage, per_wave))
    k('s_add_u32 s%d, s%d, %d' % (g.s_stage, g.s_stage, lds_base))
    k('v_lshrrev_b32 v%d, 3, v1' % t)
    k('v_mul_u32_u24 v%d, %d, v%d' % (vW, stride, t))
    k('v_and_b32 v%d, 1, v3' % t)
    k('v_lshlrev_b32 v%d, 2, v%d' % (t, t))
    k('v_and_b32 v%d, 7, v1' % (t + 1))
    k('v_xor_b32 v%d, v%d, v%d' % (t, t, t + 1))
    k('v_lshl_add_u32 v%d, v%d, 4, v%d' % (vW, t, vW))
    k('s_mul_i32 s%d, s3, %d' % (g.s_tmp, krows * stride))
    k('s_lshl_b32 s%d, s%d, 7' % (g.s_t2, s_tile))
    k('s_add_u32 s%d, s%d, s%d' % (g.s_tmp, g.s_tmp, g.s_t2))
    k('s_cmp_ge_u32 s%d, 99' % s_tile)
    k('s_cselect_b32 s%d, 0x%x, s%d' % (g.s_tmp, OOB, g.s_tmp))
    k('v_add_u32 v%d, s%d, v%d' % (vW, g.s_tmp, vW))
    if which == 1:
        k('s_cselect_b32 s%d, 0x%x, 0' % (g.s_tmp, OOB))
        k('v_add_u32 v%d, s%d, v4' % (g.vCl, g.s_tmp))
    k('v_lshrrev_b32 v%d, 5, v1' % t)
    k('v_lshlrev_b32 v%d, 9, v%d' % (va, t))
    k('v_bfe_u32 v%d, v1, 2, 2' % t)
    k('v_lshl_add_u32 v%d, v%d, 7, v%d' % (va, t, va))
    k('v_lshrrev_b32 v%d, 1, v%d' % (t, t))
    k('s_lshr_b32 s%d, s3, 1' % g.s_tmp)
    k('v_xor_b32 v%d, s%d, v%d' % (t, g.s_tmp, t))
    k('v_lshl_add_u32 v%d, v%d, 6, v%d' % (va, t, va))
    k('v_and_b32 v%d, 1, v3' % t)
    k('v_lshl_add_u32 v%d, v%d, 5, v%d' % (va, t, va))
    k('v_and_b32 v%d, 3, v1' % t)
    k('v_lshl_add_u32 v%d, v%d, 3, v%d' % (va, t, va))
    if CD2 and which == 1:
        k('s_and_b32 s%d, s3, 1' % g.s_tmp)
        k('s_lshl_b32 s%d, s%d, 5' % (g.s_tmp, g.s_tmp))
        k('v_xor_b32 v%d, s%d, v%d' % (va, g.s_tmp, va))
    k('v_add_u32 v%d, s%d, v%d' % (va, g.s_stage, va))
    k('v_xor_b32 v%d, 64, v%d' % (vb, va))


ROT = True
S_GC, S_GD = 94, 48


def G_rot_setup(k, which):
    n, base = (8, S_GC) if which == 1 else (7, S_GD)
    t = G.s_tmp
    if ROT in ('x', 'x2'):
        k('s_lshr_b32 s%d, s2, 3' % t)
        k('s_mul_i32 s%d, s%d, 37' % (t, t))
        k('s_lshr_b32 s%d, s%d, 8' % (t, t))
        k('s_and_b32 s%d, s%d, %d' % (t, t, 3 if ROT == 'x' else 1))
        for g_ in range(n):
            if n == 8 or g_ < 4:
                k('s_xor_b32 s%d, s%d, %d' % (base + g_, t, g_))
            elif g_ < 6:
                k('s_and_b32 s%d, s%d, 1' % (base + g_, t))
                k('s_xor_b32 s%d, s%d, %d' % (base + g_, base + g_, g_))
            else:
                k('s_mov_b32 s%d, %d' % (base + g_, g_))
            k('s_lshl_b32 s%d, s%d, 12' % (base + g_, base + g_))
        return
    if ROT == 'q':
        k('s_lshr_b32 s%d, s2, 3' % t)
        k('s_mul_i32 s%d, s%d, 37' % (t, t))
        k('s_lshr_b32 s%d, s%d, 8' % (t, t))
        k('s_and_b32 s%d, s%d, 3' % (t, t))
        k('s_mul_i32 s%d, s%d, %d' % (t, t, n))
        k('s_add_u32 s%d, s%d, 2' % (t, t))
        k('s_lshr_b32 s%d, s%d, 2' % (t, t))
    elif ROT:
        k('s_and_b32 s%d, s2, 7' % t)
    else:
        k('s_mov_b32 s%d, 0' % t)
    for g_ in range(n):
        if g_:
            k('s_add_u32 s%d, s%d, 1' % (t, t))
        k('s_cmp_ge_u32 s%d, %d' % (t, n))
        k('s_cselect_b32 s%d, %d, 0' % (base + g_, n))
        k('s_sub_u32 s%d, s%d, s%d' % (t, t, base + g_))
        k('s_lshl_b32 s%d, s%d, 12' % (base + g_, t))


def G_w_dma(k, which, t0, nt, slot0, tag=None, bg=False):
    g = G
    stride = F * 2 if which == 1 else S * 2

    def one(i):
        slot = slot0 + i // 2
        assert slot < NSLOT
        k.wait_lg_tag('rd%d' % slot)
        k.slot_content = getattr(k, 'slot_content', {})
        k.slot_content[slot] = (which, t0 + i // 2, i % 2)
        k('s_add_u32 m0, s%d, %d' % (g.s_stage, slot0 * 2048 + i * 1024))
        t = t0 + i // 2
        k('s_mul_i32 s%d, s%d, %d' % (B.s_dma, (S_GC if which == 1 else S_GD) + t // 4, 64 * stride // 4096))
        k('s_add_u32 s%d, s%d, %d' % (B.s_dma, B.s_dma, (16 * (t % 4) + 8 * (i % 2)) * stride))
        k('buffer_load_dwordx4 v%d, %s, s%d offen lds' % (g.vW1 if which == 1 else g.vW2, srd(SRD_W1 if which == 1 else SRD_W2), B.s_dma), tag='slot%d' % slot)
    for i in range(2 * nt):
        if bg:
            k.bg_push(lambda i=i: one(i))
        else:
            one(i)


def W1_warm(k, vdst):
    g = G
    t = TMP
    k('s_lshr_b32 s%d, s2, 3' % g.s_tmp)
    k('s_lshl_b32 s%d, s%d, 2' % (g.s_tmp, g.s_tmp))
    k('s_add_u32 s%d, s%d, s3' % (g.s_tmp, g.s_tmp))
    if True:
        k('v_lshlrev_b32 v%d, 7, v1' % t)
        k('s_mul_i32 s%d, s%d, 3200' % (S_T, g.s_tmp))
        k('s_mov_b64 exec, 0x1ffffff')
        k('buffer_load_dword v234, v%d, %s, s%d offen' % (t, srd(SRD_WO), S_T))
        k('s_mov_b64 exec, -1')
    k('v_lshrrev_b32 v%d, 2, v1' % t)
    k('v_mul_u32_u24 v%d, %d, v%d' % (t, F * 2, t))
    k('v_and_b32 v%d, 3, v1' % (t + 1))
    k('v_lshl_add_u32 v%d, v%d, 7, v%d' % (t, t + 1, t))
    k('s_mul_i32 s%d, s%d, %d' % (g.s_tmp, g.s_tmp, 16 * F * 2))
    k('s_and_b32 s%d, s2, 7' % g.s_t2)
    k('s_mul_i32 s%d, s%d, 3' % (S_T, g.s_t2))
    k('s_add_u32 s%d, s%d, 4' % (S_T, S_T))
    k('s_lshl_b32 s%d, s%d, 2' % (S_T + 1, g.s_t2))
    k('s_min_u32 s%d, s%d, s%d' % (S_T, S_T, S_T + 1))
    k('s_lshl_b32 s%d, s%d, 7' % (S_T, S_T))
    k('s_add_u32 s%d, s%d, s%d' % (S_T, S_T, g.s_tmp))
    k('s_cmp_lt_u32 s%d, 4' % g.s_t2)
    k('s_cselect_b32 exec_lo, -1, 0x77777777')
    k('s_cselect_b32 exec_hi, -1, 0x77777777')
    k('buffer_load_dword v%d, v%d, %s, s%d offen' % (vdst, t, srd(SRD_W1), S_T))
    k('s_mov_b64 exec, -1')


def G_w_read(k, which, t, slot, areg):
    g = G
    va, vb = (g.vRa, g.vRb) if which == 1 else (g.vSa, g.vSb)
    sec = 1024
    assert k.slot_content[slot] == (which, t, 1), (k.slot_content[slot], which, t)
    k.wait_tag('slot%d' % slot)
    for i, v in enumerate((va, vb)):
        k('ds_read_b64_tr_b16 %s, v%d offset:%d' % (ar(areg + 4 * i, 2), v, slot * 2048), tag='rd%d' % slot)
        k('ds_read_b64_tr_b16 %s, v%d offset:%d' % (ar(areg + 4 * i + 2, 2), v, slot * 2048 + sec), tag='rd%d' % slot)


def G_a_setup(k, which):
    g = G
    nks = 128 if which == 1 else 112
    per = 32 if which == 1 else 28
    base = HH_OFF if which == 1 else U_OFF
    s_dt = g.s_dtC if which == 1 else g.s_dtD
    k('s_lshl_b32 s%d, s%d, 1' % (g.s_tmp, s_dt))
    k('s_and_b32 s%d, s3, 1' % g.s_t2)
    k('s_add_u32 s%d, s%d, s%d' % (g.s_a0, g.s_tmp, g.s_t2))
    k('s_xor_b32 s%d, s%d, 1' % (g.s_a1, g.s_a0))
    k('s_mul_i32 s%d, s3, %d' % (g.s_tmp, per * 1024))
    k('s_add_u32 s%d, s%d, 0x%x' % (g.s_tmp, g.s_tmp, base))
    for s_ in (g.s_a0, g.s_a1):
        k('s_mul_i32 s%d, s%d, %d' % (s_, s_, nks * 1024))
        k('s_add_u32 s%d, s%d, s%d' % (s_, s_, g.s_tmp))


def G_a_load(k, t, sc1='', vo=4, which=1):
    g = G
    if t % 4 == 0:
        gr = (S_GC if which == 1 else S_GD) + t // 4
        k('s_add_u32 s%d, s%d, s%d' % (g.s_b0, g.s_a0, gr))
        k('s_add_u32 s%d, s%d, s%d' % (g.s_b1, g.s_a1, gr))
    r = g.RING + 8 * (t % g.NR)
    for i, s_ in enumerate((g.s_b0, g.s_b1)):
        k('buffer_load_dwordx4 %s, v%d, %s, s%d offen offset:%d %s' % (vr(r + 4 * i, 4), vo, srd(SRD_WS), s_, (t % 4) * 1024, sc1))


def G_mfma(k, t, areg):
    g = G
    r = g.RING + 8 * (t % g.NR)
    for iw in range(2):
        for ia in range(2):
            L = 2 * iw + ia
            a = vr(g.ACC + 16 * L, 16)
            c = '0' if (t == 0 and L != 0) else a
            k('v_mfma_f32_32x32x16_bf16 %s, %s, %s, %s' % (a, ar(areg + 4 * iw, 4), vr(r + 4 * ia, 4), c))


def G_mfma_tail(k, ts, areg, order, writes):
    g = G
    pend = []
    for L in order:
        iw, ia = L >> 1, L & 1
        a = vr(g.ACC + 16 * L, 16)
        for n, t in enumerate(ts):
            r = g.RING + 8 * (t % g.NR)
            k('v_mfma_f32_32x32x16_bf16 %s, %s, %s, %s' % (a, ar(areg(t) + 4 * iw, 4), vr(r + 4 * ia, 4), a))
            if n >= 1:
                per = -(-len(pend) // (len(ts) - n))
                for f in pend[:per]:
                    f()
                pend = pend[per:]
        pend = pend + list(writes.get(L, []))
    for f in pend:
        f()


def C_init(k):
    g = G
    t = g.T
    k('v_lshrrev_b32 v%d, 5, v1' % t)
    k('v_lshlrev_b32 v%d, 3, v%d' % (t, t))
    k('s_lshl_b32 s%d, s%d, 7' % (g.s_tmp, g.s_ft))
    k('s_lshr_b32 s%d, s3, 1' % g.s_t2)
    k('s_lshl_b32 s%d, s%d, 6' % (g.s_t2, g.s_t2))
    k('s_add_u32 s%d, s%d, s%d' % (g.s_tmp, g.s_tmp, g.s_t2))
    for q in range(4):
        k('buffer_load_dwordx2 %s, v%d, %s, s%d offen offset:%d' % (vr(t + 2 + 2 * q, 2), t, srd(SRD_B1), g.s_tmp, 16 * q))


def C_init_finish(k):
    g = G
    t = g.T
    for q in range(4):
        for i in range(2):
            k('v_lshlrev_b32 v%d, 16, v%d' % (g.ACC + 4 * q + 2 * i, t + 2 + 2 * q + i))
            k('v_and_b32 v%d, 0xffff0000, v%d' % (g.ACC + 4 * q + 2 * i + 1, t + 2 + 2 * q + i))


def C_epi_addr(k):
    g = G
    t = g.T
    for L in range(1, 4):
        k('s_xor_b32 s%d, s3, %d' % (g.s_tmp, L))
        k('s_mul_i32 s%d, s%d, %d' % (g.s_tmp, g.s_tmp, STG_SZ))
        k('s_add_u32 s%d, s%d, %d' % (g.s_tmp, g.s_tmp, LDS_STG + (L - 1) * 4096))
        k('v_add_u32 v%d, s%d, v4' % (t + L, g.s_tmp))
    k('v_add_u32 v%d, s%d, v4' % (t, g.s_stage))
    k('s_lshl_b32 s%d, s%d, 1' % (g.s_tmp, g.s_dtC))
    k('s_and_b32 s%d, s3, 1' % g.s_t2)
    k('s_add_u32 s%d, s%d, s%d' % (g.s_tmp, g.s_tmp, g.s_t2))
    k('s_mul_i32 s%d, s%d, 112' % (g.s_tmp, g.s_tmp))
    k('s_lshl_b32 s%d, s%d, 2' % (g.s_t2, g.s_ft))
    k('s_add_u32 s%d, s%d, s%d' % (g.s_tmp, g.s_tmp, g.s_t2))
    k('s_and_b32 s%d, s3, 2' % g.s_t2)
    k('s_add_u32 s%d, s%d, s%d' % (g.s_tmp, g.s_tmp, g.s_t2))
    k('s_lshl_b32 s%d, s%d, 10' % (g.s_tmp, g.s_tmp))
    k('s_add_u32 s%d, s%d, 0x%x' % (g.s_tmp, g.s_tmp, U_OFF))
    c1 = -2.0 * 0.7978845608028654 * 1.4426950408889634
    c2 = c1 * 0.044715
    k('s_mov_b32 s88, %s' % f32(c1))
    k('s_mov_b32 s90, %s' % f32(c2))
    k('v_mov_b32 v%d, s88' % (t + 4))
    k('v_mov_b32 v%d, s88' % (t + 5))


def C_epi_writes(k):
    g = G
    t = g.T
    return {L: [lambda L=L, q=q: k('ds_write_b128 v%d, %s offset:%d' % (t + L, vr(g.ACC + 16 * L + 4 * q, 4), q * 1024))
                for q in range(4)] for L in range(1, 4)}


def C_epilogue(k, sc1=''):
    g = G
    t = g.T
    k.c('---- phase C epilogue')
    k.wait_lg(0)
    k.barrier()
    R = g.ACC + 16
    for q in range(4):
        for L in range(3):
            k('ds_read_b128 %s, v%d offset:%d' % (vr(R + 16 * L + 4 * q, 4), t, L * 4096 + q * 1024))
    sc = 88
    X2 = g.RING
    for half in range(2):
        for i in range(8 * half, 8 * half + 8, 2):
            a = g.ACC + i
            k('v_pk_add_f32 %s, %s, %s' % (vr(R + i, 2), vr(R + i, 2), vr(R + 16 + i, 2)))
            k('v_pk_add_f32 %s, %s, %s' % (vr(a, 2), vr(a, 2), vr(R + 32 + i, 2)))
        for i in range(8 * half, 8 * half + 8, 2):
            a = g.ACC + i
            k('v_pk_add_f32 %s, %s, %s' % (vr(a, 2), vr(a, 2), vr(R + i, 2)))
        for i in range(8 * half, 8 * half + 8, 2):
            a = g.ACC + i
            k('v_pk_mul_f32 %s, %s, %s' % (vr(X2 + i, 2), vr(a, 2), vr(a, 2)))
        for i in range(8 * half, 8 * half + 8, 2):
            k('v_pk_fma_f32 %s, %s, %s, %s op_sel_hi:[1,0,1]' % (vr(X2 + i, 2), vr(X2 + i, 2), sr(sc + 2, 2), vr(t + 4, 2)))
        for i in range(8 * half, 8 * half + 8, 2):
            k('v_pk_mul_f32 %s, %s, %s' % (vr(X2 + i, 2), vr(X2 + i, 2), vr(g.ACC + i, 2)))
        for i in range(8 * half, 8 * half + 8):
            k('v_exp_f32 v%d, v%d' % (X2 + i, X2 + i))
        for i in range(8 * half, 8 * half + 8, 2):
            k('v_pk_add_f32 %s, %s, 1.0 op_sel_hi:[1,0]' % (vr(X2 + i, 2), vr(X2 + i, 2)))
        for i in range(8 * half, 8 * half + 8):
            k('v_rcp_f32 v%d, v%d' % (X2 + i, X2 + i))
        for i in range(8 * half, 8 * half + 8, 2):
            k('v_pk_mul_f32 %s, %s, %s' % (vr(X2 + i, 2), vr(X2 + i, 2), vr(g.ACC + i, 2)))
        p = X2 + 16 + 4 * half
        for i in range(4):
            k('v_cvt_pk_bf16_f32 v%d, v%d, v%d' % (p + i, X2 + 8 * half + 2 * i, X2 + 8 * half + 2 * i + 1))
        k('buffer_store_dwordx4 %s, v%d, %s, s%d offen offset:%d %s' % (vr(p, 4), g.vCl, srd(SRD_WS), g.s_tmp, half * 1024, sc1), tag='ust')


def D_init(k, sc1=''):
    g = G
    t = g.T
    k('v_lshrrev_b32 v%d, 5, v1' % t)
    k('v_lshlrev_b32 v%d, 3, v%d' % (t, t))
    k('s_lshl_b32 s%d, s%d, 7' % (g.s_tmp, g.s_st))
    k('s_lshr_b32 s%d, s3, 1' % g.s_t2)
    k('s_lshl_b32 s%d, s%d, 6' % (g.s_t2, g.s_t2))
    k('s_add_u32 s%d, s%d, s%d' % (g.s_tmp, g.s_tmp, g.s_t2))
    for q in range(4):
        k('buffer_load_dwordx2 %s, v%d, %s, s%d offen offset:%d' % (vr(t + 2 + 2 * q, 2), t, srd(SRD_B2), g.s_tmp, 16 * q))


def D_init_finish(k):
    g = G
    t = g.T
    for q in range(4):
        for i in range(2):
            a = g.ACC + 4 * q + 2 * i
            k('v_lshlrev_b32 v%d, 16, v%d' % (a, t + 2 + 2 * q + i))
            k('v_and_b32 v%d, 0xffff0000, v%d' % (a + 1, t + 2 + 2 * q + i))
            k('v_lshlrev_b32 v%d, 16, v%d' % (t + 18, B.HK + 2 * q + i))
            k('v_and_b32 v%d, 0xffff0000, v%d' % (t + 19, B.HK + 2 * q + i))
            k('v_pk_add_f32 %s, %s, %s' % (vr(a, 2), vr(a, 2), vr(t + 18, 2)))


def D_epilogue(k, lds_red, stride):
    g = G
    t = g.T
    k.c('---- phase D epilogue')
    k('v_lshrrev_b32 v%d, 5, v1' % t)
    k('v_lshlrev_b32 v%d, 10, v%d' % (t, t))
    k('v_and_b32 v%d, 31, v1' % (t + 1))
    k('v_lshl_add_u32 v%d, v%d, 2, v%d' % (t, t + 1, t))
    k('s_lshr_b32 s%d, s3, 1' % g.s_t2)
    k('s_lshl_b32 s%d, s%d, 13' % (g.s_tmp, g.s_t2))
    k('s_and_b32 s%d, s3, 1' % g.s_t2)
    k('s_lshl_b32 s%d, s%d, 7' % (g.s_t2, g.s_t2))
    k('s_add_u32 s%d, s%d, s%d' % (g.s_tmp, g.s_tmp, g.s_t2))
    k('v_add_u32 v%d, s%d, v%d' % (t, g.s_tmp, t))
    k('v_xor_b32 v%d, 128, v%d' % (t + 1, t))
    k('v_xor_b32 v%d, 0x2000, v%d' % (t + 2, t))
    k('v_xor_b32 v%d, 0x2080, v%d' % (t + 3, t))
    k('s_mul_i32 s%d, s3, %d' % (g.s_tmp, stride))
    k('s_add_u32 s%d, s%d, %d' % (g.s_tmp, g.s_tmp, lds_red))
    for L in range(4):
        k('v_add_u32 v%d, s%d, v%d' % (t + L, g.s_tmp, t + L))
    k('s_lshl_b32 s%d, s3, 12' % g.s_tmp)
    k('s_add_u32 s%d, s%d, %d' % (g.s_tmp, g.s_tmp, lds_red))
    k('v_add_u32 v%d, s%d, v4' % (t + 4, g.s_tmp))
    k('v_add_u32 v%d, %d, v%d' % (t + 6, 2 * stride, t + 4))
    k('v_mul_u32_u24 v%d, 896, v3' % (t + 5))
    k('v_lshl_add_u32 v%d, v2, 3, v%d' % (t + 5, t + 5))
    k('s_lshl_b32 s%d, s%d, 2' % (g.s_tmp, g.s_st))
    k('s_add_u32 s%d, s%d, s3' % (g.s_tmp, g.s_tmp))
    k('s_mul_i32 s%d, s%d, %d' % (g.s_tmp, g.s_tmp, 16 * 896))
    k('s_lshl_b32 s%d, s%d, 7' % (g.s_t2, g.s_dtD))
    k('s_add_u32 s%d, s%d, s%d' % (g.s_tmp, g.s_tmp, g.s_t2))
    k('s_add_u32 s%d, s%d, %d' % (g.s_t2, g.s_tmp, 8 * 896))


def D_epi_writes(k):
    g = G
    t = g.T
    return {L: [lambda L=L, q=q, r=r: k('ds_write2st64_b32 v%d, v%d, v%d offset0:%d offset1:%d' % (
        t + L, g.ACC + 16 * L + 4 * q + r, g.ACC + 16 * L + 4 * q + r + 1, 8 * q + r, 8 * q + r + 1))
        for q in range(4) for r in (0, 2)] for L in range(4)}


def D_epilogue2(k, stride):
    g = G
    t = g.T
    k.wait_lg(0)
    k.barrier()
    R = g.ACC
    for i in range(4):
        for w in range(4):
            k('ds_read_b128 %s, v%d offset:%d' % (vr(R + 16 * i + 4 * w, 4), t + 4 if w < 2 else t + 6, (w & 1) * stride + i * 1024))
    for i in range(4):
        r = R + 16 * i
        for j in (0, 2):
            k('v_pk_add_f32 %s, %s, %s' % (vr(r + j, 2), vr(r + j, 2), vr(r + 4 + j, 2)))
            k('v_pk_add_f32 %s, %s, %s' % (vr(r + 8 + j, 2), vr(r + 8 + j, 2), vr(r + 12 + j, 2)))
        for j in (0, 2):
            k('v_pk_add_f32 %s, %s, %s' % (vr(r + j, 2), vr(r + j, 2), vr(r + 8 + j, 2)))
        k('v_cvt_pk_bf16_f32 v%d, v%d, v%d' % (r + 4, r, r + 1))
        k('v_cvt_pk_bf16_f32 v%d, v%d, v%d' % (r + 5, r + 2, r + 3))
        k('buffer_store_dwordx2 %s, v%d, %s, s%d offen offset:%d' % (vr(r + 4, 2), t + 5, srd(SRD_OUT), g.s_t2 if i >= 2 else g.s_tmp, (i % 2) * 4 * 896))
```

```python
import sys, os
sys.path.insert(0, os.path.dirname(os.path.abspath(__file__)))
from dsl import Kernel
import phases as P
import cd2
import a2

NAME = 'sequential_preLN__sliding_local_dilated__mixer_token_mlp__prompt'
HEADER = open(os.path.join(os.path.dirname(os.path.abspath(__file__)), '..', NAME + '.s.ref')).read().split('; Override launch')[0]


def wrap(kernels):
    out = [HEADER.rstrip('\n')]
    for label, k, grid, lds in kernels:
        if len(kernels) == 1 and label == NAME + '_kernel':
            out.append('; @launch grid=(%d,1,1) block=(256,1,1) lds=%d' % (grid, lds))
        else:
            out.append('; @launch kernel=%s grid=(%d,1,1) block=(256,1,1) lds=%d' % (label, grid, lds))
    out.append('.amdgcn_target "amdgcn-amd-amdhsa--gfx950"')
    out.append('.text')
    seen = []
    for label, k, grid, lds in kernels:
        if label in seen:
            continue
        seen.append(label)
        out.append('.globl %s\n.p2align 8\n.type %s,@function\n%s:' % (label, label, label))
        out.append(k.text())
    out.append('.section .rodata,"a"')
    seen = []
    for label, k, grid, lds in kernels:
        if label in seen:
            continue
        seen.append(label)
        nv = k.max_v + 1
        acc = (nv + 3) // 4 * 4
        tot = acc + k.max_a + 1 if k.max_a >= 0 else nv
        out.append('.p2align 6\n.amdhsa_kernel %s\n  .amdhsa_next_free_vgpr %d\n  .amdhsa_next_free_sgpr 102\n'
                   '  .amdhsa_accum_offset %d\n  .amdhsa_group_segment_fixed_size 0\n  .amdhsa_kernarg_size 88\n'
                   '  .amdhsa_user_sgpr_count 2\n  .amdhsa_user_sgpr_kernarg_segment_ptr 1\n'
                   '  .amdhsa_system_sgpr_workgroup_id_x 1\n.end_amdhsa_kernel' % (label, tot, acc))
        sys.stderr.write('%s: %d instrs, %d nops, v<=%d a<=%d s<=%d\n' % (label, k.n_ins, k.n_nops, k.max_v, k.max_a, k.max_s))
    return '\n'.join(out) + '\n'


def kernel_A(stamps=False):
    k = Kernel('A'); k.stamps = stamps
    P.prologue(k, 256, 'L_end_A', [P.ARG[n] for n in ('x', 'wqkv', 'ws')])
    P.stamp(k, 0)
    P.phaseA(k)
    P.stamp(k, 5)
    k.wait_vm(0)
    P.stamp(k, 6)
    k.label('L_end_A')
    k('s_endpgm')
    return ('phaseA_kernel', k, 256, P.A_LDS_END)


OPT = {}


def persist(stamps=False):
    k = Kernel('P'); k.stamps = stamps; k.scramble = OPT.get('scramble', False); k.xcctest = OPT.get('xcctest', False)
    end = 'L_end_P'
    g, b = P.G, P.B
    SC = 'sc1'
    SCL = OPT.get('scl', 'sc1')
    vE, vF, vPA, vPB, vPC = 6, 8, 10, 11, 12
    sFA, sFB, sFC, sPA, sPB, sPC = 80, 81, 82, 83, 84, 85
    P.prologue(k, 256, end, [P.ARG[n] for n in ('x', 'wqkv', 'dbg', 'ws', 'wo', 'w1', 'w2', 'b1', 'b2', 'out')])
    P.stamp(k, 0)

    def areg(t):
        return 128 + 8 * t if t < 16 else 8 * (t - 16)

    def setup():
        P.G_map(k)
        P.B_setup(k)
        P.G_w_setup(k, 1, P.LDS_STG, P.STG_SZ)
        P.G_w_setup(k, 2, P.LDS_STG, P.STG_SZ)
        P.G_rot_setup(k, 1)
        t = 93
        AG = OPT.get('ag', 2)
        if P.M2:
            k('s_lshl_b32 s%d, s48, 11' % sFA)
        else:
            k('s_lshl_b32 s%d, s48, 2' % sFA)
            k('s_add_u32 s%d, s%d, s3' % (sFA, sFA))
            k('s_lshl_b32 s%d, s%d, 11' % (sFA, sFA))
        k('s_lshr_b32 s%d, s49, %d' % (t, AG))
        k('s_lshl_b32 s%d, s%d, 7' % (t, t))
        k('s_add_u32 s%d, s%d, s%d' % (sFA, sFA, t))
        k('s_and_b32 s%d, s49, %d' % (t, (1 << AG) - 1))
        k('s_lshl_b32 s%d, s%d, 2' % (t, t))
        k('s_add_u32 s%d, s%d, s%d' % (sFA, sFA, t))
        k('s_add_u32 s%d, s%d, 0x%x' % (sFA, sFA, P.FLAG_A))
        k('s_lshl_b32 s%d, s%d, 1' % (sPA, g.s_st))
        k('s_lshr_b32 s%d, s3, 1' % t)
        k('s_add_u32 s%d, s%d, s%d' % (sPA, sPA, t))
        k('s_lshl_b32 s%d, s%d, 11' % (sPA, sPA))
        k('s_add_u32 s%d, s%d, 0x%x' % (sPA, sPA, P.FLAG_A))
        k('v_lshrrev_b32 v%d, %d, v2' % (vPA, AG))
        k('v_lshlrev_b32 v%d, 7, v%d' % (vPA, vPA))
        k('v_and_b32 v%d, %d, v2' % (P.TMP, (1 << AG) - 1))
        k('v_lshl_add_u32 v%d, v%d, 2, v%d' % (vPA, P.TMP, vPA))
        k('s_lshl_b32 s%d, s%d, 12' % (sPB, g.s_dtC))
        k('s_lshl_b32 s%d, s%d, 1' % (sPC, sPB))
        k('s_add_u32 s%d, s%d, 0x%x' % (sPC, sPC, P.FLAG_C))
        k('s_add_u32 s%d, s%d, 0x%x' % (sPB, sPB, P.FLAG_B))
        k('s_lshl_b32 s%d, s%d, 5' % (sFB, g.s_st))
        k('s_add_u32 s%d, s%d, s3' % (sFB, sFB))
        k('s_lshl_b32 s%d, s%d, 2' % (sFB, sFB))
        k('s_add_u32 s%d, s%d, s%d' % (sFB, sFB, sPB))
        k('s_lshl_b32 s%d, s3, 10' % t)
        k('s_add_u32 s%d, s%d, s%d' % (sPB, sPB, t))
        k('v_bfe_u32 v%d, v1, 2, 3' % vPB)
        k('v_min_u32 v%d, 6, v%d' % (vPC, vPB))
        k('v_and_b32 v%d, 3, v1' % P.TMP)
        k('v_lshlrev_b32 v%d, 2, v%d' % (P.TMP, P.TMP))
        k('v_lshl_add_u32 v%d, v%d, 7, v%d' % (vPB, vPB, P.TMP))
        k('v_lshl_add_u32 v%d, v%d, 7, v%d' % (vPC, vPC, P.TMP))
        k('s_lshl_b32 s%d, s%d, 5' % (sFC, g.s_ft))
        k('s_add_u32 s%d, s%d, s3' % (sFC, sFC))
        k('s_lshl_b32 s%d, s%d, 2' % (sFC, sFC))
        k('s_add_u32 s%d, s%d, s%d' % (sFC, sFC, sPC))
        k('s_mul_i32 s%d, s3, 896' % t)
        k('s_add_u32 s%d, s%d, s%d' % (sPC, sPC, t))
        k('v_mov_b32 v%d, 0' % (vF + 1))

    hooksA = {
        'A_pre': lambda: P.epoch_publish(k, vE),
        'A_after_issue': setup,
        'A_k%d' % OPT.get('wk', 8): lambda: (P.epoch_load(k, vE), P.W1_warm(k, 235) if OPT.get('w1w', True) else None),
        'A_e1': lambda: P.B_wo_dma(k) if OPT.get('wo_e1', False) else None,
    }
    (a2 if P.M2 else P).phaseA(k, SC, hooksA)
    P.stamp(k, 5)
    if not OPT.get('wo_e1', False):
        P.B_wo_dma(k)
    k.bg(OPT.get('wo_pre', 14))
    P.epoch_get(k, vE)
    k.wait_tag('ost')
    P.flag_store(k, vF, sFA)
    P.stamp(k, 6)
    k.bg_flush()
    notag = k.newlabel('Lnotag')
    k('s_cmp_lt_u32 s%d, 99' % g.s_st)
    k.branch_fwd('s_cbranch_scc1', notag)
    if OPT.get('agent', True):
        P.agent(k)
    else:
        k.wait_vm(0)
    k('s_branch %s' % end)
    k.label(notag)
    P.B_xinit(k)
    P.G_rot_setup(k, 2)
    if P.ST14:
        P.B_st14_setup(k)
    N1 = OPT.get('n1', 10)
    N2 = OPT.get('n2', 8)
    NP = OPT.get('np', 4)
    P.G_w_dma(k, 1, 0, NP, 8)
    k.wait_tag('wo')
    k.barrier()
    P.stamp(k, 7)
    P.G_w_dma(k, 1, NP, N1 - NP, 8 + NP, bg=True)
    P.B_wo_read(k, 0)
    k.bg_flush()
    k.wait_lg(0)
    k.barrier()
    P.stamp(k, 8)
    P.flag_poll(k, vF, vPA, sPA)
    P.stamp(k, 10)

    N3 = OPT.get('n3', 8)

    def after_of():
        for t in range(N1):
            P.G_w_read(k, 1, t, 8 + t, areg(t))
        P.G_w_dma(k, 1, N1, N2, 8, bg=True)
        P.B_xinit_finish(k)

    def before_poll():
        P.G_w_dma(k, 1, N1 + N2, N3, 0)

    P.B_main(k, 0, 0, SC, {'B_after_of': after_of, 'B_before_poll': before_poll})
    P.stamp(k, 14)
    for t in range(N1, N1 + N2):
        P.G_w_read(k, 1, t, 8 + t - N1, areg(t))
    for t in range(N1 + N2, N1 + N2 + N3):
        P.G_w_read(k, 1, t, t - N1 - N2, areg(t))
    k.wait_tag('hst')
    P.flag_store(k, vF, sFB)
    P.stamp(k, 15)
    R1 = N1 + N2 + N3
    M1 = OPT.get('m1', 6)
    assert 6 + 32 - R1 + M1 <= 18
    P.G_w_dma(k, 1, R1, 32 - R1, 6)
    P.G_w_dma(k, 2, 0, M1, 18 - M1)
    cd2.setup(k)
    P.flag_poll(k, vF, vPB, sPB)
    P.stamp(k, 16)
    UP = OPT.get('up', 8)
    for n in range(UP):
        cd2.a_load(k, n, SCL)
    for f in cd2.c_init_ops(k, 0):
        f()
    for t in range(R1, 32):
        P.G_w_read(k, 1, t, 6 + t - R1, areg(t))
    k('v_mov_b32 v%d, v%d' % (vF + 1, g.vCl))
    assert M1 == 6

    def w2slot(j):
        return 12 + j if j < 6 else (j if j < 12 else w2slot(j - 12))
    at = {}
    q = []

    def add(s_, *fs):
        at.setdefault(s_, []).extend(fs)

    def spread(s0, ops, per):
        for i, f in enumerate(ops):
            add(s0 + i // per, f)
    add(OPT.get('tb', 16), k.barrier)
    S2 = OPT.get('s2', 10)
    for j in range(6, 12):
        add(S2 + j - 6, lambda j=j: P.G_w_dma(k, 2, j, 1, w2slot(j)))
    spread(20, cd2.c_init_ops(k, 1), 4)
    spread(32, cd2.c_writes(k, 0), 3)
    add(34, lambda: k.wait_lg_tag('cw'), k.barrier, *cd2.c_reads(k, 0))
    EP = OPT.get('ep', 16)
    fin = cd2.c_final_ops(k, 0, SC, False)
    spread(36, fin, EP)
    e0 = 36 + (len(fin) - 1) // EP
    add(e0 + OPT.get('f0', 4), lambda: k.wait_tag('ust0'), lambda: P.flag_store(k, vF, sFC), lambda: P.stamp(k, 21))
    for j in range(12):
        add(e0 - 2 + j // 2 if j // 2 + e0 - 2 >= 32 + j else 32 + j, lambda j=j: P.G_w_read(k, 2, j, w2slot(j), areg(j)))
    WA, WB, NA = OPT.get('wa', 44), OPT.get('wb', 64), OPT.get('na', 8)
    for j in range(12, 28):
        sd = WA + (j - 12) if j < 12 + NA else WB + (j - 12 - NA)
        add(sd, lambda j=j: P.G_w_dma(k, 2, j, 1, w2slot(j)))
        add(max(sd + OPT.get('wl', 8), 32 + j), lambda j=j: P.G_w_read(k, 2, j, w2slot(j), areg(j)))
    spread(e0 + 1, cd2.d_init_ops(k, 0), 6)
    PA, CA = OPT.get('pa', 50), OPT.get('ca', 54)
    add(PA, lambda: cd2.probe(k, 248, vPC, sPC, 0))
    add(CA, lambda: cd2.probe_check(k, 248, vPC, sPC, 0))
    lim = {0: 64, CA + 1: 92}

    TL = OPT.get('tl', 4)

    def tail(n0, writes1):
        for n in range(n0, n0 + TL):
            cd2.mfma(k, n, 1, areg)
        per = -(-len(writes1) // max(TL - 1, 1))
        for i, n in enumerate(range(n0, n0 + TL)):
            cd2.mfma(k, n, 0, areg)
            if i:
                for f in writes1[per * (i - 1): per * i]:
                    f()

    def c1_epi():
        P.stamp(k, 20)
        for f in cd2.c_writes(k, 1)[4:]:
            f()
        k.wait_lg(0)
        k.barrier()
        for f in cd2.c_reads(k, 1) + cd2.c_final_ops(k, 1, SC, True):
            f()
        k('s_add_u32 s%d, s%d, 4096' % (sFC, sFC))
        k('s_add_u32 s%d, s%d, 4096' % (sPC, sPC))
    add(64 + OPT.get('f1', 4), lambda: k.wait_tag('ust1'), lambda: P.flag_store(k, vF, sFC), lambda: P.stamp(k, 22))
    spread(70, cd2.d_init_ops(k, 1), 6)
    PB, CB = OPT.get('pb', 76), OPT.get('cb', 80)
    add(PB, lambda: cd2.probe(k, 248, vPC, sPC, 0))
    add(CB, lambda: cd2.probe_check(k, 248, vPC, sPC, 0), lambda: P.stamp(k, 24))
    lim[CB + 1] = 120
    spread(92, cd2.d_writes(k, 0), 6)
    add(99, lambda: k.wait_lg(0), k.barrier, *cd2.d_reads(k, 0))
    spread(101, cd2.d_final_ops(k, 0, False), 6)
    nxt, cur = UP, 64
    late = []
    for n in range(120):
        cur = lim.get(n, cur)
        for _ in range(OPT.get('lr', 2) if n > CB else 2):
            if nxt < cur and nxt < n + (OPT.get('lb', 10) if n > CB else OPT.get('la', 10)):
                cd2.a_load(k, nxt, SCL)
                nxt += 1
        fs = at.get(n, [])
        if 64 - TL <= n < 64 or n >= 120 - TL:
            for f in fs:
                assert n >= 120 - TL or True
                late.append(f)
            if n == 63:
                tail(64 - TL, cd2.c_writes(k, 1)[:4])
                for f in late:
                    f()
                late = []
                c1_epi()
            if n == 119:
                tail(120 - TL, cd2.d_writes(k, 1)[:16])
                for f in late:
                    f()
            continue
        cd2.mfma(k, n, 0, areg)
        cd2.mfma(k, n, 1, areg)
        for f in fs:
            f()
        if stamps == 'jit' and n % 6 == 3:
            P.stamp(k, 100 + n)
        if n in (0, 31, 64, 91):
            P.stamp(k, {0: 17, 31: 18, 64: 25, 91: 26}[n])
    P.stamp(k, 28)
    for f in cd2.d_writes(k, 1)[16:]:
        f()
    k.wait_lg(0)
    k.barrier()
    for f in cd2.d_reads(k, 1) + cd2.d_final_ops(k, 1, True):
        f()
    P.stamp(k, 29)
    if stamps:
        k.wait_vm(0)
        P.stamp(k, 30)
    k.label(end)
    k('s_endpgm')
    return (NAME + '_kernel', k, 256, P.LDS_END)


if __name__ == '__main__':
    which = sys.argv[1] if len(sys.argv) > 1 else 'p'
    outp = sys.argv[2] if len(sys.argv) > 2 else os.path.join(os.path.dirname(os.path.abspath(__file__)), '..', NAME + '.s')
    for o in sys.argv[3:]:
        kk, vv = o.split('=')
        OPT[kk] = eval(vv)
    P.OUT_SC = OPT.get('osc', ''); P.ROT = OPT.get('rot', True); P.POLL_DEPTH = OPT.get('pd', 3); P.POLL_GAP = OPT.get('pg', 3); P.POLL_SLEEP = OPT.get('ps', 0); P.ST_SLEEP = OPT.get('sts', 0); P.AGENT_DEPTH = OPT.get('ad', 4); P.START_ORDER = OPT.get('so', '0w|1'); P.WO_LATE = OPT.get('wol', True)
    P.STAMP_SET = OPT.get('ss', (0, 6, 16, 18, 20, 21, 22, 25, 24, 26, 28, 30))
    P.DBL = OPT.get('dbl', 0)
    cd2.SLEEP = OPT.get('sl', 0)
    P.WARM0 = OPT.get('w0', True)
    P.M2 = OPT.get('m2', False)
    P.WROW = OPT.get('wrow', 64)
    P.ST14 = OPT.get('st14', False)
    cd2.OSC = OPT.get('osc2', ['', ''])
    if which == 'p':
        ks = [persist()]
    elif which == 'p_jit':
        P.JIT_SEED = OPT.get('seed', 0)
        ks = [persist('jit')]
    elif which == 'p_dbg':
        ks = [persist('dbg')]
    elif which == 'p_st':
        P.ARG['ws'] = (P.SRD_WS, 80, 0x1000000)
        ks = [persist(True)]
    open(outp, 'w').write(wrap(ks))
```

```python
import struct
from dsl import Kernel, vr, ar, sr, classify

S, D, H, DH, F = 2048, 448, 16, 28, 1792

OF_OFF = 0x000000
HH_OFF = 0x200000
U_OFF = 0x3C0000
STAT_OFF = 0x548000
FLAG_OFF = 0x5C8000
WS_SIZE = 0x610000
OOB = 0x40000000

SRD_X, SRD_WQKV, SRD_WO, SRD_W1, SRD_W2, SRD_B1, SRD_B2, SRD_OUT, SRD_WS, SRD_DBG = 8, 12, 16, 20, 24, 28, 32, 36, 40, 44
SRD_A = 96
S_WG, S_WAVE = 2, 3
S_EPOCH = 4
S_SPIN = 6
S_ONES = 5
S_T = 86
V_LANE, V_T16, V_G, V_L16 = 1, 2, 3, 4


def f32(x):
    return '0x%08x' % struct.unpack('<I', struct.pack('<f', x))[0]


def srd(base):
    return sr(base, 4)


def prologue(k, nwg, end_label, need):
    k('s_cmp_ge_u32 s2, %d' % nwg)
    k('s_cbranch_scc1 %s' % end_label)
    if getattr(k, 'xcctest', False):
        k('s_getreg_b32 s3, hwreg(HW_REG_XCC_ID)')
        k('s_and_b32 s3, s3, 15')
        k('s_and_b32 s4, s2, 7')
        k('s_cmp_eq_u32 s3, s4')
        k('s_cbranch_scc1 Lxcc_ok')
        for _ in range(8):
            k('s_sleep 127')
        k.raw('Lxcc_ok:')
    if getattr(k, 'scramble', False):
        k('s_and_b32 s3, s2, 7')
        k('s_lshl_b32 s3, s3, 5')
        k('s_lshr_b32 s2, s2, 3')
        k('s_or_b32 s2, s2, s3')
    for base, off, size in need:
        k('s_load_dwordx2 %s, s[0:1], %d' % (sr(base, 2), off))
    k('v_lshrrev_b32 v1, 6, v0')
    k('v_readfirstlane_b32 s3, v1')
    k('v_and_b32 v1, 63, v0')
    k('v_and_b32 v2, 15, v0')
    k('v_lshrrev_b32 v3, 4, v1')
    k('v_lshlrev_b32 v4, 4, v1')
    for base, off, size in need:
        k('s_mov_b32 s%d, 0x%x' % (base + 2, size))
        k('s_mov_b32 s%d, 0x00020000' % (base + 3))
    k('s_mov_b32 s%d, 0x3f803f80' % S_ONES)
    k('s_mov_b32 s%d, 0x200000' % S_SPIN)
    k.end_label = end_label


ARG = dict(x=(SRD_X, 0, S * D * 2), wqkv=(SRD_WQKV, 8, D * 3 * D * 2), wo=(SRD_WO, 16, D * D * 2),
           w1=(SRD_W1, 32, S * F * 2), b1=(SRD_B1, 40, F * 2), w2=(SRD_W2, 48, F * S * 2), b2=(SRD_B2, 56, S * 2),
           out=(SRD_OUT, 64, S * D * 2), dbg=(SRD_DBG, 72, 256), ws=(SRD_WS, 80, WS_SIZE))


def xgroup_reduce(k, regs, tmp, op='v_add_f32'):
    for swap in ('v_permlane32_swap_b32', 'v_permlane16_swap_b32'):
        for r, t in zip(regs, tmp):
            k('v_mov_b32 v%d, v%d' % (t, r))
        for r, t in zip(regs, tmp):
            k('%s v%d, v%d' % (swap, r, t))
        for r, t in zip(regs, tmp):
            k('%s v%d, v%d, v%d' % (op, r, r, t))


A_LDS_CS = 0
A_LDS_ST = 512
A_LDS_KV = 2048
A_LDS_W = 12288
A_LDS_X = 61440
A_XSLOT = [2, 1, 0, 3]
A_LDS_END = A_LDS_X + 4 * 18432
LDS_STG = 12288
STG_SZ = 36864
NSLOT = 18
LDS_END = 163840
LDS_WO = 106496
TMP = 219


def xslot(grp):
    return A_XSLOT.index(grp % 4) * 18432


def phaseA(k, sc1='', hooks=None):
    hooks = hooks or {}
    XR = 16
    ACC = 136
    WF = 88
    ONES = 40
    SQ, SM = 48, 60
    vXl, vXu, vXh, vW, vA0, vA1, vH1, vH2 = 120, 121, 122, 123, 124, 125, 126, 127
    vRe, vRo, vHe, vHo = 128, 129, 130, 131
    vT = 237
    BP, BC, BPA = 240, 244, 248
    s_rb, s_head, s_t0, s_m0w, s_m0x, s_tmp = 48, 49, 50, 51, 52, 53
    s_hm = 54
    s_m0h = 7
    s_hv = S_HV
    s_o0, s_o1 = 62, 63

    def hook(name):
        if name in hooks:
            hooks[name]()

    def xreg(j, blk):
        return XR + (j % 2) * 12 + blk * 4

    def acc(blk, nbi):
        return ACC + blk * 24 + nbi * 4
    H1, H2 = ACC + 48, ACC + 52

    k.c('---- phase A setup')
    k('s_bfe_u32 s%d, s2, 0x20001' % s_rb)
    k('s_lshl_b32 s%d, s%d, 2' % (s_rb, s_rb))
    k('s_lshr_b32 s%d, s2, 6' % s_tmp)
    k('s_add_u32 s%d, s%d, s%d' % (s_rb, s_rb, s_tmp))
    k('s_bfe_u32 s%d, s2, 0x30003' % s_head)
    k('s_and_b32 s%d, s2, 1' % s_tmp)
    k('s_lshl_b32 s%d, s%d, 3' % (s_tmp, s_tmp))
    k('s_add_u32 s%d, s%d, s%d' % (s_head, s_head, s_tmp))
    k('v_lshrrev_b32 v%d, 2, v1' % vT)
    k('v_mul_u32_u24 v%d, 2688, v%d' % (vW, vT))
    k('v_lshrrev_b32 v%d, 5, v1' % vT)
    k('v_lshlrev_b32 v%d, 1, v%d' % (vT, vT))
    k('v_and_b32 v%d, 3, v1' % (vT + 1))
    k('v_xor_b32 v%d, v%d, v%d' % (vT, vT, vT + 1))
    k('v_lshl_add_u32 v%d, v%d, 4, v%d' % (vW, vT, vW))
    k('s_mul_i32 s%d, s%d, 56' % (s_tmp, s_head))
    k('s_min_u32 s%d, s%d, 832' % (s_tmp, s_tmp))
    k('s_mul_i32 s%d, s3, %d' % (s_m0w, 16 * 2688))
    k('s_add_u32 s%d, s%d, s%d' % (s_tmp, s_tmp, s_m0w))
    k('v_add_u32 v%d, s%d, v%d' % (vW, s_tmp, vW))
    k('s_lshr_b32 s%d, s3, 1' % s_tmp)
    k('s_mul_i32 s%d, s%d, 6144' % (s_m0w, s_tmp))
    k('s_and_b32 s%d, s3, 1' % s_tmp)
    k('s_lshl_b32 s%d, s%d, 10' % (s_tmp, s_tmp))
    k('s_add_u32 s%d, s%d, s%d' % (s_m0w, s_m0w, s_tmp))
    k('v_lshrrev_b32 v%d, 3, v1' % vT)
    k('v_mul_u32_u24 v%d, 896, v%d' % (vXh, vT))
    k('v_and_b32 v%d, 7, v1' % vT)
    k('v_xor_b32 v%d, v%d, v3' % (vT, vT))
    k('v_lshl_add_u32 v%d, v%d, 4, v%d' % (vXl, vT, vXh))
    k('s_lshl_b32 s%d, s%d, 7' % (s_t0, s_rb))
    k('s_lshl_b32 s%d, s3, 5' % s_tmp)
    k('s_add_u32 s%d, s%d, s%d' % (s_tmp, s_tmp, s_t0))
    k('s_mul_i32 s%d, s%d, 896' % (s_tmp, s_tmp))
    k('v_xor_b32 v%d, 64, v%d' % (vXu, vXl))
    k('v_add_u32 v%d, s%d, v%d' % (vXl, s_tmp, vXl))
    k('s_add_u32 s%d, s%d, %d' % (s_tmp, s_tmp, 8 * 896))
    k('v_add_u32 v%d, s%d, v%d' % (vXu, s_tmp, vXu))
    k('s_lshl_b32 s%d, s3, 1' % s_tmp)
    k('v_xor_b32 v%d, s%d, v%d' % (vT, s_tmp, vT))
    k('v_lshl_add_u32 v%d, v%d, 4, v%d' % (vXh, vT, vXh))
    k('s_lshl_b32 s%d, s3, 2' % s_tmp)
    k('s_add_u32 s%d, s%d, s%d' % (s_tmp, s_tmp, s_t0))
    k('s_sub_u32 s%d, s%d, 16' % (s_tmp, s_tmp))
    k('s_mul_i32 s%d, s%d, 896' % (s_tmp, s_tmp))
    k('s_cmp_eq_u32 s%d, 0' % s_rb)
    k('s_cselect_b32 s%d, 0x%x, s%d' % (s_tmp, OOB, s_tmp))
    k('v_add_u32 v%d, s%d, v%d' % (vXh, s_tmp, vXh))
    k('s_lshl_b32 s%d, s3, 12' % s_m0x)
    k('s_add_u32 s%d, s%d, %d' % (s_m0x, s_m0x, A_LDS_X + 2048))
    k('s_lshl_b32 s%d, s3, 9' % s_m0h)
    k('s_cmp_eq_u32 s3, 0')
    k('s_cselect_b32 s%d, 0xffffff00, -1' % s_hm)
    k('s_mov_b32 s%d, 0' % (s_hm + 1))

    def dma_group(grp, bg=False):
        tag = 'G%d' % grp
        sd = B.s_dma

        def w_(p):
            k('s_add_u32 m0, s%d, %d' % (s_m0w, A_LDS_W + (grp % 4) * 12288 + p * 2048))
            k('s_mov_b32 s%d, %d' % (sd, grp * 64 * 2688 + p * 896))
            k('buffer_load_dwordx4 v%d, %s, s%d offen lds' % (vW, srd(SRD_WQKV), sd), tag=tag)

        def x_(i):
            k('s_add_u32 m0, s%d, %d' % (s_m0x, xslot(grp) + i * 1024))
            k('s_mov_b32 s%d, %d' % (sd, grp * 128 + (i >> 1) * 16 * 896))
            k('buffer_load_dwordx4 v%d, %s, s%d offen lds' % (vXu if i & 1 else vXl, srd(SRD_X), sd), tag=tag)

        def h_():
            k('s_add_u32 m0, s%d, %d' % (s_m0h, A_LDS_X + xslot(grp)))
            k('s_mov_b32 s%d, %d' % (sd, grp * 128))
            k('s_mov_b64 exec, %s' % sr(s_hm, 2))
            k('buffer_load_dwordx4 v%d, %s, s%d offen lds' % (vXh, srd(SRD_X), sd), tag=tag)
            k('s_mov_b64 exec, -1')
        fs = [lambda p=p: w_(p) for p in range(3)] + [lambda i=i: x_(i) for i in range(4)] + [h_]
        for f in fs:
            if bg:
                k.bg_push(f)
            else:
                f()

    def warm():
        k('s_bfe_u32 s%d, s2, 0x30003' % s_tmp)
        k('s_add_u32 s%d, s%d, 1' % (S_T, s_tmp))
        k('s_lshr_b32 s%d, s%d, 1' % (S_T, S_T))
        k('s_lshr_b32 s%d, s2, 6' % (S_T + 1))
        k('s_mul_i32 s%d, s%d, 5' % (S_T + 1, S_T + 1))
        k('s_add_u32 s%d, s%d, s%d' % (S_T, S_T, S_T + 1))
        k('s_lshl_b32 s%d, s%d, 2' % (S_T, S_T))
        k('s_add_u32 s%d, s%d, s3' % (s_tmp, S_T))
        k('s_mov_b32 s%d, s%d' % (S_WR, s_tmp))
        k('s_mov_b32 s%d, 0x2a54' % S_T)
        k('s_bitcmp1_b32 s%d, s%d' % (S_T, s_head))
        k('s_cselect_b32 s%d, 0x%x, %s' % (s_hv, OOB, '0' if WARM0 else '0x%x' % OOB))
        NL = -(-(448 - WROW) * 12 // 80)
        k('s_mul_i32 s%d, s%d, %d' % (S_T, s_tmp, NL))
        for rep in range(2 if NL > 64 else 1):
            k('v_add_u32 v%d, s%d, v1' % (vT, S_T))
            if rep:
                k('v_add_u32 v%d, 64, v%d' % (vT, vT))
            k('v_mul_u32_u24 v%d, 43691, v%d' % (vT + 1, vT))
            k('v_lshrrev_b32 v%d, 19, v%d' % (vT + 1, vT + 1))
            k('v_mul_u32_u24 v%d, 12, v%d' % (vT + 2, vT + 1))
            k('v_sub_u32 v%d, v%d, v%d' % (vT + 2, vT, vT + 2))
            k('v_lshrrev_b32 v%d, 2, v%d' % (vT + 2, vT + 2))
            k('v_mul_u32_u24 v%d, 896, v%d' % (vT + 2, vT + 2))
            k('v_mul_u32_u24 v%d, 2688, v%d' % (vT + 1, vT + 1))
            k('v_and_b32 v%d, 3, v%d' % (vT, vT))
            k('v_lshlrev_b32 v%d, 7, v%d' % (vT, vT))
            k('v_add3_u32 v%d, v%d, v%d, v%d' % (vT, vT, vT + 1, vT + 2))
            k('v_add_u32 v%d, s%d, v%d' % (vT, s_hv, vT))
            k('s_and_b32 s%d, s2, 1' % (S_T + 1))
            k('s_mul_i32 s%d, s%d, 384' % (S_T + 1, S_T + 1))
            k('s_add_u32 s%d, s%d, %d' % (S_T + 1, S_T + 1, WROW * 2688))
            nl = min(NL - 64 * rep, 64)
            m = (1 << nl) - 1
            k('s_mov_b32 exec_lo, 0x%x' % (m & 0xffffffff))
            k('s_mov_b32 exec_hi, 0x%x' % (m >> 32))
            k('buffer_load_dword v%d, v%d, %s, s%d offen' % (232 - rep, vT, srd(SRD_WQKV), S_T + 1))
            k('s_mov_b64 exec, -1')
        k('v_lshlrev_b32 v%d, 7, v1' % vT)
        k('v_add_u32 v%d, s%d, v%d' % (vT + 1, s_hv, vT))
        k('s_mul_i32 s%d, s%d, %d' % (S_T, s_tmp, 47 * 128))
        k('s_bfe_u32 s%d, s2, 0x20001' % (S_T + 1))
        k('s_mul_i32 s%d, s%d, %d' % (S_T + 1, S_T + 1, 512 * 896))
        k('s_add_u32 s%d, s%d, s%d' % (S_T, S_T, S_T + 1))
        k('s_max_u32 s%d, s%d, %d' % (S_T, S_T, 16 * 896))
        k('s_sub_u32 s%d, s%d, %d' % (S_T, S_T, 16 * 896))
        k('s_mov_b32 exec_hi, 0x7fff')
        k('buffer_load_dword v233, v%d, %s, s%d offen' % (vT + 1, srd(SRD_X), S_T))
        k('s_getpc_b64 %s' % sr(S_T, 2))
        k.raw('Lpc_%s:' % k.name)
        k('s_mul_i32 s%d, s%d, 384' % (s_tmp, s_tmp))
        k('v_add_u32 v%d, s%d, v%d' % (vT, s_tmp, vT))
        k('v_min_u32 v%d, %s-Lpc_%s, v%d' % (vT, k.end_label, k.name, vT))
        k('s_mov_b64 exec, 7')
        k('global_load_dword v236, v%d, %s' % (vT, sr(S_T, 2)))
        k('s_mov_b64 exec, -1')

    hook('A_pre')
    pre, post = START_ORDER.split('|')
    for ch in pre:
        warm() if ch == 'w' else dma_group(int(ch))
    k('v_mul_u32_u24 v%d, 18432, v3' % vT)
    k('v_lshl_add_u32 v%d, v2, 3, v%d' % (vT, vT))
    k('v_mov_b32 v%d, s%d' % (vT + 1, S_ONES))
    k('v_add_u32 v%d, %d, v%d' % (vT, A_LDS_X, vT))
    k('ds_write2_b32 v%d, v%d, v%d offset0:0 offset1:1' % (vT, vT + 1, vT + 1))
    hook('A_after_issue')

    k('v_lshlrev_b32 v%d, 9, v3' % vA0)
    k('v_bfe_u32 v%d, v1, 2, 2' % vT)
    k('v_lshl_add_u32 v%d, v%d, 6, v%d' % (vA0, vT, vA0))
    k('v_and_b32 v%d, 3, v1' % vT)
    k('v_lshl_add_u32 v%d, v%d, 3, v%d' % (vA0, vT, vA0))
    k('v_and_b32 v%d, 1, v3' % vT)
    k('v_lshlrev_b32 v%d, 5, v%d' % (vT, vT))
    k('v_add_u32 v%d, v%d, v%d' % (vA0, vA0, vT))
    k('v_add_u32 v%d, %d, v%d' % (vA0, A_LDS_W, vA0))
    k('v_xor_b32 v%d, 32, v%d' % (vA1, vA0))
    k('s_and_b32 s%d, s3, 1' % s_tmp)
    k('s_lshl_b32 s%d, s%d, 5' % (s_tmp, s_tmp))
    k('v_xor_b32 v%d, s%d, v%d' % (vH2, s_tmp, vA0))
    k('s_lshr_b32 s%d, s3, 1' % s_tmp)
    k('s_lshl_b32 s%d, s%d, 11' % (s_tmp, s_tmp))
    k('s_add_u32 s%d, s%d, 2048' % (s_tmp, s_tmp))
    k('v_add_u32 v%d, s%d, v%d' % (vH1, s_tmp, vH2))
    k('v_lshrrev_b32 v%d, 1, v2' % vT)
    k('v_xor_b32 v%d, v%d, v3' % (vT, vT))
    k('v_lshlrev_b32 v%d, 4, v%d' % (vT, vT))
    k('v_lshl_add_u32 v%d, v2, 7, v%d' % (vT, vT))
    k('v_add_u32 v%d, %d, v%d' % (vHe, A_LDS_X, vT))
    k('v_xor_b32 v%d, 64, v%d' % (vHo, vHe))
    k('v_add_u32 v%d, s%d, v%d' % (vRe, s_m0x, vT))
    k('v_xor_b32 v%d, 64, v%d' % (vRo, vRe))
    k('v_lshlrev_b32 v%d, 2, v3' % vT)
    k('v_sub_u32 v%d, v2, v%d' % (vT, vT))
    k('v_mov_b32 v%d, %s' % (vT + 2, f32(-1e30)))
    for which, base in ((16, BP), (0, BC)):
        for r in range(4):
            k('v_add_u32 v%d, %d, v%d' % (vT + 1, which - r, vT))
            k('v_and_b32 v%d, 0xfffffff1, v%d' % (vT + 1, vT + 1))
            k('v_cmp_eq_u32 vcc, 0, v%d' % (vT + 1))
            k('v_cndmask_b32 v%d, v%d, 0, vcc' % (base + r, vT + 2))
    k('s_or_b32 s%d, s%d, s3' % (s_tmp, s_rb))
    k('s_cmp_eq_u32 s%d, 0' % s_tmp)
    k('s_cselect_b64 vcc, -1, 0')
    for r in range(4):
        k('v_cndmask_b32 v%d, v%d, v%d, vcc' % (BPA + r, BP + r, vT + 2))
    for i in range(4):
        k('v_mov_b32 v%d, s%d' % (ONES + i, S_ONES))

    s_m = 88
    for i, mk in enumerate((0x22222222, 0x44444444, 0x88888888)):
        k('s_mov_b32 s%d, 0x%x' % (s_m + 2 * i, mk))
        k('s_mov_b32 s%d, 0x%x' % (s_m + 2 * i + 1, mk))
    vAd = 72
    k('v_lshlrev_b32 v%d, 4, v3' % vAd)
    k('s_lshl_b32 s%d, s3, 6' % s_tmp)
    k('v_add_u32 v%d, s%d, v%d' % (vAd + 1, s_tmp, vAd))
    k('s_and_b32 s%d, s%d, 64' % (s_tmp, s_tmp))
    k('v_add_u32 v%d, s%d, v%d' % (vAd + 2, s_tmp, vAd))
    k('s_mul_i32 s%d, s3, 384' % s_tmp)
    k('v_lshl_add_u32 v%d, v2, 2, s%d' % (vAd + 3, s_tmp))
    k('v_add_u32 v%d, s%d, v%d' % (vAd + 4, s_tmp, vAd))
    vK, vV = 80, 81
    k('s_and_b32 s%d, s3, 1' % s_tmp)
    k('s_lshl_b32 s%d, s%d, 3' % (s_tmp, s_tmp))
    k('v_add_u32 v%d, s%d, v4' % (vK, s_tmp))
    k('v_lshrrev_b32 v%d, 2, v2' % vV)
    k('v_lshlrev_b32 v%d, 8, v%d' % (vV, vV))
    k('v_lshl_add_u32 v%d, v3, 6, v%d' % (vV, vV))
    k('v_and_b32 v%d, 3, v2' % (vV + 1))
    k('v_lshl_add_u32 v%d, v%d, 1, v%d' % (vV, vV + 1, vV))
    k('v_add_u32 v%d, s%d, v%d' % (vV, s_tmp, vV))
    k('v_add_u32 v%d, 1024, v%d' % (vV, vV))
    k('s_cmp_lt_u32 s3, 2')
    k('s_cselect_b64 vcc, -1, 0')
    k('s_cselect_b32 s%d, 2, 16' % s_tmp)
    k('v_cndmask_b32 v%d, v%d, v%d, vcc' % (vK, vV, vK))
    k('v_add_u32 v%d, s%d, v%d' % (vK + 1, s_tmp, vK))
    k('v_add_u32 v%d, s%d, v%d' % (vK + 2, s_tmp, vK + 1))
    k('v_add_u32 v%d, s%d, v%d' % (vK + 3, s_tmp, vK + 2))
    k('v_lshlrev_b32 v%d, 2, v2' % (vAd + 5))
    k('s_lshl_b32 s%d, s3, 11' % s_tmp)
    k('v_add_u32 v%d, s%d, v4' % (vAd + 6, s_tmp))

    k('s_lshl_b32 s%d, s%d, 3' % (s_o0, s_rb))
    k('s_lshl_b32 s%d, s3, 1' % s_o1)
    k('s_add_u32 s%d, s%d, s%d' % (s_o0, s_o0, s_o1))
    k('s_lshl_b32 s%d, s%d, 4' % (s_o0, s_o0))
    k('s_add_u32 s%d, s%d, s%d' % (s_o0, s_o0, s_head))
    k('s_lshl_b32 s%d, s%d, 10' % (s_o0, s_o0))
    if OF_OFF:
        k('s_add_u32 s%d, s%d, 0x%x' % (s_o0, s_o0, OF_OFF))
    k('s_add_u32 s%d, s%d, 16384' % (s_o1, s_o0))

    frag_addr = [(vA0, 0), (vA1, 0), (vA0, 2048), (vA1, 2048), (vA0, 4096), (vA1, 4096), (vH1, 0), (vH2, 0)]

    def read_frag(f, j, h=None):
        va, off = frag_addr[f]
        o = (j % 8) * 6144 + off
        for hh in ((0, 1) if h is None else (h,)):
            k('ds_read_b64_tr_b16 %s, v%d offset:%d' % (vr(WF + 4 * f + 2 * hh, 2), va, o + 256 * hh))

    def read_x(j, blk=None):
        o = xslot(j // 2)
        for b_ in (range(3) if blk is None else (blk,)):
            if b_ < 2:
                k('ds_read_b128 %s, v%d offset:%d' % (vr(xreg(j, b_), 4), vRo if j & 1 else vRe, o + 2048 * b_))
            else:
                k('ds_read_b128 %s, v%d offset:%d' % (vr(xreg(j, 2), 4), vHo if j & 1 else vHe, o))

    for ch in post:
        warm() if ch == 'w' else dma_group(int(ch))
    T = XR
    RR = 132
    RH = 84
    HC = 224
    pre_ops = []

    def rr(blk):
        return RR + 2 * blk if blk < 2 else RH

    def cs_write():
        k('s_mov_b32 exec_lo, 0x00010001')
        k('s_mov_b32 exec_hi, 0x00010001')
        k('ds_write_b128 v%d, %s offset:%d' % (vAd + 1, vr(H1, 4), A_LDS_CS + 128))
        k('ds_write_b128 v%d, %s offset:%d' % (vAd + 2, vr(H2, 4), A_LDS_CS))
        k('s_mov_b64 exec, -1')

    def st_write():
        k('s_mov_b32 exec_lo, 0x00f0000f')
        k('s_mov_b32 exec_hi, 0xf0000f00')
        for blk in range(3):
            k('ds_write2_b32 v%d, v%d, v%d offset0:%d offset1:%d' % (vAd + 3, rr(blk), rr(blk) + 1,
                                                                   A_LDS_ST // 4 + 32 * blk, A_LDS_ST // 4 + 32 * blk + 16))
        k('s_mov_b64 exec, -1')

    def op(txt):
        pre_ops.append(lambda: k(txt))
    for i in range(3):
        for blk in range(3):
            op('v_cndmask_b32 v%d, v%d, v%d, %s' % (SQ + 4 * blk, SQ + 4 * blk, SQ + 4 * blk + 1 + i, sr(s_m + 2 * i, 2)))
    for blk in range(3):
        op('v_mul_f32 v%d, %s, v%d' % (rr(blk) + 1, f32(1.0 / D), SM + 4 * blk))
    for blk in range(3):
        op('v_mul_f32 v%d, v%d, v%d' % (rr(blk), rr(blk) + 1, rr(blk) + 1))
    for blk in range(3):
        op('v_mul_f32 v%d, %s, v%d' % (SQ + 4 * blk, f32(1.0 / D), SQ + 4 * blk))
    pre_ops.append(cs_write)
    for blk in range(3):
        op('v_sub_f32 v%d, v%d, v%d' % (rr(blk), SQ + 4 * blk, rr(blk)))
    for blk in range(3):
        op('v_max_f32 v%d, 0, v%d' % (rr(blk), rr(blk)))
    for blk in range(3):
        op('v_add_f32 v%d, %s, v%d' % (rr(blk), f32(1e-5), rr(blk)))
    for blk in range(3):
        op('v_rsq_f32 v%d, v%d' % (rr(blk), rr(blk)))
    pre_ops.append(st_write)
    for r in range(4):
        op('v_mov_b32_dpp v%d, v%d row_newbcast:0 row_mask:0xf bank_mask:0xf' % (HC + r, H1 + r))
    for r in range(4):
        op('v_fma_f32 v%d, -v%d, v%d, v%d' % (HC + r, HC + r, RH + 1, H1 + r))

    def keep_masks():
        k('s_cmp_eq_u32 s%d, 15' % s_head)
        k('s_cselect_b32 s%d, 0xffff0000, -1' % s_m)
        k('s_mov_b32 s%d, -1' % (s_m + 1))
        k('s_mov_b32 s%d, -1' % (s_m + 2))
        k('s_cselect_b32 s%d, -1, 0xffff' % (s_m + 3))
    pre_ops.append(keep_masks)

    stamp(k, 1)
    k.wait_tag('G0')
    k.wait_lg(0)
    k.barrier()
    stamp(k, 2)
    read_x(0)
    for f in range(8):
        read_frag(f, 0)
    dma_group(2, bg=True)
    k.lg_slack = 6
    for j in range(14):
        k.c('kstep %d' % j)
        if j + 1 < 14 and (j + 1) % 2 == 0:
            k.bg_flush()
            k.wait_tag('G%d' % ((j + 1) // 2))
            k.barrier()
            if (j + 5) // 2 < 7:
                dma_group((j + 5) // 2, bg=True)
            hook('A_b%d' % j)
        mf = []
        for f in range(8):
            w = vr(WF + 4 * f, 4)
            if f < 6:
                for blk in range(2):
                    a = vr(acc(blk, f), 4)
                    x = vr(xreg(j, blk), 4)
                    c = '0' if j == 0 else a
                    if f < 4:
                        mf.append(('v_mfma_f32_16x16x32_bf16 %s, %s, %s, %s' % (a, w, x, c), f if blk else -1))
                    else:
                        mf.append(('v_mfma_f32_16x16x32_bf16 %s, %s, %s, %s' % (a, x, w, c), f if blk else -1))
            else:
                a = vr(H1 if f == 6 else H2, 4)
                c = '0' if j == 0 else a
                mf.append(('v_mfma_f32_16x16x32_bf16 %s, %s, %s, %s' % (a, w, vr(xreg(j, 2), 4), c), f))
        for f in range(EXP_NSTAT):
            x = vr(xreg(j, f % 3), 4)
            a = vr((SQ if f < 3 else SM) + 4 * (f % 3), 4)
            mf.append(('v_mfma_f32_16x16x32_bf16 %s, %s, %s, %s' % (a, x if f < 3 else vr(ONES, 4), x, '0' if j == 0 else a), -1))
        fill = []
        if j + 1 < 14:
            fill += [lambda i=i: read_x(j + 1, i) for i in range(3)]
        if j == 13:
            mf = mf[14:] + mf[12:14] + mf[4:12] + mf[0:4]
        for i, (txt, done) in enumerate(mf):
            k(txt)
            if j == 13 and i >= 8:
                for f_ in pre_ops[:3]:
                    f_()
                del pre_ops[:3]
            if done >= 0 and j + 1 < 14 and done < EXP_NFRAG:
                fill += [lambda f=done, h=h: read_frag(f, j + 1, h) for h in range(2)]
            if fill:
                fill.pop(0)()
            if i % 5 == 4:
                k.bg()
        for f_ in fill:
            f_()
        if j == 6:
            stamp(k, 3)

        hook('A_k%d' % j)

    k.lg_slack = 0
    k.c('---- phase A epilogue')
    stamp(k, 4)
    for f_ in pre_ops:
        f_()
    k.wait_lg(0)
    k.barrier()
    stamp(k, 40)
    hook('A_e1')
    CS = T + 32
    CSV = T + 48
    L2 = T + 16
    for blk in (1, 2, 0):
        k('ds_read_b32 v%d, v%d offset:%d' % (rr(blk), vAd + 3, A_LDS_ST + 128 * blk))
    for s_ in (2, 3):
        k('ds_read_b128 %s, v%d offset:%d' % (vr(CS + 4 * s_, 4), vAd, A_LDS_CS + 64 * s_))
    k('ds_read_b32 v%d, v%d offset:%d' % (CSV, vAd + 5, A_LDS_CS + 256))
    k('ds_read_b32 v%d, v%d offset:%d' % (CSV + 1, vAd + 5, A_LDS_CS + 320))
    for blk in (1, 0):
        k('ds_read_b128 %s, v%d offset:%d' % (vr(L2 + 8 * blk + 4, 4), vAd + 4, A_LDS_ST + blk * 128 + 64))
        k('ds_read_b128 %s, v%d offset:%d' % (vr(L2 + 8 * blk, 4), vAd + 4, A_LDS_ST + blk * 128))
    for s_ in (0, 1):
        k('ds_read_b128 %s, v%d offset:%d' % (vr(CS + 4 * s_, 4), vAd, A_LDS_CS + 64 * s_))
    RQ = T + 52
    qs = (DH ** -0.5) * 1.4426950408889634
    QT = T + 72
    KT = T + 80
    VV = T + 92

    def fix_qk(blk, nbi, scale_reg, dst):
        a = acc(blk, nbi)
        hi = scale_reg & 1
        for r in (0, 2):
            k('v_pk_fma_f32 %s, %s, %s, %s op_sel:[0,1,0] op_sel_hi:[1,1,1] neg_lo:[0,1,0] neg_hi:[0,1,0]' % (
                vr(a + r, 2), vr(CS + 4 * nbi + r, 2), vr(RR + 2 * blk, 2), vr(a + r, 2)))
        for r in (0, 2):
            k('v_pk_mul_f32 %s, %s, %s op_sel:[0,%d] op_sel_hi:[1,%d]' % (vr(a + r, 2), vr(a + r, 2), vr(scale_reg - hi, 2), hi, hi))
        k('v_cvt_pk_bf16_f32 v%d, v%d, v%d' % (dst, a, a + 1))
        k('v_cvt_pk_bf16_f32 v%d, v%d, v%d' % (dst + 1, a + 2, a + 3))
        k.bg()

    def fix_v(blk, nb):
        a = acc(blk, 4 + nb)
        for r in (0, 2):
            k('v_pk_fma_f32 %s, %s, %s, %s op_sel:[0,%d,0] op_sel_hi:[1,%d,1] neg_lo:[0,1,0] neg_hi:[0,1,0]' % (
                vr(a + r, 2), vr(L2 + 8 * blk + 4 + r, 2), vr(CSV, 2), vr(a + r, 2), nb, nb))
        for r in (0, 2):
            k('v_pk_mul_f32 %s, %s, %s' % (vr(a + r, 2), vr(a + r, 2), vr(L2 + 8 * blk + r, 2)))
        dst = VV + 6 * nb + 2 + 2 * blk
        k('v_cvt_pk_bf16_f32 v%d, v%d, v%d' % (dst, a, a + 1))
        k('v_cvt_pk_bf16_f32 v%d, v%d, v%d' % (dst + 1, a + 2, a + 3))
        k.bg()

    fix_qk(1, 2, RR + 2, KT + 8)
    fix_qk(1, 3, RR + 2, KT + 10)
    k('ds_write_b128 v%d, %s offset:%d' % (vAd + 6, vr(KT + 8, 4), A_LDS_KV + 2048))
    for r in (0, 2):
        k('v_pk_mul_f32 %s, %s, %s op_sel_hi:[1,0]' % (vr(HC + r, 2), vr(HC + r, 2), vr(RH, 2)))
    k('v_cvt_pk_bf16_f32 v%d, v%d, v%d' % (HC, HC, HC + 1))
    k('v_cvt_pk_bf16_f32 v%d, v%d, v%d' % (HC + 2, HC + 2, HC + 3))
    k('ds_write_b16 v%d, v%d offset:%d' % (vK, HC, A_LDS_KV))
    k('ds_write_b16_d16_hi v%d, v%d offset:%d' % (vK + 1, HC, A_LDS_KV))
    k('ds_write_b16 v%d, v%d offset:%d' % (vK + 2, HC + 2, A_LDS_KV))
    k('ds_write_b16_d16_hi v%d, v%d offset:%d' % (vK + 3, HC + 2, A_LDS_KV))
    fix_v(1, 0)
    fix_v(1, 1)
    k('ds_write_b64 v%d, %s offset:%d' % (vAd + 6, vr(VV + 4, 2), A_LDS_KV + 2048 + 1024))
    k('ds_write_b64 v%d, %s offset:%d' % (vAd + 6, vr(VV + 10, 2), A_LDS_KV + 2048 + 1024 + 8))
    for blk in range(2):
        k('v_mul_f32 v%d, %s, v%d' % (RQ + 2 * blk, f32(qs), RR + 2 * blk))
    for blk in range(2):
        k('v_cndmask_b32 v%d, 0, v%d, %s' % (RQ + 2 * blk + 1, RQ + 2 * blk, sr(s_m + 2, 2)))
        k('v_cndmask_b32 v%d, 0, v%d, %s' % (RQ + 2 * blk, RQ + 2 * blk, sr(s_m, 2)))
    fix_qk(0, 2, RR + 0, KT + 4)
    fix_qk(0, 3, RR + 0, KT + 6)
    k.wait_lg(0)
    k.barrier()
    stamp(k, 41)
    k('ds_read_b128 %s, v%d offset:%d' % (vr(KT, 4), vAd + 6, A_LDS_KV))
    k('ds_read_b64 %s, v%d offset:%d' % (vr(VV, 2), vAd + 6, A_LDS_KV + 1024))
    k('ds_read_b64 %s, v%d offset:%d' % (vr(VV + 6, 2), vAd + 6, A_LDS_KV + 1024 + 8))
    fix_qk(1, 0, RQ + 2, QT + 4)
    fix_qk(1, 1, RQ + 3, QT + 6)
    SS = T
    k('v_mfma_f32_16x16x32_bf16 %s, %s, %s, %s' % (vr(SS + 8, 4), vr(KT + 4, 4), vr(QT + 4, 4), vr(BP, 4)))
    k('v_mfma_f32_16x16x32_bf16 %s, %s, %s, %s' % (vr(SS + 12, 4), vr(KT + 8, 4), vr(QT + 4, 4), vr(BC, 4)))
    fix_qk(0, 0, RQ + 0, QT + 0)
    fix_qk(0, 1, RQ + 1, QT + 2)
    k('v_mfma_f32_16x16x32_bf16 %s, %s, %s, %s' % (vr(SS + 0, 4), vr(KT + 0, 4), vr(QT, 4), vr(BPA, 4)))
    k('v_mfma_f32_16x16x32_bf16 %s, %s, %s, %s' % (vr(SS + 4, 4), vr(KT + 4, 4), vr(QT, 4), vr(BC, 4)))
    fix_v(0, 0)
    fix_v(0, 1)
    MX = ACC
    TM = ACC + 2
    for blk in (1, 0):
        s_ = SS + 8 * blk
        k('v_max3_f32 v%d, v%d, v%d, v%d' % (MX + blk, s_, s_ + 1, s_ + 2))
        k('v_max3_f32 v%d, v%d, v%d, v%d' % (TM + blk, s_ + 3, s_ + 4, s_ + 5))
        k('v_max3_f32 v%d, v%d, v%d, v%d' % (MX + blk, MX + blk, s_ + 6, s_ + 7))
        k('v_max_f32 v%d, v%d, v%d' % (MX + blk, MX + blk, TM + blk))
    k.bg()
    xgroup_reduce(k, [MX, MX + 1], [TM, TM + 1], op='v_max_f32')
    k.bg_flush()
    stamp(k, 9)
    SUM = ACC + 4
    PP = ACC + 8
    OO = ACC + 16
    for blk in (1, 0):
        s_ = SS + 8 * blk
        for i in range(0, 8, 2):
            k('v_pk_add_f32 %s, %s, %s op_sel:[0,%d] op_sel_hi:[1,%d] neg_lo:[0,1] neg_hi:[0,1]' % (vr(s_ + i, 2), vr(s_ + i, 2), vr(MX, 2), blk, blk))
        for i in range(8):
            k('v_exp_f32 v%d, v%d' % (s_ + i, s_ + i))
        for i in range(4):
            k('v_cvt_pk_bf16_f32 v%d, v%d, v%d' % (PP + 4 * blk + i, s_ + 2 * i, s_ + 2 * i + 1))
        for nb in range(2):
            k('v_mfma_f32_16x16x32_bf16 %s, %s, %s, 0' % (vr(OO + 8 * blk + 4 * nb, 4), vr(VV + 6 * nb + 2 * blk, 4),
                                                          vr(PP + 4 * blk, 4)))
    for blk in range(2):
        s_ = SS + 8 * blk
        k('v_pk_add_f32 %s, %s, %s' % (vr(s_, 2), vr(s_, 2), vr(s_ + 2, 2)))
        k('v_pk_add_f32 %s, %s, %s' % (vr(s_ + 4, 2), vr(s_ + 4, 2), vr(s_ + 6, 2)))
    for blk in range(2):
        s_ = SS + 8 * blk
        k('v_pk_add_f32 %s, %s, %s' % (vr(s_, 2), vr(s_, 2), vr(s_ + 4, 2)))
    for blk in range(2):
        s_ = SS + 8 * blk
        k('v_add_f32 v%d, v%d, v%d' % (SUM + 2 * blk, s_, s_ + 1))
    xgroup_reduce(k, [SUM, SUM + 2], [TM, TM + 1])
    for blk in range(2):
        k('v_rcp_f32 v%d, v%d' % (SUM + 2 * blk, SUM + 2 * blk))
    for blk in range(2):
        k('v_cndmask_b32 v%d, 0, v%d, %s' % (SUM + 2 * blk + 1, SUM + 2 * blk, sr(s_m + 2, 2)))
        k('v_cndmask_b32 v%d, 0, v%d, %s' % (SUM + 2 * blk, SUM + 2 * blk, sr(s_m, 2)))
    for blk in range(2):
        o = OO + 8 * blk
        for r in (0, 2):
            k('v_pk_mul_f32 %s, %s, %s op_sel_hi:[1,0]' % (vr(o + r, 2), vr(o + r, 2), vr(SUM + 2 * blk, 2)))
        for r in (0, 2):
            k('v_pk_mul_f32 %s, %s, %s op_sel:[0,1] op_sel_hi:[1,1]' % (vr(o + 4 + r, 2), vr(o + 4 + r, 2), vr(SUM + 2 * blk, 2)))
        p = PP + 4 * blk
        for i in range(4):
            k('v_cvt_pk_bf16_f32 v%d, v%d, v%d' % (p + i, o + 2 * i, o + 2 * i + 1))
        k('buffer_store_dwordx4 %s, v4, %s, s%d offen %s' % (vr(p, 4), srd(SRD_WS), s_o0 if blk == 0 else s_o1, sc1), tag='ost')


STAMP_OFF = 0xA00000


DST = {5: 1, 10: 2, 15: 3, 16: 4, 22: 5, 24: 6, 29: 7}


def dstamp(k, idx, vtmp=253, stmp=74):
    if idx not in DST and idx != 0:
        return
    slot = DST.get(idx, 0)
    k('s_memrealtime %s' % sr(stmp, 2))
    k('s_cmp_eq_u32 s2, 131')
    k('s_cselect_b32 s%d, %d, %s' % (stmp + 4, 32 + 4 * slot, '0x%x' % OOB))
    if slot:
        k('s_cmp_eq_u32 s2, 0')
        k('s_cselect_b32 s%d, %d, s%d' % (stmp + 4, 4 * slot, stmp + 4))
    k('v_mov_b32 v%d, s%d' % (vtmp + 2, stmp + 4))
    k('v_mov_b32 v%d, s%d' % (vtmp, stmp))
    k('s_cmp_eq_u32 s3, 0')
    k('s_cselect_b64 exec, 1, 0')
    k('buffer_store_dword v%d, v%d, %s, 0 offen' % (vtmp, vtmp + 2, srd(SRD_DBG)))
    k('s_mov_b64 exec, -1')


def stamp(k, idx, vtmp=253, stmp=74):
    if getattr(k, 'stamps', False) == 'jit':
        L = k.newlabel('Ljit')
        k('s_lshl_b32 s74, s2, 2')
        k('s_add_u32 s74, s74, s3')
        k('s_mul_i32 s74, s74, 0x%x' % ((0x9E3779B1 * (idx + 1 + 64 * JIT_SEED)) & 0xffffffff | 1))
        k('s_lshr_b32 s74, s74, 29')
        k('s_cmp_lg_u32 s74, 0')
        k('s_cbranch_scc1 %s' % L)
        hist = [[h[0], h[1]] for h in k.hist]
        k('s_sleep 100')
        k.raw(L + ':')
        k.hist = k.hist + hist
        return
    if idx >= 32 or (STAMP_SET is not None and idx not in STAMP_SET):
        return
    if getattr(k, 'stamps', False) == 'dbg':
        return dstamp(k, idx, vtmp, stmp)
    if not getattr(k, 'stamps', False):
        return
    k('s_memrealtime %s' % sr(stmp, 2))
    k('s_memtime %s' % sr(stmp + 2, 2))
    k('s_lshl_b32 s%d, s2, 2' % (stmp + 4))
    k('s_add_u32 s%d, s%d, s3' % (stmp + 4, stmp + 4))
    k('s_lshl_b32 s%d, s%d, 7' % (stmp + 4, stmp + 4))
    k('s_add_u32 s%d, s%d, 0x%x' % (stmp + 4, stmp + 4, STAMP_OFF + 4 * idx))
    k('v_mov_b32 v%d, s%d' % (vtmp, stmp))
    k('v_mov_b32 v%d, s%d' % (vtmp + 1, stmp + 2))
    k('v_mov_b32 v%d, 0' % (vtmp + 2))
    k('s_mov_b64 exec, 1')
    k('buffer_store_dword v%d, v%d, %s, s%d offen' % (vtmp, vtmp + 2, srd(SRD_WS), stmp + 4))
    k('s_add_u32 s%d, s%d, 0x20000' % (stmp + 4, stmp + 4))
    k('buffer_store_dword v%d, v%d, %s, s%d offen' % (vtmp + 1, vtmp + 2, srd(SRD_WS), stmp + 4))
    k('s_mov_b64 exec, -1')


def spin_guard(k):
    k('s_sub_u32 s%d, s%d, 1' % (S_SPIN, S_SPIN))
    k('s_cbranch_scc1 %s' % k.end_label)


def epoch_publish(k, vt):
    k('s_memrealtime %s' % sr(S_T, 2))
    k('v_mov_b32 v%d, 0' % (vt + 1))
    k('s_or_b32 s%d, s%d, 1' % (S_T, S_T))
    k('v_mov_b32 v%d, s%d' % (vt, S_T))
    k('s_or_b32 s%d, s2, s3' % S_T)
    k('s_cmp_eq_u32 s%d, 0' % S_T)
    k('s_cselect_b64 exec, 1, 0')
    k('buffer_store_dword v%d, v%d, %s, 0 offen sc1' % (vt, vt + 1, srd(SRD_DBG)))
    k('s_mov_b64 exec, -1')


def epoch_load(k, vt):
    k('v_mov_b32 v%d, 0' % (vt + 1))
    k('buffer_load_dword v%d, v%d, %s, 0 offen sc1' % (vt, vt + 1, srd(SRD_DBG)))


def epoch_get(k, vt):
    L = k.newlabel('Lepg')
    done = k.newlabel('Lepd')
    k('v_readfirstlane_b32 s%d, v%d' % (S_EPOCH, vt))
    k('s_cmp_lg_u32 s%d, 0' % S_EPOCH)
    k.branch_fwd('s_cbranch_scc1', done)
    k.loop_label(L)
    spin_guard(k)
    k('buffer_load_dword v%d, v%d, %s, 0 offen sc1' % (vt, vt + 1, srd(SRD_DBG)))
    k.force_wait(vm=0)
    k('v_readfirstlane_b32 s%d, v%d' % (S_EPOCH, vt))
    k('s_cmp_eq_u32 s%d, 0' % S_EPOCH)
    k('s_cbranch_scc1 %s' % L)
    k.label(done)


FLAG_A = FLAG_OFF
FLAG_B = FLAG_OFF + 0x20000
FLAG_Z = FLAG_OFF + 0x38000
FLAG_C = FLAG_OFF + 0x28000


def flag_store(k, vt, s_off):
    k('v_mov_b32 v%d, s%d' % (vt, S_EPOCH))
    k('s_mov_b64 exec, 1')
    k('buffer_store_dword v%d, v%d, %s, s%d offen sc1' % (vt, vt + 1, srd(SRD_WS), s_off))
    if DBL & 2:
        k('buffer_store_dword v%d, v%d, %s, s%d offen' % (vt, vt + 1, srd(SRD_WS), s_off))
    k('s_mov_b64 exec, -1')


POLL_DEPTH = 3
POLL_GAP = 3
JIT_SEED = 0
ST14 = True
WROW = 128
M2 = True
WARM0 = True
CD2 = True
DBL = 0
STAMP_SET = None
S_WR, S_HV = 56, 57
EXP_NSTAT = 6
EXP_NFRAG = 8
POLL_SLEEP = 0
WO_LATE = False
START_ORDER = '01w|'
AGENT_DEPTH = 2
ST_SLEEP = 0
V_POLL = 249


def flag_poll(k, vt, voff, s_off):
    L = k.newlabel('Lpoll')
    done = k.newlabel('Lpd')
    n = POLL_DEPTH

    def ld(i):
        return k('buffer_load_dword v%d, v%d, %s, s%d offen sc1' % (V_POLL + i, voff, srd(SRD_WS), s_off))
    for i in range(n - 1):
        ld(i)
        k('s_sleep %d' % POLL_GAP)
    k.loop_label(L)
    spin_guard(k)
    last = []
    for i in range(n):
        k.vm = []
        if POLL_SLEEP:
            k('s_sleep %d' % POLL_SLEEP)
        last.append(ld((i + n - 1) % n))
        k._emit(classify('s_waitcnt vmcnt(%d)' % (n - 1)))
        k.vm = []
        k('v_cmp_ne_u32 vcc, s%d, v%d' % (S_EPOCH, V_POLL + i))
        if i < n - 1:
            k('s_cbranch_vccz %s' % done)
        else:
            k('s_cbranch_vccnz %s' % L)
    k.fence()
    k.raw(done + ':')
    k.vm = list(last)


class B:
    s_tmp, s_wbase, s_t2, s_x = 58, 59, 60, 61
    s_dma = 73
    vWo, vR0, vR1 = 208, 209, 210
    ACC = 192
    OFR = 32
    T = 64
    vSw, vSp = 211, 212
    s_sw, s_sp = 90, 62
    HK = 240


def B_setup(k):
    b, g = B, G
    k.c('---- phase B setup')
    t = TMP
    k('v_lshrrev_b32 v%d, 3, v1' % t)
    k('v_mul_u32_u24 v%d, 896, v%d' % (b.vWo, t))
    k('v_and_b32 v%d, 1, v3' % t)
    k('v_lshlrev_b32 v%d, 2, v%d' % (t, t))
    k('v_and_b32 v%d, 7, v1' % (t + 1))
    k('v_xor_b32 v%d, v%d, v%d' % (t, t, t + 1))
    k('v_lshl_add_u32 v%d, v%d, 4, v%d' % (b.vWo, t, b.vWo))
    k('s_lshl_b32 s%d, s%d, 7' % (b.s_tmp, g.s_dtD))
    k('s_mul_i32 s%d, s3, %d' % (b.s_t2, 112 * 896))
    k('s_add_u32 s%d, s%d, s%d' % (b.s_tmp, b.s_tmp, b.s_t2))
    k('v_add_u32 v%d, s%d, v%d' % (b.vWo, b.s_tmp, b.vWo))
    k('s_mul_i32 s%d, s3, %d' % (b.s_wbase, STG_SZ))
    k('s_add_u32 s%d, s%d, %d' % (b.s_wbase, b.s_wbase, LDS_STG))
    k('v_lshrrev_b32 v%d, 5, v1' % t)
    k('v_lshlrev_b32 v%d, 9, v%d' % (b.vR0, t))
    k('v_bfe_u32 v%d, v1, 2, 2' % t)
    k('v_lshl_add_u32 v%d, v%d, 7, v%d' % (b.vR0, t, b.vR0))
    k('v_lshrrev_b32 v%d, 1, v%d' % (t, t))
    k('s_and_b32 s%d, s3, 1' % b.s_tmp)
    k('v_xor_b32 v%d, s%d, v%d' % (t, b.s_tmp, t))
    k('v_lshl_add_u32 v%d, v%d, 6, v%d' % (b.vR0, t, b.vR0))
    k('v_and_b32 v%d, 1, v3' % t)
    k('v_lshl_add_u32 v%d, v%d, 5, v%d' % (b.vR0, t, b.vR0))
    k('v_and_b32 v%d, 3, v1' % t)
    k('v_lshl_add_u32 v%d, v%d, 3, v%d' % (b.vR0, t, b.vR0))
    k('v_add_u32 v%d, %d, v%d' % (b.vR0, LDS_STG, b.vR0))
    k('v_lshrrev_b32 v%d, 5, v1' % t)
    k('v_lshlrev_b32 v%d, 10, v%d' % (t, t))
    k('v_sub_u32 v%d, v%d, v%d' % (b.vR1, b.vR0, t))


def B_wo_dma(k):
    b = B

    def one(i):
        k('s_add_u32 m0, s%d, %d' % (b.s_wbase, i * 1024))
        k('s_mov_b32 s%d, %d' % (b.s_dma, 8 * i * 896))
        k('buffer_load_dwordx4 v%d, %s, s%d offen lds' % (b.vWo, srd(SRD_WO), b.s_dma), tag='wo')
    for i in range(14):
        k.bg_push(lambda i=i: one(i))


def B_wo_read(k, abase):
    b = B
    for h in range(16):
        if h == 8:
            k('v_add_u32 v%d, %d, v%d' % (b.vR0, 2 * STG_SZ, b.vR0))
            k('v_add_u32 v%d, %d, v%d' % (b.vR1, 2 * STG_SZ, b.vR1))
        sh = h == 15 and not M2
        for ks in range(2):
            a = abase + 8 * h + 4 * ks
            o = ((h >> 2) & 1) * STG_SZ + (h & 3) * 3584 + ks * 1024 - (512 if sh else 0)
            k('ds_read_b64_tr_b16 %s, v%d offset:%d' % (ar(a, 2), b.vR0, o))
            k('ds_read_b64_tr_b16 %s, v%d offset:%d' % (ar(a + 2, 2), b.vR1 if ((h & 3) == 3 and ks and not sh) else b.vR0, o + 2048))
            if (2 * h + ks) % 3 != 2:
                k.bg()


def B_xinit(k):
    b, g = B, G
    t = TMP + 2
    k('v_lshrrev_b32 v%d, 5, v1' % t)
    k('v_mul_u32_u24 v%d, %d, v%d' % (t, 4 * 896, t))
    k('v_and_b32 v%d, 31, v1' % (t + 1))
    k('v_lshl_add_u32 v%d, v%d, 1, v%d' % (t, t + 1, t))
    k('s_lshl_b32 s%d, s%d, 1' % (b.s_tmp, g.s_st))
    k('s_lshr_b32 s%d, s3, 1' % b.s_t2)
    k('s_add_u32 s%d, s%d, s%d' % (b.s_tmp, b.s_tmp, b.s_t2))
    k('s_mul_i32 s%d, s%d, %d' % (b.s_tmp, b.s_tmp, 32 * 896))
    k('s_lshl_b32 s%d, s%d, 7' % (b.s_t2, g.s_dtD))
    k('s_add_u32 s%d, s%d, s%d' % (b.s_tmp, b.s_tmp, b.s_t2))
    k('s_and_b32 s%d, s3, 1' % b.s_t2)
    k('s_lshl_b32 s%d, s%d, 6' % (b.s_t2, b.s_t2))
    k('s_add_u32 s%d, s%d, s%d' % (b.s_tmp, b.s_tmp, b.s_t2))
    for q in range(4):
        for r in range(4):
            k('buffer_load_ushort v%d, v%d, %s, s%d offen offset:%d' % (b.ACC + 4 * q + r, t, srd(SRD_X), b.s_tmp, r * 896))
        if q < 3:
            k('s_add_u32 s%d, s%d, %d' % (b.s_tmp, b.s_tmp, 8 * 896))


def B_xinit_finish(k):
    b = B
    for i in range(16):
        k('v_lshlrev_b32 v%d, 16, v%d' % (b.ACC + i, b.ACC + i))


def B_main(k, abase, lds_small, sc1='', hooks=None):
    b, g = B, G
    t = b.T
    k.c('---- phase B main')
    hooks = hooks or {}

    def hook(name):
        if name in hooks:
            hooks[name]()
    k('s_lshl_b32 s%d, s%d, 16' % (b.s_tmp, g.s_st))
    k('s_lshl_b32 s%d, s3, 14' % b.s_t2)
    k('s_add_u32 s%d, s%d, s%d' % (b.s_tmp, b.s_tmp, b.s_t2))
    if OF_OFF:
        k('s_add_u32 s%d, s%d, 0x%x' % (b.s_tmp, b.s_tmp, OF_OFF))
    for i in range(16):
        if i % 4 == 0:
            k('s_add_u32 m0, s%d, %d' % (g.s_stage, i * 1024))
            if i:
                k('s_add_u32 s%d, s%d, 4096' % (b.s_tmp, b.s_tmp))
        k('buffer_load_dwordx4 v4, %s, s%d offen offset:%d %s lds' % (srd(SRD_WS), b.s_tmp, (i % 4) * 1024, sc1), tag='of%d' % (i // 8))
    k('v_and_b32 v%d, 1, v3' % t)
    k('v_mul_u32_u24 v%d, %d, v%d' % (t, STG_SZ, t))
    k('v_lshl_add_u32 v%d, v2, 4, v%d' % (t, t))
    k('v_lshrrev_b32 v%d, 5, v1' % (t + 1))
    k('v_lshl_add_u32 v%d, v%d, 8, v%d' % (t, t + 1, t))
    k('s_lshr_b32 s%d, s3, 1' % b.s_t2)
    k('s_mul_i32 s%d, s%d, %d' % (b.s_t2, b.s_t2, 2 * STG_SZ))
    k('s_add_u32 s%d, s%d, %d' % (b.s_t2, b.s_t2, LDS_STG))
    k('v_add_u32 v%d, s%d, v%d' % (t, b.s_t2, t))
    hook('B_after_of')
    a = vr(b.ACC, 16)

    def rd(i):
        k('ds_read_b128 %s, v%d offset:%d' % (vr(b.OFR + 4 * (i % 8), 4), t, i * 512))
    for half in range(2):
        k.wait_tag('of%d' % half)
        k.barrier()
        if half == 0:
            stamp(k, 11)
        for i in range(16 * half, 16 * half + (6 if half == 0 else 2)):
            rd(i)
        for i in range(16 * half - (4 if half else 0), 16 * half + (12 if half == 0 else 16)):
            k('v_mfma_f32_32x32x16_bf16 %s, %s, %s, %s' % (a, vr(b.OFR + 4 * (i % 8), 4), ar(abase + 4 * i, 4), a))
            if i + 6 < 16 * half + 16 and i + 6 >= 16 * half + (6 if half == 0 else 2):
                rd(i + 6)
            if i % 3 == 0:
                k.bg()
    stamp(k, 12)
    if 'B_tail' in hooks:
        return hook('B_tail')
    Q = t + 4
    V = t + 20
    A = b.ACC
    for i in range(0, 16, 2):
        k('v_pk_mul_f32 %s, %s, %s' % (vr(Q + i, 2), vr(A + i, 2), vr(A + i, 2)))
    def src(base, q, idx):
        r = ((idx & 1) << 1) | (idx >> 1)
        return base + 4 * q + r
    for base, dst in ((A, V), (Q, V + 8)):
        k.bg()
        for q in range(4):
            for p in range(2):
                x = src(base, q, 2 * p)
                k('v_add_f32_dpp v%d, v%d, v%d row_mirror row_mask:0xf bank_mask:0x3' % (dst + 2 * q + p, x, x))
    for base, dst in ((A, V), (Q, V + 8)):
        k.bg()
        for q in range(4):
            for p in range(2):
                x = src(base, q, 2 * p + 1)
                k('v_add_f32_dpp v%d, v%d, v%d row_mirror row_mask:0xf bank_mask:0xc' % (dst + 2 * q + p, x, x))
    k.bg(2)
    for i in range(8):
        k('v_add_f32_dpp v%d, v%d, v%d row_half_mirror row_mask:0xf bank_mask:0x5' % (V + 2 * i, V + 2 * i, V + 2 * i))
    for i in range(8):
        k('v_add_f32_dpp v%d, v%d, v%d row_half_mirror row_mask:0xf bank_mask:0xa' % (V + 2 * i, V + 2 * i + 1, V + 2 * i + 1))
    for i in range(8):
        k('v_add_f32_dpp v%d, v%d, v%d quad_perm:[1,0,3,2] row_mask:0xf bank_mask:0xf' % (V + 2 * i + 1, V + 2 * i, V + 2 * i))
    U = Q
    k.bg(2)
    for i in range(8):
        k('v_add_f32_dpp v%d, v%d, v%d quad_perm:[2,3,0,1] row_mask:0xf bank_mask:0xf' % (U + i, V + 2 * i + 1, V + 2 * i + 1))
    for kind in range(2):
        for i in range(2):
            k('v_permlane16_swap_b32 v%d, v%d' % (U + 4 * kind + 2 * i, U + 4 * kind + 2 * i + 1))
    W_ = V
    for i in range(2):
        for kind in range(2):
            k('v_add_f32 v%d, v%d, v%d' % (W_ + 2 * i + kind, U + 4 * kind + 2 * i, U + 4 * kind + 2 * i + 1))
    k.bg_flush()
    if ST14:
        vA, vC, vG = b.vSp, t + 2, t + 3
        G_ = V + 4
        k('v_cndmask_b32 v%d, v%d, v%d, %s' % (G_, W_, W_ + 2, sr(88, 2)))
        k('v_cndmask_b32 v%d, v%d, v%d, %s' % (G_ + 2, W_ + 1, W_ + 3, sr(88, 2)))
        k('v_mov_b32 v%d, s%d' % (G_ + 1, S_EPOCH))
        k('v_mov_b32 v%d, s%d' % (G_ + 3, S_EPOCH))
        k('s_mov_b32 exec_lo, 0x33333333')
        k('s_mov_b32 exec_hi, 0x33333333')
        k('buffer_store_dwordx4 %s, v%d, %s, s%d offen sc1' % (vr(G_, 4), b.vSw, srd(SRD_WS), b.s_sw))
        k('s_mov_b64 exec, -1')
        k.barrier()
        for i in range(8):
            k('v_cvt_pk_bf16_f32 v%d, v%d, v%d' % (b.HK + i, A + 2 * i, A + 2 * i + 1))
        k('v_and_b32 v%d, 31, v1' % vG)
        B_hh_addr(k)
        hook('B_before_poll')
        stamp(k, 31)
        P0 = t + 32
        L = k.newlabel('Lst')
        done = k.newlabel('Lstd')
        Sx, Qx = t + 88, t + 90

        def ld(s_):
            return [k('buffer_load_dwordx4 %s, v%d, %s, s%d offen offset:%d sc1' % (
                vr(P0 + 28 * s_ + 4 * i, 4), vA, srd(SRD_WS), b.s_sp + (i >> 2), (i & 3) * 1024)) for i in range(7)]
        ld(0)
        k('s_sleep 5')
        k.loop_label(L)
        spin_guard(k)
        last = []
        for s_ in range(2):
            k.vm = []
            last += ld(1 - s_)
            k._emit(classify('s_waitcnt vmcnt(7)'))
            k.vm = []
            p = P0 + 28 * s_
            for i in range(14):
                k('v_xor_b32 v%d, s%d, v%d' % (p + 2 * i + 1, S_EPOCH, p + 2 * i + 1))
            for x, o in ((Sx, 0), (Qx, 2)):
                k('v_add_f32 v%d, v%d, v%d' % (x, p + o, p + o + 4))
                k('v_add_f32 v%d, v%d, v%d' % (x + 1, p + o + 8, p + o + 12))
            k('v_or3_b32 v%d, v%d, v%d, v%d' % (p + 1, p + 1, p + 3, p + 5))
            k('v_or3_b32 v%d, v%d, v%d, v%d' % (p + 7, p + 7, p + 9, p + 11))
            k('v_or3_b32 v%d, v%d, v%d, v%d' % (p + 13, p + 13, p + 15, p + 17))
            k('v_or3_b32 v%d, v%d, v%d, v%d' % (p + 19, p + 19, p + 21, p + 23))
            k('v_or3_b32 v%d, v%d, v%d, v%d' % (p + 1, p + 1, p + 25, p + 27))
            k('v_or3_b32 v%d, v%d, v%d, v%d' % (p + 7, p + 7, p + 13, p + 19))
            k('v_or_b32 v%d, v%d, v%d' % (p + 1, p + 1, p + 7))
            k('v_cmp_ne_u32 vcc, 0, v%d' % (p + 1))
            for x, o in ((Sx, 0), (Qx, 2)):
                k('v_add_f32 v%d, v%d, v%d' % (x, x, p + o + 16))
                k('v_add_f32 v%d, v%d, v%d' % (x + 1, x + 1, p + o + 20))
            for x, o in ((Sx, 0), (Qx, 2)):
                k('v_add_f32 v%d, v%d, v%d' % (x, x, p + o + 24))
            k('%s %s' % (('s_cbranch_vccz', 's_cbranch_vccnz')[s_], (done, L)[s_]))
        k.fence()
        k.raw(done + ':')
        k.vm = list(last)
        stamp(k, 13)
        P0 = t + 92
        for x in (Sx, Qx):
            k('v_add_f32 v%d, v%d, v%d' % (x, x, x + 1))
    else:
        vA, vC, vG = t + 1, t + 2, t + 3
        k('v_and_b32 v%d, 1, v3' % vA)
        k('v_lshlrev_b32 v%d, 6, v%d' % (vA, vA))
        k('v_lshrrev_b32 v%d, 5, v1' % vC)
        k('v_lshl_add_u32 v%d, v%d, 5, v%d' % (vA, vC, vA))
        k('v_bfe_u32 v%d, v1, 2, 2' % vG)
        k('v_lshl_add_u32 v%d, v%d, 3, v%d' % (vA, vG, vA))
        k('s_lshl_b32 s%d, s3, 8' % b.s_tmp)
        k('v_add_u32 v%d, s%d, v%d' % (vA, b.s_tmp, vA))
        k('ds_write_b64 v%d, %s offset:%d' % (vA, vr(W_, 2), lds_small))
        k('ds_write_b64 v%d, %s offset:%d' % (vA, vr(W_ + 2, 2), lds_small + 128))
        k('v_and_b32 v%d, 31, v1' % vG)
        k('v_lshlrev_b32 v%d, 9, v%d' % (vA, vC))
        k('v_lshl_add_u32 v%d, v%d, 4, v%d' % (vA, vG, vA))
        k('v_lshlrev_b32 v%d, 8, v%d' % (vC, vC))
        k('v_lshl_add_u32 v%d, v%d, 3, v%d' % (vC, vG, vC))
        k('s_and_b32 s%d, s%d, 512' % (b.s_tmp, b.s_tmp))
        k('v_add_u32 v%d, s%d, v%d' % (vC, b.s_tmp, vC))
        k('s_lshl_b32 s%d, s%d, 1' % (b.s_tmp, g.s_st))
        k('s_lshr_b32 s%d, s3, 1' % b.s_t2)
        k('s_add_u32 s%d, s%d, s%d' % (b.s_tmp, b.s_tmp, b.s_t2))
        k('s_lshl_b32 s%d, s%d, 12' % (b.s_tmp, b.s_tmp))
        k('s_add_u32 s%d, s%d, 0x%x' % (b.s_tmp, b.s_tmp, STAT_OFF))
        k('s_lshl_b32 s%d, s%d, 9' % (b.s_t2, g.s_dtD))
        k('s_add_u32 s%d, s%d, s%d' % (b.s_t2, b.s_t2, b.s_tmp))
        stamp(k, 23)
        k.wait_lg(0)
        k.barrier()
        k('ds_read_b64 %s, v%d offset:%d' % (vr(V, 2), vC, lds_small))
        G_ = V + 4
        k('v_mov_b32 v%d, s%d' % (G_ + 1, S_EPOCH))
        k('v_mov_b32 v%d, s%d' % (G_ + 3, S_EPOCH))
        k('v_mov_b32 v%d, v%d' % (G_, V))
        k('v_mov_b32 v%d, v%d' % (G_ + 2, V + 1))
        k('v_permlane32_swap_b32 v%d, v%d' % (G_, V))
        k('v_permlane32_swap_b32 v%d, v%d' % (G_ + 2, V + 1))
        k('v_add_f32 v%d, v%d, v%d' % (G_, G_, V))
        k('v_add_f32 v%d, v%d, v%d' % (G_ + 2, G_ + 2, V + 1))
        k('s_bitcmp0_b32 s3, 0')
        k('s_cselect_b32 exec_lo, -1, 0')
        k('s_mov_b32 exec_hi, 0')
        k('buffer_store_dwordx4 %s, v%d, %s, s%d offen sc1' % (vr(G_, 4), vA, srd(SRD_WS), b.s_t2))
        if DBL & 1:
            k('buffer_store_dwordx4 %s, v%d, %s, s%d offen' % (vr(G_, 4), vA, srd(SRD_WS), b.s_t2))
        k('s_mov_b64 exec, -1')
        for i in range(8):
            k('v_cvt_pk_bf16_f32 v%d, v%d, v%d' % (b.HK + i, A + 2 * i, A + 2 * i + 1))
        k('s_lshl_b32 s%d, s%d, 1' % (b.s_x, g.s_dtD))
        k('s_and_b32 s%d, s3, 1' % b.s_t2)
        k('s_add_u32 s%d, s%d, s%d' % (b.s_x, b.s_x, b.s_t2))
        k('s_lshl_b32 s%d, s%d, 7' % (b.s_x, b.s_x))
        k('s_lshl_b32 s%d, s%d, 2' % (b.s_t2, g.s_st))
        k('s_add_u32 s%d, s%d, s%d' % (b.s_x, b.s_x, b.s_t2))
        k('s_and_b32 s%d, s3, 2' % b.s_t2)
        k('s_add_u32 s%d, s%d, s%d' % (b.s_x, b.s_x, b.s_t2))
        k('s_lshl_b32 s%d, s%d, 10' % (b.s_x, b.s_x))
        k('s_add_u32 s%d, s%d, 0x%x' % (b.s_x, b.s_x, HH_OFF))
        k('v_lshlrev_b32 v%d, 4, v%d' % (vC, vG))
        k('v_cmp_gt_u32 %s, 32, v1' % sr(S_T, 2))
        hook('B_before_poll')
        stamp(k, 31)
        P0 = t + 32
        L = k.newlabel('Lst')
        done = k.newlabel('Lstd')
        Sx, Qx = t + 64, t + 66

        def ld(s_):
            r = []
            for i in range(4):
                r.append(k('buffer_load_dwordx4 %s, v%d, %s, s%d offen offset:%d sc1' % (
                    vr(P0 + 16 * s_ + 4 * i, 4), vA if i < 3 else vC, srd(SRD_WS), b.s_tmp, i * 1024)))
            return r
        ld(0)
        k('s_sleep 5')
        k.loop_label(L)
        spin_guard(k)
        last = []
        for s_ in range(2):
            k.vm = []
            if ST_SLEEP:
                k('s_sleep %d' % ST_SLEEP)
            last += ld(1 - s_)
            k._emit(classify('s_waitcnt vmcnt(4)'))
            k.vm = []
            p = P0 + 16 * s_
            for i in range(8):
                k('v_xor_b32 v%d, s%d, v%d' % (p + 2 * i + 1, S_EPOCH, p + 2 * i + 1))
            k('v_cndmask_b32 v%d, 0, v%d, %s' % (p + 12, p + 12, sr(S_T, 2)))
            k('v_cndmask_b32 v%d, 0, v%d, %s' % (p + 14, p + 14, sr(S_T, 2)))
            k('v_or3_b32 v%d, v%d, v%d, v%d' % (p + 1, p + 1, p + 3, p + 5))
            k('v_or3_b32 v%d, v%d, v%d, v%d' % (p + 7, p + 7, p + 9, p + 11))
            k('v_or3_b32 v%d, v%d, v%d, v%d' % (p + 1, p + 1, p + 13, p + 15))
            k('v_or_b32 v%d, v%d, v%d' % (p + 1, p + 1, p + 7))
            k('v_cmp_ne_u32 vcc, 0, v%d' % (p + 1))
            for x, o in ((Sx, 0), (Qx, 2)):
                k('v_add_f32 v%d, v%d, v%d' % (x, p + o, p + o + 4))
                k('v_add_f32 v%d, v%d, v%d' % (x + 1, p + o + 8, p + o + 12))
            if s_ == 0:
                k('s_cbranch_vccz %s' % done)
            else:
                k('s_cbranch_vccnz %s' % L)
        k.fence()
        k.raw(done + ':')
        k.vm = list(last)
        stamp(k, 13)
        P0 = t + 68
        for x in (Sx, Qx):
            k('v_add_f32 v%d, v%d, v%d' % (x, x, x + 1))
    k('v_mov_b32 v%d, v%d' % (P0 + 4, Sx))
    k('v_mov_b32 v%d, v%d' % (P0 + 6, Qx))
    k('v_permlane32_swap_b32 v%d, v%d' % (Sx, P0 + 4))
    k('v_permlane32_swap_b32 v%d, v%d' % (Qx, P0 + 6))
    k('v_add_f32 v%d, v%d, v%d' % (Sx, Sx, P0 + 4))
    k('v_add_f32 v%d, v%d, v%d' % (Qx, Qx, P0 + 6))
    M, R = P0 + 1, P0 + 3
    k('v_mul_f32 v%d, %s, v%d' % (M, f32(1.0 / D), Sx))
    k('v_mul_f32 v%d, %s, v%d' % (Qx, f32(1.0 / D), Qx))
    k('v_fma_f32 v%d, -v%d, v%d, v%d' % (Qx, M, M, Qx))
    k('v_max_f32 v%d, 0, v%d' % (Qx, Qx))
    k('v_add_f32 v%d, %s, v%d' % (R, f32(1e-5), Qx))
    k('v_rsq_f32 v%d, v%d' % (R, R))
    k('v_mul_f32 v%d, v%d, v%d' % (Qx, Qx, R))
    k('v_fmaak_f32 v%d, v%d, v%d, %s' % (Qx, Qx, R, f32(1e-5)))
    k('v_rsq_f32 v%d, v%d' % (Qx, Qx))
    k('v_mul_f32 v%d, v%d, v%d' % (R, R, Qx))
    k('s_lshl_b32 s%d, s3, 8' % b.s_t2)
    k('v_lshl_add_u32 v%d, v%d, 2, s%d' % (vC, vG, b.s_t2))
    k('ds_write_b32 v%d, v%d offset:%d' % (vC, M, lds_small + 1024))
    k('ds_write_b32 v%d, v%d offset:%d' % (vC, R, lds_small + 1024 + 128))
    k('v_lshrrev_b32 v%d, 5, v1' % vC)
    k('v_lshl_add_u32 v%d, v%d, 4, s%d' % (vC, vC, b.s_t2))
    MM = 16 if ST14 else P0 + 8
    k.wait_lg(0)
    for q in range(4):
        k('ds_read_b128 %s, v%d offset:%d' % (vr(MM + 4 * q, 4), vC, lds_small + 1024 + 32 * q))
        k('ds_read_b128 %s, v%d offset:%d' % (vr(MM + 16 + 4 * q, 4), vC, lds_small + 1024 + 128 + 32 * q))
    for tp in range(2):
        for i in range(8 * tp, 8 * tp + 8, 2):
            k('v_pk_add_f32 %s, %s, %s neg_lo:[0,1] neg_hi:[0,1]' % (vr(A + i, 2), vr(A + i, 2), vr(MM + i, 2)))
        for i in range(8 * tp, 8 * tp + 8, 2):
            k('v_pk_mul_f32 %s, %s, %s' % (vr(A + i, 2), vr(A + i, 2), vr(MM + 16 + i, 2)))
        p = (P0 + 8 if ST14 else V) + 4 * tp
        for i in range(4):
            k('v_cvt_pk_bf16_f32 v%d, v%d, v%d' % (p + i, A + 8 * tp + 2 * i, A + 8 * tp + 2 * i + 1))
        k('buffer_store_dwordx4 %s, v4, %s, s%d offen offset:%d %s' % (vr(p, 4), srd(SRD_WS), b.s_x, tp * 1024, sc1), tag='hst')


def B_hh_addr(k):
    b, g = B, G
    k('s_lshl_b32 s%d, s%d, 1' % (b.s_x, g.s_dtD))
    k('s_and_b32 s%d, s3, 1' % b.s_t2)
    k('s_add_u32 s%d, s%d, s%d' % (b.s_x, b.s_x, b.s_t2))
    k('s_lshl_b32 s%d, s%d, 7' % (b.s_x, b.s_x))
    k('s_lshl_b32 s%d, s%d, 2' % (b.s_t2, g.s_st))
    k('s_add_u32 s%d, s%d, s%d' % (b.s_x, b.s_x, b.s_t2))
    k('s_and_b32 s%d, s3, 2' % b.s_t2)
    k('s_add_u32 s%d, s%d, s%d' % (b.s_x, b.s_x, b.s_t2))
    k('s_lshl_b32 s%d, s%d, 10' % (b.s_x, b.s_x))
    k('s_add_u32 s%d, s%d, 0x%x' % (b.s_x, b.s_x, HH_OFF))


def B_st14_setup(k):
    b, g = B, G
    t = b.T
    k('v_and_b32 v%d, 1, v1' % t)
    k('v_lshlrev_b32 v%d, 8, v%d' % (b.vSw, t))
    k('v_and_b32 v%d, 1, v3' % t)
    k('v_lshl_add_u32 v%d, v%d, 7, v%d' % (b.vSw, t, b.vSw))
    k('v_lshrrev_b32 v%d, 5, v1' % t)
    k('v_lshl_add_u32 v%d, v%d, 6, v%d' % (b.vSw, t, b.vSw))
    k('v_lshlrev_b32 v%d, 9, v%d' % (b.vSp, t))
    k('v_bfe_u32 v%d, v1, 2, 2' % t)
    k('v_lshl_add_u32 v%d, v%d, 4, v%d' % (b.vSw, t, b.vSw))
    k('v_and_b32 v%d, 31, v1' % t)
    k('v_lshl_add_u32 v%d, v%d, 4, v%d' % (b.vSp, t, b.vSp))
    k('s_lshl_b32 s%d, s%d, 1' % (b.s_sp, g.s_st))
    k('s_lshr_b32 s%d, s3, 1' % b.s_sw)
    k('s_add_u32 s%d, s%d, s%d' % (b.s_sp, b.s_sp, b.s_sw))
    k('s_lshl_b32 s%d, s%d, 13' % (b.s_sp, b.s_sp))
    k('s_add_u32 s%d, s%d, 0x%x' % (b.s_sp, b.s_sp, STAT_OFF))
    k('s_add_u32 s%d, s%d, 4096' % (b.s_sp + 1, b.s_sp))
    k('s_lshl_b32 s%d, s%d, 1' % (b.s_sw, g.s_dtD))
    k('s_and_b32 s88, s3, 1')
    k('s_add_u32 s%d, s%d, s88' % (b.s_sw, b.s_sw))
    k('s_lshl_b32 s%d, s%d, 9' % (b.s_sw, b.s_sw))
    k('s_add_u32 s%d, s%d, s%d' % (b.s_sw, b.s_sw, b.s_sp))
    k('s_mov_b32 s88, 0xaaaaaaaa')
    k('s_mov_b32 s89, 0xaaaaaaaa')


def agent(k):
    g = G
    k.c('---- agent: W2 warm-up')
    k('s_lshr_b32 s%d, s2, 3' % g.s_tmp)
    k('s_sub_u32 s%d, s%d, 28' % (g.s_tmp, g.s_tmp))
    k('s_lshl_b32 s%d, s%d, 2' % (g.s_tmp, g.s_tmp))
    k('s_add_u32 s%d, s%d, s3' % (g.s_tmp, g.s_tmp))
    k('s_lshl_b32 s%d, s%d, 16' % (g.s_tmp, g.s_tmp))
    k('s_and_b32 s%d, s2, 7' % g.s_t2)
    k('s_lshl_b32 s%d, s%d, 9' % (g.s_t2, g.s_t2))
    k('s_add_u32 s%d, s%d, s%d' % (g.s_tmp, g.s_tmp, g.s_t2))
    k('v_lshrrev_b32 v16, 2, v1')
    k('v_lshlrev_b32 v16, 12, v16')
    k('v_and_b32 v17, 3, v1')
    k('v_lshl_add_u32 v16, v17, 7, v16')
    for i in range(7):
        k('buffer_load_dword v%d, v16, %s, s%d offen' % (18 + i, srd(SRD_W2), g.s_tmp))
        k('s_add_u32 s%d, s%d, 0x100000' % (g.s_tmp, g.s_tmp))
        k.wait_vm(AGENT_DEPTH - 1)
    k.wait_vm(0)


class G:
    ACC = 16
    RING = 80
    NR = 16
    vW1, vW2 = 213, 214
    vRa, vRb = 215, 216
    vSa, vSb = 217, 218
    vCl = 5
    T = 220
    s_dtC, s_ft, s_dtD, s_st, s_tmp, s_t2, s_stage, s_a0, s_a1 = 64, 65, 66, 67, 68, 69, 70, 71, 72
    s_b0, s_b1 = 56, 57


def G_map(k):
    g = G
    k.c('---- C/D tile map')
    k('s_lshr_b32 s%d, s2, 3' % g.s_tmp)
    k('s_mul_i32 s%d, s%d, 37' % (g.s_t2, g.s_tmp))
    k('s_lshr_b32 s%d, s%d, 8' % (g.s_t2, g.s_t2))
    k('s_mul_i32 s%d, s%d, 7' % (g.s_dtC, g.s_t2))
    k('s_sub_u32 s%d, s%d, s%d' % (g.s_dtC, g.s_tmp, g.s_dtC))
    k('s_mov_b32 s%d, s%d' % (g.s_dtD, g.s_dtC))
    k('s_and_b32 s%d, s2, 7' % g.s_tmp)
    k('s_lshl_b32 s%d, s%d, 2' % (g.s_st, g.s_tmp))
    k('s_add_u32 s%d, s%d, s%d' % (g.s_st, g.s_st, g.s_t2))
    k('s_cmp_ge_u32 s%d, 4' % g.s_t2)
    k('s_cselect_b32 s%d, 99, s%d' % (g.s_st, g.s_st))
    k('s_mul_i32 s%d, s%d, 3' % (g.s_a0, g.s_tmp))
    k('s_add_u32 s%d, s%d, 4' % (g.s_a0, g.s_a0))
    k('s_lshl_b32 s%d, s%d, 2' % (g.s_a1, g.s_tmp))
    k('s_cmp_lt_u32 s%d, 4' % g.s_tmp)
    k('s_cselect_b32 s%d, s%d, s%d' % (g.s_ft, g.s_a1, g.s_a0))
    k('s_cselect_b32 s%d, 4, 3' % g.s_a0)
    k('s_add_u32 s%d, s%d, s%d' % (g.s_ft, g.s_ft, g.s_t2))
    k('s_cmp_ge_u32 s%d, s%d' % (g.s_t2, g.s_a0))
    k('s_cselect_b32 s%d, 99, s%d' % (g.s_ft, g.s_ft))


def G_w_setup(k, which, lds_base, per_wave):
    g = G
    t = TMP
    stride = F * 2 if which == 1 else S * 2
    krows = 512 if which == 1 else 448
    vW = g.vW1 if which == 1 else g.vW2
    va, vb = (g.vRa, g.vRb) if which == 1 else (g.vSa, g.vSb)
    s_tile = g.s_ft if which == 1 else g.s_st
    k('s_mul_i32 s%d, s3, %d' % (g.s_stage, per_wave))
    k('s_add_u32 s%d, s%d, %d' % (g.s_stage, g.s_stage, lds_base))
    k('v_lshrrev_b32 v%d, 3, v1' % t)
    k('v_mul_u32_u24 v%d, %d, v%d' % (vW, stride, t))
    k('v_and_b32 v%d, 1, v3' % t)
    k('v_lshlrev_b32 v%d, 2, v%d' % (t, t))
    k('v_and_b32 v%d, 7, v1' % (t + 1))
    k('v_xor_b32 v%d, v%d, v%d' % (t, t, t + 1))
    k('v_lshl_add_u32 v%d, v%d, 4, v%d' % (vW, t, vW))
    k('s_mul_i32 s%d, s3, %d' % (g.s_tmp, krows * stride))
    k('s_lshl_b32 s%d, s%d, 7' % (g.s_t2, s_tile))
    k('s_add_u32 s%d, s%d, s%d' % (g.s_tmp, g.s_tmp, g.s_t2))
    k('s_cmp_ge_u32 s%d, 99' % s_tile)
    k('s_cselect_b32 s%d, 0x%x, s%d' % (g.s_tmp, OOB, g.s_tmp))
    k('v_add_u32 v%d, s%d, v%d' % (vW, g.s_tmp, vW))
    if which == 1:
        k('s_cselect_b32 s%d, 0x%x, 0' % (g.s_tmp, OOB))
        k('v_add_u32 v%d, s%d, v4' % (g.vCl, g.s_tmp))
    k('v_lshrrev_b32 v%d, 5, v1' % t)
    k('v_lshlrev_b32 v%d, 9, v%d' % (va, t))
    k('v_bfe_u32 v%d, v1, 2, 2' % t)
    k('v_lshl_add_u32 v%d, v%d, 7, v%d' % (va, t, va))
    k('v_lshrrev_b32 v%d, 1, v%d' % (t, t))
    k('s_lshr_b32 s%d, s3, 1' % g.s_tmp)
    k('v_xor_b32 v%d, s%d, v%d' % (t, g.s_tmp, t))
    k('v_lshl_add_u32 v%d, v%d, 6, v%d' % (va, t, va))
    k('v_and_b32 v%d, 1, v3' % t)
    k('v_lshl_add_u32 v%d, v%d, 5, v%d' % (va, t, va))
    k('v_and_b32 v%d, 3, v1' % t)
    k('v_lshl_add_u32 v%d, v%d, 3, v%d' % (va, t, va))
    if CD2 and which == 1:
        k('s_and_b32 s%d, s3, 1' % g.s_tmp)
        k('s_lshl_b32 s%d, s%d, 5' % (g.s_tmp, g.s_tmp))
        k('v_xor_b32 v%d, s%d, v%d' % (va, g.s_tmp, va))
    k('v_add_u32 v%d, s%d, v%d' % (va, g.s_stage, va))
    k('v_xor_b32 v%d, 64, v%d' % (vb, va))


ROT = True
S_GC, S_GD = 94, 48


def G_rot_setup(k, which):
    n, base = (8, S_GC) if which == 1 else (7, S_GD)
    t = G.s_tmp
    if ROT in ('x', 'x2'):
        k('s_lshr_b32 s%d, s2, 3' % t)
        k('s_mul_i32 s%d, s%d, 37' % (t, t))
        k('s_lshr_b32 s%d, s%d, 8' % (t, t))
        k('s_and_b32 s%d, s%d, %d' % (t, t, 3 if ROT == 'x' else 1))
        for g_ in range(n):
            if n == 8 or g_ < 4:
                k('s_xor_b32 s%d, s%d, %d' % (base + g_, t, g_))
            elif g_ < 6:
                k('s_and_b32 s%d, s%d, 1' % (base + g_, t))
                k('s_xor_b32 s%d, s%d, %d' % (base + g_, base + g_, g_))
            else:
                k('s_mov_b32 s%d, %d' % (base + g_, g_))
            k('s_lshl_b32 s%d, s%d, 12' % (base + g_, base + g_))
        return
    if ROT == 'q':
        k('s_lshr_b32 s%d, s2, 3' % t)
        k('s_mul_i32 s%d, s%d, 37' % (t, t))
        k('s_lshr_b32 s%d, s%d, 8' % (t, t))
        k('s_and_b32 s%d, s%d, 3' % (t, t))
        k('s_mul_i32 s%d, s%d, %d' % (t, t, n))
        k('s_add_u32 s%d, s%d, 2' % (t, t))
        k('s_lshr_b32 s%d, s%d, 2' % (t, t))
    elif ROT:
        k('s_and_b32 s%d, s2, 7' % t)
    else:
        k('s_mov_b32 s%d, 0' % t)
    for g_ in range(n):
        if g_:
            k('s_add_u32 s%d, s%d, 1' % (t, t))
        k('s_cmp_ge_u32 s%d, %d' % (t, n))
        k('s_cselect_b32 s%d, %d, 0' % (base + g_, n))
        k('s_sub_u32 s%d, s%d, s%d' % (t, t, base + g_))
        k('s_lshl_b32 s%d, s%d, 12' % (base + g_, t))


def G_w_dma(k, which, t0, nt, slot0, tag=None, bg=False):
    g = G
    stride = F * 2 if which == 1 else S * 2

    def one(i):
        slot = slot0 + i // 2
        assert slot < NSLOT
        k.wait_lg_tag('rd%d' % slot)
        k.slot_content = getattr(k, 'slot_content', {})
        k.slot_content[slot] = (which, t0 + i // 2, i % 2)
        k('s_add_u32 m0, s%d, %d' % (g.s_stage, slot0 * 2048 + i * 1024))
        t = t0 + i // 2
        k('s_mul_i32 s%d, s%d, %d' % (B.s_dma, (S_GC if which == 1 else S_GD) + t // 4, 64 * stride // 4096))
        k('s_add_u32 s%d, s%d, %d' % (B.s_dma, B.s_dma, (16 * (t % 4) + 8 * (i % 2)) * stride))
        k('buffer_load_dwordx4 v%d, %s, s%d offen lds' % (g.vW1 if which == 1 else g.vW2, srd(SRD_W1 if which == 1 else SRD_W2), B.s_dma), tag='slot%d' % slot)
    for i in range(2 * nt):
        if bg:
            k.bg_push(lambda i=i: one(i))
        else:
            one(i)


def W1_warm(k, vdst):
    g = G
    t = TMP
    k('s_lshr_b32 s%d, s2, 3' % g.s_tmp)
    k('s_lshl_b32 s%d, s%d, 2' % (g.s_tmp, g.s_tmp))
    k('s_add_u32 s%d, s%d, s3' % (g.s_tmp, g.s_tmp))
    if True:
        k('v_lshlrev_b32 v%d, 7, v1' % t)
        k('s_mul_i32 s%d, s%d, 3200' % (S_T, g.s_tmp))
        k('s_mov_b64 exec, 0x1ffffff')
        k('buffer_load_dword v234, v%d, %s, s%d offen' % (t, srd(SRD_WO), S_T))
        k('s_mov_b64 exec, -1')
    k('v_lshrrev_b32 v%d, 2, v1' % t)
    k('v_mul_u32_u24 v%d, %d, v%d' % (t, F * 2, t))
    k('v_and_b32 v%d, 3, v1' % (t + 1))
    k('v_lshl_add_u32 v%d, v%d, 7, v%d' % (t, t + 1, t))
    k('s_mul_i32 s%d, s%d, %d' % (g.s_tmp, g.s_tmp, 16 * F * 2))
    k('s_and_b32 s%d, s2, 7' % g.s_t2)
    k('s_mul_i32 s%d, s%d, 3' % (S_T, g.s_t2))
    k('s_add_u32 s%d, s%d, 4' % (S_T, S_T))
    k('s_lshl_b32 s%d, s%d, 2' % (S_T + 1, g.s_t2))
    k('s_min_u32 s%d, s%d, s%d' % (S_T, S_T, S_T + 1))
    k('s_lshl_b32 s%d, s%d, 7' % (S_T, S_T))
    k('s_add_u32 s%d, s%d, s%d' % (S_T, S_T, g.s_tmp))
    k('s_cmp_lt_u32 s%d, 4' % g.s_t2)
    k('s_cselect_b32 exec_lo, -1, 0x77777777')
    k('s_cselect_b32 exec_hi, -1, 0x77777777')
    k('buffer_load_dword v%d, v%d, %s, s%d offen' % (vdst, t, srd(SRD_W1), S_T))
    k('s_mov_b64 exec, -1')


def G_w_read(k, which, t, slot, areg):
    g = G
    va, vb = (g.vRa, g.vRb) if which == 1 else (g.vSa, g.vSb)
    sec = 1024
    assert k.slot_content[slot] == (which, t, 1), (k.slot_content[slot], which, t)
    k.wait_tag('slot%d' % slot)
    for i, v in enumerate((va, vb)):
        k('ds_read_b64_tr_b16 %s, v%d offset:%d' % (ar(areg + 4 * i, 2), v, slot * 2048), tag='rd%d' % slot)
        k('ds_read_b64_tr_b16 %s, v%d offset:%d' % (ar(areg + 4 * i + 2, 2), v, slot * 2048 + sec), tag='rd%d' % slot)


def G_a_setup(k, which):
    g = G
    nks = 128 if which == 1 else 112
    per = 32 if which == 1 else 28
    base = HH_OFF if which == 1 else U_OFF
    s_dt = g.s_dtC if which == 1 else g.s_dtD
    k('s_lshl_b32 s%d, s%d, 1' % (g.s_tmp, s_dt))
    k('s_and_b32 s%d, s3, 1' % g.s_t2)
    k('s_add_u32 s%d, s%d, s%d' % (g.s_a0, g.s_tmp, g.s_t2))
    k('s_xor_b32 s%d, s%d, 1' % (g.s_a1, g.s_a0))
    k('s_mul_i32 s%d, s3, %d' % (g.s_tmp, per * 1024))
    k('s_add_u32 s%d, s%d, 0x%x' % (g.s_tmp, g.s_tmp, base))
    for s_ in (g.s_a0, g.s_a1):
        k('s_mul_i32 s%d, s%d, %d' % (s_, s_, nks * 1024))
        k('s_add_u32 s%d, s%d, s%d' % (s_, s_, g.s_tmp))


def G_a_load(k, t, sc1='', vo=4, which=1):
    g = G
    if t % 4 == 0:
        gr = (S_GC if which == 1 else S_GD) + t // 4
        k('s_add_u32 s%d, s%d, s%d' % (g.s_b0, g.s_a0, gr))
        k('s_add_u32 s%d, s%d, s%d' % (g.s_b1, g.s_a1, gr))
    r = g.RING + 8 * (t % g.NR)
    for i, s_ in enumerate((g.s_b0, g.s_b1)):
        k('buffer_load_dwordx4 %s, v%d, %s, s%d offen offset:%d %s' % (vr(r + 4 * i, 4), vo, srd(SRD_WS), s_, (t % 4) * 1024, sc1))


def G_mfma(k, t, areg):
    g = G
    r = g.RING + 8 * (t % g.NR)
    for iw in range(2):
        for ia in range(2):
            L = 2 * iw + ia
            a = vr(g.ACC + 16 * L, 16)
            c = '0' if (t == 0 and L != 0) else a
            k('v_mfma_f32_32x32x16_bf16 %s, %s, %s, %s' % (a, ar(areg + 4 * iw, 4), vr(r + 4 * ia, 4), c))


def G_mfma_tail(k, ts, areg, order, writes):
    g = G
    pend = []
    for L in order:
        iw, ia = L >> 1, L & 1
        a = vr(g.ACC + 16 * L, 16)
        for n, t in enumerate(ts):
            r = g.RING + 8 * (t % g.NR)
            k('v_mfma_f32_32x32x16_bf16 %s, %s, %s, %s' % (a, ar(areg(t) + 4 * iw, 4), vr(r + 4 * ia, 4), a))
            if n >= 1:
                per = -(-len(pend) // (len(ts) - n))
                for f in pend[:per]:
                    f()
                pend = pend[per:]
        pend = pend + list(writes.get(L, []))
    for f in pend:
        f()


def C_init(k):
    g = G
    t = g.T
    k('v_lshrrev_b32 v%d, 5, v1' % t)
    k('v_lshlrev_b32 v%d, 3, v%d' % (t, t))
    k('s_lshl_b32 s%d, s%d, 7' % (g.s_tmp, g.s_ft))
    k('s_lshr_b32 s%d, s3, 1' % g.s_t2)
    k('s_lshl_b32 s%d, s%d, 6' % (g.s_t2, g.s_t2))
    k('s_add_u32 s%d, s%d, s%d' % (g.s_tmp, g.s_tmp, g.s_t2))
    for q in range(4):
        k('buffer_load_dwordx2 %s, v%d, %s, s%d offen offset:%d' % (vr(t + 2 + 2 * q, 2), t, srd(SRD_B1), g.s_tmp, 16 * q))


def C_init_finish(k):
    g = G
    t = g.T
    for q in range(4):
        for i in range(2):
            k('v_lshlrev_b32 v%d, 16, v%d' % (g.ACC + 4 * q + 2 * i, t + 2 + 2 * q + i))
            k('v_and_b32 v%d, 0xffff0000, v%d' % (g.ACC + 4 * q + 2 * i + 1, t + 2 + 2 * q + i))


def C_epi_addr(k):
    g = G
    t = g.T
    for L in range(1, 4):
        k('s_xor_b32 s%d, s3, %d' % (g.s_tmp, L))
        k('s_mul_i32 s%d, s%d, %d' % (g.s_tmp, g.s_tmp, STG_SZ))
        k('s_add_u32 s%d, s%d, %d' % (g.s_tmp, g.s_tmp, LDS_STG + (L - 1) * 4096))
        k('v_add_u32 v%d, s%d, v4' % (t + L, g.s_tmp))
    k('v_add_u32 v%d, s%d, v4' % (t, g.s_stage))
    k('s_lshl_b32 s%d, s%d, 1' % (g.s_tmp, g.s_dtC))
    k('s_and_b32 s%d, s3, 1' % g.s_t2)
    k('s_add_u32 s%d, s%d, s%d' % (g.s_tmp, g.s_tmp, g.s_t2))
    k('s_mul_i32 s%d, s%d, 112' % (g.s_tmp, g.s_tmp))
    k('s_lshl_b32 s%d, s%d, 2' % (g.s_t2, g.s_ft))
    k('s_add_u32 s%d, s%d, s%d' % (g.s_tmp, g.s_tmp, g.s_t2))
    k('s_and_b32 s%d, s3, 2' % g.s_t2)
    k('s_add_u32 s%d, s%d, s%d' % (g.s_tmp, g.s_tmp, g.s_t2))
    k('s_lshl_b32 s%d, s%d, 10' % (g.s_tmp, g.s_tmp))
    k('s_add_u32 s%d, s%d, 0x%x' % (g.s_tmp, g.s_tmp, U_OFF))
    c1 = -2.0 * 0.7978845608028654 * 1.4426950408889634
    c2 = c1 * 0.044715
    k('s_mov_b32 s88, %s' % f32(c1))
    k('s_mov_b32 s90, %s' % f32(c2))
    k('v_mov_b32 v%d, s88' % (t + 4))
    k('v_mov_b32 v%d, s88' % (t + 5))


def C_epi_writes(k):
    g = G
    t = g.T
    return {L: [lambda L=L, q=q: k('ds_write_b128 v%d, %s offset:%d' % (t + L, vr(g.ACC + 16 * L + 4 * q, 4), q * 1024))
                for q in range(4)] for L in range(1, 4)}


def C_epilogue(k, sc1=''):
    g = G
    t = g.T
    k.c('---- phase C epilogue')
    k.wait_lg(0)
    k.barrier()
    R = g.ACC + 16
    for q in range(4):
        for L in range(3):
            k('ds_read_b128 %s, v%d offset:%d' % (vr(R + 16 * L + 4 * q, 4), t, L * 4096 + q * 1024))
    sc = 88
    X2 = g.RING
    for half in range(2):
        for i in range(8 * half, 8 * half + 8, 2):
            a = g.ACC + i
            k('v_pk_add_f32 %s, %s, %s' % (vr(R + i, 2), vr(R + i, 2), vr(R + 16 + i, 2)))
            k('v_pk_add_f32 %s, %s, %s' % (vr(a, 2), vr(a, 2), vr(R + 32 + i, 2)))
        for i in range(8 * half, 8 * half + 8, 2):
            a = g.ACC + i
            k('v_pk_add_f32 %s, %s, %s' % (vr(a, 2), vr(a, 2), vr(R + i, 2)))
        for i in range(8 * half, 8 * half + 8, 2):
            a = g.ACC + i
            k('v_pk_mul_f32 %s, %s, %s' % (vr(X2 + i, 2), vr(a, 2), vr(a, 2)))
        for i in range(8 * half, 8 * half + 8, 2):
            k('v_pk_fma_f32 %s, %s, %s, %s op_sel_hi:[1,0,1]' % (vr(X2 + i, 2), vr(X2 + i, 2), sr(sc + 2, 2), vr(t + 4, 2)))
        for i in range(8 * half, 8 * half + 8, 2):
            k('v_pk_mul_f32 %s, %s, %s' % (vr(X2 + i, 2), vr(X2 + i, 2), vr(g.ACC + i, 2)))
        for i in range(8 * half, 8 * half + 8):
            k('v_exp_f32 v%d, v%d' % (X2 + i, X2 + i))
        for i in range(8 * half, 8 * half + 8, 2):
            k('v_pk_add_f32 %s, %s, 1.0 op_sel_hi:[1,0]' % (vr(X2 + i, 2), vr(X2 + i, 2)))
        for i in range(8 * half, 8 * half + 8):
            k('v_rcp_f32 v%d, v%d' % (X2 + i, X2 + i))
        for i in range(8 * half, 8 * half + 8, 2):
            k('v_pk_mul_f32 %s, %s, %s' % (vr(X2 + i, 2), vr(X2 + i, 2), vr(g.ACC + i, 2)))
        p = X2 + 16 + 4 * half
        for i in range(4):
            k('v_cvt_pk_bf16_f32 v%d, v%d, v%d' % (p + i, X2 + 8 * half + 2 * i, X2 + 8 * half + 2 * i + 1))
        k('buffer_store_dwordx4 %s, v%d, %s, s%d offen offset:%d %s' % (vr(p, 4), g.vCl, srd(SRD_WS), g.s_tmp, half * 1024, sc1), tag='ust')


def D_init(k, sc1=''):
    g = G
    t = g.T
    k('v_lshrrev_b32 v%d, 5, v1' % t)
    k('v_lshlrev_b32 v%d, 3, v%d' % (t, t))
    k('s_lshl_b32 s%d, s%d, 7' % (g.s_tmp, g.s_st))
    k('s_lshr_b32 s%d, s3, 1' % g.s_t2)
    k('s_lshl_b32 s%d, s%d, 6' % (g.s_t2, g.s_t2))
    k('s_add_u32 s%d, s%d, s%d' % (g.s_tmp, g.s_tmp, g.s_t2))
    for q in range(4):
        k('buffer_load_dwordx2 %s, v%d, %s, s%d offen offset:%d' % (vr(t + 2 + 2 * q, 2), t, srd(SRD_B2), g.s_tmp, 16 * q))


def D_init_finish(k):
    g = G
    t = g.T
    for q in range(4):
        for i in range(2):
            a = g.ACC + 4 * q + 2 * i
            k('v_lshlrev_b32 v%d, 16, v%d' % (a, t + 2 + 2 * q + i))
            k('v_and_b32 v%d, 0xffff0000, v%d' % (a + 1, t + 2 + 2 * q + i))
            k('v_lshlrev_b32 v%d, 16, v%d' % (t + 18, B.HK + 2 * q + i))
            k('v_and_b32 v%d, 0xffff0000, v%d' % (t + 19, B.HK + 2 * q + i))
            k('v_pk_add_f32 %s, %s, %s' % (vr(a, 2), vr(a, 2), vr(t + 18, 2)))


def D_epilogue(k, lds_red, stride):
    g = G
    t = g.T
    k.c('---- phase D epilogue')
    k('v_lshrrev_b32 v%d, 5, v1' % t)
    k('v_lshlrev_b32 v%d, 10, v%d' % (t, t))
    k('v_and_b32 v%d, 31, v1' % (t + 1))
    k('v_lshl_add_u32 v%d, v%d, 2, v%d' % (t, t + 1, t))
    k('s_lshr_b32 s%d, s3, 1' % g.s_t2)
    k('s_lshl_b32 s%d, s%d, 13' % (g.s_tmp, g.s_t2))
    k('s_and_b32 s%d, s3, 1' % g.s_t2)
    k('s_lshl_b32 s%d, s%d, 7' % (g.s_t2, g.s_t2))
    k('s_add_u32 s%d, s%d, s%d' % (g.s_tmp, g.s_tmp, g.s_t2))
    k('v_add_u32 v%d, s%d, v%d' % (t, g.s_tmp, t))
    k('v_xor_b32 v%d, 128, v%d' % (t + 1, t))
    k('v_xor_b32 v%d, 0x2000, v%d' % (t + 2, t))
    k('v_xor_b32 v%d, 0x2080, v%d' % (t + 3, t))
    k('s_mul_i32 s%d, s3, %d' % (g.s_tmp, stride))
    k('s_add_u32 s%d, s%d, %d' % (g.s_tmp, g.s_tmp, lds_red))
    for L in range(4):
        k('v_add_u32 v%d, s%d, v%d' % (t + L, g.s_tmp, t + L))
    k('s_lshl_b32 s%d, s3, 12' % g.s_tmp)
    k('s_add_u32 s%d, s%d, %d' % (g.s_tmp, g.s_tmp, lds_red))
    k('v_add_u32 v%d, s%d, v4' % (t + 4, g.s_tmp))
    k('v_add_u32 v%d, %d, v%d' % (t + 6, 2 * stride, t + 4))
    k('v_mul_u32_u24 v%d, 896, v3' % (t + 5))
    k('v_lshl_add_u32 v%d, v2, 3, v%d' % (t + 5, t + 5))
    k('s_lshl_b32 s%d, s%d, 2' % (g.s_tmp, g.s_st))
    k('s_add_u32 s%d, s%d, s3' % (g.s_tmp, g.s_tmp))
    k('s_mul_i32 s%d, s%d, %d' % (g.s_tmp, g.s_tmp, 16 * 896))
    k('s_lshl_b32 s%d, s%d, 7' % (g.s_t2, g.s_dtD))
    k('s_add_u32 s%d, s%d, s%d' % (g.s_tmp, g.s_tmp, g.s_t2))
    k('s_add_u32 s%d, s%d, %d' % (g.s_t2, g.s_tmp, 8 * 896))


def D_epi_writes(k):
    g = G
    t = g.T
    return {L: [lambda L=L, q=q, r=r: k('ds_write2st64_b32 v%d, v%d, v%d offset0:%d offset1:%d' % (
        t + L, g.ACC + 16 * L + 4 * q + r, g.ACC + 16 * L + 4 * q + r + 1, 8 * q + r, 8 * q + r + 1))
        for q in range(4) for r in (0, 2)] for L in range(4)}


def D_epilogue2(k, stride):
    g = G
    t = g.T
    k.wait_lg(0)
    k.barrier()
    R = g.ACC
    for i in range(4):
        for w in range(4):
            k('ds_read_b128 %s, v%d offset:%d' % (vr(R + 16 * i + 4 * w, 4), t + 4 if w < 2 else t + 6, (w & 1) * stride + i * 1024))
    for i in range(4):
        r = R + 16 * i
        for j in (0, 2):
            k('v_pk_add_f32 %s, %s, %s' % (vr(r + j, 2), vr(r + j, 2), vr(r + 4 + j, 2)))
            k('v_pk_add_f32 %s, %s, %s' % (vr(r + 8 + j, 2), vr(r + 8 + j, 2), vr(r + 12 + j, 2)))
        for j in (0, 2):
            k('v_pk_add_f32 %s, %s, %s' % (vr(r + j, 2), vr(r + j, 2), vr(r + 8 + j, 2)))
        k('v_cvt_pk_bf16_f32 v%d, v%d, v%d' % (r + 4, r, r + 1))
        k('v_cvt_pk_bf16_f32 v%d, v%d, v%d' % (r + 5, r + 2, r + 3))
        k('buffer_store_dwordx2 %s, v%d, %s, s%d offen offset:%d' % (vr(r + 4, 2), t + 5, srd(SRD_OUT), g.s_t2 if i >= 2 else g.s_tmp, (i % 2) * 4 * 896))
```

```python
from dsl import vr, ar, sr, classify
import phases as P
import cd2
from phases import G, B, srd, f32, SRD_WS, S_EPOCH, S_T, STAT_OFF, TMP, OOB, D

NT = 176
NTMP = 64
NT_OFF = 6144
vSt, vNw, vNr, vRaw, vNrm = 13, 14, 15, 9, 211
s_st, s_inv = 62, 92


def stat_zero(k):
    t = TMP
    k('s_lshl_b32 s%d, s48, 2' % S_T)
    k('s_add_u32 s%d, s%d, s3' % (S_T, S_T))
    k('s_lshl_b32 s%d, s%d, 8' % (S_T, S_T))
    k('s_add_u32 s%d, s%d, 0x%x' % (S_T, S_T, STAT_OFF))
    k('v_mov_b32 v%d, 0' % (t + 1))
    k('v_lshlrev_b32 v%d, 2, v1' % t)
    k('s_cmp_eq_u32 s49, 0')
    k('s_cselect_b64 exec, -1, 0')
    k('buffer_store_dword v%d, v%d, %s, s%d offen sc1' % (t + 1, t, srd(SRD_WS), S_T), tag='ost')
    k('s_mov_b64 exec, -1')


def setup_early(k):
    g = G
    t = TMP
    k('v_bfe_u32 v%d, v1, 1, 1' % t)
    k('v_lshlrev_b32 v%d, 7, v%d' % (vSt, t))
    k('v_and_b32 v%d, 1, v3' % t)
    k('v_lshl_add_u32 v%d, v%d, 6, v%d' % (vSt, t, vSt))
    k('v_lshrrev_b32 v%d, 5, v1' % t)
    k('v_lshl_add_u32 v%d, v%d, 5, v%d' % (vSt, t, vSt))
    k('v_bfe_u32 v%d, v1, 2, 2' % t)
    k('v_lshl_add_u32 v%d, v%d, 3, v%d' % (vSt, t, vSt))
    k('v_and_b32 v%d, 1, v1' % t)
    k('v_lshl_add_u32 v%d, v%d, 2, v%d' % (vSt, t, vSt))
    k('v_lshrrev_b32 v%d, 3, v1' % vNw)
    k('v_lshlrev_b32 v%d, 7, v%d' % (vNw, vNw))
    k('v_bfe_u32 v%d, v1, 1, 1' % t)
    k('v_lshl_add_u32 v%d, v%d, 6, v%d' % (vNw, t, vNw))
    k('v_bfe_u32 v%d, v1, 2, 1' % t)
    k('v_lshl_add_u32 v%d, v%d, 4, v%d' % (vNw, t, vNw))
    k('v_and_b32 v%d, 1, v1' % t)
    k('v_lshl_add_u32 v%d, v%d, 3, v%d' % (vNw, t, vNw))
    k('v_add_u32 v%d, s%d, v%d' % (vNw, g.s_stage, vNw))
    k('v_lshrrev_b32 v%d, 5, v1' % t)
    k('v_lshlrev_b32 v%d, 6, v%d' % (t, t))
    k('v_add_u32 v%d, s%d, v%d' % (vNr, g.s_stage, t))


def setup_late(k, vPZ):
    g, b = G, B
    t = b.T
    k('s_lshl_b32 s%d, s%d, 1' % (s_st, g.s_st))
    k('s_lshr_b32 s%d, s3, 1' % S_T)
    k('s_add_u32 s%d, s%d, s%d' % (s_st, s_st, S_T))
    k('s_lshl_b32 s%d, s%d, 8' % (s_st, s_st))
    k('s_add_u32 s%d, s%d, 0x%x' % (s_st, s_st, STAT_OFF))
    k('s_mov_b32 s%d, %s' % (s_inv, f32(1.0 / D)))
    P.B_hh_addr(k)
    k('s_bitcmp1_b32 s3, 0')
    k('s_cselect_b32 s%d, 0x%x, 0' % (S_T, OOB))
    k('v_add_u32 v%d, s%d, v4' % (b.vSw, S_T))
    k('s_cselect_b32 s%d, 0, 0x%x' % (S_T, OOB))
    k('v_add_u32 v252, s%d, v4' % S_T)
    k('v_mul_u32_u24 v%d, 37, v1' % t)
    k('v_lshrrev_b32 v%d, 8, v%d' % (t, t))
    k('v_mul_u32_u24 v%d, 7, v%d' % (t + 1, t))
    k('v_sub_u32 v%d, v1, v%d' % (t + 1, t + 1))
    k('v_min_u32 v%d, 6, v%d' % (t + 1, t + 1))
    k('s_lshl_b32 s%d, s3, 3' % S_T)
    k('v_add_u32 v%d, s%d, v%d' % (t, S_T, t))
    k('v_mov_b32 v%d, s%d' % (t + 2, g.s_st))
    k('v_subrev_u32 v%d, 56, v1' % (t + 3))
    k('v_min_u32 v%d, 6, v%d' % (t + 3, t + 3))
    k('v_cmp_le_u32 vcc, 56, v1')
    k('v_cndmask_b32 v%d, v%d, v%d, vcc' % (t, t, t + 2))
    k('v_cndmask_b32 v%d, v%d, v%d, vcc' % (t + 1, t + 1, t + 3))
    k('v_lshlrev_b32 v%d, 10, v%d' % (t, t))
    k('v_lshl_add_u32 v%d, v%d, 7, v%d' % (vPZ, t + 1, t))
    for i, mk in enumerate((0xaaaaaaaa, 0xcccccccc)):
        k('s_mov_b32 s%d, 0x%x' % (88 + 2 * i, mk))
        k('s_mov_b32 s%d, 0x%x' % (89 + 2 * i, mk))


def b_tail(k, sc1):
    b = B
    t, A = b.T, b.ACC
    for tp in range(2):
        for i in range(4):
            k('v_cvt_pk_bf16_f32 v%d, v%d, v%d' % (b.HK + 4 * tp + i, A + 8 * tp + 2 * i, A + 8 * tp + 2 * i + 1))
        k('buffer_store_dwordx4 %s, v%d, %s, s%d offen offset:%d %s' % (vr(b.HK + 4 * tp, 4), b.vSw, srd(SRD_WS), b.s_x, tp * 1024, sc1), tag='hst')
    Q, V = t + 4, t + 20
    for i in range(0, 16, 2):
        k('v_pk_mul_f32 %s, %s, %s' % (vr(Q + i, 2), vr(A + i, 2), vr(A + i, 2)))

    def src(base, q, idx):
        return base + 4 * q + (((idx & 1) << 1) | (idx >> 1))
    for odd, bm in ((0, '0x3'), (1, '0xc')):
        for base, dst in ((A, V), (Q, V + 8)):
            k.bg()
            for q in range(4):
                for p in range(2):
                    x = src(base, q, 2 * p + odd)
                    k('v_add_f32_dpp v%d, v%d, v%d row_mirror row_mask:0xf bank_mask:%s' % (dst + 2 * q + p, x, x, bm))
    for i in range(8):
        k('v_add_f32_dpp v%d, v%d, v%d row_half_mirror row_mask:0xf bank_mask:0x5' % (V + 2 * i, V + 2 * i, V + 2 * i))
    for i in range(8):
        k('v_add_f32_dpp v%d, v%d, v%d row_half_mirror row_mask:0xf bank_mask:0xa' % (V + 2 * i, V + 2 * i + 1, V + 2 * i + 1))
    for kind in range(2):
        for i in range(2):
            k('v_permlane16_swap_b32 v%d, v%d' % (V + 8 * kind + 4 * i, V + 8 * kind + 4 * i + 2))
    U = Q
    for kind in range(2):
        for i in range(2):
            k('v_add_f32 v%d, v%d, v%d' % (U + 2 * kind + i, V + 8 * kind + 4 * i, V + 8 * kind + 4 * i + 2))
    for i in range(4):
        k('v_add_f32_dpp v%d, v%d, v%d quad_perm:[1,0,3,2] row_mask:0xf bank_mask:0xf' % (U + 4 + i, U + i, U + i))
    for i in range(4):
        k('v_add_f32_dpp v%d, v%d, v%d quad_perm:[2,3,0,1] row_mask:0xf bank_mask:0xf' % (U + i, U + 4 + i, U + 4 + i))
    k('v_cndmask_b32 v%d, v%d, v%d, s[88:89]' % (U, U, U + 2))
    k('v_cndmask_b32 v%d, v%d, v%d, s[88:89]' % (U + 1, U + 1, U + 3))
    k('v_cndmask_b32 v%d, v%d, v%d, s[90:91]' % (U, U, U + 1))
    k('buffer_atomic_add_f32 v%d, v%d, %s, s%d offen' % (U, vSt, srd(SRD_WS), s_st), tag='hst')
    k.bg_flush()


def poll4(k, voff, s_off, regs):
    L, done = k.newlabel('Lpoll'), k.newlabel('Lpd')

    def ld(i):
        return k('buffer_load_dwordx4 %s, v%d, %s, s%d offen sc1' % (vr(regs + 4 * i, 4), voff, srd(SRD_WS), s_off))
    ld(0)
    k('s_sleep 6')
    k.loop_label(L)
    P.spin_guard(k)
    last = []
    for i in range(2):
        k.vm = []
        last.append(ld(1 - i))
        k._emit(classify('s_waitcnt vmcnt(1)'))
        k.vm = []
        p = regs + 4 * i
        for j in range(4):
            k('v_xor_b32 v%d, s%d, v%d' % (p + j, S_EPOCH, p + j))
        k('v_or3_b32 v%d, v%d, v%d, v%d' % (p, p, p + 1, p + 2))
        k('v_or_b32 v%d, v%d, v%d' % (p, p, p + 3))
        k('v_cmp_ne_u32 vcc, 0, v%d' % p)
        k('%s %s' % (('s_cbranch_vccz', 's_cbranch_vccnz')[i], (done, L)[i]))
    k.fence()
    k.raw(done + ':')
    k.vm = list(last)


X, Y, OW = 48, 32, 64


def stats_load(k, sc):
    k('s_lshl_b32 s%d, s3, 12' % S_T)
    k('s_add_u32 s%d, s%d, 0x%x' % (S_T, S_T, STAT_OFF))
    for i in range(4):
        k('buffer_load_dwordx4 %s, v4, %s, s%d offen offset:%d %s' % (vr(X + 4 * i, 4), srd(SRD_WS), S_T, i * 1024, sc))
    k('v_and_b32 v%d, 31, v1' % (OW + 4))
    k('v_lshlrev_b32 v%d, 3, v%d' % (OW + 5, OW + 4))
    k('buffer_load_dwordx2 %s, v%d, %s, s%d offen %s' % (vr(OW, 2), OW + 5, srd(SRD_WS), s_st, sc))


def _fin(k, items):
    def each(fn):
        for it in items:
            fn(*it)
    each(lambda s_, q, r, mr, f: k('v_pk_mul_f32 %s, %s, %s op_sel_hi:[1,0]' % (vr(s_, 2), vr(s_, 2), sr(s_inv, 2))))
    each(lambda s_, q, r, mr, f: k('v_fma_f32 v%d, -v%d, v%d, v%d' % (q, s_, s_, q)))
    each(lambda s_, q, r, mr, f: k('v_max_f32 v%d, 0, v%d' % (q, q)))
    each(lambda s_, q, r, mr, f: k('v_add_f32 v%d, %s, v%d' % (r, f32(1e-5), q)))
    each(lambda s_, q, r, mr, f: k('v_rsq_f32 v%d, v%d' % (r, r)))
    each(lambda s_, q, r, mr, f: k('v_mul_f32 v%d, v%d, v%d' % (q, q, r)))
    each(lambda s_, q, r, mr, f: k('v_fmaak_f32 v%d, v%d, v%d, %s' % (q, q, r, f32(1e-5))))
    each(lambda s_, q, r, mr, f: k('v_rsq_f32 v%d, v%d' % (q, q)))
    each(lambda s_, q, r, mr, f: k('v_mul_f32 v%d, v%d, v%d' % (r, r, q)))
    each(lambda s_, q, r, mr, f: k('v_mul_f32 v%d, v%d, v%d' % (mr, s_, r)))


def stats_finish(k, sc):
    b = B
    items = [(X + 4 * i + 2 * j, X + 4 * i + 2 * j + 1, Y + 4 * i + j, Y + 4 * i + 2 + j, 1) for i in range(4) for j in range(2)]
    items.append((OW, OW + 1, OW + 2, OW + 3, 1))
    _fin(k, items)
    for i in range(4):
        k('ds_write_b64 v%d, %s offset:%d' % (vNw, vr(Y + 4 * i, 2), NT_OFF + i * 1024))
        k('ds_write_b64 v%d, %s offset:%d' % (vNw, vr(Y + 4 * i + 2, 2), NT_OFF + i * 1024 + 32))
    k('s_lshl_b32 s%d, s3, 8' % S_T)
    k('v_lshl_add_u32 v%d, v%d, 2, s%d' % (OW + 5, OW + 4, S_T))
    k('ds_write_b32 v%d, v%d offset:%d' % (OW + 5, OW + 2, 1024))
    k('ds_write_b32 v%d, v%d offset:%d' % (OW + 5, OW + 3, 1024 + 128))
    k('v_lshrrev_b32 v%d, 5, v1' % (OW + 5))
    k('v_lshl_add_u32 v%d, v%d, 4, s%d' % (OW + 5, OW + 5, S_T))
    k.wait_lg(0)
    nt_read(k, 0)
    for q in range(4):
        k('ds_read_b128 %s, v%d offset:%d' % (vr(Y + 4 * q, 4), OW + 5, 1024 + 32 * q))
        k('ds_read_b128 %s, v%d offset:%d' % (vr(X + 4 * q, 4), OW + 5, 1024 + 128 + 32 * q))
    A = b.ACC
    for tp in range(2):
        for i in range(8 * tp, 8 * tp + 8, 2):
            k('v_pk_fma_f32 %s, %s, %s, %s neg_lo:[0,0,1] neg_hi:[0,0,1]' % (vr(A + i, 2), vr(A + i, 2), vr(Y + i, 2), vr(X + i, 2)))
        p = X + 8 * tp
        for i in range(4):
            k('v_cvt_pk_bf16_f32 v%d, v%d, v%d' % (p + i, A + 8 * tp + 2 * i, A + 8 * tp + 2 * i + 1))
        k('buffer_store_dwordx4 %s, v%d, %s, s%d offen offset:%d %s' % (vr(p, 4), 252, srd(SRD_WS), b.s_x, tp * 1024, sc), tag='nst')
    nt_read(k, 1)


def nt_read(k, t):
    r = NT + 16 * (t % 2)
    for i in range(4):
        k('ds_read_b128 %s, v%d offset:%d' % (vr(r + 4 * i, 4), vNr, NT_OFF + t * 128 + 16 * i))


def unpack_ops(k, n):
    r = cd2.RING + 4 * (n % cd2.NRS)
    out = []
    for i in range(4):
        out.append(lambda i=i: k('v_lshlrev_b32 v%d, 16, v%d' % (NTMP + 2 * i, r + i)))
        out.append(lambda i=i: k('v_and_b32 v%d, s91, v%d' % (NTMP + 2 * i + 1, r + i)))
    return out


def scale_ops(k, n):
    a = NT + 16 * (n % 2)
    return [lambda i=i: k('v_fma_f32 v%d, v%d, v%d, -v%d' % (NTMP + i, NTMP + i, a + i, a + 8 + i)) for i in range(8)]


def pack_ops(k, n):
    r = cd2.RING + 4 * (n % cd2.NRS)
    return [lambda i=i: k('v_cvt_pk_bf16_f32 v%d, v%d, v%d' % (r + i, NTMP + 2 * i, NTMP + 2 * i + 1)) for i in range(4)]
```

```python
import sys, os
sys.path.insert(0, os.path.dirname(os.path.abspath(__file__)))
from dsl import Kernel
import phases as P
import cd2
import a2
import zmode as Z

NAME = 'sequential_preLN__sliding_local_dilated__mixer_token_mlp__prompt'
HEADER = open(os.path.join(os.path.dirname(os.path.abspath(__file__)), '..', NAME + '.s.ref')).read().split('; Override launch')[0]


def wrap(kernels):
    out = [HEADER.rstrip('\n')]
    for label, k, grid, lds in kernels:
        if len(kernels) == 1 and label == NAME + '_kernel':
            out.append('; @launch grid=(%d,1,1) block=(256,1,1) lds=%d' % (grid, lds))
        else:
            out.append('; @launch kernel=%s grid=(%d,1,1) block=(256,1,1) lds=%d' % (label, grid, lds))
    out.append('.amdgcn_target "amdgcn-amd-amdhsa--gfx950"')
    out.append('.text')
    seen = []
    for label, k, grid, lds in kernels:
        if label in seen:
            continue
        seen.append(label)
        out.append('.globl %s\n.p2align 8\n.type %s,@function\n%s:' % (label, label, label))
        out.append(k.text())
    out.append('.section .rodata,"a"')
    seen = []
    for label, k, grid, lds in kernels:
        if label in seen:
            continue
        seen.append(label)
        nv = k.max_v + 1
        acc = (nv + 3) // 4 * 4
        tot = acc + k.max_a + 1 if k.max_a >= 0 else nv
        out.append('.p2align 6\n.amdhsa_kernel %s\n  .amdhsa_next_free_vgpr %d\n  .amdhsa_next_free_sgpr 102\n'
                   '  .amdhsa_accum_offset %d\n  .amdhsa_group_segment_fixed_size 0\n  .amdhsa_kernarg_size 88\n'
                   '  .amdhsa_user_sgpr_count 2\n  .amdhsa_user_sgpr_kernarg_segment_ptr 1\n'
                   '  .amdhsa_system_sgpr_workgroup_id_x 1\n.end_amdhsa_kernel' % (label, tot, acc))
        sys.stderr.write('%s: %d instrs, %d nops, v<=%d a<=%d s<=%d\n' % (label, k.n_ins, k.n_nops, k.max_v, k.max_a, k.max_s))
    return '\n'.join(out) + '\n'


def kernel_A(stamps=False):
    k = Kernel('A'); k.stamps = stamps
    P.prologue(k, 256, 'L_end_A', [P.ARG[n] for n in ('x', 'wqkv', 'ws')])
    P.stamp(k, 0)
    P.phaseA(k)
    P.stamp(k, 5)
    k.wait_vm(0)
    P.stamp(k, 6)
    k.label('L_end_A')
    k('s_endpgm')
    return ('phaseA_kernel', k, 256, P.A_LDS_END)


OPT = {}


def persist(stamps=False):
    k = Kernel('P'); k.stamps = stamps; k.scramble = OPT.get('scramble', False); k.xcctest = OPT.get('xcctest', False)
    end = 'L_end_P'
    g, b = P.G, P.B
    SC = 'sc1'
    ZM = OPT.get('z', False)
    sFZ, sPZ, vPZ = 63, 79, 219
    if ZM:
        P.ROT = False
        cd2.NRS = 24
    SCL = OPT.get('scl', 'sc1')
    vE, vF, vPA, vPB, vPC = 6, 8, 10, 11, 12
    sFA, sFB, sFC, sPA, sPB, sPC = 80, 81, 82, 83, 84, 85
    P.prologue(k, 256, end, [P.ARG[n] for n in ('x', 'wqkv', 'dbg', 'ws', 'wo', 'w1', 'w2', 'b1', 'b2', 'out')])
    P.stamp(k, 0)

    def areg(t):
        return 128 + 8 * t if t < 16 else 8 * (t - 16)

    def setup():
        P.G_map(k)
        P.B_setup(k)
        P.G_w_setup(k, 1, P.LDS_STG, P.STG_SZ)
        P.G_w_setup(k, 2, P.LDS_STG, P.STG_SZ)
        P.G_rot_setup(k, 1)
        t = 93
        AG = OPT.get('ag', 2)
        if P.M2:
            k('s_lshl_b32 s%d, s48, 11' % sFA)
        else:
            k('s_lshl_b32 s%d, s48, 2' % sFA)
            k('s_add_u32 s%d, s%d, s3' % (sFA, sFA))
            k('s_lshl_b32 s%d, s%d, 11' % (sFA, sFA))
        k('s_lshr_b32 s%d, s49, %d' % (t, AG))
        k('s_lshl_b32 s%d, s%d, 7' % (t, t))
        k('s_add_u32 s%d, s%d, s%d' % (sFA, sFA, t))
        k('s_and_b32 s%d, s49, %d' % (t, (1 << AG) - 1))
        k('s_lshl_b32 s%d, s%d, 2' % (t, t))
        k('s_add_u32 s%d, s%d, s%d' % (sFA, sFA, t))
        k('s_add_u32 s%d, s%d, 0x%x' % (sFA, sFA, P.FLAG_A))
        k('s_lshl_b32 s%d, s%d, 1' % (sPA, g.s_st))
        k('s_lshr_b32 s%d, s3, 1' % t)
        k('s_add_u32 s%d, s%d, s%d' % (sPA, sPA, t))
        k('s_lshl_b32 s%d, s%d, 11' % (sPA, sPA))
        k('s_add_u32 s%d, s%d, 0x%x' % (sPA, sPA, P.FLAG_A))
        k('v_lshrrev_b32 v%d, %d, v2' % (vPA, AG))
        k('v_lshlrev_b32 v%d, 7, v%d' % (vPA, vPA))
        k('v_and_b32 v%d, %d, v2' % (P.TMP, (1 << AG) - 1))
        k('v_lshl_add_u32 v%d, v%d, 2, v%d' % (vPA, P.TMP, vPA))
        k('s_lshl_b32 s%d, s%d, 12' % (sPB, g.s_dtC))
        k('s_lshl_b32 s%d, s%d, 1' % (sPC, sPB))
        k('s_add_u32 s%d, s%d, 0x%x' % (sPC, sPC, P.FLAG_C))
        k('s_add_u32 s%d, s%d, 0x%x' % (sPB, sPB, P.FLAG_B))
        k('s_lshl_b32 s%d, s%d, 5' % (sFB, g.s_st))
        k('s_add_u32 s%d, s%d, s3' % (sFB, sFB))
        k('s_lshl_b32 s%d, s%d, 2' % (sFB, sFB))
        k('s_add_u32 s%d, s%d, s%d' % (sFB, sFB, sPB))
        k('s_lshl_b32 s%d, s3, 10' % t)
        k('s_add_u32 s%d, s%d, s%d' % (sPB, sPB, t))
        k('v_bfe_u32 v%d, v1, 2, 3' % vPB)
        k('v_min_u32 v%d, 6, v%d' % (vPC, vPB))
        k('v_and_b32 v%d, 3, v1' % P.TMP)
        k('v_lshlrev_b32 v%d, 2, v%d' % (P.TMP, P.TMP))
        k('v_lshl_add_u32 v%d, v%d, 7, v%d' % (vPB, vPB, P.TMP))
        k('v_lshl_add_u32 v%d, v%d, 7, v%d' % (vPC, vPC, P.TMP))
        k('s_lshl_b32 s%d, s%d, 5' % (sFC, g.s_ft))
        k('s_add_u32 s%d, s%d, s3' % (sFC, sFC))
        k('s_lshl_b32 s%d, s%d, 2' % (sFC, sFC))
        k('s_add_u32 s%d, s%d, s%d' % (sFC, sFC, sPC))
        k('s_mul_i32 s%d, s3, 896' % t)
        k('s_add_u32 s%d, s%d, s%d' % (sPC, sPC, t))
        k('v_mov_b32 v%d, 0' % (vF + 1))
        if ZM:
            Z.setup_early(k)
            Z.stat_zero(k)

    hooksA = {
        'A_pre': lambda: P.epoch_publish(k, vE),
        'A_after_issue': setup,
        'A_k%d' % OPT.get('wk', 8): lambda: (P.epoch_load(k, vE), P.W1_warm(k, 235) if OPT.get('w1w', True) else None),
        'A_e1': lambda: P.B_wo_dma(k) if OPT.get('wo_e1', False) else None,
    }
    (a2 if P.M2 else P).phaseA(k, SC, hooksA)
    P.stamp(k, 5)
    if not OPT.get('wo_e1', False):
        P.B_wo_dma(k)
    k.bg(OPT.get('wo_pre', 14))
    P.epoch_get(k, vE)
    k.wait_tag('ost')
    P.flag_store(k, vF, sFA)
    P.stamp(k, 6)
    k.bg_flush()
    notag = k.newlabel('Lnotag')
    k('s_cmp_lt_u32 s%d, 99' % g.s_st)
    k.branch_fwd('s_cbranch_scc1', notag)
    if OPT.get('agent', True):
        P.agent(k)
    else:
        k.wait_vm(0)
    k('s_branch %s' % end)
    k.label(notag)
    P.B_xinit(k)
    P.G_rot_setup(k, 2)
    if ZM:
        Z.setup_late(k, vPZ)
        k('s_lshl_b32 s%d, s%d, 3' % (sFZ, g.s_st))
        k('s_add_u32 s%d, s%d, s%d' % (sFZ, sFZ, g.s_dtD))
        k('s_lshl_b32 s%d, s%d, 5' % (sFZ, sFZ))
        k('s_add_u32 s%d, s%d, s3' % (sFZ, sFZ))
        k('s_lshl_b32 s%d, s%d, 2' % (sFZ, sFZ))
        k('s_add_u32 s%d, s%d, 0x%x' % (sFZ, sFZ, P.FLAG_Z))
        k('s_mov_b32 s%d, 0x%x' % (sPZ, P.FLAG_Z))
    if P.ST14:
        P.B_st14_setup(k)
    N1 = OPT.get('n1', 10)
    N2 = OPT.get('n2', 8)
    NP = OPT.get('np', 4)
    P.G_w_dma(k, 1, 0, NP, 8)
    k.wait_tag('wo')
    k.barrier()
    P.stamp(k, 7)
    P.G_w_dma(k, 1, NP, N1 - NP, 8 + NP, bg=True)
    P.B_wo_read(k, 0)
    k.bg_flush()
    k.wait_lg(0)
    k.barrier()
    P.stamp(k, 8)
    P.flag_poll(k, vF, vPA, sPA)
    P.stamp(k, 10)

    N3 = OPT.get('n3', 8)

    def after_of():
        for t in range(N1):
            P.G_w_read(k, 1, t, 8 + t, areg(t))
        P.G_w_dma(k, 1, N1, N2, 8, bg=True)
        P.B_xinit_finish(k)

    def before_poll():
        P.G_w_dma(k, 1, N1 + N2, N3, 0)

    if ZM:
        P.B_main(k, 0, 0, SC, {'B_after_of': after_of, 'B_tail': lambda: Z.b_tail(k, SC)})
        k.barrier()
        n3a = OPT.get('n3a', 3)
        P.G_w_dma(k, 1, N1 + N2, n3a, 0)
        for t in range(N1, N1 + N2):
            P.G_w_read(k, 1, t, 8 + t - N1, areg(t))
        k.wait_tag('hst')
        P.flag_store(k, vF, sFZ)
        P.stamp(k, 15)
        P.G_w_dma(k, 1, N1 + N2 + n3a, N3 - n3a, n3a)
        for t in range(N1 + N2, N1 + N2 + N3):
            P.G_w_read(k, 1, t, t - N1 - N2, areg(t))
    else:
        P.B_main(k, 0, 0, SC, {'B_after_of': after_of, 'B_before_poll': before_poll})
        P.stamp(k, 14)
        for t in range(N1, N1 + N2):
            P.G_w_read(k, 1, t, 8 + t - N1, areg(t))
        for t in range(N1 + N2, N1 + N2 + N3):
            P.G_w_read(k, 1, t, t - N1 - N2, areg(t))
        k.wait_tag('hst')
        P.flag_store(k, vF, sFB)
        P.stamp(k, 15)
    R1 = N1 + N2 + N3
    M1 = OPT.get('m1', 6)
    assert 6 + 32 - R1 + M1 <= 18
    P.G_w_dma(k, 1, R1, 32 - R1, 6)
    P.G_w_dma(k, 2, 0, M1, 18 - M1)
    cd2.setup(k)
    if ZM:
        Z.poll4(k, vPZ, sPZ, Z.NT)
    else:
        P.flag_poll(k, vF, vPB, sPB)
    P.stamp(k, 16)
    UP = OPT.get('up', 8)
    if ZM:
        Z.stats_load(k, SC)
    for n in range(UP):
        cd2.a_load(k, n, SCL)
    for f in cd2.c_init_ops(k, 0):
        f()
    for t in range(R1, 32):
        P.G_w_read(k, 1, t, 6 + t - R1, areg(t))
    if ZM:
        Z.stats_finish(k, SC)
        for f in Z.unpack_ops(k, 0) + Z.scale_ops(k, 0) + Z.pack_ops(k, 0) + Z.unpack_ops(k, 1) + Z.scale_ops(k, 1):
            f()
        Z.nt_read(k, 2)
    if not ZM:
        k('v_mov_b32 v%d, v%d' % (vF + 1, g.vCl))
    assert M1 == 6

    def w2slot(j):
        return 12 + j if j < 6 else (j if j < 12 else w2slot(j - 12))
    at = {}
    q = []

    def add(s_, *fs):
        at.setdefault(s_, []).extend(fs)

    def spread(s0, ops, per):
        for i, f in enumerate(ops):
            add(s0 + i // per, f)
    add(OPT.get('tb', 16), k.barrier)
    S2 = OPT.get('s2', 10)
    for j in range(6, 12):
        add(S2 + j - 6, lambda j=j: P.G_w_dma(k, 2, j, 1, w2slot(j)))
    spread(20, cd2.c_init_ops(k, 1), 4)
    spread(32, cd2.c_writes(k, 0), 3)
    add(34, lambda: k.wait_lg_tag('cw'), k.barrier, *cd2.c_reads(k, 0))
    EP = OPT.get('ep', 16)
    fin = cd2.c_final_ops(k, 0, SC, False)
    spread(36, fin, EP)
    e0 = 36 + (len(fin) - 1) // EP
    add(e0 + OPT.get('f0', 4), lambda: k.wait_tag('ust0'), lambda: P.flag_store(k, vF, sFC), lambda: P.stamp(k, 21))
    for j in range(12):
        add(e0 - 2 + j // 2 if j // 2 + e0 - 2 >= 32 + j else 32 + j, lambda j=j: P.G_w_read(k, 2, j, w2slot(j), areg(j)))
    WA, WB, NA = OPT.get('wa', 44), OPT.get('wb', 64), OPT.get('na', 8)
    for j in range(12, 28):
        sd = WA + (j - 12) if j < 12 + NA else WB + (j - 12 - NA)
        add(sd, lambda j=j: P.G_w_dma(k, 2, j, 1, w2slot(j)))
        add(max(sd + OPT.get('wl', 8), 32 + j), lambda j=j: P.G_w_read(k, 2, j, w2slot(j), areg(j)))
    spread(e0 + 1, cd2.d_init_ops(k, 0), 6)
    PA, CA = OPT.get('pa', 50), OPT.get('ca', 54)
    add(PA, lambda: cd2.probe(k, 248, vPC, sPC, 0))
    add(CA, lambda: cd2.probe_check(k, 248, vPC, sPC, 0))
    lim = {0: 64, CA + 1: 92}
    if ZM:
        for n in range(32):
            if n + 1 < 32:
                add(n, *Z.pack_ops(k, n + 1))
            if n + 2 < 32:
                add(n, *(Z.unpack_ops(k, n + 2) + Z.scale_ops(k, n + 2)))
            if n + 3 < 32:
                add(n, lambda n=n: Z.nt_read(k, n + 3))
        add(OPT.get('fz', 3), lambda: k.wait_tag('nst'), lambda: P.flag_store(k, vF, sFB),
            lambda: k('v_mov_b32 v%d, v%d' % (vF + 1, g.vCl)))
        PZ, CZ = OPT.get('pz', 17), OPT.get('cz', 21)
        add(PZ, lambda: cd2.probe(k, 248, vPB, sPB, 0))
        add(CZ, lambda: cd2.probe_check(k, 248, vPB, sPB, 0))
        lim = {0: 32, CZ + 1: 64, CA + 1: 92}

    TL = OPT.get('tl', 4)

    def tail(n0, writes1):
        for n in range(n0, n0 + TL):
            cd2.mfma(k, n, 1, areg)
        per = -(-len(writes1) // max(TL - 1, 1))
        for i, n in enumerate(range(n0, n0 + TL)):
            cd2.mfma(k, n, 0, areg)
            if i:
                for f in writes1[per * (i - 1): per * i]:
                    f()

    def c1_epi():
        P.stamp(k, 20)
        for f in cd2.c_writes(k, 1)[4:]:
            f()
        k.wait_lg(0)
        k.barrier()
        for f in cd2.c_reads(k, 1) + cd2.c_final_ops(k, 1, SC, True):
            f()
        k('s_add_u32 s%d, s%d, 4096' % (sFC, sFC))
        k('s_add_u32 s%d, s%d, 4096' % (sPC, sPC))
    add(64 + OPT.get('f1', 4), lambda: k.wait_tag('ust1'), lambda: P.flag_store(k, vF, sFC), lambda: P.stamp(k, 22))
    spread(70, cd2.d_init_ops(k, 1), 6)
    PB, CB = OPT.get('pb', 76), OPT.get('cb', 80)
    add(PB, lambda: cd2.probe(k, 248, vPC, sPC, 0))
    add(CB, lambda: cd2.probe_check(k, 248, vPC, sPC, 0), lambda: P.stamp(k, 24))
    lim[CB + 1] = 120
    spread(92, cd2.d_writes(k, 0), 6)
    add(99, lambda: k.wait_lg(0), k.barrier, *cd2.d_reads(k, 0))
    spread(101, cd2.d_final_ops(k, 0, False), 6)
    nxt, cur = UP, 32
    late = []
    for n in range(120):
        cur = lim.get(n, cur)
        for _ in range(OPT.get('lr', 2) if n > CB else 2):
            if nxt < cur and nxt < n + (OPT.get('lb', 10) if n > CB else OPT.get('la', 10)):
                cd2.a_load(k, nxt, SCL)
                nxt += 1
        fs = at.get(n, [])
        if 64 - TL <= n < 64 or n >= 120 - TL:
            for f in fs:
                assert n >= 120 - TL or True
                late.append(f)
            if n == 63:
                tail(64 - TL, cd2.c_writes(k, 1)[:4])
                for f in late:
                    f()
                late = []
                c1_epi()
            if n == 119:
                tail(120 - TL, cd2.d_writes(k, 1)[:16])
                for f in late:
                    f()
            continue
        cd2.mfma(k, n, 0, areg)
        cd2.mfma(k, n, 1, areg)
        for f in fs:
            f()
        if stamps == 'jit' and n % 6 == 3:
            P.stamp(k, 100 + n)
        if n in (0, 31, 64, 91):
            P.stamp(k, {0: 17, 31: 18, 64: 25, 91: 26}[n])
    P.stamp(k, 28)
    for f in cd2.d_writes(k, 1)[16:]:
        f()
    k.wait_lg(0)
    k.barrier()
    for f in cd2.d_reads(k, 1) + cd2.d_final_ops(k, 1, True):
        f()
    P.stamp(k, 29)
    if stamps:
        k.wait_vm(0)
        P.stamp(k, 30)
    k.label(end)
    k('s_endpgm')
    return (NAME + '_kernel', k, 256, P.LDS_END)


if __name__ == '__main__':
    which = sys.argv[1] if len(sys.argv) > 1 else 'p'
    outp = sys.argv[2] if len(sys.argv) > 2 else os.path.join(os.path.dirname(os.path.abspath(__file__)), '..', NAME + '.s')
    for o in sys.argv[3:]:
        kk, vv = o.split('=')
        OPT[kk] = eval(vv)
    P.OUT_SC = OPT.get('osc', ''); P.ROT = OPT.get('rot', True); P.POLL_DEPTH = OPT.get('pd', 3); P.POLL_GAP = OPT.get('pg', 3); P.POLL_SLEEP = OPT.get('ps', 0); P.ST_SLEEP = OPT.get('sts', 0); P.AGENT_DEPTH = OPT.get('ad', 4); P.START_ORDER = OPT.get('so', '0w|1'); P.WO_LATE = OPT.get('wol', True)
    P.STAMP_SET = OPT.get('ss', (0, 6, 16, 18, 20, 21, 22, 25, 24, 26, 28, 30))
    P.DBL = OPT.get('dbl', 0)
    cd2.SLEEP = OPT.get('sl', 0)
    P.WARM0 = OPT.get('w0', True)
    P.M2 = OPT.get('m2', False)
    P.WROW = OPT.get('wrow', 64)
    P.ST14 = OPT.get('st14', False)
    cd2.OSC = OPT.get('osc2', ['', ''])
    if which == 'p':
        ks = [persist()]
    elif which == 'p_jit':
        P.JIT_SEED = OPT.get('seed', 0)
        ks = [persist('jit')]
    elif which == 'p_dbg':
        ks = [persist('dbg')]
    elif which == 'p_st':
        P.ARG['ws'] = (P.SRD_WS, 80, 0x1000000)
        ks = [persist(True)]
    txt = wrap(ks)
    if OPT.get('align', True):
        import align
        align.NOPS = OPT.get('nops', 0)
        txt, info = align.run(txt)
        sys.stderr.write('align: misaligned 8B instrs %d -> %d (%d promoted)\n' % info)
    open(outp, 'w').write(txt)
```

```python
import struct
from dsl import Kernel, vr, ar, sr, classify

S, D, H, DH, F = 2048, 448, 16, 28, 1792

OF_OFF = 0x000000
HH_OFF = 0x200000
U_OFF = 0x3C0000
STAT_OFF = 0x548000
FLAG_OFF = 0x5C8000
WS_SIZE = 0x610000
OOB = 0x40000000

SRD_X, SRD_WQKV, SRD_WO, SRD_W1, SRD_W2, SRD_B1, SRD_B2, SRD_OUT, SRD_WS, SRD_DBG = 8, 12, 16, 20, 24, 28, 32, 36, 40, 44
SRD_A = 96
S_WG, S_WAVE = 2, 3
S_EPOCH = 4
S_SPIN = 6
S_ONES = 5
S_T = 86
V_LANE, V_T16, V_G, V_L16 = 1, 2, 3, 4


def f32(x):
    return '0x%08x' % struct.unpack('<I', struct.pack('<f', x))[0]


def srd(base):
    return sr(base, 4)


def prologue(k, nwg, end_label, need):
    k('s_cmp_ge_u32 s2, %d' % nwg)
    k('s_cbranch_scc1 %s' % end_label)
    if getattr(k, 'xcctest', False):
        k('s_getreg_b32 s3, hwreg(HW_REG_XCC_ID)')
        k('s_and_b32 s3, s3, 15')
        k('s_and_b32 s4, s2, 7')
        k('s_cmp_eq_u32 s3, s4')
        k('s_cbranch_scc1 Lxcc_ok')
        for _ in range(8):
            k('s_sleep 127')
        k.raw('Lxcc_ok:')
    if getattr(k, 'scramble', False):
        k('s_and_b32 s3, s2, 7')
        k('s_lshl_b32 s3, s3, 5')
        k('s_lshr_b32 s2, s2, 3')
        k('s_or_b32 s2, s2, s3')
    for base, off, size in need:
        k('s_load_dwordx2 %s, s[0:1], %d' % (sr(base, 2), off))
    k('v_lshrrev_b32 v1, 6, v0')
    k('v_readfirstlane_b32 s3, v1')
    k('v_and_b32 v1, 63, v0')
    k('v_and_b32 v2, 15, v0')
    k('v_lshrrev_b32 v3, 4, v1')
    k('v_lshlrev_b32 v4, 4, v1')
    for base, off, size in need:
        k('s_mov_b32 s%d, 0x%x' % (base + 2, size))
        k('s_mov_b32 s%d, 0x00020000' % (base + 3))
    k('s_mov_b32 s%d, 0x3f803f80' % S_ONES)
    k('s_mov_b32 s%d, 0x200000' % S_SPIN)
    k.end_label = end_label


ARG = dict(x=(SRD_X, 0, S * D * 2), wqkv=(SRD_WQKV, 8, D * 3 * D * 2), wo=(SRD_WO, 16, D * D * 2),
           w1=(SRD_W1, 32, S * F * 2), b1=(SRD_B1, 40, F * 2), w2=(SRD_W2, 48, F * S * 2), b2=(SRD_B2, 56, S * 2),
           out=(SRD_OUT, 64, S * D * 2), dbg=(SRD_DBG, 72, 256), ws=(SRD_WS, 80, WS_SIZE))


def xgroup_reduce(k, regs, tmp, op='v_add_f32'):
    for swap in ('v_permlane32_swap_b32', 'v_permlane16_swap_b32'):
        for r, t in zip(regs, tmp):
            k('v_mov_b32 v%d, v%d' % (t, r))
        for r, t in zip(regs, tmp):
            k('%s v%d, v%d' % (swap, r, t))
        for r, t in zip(regs, tmp):
            k('%s v%d, v%d, v%d' % (op, r, r, t))


A_LDS_CS = 0
A_LDS_ST = 512
A_LDS_KV = 2048
A_LDS_W = 12288
A_LDS_X = 61440
A_XSLOT = [2, 1, 0, 3]
A_LDS_END = A_LDS_X + 4 * 18432
LDS_STG = 12288
STG_SZ = 36864
NSLOT = 18
LDS_END = 163840
LDS_WO = 106496
TMP = 219


def xslot(grp):
    return A_XSLOT.index(grp % 4) * 18432


def phaseA(k, sc1='', hooks=None):
    hooks = hooks or {}
    XR = 16
    ACC = 136
    WF = 88
    ONES = 40
    SQ, SM = 48, 60
    vXl, vXu, vXh, vW, vA0, vA1, vH1, vH2 = 120, 121, 122, 123, 124, 125, 126, 127
    vRe, vRo, vHe, vHo = 128, 129, 130, 131
    vT = 237
    BP, BC, BPA = 240, 244, 248
    s_rb, s_head, s_t0, s_m0w, s_m0x, s_tmp = 48, 49, 50, 51, 52, 53
    s_hm = 54
    s_m0h = 7
    s_hv = S_HV
    s_o0, s_o1 = 62, 63

    def hook(name):
        if name in hooks:
            hooks[name]()

    def xreg(j, blk):
        return XR + (j % 2) * 12 + blk * 4

    def acc(blk, nbi):
        return ACC + blk * 24 + nbi * 4
    H1, H2 = ACC + 48, ACC + 52

    k.c('---- phase A setup')
    k('s_bfe_u32 s%d, s2, 0x20001' % s_rb)
    k('s_lshl_b32 s%d, s%d, 2' % (s_rb, s_rb))
    k('s_lshr_b32 s%d, s2, 6' % s_tmp)
    k('s_add_u32 s%d, s%d, s%d' % (s_rb, s_rb, s_tmp))
    k('s_bfe_u32 s%d, s2, 0x30003' % s_head)
    k('s_and_b32 s%d, s2, 1' % s_tmp)
    k('s_lshl_b32 s%d, s%d, 3' % (s_tmp, s_tmp))
    k('s_add_u32 s%d, s%d, s%d' % (s_head, s_head, s_tmp))
    k('v_lshrrev_b32 v%d, 2, v1' % vT)
    k('v_mul_u32_u24 v%d, 2688, v%d' % (vW, vT))
    k('v_lshrrev_b32 v%d, 5, v1' % vT)
    k('v_lshlrev_b32 v%d, 1, v%d' % (vT, vT))
    k('v_and_b32 v%d, 3, v1' % (vT + 1))
    k('v_xor_b32 v%d, v%d, v%d' % (vT, vT, vT + 1))
    k('v_lshl_add_u32 v%d, v%d, 4, v%d' % (vW, vT, vW))
    k('s_mul_i32 s%d, s%d, 56' % (s_tmp, s_head))
    k('s_min_u32 s%d, s%d, 832' % (s_tmp, s_tmp))
    k('s_mul_i32 s%d, s3, %d' % (s_m0w, 16 * 2688))
    k('s_add_u32 s%d, s%d, s%d' % (s_tmp, s_tmp, s_m0w))
    k('v_add_u32 v%d, s%d, v%d' % (vW, s_tmp, vW))
    k('s_lshr_b32 s%d, s3, 1' % s_tmp)
    k('s_mul_i32 s%d, s%d, 6144' % (s_m0w, s_tmp))
    k('s_and_b32 s%d, s3, 1' % s_tmp)
    k('s_lshl_b32 s%d, s%d, 10' % (s_tmp, s_tmp))
    k('s_add_u32 s%d, s%d, s%d' % (s_m0w, s_m0w, s_tmp))
    k('v_lshrrev_b32 v%d, 3, v1' % vT)
    k('v_mul_u32_u24 v%d, 896, v%d' % (vXh, vT))
    k('v_and_b32 v%d, 7, v1' % vT)
    k('v_xor_b32 v%d, v%d, v3' % (vT, vT))
    k('v_lshl_add_u32 v%d, v%d, 4, v%d' % (vXl, vT, vXh))
    k('s_lshl_b32 s%d, s%d, 7' % (s_t0, s_rb))
    k('s_lshl_b32 s%d, s3, 5' % s_tmp)
    k('s_add_u32 s%d, s%d, s%d' % (s_tmp, s_tmp, s_t0))
    k('s_mul_i32 s%d, s%d, 896' % (s_tmp, s_tmp))
    k('v_xor_b32 v%d, 64, v%d' % (vXu, vXl))
    k('v_add_u32 v%d, s%d, v%d' % (vXl, s_tmp, vXl))
    k('s_add_u32 s%d, s%d, %d' % (s_tmp, s_tmp, 8 * 896))
    k('v_add_u32 v%d, s%d, v%d' % (vXu, s_tmp, vXu))
    k('s_lshl_b32 s%d, s3, 1' % s_tmp)
    k('v_xor_b32 v%d, s%d, v%d' % (vT, s_tmp, vT))
    k('v_lshl_add_u32 v%d, v%d, 4, v%d' % (vXh, vT, vXh))
    k('s_lshl_b32 s%d, s3, 2' % s_tmp)
    k('s_add_u32 s%d, s%d, s%d' % (s_tmp, s_tmp, s_t0))
    k('s_sub_u32 s%d, s%d, 16' % (s_tmp, s_tmp))
    k('s_mul_i32 s%d, s%d, 896' % (s_tmp, s_tmp))
    k('s_cmp_eq_u32 s%d, 0' % s_rb)
    k('s_cselect_b32 s%d, 0x%x, s%d' % (s_tmp, OOB, s_tmp))
    k('v_add_u32 v%d, s%d, v%d' % (vXh, s_tmp, vXh))
    k('s_lshl_b32 s%d, s3, 12' % s_m0x)
    k('s_add_u32 s%d, s%d, %d' % (s_m0x, s_m0x, A_LDS_X + 2048))
    k('s_lshl_b32 s%d, s3, 9' % s_m0h)
    k('s_cmp_eq_u32 s3, 0')
    k('s_cselect_b32 s%d, 0xffffff00, -1' % s_hm)
    k('s_mov_b32 s%d, 0' % (s_hm + 1))

    def dma_group(grp, bg=False):
        tag = 'G%d' % grp
        sd = B.s_dma

        def w_(p):
            k('s_add_u32 m0, s%d, %d' % (s_m0w, A_LDS_W + (grp % 4) * 12288 + p * 2048))
            k('s_mov_b32 s%d, %d' % (sd, grp * 64 * 2688 + p * 896))
            k('buffer_load_dwordx4 v%d, %s, s%d offen lds' % (vW, srd(SRD_WQKV), sd), tag=tag)

        def x_(i):
            k('s_add_u32 m0, s%d, %d' % (s_m0x, xslot(grp) + i * 1024))
            k('s_mov_b32 s%d, %d' % (sd, grp * 128 + (i >> 1) * 16 * 896))
            k('buffer_load_dwordx4 v%d, %s, s%d offen lds' % (vXu if i & 1 else vXl, srd(SRD_X), sd), tag=tag)

        def h_():
            k('s_add_u32 m0, s%d, %d' % (s_m0h, A_LDS_X + xslot(grp)))
            k('s_mov_b32 s%d, %d' % (sd, grp * 128))
            k('s_mov_b64 exec, %s' % sr(s_hm, 2))
            k('buffer_load_dwordx4 v%d, %s, s%d offen lds' % (vXh, srd(SRD_X), sd), tag=tag)
            k('s_mov_b64 exec, -1')
        fs = [lambda p=p: w_(p) for p in range(3)] + [lambda i=i: x_(i) for i in range(4)] + [h_]
        for f in fs:
            if bg:
                k.bg_push(f)
            else:
                f()

    def warm():
        k('s_bfe_u32 s%d, s2, 0x30003' % s_tmp)
        k('s_add_u32 s%d, s%d, 1' % (S_T, s_tmp))
        k('s_lshr_b32 s%d, s%d, 1' % (S_T, S_T))
        k('s_lshr_b32 s%d, s2, 6' % (S_T + 1))
        k('s_mul_i32 s%d, s%d, 5' % (S_T + 1, S_T + 1))
        k('s_add_u32 s%d, s%d, s%d' % (S_T, S_T, S_T + 1))
        k('s_lshl_b32 s%d, s%d, 2' % (S_T, S_T))
        k('s_add_u32 s%d, s%d, s3' % (s_tmp, S_T))
        k('s_mov_b32 s%d, s%d' % (S_WR, s_tmp))
        k('s_mov_b32 s%d, 0x2a54' % S_T)
        k('s_bitcmp1_b32 s%d, s%d' % (S_T, s_head))
        k('s_cselect_b32 s%d, 0x%x, %s' % (s_hv, OOB, '0' if WARM0 else '0x%x' % OOB))
        NL = -(-(448 - WROW) * 12 // 80)
        k('s_mul_i32 s%d, s%d, %d' % (S_T, s_tmp, NL))
        for rep in range(2 if NL > 64 else 1):
            k('v_add_u32 v%d, s%d, v1' % (vT, S_T))
            if rep:
                k('v_add_u32 v%d, 64, v%d' % (vT, vT))
            k('v_mul_u32_u24 v%d, 43691, v%d' % (vT + 1, vT))
            k('v_lshrrev_b32 v%d, 19, v%d' % (vT + 1, vT + 1))
            k('v_mul_u32_u24 v%d, 12, v%d' % (vT + 2, vT + 1))
            k('v_sub_u32 v%d, v%d, v%d' % (vT + 2, vT, vT + 2))
            k('v_lshrrev_b32 v%d, 2, v%d' % (vT + 2, vT + 2))
            k('v_mul_u32_u24 v%d, 896, v%d' % (vT + 2, vT + 2))
            k('v_mul_u32_u24 v%d, 2688, v%d' % (vT + 1, vT + 1))
            k('v_and_b32 v%d, 3, v%d' % (vT, vT))
            k('v_lshlrev_b32 v%d, 7, v%d' % (vT, vT))
            k('v_add3_u32 v%d, v%d, v%d, v%d' % (vT, vT, vT + 1, vT + 2))
            k('v_add_u32 v%d, s%d, v%d' % (vT, s_hv, vT))
            k('s_and_b32 s%d, s2, 1' % (S_T + 1))
            k('s_mul_i32 s%d, s%d, 384' % (S_T + 1, S_T + 1))
            k('s_add_u32 s%d, s%d, %d' % (S_T + 1, S_T + 1, WROW * 2688))
            nl = min(NL - 64 * rep, 64)
            m = (1 << nl) - 1
            k('s_mov_b32 exec_lo, 0x%x' % (m & 0xffffffff))
            k('s_mov_b32 exec_hi, 0x%x' % (m >> 32))
            k('buffer_load_dword v%d, v%d, %s, s%d offen' % (232 - rep, vT, srd(SRD_WQKV), S_T + 1))
            k('s_mov_b64 exec, -1')
        k('v_lshlrev_b32 v%d, 7, v1' % vT)
        k('v_add_u32 v%d, s%d, v%d' % (vT + 1, s_hv, vT))
        k('s_mul_i32 s%d, s%d, %d' % (S_T, s_tmp, 47 * 128))
        k('s_bfe_u32 s%d, s2, 0x20001' % (S_T + 1))
        k('s_mul_i32 s%d, s%d, %d' % (S_T + 1, S_T + 1, 512 * 896))
        k('s_add_u32 s%d, s%d, s%d' % (S_T, S_T, S_T + 1))
        k('s_max_u32 s%d, s%d, %d' % (S_T, S_T, 16 * 896))
        k('s_sub_u32 s%d, s%d, %d' % (S_T, S_T, 16 * 896))
        k('s_mov_b32 exec_hi, 0x7fff')
        k('buffer_load_dword v233, v%d, %s, s%d offen' % (vT + 1, srd(SRD_X), S_T))
        k('s_getpc_b64 %s' % sr(S_T, 2))
        k.raw('Lpc_%s:' % k.name)
        k('s_mul_i32 s%d, s%d, 384' % (s_tmp, s_tmp))
        k('v_add_u32 v%d, s%d, v%d' % (vT, s_tmp, vT))
        k('v_min_u32 v%d, %s-Lpc_%s, v%d' % (vT, k.end_label, k.name, vT))
        k('s_mov_b64 exec, 7')
        k('global_load_dword v236, v%d, %s' % (vT, sr(S_T, 2)))
        k('s_mov_b64 exec, -1')

    hook('A_pre')
    pre, post = START_ORDER.split('|')
    for ch in pre:
        warm() if ch == 'w' else dma_group(int(ch))
    k('v_mul_u32_u24 v%d, 18432, v3' % vT)
    k('v_lshl_add_u32 v%d, v2, 3, v%d' % (vT, vT))
    k('v_mov_b32 v%d, s%d' % (vT + 1, S_ONES))
    k('v_add_u32 v%d, %d, v%d' % (vT, A_LDS_X, vT))
    k('ds_write2_b32 v%d, v%d, v%d offset0:0 offset1:1' % (vT, vT + 1, vT + 1))
    hook('A_after_issue')

    k('v_lshlrev_b32 v%d, 9, v3' % vA0)
    k('v_bfe_u32 v%d, v1, 2, 2' % vT)
    k('v_lshl_add_u32 v%d, v%d, 6, v%d' % (vA0, vT, vA0))
    k('v_and_b32 v%d, 3, v1' % vT)
    k('v_lshl_add_u32 v%d, v%d, 3, v%d' % (vA0, vT, vA0))
    k('v_and_b32 v%d, 1, v3' % vT)
    k('v_lshlrev_b32 v%d, 5, v%d' % (vT, vT))
    k('v_add_u32 v%d, v%d, v%d' % (vA0, vA0, vT))
    k('v_add_u32 v%d, %d, v%d' % (vA0, A_LDS_W, vA0))
    k('v_xor_b32 v%d, 32, v%d' % (vA1, vA0))
    k('s_and_b32 s%d, s3, 1' % s_tmp)
    k('s_lshl_b32 s%d, s%d, 5' % (s_tmp, s_tmp))
    k('v_xor_b32 v%d, s%d, v%d' % (vH2, s_tmp, vA0))
    k('s_lshr_b32 s%d, s3, 1' % s_tmp)
    k('s_lshl_b32 s%d, s%d, 11' % (s_tmp, s_tmp))
    k('s_add_u32 s%d, s%d, 2048' % (s_tmp, s_tmp))
    k('v_add_u32 v%d, s%d, v%d' % (vH1, s_tmp, vH2))
    k('v_lshrrev_b32 v%d, 1, v2' % vT)
    k('v_xor_b32 v%d, v%d, v3' % (vT, vT))
    k('v_lshlrev_b32 v%d, 4, v%d' % (vT, vT))
    k('v_lshl_add_u32 v%d, v2, 7, v%d' % (vT, vT))
    k('v_add_u32 v%d, %d, v%d' % (vHe, A_LDS_X, vT))
    k('v_xor_b32 v%d, 64, v%d' % (vHo, vHe))
    k('v_add_u32 v%d, s%d, v%d' % (vRe, s_m0x, vT))
    k('v_xor_b32 v%d, 64, v%d' % (vRo, vRe))
    k('v_lshlrev_b32 v%d, 2, v3' % vT)
    k('v_sub_u32 v%d, v2, v%d' % (vT, vT))
    k('v_mov_b32 v%d, %s' % (vT + 2, f32(-1e30)))
    for which, base in ((16, BP), (0, BC)):
        for r in range(4):
            k('v_add_u32 v%d, %d, v%d' % (vT + 1, which - r, vT))
            k('v_and_b32 v%d, 0xfffffff1, v%d' % (vT + 1, vT + 1))
            k('v_cmp_eq_u32 vcc, 0, v%d' % (vT + 1))
            k('v_cndmask_b32 v%d, v%d, 0, vcc' % (base + r, vT + 2))
    k('s_or_b32 s%d, s%d, s3' % (s_tmp, s_rb))
    k('s_cmp_eq_u32 s%d, 0' % s_tmp)
    k('s_cselect_b64 vcc, -1, 0')
    for r in range(4):
        k('v_cndmask_b32 v%d, v%d, v%d, vcc' % (BPA + r, BP + r, vT + 2))
    for i in range(4):
        k('v_mov_b32 v%d, s%d' % (ONES + i, S_ONES))

    s_m = 88
    for i, mk in enumerate((0x22222222, 0x44444444, 0x88888888)):
        k('s_mov_b32 s%d, 0x%x' % (s_m + 2 * i, mk))
        k('s_mov_b32 s%d, 0x%x' % (s_m + 2 * i + 1, mk))
    vAd = 72
    k('v_lshlrev_b32 v%d, 4, v3' % vAd)
    k('s_lshl_b32 s%d, s3, 6' % s_tmp)
    k('v_add_u32 v%d, s%d, v%d' % (vAd + 1, s_tmp, vAd))
    k('s_and_b32 s%d, s%d, 64' % (s_tmp, s_tmp))
    k('v_add_u32 v%d, s%d, v%d' % (vAd + 2, s_tmp, vAd))
    k('s_mul_i32 s%d, s3, 384' % s_tmp)
    k('v_lshl_add_u32 v%d, v2, 2, s%d' % (vAd + 3, s_tmp))
    k('v_add_u32 v%d, s%d, v%d' % (vAd + 4, s_tmp, vAd))
    vK, vV = 80, 81
    k('s_and_b32 s%d, s3, 1' % s_tmp)
    k('s_lshl_b32 s%d, s%d, 3' % (s_tmp, s_tmp))
    k('v_add_u32 v%d, s%d, v4' % (vK, s_tmp))
    k('v_lshrrev_b32 v%d, 2, v2' % vV)
    k('v_lshlrev_b32 v%d, 8, v%d' % (vV, vV))
    k('v_lshl_add_u32 v%d, v3, 6, v%d' % (vV, vV))
    k('v_and_b32 v%d, 3, v2' % (vV + 1))
    k('v_lshl_add_u32 v%d, v%d, 1, v%d' % (vV, vV + 1, vV))
    k('v_add_u32 v%d, s%d, v%d' % (vV, s_tmp, vV))
    k('v_add_u32 v%d, 1024, v%d' % (vV, vV))
    k('s_cmp_lt_u32 s3, 2')
    k('s_cselect_b64 vcc, -1, 0')
    k('s_cselect_b32 s%d, 2, 16' % s_tmp)
    k('v_cndmask_b32 v%d, v%d, v%d, vcc' % (vK, vV, vK))
    k('v_add_u32 v%d, s%d, v%d' % (vK + 1, s_tmp, vK))
    k('v_add_u32 v%d, s%d, v%d' % (vK + 2, s_tmp, vK + 1))
    k('v_add_u32 v%d, s%d, v%d' % (vK + 3, s_tmp, vK + 2))
    k('v_lshlrev_b32 v%d, 2, v2' % (vAd + 5))
    k('s_lshl_b32 s%d, s3, 11' % s_tmp)
    k('v_add_u32 v%d, s%d, v4' % (vAd + 6, s_tmp))

    k('s_lshl_b32 s%d, s%d, 3' % (s_o0, s_rb))
    k('s_lshl_b32 s%d, s3, 1' % s_o1)
    k('s_add_u32 s%d, s%d, s%d' % (s_o0, s_o0, s_o1))
    k('s_lshl_b32 s%d, s%d, 4' % (s_o0, s_o0))
    k('s_add_u32 s%d, s%d, s%d' % (s_o0, s_o0, s_head))
    k('s_lshl_b32 s%d, s%d, 10' % (s_o0, s_o0))
    if OF_OFF:
        k('s_add_u32 s%d, s%d, 0x%x' % (s_o0, s_o0, OF_OFF))
    k('s_add_u32 s%d, s%d, 16384' % (s_o1, s_o0))

    frag_addr = [(vA0, 0), (vA1, 0), (vA0, 2048), (vA1, 2048), (vA0, 4096), (vA1, 4096), (vH1, 0), (vH2, 0)]

    def read_frag(f, j, h=None):
        va, off = frag_addr[f]
        o = (j % 8) * 6144 + off
        for hh in ((0, 1) if h is None else (h,)):
            k('ds_read_b64_tr_b16 %s, v%d offset:%d' % (vr(WF + 4 * f + 2 * hh, 2), va, o + 256 * hh))

    def read_x(j, blk=None):
        o = xslot(j // 2)
        for b_ in (range(3) if blk is None else (blk,)):
            if b_ < 2:
                k('ds_read_b128 %s, v%d offset:%d' % (vr(xreg(j, b_), 4), vRo if j & 1 else vRe, o + 2048 * b_))
            else:
                k('ds_read_b128 %s, v%d offset:%d' % (vr(xreg(j, 2), 4), vHo if j & 1 else vHe, o))

    for ch in post:
        warm() if ch == 'w' else dma_group(int(ch))
    T = XR
    RR = 132
    RH = 84
    HC = 224
    pre_ops = []

    def rr(blk):
        return RR + 2 * blk if blk < 2 else RH

    def cs_write():
        k('s_mov_b32 exec_lo, 0x00010001')
        k('s_mov_b32 exec_hi, 0x00010001')
        k('ds_write_b128 v%d, %s offset:%d' % (vAd + 1, vr(H1, 4), A_LDS_CS + 128))
        k('ds_write_b128 v%d, %s offset:%d' % (vAd + 2, vr(H2, 4), A_LDS_CS))
        k('s_mov_b64 exec, -1')

    def st_write():
        k('s_mov_b32 exec_lo, 0x00f0000f')
        k('s_mov_b32 exec_hi, 0xf0000f00')
        for blk in range(3):
            k('ds_write2_b32 v%d, v%d, v%d offset0:%d offset1:%d' % (vAd + 3, rr(blk), rr(blk) + 1,
                                                                   A_LDS_ST // 4 + 32 * blk, A_LDS_ST // 4 + 32 * blk + 16))
        k('s_mov_b64 exec, -1')

    def op(txt):
        pre_ops.append(lambda: k(txt))
    for i in range(3):
        for blk in range(3):
            op('v_cndmask_b32 v%d, v%d, v%d, %s' % (SQ + 4 * blk, SQ + 4 * blk, SQ + 4 * blk + 1 + i, sr(s_m + 2 * i, 2)))
    for blk in range(3):
        op('v_mul_f32 v%d, %s, v%d' % (rr(blk) + 1, f32(1.0 / D), SM + 4 * blk))
    for blk in range(3):
        op('v_mul_f32 v%d, v%d, v%d' % (rr(blk), rr(blk) + 1, rr(blk) + 1))
    for blk in range(3):
        op('v_mul_f32 v%d, %s, v%d' % (SQ + 4 * blk, f32(1.0 / D), SQ + 4 * blk))
    pre_ops.append(cs_write)
    for blk in range(3):
        op('v_sub_f32 v%d, v%d, v%d' % (rr(blk), SQ + 4 * blk, rr(blk)))
    for blk in range(3):
        op('v_max_f32 v%d, 0, v%d' % (rr(blk), rr(blk)))
    for blk in range(3):
        op('v_add_f32 v%d, %s, v%d' % (rr(blk), f32(1e-5), rr(blk)))
    for blk in range(3):
        op('v_rsq_f32 v%d, v%d' % (rr(blk), rr(blk)))
    pre_ops.append(st_write)
    for r in range(4):
        op('v_mov_b32_dpp v%d, v%d row_newbcast:0 row_mask:0xf bank_mask:0xf' % (HC + r, H1 + r))
    for r in range(4):
        op('v_fma_f32 v%d, -v%d, v%d, v%d' % (HC + r, HC + r, RH + 1, H1 + r))

    def keep_masks():
        k('s_cmp_eq_u32 s%d, 15' % s_head)
        k('s_cselect_b32 s%d, 0xffff0000, -1' % s_m)
        k('s_mov_b32 s%d, -1' % (s_m + 1))
        k('s_mov_b32 s%d, -1' % (s_m + 2))
        k('s_cselect_b32 s%d, -1, 0xffff' % (s_m + 3))
    pre_ops.append(keep_masks)

    stamp(k, 1)
    k.wait_tag('G0')
    k.wait_lg(0)
    k.barrier()
    stamp(k, 2)
    read_x(0)
    for f in range(8):
        read_frag(f, 0)
    dma_group(2, bg=True)
    k.lg_slack = 6
    for j in range(14):
        k.c('kstep %d' % j)
        if j + 1 < 14 and (j + 1) % 2 == 0:
            k.bg_flush()
            k.wait_tag('G%d' % ((j + 1) // 2))
            k.barrier()
            if (j + 5) // 2 < 7:
                dma_group((j + 5) // 2, bg=True)
            hook('A_b%d' % j)
        mf = []
        for f in range(8):
            w = vr(WF + 4 * f, 4)
            if f < 6:
                for blk in range(2):
                    a = vr(acc(blk, f), 4)
                    x = vr(xreg(j, blk), 4)
                    c = '0' if j == 0 else a
                    if f < 4:
                        mf.append(('v_mfma_f32_16x16x32_bf16 %s, %s, %s, %s' % (a, w, x, c), f if blk else -1))
                    else:
                        mf.append(('v_mfma_f32_16x16x32_bf16 %s, %s, %s, %s' % (a, x, w, c), f if blk else -1))
            else:
                a = vr(H1 if f == 6 else H2, 4)
                c = '0' if j == 0 else a
                mf.append(('v_mfma_f32_16x16x32_bf16 %s, %s, %s, %s' % (a, w, vr(xreg(j, 2), 4), c), f))
        for f in range(EXP_NSTAT):
            x = vr(xreg(j, f % 3), 4)
            a = vr((SQ if f < 3 else SM) + 4 * (f % 3), 4)
            mf.append(('v_mfma_f32_16x16x32_bf16 %s, %s, %s, %s' % (a, x if f < 3 else vr(ONES, 4), x, '0' if j == 0 else a), -1))
        fill = []
        if j + 1 < 14:
            fill += [lambda i=i: read_x(j + 1, i) for i in range(3)]
        if j == 13:
            mf = mf[14:] + mf[12:14] + mf[4:12] + mf[0:4]
        for i, (txt, done) in enumerate(mf):
            k(txt)
            if j == 13 and i >= 8:
                for f_ in pre_ops[:3]:
                    f_()
                del pre_ops[:3]
            if done >= 0 and j + 1 < 14 and done < EXP_NFRAG:
                fill += [lambda f=done, h=h: read_frag(f, j + 1, h) for h in range(2)]
            if fill:
                fill.pop(0)()
            if i % 5 == 4:
                k.bg()
        for f_ in fill:
            f_()
        if j == 6:
            stamp(k, 3)

        hook('A_k%d' % j)

    k.lg_slack = 0
    k.c('---- phase A epilogue')
    stamp(k, 4)
    for f_ in pre_ops:
        f_()
    k.wait_lg(0)
    k.barrier()
    stamp(k, 40)
    hook('A_e1')
    CS = T + 32
    CSV = T + 48
    L2 = T + 16
    for blk in (1, 2, 0):
        k('ds_read_b32 v%d, v%d offset:%d' % (rr(blk), vAd + 3, A_LDS_ST + 128 * blk))
    for s_ in (2, 3):
        k('ds_read_b128 %s, v%d offset:%d' % (vr(CS + 4 * s_, 4), vAd, A_LDS_CS + 64 * s_))
    k('ds_read_b32 v%d, v%d offset:%d' % (CSV, vAd + 5, A_LDS_CS + 256))
    k('ds_read_b32 v%d, v%d offset:%d' % (CSV + 1, vAd + 5, A_LDS_CS + 320))
    for blk in (1, 0):
        k('ds_read_b128 %s, v%d offset:%d' % (vr(L2 + 8 * blk + 4, 4), vAd + 4, A_LDS_ST + blk * 128 + 64))
        k('ds_read_b128 %s, v%d offset:%d' % (vr(L2 + 8 * blk, 4), vAd + 4, A_LDS_ST + blk * 128))
    for s_ in (0, 1):
        k('ds_read_b128 %s, v%d offset:%d' % (vr(CS + 4 * s_, 4), vAd, A_LDS_CS + 64 * s_))
    RQ = T + 52
    qs = (DH ** -0.5) * 1.4426950408889634
    QT = T + 72
    KT = T + 80
    VV = T + 92

    def fix_qk(blk, nbi, scale_reg, dst):
        a = acc(blk, nbi)
        hi = scale_reg & 1
        for r in (0, 2):
            k('v_pk_fma_f32 %s, %s, %s, %s op_sel:[0,1,0] op_sel_hi:[1,1,1] neg_lo:[0,1,0] neg_hi:[0,1,0]' % (
                vr(a + r, 2), vr(CS + 4 * nbi + r, 2), vr(RR + 2 * blk, 2), vr(a + r, 2)))
        for r in (0, 2):
            k('v_pk_mul_f32 %s, %s, %s op_sel:[0,%d] op_sel_hi:[1,%d]' % (vr(a + r, 2), vr(a + r, 2), vr(scale_reg - hi, 2), hi, hi))
        k('v_cvt_pk_bf16_f32 v%d, v%d, v%d' % (dst, a, a + 1))
        k('v_cvt_pk_bf16_f32 v%d, v%d, v%d' % (dst + 1, a + 2, a + 3))
        k.bg()

    def fix_v(blk, nb):
        a = acc(blk, 4 + nb)
        for r in (0, 2):
            k('v_pk_fma_f32 %s, %s, %s, %s op_sel:[0,%d,0] op_sel_hi:[1,%d,1] neg_lo:[0,1,0] neg_hi:[0,1,0]' % (
                vr(a + r, 2), vr(L2 + 8 * blk + 4 + r, 2), vr(CSV, 2), vr(a + r, 2), nb, nb))
        for r in (0, 2):
            k('v_pk_mul_f32 %s, %s, %s' % (vr(a + r, 2), vr(a + r, 2), vr(L2 + 8 * blk + r, 2)))
        dst = VV + 6 * nb + 2 + 2 * blk
        k('v_cvt_pk_bf16_f32 v%d, v%d, v%d' % (dst, a, a + 1))
        k('v_cvt_pk_bf16_f32 v%d, v%d, v%d' % (dst + 1, a + 2, a + 3))
        k.bg()

    fix_qk(1, 2, RR + 2, KT + 8)
    fix_qk(1, 3, RR + 2, KT + 10)
    k('ds_write_b128 v%d, %s offset:%d' % (vAd + 6, vr(KT + 8, 4), A_LDS_KV + 2048))
    for r in (0, 2):
        k('v_pk_mul_f32 %s, %s, %s op_sel_hi:[1,0]' % (vr(HC + r, 2), vr(HC + r, 2), vr(RH, 2)))
    k('v_cvt_pk_bf16_f32 v%d, v%d, v%d' % (HC, HC, HC + 1))
    k('v_cvt_pk_bf16_f32 v%d, v%d, v%d' % (HC + 2, HC + 2, HC + 3))
    k('ds_write_b16 v%d, v%d offset:%d' % (vK, HC, A_LDS_KV))
    k('ds_write_b16_d16_hi v%d, v%d offset:%d' % (vK + 1, HC, A_LDS_KV))
    k('ds_write_b16 v%d, v%d offset:%d' % (vK + 2, HC + 2, A_LDS_KV))
    k('ds_write_b16_d16_hi v%d, v%d offset:%d' % (vK + 3, HC + 2, A_LDS_KV))
    fix_v(1, 0)
    fix_v(1, 1)
    k('ds_write_b64 v%d, %s offset:%d' % (vAd + 6, vr(VV + 4, 2), A_LDS_KV + 2048 + 1024))
    k('ds_write_b64 v%d, %s offset:%d' % (vAd + 6, vr(VV + 10, 2), A_LDS_KV + 2048 + 1024 + 8))
    for blk in range(2):
        k('v_mul_f32 v%d, %s, v%d' % (RQ + 2 * blk, f32(qs), RR + 2 * blk))
    for blk in range(2):
        k('v_cndmask_b32 v%d, 0, v%d, %s' % (RQ + 2 * blk + 1, RQ + 2 * blk, sr(s_m + 2, 2)))
        k('v_cndmask_b32 v%d, 0, v%d, %s' % (RQ + 2 * blk, RQ + 2 * blk, sr(s_m, 2)))
    fix_qk(0, 2, RR + 0, KT + 4)
    fix_qk(0, 3, RR + 0, KT + 6)
    k.wait_lg(0)
    k.barrier()
    stamp(k, 41)
    k('ds_read_b128 %s, v%d offset:%d' % (vr(KT, 4), vAd + 6, A_LDS_KV))
    k('ds_read_b64 %s, v%d offset:%d' % (vr(VV, 2), vAd + 6, A_LDS_KV + 1024))
    k('ds_read_b64 %s, v%d offset:%d' % (vr(VV + 6, 2), vAd + 6, A_LDS_KV + 1024 + 8))
    fix_qk(1, 0, RQ + 2, QT + 4)
    fix_qk(1, 1, RQ + 3, QT + 6)
    SS = T
    k('v_mfma_f32_16x16x32_bf16 %s, %s, %s, %s' % (vr(SS + 8, 4), vr(KT + 4, 4), vr(QT + 4, 4), vr(BP, 4)))
    k('v_mfma_f32_16x16x32_bf16 %s, %s, %s, %s' % (vr(SS + 12, 4), vr(KT + 8, 4), vr(QT + 4, 4), vr(BC, 4)))
    fix_qk(0, 0, RQ + 0, QT + 0)
    fix_qk(0, 1, RQ + 1, QT + 2)
    k('v_mfma_f32_16x16x32_bf16 %s, %s, %s, %s' % (vr(SS + 0, 4), vr(KT + 0, 4), vr(QT, 4), vr(BPA, 4)))
    k('v_mfma_f32_16x16x32_bf16 %s, %s, %s, %s' % (vr(SS + 4, 4), vr(KT + 4, 4), vr(QT, 4), vr(BC, 4)))
    fix_v(0, 0)
    fix_v(0, 1)
    MX = ACC
    TM = ACC + 2
    for blk in (1, 0):
        s_ = SS + 8 * blk
        k('v_max3_f32 v%d, v%d, v%d, v%d' % (MX + blk, s_, s_ + 1, s_ + 2))
        k('v_max3_f32 v%d, v%d, v%d, v%d' % (TM + blk, s_ + 3, s_ + 4, s_ + 5))
        k('v_max3_f32 v%d, v%d, v%d, v%d' % (MX + blk, MX + blk, s_ + 6, s_ + 7))
        k('v_max_f32 v%d, v%d, v%d' % (MX + blk, MX + blk, TM + blk))
    k.bg()
    xgroup_reduce(k, [MX, MX + 1], [TM, TM + 1], op='v_max_f32')
    k.bg_flush()
    stamp(k, 9)
    SUM = ACC + 4
    PP = ACC + 8
    OO = ACC + 16
    for blk in (1, 0):
        s_ = SS + 8 * blk
        for i in range(0, 8, 2):
            k('v_pk_add_f32 %s, %s, %s op_sel:[0,%d] op_sel_hi:[1,%d] neg_lo:[0,1] neg_hi:[0,1]' % (vr(s_ + i, 2), vr(s_ + i, 2), vr(MX, 2), blk, blk))
        for i in range(8):
            k('v_exp_f32 v%d, v%d' % (s_ + i, s_ + i))
        for i in range(4):
            k('v_cvt_pk_bf16_f32 v%d, v%d, v%d' % (PP + 4 * blk + i, s_ + 2 * i, s_ + 2 * i + 1))
        for nb in range(2):
            k('v_mfma_f32_16x16x32_bf16 %s, %s, %s, 0' % (vr(OO + 8 * blk + 4 * nb, 4), vr(VV + 6 * nb + 2 * blk, 4),
                                                          vr(PP + 4 * blk, 4)))
    for blk in range(2):
        s_ = SS + 8 * blk
        k('v_pk_add_f32 %s, %s, %s' % (vr(s_, 2), vr(s_, 2), vr(s_ + 2, 2)))
        k('v_pk_add_f32 %s, %s, %s' % (vr(s_ + 4, 2), vr(s_ + 4, 2), vr(s_ + 6, 2)))
    for blk in range(2):
        s_ = SS + 8 * blk
        k('v_pk_add_f32 %s, %s, %s' % (vr(s_, 2), vr(s_, 2), vr(s_ + 4, 2)))
    for blk in range(2):
        s_ = SS + 8 * blk
        k('v_add_f32 v%d, v%d, v%d' % (SUM + 2 * blk, s_, s_ + 1))
    xgroup_reduce(k, [SUM, SUM + 2], [TM, TM + 1])
    for blk in range(2):
        k('v_rcp_f32 v%d, v%d' % (SUM + 2 * blk, SUM + 2 * blk))
    for blk in range(2):
        k('v_cndmask_b32 v%d, 0, v%d, %s' % (SUM + 2 * blk + 1, SUM + 2 * blk, sr(s_m + 2, 2)))
        k('v_cndmask_b32 v%d, 0, v%d, %s' % (SUM + 2 * blk, SUM + 2 * blk, sr(s_m, 2)))
    for blk in range(2):
        o = OO + 8 * blk
        for r in (0, 2):
            k('v_pk_mul_f32 %s, %s, %s op_sel_hi:[1,0]' % (vr(o + r, 2), vr(o + r, 2), vr(SUM + 2 * blk, 2)))
        for r in (0, 2):
            k('v_pk_mul_f32 %s, %s, %s op_sel:[0,1] op_sel_hi:[1,1]' % (vr(o + 4 + r, 2), vr(o + 4 + r, 2), vr(SUM + 2 * blk, 2)))
        p = PP + 4 * blk
        for i in range(4):
            k('v_cvt_pk_bf16_f32 v%d, v%d, v%d' % (p + i, o + 2 * i, o + 2 * i + 1))
        k('buffer_store_dwordx4 %s, v4, %s, s%d offen %s' % (vr(p, 4), srd(SRD_WS), s_o0 if blk == 0 else s_o1, sc1), tag='ost')


STAMP_OFF = 0xA00000


DST = {5: 1, 10: 2, 15: 3, 16: 4, 22: 5, 24: 6, 29: 7}


def dstamp(k, idx, vtmp=253, stmp=74):
    if idx not in DST and idx != 0:
        return
    slot = DST.get(idx, 0)
    k('s_memrealtime %s' % sr(stmp, 2))
    k('s_cmp_eq_u32 s2, 131')
    k('s_cselect_b32 s%d, %d, %s' % (stmp + 4, 32 + 4 * slot, '0x%x' % OOB))
    if slot:
        k('s_cmp_eq_u32 s2, 0')
        k('s_cselect_b32 s%d, %d, s%d' % (stmp + 4, 4 * slot, stmp + 4))
    k('v_mov_b32 v%d, s%d' % (vtmp + 2, stmp + 4))
    k('v_mov_b32 v%d, s%d' % (vtmp, stmp))
    k('s_cmp_eq_u32 s3, 0')
    k('s_cselect_b64 exec, 1, 0')
    k('buffer_store_dword v%d, v%d, %s, 0 offen' % (vtmp, vtmp + 2, srd(SRD_DBG)))
    k('s_mov_b64 exec, -1')


def stamp(k, idx, vtmp=253, stmp=74):
    if getattr(k, 'stamps', False) == 'jit':
        L = k.newlabel('Ljit')
        k('s_lshl_b32 s74, s2, 2')
        k('s_add_u32 s74, s74, s3')
        k('s_mul_i32 s74, s74, 0x%x' % ((0x9E3779B1 * (idx + 1 + 64 * JIT_SEED)) & 0xffffffff | 1))
        k('s_lshr_b32 s74, s74, 29')
        k('s_cmp_lg_u32 s74, 0')
        k('s_cbranch_scc1 %s' % L)
        hist = [[h[0], h[1]] for h in k.hist]
        k('s_sleep 100')
        k.raw(L + ':')
        k.hist = k.hist + hist
        return
    if idx >= 32 or (STAMP_SET is not None and idx not in STAMP_SET):
        return
    if getattr(k, 'stamps', False) == 'dbg':
        return dstamp(k, idx, vtmp, stmp)
    if not getattr(k, 'stamps', False):
        return
    k('s_memrealtime %s' % sr(stmp, 2))
    k('s_memtime %s' % sr(stmp + 2, 2))
    k('s_lshl_b32 s%d, s2, 2' % (stmp + 4))
    k('s_add_u32 s%d, s%d, s3' % (stmp + 4, stmp + 4))
    k('s_lshl_b32 s%d, s%d, 7' % (stmp + 4, stmp + 4))
    k('s_add_u32 s%d, s%d, 0x%x' % (stmp + 4, stmp + 4, STAMP_OFF + 4 * idx))
    k('v_mov_b32 v%d, s%d' % (vtmp, stmp))
    k('v_mov_b32 v%d, s%d' % (vtmp + 1, stmp + 2))
    k('v_mov_b32 v%d, 0' % (vtmp + 2))
    k('s_mov_b64 exec, 1')
    k('buffer_store_dword v%d, v%d, %s, s%d offen' % (vtmp, vtmp + 2, srd(SRD_WS), stmp + 4))
    k('s_add_u32 s%d, s%d, 0x20000' % (stmp + 4, stmp + 4))
    k('buffer_store_dword v%d, v%d, %s, s%d offen' % (vtmp + 1, vtmp + 2, srd(SRD_WS), stmp + 4))
    k('s_mov_b64 exec, -1')


def spin_guard(k):
    k('s_sub_u32 s%d, s%d, 1' % (S_SPIN, S_SPIN))
    k('s_cbranch_scc1 %s' % k.end_label)


def epoch_publish(k, vt):
    k('s_memrealtime %s' % sr(S_T, 2))
    k('v_mov_b32 v%d, 0' % (vt + 1))
    k('s_or_b32 s%d, s%d, 1' % (S_T, S_T))
    k('v_mov_b32 v%d, s%d' % (vt, S_T))
    k('s_or_b32 s%d, s2, s3' % S_T)
    k('s_cmp_eq_u32 s%d, 0' % S_T)
    k('s_cselect_b64 exec, 1, 0')
    k('buffer_store_dword v%d, v%d, %s, 0 offen sc1' % (vt, vt + 1, srd(SRD_DBG)))
    k('s_mov_b64 exec, -1')


def epoch_load(k, vt):
    k('v_mov_b32 v%d, 0' % (vt + 1))
    k('buffer_load_dword v%d, v%d, %s, 0 offen sc1' % (vt, vt + 1, srd(SRD_DBG)))


def epoch_get(k, vt):
    L = k.newlabel('Lepg')
    done = k.newlabel('Lepd')
    k('v_readfirstlane_b32 s%d, v%d' % (S_EPOCH, vt))
    k('s_cmp_lg_u32 s%d, 0' % S_EPOCH)
    k.branch_fwd('s_cbranch_scc1', done)
    k.loop_label(L)
    spin_guard(k)
    k('buffer_load_dword v%d, v%d, %s, 0 offen sc1' % (vt, vt + 1, srd(SRD_DBG)))
    k.force_wait(vm=0)
    k('v_readfirstlane_b32 s%d, v%d' % (S_EPOCH, vt))
    k('s_cmp_eq_u32 s%d, 0' % S_EPOCH)
    k('s_cbranch_scc1 %s' % L)
    k.label(done)


FLAG_A = FLAG_OFF
FLAG_B = FLAG_OFF + 0x20000
FLAG_Z = FLAG_OFF + 0x38000
FLAG_C = FLAG_OFF + 0x28000


def flag_store(k, vt, s_off):
    k('v_mov_b32 v%d, s%d' % (vt, S_EPOCH))
    k('s_mov_b64 exec, 1')
    k('buffer_store_dword v%d, v%d, %s, s%d offen sc1' % (vt, vt + 1, srd(SRD_WS), s_off))
    if DBL & 2:
        k('buffer_store_dword v%d, v%d, %s, s%d offen' % (vt, vt + 1, srd(SRD_WS), s_off))
    k('s_mov_b64 exec, -1')


POLL_DEPTH = 3
POLL_GAP = 3
POLL_SC = 'sc1'
ST_SC = 'sc1'
AGENT_HH = ()
JIT_SEED = 0
ST14 = True
WROW = 128
M2 = True
WARM0 = True
CD2 = True
DBL = 0
STAMP_SET = None
S_WR, S_HV = 56, 57
EXP_NSTAT = 6
EXP_NFRAG = 8
POLL_SLEEP = 0
WO_LATE = False
START_ORDER = '01w|'
AGENT_DEPTH = 2
ST_SLEEP = 0
V_POLL = 249


def flag_poll(k, vt, voff, s_off):
    L = k.newlabel('Lpoll')
    done = k.newlabel('Lpd')
    n = POLL_DEPTH

    def ld(i):
        return k('buffer_load_dword v%d, v%d, %s, s%d offen %s' % (V_POLL + i, voff, srd(SRD_WS), s_off, POLL_SC))
    for i in range(n - 1):
        ld(i)
        k('s_sleep %d' % POLL_GAP)
    k.loop_label(L)
    spin_guard(k)
    last = []
    for i in range(n):
        k.vm = []
        if POLL_SLEEP:
            k('s_sleep %d' % POLL_SLEEP)
        last.append(ld((i + n - 1) % n))
        k._emit(classify('s_waitcnt vmcnt(%d)' % (n - 1)))
        k.vm = []
        k('v_cmp_ne_u32 vcc, s%d, v%d' % (S_EPOCH, V_POLL + i))
        if i < n - 1:
            k('s_cbranch_vccz %s' % done)
        else:
            k('s_cbranch_vccnz %s' % L)
    k.fence()
    k.raw(done + ':')
    k.vm = list(last)


class B:
    s_tmp, s_wbase, s_t2, s_x = 58, 59, 60, 61
    s_dma = 73
    vWo, vR0, vR1 = 208, 209, 210
    ACC = 192
    OFR = 32
    T = 64
    vSw, vSp = 211, 212
    s_sw, s_sp = 90, 62
    HK = 240


def B_setup(k):
    b, g = B, G
    k.c('---- phase B setup')
    t = TMP
    k('v_lshrrev_b32 v%d, 3, v1' % t)
    k('v_mul_u32_u24 v%d, 896, v%d' % (b.vWo, t))
    k('v_and_b32 v%d, 1, v3' % t)
    k('v_lshlrev_b32 v%d, 2, v%d' % (t, t))
    k('v_and_b32 v%d, 7, v1' % (t + 1))
    k('v_xor_b32 v%d, v%d, v%d' % (t, t, t + 1))
    k('v_lshl_add_u32 v%d, v%d, 4, v%d' % (b.vWo, t, b.vWo))
    k('s_lshl_b32 s%d, s%d, 7' % (b.s_tmp, g.s_dtD))
    k('s_mul_i32 s%d, s3, %d' % (b.s_t2, 112 * 896))
    k('s_add_u32 s%d, s%d, s%d' % (b.s_tmp, b.s_tmp, b.s_t2))
    k('v_add_u32 v%d, s%d, v%d' % (b.vWo, b.s_tmp, b.vWo))
    k('s_mul_i32 s%d, s3, %d' % (b.s_wbase, STG_SZ))
    k('s_add_u32 s%d, s%d, %d' % (b.s_wbase, b.s_wbase, LDS_STG))
    k('v_lshrrev_b32 v%d, 5, v1' % t)
    k('v_lshlrev_b32 v%d, 9, v%d' % (b.vR0, t))
    k('v_bfe_u32 v%d, v1, 2, 2' % t)
    k('v_lshl_add_u32 v%d, v%d, 7, v%d' % (b.vR0, t, b.vR0))
    k('v_lshrrev_b32 v%d, 1, v%d' % (t, t))
    k('s_and_b32 s%d, s3, 1' % b.s_tmp)
    k('v_xor_b32 v%d, s%d, v%d' % (t, b.s_tmp, t))
    k('v_lshl_add_u32 v%d, v%d, 6, v%d' % (b.vR0, t, b.vR0))
    k('v_and_b32 v%d, 1, v3' % t)
    k('v_lshl_add_u32 v%d, v%d, 5, v%d' % (b.vR0, t, b.vR0))
    k('v_and_b32 v%d, 3, v1' % t)
    k('v_lshl_add_u32 v%d, v%d, 3, v%d' % (b.vR0, t, b.vR0))
    k('v_add_u32 v%d, %d, v%d' % (b.vR0, LDS_STG, b.vR0))
    k('v_lshrrev_b32 v%d, 5, v1' % t)
    k('v_lshlrev_b32 v%d, 10, v%d' % (t, t))
    k('v_sub_u32 v%d, v%d, v%d' % (b.vR1, b.vR0, t))


def B_wo_dma(k):
    b = B

    def one(i):
        k('s_add_u32 m0, s%d, %d' % (b.s_wbase, i * 1024))
        k('s_mov_b32 s%d, %d' % (b.s_dma, 8 * i * 896))
        k('buffer_load_dwordx4 v%d, %s, s%d offen lds' % (b.vWo, srd(SRD_WO), b.s_dma), tag='wo')
    for i in range(14):
        k.bg_push(lambda i=i: one(i))


def B_wo_read(k, abase):
    b = B
    for h in range(16):
        if h == 8:
            k('v_add_u32 v%d, %d, v%d' % (b.vR0, 2 * STG_SZ, b.vR0))
            k('v_add_u32 v%d, %d, v%d' % (b.vR1, 2 * STG_SZ, b.vR1))
        sh = h == 15 and not M2
        for ks in range(2):
            a = abase + 8 * h + 4 * ks
            o = ((h >> 2) & 1) * STG_SZ + (h & 3) * 3584 + ks * 1024 - (512 if sh else 0)
            k('ds_read_b64_tr_b16 %s, v%d offset:%d' % (ar(a, 2), b.vR0, o))
            k('ds_read_b64_tr_b16 %s, v%d offset:%d' % (ar(a + 2, 2), b.vR1 if ((h & 3) == 3 and ks and not sh) else b.vR0, o + 2048))
            if (2 * h + ks) % 3 != 2:
                k.bg()


def B_xinit(k):
    b, g = B, G
    t = TMP + 2
    k('v_lshrrev_b32 v%d, 5, v1' % t)
    k('v_mul_u32_u24 v%d, %d, v%d' % (t, 4 * 896, t))
    k('v_and_b32 v%d, 31, v1' % (t + 1))
    k('v_lshl_add_u32 v%d, v%d, 1, v%d' % (t, t + 1, t))
    k('s_lshl_b32 s%d, s%d, 1' % (b.s_tmp, g.s_st))
    k('s_lshr_b32 s%d, s3, 1' % b.s_t2)
    k('s_add_u32 s%d, s%d, s%d' % (b.s_tmp, b.s_tmp, b.s_t2))
    k('s_mul_i32 s%d, s%d, %d' % (b.s_tmp, b.s_tmp, 32 * 896))
    k('s_lshl_b32 s%d, s%d, 7' % (b.s_t2, g.s_dtD))
    k('s_add_u32 s%d, s%d, s%d' % (b.s_tmp, b.s_tmp, b.s_t2))
    k('s_and_b32 s%d, s3, 1' % b.s_t2)
    k('s_lshl_b32 s%d, s%d, 6' % (b.s_t2, b.s_t2))
    k('s_add_u32 s%d, s%d, s%d' % (b.s_tmp, b.s_tmp, b.s_t2))
    for q in range(4):
        for r in range(4):
            k('buffer_load_ushort v%d, v%d, %s, s%d offen offset:%d' % (b.ACC + 4 * q + r, t, srd(SRD_X), b.s_tmp, r * 896))
        if q < 3:
            k('s_add_u32 s%d, s%d, %d' % (b.s_tmp, b.s_tmp, 8 * 896))


def B_xinit_finish(k):
    b = B
    for i in range(16):
        k('v_lshlrev_b32 v%d, 16, v%d' % (b.ACC + i, b.ACC + i))


def B_main(k, abase, lds_small, sc1='', hooks=None):
    b, g = B, G
    t = b.T
    k.c('---- phase B main')
    hooks = hooks or {}

    def hook(name):
        if name in hooks:
            hooks[name]()
    k('s_lshl_b32 s%d, s%d, 16' % (b.s_tmp, g.s_st))
    k('s_lshl_b32 s%d, s3, 14' % b.s_t2)
    k('s_add_u32 s%d, s%d, s%d' % (b.s_tmp, b.s_tmp, b.s_t2))
    if OF_OFF:
        k('s_add_u32 s%d, s%d, 0x%x' % (b.s_tmp, b.s_tmp, OF_OFF))
    for i in range(16):
        if i % 4 == 0:
            k('s_add_u32 m0, s%d, %d' % (g.s_stage, i * 1024))
            if i:
                k('s_add_u32 s%d, s%d, 4096' % (b.s_tmp, b.s_tmp))
        k('buffer_load_dwordx4 v4, %s, s%d offen offset:%d %s lds' % (srd(SRD_WS), b.s_tmp, (i % 4) * 1024, sc1), tag='of%d' % (i // 8))
    k('v_and_b32 v%d, 1, v3' % t)
    k('v_mul_u32_u24 v%d, %d, v%d' % (t, STG_SZ, t))
    k('v_lshl_add_u32 v%d, v2, 4, v%d' % (t, t))
    k('v_lshrrev_b32 v%d, 5, v1' % (t + 1))
    k('v_lshl_add_u32 v%d, v%d, 8, v%d' % (t, t + 1, t))
    k('s_lshr_b32 s%d, s3, 1' % b.s_t2)
    k('s_mul_i32 s%d, s%d, %d' % (b.s_t2, b.s_t2, 2 * STG_SZ))
    k('s_add_u32 s%d, s%d, %d' % (b.s_t2, b.s_t2, LDS_STG))
    k('v_add_u32 v%d, s%d, v%d' % (t, b.s_t2, t))
    hook('B_after_of')
    a = vr(b.ACC, 16)

    def rd(i):
        k('ds_read_b128 %s, v%d offset:%d' % (vr(b.OFR + 4 * (i % 8), 4), t, i * 512))
    for half in range(2):
        k.wait_tag('of%d' % half)
        k.barrier()
        if half == 0:
            stamp(k, 11)
        for i in range(16 * half, 16 * half + (6 if half == 0 else 2)):
            rd(i)
        for i in range(16 * half - (4 if half else 0), 16 * half + (12 if half == 0 else 16)):
            k('v_mfma_f32_32x32x16_bf16 %s, %s, %s, %s' % (a, vr(b.OFR + 4 * (i % 8), 4), ar(abase + 4 * i, 4), a))
            if i + 6 < 16 * half + 16 and i + 6 >= 16 * half + (6 if half == 0 else 2):
                rd(i + 6)
            if i % 3 == 0:
                k.bg()
    stamp(k, 12)
    if 'B_tail' in hooks:
        return hook('B_tail')
    Q = t + 4
    V = t + 20
    A = b.ACC
    for i in range(0, 16, 2):
        k('v_pk_mul_f32 %s, %s, %s' % (vr(Q + i, 2), vr(A + i, 2), vr(A + i, 2)))
    def src(base, q, idx):
        r = ((idx & 1) << 1) | (idx >> 1)
        return base + 4 * q + r
    for base, dst in ((A, V), (Q, V + 8)):
        k.bg()
        for q in range(4):
            for p in range(2):
                x = src(base, q, 2 * p)
                k('v_add_f32_dpp v%d, v%d, v%d row_mirror row_mask:0xf bank_mask:0x3' % (dst + 2 * q + p, x, x))
    for base, dst in ((A, V), (Q, V + 8)):
        k.bg()
        for q in range(4):
            for p in range(2):
                x = src(base, q, 2 * p + 1)
                k('v_add_f32_dpp v%d, v%d, v%d row_mirror row_mask:0xf bank_mask:0xc' % (dst + 2 * q + p, x, x))
    k.bg(2)
    for i in range(8):
        k('v_add_f32_dpp v%d, v%d, v%d row_half_mirror row_mask:0xf bank_mask:0x5' % (V + 2 * i, V + 2 * i, V + 2 * i))
    for i in range(8):
        k('v_add_f32_dpp v%d, v%d, v%d row_half_mirror row_mask:0xf bank_mask:0xa' % (V + 2 * i, V + 2 * i + 1, V + 2 * i + 1))
    for i in range(8):
        k('v_add_f32_dpp v%d, v%d, v%d quad_perm:[1,0,3,2] row_mask:0xf bank_mask:0xf' % (V + 2 * i + 1, V + 2 * i, V + 2 * i))
    U = Q
    k.bg(2)
    for i in range(8):
        k('v_add_f32_dpp v%d, v%d, v%d quad_perm:[2,3,0,1] row_mask:0xf bank_mask:0xf' % (U + i, V + 2 * i + 1, V + 2 * i + 1))
    for kind in range(2):
        for i in range(2):
            k('v_permlane16_swap_b32 v%d, v%d' % (U + 4 * kind + 2 * i, U + 4 * kind + 2 * i + 1))
    W_ = V
    for i in range(2):
        for kind in range(2):
            k('v_add_f32 v%d, v%d, v%d' % (W_ + 2 * i + kind, U + 4 * kind + 2 * i, U + 4 * kind + 2 * i + 1))
    k.bg_flush()
    if ST14:
        vA, vC, vG = b.vSp, t + 2, t + 3
        G_ = V + 4
        k('v_cndmask_b32 v%d, v%d, v%d, %s' % (G_, W_, W_ + 2, sr(88, 2)))
        k('v_cndmask_b32 v%d, v%d, v%d, %s' % (G_ + 2, W_ + 1, W_ + 3, sr(88, 2)))
        k('v_mov_b32 v%d, s%d' % (G_ + 1, S_EPOCH))
        k('v_mov_b32 v%d, s%d' % (G_ + 3, S_EPOCH))
        k('s_mov_b32 exec_lo, 0x33333333')
        k('s_mov_b32 exec_hi, 0x33333333')
        k('buffer_store_dwordx4 %s, v%d, %s, s%d offen sc1' % (vr(G_, 4), b.vSw, srd(SRD_WS), b.s_sw))
        k('s_mov_b64 exec, -1')
        k.barrier()
        for i in range(8):
            k('v_cvt_pk_bf16_f32 v%d, v%d, v%d' % (b.HK + i, A + 2 * i, A + 2 * i + 1))
        k('v_and_b32 v%d, 31, v1' % vG)
        B_hh_addr(k)
        hook('B_before_poll')
        stamp(k, 31)
        P0 = t + 32
        L = k.newlabel('Lst')
        done = k.newlabel('Lstd')
        Sx, Qx = t + 88, t + 90

        def ld(s_):
            return [k('buffer_load_dwordx4 %s, v%d, %s, s%d offen offset:%d sc1' % (
                vr(P0 + 28 * s_ + 4 * i, 4), vA, srd(SRD_WS), b.s_sp + (i >> 2), (i & 3) * 1024)) for i in range(7)]
        ld(0)
        k('s_sleep 5')
        k.loop_label(L)
        spin_guard(k)
        last = []
        for s_ in range(2):
            k.vm = []
            last += ld(1 - s_)
            k._emit(classify('s_waitcnt vmcnt(7)'))
            k.vm = []
            p = P0 + 28 * s_
            for i in range(14):
                k('v_xor_b32 v%d, s%d, v%d' % (p + 2 * i + 1, S_EPOCH, p + 2 * i + 1))
            for x, o in ((Sx, 0), (Qx, 2)):
                k('v_add_f32 v%d, v%d, v%d' % (x, p + o, p + o + 4))
                k('v_add_f32 v%d, v%d, v%d' % (x + 1, p + o + 8, p + o + 12))
            k('v_or3_b32 v%d, v%d, v%d, v%d' % (p + 1, p + 1, p + 3, p + 5))
            k('v_or3_b32 v%d, v%d, v%d, v%d' % (p + 7, p + 7, p + 9, p + 11))
            k('v_or3_b32 v%d, v%d, v%d, v%d' % (p + 13, p + 13, p + 15, p + 17))
            k('v_or3_b32 v%d, v%d, v%d, v%d' % (p + 19, p + 19, p + 21, p + 23))
            k('v_or3_b32 v%d, v%d, v%d, v%d' % (p + 1, p + 1, p + 25, p + 27))
            k('v_or3_b32 v%d, v%d, v%d, v%d' % (p + 7, p + 7, p + 13, p + 19))
            k('v_or_b32 v%d, v%d, v%d' % (p + 1, p + 1, p + 7))
            k('v_cmp_ne_u32 vcc, 0, v%d' % (p + 1))
            for x, o in ((Sx, 0), (Qx, 2)):
                k('v_add_f32 v%d, v%d, v%d' % (x, x, p + o + 16))
                k('v_add_f32 v%d, v%d, v%d' % (x + 1, x + 1, p + o + 20))
            for x, o in ((Sx, 0), (Qx, 2)):
                k('v_add_f32 v%d, v%d, v%d' % (x, x, p + o + 24))
            k('%s %s' % (('s_cbranch_vccz', 's_cbranch_vccnz')[s_], (done, L)[s_]))
        k.fence()
        k.raw(done + ':')
        k.vm = list(last)
        stamp(k, 13)
        P0 = t + 92
        for x in (Sx, Qx):
            k('v_add_f32 v%d, v%d, v%d' % (x, x, x + 1))
    else:
        vA, vC, vG = t + 1, t + 2, t + 3
        k('v_and_b32 v%d, 1, v3' % vA)
        k('v_lshlrev_b32 v%d, 6, v%d' % (vA, vA))
        k('v_lshrrev_b32 v%d, 5, v1' % vC)
        k('v_lshl_add_u32 v%d, v%d, 5, v%d' % (vA, vC, vA))
        k('v_bfe_u32 v%d, v1, 2, 2' % vG)
        k('v_lshl_add_u32 v%d, v%d, 3, v%d' % (vA, vG, vA))
        k('s_lshl_b32 s%d, s3, 8' % b.s_tmp)
        k('v_add_u32 v%d, s%d, v%d' % (vA, b.s_tmp, vA))
        k('ds_write_b64 v%d, %s offset:%d' % (vA, vr(W_, 2), lds_small))
        k('ds_write_b64 v%d, %s offset:%d' % (vA, vr(W_ + 2, 2), lds_small + 128))
        k('v_and_b32 v%d, 31, v1' % vG)
        k('v_lshlrev_b32 v%d, 9, v%d' % (vA, vC))
        k('v_lshl_add_u32 v%d, v%d, 4, v%d' % (vA, vG, vA))
        k('v_lshlrev_b32 v%d, 8, v%d' % (vC, vC))
        k('v_lshl_add_u32 v%d, v%d, 3, v%d' % (vC, vG, vC))
        k('s_and_b32 s%d, s%d, 512' % (b.s_tmp, b.s_tmp))
        k('v_add_u32 v%d, s%d, v%d' % (vC, b.s_tmp, vC))
        k('s_lshl_b32 s%d, s%d, 1' % (b.s_tmp, g.s_st))
        k('s_lshr_b32 s%d, s3, 1' % b.s_t2)
        k('s_add_u32 s%d, s%d, s%d' % (b.s_tmp, b.s_tmp, b.s_t2))
        k('s_lshl_b32 s%d, s%d, 12' % (b.s_tmp, b.s_tmp))
        k('s_add_u32 s%d, s%d, 0x%x' % (b.s_tmp, b.s_tmp, STAT_OFF))
        k('s_lshl_b32 s%d, s%d, 9' % (b.s_t2, g.s_dtD))
        k('s_add_u32 s%d, s%d, s%d' % (b.s_t2, b.s_t2, b.s_tmp))
        stamp(k, 23)
        k.wait_lg(0)
        k.barrier()
        k('ds_read_b64 %s, v%d offset:%d' % (vr(V, 2), vC, lds_small))
        G_ = V + 4
        k('v_mov_b32 v%d, s%d' % (G_ + 1, S_EPOCH))
        k('v_mov_b32 v%d, s%d' % (G_ + 3, S_EPOCH))
        k('v_mov_b32 v%d, v%d' % (G_, V))
        k('v_mov_b32 v%d, v%d' % (G_ + 2, V + 1))
        k('v_permlane32_swap_b32 v%d, v%d' % (G_, V))
        k('v_permlane32_swap_b32 v%d, v%d' % (G_ + 2, V + 1))
        k('v_add_f32 v%d, v%d, v%d' % (G_, G_, V))
        k('v_add_f32 v%d, v%d, v%d' % (G_ + 2, G_ + 2, V + 1))
        k('s_bitcmp0_b32 s3, 0')
        k('s_cselect_b32 exec_lo, -1, 0')
        k('s_mov_b32 exec_hi, 0')
        k('buffer_store_dwordx4 %s, v%d, %s, s%d offen sc1' % (vr(G_, 4), vA, srd(SRD_WS), b.s_t2))
        if DBL & 1:
            k('buffer_store_dwordx4 %s, v%d, %s, s%d offen' % (vr(G_, 4), vA, srd(SRD_WS), b.s_t2))
        k('s_mov_b64 exec, -1')
        for i in range(8):
            k('v_cvt_pk_bf16_f32 v%d, v%d, v%d' % (b.HK + i, A + 2 * i, A + 2 * i + 1))
        k('s_lshl_b32 s%d, s%d, 1' % (b.s_x, g.s_dtD))
        k('s_and_b32 s%d, s3, 1' % b.s_t2)
        k('s_add_u32 s%d, s%d, s%d' % (b.s_x, b.s_x, b.s_t2))
        k('s_lshl_b32 s%d, s%d, 7' % (b.s_x, b.s_x))
        k('s_lshl_b32 s%d, s%d, 2' % (b.s_t2, g.s_st))
        k('s_add_u32 s%d, s%d, s%d' % (b.s_x, b.s_x, b.s_t2))
        k('s_and_b32 s%d, s3, 2' % b.s_t2)
        k('s_add_u32 s%d, s%d, s%d' % (b.s_x, b.s_x, b.s_t2))
        k('s_lshl_b32 s%d, s%d, 10' % (b.s_x, b.s_x))
        k('s_add_u32 s%d, s%d, 0x%x' % (b.s_x, b.s_x, HH_OFF))
        k('v_lshlrev_b32 v%d, 4, v%d' % (vC, vG))
        k('v_cmp_gt_u32 %s, 32, v1' % sr(S_T, 2))
        hook('B_before_poll')
        stamp(k, 31)
        P0 = t + 32
        L = k.newlabel('Lst')
        done = k.newlabel('Lstd')
        Sx, Qx = t + 64, t + 66

        def ld(s_):
            r = []
            for i in range(4):
                r.append(k('buffer_load_dwordx4 %s, v%d, %s, s%d offen offset:%d %s' % (
                    vr(P0 + 16 * s_ + 4 * i, 4), vA if i < 3 else vC, srd(SRD_WS), b.s_tmp, i * 1024, ST_SC)))
            return r
        ld(0)
        k('s_sleep 5')
        k.loop_label(L)
        spin_guard(k)
        last = []
        for s_ in range(2):
            k.vm = []
            if ST_SLEEP:
                k('s_sleep %d' % ST_SLEEP)
            last += ld(1 - s_)
            k._emit(classify('s_waitcnt vmcnt(4)'))
            k.vm = []
            p = P0 + 16 * s_
            for i in range(8):
                k('v_xor_b32 v%d, s%d, v%d' % (p + 2 * i + 1, S_EPOCH, p + 2 * i + 1))
            k('v_cndmask_b32 v%d, 0, v%d, %s' % (p + 12, p + 12, sr(S_T, 2)))
            k('v_cndmask_b32 v%d, 0, v%d, %s' % (p + 14, p + 14, sr(S_T, 2)))
            k('v_or3_b32 v%d, v%d, v%d, v%d' % (p + 1, p + 1, p + 3, p + 5))
            k('v_or3_b32 v%d, v%d, v%d, v%d' % (p + 7, p + 7, p + 9, p + 11))
            k('v_or3_b32 v%d, v%d, v%d, v%d' % (p + 1, p + 1, p + 13, p + 15))
            k('v_or_b32 v%d, v%d, v%d' % (p + 1, p + 1, p + 7))
            k('v_cmp_ne_u32 vcc, 0, v%d' % (p + 1))
            for x, o in ((Sx, 0), (Qx, 2)):
                k('v_add_f32 v%d, v%d, v%d' % (x, p + o, p + o + 4))
                k('v_add_f32 v%d, v%d, v%d' % (x + 1, p + o + 8, p + o + 12))
            if s_ == 0:
                k('s_cbranch_vccz %s' % done)
            else:
                k('s_cbranch_vccnz %s' % L)
        k.fence()
        k.raw(done + ':')
        k.vm = list(last)
        stamp(k, 13)
        P0 = t + 68
        for x in (Sx, Qx):
            k('v_add_f32 v%d, v%d, v%d' % (x, x, x + 1))
    k('v_mov_b32 v%d, v%d' % (P0 + 4, Sx))
    k('v_mov_b32 v%d, v%d' % (P0 + 6, Qx))
    k('v_permlane32_swap_b32 v%d, v%d' % (Sx, P0 + 4))
    k('v_permlane32_swap_b32 v%d, v%d' % (Qx, P0 + 6))
    k('v_add_f32 v%d, v%d, v%d' % (Sx, Sx, P0 + 4))
    k('v_add_f32 v%d, v%d, v%d' % (Qx, Qx, P0 + 6))
    M, R = P0 + 1, P0 + 3
    k('v_mul_f32 v%d, %s, v%d' % (M, f32(1.0 / D), Sx))
    k('v_mul_f32 v%d, %s, v%d' % (Qx, f32(1.0 / D), Qx))
    k('v_fma_f32 v%d, -v%d, v%d, v%d' % (Qx, M, M, Qx))
    k('v_max_f32 v%d, 0, v%d' % (Qx, Qx))
    k('v_add_f32 v%d, %s, v%d' % (R, f32(1e-5), Qx))
    k('v_rsq_f32 v%d, v%d' % (R, R))
    k('v_mul_f32 v%d, v%d, v%d' % (Qx, Qx, R))
    k('v_fmaak_f32 v%d, v%d, v%d, %s' % (Qx, Qx, R, f32(1e-5)))
    k('v_rsq_f32 v%d, v%d' % (Qx, Qx))
    k('v_mul_f32 v%d, v%d, v%d' % (R, R, Qx))
    k('s_lshl_b32 s%d, s3, 8' % b.s_t2)
    k('v_lshl_add_u32 v%d, v%d, 2, s%d' % (vC, vG, b.s_t2))
    k('ds_write_b32 v%d, v%d offset:%d' % (vC, M, lds_small + 1024))
    k('ds_write_b32 v%d, v%d offset:%d' % (vC, R, lds_small + 1024 + 128))
    k('v_lshrrev_b32 v%d, 5, v1' % vC)
    k('v_lshl_add_u32 v%d, v%d, 4, s%d' % (vC, vC, b.s_t2))
    MM = 16 if ST14 else P0 + 8
    k.wait_lg(0)
    for q in range(4):
        k('ds_read_b128 %s, v%d offset:%d' % (vr(MM + 4 * q, 4), vC, lds_small + 1024 + 32 * q))
        k('ds_read_b128 %s, v%d offset:%d' % (vr(MM + 16 + 4 * q, 4), vC, lds_small + 1024 + 128 + 32 * q))
    for tp in range(2):
        for i in range(8 * tp, 8 * tp + 8, 2):
            k('v_pk_add_f32 %s, %s, %s neg_lo:[0,1] neg_hi:[0,1]' % (vr(A + i, 2), vr(A + i, 2), vr(MM + i, 2)))
        for i in range(8 * tp, 8 * tp + 8, 2):
            k('v_pk_mul_f32 %s, %s, %s' % (vr(A + i, 2), vr(A + i, 2), vr(MM + 16 + i, 2)))
        p = (P0 + 8 if ST14 else V) + 4 * tp
        for i in range(4):
            k('v_cvt_pk_bf16_f32 v%d, v%d, v%d' % (p + i, A + 8 * tp + 2 * i, A + 8 * tp + 2 * i + 1))
        k('buffer_store_dwordx4 %s, v4, %s, s%d offen offset:%d %s' % (vr(p, 4), srd(SRD_WS), b.s_x, tp * 1024, sc1), tag='hst')


def B_hh_addr(k):
    b, g = B, G
    k('s_lshl_b32 s%d, s%d, 1' % (b.s_x, g.s_dtD))
    k('s_and_b32 s%d, s3, 1' % b.s_t2)
    k('s_add_u32 s%d, s%d, s%d' % (b.s_x, b.s_x, b.s_t2))
    k('s_lshl_b32 s%d, s%d, 7' % (b.s_x, b.s_x))
    k('s_lshl_b32 s%d, s%d, 2' % (b.s_t2, g.s_st))
    k('s_add_u32 s%d, s%d, s%d' % (b.s_x, b.s_x, b.s_t2))
    k('s_and_b32 s%d, s3, 2' % b.s_t2)
    k('s_add_u32 s%d, s%d, s%d' % (b.s_x, b.s_x, b.s_t2))
    k('s_lshl_b32 s%d, s%d, 10' % (b.s_x, b.s_x))
    k('s_add_u32 s%d, s%d, 0x%x' % (b.s_x, b.s_x, HH_OFF))


def B_st14_setup(k):
    b, g = B, G
    t = b.T
    k('v_and_b32 v%d, 1, v1' % t)
    k('v_lshlrev_b32 v%d, 8, v%d' % (b.vSw, t))
    k('v_and_b32 v%d, 1, v3' % t)
    k('v_lshl_add_u32 v%d, v%d, 7, v%d' % (b.vSw, t, b.vSw))
    k('v_lshrrev_b32 v%d, 5, v1' % t)
    k('v_lshl_add_u32 v%d, v%d, 6, v%d' % (b.vSw, t, b.vSw))
    k('v_lshlrev_b32 v%d, 9, v%d' % (b.vSp, t))
    k('v_bfe_u32 v%d, v1, 2, 2' % t)
    k('v_lshl_add_u32 v%d, v%d, 4, v%d' % (b.vSw, t, b.vSw))
    k('v_and_b32 v%d, 31, v1' % t)
    k('v_lshl_add_u32 v%d, v%d, 4, v%d' % (b.vSp, t, b.vSp))
    k('s_lshl_b32 s%d, s%d, 1' % (b.s_sp, g.s_st))
    k('s_lshr_b32 s%d, s3, 1' % b.s_sw)
    k('s_add_u32 s%d, s%d, s%d' % (b.s_sp, b.s_sp, b.s_sw))
    k('s_lshl_b32 s%d, s%d, 13' % (b.s_sp, b.s_sp))
    k('s_add_u32 s%d, s%d, 0x%x' % (b.s_sp, b.s_sp, STAT_OFF))
    k('s_add_u32 s%d, s%d, 4096' % (b.s_sp + 1, b.s_sp))
    k('s_lshl_b32 s%d, s%d, 1' % (b.s_sw, g.s_dtD))
    k('s_and_b32 s88, s3, 1')
    k('s_add_u32 s%d, s%d, s88' % (b.s_sw, b.s_sw))
    k('s_lshl_b32 s%d, s%d, 9' % (b.s_sw, b.s_sw))
    k('s_add_u32 s%d, s%d, s%d' % (b.s_sw, b.s_sw, b.s_sp))
    k('s_mov_b32 s88, 0xaaaaaaaa')
    k('s_mov_b32 s89, 0xaaaaaaaa')


def agent(k):
    g = G
    k.c('---- agent: W2 warm-up')
    k('s_lshr_b32 s%d, s2, 3' % g.s_tmp)
    k('s_sub_u32 s%d, s%d, 28' % (g.s_tmp, g.s_tmp))
    k('s_lshl_b32 s%d, s%d, 2' % (g.s_tmp, g.s_tmp))
    k('s_add_u32 s%d, s%d, s3' % (g.s_tmp, g.s_tmp))
    k('s_lshl_b32 s%d, s%d, 16' % (g.s_tmp, g.s_tmp))
    k('s_and_b32 s%d, s2, 7' % g.s_t2)
    k('s_lshl_b32 s%d, s%d, 9' % (g.s_t2, g.s_t2))
    k('s_add_u32 s%d, s%d, s%d' % (g.s_tmp, g.s_tmp, g.s_t2))
    k('v_lshrrev_b32 v16, 2, v1')
    k('v_lshlrev_b32 v16, 12, v16')
    k('v_and_b32 v17, 3, v1')
    k('v_lshl_add_u32 v16, v17, 7, v16')
    for i in range(7):
        k('buffer_load_dword v%d, v16, %s, s%d offen' % (18 + i, srd(SRD_W2), g.s_tmp))
        k('s_add_u32 s%d, s%d, 0x100000' % (g.s_tmp, g.s_tmp))
        k.wait_vm(AGENT_DEPTH - 1)
    k.wait_vm(0)
    if AGENT_HH:
        k('s_lshr_b32 s%d, s2, 3' % g.s_tmp)
        k('s_sub_u32 s%d, s%d, 28' % (g.s_tmp, g.s_tmp))
        k('s_lshl_b32 s%d, s%d, 2' % (g.s_tmp, g.s_tmp))
        k('s_add_u32 s%d, s%d, s3' % (g.s_tmp, g.s_tmp))
        k('v_lshrrev_b32 v16, 3, v1')
        k('v_min_u32 v16, 6, v16')
        k('v_lshlrev_b32 v16, 12, v16')
        k('v_bfe_u32 v17, v1, 2, 1')
        k('v_lshl_add_u32 v16, v17, 7, v16')
        k('v_and_b32 v17, 3, v1')
        k('v_lshl_add_u32 v16, v17, 2, v16')
        k('s_lshl_b32 s%d, s%d, 8' % (g.s_t2, g.s_tmp))
        k('s_add_u32 s%d, s%d, 0x%x' % (g.s_t2, g.s_t2, FLAG_B))
        save = POLL_SLEEP
        globals()['POLL_SLEEP'] = 8
        flag_poll(k, 0, 16, g.s_t2)
        globals()['POLL_SLEEP'] = save
        k('v_lshlrev_b32 v16, 7, v1')
        k('s_lshl_b32 s%d, s%d, 13' % (g.s_tmp, g.s_tmp))
        k('s_add_u32 s%d, s%d, 0x%x' % (g.s_tmp, g.s_tmp, HH_OFF))
        for i, db in enumerate(AGENT_HH):
            k('s_add_u32 s%d, s%d, 0x%x' % (g.s_t2, g.s_tmp, db * 0x20000))
            k('buffer_load_dword v%d, v16, %s, s%d offen sc1' % (18 + i, srd(SRD_WS), g.s_t2))
        k.wait_vm(0)


class G:
    ACC = 16
    RING = 80
    NR = 16
    vW1, vW2 = 213, 214
    vRa, vRb = 215, 216
    vSa, vSb = 217, 218
    vCl = 5
    T = 220
    s_dtC, s_ft, s_dtD, s_st, s_tmp, s_t2, s_stage, s_a0, s_a1 = 64, 65, 66, 67, 68, 69, 70, 71, 72
    s_b0, s_b1 = 56, 57


def G_map(k):
    g = G
    k.c('---- C/D tile map')
    k('s_lshr_b32 s%d, s2, 3' % g.s_tmp)
    k('s_mul_i32 s%d, s%d, 37' % (g.s_t2, g.s_tmp))
    k('s_lshr_b32 s%d, s%d, 8' % (g.s_t2, g.s_t2))
    k('s_mul_i32 s%d, s%d, 7' % (g.s_dtC, g.s_t2))
    k('s_sub_u32 s%d, s%d, s%d' % (g.s_dtC, g.s_tmp, g.s_dtC))
    k('s_mov_b32 s%d, s%d' % (g.s_dtD, g.s_dtC))
    k('s_and_b32 s%d, s2, 7' % g.s_tmp)
    k('s_lshl_b32 s%d, s%d, 2' % (g.s_st, g.s_tmp))
    k('s_add_u32 s%d, s%d, s%d' % (g.s_st, g.s_st, g.s_t2))
    k('s_cmp_ge_u32 s%d, 4' % g.s_t2)
    k('s_cselect_b32 s%d, 99, s%d' % (g.s_st, g.s_st))
    k('s_mul_i32 s%d, s%d, 3' % (g.s_a0, g.s_tmp))
    k('s_add_u32 s%d, s%d, 4' % (g.s_a0, g.s_a0))
    k('s_lshl_b32 s%d, s%d, 2' % (g.s_a1, g.s_tmp))
    k('s_cmp_lt_u32 s%d, 4' % g.s_tmp)
    k('s_cselect_b32 s%d, s%d, s%d' % (g.s_ft, g.s_a1, g.s_a0))
    k('s_cselect_b32 s%d, 4, 3' % g.s_a0)
    k('s_add_u32 s%d, s%d, s%d' % (g.s_ft, g.s_ft, g.s_t2))
    k('s_cmp_ge_u32 s%d, s%d' % (g.s_t2, g.s_a0))
    k('s_cselect_b32 s%d, 99, s%d' % (g.s_ft, g.s_ft))


def G_w_setup(k, which, lds_base, per_wave):
    g = G
    t = TMP
    stride = F * 2 if which == 1 else S * 2
    krows = 512 if which == 1 else 448
    vW = g.vW1 if which == 1 else g.vW2
    va, vb = (g.vRa, g.vRb) if which == 1 else (g.vSa, g.vSb)
    s_tile = g.s_ft if which == 1 else g.s_st
    k('s_mul_i32 s%d, s3, %d' % (g.s_stage, per_wave))
    k('s_add_u32 s%d, s%d, %d' % (g.s_stage, g.s_stage, lds_base))
    k('v_lshrrev_b32 v%d, 3, v1' % t)
    k('v_mul_u32_u24 v%d, %d, v%d' % (vW, stride, t))
    k('v_and_b32 v%d, 1, v3' % t)
    k('v_lshlrev_b32 v%d, 2, v%d' % (t, t))
    k('v_and_b32 v%d, 7, v1' % (t + 1))
    k('v_xor_b32 v%d, v%d, v%d' % (t, t, t + 1))
    k('v_lshl_add_u32 v%d, v%d, 4, v%d' % (vW, t, vW))
    k('s_mul_i32 s%d, s3, %d' % (g.s_tmp, krows * stride))
    k('s_lshl_b32 s%d, s%d, 7' % (g.s_t2, s_tile))
    k('s_add_u32 s%d, s%d, s%d' % (g.s_tmp, g.s_tmp, g.s_t2))
    k('s_cmp_ge_u32 s%d, 99' % s_tile)
    k('s_cselect_b32 s%d, 0x%x, s%d' % (g.s_tmp, OOB, g.s_tmp))
    k('v_add_u32 v%d, s%d, v%d' % (vW, g.s_tmp, vW))
    if which == 1:
        k('s_cselect_b32 s%d, 0x%x, 0' % (g.s_tmp, OOB))
        k('v_add_u32 v%d, s%d, v4' % (g.vCl, g.s_tmp))
    k('v_lshrrev_b32 v%d, 5, v1' % t)
    k('v_lshlrev_b32 v%d, 9, v%d' % (va, t))
    k('v_bfe_u32 v%d, v1, 2, 2' % t)
    k('v_lshl_add_u32 v%d, v%d, 7, v%d' % (va, t, va))
    k('v_lshrrev_b32 v%d, 1, v%d' % (t, t))
    k('s_lshr_b32 s%d, s3, 1' % g.s_tmp)
    k('v_xor_b32 v%d, s%d, v%d' % (t, g.s_tmp, t))
    k('v_lshl_add_u32 v%d, v%d, 6, v%d' % (va, t, va))
    k('v_and_b32 v%d, 1, v3' % t)
    k('v_lshl_add_u32 v%d, v%d, 5, v%d' % (va, t, va))
    k('v_and_b32 v%d, 3, v1' % t)
    k('v_lshl_add_u32 v%d, v%d, 3, v%d' % (va, t, va))
    if CD2 and which == 1:
        k('s_and_b32 s%d, s3, 1' % g.s_tmp)
        k('s_lshl_b32 s%d, s%d, 5' % (g.s_tmp, g.s_tmp))
        k('v_xor_b32 v%d, s%d, v%d' % (va, g.s_tmp, va))
    k('v_add_u32 v%d, s%d, v%d' % (va, g.s_stage, va))
    k('v_xor_b32 v%d, 64, v%d' % (vb, va))


ROT = True
S_GC, S_GD = 94, 48


def G_rot_setup(k, which):
    n, base = (8, S_GC) if which == 1 else (7, S_GD)
    t = G.s_tmp
    if ROT in ('x', 'x2'):
        k('s_lshr_b32 s%d, s2, 3' % t)
        k('s_mul_i32 s%d, s%d, 37' % (t, t))
        k('s_lshr_b32 s%d, s%d, 8' % (t, t))
        k('s_and_b32 s%d, s%d, %d' % (t, t, 3 if ROT == 'x' else 1))
        for g_ in range(n):
            if n == 8 or g_ < 4:
                k('s_xor_b32 s%d, s%d, %d' % (base + g_, t, g_))
            elif g_ < 6:
                k('s_and_b32 s%d, s%d, 1' % (base + g_, t))
                k('s_xor_b32 s%d, s%d, %d' % (base + g_, base + g_, g_))
            else:
                k('s_mov_b32 s%d, %d' % (base + g_, g_))
            k('s_lshl_b32 s%d, s%d, 12' % (base + g_, base + g_))
        return
    if ROT == 'q':
        k('s_lshr_b32 s%d, s2, 3' % t)
        k('s_mul_i32 s%d, s%d, 37' % (t, t))
        k('s_lshr_b32 s%d, s%d, 8' % (t, t))
        k('s_and_b32 s%d, s%d, 3' % (t, t))
        k('s_mul_i32 s%d, s%d, %d' % (t, t, n))
        k('s_add_u32 s%d, s%d, 2' % (t, t))
        k('s_lshr_b32 s%d, s%d, 2' % (t, t))
    elif ROT:
        k('s_and_b32 s%d, s2, 7' % t)
    else:
        k('s_mov_b32 s%d, 0' % t)
    for g_ in range(n):
        if g_:
            k('s_add_u32 s%d, s%d, 1' % (t, t))
        k('s_cmp_ge_u32 s%d, %d' % (t, n))
        k('s_cselect_b32 s%d, %d, 0' % (base + g_, n))
        k('s_sub_u32 s%d, s%d, s%d' % (t, t, base + g_))
        k('s_lshl_b32 s%d, s%d, 12' % (base + g_, t))


def G_w_dma(k, which, t0, nt, slot0, tag=None, bg=False):
    g = G
    stride = F * 2 if which == 1 else S * 2

    def one(i):
        slot = slot0 + i // 2
        assert slot < NSLOT
        k.wait_lg_tag('rd%d' % slot)
        k.slot_content = getattr(k, 'slot_content', {})
        k.slot_content[slot] = (which, t0 + i // 2, i % 2)
        k('s_add_u32 m0, s%d, %d' % (g.s_stage, slot0 * 2048 + i * 1024))
        t = t0 + i // 2
        k('s_mul_i32 s%d, s%d, %d' % (B.s_dma, (S_GC if which == 1 else S_GD) + t // 4, 64 * stride // 4096))
        k('s_add_u32 s%d, s%d, %d' % (B.s_dma, B.s_dma, (16 * (t % 4) + 8 * (i % 2)) * stride))
        k('buffer_load_dwordx4 v%d, %s, s%d offen lds' % (g.vW1 if which == 1 else g.vW2, srd(SRD_W1 if which == 1 else SRD_W2), B.s_dma), tag='slot%d' % slot)
    for i in range(2 * nt):
        if bg:
            k.bg_push(lambda i=i: one(i))
        else:
            one(i)


def W1_warm(k, vdst):
    g = G
    t = TMP
    k('s_lshr_b32 s%d, s2, 3' % g.s_tmp)
    k('s_lshl_b32 s%d, s%d, 2' % (g.s_tmp, g.s_tmp))
    k('s_add_u32 s%d, s%d, s3' % (g.s_tmp, g.s_tmp))
    if True:
        k('v_lshlrev_b32 v%d, 7, v1' % t)
        k('s_mul_i32 s%d, s%d, 3200' % (S_T, g.s_tmp))
        k('s_mov_b64 exec, 0x1ffffff')
        k('buffer_load_dword v234, v%d, %s, s%d offen' % (t, srd(SRD_WO), S_T))
        k('s_mov_b64 exec, -1')
    k('v_lshrrev_b32 v%d, 2, v1' % t)
    k('v_mul_u32_u24 v%d, %d, v%d' % (t, F * 2, t))
    k('v_and_b32 v%d, 3, v1' % (t + 1))
    k('v_lshl_add_u32 v%d, v%d, 7, v%d' % (t, t + 1, t))
    k('s_mul_i32 s%d, s%d, %d' % (g.s_tmp, g.s_tmp, 16 * F * 2))
    k('s_and_b32 s%d, s2, 7' % g.s_t2)
    k('s_mul_i32 s%d, s%d, 3' % (S_T, g.s_t2))
    k('s_add_u32 s%d, s%d, 4' % (S_T, S_T))
    k('s_lshl_b32 s%d, s%d, 2' % (S_T + 1, g.s_t2))
    k('s_min_u32 s%d, s%d, s%d' % (S_T, S_T, S_T + 1))
    k('s_lshl_b32 s%d, s%d, 7' % (S_T, S_T))
    k('s_add_u32 s%d, s%d, s%d' % (S_T, S_T, g.s_tmp))
    k('s_cmp_lt_u32 s%d, 4' % g.s_t2)
    k('s_cselect_b32 exec_lo, -1, 0x77777777')
    k('s_cselect_b32 exec_hi, -1, 0x77777777')
    k('buffer_load_dword v%d, v%d, %s, s%d offen' % (vdst, t, srd(SRD_W1), S_T))
    k('s_mov_b64 exec, -1')


def G_w_read(k, which, t, slot, areg):
    g = G
    va, vb = (g.vRa, g.vRb) if which == 1 else (g.vSa, g.vSb)
    sec = 1024
    assert k.slot_content[slot] == (which, t, 1), (k.slot_content[slot], which, t)
    k.wait_tag('slot%d' % slot)
    for i, v in enumerate((va, vb)):
        k('ds_read_b64_tr_b16 %s, v%d offset:%d' % (ar(areg + 4 * i, 2), v, slot * 2048), tag='rd%d' % slot)
        k('ds_read_b64_tr_b16 %s, v%d offset:%d' % (ar(areg + 4 * i + 2, 2), v, slot * 2048 + sec), tag='rd%d' % slot)


def G_a_setup(k, which):
    g = G
    nks = 128 if which == 1 else 112
    per = 32 if which == 1 else 28
    base = HH_OFF if which == 1 else U_OFF
    s_dt = g.s_dtC if which == 1 else g.s_dtD
    k('s_lshl_b32 s%d, s%d, 1' % (g.s_tmp, s_dt))
    k('s_and_b32 s%d, s3, 1' % g.s_t2)
    k('s_add_u32 s%d, s%d, s%d' % (g.s_a0, g.s_tmp, g.s_t2))
    k('s_xor_b32 s%d, s%d, 1' % (g.s_a1, g.s_a0))
    k('s_mul_i32 s%d, s3, %d' % (g.s_tmp, per * 1024))
    k('s_add_u32 s%d, s%d, 0x%x' % (g.s_tmp, g.s_tmp, base))
    for s_ in (g.s_a0, g.s_a1):
        k('s_mul_i32 s%d, s%d, %d' % (s_, s_, nks * 1024))
        k('s_add_u32 s%d, s%d, s%d' % (s_, s_, g.s_tmp))


def G_a_load(k, t, sc1='', vo=4, which=1):
    g = G
    if t % 4 == 0:
        gr = (S_GC if which == 1 else S_GD) + t // 4
        k('s_add_u32 s%d, s%d, s%d' % (g.s_b0, g.s_a0, gr))
        k('s_add_u32 s%d, s%d, s%d' % (g.s_b1, g.s_a1, gr))
    r = g.RING + 8 * (t % g.NR)
    for i, s_ in enumerate((g.s_b0, g.s_b1)):
        k('buffer_load_dwordx4 %s, v%d, %s, s%d offen offset:%d %s' % (vr(r + 4 * i, 4), vo, srd(SRD_WS), s_, (t % 4) * 1024, sc1))


def G_mfma(k, t, areg):
    g = G
    r = g.RING + 8 * (t % g.NR)
    for iw in range(2):
        for ia in range(2):
            L = 2 * iw + ia
            a = vr(g.ACC + 16 * L, 16)
            c = '0' if (t == 0 and L != 0) else a
            k('v_mfma_f32_32x32x16_bf16 %s, %s, %s, %s' % (a, ar(areg + 4 * iw, 4), vr(r + 4 * ia, 4), c))


def G_mfma_tail(k, ts, areg, order, writes):
    g = G
    pend = []
    for L in order:
        iw, ia = L >> 1, L & 1
        a = vr(g.ACC + 16 * L, 16)
        for n, t in enumerate(ts):
            r = g.RING + 8 * (t % g.NR)
            k('v_mfma_f32_32x32x16_bf16 %s, %s, %s, %s' % (a, ar(areg(t) + 4 * iw, 4), vr(r + 4 * ia, 4), a))
            if n >= 1:
                per = -(-len(pend) // (len(ts) - n))
                for f in pend[:per]:
                    f()
                pend = pend[per:]
        pend = pend + list(writes.get(L, []))
    for f in pend:
        f()


def C_init(k):
    g = G
    t = g.T
    k('v_lshrrev_b32 v%d, 5, v1' % t)
    k('v_lshlrev_b32 v%d, 3, v%d' % (t, t))
    k('s_lshl_b32 s%d, s%d, 7' % (g.s_tmp, g.s_ft))
    k('s_lshr_b32 s%d, s3, 1' % g.s_t2)
    k('s_lshl_b32 s%d, s%d, 6' % (g.s_t2, g.s_t2))
    k('s_add_u32 s%d, s%d, s%d' % (g.s_tmp, g.s_tmp, g.s_t2))
    for q in range(4):
        k('buffer_load_dwordx2 %s, v%d, %s, s%d offen offset:%d' % (vr(t + 2 + 2 * q, 2), t, srd(SRD_B1), g.s_tmp, 16 * q))


def C_init_finish(k):
    g = G
    t = g.T
    for q in range(4):
        for i in range(2):
            k('v_lshlrev_b32 v%d, 16, v%d' % (g.ACC + 4 * q + 2 * i, t + 2 + 2 * q + i))
            k('v_and_b32 v%d, 0xffff0000, v%d' % (g.ACC + 4 * q + 2 * i + 1, t + 2 + 2 * q + i))


def C_epi_addr(k):
    g = G
    t = g.T
    for L in range(1, 4):
        k('s_xor_b32 s%d, s3, %d' % (g.s_tmp, L))
        k('s_mul_i32 s%d, s%d, %d' % (g.s_tmp, g.s_tmp, STG_SZ))
        k('s_add_u32 s%d, s%d, %d' % (g.s_tmp, g.s_tmp, LDS_STG + (L - 1) * 4096))
        k('v_add_u32 v%d, s%d, v4' % (t + L, g.s_tmp))
    k('v_add_u32 v%d, s%d, v4' % (t, g.s_stage))
    k('s_lshl_b32 s%d, s%d, 1' % (g.s_tmp, g.s_dtC))
    k('s_and_b32 s%d, s3, 1' % g.s_t2)
    k('s_add_u32 s%d, s%d, s%d' % (g.s_tmp, g.s_tmp, g.s_t2))
    k('s_mul_i32 s%d, s%d, 112' % (g.s_tmp, g.s_tmp))
    k('s_lshl_b32 s%d, s%d, 2' % (g.s_t2, g.s_ft))
    k('s_add_u32 s%d, s%d, s%d' % (g.s_tmp, g.s_tmp, g.s_t2))
    k('s_and_b32 s%d, s3, 2' % g.s_t2)
    k('s_add_u32 s%d, s%d, s%d' % (g.s_tmp, g.s_tmp, g.s_t2))
    k('s_lshl_b32 s%d, s%d, 10' % (g.s_tmp, g.s_tmp))
    k('s_add_u32 s%d, s%d, 0x%x' % (g.s_tmp, g.s_tmp, U_OFF))
    c1 = -2.0 * 0.7978845608028654 * 1.4426950408889634
    c2 = c1 * 0.044715
    k('s_mov_b32 s88, %s' % f32(c1))
    k('s_mov_b32 s90, %s' % f32(c2))
    k('v_mov_b32 v%d, s88' % (t + 4))
    k('v_mov_b32 v%d, s88' % (t + 5))


def C_epi_writes(k):
    g = G
    t = g.T
    return {L: [lambda L=L, q=q: k('ds_write_b128 v%d, %s offset:%d' % (t + L, vr(g.ACC + 16 * L + 4 * q, 4), q * 1024))
                for q in range(4)] for L in range(1, 4)}


def C_epilogue(k, sc1=''):
    g = G
    t = g.T
    k.c('---- phase C epilogue')
    k.wait_lg(0)
    k.barrier()
    R = g.ACC + 16
    for q in range(4):
        for L in range(3):
            k('ds_read_b128 %s, v%d offset:%d' % (vr(R + 16 * L + 4 * q, 4), t, L * 4096 + q * 1024))
    sc = 88
    X2 = g.RING
    for half in range(2):
        for i in range(8 * half, 8 * half + 8, 2):
            a = g.ACC + i
            k('v_pk_add_f32 %s, %s, %s' % (vr(R + i, 2), vr(R + i, 2), vr(R + 16 + i, 2)))
            k('v_pk_add_f32 %s, %s, %s' % (vr(a, 2), vr(a, 2), vr(R + 32 + i, 2)))
        for i in range(8 * half, 8 * half + 8, 2):
            a = g.ACC + i
            k('v_pk_add_f32 %s, %s, %s' % (vr(a, 2), vr(a, 2), vr(R + i, 2)))
        for i in range(8 * half, 8 * half + 8, 2):
            a = g.ACC + i
            k('v_pk_mul_f32 %s, %s, %s' % (vr(X2 + i, 2), vr(a, 2), vr(a, 2)))
        for i in range(8 * half, 8 * half + 8, 2):
            k('v_pk_fma_f32 %s, %s, %s, %s op_sel_hi:[1,0,1]' % (vr(X2 + i, 2), vr(X2 + i, 2), sr(sc + 2, 2), vr(t + 4, 2)))
        for i in range(8 * half, 8 * half + 8, 2):
            k('v_pk_mul_f32 %s, %s, %s' % (vr(X2 + i, 2), vr(X2 + i, 2), vr(g.ACC + i, 2)))
        for i in range(8 * half, 8 * half + 8):
            k('v_exp_f32 v%d, v%d' % (X2 + i, X2 + i))
        for i in range(8 * half, 8 * half + 8, 2):
            k('v_pk_add_f32 %s, %s, 1.0 op_sel_hi:[1,0]' % (vr(X2 + i, 2), vr(X2 + i, 2)))
        for i in range(8 * half, 8 * half + 8):
            k('v_rcp_f32 v%d, v%d' % (X2 + i, X2 + i))
        for i in range(8 * half, 8 * half + 8, 2):
            k('v_pk_mul_f32 %s, %s, %s' % (vr(X2 + i, 2), vr(X2 + i, 2), vr(g.ACC + i, 2)))
        p = X2 + 16 + 4 * half
        for i in range(4):
            k('v_cvt_pk_bf16_f32 v%d, v%d, v%d' % (p + i, X2 + 8 * half + 2 * i, X2 + 8 * half + 2 * i + 1))
        k('buffer_store_dwordx4 %s, v%d, %s, s%d offen offset:%d %s' % (vr(p, 4), g.vCl, srd(SRD_WS), g.s_tmp, half * 1024, sc1), tag='ust')


def D_init(k, sc1=''):
    g = G
    t = g.T
    k('v_lshrrev_b32 v%d, 5, v1' % t)
    k('v_lshlrev_b32 v%d, 3, v%d' % (t, t))
    k('s_lshl_b32 s%d, s%d, 7' % (g.s_tmp, g.s_st))
    k('s_lshr_b32 s%d, s3, 1' % g.s_t2)
    k('s_lshl_b32 s%d, s%d, 6' % (g.s_t2, g.s_t2))
    k('s_add_u32 s%d, s%d, s%d' % (g.s_tmp, g.s_tmp, g.s_t2))
    for q in range(4):
        k('buffer_load_dwordx2 %s, v%d, %s, s%d offen offset:%d' % (vr(t + 2 + 2 * q, 2), t, srd(SRD_B2), g.s_tmp, 16 * q))


def D_init_finish(k):
    g = G
    t = g.T
    for q in range(4):
        for i in range(2):
            a = g.ACC + 4 * q + 2 * i
            k('v_lshlrev_b32 v%d, 16, v%d' % (a, t + 2 + 2 * q + i))
            k('v_and_b32 v%d, 0xffff0000, v%d' % (a + 1, t + 2 + 2 * q + i))
            k('v_lshlrev_b32 v%d, 16, v%d' % (t + 18, B.HK + 2 * q + i))
            k('v_and_b32 v%d, 0xffff0000, v%d' % (t + 19, B.HK + 2 * q + i))
            k('v_pk_add_f32 %s, %s, %s' % (vr(a, 2), vr(a, 2), vr(t + 18, 2)))


def D_epilogue(k, lds_red, stride):
    g = G
    t = g.T
    k.c('---- phase D epilogue')
    k('v_lshrrev_b32 v%d, 5, v1' % t)
    k('v_lshlrev_b32 v%d, 10, v%d' % (t, t))
    k('v_and_b32 v%d, 31, v1' % (t + 1))
    k('v_lshl_add_u32 v%d, v%d, 2, v%d' % (t, t + 1, t))
    k('s_lshr_b32 s%d, s3, 1' % g.s_t2)
    k('s_lshl_b32 s%d, s%d, 13' % (g.s_tmp, g.s_t2))
    k('s_and_b32 s%d, s3, 1' % g.s_t2)
    k('s_lshl_b32 s%d, s%d, 7' % (g.s_t2, g.s_t2))
    k('s_add_u32 s%d, s%d, s%d' % (g.s_tmp, g.s_tmp, g.s_t2))
    k('v_add_u32 v%d, s%d, v%d' % (t, g.s_tmp, t))
    k('v_xor_b32 v%d, 128, v%d' % (t + 1, t))
    k('v_xor_b32 v%d, 0x2000, v%d' % (t + 2, t))
    k('v_xor_b32 v%d, 0x2080, v%d' % (t + 3, t))
    k('s_mul_i32 s%d, s3, %d' % (g.s_tmp, stride))
    k('s_add_u32 s%d, s%d, %d' % (g.s_tmp, g.s_tmp, lds_red))
    for L in range(4):
        k('v_add_u32 v%d, s%d, v%d' % (t + L, g.s_tmp, t + L))
    k('s_lshl_b32 s%d, s3, 12' % g.s_tmp)
    k('s_add_u32 s%d, s%d, %d' % (g.s_tmp, g.s_tmp, lds_red))
    k('v_add_u32 v%d, s%d, v4' % (t + 4, g.s_tmp))
    k('v_add_u32 v%d, %d, v%d' % (t + 6, 2 * stride, t + 4))
    k('v_mul_u32_u24 v%d, 896, v3' % (t + 5))
    k('v_lshl_add_u32 v%d, v2, 3, v%d' % (t + 5, t + 5))
    k('s_lshl_b32 s%d, s%d, 2' % (g.s_tmp, g.s_st))
    k('s_add_u32 s%d, s%d, s3' % (g.s_tmp, g.s_tmp))
    k('s_mul_i32 s%d, s%d, %d' % (g.s_tmp, g.s_tmp, 16 * 896))
    k('s_lshl_b32 s%d, s%d, 7' % (g.s_t2, g.s_dtD))
    k('s_add_u32 s%d, s%d, s%d' % (g.s_tmp, g.s_tmp, g.s_t2))
    k('s_add_u32 s%d, s%d, %d' % (g.s_t2, g.s_tmp, 8 * 896))


def D_epi_writes(k):
    g = G
    t = g.T
    return {L: [lambda L=L, q=q, r=r: k('ds_write2st64_b32 v%d, v%d, v%d offset0:%d offset1:%d' % (
        t + L, g.ACC + 16 * L + 4 * q + r, g.ACC + 16 * L + 4 * q + r + 1, 8 * q + r, 8 * q + r + 1))
        for q in range(4) for r in (0, 2)] for L in range(4)}


def D_epilogue2(k, stride):
    g = G
    t = g.T
    k.wait_lg(0)
    k.barrier()
    R = g.ACC
    for i in range(4):
        for w in range(4):
            k('ds_read_b128 %s, v%d offset:%d' % (vr(R + 16 * i + 4 * w, 4), t + 4 if w < 2 else t + 6, (w & 1) * stride + i * 1024))
    for i in range(4):
        r = R + 16 * i
        for j in (0, 2):
            k('v_pk_add_f32 %s, %s, %s' % (vr(r + j, 2), vr(r + j, 2), vr(r + 4 + j, 2)))
            k('v_pk_add_f32 %s, %s, %s' % (vr(r + 8 + j, 2), vr(r + 8 + j, 2), vr(r + 12 + j, 2)))
        for j in (0, 2):
            k('v_pk_add_f32 %s, %s, %s' % (vr(r + j, 2), vr(r + j, 2), vr(r + 8 + j, 2)))
        k('v_cvt_pk_bf16_f32 v%d, v%d, v%d' % (r + 4, r, r + 1))
        k('v_cvt_pk_bf16_f32 v%d, v%d, v%d' % (r + 5, r + 2, r + 3))
        k('buffer_store_dwordx2 %s, v%d, %s, s%d offen offset:%d' % (vr(r + 4, 2), t + 5, srd(SRD_OUT), g.s_t2 if i >= 2 else g.s_tmp, (i % 2) * 4 * 896))
```

```python
import sys, os
sys.path.insert(0, os.path.dirname(os.path.abspath(__file__)))
from dsl import Kernel
import phases as P
import cd2
import a2
import zmode as Z

NAME = 'sequential_preLN__sliding_local_dilated__mixer_token_mlp__prompt'
HEADER = open(os.path.join(os.path.dirname(os.path.abspath(__file__)), '..', NAME + '.s.ref')).read().split('; Override launch')[0]


def wrap(kernels):
    out = [HEADER.rstrip('\n')]
    for label, k, grid, lds in kernels:
        if len(kernels) == 1 and label == NAME + '_kernel':
            out.append('; @launch grid=(%d,1,1) block=(256,1,1) lds=%d' % (grid, lds))
        else:
            out.append('; @launch kernel=%s grid=(%d,1,1) block=(256,1,1) lds=%d' % (label, grid, lds))
    out.append('.amdgcn_target "amdgcn-amd-amdhsa--gfx950"')
    out.append('.text')
    seen = []
    for label, k, grid, lds in kernels:
        if label in seen:
            continue
        seen.append(label)
        out.append('.globl %s\n.p2align 8\n.type %s,@function\n%s:' % (label, label, label))
        out.append(k.text())
    out.append('.section .rodata,"a"')
    seen = []
    for label, k, grid, lds in kernels:
        if label in seen:
            continue
        seen.append(label)
        nv = k.max_v + 1
        acc = (nv + 3) // 4 * 4
        tot = acc + k.max_a + 1 if k.max_a >= 0 else nv
        out.append('.p2align 6\n.amdhsa_kernel %s\n  .amdhsa_next_free_vgpr %d\n  .amdhsa_next_free_sgpr 102\n'
                   '  .amdhsa_accum_offset %d\n  .amdhsa_group_segment_fixed_size 0\n  .amdhsa_kernarg_size 88\n'
                   '  .amdhsa_user_sgpr_count 2\n  .amdhsa_user_sgpr_kernarg_segment_ptr 1\n'
                   '  .amdhsa_system_sgpr_workgroup_id_x 1\n.end_amdhsa_kernel' % (label, tot, acc))
        sys.stderr.write('%s: %d instrs, %d nops, v<=%d a<=%d s<=%d\n' % (label, k.n_ins, k.n_nops, k.max_v, k.max_a, k.max_s))
    return '\n'.join(out) + '\n'


def kernel_A(stamps=False):
    k = Kernel('A'); k.stamps = stamps
    P.prologue(k, 256, 'L_end_A', [P.ARG[n] for n in ('x', 'wqkv', 'ws')])
    P.stamp(k, 0)
    P.phaseA(k)
    P.stamp(k, 5)
    k.wait_vm(0)
    P.stamp(k, 6)
    k.label('L_end_A')
    k('s_endpgm')
    return ('phaseA_kernel', k, 256, P.A_LDS_END)


OPT = {}


def persist(stamps=False):
    k = Kernel('P'); k.stamps = stamps; k.scramble = OPT.get('scramble', False); k.xcctest = OPT.get('xcctest', False)
    end = 'L_end_P'
    g, b = P.G, P.B
    SC = 'sc1'
    ZM = OPT.get('z', False)
    sFZ, sPZ, vPZ = 63, 79, 219
    if ZM:
        P.ROT = False
        cd2.NRS = 24
    SCL = OPT.get('scl', 'sc1')
    vE, vF, vPA, vPB, vPC = 6, 8, 10, 11, 12
    sFA, sFB, sFC, sPA, sPB, sPC = 80, 81, 82, 83, 84, 85
    P.prologue(k, 256, end, [P.ARG[n] for n in ('x', 'wqkv', 'dbg', 'ws', 'wo', 'w1', 'w2', 'b1', 'b2', 'out')])
    P.stamp(k, 0)

    def areg(t):
        return 128 + 8 * t if t < 16 else 8 * (t - 16)

    def setup():
        P.G_map(k)
        P.B_setup(k)
        P.G_w_setup(k, 1, P.LDS_STG, P.STG_SZ)
        P.G_w_setup(k, 2, P.LDS_STG, P.STG_SZ)
        P.G_rot_setup(k, 1)
        t = 93
        AG = OPT.get('ag', 2)
        if P.M2:
            k('s_lshl_b32 s%d, s48, 11' % sFA)
        else:
            k('s_lshl_b32 s%d, s48, 2' % sFA)
            k('s_add_u32 s%d, s%d, s3' % (sFA, sFA))
            k('s_lshl_b32 s%d, s%d, 11' % (sFA, sFA))
        k('s_lshr_b32 s%d, s49, %d' % (t, AG))
        k('s_lshl_b32 s%d, s%d, 7' % (t, t))
        k('s_add_u32 s%d, s%d, s%d' % (sFA, sFA, t))
        k('s_and_b32 s%d, s49, %d' % (t, (1 << AG) - 1))
        k('s_lshl_b32 s%d, s%d, 2' % (t, t))
        k('s_add_u32 s%d, s%d, s%d' % (sFA, sFA, t))
        k('s_add_u32 s%d, s%d, 0x%x' % (sFA, sFA, P.FLAG_A))
        k('s_lshl_b32 s%d, s%d, 1' % (sPA, g.s_st))
        k('s_lshr_b32 s%d, s3, 1' % t)
        k('s_add_u32 s%d, s%d, s%d' % (sPA, sPA, t))
        k('s_lshl_b32 s%d, s%d, 11' % (sPA, sPA))
        k('s_add_u32 s%d, s%d, 0x%x' % (sPA, sPA, P.FLAG_A))
        k('v_lshrrev_b32 v%d, %d, v2' % (vPA, AG))
        k('v_lshlrev_b32 v%d, 7, v%d' % (vPA, vPA))
        k('v_and_b32 v%d, %d, v2' % (P.TMP, (1 << AG) - 1))
        k('v_lshl_add_u32 v%d, v%d, 2, v%d' % (vPA, P.TMP, vPA))
        k('s_lshl_b32 s%d, s%d, 12' % (sPB, g.s_dtC))
        k('s_lshl_b32 s%d, s%d, 1' % (sPC, sPB))
        k('s_add_u32 s%d, s%d, 0x%x' % (sPC, sPC, P.FLAG_C))
        k('s_add_u32 s%d, s%d, 0x%x' % (sPB, sPB, P.FLAG_B))
        k('s_lshl_b32 s%d, s%d, 5' % (sFB, g.s_st))
        k('s_add_u32 s%d, s%d, s3' % (sFB, sFB))
        k('s_lshl_b32 s%d, s%d, 2' % (sFB, sFB))
        k('s_add_u32 s%d, s%d, s%d' % (sFB, sFB, sPB))
        k('s_lshl_b32 s%d, s3, 10' % t)
        k('s_add_u32 s%d, s%d, s%d' % (sPB, sPB, t))
        k('v_bfe_u32 v%d, v1, 2, 3' % vPB)
        k('v_min_u32 v%d, 6, v%d' % (vPC, vPB))
        k('v_and_b32 v%d, 3, v1' % P.TMP)
        k('v_lshlrev_b32 v%d, 2, v%d' % (P.TMP, P.TMP))
        k('v_lshl_add_u32 v%d, v%d, 7, v%d' % (vPB, vPB, P.TMP))
        k('v_lshl_add_u32 v%d, v%d, 7, v%d' % (vPC, vPC, P.TMP))
        k('s_lshl_b32 s%d, s%d, 5' % (sFC, g.s_ft))
        k('s_add_u32 s%d, s%d, s3' % (sFC, sFC))
        k('s_lshl_b32 s%d, s%d, 2' % (sFC, sFC))
        k('s_add_u32 s%d, s%d, s%d' % (sFC, sFC, sPC))
        k('s_mul_i32 s%d, s3, 896' % t)
        k('s_add_u32 s%d, s%d, s%d' % (sPC, sPC, t))
        k('v_mov_b32 v%d, 0' % (vF + 1))
        if ZM:
            Z.setup_early(k)
            Z.stat_zero(k)

    hooksA = {
        'A_pre': lambda: P.epoch_publish(k, vE),
        'A_after_issue': setup,
        'A_k%d' % OPT.get('wk', 10): lambda: (P.epoch_load(k, vE), (P.W1_warm_light if OPT.get('wlight') else P.W1_warm)(k, 235) if OPT.get('w1w', True) else None),
        'A_e1': lambda: P.B_wo_dma(k) if OPT.get('wo_e1', False) else None,
    }
    (a2 if P.M2 else P).phaseA(k, SC, hooksA)
    P.stamp(k, 5)
    if not OPT.get('wo_e1', False):
        P.B_wo_dma(k)
    k.bg(OPT.get('wo_pre', 14))
    P.epoch_get(k, vE)
    k.wait_tag('ost')
    P.flag_store(k, vF, sFA)
    P.stamp(k, 6)
    k.bg_flush()
    P.G_rot_setup(k, 2)
    notag = k.newlabel('Lnotag')
    k('s_cmp_lt_u32 s%d, 99' % g.s_st)
    k.branch_fwd('s_cbranch_scc1', notag)
    if OPT.get('agent', True):
        P.agent(k)
    else:
        k.wait_vm(0)
    k('s_branch %s' % end)
    k.label(notag)
    P.B_xinit(k)
    if ZM:
        Z.setup_late(k, vPZ)
        k('s_lshl_b32 s%d, s%d, 3' % (sFZ, g.s_st))
        k('s_add_u32 s%d, s%d, s%d' % (sFZ, sFZ, g.s_dtD))
        k('s_lshl_b32 s%d, s%d, 5' % (sFZ, sFZ))
        k('s_add_u32 s%d, s%d, s3' % (sFZ, sFZ))
        k('s_lshl_b32 s%d, s%d, 2' % (sFZ, sFZ))
        k('s_add_u32 s%d, s%d, 0x%x' % (sFZ, sFZ, P.FLAG_Z))
        k('s_mov_b32 s%d, 0x%x' % (sPZ, P.FLAG_Z))
    if P.ST14:
        P.B_st14_setup(k)
    N1 = OPT.get('n1', 10)
    N2 = OPT.get('n2', 8)
    NP = OPT.get('np', 4)
    P.G_w_dma(k, 1, 0, NP, 8)
    k.wait_tag('wo')
    k.barrier()
    P.stamp(k, 7)
    P.G_w_dma(k, 1, NP, N1 - NP, 8 + NP, bg=True)
    P.B_wo_read(k, 0)
    k.bg_flush()
    k.wait_lg(0)
    k.barrier()
    P.stamp(k, 8)
    P.flag_poll(k, vF, vPA, sPA)
    P.stamp(k, 10)

    N3 = OPT.get('n3', 8)

    def after_of():
        for t in range(N1):
            P.G_w_read(k, 1, t, 8 + t, areg(t))
        P.G_w_dma(k, 1, N1, N2, 8, bg=True)
        P.B_xinit_finish(k)

    def before_poll():
        P.G_w_dma(k, 1, N1 + N2, N3, 0)

    if ZM:
        P.B_main(k, 0, 0, SC, {'B_after_of': after_of, 'B_tail': lambda: Z.b_tail(k, SC)})
        k.barrier()
        n3a = OPT.get('n3a', 3)
        P.G_w_dma(k, 1, N1 + N2, n3a, 0)
        for t in range(N1, N1 + N2):
            P.G_w_read(k, 1, t, 8 + t - N1, areg(t))
        k.wait_tag('hst')
        P.flag_store(k, vF, sFZ)
        P.stamp(k, 15)
        P.G_w_dma(k, 1, N1 + N2 + n3a, N3 - n3a, n3a)
        for t in range(N1 + N2, N1 + N2 + N3):
            P.G_w_read(k, 1, t, t - N1 - N2, areg(t))
    else:
        P.B_main(k, 0, 0, SC, {'B_after_of': after_of, 'B_before_poll': before_poll})
        P.stamp(k, 14)
        for t in range(N1, N1 + N2):
            P.G_w_read(k, 1, t, 8 + t - N1, areg(t))
        for t in range(N1 + N2, N1 + N2 + N3):
            P.G_w_read(k, 1, t, t - N1 - N2, areg(t))
        k.wait_tag('hst')
        P.flag_store(k, vF, sFB)
        P.stamp(k, 15)
    R1 = N1 + N2 + N3
    M1 = OPT.get('m1', 6)
    assert 6 + 32 - R1 + M1 <= 18
    P.G_w_dma(k, 1, R1, 32 - R1, 6)
    if not OPT.get('m1late'):
        P.G_w_dma(k, 2, 0, M1, 18 - M1)
    cd2.setup(k)
    if ZM:
        Z.poll4(k, vPZ, sPZ, Z.NT)
    else:
        P.flag_poll(k, vF, vPB, sPB)
    P.stamp(k, 16)
    UP = OPT.get('up', 8)
    if ZM:
        Z.stats_load(k, SC)
    for n in range(UP):
        cd2.a_load(k, n, SCL)
    for f in cd2.c_init_ops(k, 0):
        f()
    for t in range(R1, 32):
        P.G_w_read(k, 1, t, 6 + t - R1, areg(t))
    if ZM:
        Z.stats_finish(k, SC)
        for f in Z.unpack_ops(k, 0) + Z.scale_ops(k, 0) + Z.pack_ops(k, 0) + Z.unpack_ops(k, 1) + Z.scale_ops(k, 1):
            f()
        Z.nt_read(k, 2)
    if not ZM:
        k('v_mov_b32 v%d, v%d' % (vF + 1, g.vCl))
    assert M1 == 6

    def w2slot(j):
        return 12 + j if j < 6 else (j if j < 12 else w2slot(j - 12))
    at = {}
    q = []

    def add(s_, *fs):
        at.setdefault(s_, []).extend(fs)

    def spread(s0, ops, per):
        for i, f in enumerate(ops):
            add(s0 + i // per, f)
    add(OPT.get('tb', 16), k.barrier)
    S2 = OPT.get('s2', 10)
    if OPT.get('m1late'):
        for j in range(6):
            add(S2 + 6 + j, lambda j=j: P.G_w_dma(k, 2, j, 1, w2slot(j)))
    for j in range(6, 12):
        add(S2 + j - 6, lambda j=j: P.G_w_dma(k, 2, j, 1, w2slot(j)))
    spread(20, cd2.c_init_ops(k, 1), 4)
    spread(32, cd2.c_writes(k, 0), 3)
    add(34, lambda: k.wait_lg_tag('cw'), k.barrier, *cd2.c_reads(k, 0))
    EP = OPT.get('ep', 16)
    fin = cd2.c_final_ops(k, 0, SC, False)
    spread(36, fin, EP)
    e0 = 36 + (len(fin) - 1) // EP
    add(e0 + OPT.get('f0', 4), lambda: k.wait_tag('ust0'), lambda: P.flag_store(k, vF, sFC), lambda: P.stamp(k, 21))
    for j in range(12):
        add(e0 - 2 + j // 2 if j // 2 + e0 - 2 >= 32 + j else 32 + j, lambda j=j: P.G_w_read(k, 2, j, w2slot(j), areg(j)))
    WA, WB, NA = OPT.get('wa', 44), OPT.get('wb', 64), OPT.get('na', 8)
    for j in range(12, 28):
        sd = WA + (j - 12) if j < 12 + NA else WB + (j - 12 - NA)
        add(sd, lambda j=j: P.G_w_dma(k, 2, j, 1, w2slot(j)))
        add(max(sd + OPT.get('wl', 8), 32 + j), lambda j=j: P.G_w_read(k, 2, j, w2slot(j), areg(j)))
    spread(e0 + 1, cd2.d_init_ops(k, 0), 6)
    PA, CA = OPT.get('pa', 50), OPT.get('ca', 54)
    add(PA, lambda: cd2.probe(k, 248, vPC, sPC, 0))
    add(CA, lambda: cd2.probe_check(k, 248, vPC, sPC, 0))
    lim = {0: 64, CA + 1: 92}
    if ZM:
        for n in range(32):
            if n + 1 < 32:
                add(n, *Z.pack_ops(k, n + 1))
            if n + 2 < 32:
                add(n, *(Z.unpack_ops(k, n + 2) + Z.scale_ops(k, n + 2)))
            if n + 3 < 32:
                add(n, lambda n=n: Z.nt_read(k, n + 3))
        add(OPT.get('fz', 3), lambda: k.wait_tag('nst'), lambda: P.flag_store(k, vF, sFB),
            lambda: k('v_mov_b32 v%d, v%d' % (vF + 1, g.vCl)))
        PZ, CZ = OPT.get('pz', 17), OPT.get('cz', 21)
        add(PZ, lambda: cd2.probe(k, 248, vPB, sPB, 0))
        add(CZ, lambda: cd2.probe_check(k, 248, vPB, sPB, 0))
        lim = {0: 32, CZ + 1: 64, CA + 1: 92}

    TL = OPT.get('tl', 4)

    def tail(n0, writes1):
        for n in range(n0, n0 + TL):
            cd2.mfma(k, n, 1, areg)
        per = -(-len(writes1) // max(TL - 1, 1))
        for i, n in enumerate(range(n0, n0 + TL)):
            cd2.mfma(k, n, 0, areg)
            if i:
                for f in writes1[per * (i - 1): per * i]:
                    f()

    def c1_epi():
        P.stamp(k, 20)
        for f in cd2.c_writes(k, 1)[4:]:
            f()
        k.wait_lg(0)
        k.barrier()
        for f in cd2.c_reads(k, 1) + cd2.c_final_ops(k, 1, SC, True):
            f()
        k('s_add_u32 s%d, s%d, 4096' % (sFC, sFC))
        k('s_add_u32 s%d, s%d, 4096' % (sPC, sPC))
    add(64 + OPT.get('f1', 4), lambda: k.wait_tag('ust1'), lambda: P.flag_store(k, vF, sFC), lambda: P.stamp(k, 22))
    spread(70, cd2.d_init_ops(k, 1), 6)
    PB, CB = OPT.get('pb', 76), OPT.get('cb', 80)
    add(PB, lambda: cd2.probe(k, 248, vPC, sPC, 0))
    add(CB, lambda: cd2.probe_check(k, 248, vPC, sPC, 0), lambda: P.stamp(k, 24))
    lim[CB + 1] = 120
    spread(92, cd2.d_writes(k, 0), 6)
    add(99, lambda: k.wait_lg(0), k.barrier, *cd2.d_reads(k, 0))
    spread(101, cd2.d_final_ops(k, 0, False), 6)
    nxt, cur = UP, 32
    late = []
    for n in range(120):
        cur = lim.get(n, cur)
        for _ in range(OPT.get('lr', 2) if n > CB else 2):
            if nxt < cur and nxt < n + (OPT.get('lb', 10) if n > CB else OPT.get('la', 10)):
                cd2.a_load(k, nxt, SCL)
                nxt += 1
        fs = at.get(n, [])
        if 64 - TL <= n < 64 or n >= 120 - TL:
            for f in fs:
                assert n >= 120 - TL or True
                late.append(f)
            if n == 63:
                tail(64 - TL, cd2.c_writes(k, 1)[:4])
                for f in late:
                    f()
                late = []
                c1_epi()
            if n == 119:
                tail(120 - TL, cd2.d_writes(k, 1)[:16])
                for f in late:
                    f()
            continue
        cd2.mfma(k, n, 0, areg)
        cd2.mfma(k, n, 1, areg)
        for f in fs:
            f()
        if stamps == 'jit' and n % 6 == 3:
            P.stamp(k, 100 + n)
        if n in (0, 31, 64, 91):
            P.stamp(k, {0: 17, 31: 18, 64: 25, 91: 26}[n])
    P.stamp(k, 28)
    for f in cd2.d_writes(k, 1)[16:]:
        f()
    k.wait_lg(0)
    k.barrier()
    for f in cd2.d_reads(k, 1) + cd2.d_final_ops(k, 1, True):
        f()
    P.stamp(k, 29)
    if stamps:
        k.wait_vm(0)
        P.stamp(k, 30)
    k.label(end)
    k('s_endpgm')
    return (NAME + '_kernel', k, 256, P.LDS_END)


if __name__ == '__main__':
    which = sys.argv[1] if len(sys.argv) > 1 else 'p'
    outp = sys.argv[2] if len(sys.argv) > 2 else os.path.join(os.path.dirname(os.path.abspath(__file__)), '..', NAME + '.s')
    for o in sys.argv[3:]:
        kk, vv = o.split('=')
        OPT[kk] = eval(vv)
    P.OUT_SC = OPT.get('osc', ''); P.ROT = OPT.get('rot', True); P.POLL_DEPTH = OPT.get('pd', 3); P.POLL_GAP = OPT.get('pg', 3); P.POLL_SLEEP = OPT.get('ps', 0); P.ST_SLEEP = OPT.get('sts', 0); P.AGENT_DEPTH = OPT.get('ad', 2); P.START_ORDER = OPT.get('so', '0w|1'); P.WO_LATE = OPT.get('wol', True)
    P.STAMP_SET = OPT.get('ss', (0, 6, 16, 18, 20, 21, 22, 25, 24, 26, 28, 30))
    P.DBL = OPT.get('dbl', 0)
    cd2.SLEEP = OPT.get('sl', 0)
    P.WARM0 = OPT.get('w0', True)
    P.M2 = OPT.get('m2', False)
    P.WROW = OPT.get('wrow', 64)
    P.ST14 = OPT.get('st14', False)
    cd2.OSC = OPT.get('osc2', ['', ''])
    P.AGENT_HH = {0: (), 1: tuple(range(1, 14, 2)), 2: tuple(range(0, 14, 2)) + tuple(range(1, 14, 2)), 3: tuple(range(0, 14, 2))}[OPT.get('ahh', 0)]
    P.POLL_SC = OPT.get('psc', 'sc1'); P.ST_SC = OPT.get('ssc', 'sc1')
    P.W1_LG = OPT.get('lg', 4)
    if which == 'p':
        ks = [persist()]
    elif which == 'p_jit':
        P.JIT_SEED = OPT.get('seed', 0)
        ks = [persist('jit')]
    elif which == 'p_dbg':
        ks = [persist('dbg')]
    elif which == 'p_st':
        P.ARG['ws'] = (P.SRD_WS, 80, 0x1000000)
        ks = [persist(True)]
    txt = wrap(ks)
    if OPT.get('align', True):
        import align
        align.NOPS = OPT.get('nops', 0)
        txt, info = align.run(txt)
        sys.stderr.write('align: misaligned 8B instrs %d -> %d (%d promoted)\n' % info)
    open(outp, 'w').write(txt)
```

```python
import struct
from dsl import Kernel, vr, ar, sr, classify

S, D, H, DH, F = 2048, 448, 16, 28, 1792

OF_OFF = 0x000000
HH_OFF = 0x200000
U_OFF = 0x3C0000
STAT_OFF = 0x548000
FLAG_OFF = 0x5C8000
WS_SIZE = 0x610000
OOB = 0x40000000

SRD_X, SRD_WQKV, SRD_WO, SRD_W1, SRD_W2, SRD_B1, SRD_B2, SRD_OUT, SRD_WS, SRD_DBG = 8, 12, 16, 20, 24, 28, 32, 36, 40, 44
SRD_A = 96
S_WG, S_WAVE = 2, 3
S_EPOCH = 4
S_SPIN = 6
S_ONES = 5
S_T = 86
V_LANE, V_T16, V_G, V_L16 = 1, 2, 3, 4


def f32(x):
    return '0x%08x' % struct.unpack('<I', struct.pack('<f', x))[0]


def srd(base):
    return sr(base, 4)


def prologue(k, nwg, end_label, need):
    k('s_cmp_ge_u32 s2, %d' % nwg)
    k('s_cbranch_scc1 %s' % end_label)
    if getattr(k, 'xcctest', False):
        k('s_getreg_b32 s3, hwreg(HW_REG_XCC_ID)')
        k('s_and_b32 s3, s3, 15')
        k('s_and_b32 s4, s2, 7')
        k('s_cmp_eq_u32 s3, s4')
        k('s_cbranch_scc1 Lxcc_ok')
        for _ in range(8):
            k('s_sleep 127')
        k.raw('Lxcc_ok:')
    if getattr(k, 'scramble', False):
        k('s_and_b32 s3, s2, 7')
        k('s_lshl_b32 s3, s3, 5')
        k('s_lshr_b32 s2, s2, 3')
        k('s_or_b32 s2, s2, s3')
    for base, off, size in need:
        k('s_load_dwordx2 %s, s[0:1], %d' % (sr(base, 2), off))
    k('v_lshrrev_b32 v1, 6, v0')
    k('v_readfirstlane_b32 s3, v1')
    k('v_and_b32 v1, 63, v0')
    k('v_and_b32 v2, 15, v0')
    k('v_lshrrev_b32 v3, 4, v1')
    k('v_lshlrev_b32 v4, 4, v1')
    for base, off, size in need:
        k('s_mov_b32 s%d, 0x%x' % (base + 2, size))
        k('s_mov_b32 s%d, 0x00020000' % (base + 3))
    k('s_mov_b32 s%d, 0x3f803f80' % S_ONES)
    k('s_mov_b32 s%d, 0x200000' % S_SPIN)
    k.end_label = end_label


ARG = dict(x=(SRD_X, 0, S * D * 2), wqkv=(SRD_WQKV, 8, D * 3 * D * 2), wo=(SRD_WO, 16, D * D * 2),
           w1=(SRD_W1, 32, S * F * 2), b1=(SRD_B1, 40, F * 2), w2=(SRD_W2, 48, F * S * 2), b2=(SRD_B2, 56, S * 2),
           out=(SRD_OUT, 64, S * D * 2), dbg=(SRD_DBG, 72, 256), ws=(SRD_WS, 80, WS_SIZE))


def xgroup_reduce(k, regs, tmp, op='v_add_f32'):
    for swap in ('v_permlane32_swap_b32', 'v_permlane16_swap_b32'):
        for r, t in zip(regs, tmp):
            k('v_mov_b32 v%d, v%d' % (t, r))
        for r, t in zip(regs, tmp):
            k('%s v%d, v%d' % (swap, r, t))
        for r, t in zip(regs, tmp):
            k('%s v%d, v%d, v%d' % (op, r, r, t))


A_LDS_CS = 0
A_LDS_ST = 512
A_LDS_KV = 2048
A_LDS_W = 12288
A_LDS_X = 61440
A_XSLOT = [2, 1, 0, 3]
A_LDS_END = A_LDS_X + 4 * 18432
LDS_STG = 12288
STG_SZ = 36864
NSLOT = 18
LDS_END = 163840
LDS_WO = 106496
TMP = 219


def xslot(grp):
    return A_XSLOT.index(grp % 4) * 18432


def phaseA(k, sc1='', hooks=None):
    hooks = hooks or {}
    XR = 16
    ACC = 136
    WF = 88
    ONES = 40
    SQ, SM = 48, 60
    vXl, vXu, vXh, vW, vA0, vA1, vH1, vH2 = 120, 121, 122, 123, 124, 125, 126, 127
    vRe, vRo, vHe, vHo = 128, 129, 130, 131
    vT = 237
    BP, BC, BPA = 240, 244, 248
    s_rb, s_head, s_t0, s_m0w, s_m0x, s_tmp = 48, 49, 50, 51, 52, 53
    s_hm = 54
    s_m0h = 7
    s_hv = S_HV
    s_o0, s_o1 = 62, 63

    def hook(name):
        if name in hooks:
            hooks[name]()

    def xreg(j, blk):
        return XR + (j % 2) * 12 + blk * 4

    def acc(blk, nbi):
        return ACC + blk * 24 + nbi * 4
    H1, H2 = ACC + 48, ACC + 52

    k.c('---- phase A setup')
    k('s_bfe_u32 s%d, s2, 0x20001' % s_rb)
    k('s_lshl_b32 s%d, s%d, 2' % (s_rb, s_rb))
    k('s_lshr_b32 s%d, s2, 6' % s_tmp)
    k('s_add_u32 s%d, s%d, s%d' % (s_rb, s_rb, s_tmp))
    k('s_bfe_u32 s%d, s2, 0x30003' % s_head)
    k('s_and_b32 s%d, s2, 1' % s_tmp)
    k('s_lshl_b32 s%d, s%d, 3' % (s_tmp, s_tmp))
    k('s_add_u32 s%d, s%d, s%d' % (s_head, s_head, s_tmp))
    k('v_lshrrev_b32 v%d, 2, v1' % vT)
    k('v_mul_u32_u24 v%d, 2688, v%d' % (vW, vT))
    k('v_lshrrev_b32 v%d, 5, v1' % vT)
    k('v_lshlrev_b32 v%d, 1, v%d' % (vT, vT))
    k('v_and_b32 v%d, 3, v1' % (vT + 1))
    k('v_xor_b32 v%d, v%d, v%d' % (vT, vT, vT + 1))
    k('v_lshl_add_u32 v%d, v%d, 4, v%d' % (vW, vT, vW))
    k('s_mul_i32 s%d, s%d, 56' % (s_tmp, s_head))
    k('s_min_u32 s%d, s%d, 832' % (s_tmp, s_tmp))
    k('s_mul_i32 s%d, s3, %d' % (s_m0w, 16 * 2688))
    k('s_add_u32 s%d, s%d, s%d' % (s_tmp, s_tmp, s_m0w))
    k('v_add_u32 v%d, s%d, v%d' % (vW, s_tmp, vW))
    k('s_lshr_b32 s%d, s3, 1' % s_tmp)
    k('s_mul_i32 s%d, s%d, 6144' % (s_m0w, s_tmp))
    k('s_and_b32 s%d, s3, 1' % s_tmp)
    k('s_lshl_b32 s%d, s%d, 10' % (s_tmp, s_tmp))
    k('s_add_u32 s%d, s%d, s%d' % (s_m0w, s_m0w, s_tmp))
    k('v_lshrrev_b32 v%d, 3, v1' % vT)
    k('v_mul_u32_u24 v%d, 896, v%d' % (vXh, vT))
    k('v_and_b32 v%d, 7, v1' % vT)
    k('v_xor_b32 v%d, v%d, v3' % (vT, vT))
    k('v_lshl_add_u32 v%d, v%d, 4, v%d' % (vXl, vT, vXh))
    k('s_lshl_b32 s%d, s%d, 7' % (s_t0, s_rb))
    k('s_lshl_b32 s%d, s3, 5' % s_tmp)
    k('s_add_u32 s%d, s%d, s%d' % (s_tmp, s_tmp, s_t0))
    k('s_mul_i32 s%d, s%d, 896' % (s_tmp, s_tmp))
    k('v_xor_b32 v%d, 64, v%d' % (vXu, vXl))
    k('v_add_u32 v%d, s%d, v%d' % (vXl, s_tmp, vXl))
    k('s_add_u32 s%d, s%d, %d' % (s_tmp, s_tmp, 8 * 896))
    k('v_add_u32 v%d, s%d, v%d' % (vXu, s_tmp, vXu))
    k('s_lshl_b32 s%d, s3, 1' % s_tmp)
    k('v_xor_b32 v%d, s%d, v%d' % (vT, s_tmp, vT))
    k('v_lshl_add_u32 v%d, v%d, 4, v%d' % (vXh, vT, vXh))
    k('s_lshl_b32 s%d, s3, 2' % s_tmp)
    k('s_add_u32 s%d, s%d, s%d' % (s_tmp, s_tmp, s_t0))
    k('s_sub_u32 s%d, s%d, 16' % (s_tmp, s_tmp))
    k('s_mul_i32 s%d, s%d, 896' % (s_tmp, s_tmp))
    k('s_cmp_eq_u32 s%d, 0' % s_rb)
    k('s_cselect_b32 s%d, 0x%x, s%d' % (s_tmp, OOB, s_tmp))
    k('v_add_u32 v%d, s%d, v%d' % (vXh, s_tmp, vXh))
    k('s_lshl_b32 s%d, s3, 12' % s_m0x)
    k('s_add_u32 s%d, s%d, %d' % (s_m0x, s_m0x, A_LDS_X + 2048))
    k('s_lshl_b32 s%d, s3, 9' % s_m0h)
    k('s_cmp_eq_u32 s3, 0')
    k('s_cselect_b32 s%d, 0xffffff00, -1' % s_hm)
    k('s_mov_b32 s%d, 0' % (s_hm + 1))

    def dma_group(grp, bg=False):
        tag = 'G%d' % grp
        sd = B.s_dma

        def w_(p):
            k('s_add_u32 m0, s%d, %d' % (s_m0w, A_LDS_W + (grp % 4) * 12288 + p * 2048))
            k('s_mov_b32 s%d, %d' % (sd, grp * 64 * 2688 + p * 896))
            k('buffer_load_dwordx4 v%d, %s, s%d offen lds' % (vW, srd(SRD_WQKV), sd), tag=tag)

        def x_(i):
            k('s_add_u32 m0, s%d, %d' % (s_m0x, xslot(grp) + i * 1024))
            k('s_mov_b32 s%d, %d' % (sd, grp * 128 + (i >> 1) * 16 * 896))
            k('buffer_load_dwordx4 v%d, %s, s%d offen lds' % (vXu if i & 1 else vXl, srd(SRD_X), sd), tag=tag)

        def h_():
            k('s_add_u32 m0, s%d, %d' % (s_m0h, A_LDS_X + xslot(grp)))
            k('s_mov_b32 s%d, %d' % (sd, grp * 128))
            k('s_mov_b64 exec, %s' % sr(s_hm, 2))
            k('buffer_load_dwordx4 v%d, %s, s%d offen lds' % (vXh, srd(SRD_X), sd), tag=tag)
            k('s_mov_b64 exec, -1')
        fs = [lambda p=p: w_(p) for p in range(3)] + [lambda i=i: x_(i) for i in range(4)] + [h_]
        for f in fs:
            if bg:
                k.bg_push(f)
            else:
                f()

    def warm():
        k('s_bfe_u32 s%d, s2, 0x30003' % s_tmp)
        k('s_add_u32 s%d, s%d, 1' % (S_T, s_tmp))
        k('s_lshr_b32 s%d, s%d, 1' % (S_T, S_T))
        k('s_lshr_b32 s%d, s2, 6' % (S_T + 1))
        k('s_mul_i32 s%d, s%d, 5' % (S_T + 1, S_T + 1))
        k('s_add_u32 s%d, s%d, s%d' % (S_T, S_T, S_T + 1))
        k('s_lshl_b32 s%d, s%d, 2' % (S_T, S_T))
        k('s_add_u32 s%d, s%d, s3' % (s_tmp, S_T))
        k('s_mov_b32 s%d, s%d' % (S_WR, s_tmp))
        k('s_mov_b32 s%d, 0x2a54' % S_T)
        k('s_bitcmp1_b32 s%d, s%d' % (S_T, s_head))
        k('s_cselect_b32 s%d, 0x%x, %s' % (s_hv, OOB, '0' if WARM0 else '0x%x' % OOB))
        NL = -(-(448 - WROW) * 12 // 80)
        k('s_mul_i32 s%d, s%d, %d' % (S_T, s_tmp, NL))
        for rep in range(2 if NL > 64 else 1):
            k('v_add_u32 v%d, s%d, v1' % (vT, S_T))
            if rep:
                k('v_add_u32 v%d, 64, v%d' % (vT, vT))
            k('v_mul_u32_u24 v%d, 43691, v%d' % (vT + 1, vT))
            k('v_lshrrev_b32 v%d, 19, v%d' % (vT + 1, vT + 1))
            k('v_mul_u32_u24 v%d, 12, v%d' % (vT + 2, vT + 1))
            k('v_sub_u32 v%d, v%d, v%d' % (vT + 2, vT, vT + 2))
            k('v_lshrrev_b32 v%d, 2, v%d' % (vT + 2, vT + 2))
            k('v_mul_u32_u24 v%d, 896, v%d' % (vT + 2, vT + 2))
            k('v_mul_u32_u24 v%d, 2688, v%d' % (vT + 1, vT + 1))
            k('v_and_b32 v%d, 3, v%d' % (vT, vT))
            k('v_lshlrev_b32 v%d, 7, v%d' % (vT, vT))
            k('v_add3_u32 v%d, v%d, v%d, v%d' % (vT, vT, vT + 1, vT + 2))
            k('v_add_u32 v%d, s%d, v%d' % (vT, s_hv, vT))
            k('s_and_b32 s%d, s2, 1' % (S_T + 1))
            k('s_mul_i32 s%d, s%d, 384' % (S_T + 1, S_T + 1))
            k('s_add_u32 s%d, s%d, %d' % (S_T + 1, S_T + 1, WROW * 2688))
            nl = min(NL - 64 * rep, 64)
            m = (1 << nl) - 1
            k('s_mov_b32 exec_lo, 0x%x' % (m & 0xffffffff))
            k('s_mov_b32 exec_hi, 0x%x' % (m >> 32))
            k('buffer_load_dword v%d, v%d, %s, s%d offen' % (232 - rep, vT, srd(SRD_WQKV), S_T + 1))
            k('s_mov_b64 exec, -1')
        k('v_lshlrev_b32 v%d, 7, v1' % vT)
        k('v_add_u32 v%d, s%d, v%d' % (vT + 1, s_hv, vT))
        k('s_mul_i32 s%d, s%d, %d' % (S_T, s_tmp, 47 * 128))
        k('s_bfe_u32 s%d, s2, 0x20001' % (S_T + 1))
        k('s_mul_i32 s%d, s%d, %d' % (S_T + 1, S_T + 1, 512 * 896))
        k('s_add_u32 s%d, s%d, s%d' % (S_T, S_T, S_T + 1))
        k('s_max_u32 s%d, s%d, %d' % (S_T, S_T, 16 * 896))
        k('s_sub_u32 s%d, s%d, %d' % (S_T, S_T, 16 * 896))
        k('s_mov_b32 exec_hi, 0x7fff')
        k('buffer_load_dword v233, v%d, %s, s%d offen' % (vT + 1, srd(SRD_X), S_T))
        k('s_getpc_b64 %s' % sr(S_T, 2))
        k.raw('Lpc_%s:' % k.name)
        k('s_mul_i32 s%d, s%d, 384' % (s_tmp, s_tmp))
        k('v_add_u32 v%d, s%d, v%d' % (vT, s_tmp, vT))
        k('v_min_u32 v%d, %s-Lpc_%s, v%d' % (vT, k.end_label, k.name, vT))
        k('s_mov_b64 exec, 7')
        k('global_load_dword v236, v%d, %s' % (vT, sr(S_T, 2)))
        k('s_mov_b64 exec, -1')

    hook('A_pre')
    pre, post = START_ORDER.split('|')
    for ch in pre:
        warm() if ch == 'w' else dma_group(int(ch))
    k('v_mul_u32_u24 v%d, 18432, v3' % vT)
    k('v_lshl_add_u32 v%d, v2, 3, v%d' % (vT, vT))
    k('v_mov_b32 v%d, s%d' % (vT + 1, S_ONES))
    k('v_add_u32 v%d, %d, v%d' % (vT, A_LDS_X, vT))
    k('ds_write2_b32 v%d, v%d, v%d offset0:0 offset1:1' % (vT, vT + 1, vT + 1))
    hook('A_after_issue')

    k('v_lshlrev_b32 v%d, 9, v3' % vA0)
    k('v_bfe_u32 v%d, v1, 2, 2' % vT)
    k('v_lshl_add_u32 v%d, v%d, 6, v%d' % (vA0, vT, vA0))
    k('v_and_b32 v%d, 3, v1' % vT)
    k('v_lshl_add_u32 v%d, v%d, 3, v%d' % (vA0, vT, vA0))
    k('v_and_b32 v%d, 1, v3' % vT)
    k('v_lshlrev_b32 v%d, 5, v%d' % (vT, vT))
    k('v_add_u32 v%d, v%d, v%d' % (vA0, vA0, vT))
    k('v_add_u32 v%d, %d, v%d' % (vA0, A_LDS_W, vA0))
    k('v_xor_b32 v%d, 32, v%d' % (vA1, vA0))
    k('s_and_b32 s%d, s3, 1' % s_tmp)
    k('s_lshl_b32 s%d, s%d, 5' % (s_tmp, s_tmp))
    k('v_xor_b32 v%d, s%d, v%d' % (vH2, s_tmp, vA0))
    k('s_lshr_b32 s%d, s3, 1' % s_tmp)
    k('s_lshl_b32 s%d, s%d, 11' % (s_tmp, s_tmp))
    k('s_add_u32 s%d, s%d, 2048' % (s_tmp, s_tmp))
    k('v_add_u32 v%d, s%d, v%d' % (vH1, s_tmp, vH2))
    k('v_lshrrev_b32 v%d, 1, v2' % vT)
    k('v_xor_b32 v%d, v%d, v3' % (vT, vT))
    k('v_lshlrev_b32 v%d, 4, v%d' % (vT, vT))
    k('v_lshl_add_u32 v%d, v2, 7, v%d' % (vT, vT))
    k('v_add_u32 v%d, %d, v%d' % (vHe, A_LDS_X, vT))
    k('v_xor_b32 v%d, 64, v%d' % (vHo, vHe))
    k('v_add_u32 v%d, s%d, v%d' % (vRe, s_m0x, vT))
    k('v_xor_b32 v%d, 64, v%d' % (vRo, vRe))
    k('v_lshlrev_b32 v%d, 2, v3' % vT)
    k('v_sub_u32 v%d, v2, v%d' % (vT, vT))
    k('v_mov_b32 v%d, %s' % (vT + 2, f32(-1e30)))
    for which, base in ((16, BP), (0, BC)):
        for r in range(4):
            k('v_add_u32 v%d, %d, v%d' % (vT + 1, which - r, vT))
            k('v_and_b32 v%d, 0xfffffff1, v%d' % (vT + 1, vT + 1))
            k('v_cmp_eq_u32 vcc, 0, v%d' % (vT + 1))
            k('v_cndmask_b32 v%d, v%d, 0, vcc' % (base + r, vT + 2))
    k('s_or_b32 s%d, s%d, s3' % (s_tmp, s_rb))
    k('s_cmp_eq_u32 s%d, 0' % s_tmp)
    k('s_cselect_b64 vcc, -1, 0')
    for r in range(4):
        k('v_cndmask_b32 v%d, v%d, v%d, vcc' % (BPA + r, BP + r, vT + 2))
    for i in range(4):
        k('v_mov_b32 v%d, s%d' % (ONES + i, S_ONES))

    s_m = 88
    for i, mk in enumerate((0x22222222, 0x44444444, 0x88888888)):
        k('s_mov_b32 s%d, 0x%x' % (s_m + 2 * i, mk))
        k('s_mov_b32 s%d, 0x%x' % (s_m + 2 * i + 1, mk))
    vAd = 72
    k('v_lshlrev_b32 v%d, 4, v3' % vAd)
    k('s_lshl_b32 s%d, s3, 6' % s_tmp)
    k('v_add_u32 v%d, s%d, v%d' % (vAd + 1, s_tmp, vAd))
    k('s_and_b32 s%d, s%d, 64' % (s_tmp, s_tmp))
    k('v_add_u32 v%d, s%d, v%d' % (vAd + 2, s_tmp, vAd))
    k('s_mul_i32 s%d, s3, 384' % s_tmp)
    k('v_lshl_add_u32 v%d, v2, 2, s%d' % (vAd + 3, s_tmp))
    k('v_add_u32 v%d, s%d, v%d' % (vAd + 4, s_tmp, vAd))
    vK, vV = 80, 81
    k('s_and_b32 s%d, s3, 1' % s_tmp)
    k('s_lshl_b32 s%d, s%d, 3' % (s_tmp, s_tmp))
    k('v_add_u32 v%d, s%d, v4' % (vK, s_tmp))
    k('v_lshrrev_b32 v%d, 2, v2' % vV)
    k('v_lshlrev_b32 v%d, 8, v%d' % (vV, vV))
    k('v_lshl_add_u32 v%d, v3, 6, v%d' % (vV, vV))
    k('v_and_b32 v%d, 3, v2' % (vV + 1))
    k('v_lshl_add_u32 v%d, v%d, 1, v%d' % (vV, vV + 1, vV))
    k('v_add_u32 v%d, s%d, v%d' % (vV, s_tmp, vV))
    k('v_add_u32 v%d, 1024, v%d' % (vV, vV))
    k('s_cmp_lt_u32 s3, 2')
    k('s_cselect_b64 vcc, -1, 0')
    k('s_cselect_b32 s%d, 2, 16' % s_tmp)
    k('v_cndmask_b32 v%d, v%d, v%d, vcc' % (vK, vV, vK))
    k('v_add_u32 v%d, s%d, v%d' % (vK + 1, s_tmp, vK))
    k('v_add_u32 v%d, s%d, v%d' % (vK + 2, s_tmp, vK + 1))
    k('v_add_u32 v%d, s%d, v%d' % (vK + 3, s_tmp, vK + 2))
    k('v_lshlrev_b32 v%d, 2, v2' % (vAd + 5))
    k('s_lshl_b32 s%d, s3, 11' % s_tmp)
    k('v_add_u32 v%d, s%d, v4' % (vAd + 6, s_tmp))

    k('s_lshl_b32 s%d, s%d, 3' % (s_o0, s_rb))
    k('s_lshl_b32 s%d, s3, 1' % s_o1)
    k('s_add_u32 s%d, s%d, s%d' % (s_o0, s_o0, s_o1))
    k('s_lshl_b32 s%d, s%d, 4' % (s_o0, s_o0))
    k('s_add_u32 s%d, s%d, s%d' % (s_o0, s_o0, s_head))
    k('s_lshl_b32 s%d, s%d, 10' % (s_o0, s_o0))
    if OF_OFF:
        k('s_add_u32 s%d, s%d, 0x%x' % (s_o0, s_o0, OF_OFF))
    k('s_add_u32 s%d, s%d, 16384' % (s_o1, s_o0))

    frag_addr = [(vA0, 0), (vA1, 0), (vA0, 2048), (vA1, 2048), (vA0, 4096), (vA1, 4096), (vH1, 0), (vH2, 0)]

    def read_frag(f, j, h=None):
        va, off = frag_addr[f]
        o = (j % 8) * 6144 + off
        for hh in ((0, 1) if h is None else (h,)):
            k('ds_read_b64_tr_b16 %s, v%d offset:%d' % (vr(WF + 4 * f + 2 * hh, 2), va, o + 256 * hh))

    def read_x(j, blk=None):
        o = xslot(j // 2)
        for b_ in (range(3) if blk is None else (blk,)):
            if b_ < 2:
                k('ds_read_b128 %s, v%d offset:%d' % (vr(xreg(j, b_), 4), vRo if j & 1 else vRe, o + 2048 * b_))
            else:
                k('ds_read_b128 %s, v%d offset:%d' % (vr(xreg(j, 2), 4), vHo if j & 1 else vHe, o))

    for ch in post:
        warm() if ch == 'w' else dma_group(int(ch))
    T = XR
    RR = 132
    RH = 84
    HC = 224
    pre_ops = []

    def rr(blk):
        return RR + 2 * blk if blk < 2 else RH

    def cs_write():
        k('s_mov_b32 exec_lo, 0x00010001')
        k('s_mov_b32 exec_hi, 0x00010001')
        k('ds_write_b128 v%d, %s offset:%d' % (vAd + 1, vr(H1, 4), A_LDS_CS + 128))
        k('ds_write_b128 v%d, %s offset:%d' % (vAd + 2, vr(H2, 4), A_LDS_CS))
        k('s_mov_b64 exec, -1')

    def st_write():
        k('s_mov_b32 exec_lo, 0x00f0000f')
        k('s_mov_b32 exec_hi, 0xf0000f00')
        for blk in range(3):
            k('ds_write2_b32 v%d, v%d, v%d offset0:%d offset1:%d' % (vAd + 3, rr(blk), rr(blk) + 1,
                                                                   A_LDS_ST // 4 + 32 * blk, A_LDS_ST // 4 + 32 * blk + 16))
        k('s_mov_b64 exec, -1')

    def op(txt):
        pre_ops.append(lambda: k(txt))
    for i in range(3):
        for blk in range(3):
            op('v_cndmask_b32 v%d, v%d, v%d, %s' % (SQ + 4 * blk, SQ + 4 * blk, SQ + 4 * blk + 1 + i, sr(s_m + 2 * i, 2)))
    for blk in range(3):
        op('v_mul_f32 v%d, %s, v%d' % (rr(blk) + 1, f32(1.0 / D), SM + 4 * blk))
    for blk in range(3):
        op('v_mul_f32 v%d, v%d, v%d' % (rr(blk), rr(blk) + 1, rr(blk) + 1))
    for blk in range(3):
        op('v_mul_f32 v%d, %s, v%d' % (SQ + 4 * blk, f32(1.0 / D), SQ + 4 * blk))
    pre_ops.append(cs_write)
    for blk in range(3):
        op('v_sub_f32 v%d, v%d, v%d' % (rr(blk), SQ + 4 * blk, rr(blk)))
    for blk in range(3):
        op('v_max_f32 v%d, 0, v%d' % (rr(blk), rr(blk)))
    for blk in range(3):
        op('v_add_f32 v%d, %s, v%d' % (rr(blk), f32(1e-5), rr(blk)))
    for blk in range(3):
        op('v_rsq_f32 v%d, v%d' % (rr(blk), rr(blk)))
    pre_ops.append(st_write)
    for r in range(4):
        op('v_mov_b32_dpp v%d, v%d row_newbcast:0 row_mask:0xf bank_mask:0xf' % (HC + r, H1 + r))
    for r in range(4):
        op('v_fma_f32 v%d, -v%d, v%d, v%d' % (HC + r, HC + r, RH + 1, H1 + r))

    def keep_masks():
        k('s_cmp_eq_u32 s%d, 15' % s_head)
        k('s_cselect_b32 s%d, 0xffff0000, -1' % s_m)
        k('s_mov_b32 s%d, -1' % (s_m + 1))
        k('s_mov_b32 s%d, -1' % (s_m + 2))
        k('s_cselect_b32 s%d, -1, 0xffff' % (s_m + 3))
    pre_ops.append(keep_masks)

    stamp(k, 1)
    k.wait_tag('G0')
    k.wait_lg(0)
    k.barrier()
    stamp(k, 2)
    read_x(0)
    for f in range(8):
        read_frag(f, 0)
    dma_group(2, bg=True)
    k.lg_slack = 6
    for j in range(14):
        k.c('kstep %d' % j)
        if j + 1 < 14 and (j + 1) % 2 == 0:
            k.bg_flush()
            k.wait_tag('G%d' % ((j + 1) // 2))
            k.barrier()
            if (j + 5) // 2 < 7:
                dma_group((j + 5) // 2, bg=True)
            hook('A_b%d' % j)
        mf = []
        for f in range(8):
            w = vr(WF + 4 * f, 4)
            if f < 6:
                for blk in range(2):
                    a = vr(acc(blk, f), 4)
                    x = vr(xreg(j, blk), 4)
                    c = '0' if j == 0 else a
                    if f < 4:
                        mf.append(('v_mfma_f32_16x16x32_bf16 %s, %s, %s, %s' % (a, w, x, c), f if blk else -1))
                    else:
                        mf.append(('v_mfma_f32_16x16x32_bf16 %s, %s, %s, %s' % (a, x, w, c), f if blk else -1))
            else:
                a = vr(H1 if f == 6 else H2, 4)
                c = '0' if j == 0 else a
                mf.append(('v_mfma_f32_16x16x32_bf16 %s, %s, %s, %s' % (a, w, vr(xreg(j, 2), 4), c), f))
        for f in range(EXP_NSTAT):
            x = vr(xreg(j, f % 3), 4)
            a = vr((SQ if f < 3 else SM) + 4 * (f % 3), 4)
            mf.append(('v_mfma_f32_16x16x32_bf16 %s, %s, %s, %s' % (a, x if f < 3 else vr(ONES, 4), x, '0' if j == 0 else a), -1))
        fill = []
        if j + 1 < 14:
            fill += [lambda i=i: read_x(j + 1, i) for i in range(3)]
        if j == 13:
            mf = mf[14:] + mf[12:14] + mf[4:12] + mf[0:4]
        for i, (txt, done) in enumerate(mf):
            k(txt)
            if j == 13 and i >= 8:
                for f_ in pre_ops[:3]:
                    f_()
                del pre_ops[:3]
            if done >= 0 and j + 1 < 14 and done < EXP_NFRAG:
                fill += [lambda f=done, h=h: read_frag(f, j + 1, h) for h in range(2)]
            if fill:
                fill.pop(0)()
            if i % 5 == 4:
                k.bg()
        for f_ in fill:
            f_()
        if j == 6:
            stamp(k, 3)

        hook('A_k%d' % j)

    k.lg_slack = 0
    k.c('---- phase A epilogue')
    stamp(k, 4)
    for f_ in pre_ops:
        f_()
    k.wait_lg(0)
    k.barrier()
    stamp(k, 40)
    hook('A_e1')
    CS = T + 32
    CSV = T + 48
    L2 = T + 16
    for blk in (1, 2, 0):
        k('ds_read_b32 v%d, v%d offset:%d' % (rr(blk), vAd + 3, A_LDS_ST + 128 * blk))
    for s_ in (2, 3):
        k('ds_read_b128 %s, v%d offset:%d' % (vr(CS + 4 * s_, 4), vAd, A_LDS_CS + 64 * s_))
    k('ds_read_b32 v%d, v%d offset:%d' % (CSV, vAd + 5, A_LDS_CS + 256))
    k('ds_read_b32 v%d, v%d offset:%d' % (CSV + 1, vAd + 5, A_LDS_CS + 320))
    for blk in (1, 0):
        k('ds_read_b128 %s, v%d offset:%d' % (vr(L2 + 8 * blk + 4, 4), vAd + 4, A_LDS_ST + blk * 128 + 64))
        k('ds_read_b128 %s, v%d offset:%d' % (vr(L2 + 8 * blk, 4), vAd + 4, A_LDS_ST + blk * 128))
    for s_ in (0, 1):
        k('ds_read_b128 %s, v%d offset:%d' % (vr(CS + 4 * s_, 4), vAd, A_LDS_CS + 64 * s_))
    RQ = T + 52
    qs = (DH ** -0.5) * 1.4426950408889634
    QT = T + 72
    KT = T + 80
    VV = T + 92

    def fix_qk(blk, nbi, scale_reg, dst):
        a = acc(blk, nbi)
        hi = scale_reg & 1
        for r in (0, 2):
            k('v_pk_fma_f32 %s, %s, %s, %s op_sel:[0,1,0] op_sel_hi:[1,1,1] neg_lo:[0,1,0] neg_hi:[0,1,0]' % (
                vr(a + r, 2), vr(CS + 4 * nbi + r, 2), vr(RR + 2 * blk, 2), vr(a + r, 2)))
        for r in (0, 2):
            k('v_pk_mul_f32 %s, %s, %s op_sel:[0,%d] op_sel_hi:[1,%d]' % (vr(a + r, 2), vr(a + r, 2), vr(scale_reg - hi, 2), hi, hi))
        k('v_cvt_pk_bf16_f32 v%d, v%d, v%d' % (dst, a, a + 1))
        k('v_cvt_pk_bf16_f32 v%d, v%d, v%d' % (dst + 1, a + 2, a + 3))
        k.bg()

    def fix_v(blk, nb):
        a = acc(blk, 4 + nb)
        for r in (0, 2):
            k('v_pk_fma_f32 %s, %s, %s, %s op_sel:[0,%d,0] op_sel_hi:[1,%d,1] neg_lo:[0,1,0] neg_hi:[0,1,0]' % (
                vr(a + r, 2), vr(L2 + 8 * blk + 4 + r, 2), vr(CSV, 2), vr(a + r, 2), nb, nb))
        for r in (0, 2):
            k('v_pk_mul_f32 %s, %s, %s' % (vr(a + r, 2), vr(a + r, 2), vr(L2 + 8 * blk + r, 2)))
        dst = VV + 6 * nb + 2 + 2 * blk
        k('v_cvt_pk_bf16_f32 v%d, v%d, v%d' % (dst, a, a + 1))
        k('v_cvt_pk_bf16_f32 v%d, v%d, v%d' % (dst + 1, a + 2, a + 3))
        k.bg()

    fix_qk(1, 2, RR + 2, KT + 8)
    fix_qk(1, 3, RR + 2, KT + 10)
    k('ds_write_b128 v%d, %s offset:%d' % (vAd + 6, vr(KT + 8, 4), A_LDS_KV + 2048))
    for r in (0, 2):
        k('v_pk_mul_f32 %s, %s, %s op_sel_hi:[1,0]' % (vr(HC + r, 2), vr(HC + r, 2), vr(RH, 2)))
    k('v_cvt_pk_bf16_f32 v%d, v%d, v%d' % (HC, HC, HC + 1))
    k('v_cvt_pk_bf16_f32 v%d, v%d, v%d' % (HC + 2, HC + 2, HC + 3))
    k('ds_write_b16 v%d, v%d offset:%d' % (vK, HC, A_LDS_KV))
    k('ds_write_b16_d16_hi v%d, v%d offset:%d' % (vK + 1, HC, A_LDS_KV))
    k('ds_write_b16 v%d, v%d offset:%d' % (vK + 2, HC + 2, A_LDS_KV))
    k('ds_write_b16_d16_hi v%d, v%d offset:%d' % (vK + 3, HC + 2, A_LDS_KV))
    fix_v(1, 0)
    fix_v(1, 1)
    k('ds_write_b64 v%d, %s offset:%d' % (vAd + 6, vr(VV + 4, 2), A_LDS_KV + 2048 + 1024))
    k('ds_write_b64 v%d, %s offset:%d' % (vAd + 6, vr(VV + 10, 2), A_LDS_KV + 2048 + 1024 + 8))
    for blk in range(2):
        k('v_mul_f32 v%d, %s, v%d' % (RQ + 2 * blk, f32(qs), RR + 2 * blk))
    for blk in range(2):
        k('v_cndmask_b32 v%d, 0, v%d, %s' % (RQ + 2 * blk + 1, RQ + 2 * blk, sr(s_m + 2, 2)))
        k('v_cndmask_b32 v%d, 0, v%d, %s' % (RQ + 2 * blk, RQ + 2 * blk, sr(s_m, 2)))
    fix_qk(0, 2, RR + 0, KT + 4)
    fix_qk(0, 3, RR + 0, KT + 6)
    k.wait_lg(0)
    k.barrier()
    stamp(k, 41)
    k('ds_read_b128 %s, v%d offset:%d' % (vr(KT, 4), vAd + 6, A_LDS_KV))
    k('ds_read_b64 %s, v%d offset:%d' % (vr(VV, 2), vAd + 6, A_LDS_KV + 1024))
    k('ds_read_b64 %s, v%d offset:%d' % (vr(VV + 6, 2), vAd + 6, A_LDS_KV + 1024 + 8))
    fix_qk(1, 0, RQ + 2, QT + 4)
    fix_qk(1, 1, RQ + 3, QT + 6)
    SS = T
    k('v_mfma_f32_16x16x32_bf16 %s, %s, %s, %s' % (vr(SS + 8, 4), vr(KT + 4, 4), vr(QT + 4, 4), vr(BP, 4)))
    k('v_mfma_f32_16x16x32_bf16 %s, %s, %s, %s' % (vr(SS + 12, 4), vr(KT + 8, 4), vr(QT + 4, 4), vr(BC, 4)))
    fix_qk(0, 0, RQ + 0, QT + 0)
    fix_qk(0, 1, RQ + 1, QT + 2)
    k('v_mfma_f32_16x16x32_bf16 %s, %s, %s, %s' % (vr(SS + 0, 4), vr(KT + 0, 4), vr(QT, 4), vr(BPA, 4)))
    k('v_mfma_f32_16x16x32_bf16 %s, %s, %s, %s' % (vr(SS + 4, 4), vr(KT + 4, 4), vr(QT, 4), vr(BC, 4)))
    fix_v(0, 0)
    fix_v(0, 1)
    MX = ACC
    TM = ACC + 2
    for blk in (1, 0):
        s_ = SS + 8 * blk
        k('v_max3_f32 v%d, v%d, v%d, v%d' % (MX + blk, s_, s_ + 1, s_ + 2))
        k('v_max3_f32 v%d, v%d, v%d, v%d' % (TM + blk, s_ + 3, s_ + 4, s_ + 5))
        k('v_max3_f32 v%d, v%d, v%d, v%d' % (MX + blk, MX + blk, s_ + 6, s_ + 7))
        k('v_max_f32 v%d, v%d, v%d' % (MX + blk, MX + blk, TM + blk))
    k.bg()
    xgroup_reduce(k, [MX, MX + 1], [TM, TM + 1], op='v_max_f32')
    k.bg_flush()
    stamp(k, 9)
    SUM = ACC + 4
    PP = ACC + 8
    OO = ACC + 16
    for blk in (1, 0):
        s_ = SS + 8 * blk
        for i in range(0, 8, 2):
            k('v_pk_add_f32 %s, %s, %s op_sel:[0,%d] op_sel_hi:[1,%d] neg_lo:[0,1] neg_hi:[0,1]' % (vr(s_ + i, 2), vr(s_ + i, 2), vr(MX, 2), blk, blk))
        for i in range(8):
            k('v_exp_f32 v%d, v%d' % (s_ + i, s_ + i))
        for i in range(4):
            k('v_cvt_pk_bf16_f32 v%d, v%d, v%d' % (PP + 4 * blk + i, s_ + 2 * i, s_ + 2 * i + 1))
        for nb in range(2):
            k('v_mfma_f32_16x16x32_bf16 %s, %s, %s, 0' % (vr(OO + 8 * blk + 4 * nb, 4), vr(VV + 6 * nb + 2 * blk, 4),
                                                          vr(PP + 4 * blk, 4)))
    for blk in range(2):
        s_ = SS + 8 * blk
        k('v_pk_add_f32 %s, %s, %s' % (vr(s_, 2), vr(s_, 2), vr(s_ + 2, 2)))
        k('v_pk_add_f32 %s, %s, %s' % (vr(s_ + 4, 2), vr(s_ + 4, 2), vr(s_ + 6, 2)))
    for blk in range(2):
        s_ = SS + 8 * blk
        k('v_pk_add_f32 %s, %s, %s' % (vr(s_, 2), vr(s_, 2), vr(s_ + 4, 2)))
    for blk in range(2):
        s_ = SS + 8 * blk
        k('v_add_f32 v%d, v%d, v%d' % (SUM + 2 * blk, s_, s_ + 1))
    xgroup_reduce(k, [SUM, SUM + 2], [TM, TM + 1])
    for blk in range(2):
        k('v_rcp_f32 v%d, v%d' % (SUM + 2 * blk, SUM + 2 * blk))
    for blk in range(2):
        k('v_cndmask_b32 v%d, 0, v%d, %s' % (SUM + 2 * blk + 1, SUM + 2 * blk, sr(s_m + 2, 2)))
        k('v_cndmask_b32 v%d, 0, v%d, %s' % (SUM + 2 * blk, SUM + 2 * blk, sr(s_m, 2)))
    for blk in range(2):
        o = OO + 8 * blk
        for r in (0, 2):
            k('v_pk_mul_f32 %s, %s, %s op_sel_hi:[1,0]' % (vr(o + r, 2), vr(o + r, 2), vr(SUM + 2 * blk, 2)))
        for r in (0, 2):
            k('v_pk_mul_f32 %s, %s, %s op_sel:[0,1] op_sel_hi:[1,1]' % (vr(o + 4 + r, 2), vr(o + 4 + r, 2), vr(SUM + 2 * blk, 2)))
        p = PP + 4 * blk
        for i in range(4):
            k('v_cvt_pk_bf16_f32 v%d, v%d, v%d' % (p + i, o + 2 * i, o + 2 * i + 1))
        k('buffer_store_dwordx4 %s, v4, %s, s%d offen %s' % (vr(p, 4), srd(SRD_WS), s_o0 if blk == 0 else s_o1, sc1), tag='ost')


STAMP_OFF = 0xA00000


DST = {5: 1, 10: 2, 15: 3, 16: 4, 22: 5, 24: 6, 29: 7}


def dstamp(k, idx, vtmp=253, stmp=74):
    if idx not in DST and idx != 0:
        return
    slot = DST.get(idx, 0)
    k('s_memrealtime %s' % sr(stmp, 2))
    k('s_cmp_eq_u32 s2, 131')
    k('s_cselect_b32 s%d, %d, %s' % (stmp + 4, 32 + 4 * slot, '0x%x' % OOB))
    if slot:
        k('s_cmp_eq_u32 s2, 0')
        k('s_cselect_b32 s%d, %d, s%d' % (stmp + 4, 4 * slot, stmp + 4))
    k('v_mov_b32 v%d, s%d' % (vtmp + 2, stmp + 4))
    k('v_mov_b32 v%d, s%d' % (vtmp, stmp))
    k('s_cmp_eq_u32 s3, 0')
    k('s_cselect_b64 exec, 1, 0')
    k('buffer_store_dword v%d, v%d, %s, 0 offen' % (vtmp, vtmp + 2, srd(SRD_DBG)))
    k('s_mov_b64 exec, -1')


def stamp(k, idx, vtmp=253, stmp=74):
    if getattr(k, 'stamps', False) == 'jit':
        L = k.newlabel('Ljit')
        k('s_lshl_b32 s74, s2, 2')
        k('s_add_u32 s74, s74, s3')
        k('s_mul_i32 s74, s74, 0x%x' % ((0x9E3779B1 * (idx + 1 + 64 * JIT_SEED)) & 0xffffffff | 1))
        k('s_lshr_b32 s74, s74, 29')
        k('s_cmp_lg_u32 s74, 0')
        k('s_cbranch_scc1 %s' % L)
        hist = [[h[0], h[1]] for h in k.hist]
        k('s_sleep 100')
        k.raw(L + ':')
        k.hist = k.hist + hist
        return
    if idx >= 32 or (STAMP_SET is not None and idx not in STAMP_SET):
        return
    if getattr(k, 'stamps', False) == 'dbg':
        return dstamp(k, idx, vtmp, stmp)
    if not getattr(k, 'stamps', False):
        return
    k('s_memrealtime %s' % sr(stmp, 2))
    k('s_memtime %s' % sr(stmp + 2, 2))
    k('s_lshl_b32 s%d, s2, 2' % (stmp + 4))
    k('s_add_u32 s%d, s%d, s3' % (stmp + 4, stmp + 4))
    k('s_lshl_b32 s%d, s%d, 7' % (stmp + 4, stmp + 4))
    k('s_add_u32 s%d, s%d, 0x%x' % (stmp + 4, stmp + 4, STAMP_OFF + 4 * idx))
    k('v_mov_b32 v%d, s%d' % (vtmp, stmp))
    k('v_mov_b32 v%d, s%d' % (vtmp + 1, stmp + 2))
    k('v_mov_b32 v%d, 0' % (vtmp + 2))
    k('s_mov_b64 exec, 1')
    k('buffer_store_dword v%d, v%d, %s, s%d offen' % (vtmp, vtmp + 2, srd(SRD_WS), stmp + 4))
    k('s_add_u32 s%d, s%d, 0x20000' % (stmp + 4, stmp + 4))
    k('buffer_store_dword v%d, v%d, %s, s%d offen' % (vtmp + 1, vtmp + 2, srd(SRD_WS), stmp + 4))
    k('s_mov_b64 exec, -1')


def spin_guard(k):
    k('s_sub_u32 s%d, s%d, 1' % (S_SPIN, S_SPIN))
    k('s_cbranch_scc1 %s' % k.end_label)


def epoch_publish(k, vt):
    k('s_memrealtime %s' % sr(S_T, 2))
    k('v_mov_b32 v%d, 0' % (vt + 1))
    k('s_or_b32 s%d, s%d, 1' % (S_T, S_T))
    k('v_mov_b32 v%d, s%d' % (vt, S_T))
    k('s_or_b32 s%d, s2, s3' % S_T)
    k('s_cmp_eq_u32 s%d, 0' % S_T)
    k('s_cselect_b64 exec, 1, 0')
    k('buffer_store_dword v%d, v%d, %s, 0 offen sc1' % (vt, vt + 1, srd(SRD_DBG)))
    k('s_mov_b64 exec, -1')


def epoch_load(k, vt):
    k('v_mov_b32 v%d, 0' % (vt + 1))
    k('buffer_load_dword v%d, v%d, %s, 0 offen sc1' % (vt, vt + 1, srd(SRD_DBG)))


def epoch_get(k, vt):
    L = k.newlabel('Lepg')
    done = k.newlabel('Lepd')
    k('v_readfirstlane_b32 s%d, v%d' % (S_EPOCH, vt))
    k('s_cmp_lg_u32 s%d, 0' % S_EPOCH)
    k.branch_fwd('s_cbranch_scc1', done)
    k.loop_label(L)
    spin_guard(k)
    k('buffer_load_dword v%d, v%d, %s, 0 offen sc1' % (vt, vt + 1, srd(SRD_DBG)))
    k.force_wait(vm=0)
    k('v_readfirstlane_b32 s%d, v%d' % (S_EPOCH, vt))
    k('s_cmp_eq_u32 s%d, 0' % S_EPOCH)
    k('s_cbranch_scc1 %s' % L)
    k.label(done)


FLAG_A = FLAG_OFF
FLAG_B = FLAG_OFF + 0x20000
FLAG_Z = FLAG_OFF + 0x38000
FLAG_C = FLAG_OFF + 0x28000


def flag_store(k, vt, s_off):
    k('v_mov_b32 v%d, s%d' % (vt, S_EPOCH))
    k('s_mov_b64 exec, 1')
    k('buffer_store_dword v%d, v%d, %s, s%d offen sc1' % (vt, vt + 1, srd(SRD_WS), s_off))
    if DBL & 2:
        k('buffer_store_dword v%d, v%d, %s, s%d offen' % (vt, vt + 1, srd(SRD_WS), s_off))
    k('s_mov_b64 exec, -1')


POLL_DEPTH = 3
POLL_GAP = 3
W1_LG = 8
POLL_SC = 'sc1'
ST_SC = 'sc1'
AGENT_HH = ()
JIT_SEED = 0
ST14 = True
WROW = 128
M2 = True
WARM0 = True
CD2 = True
DBL = 0
STAMP_SET = None
S_WR, S_HV = 56, 57
EXP_NSTAT = 6
EXP_NFRAG = 8
POLL_SLEEP = 0
WO_LATE = False
START_ORDER = '01w|'
AGENT_DEPTH = 2
ST_SLEEP = 0
V_POLL = 249


def flag_poll(k, vt, voff, s_off):
    L = k.newlabel('Lpoll')
    done = k.newlabel('Lpd')
    n = POLL_DEPTH

    def ld(i):
        return k('buffer_load_dword v%d, v%d, %s, s%d offen %s' % (V_POLL + i, voff, srd(SRD_WS), s_off, POLL_SC))
    for i in range(n - 1):
        ld(i)
        k('s_sleep %d' % POLL_GAP)
    k.loop_label(L)
    spin_guard(k)
    last = []
    for i in range(n):
        k.vm = []
        if POLL_SLEEP:
            k('s_sleep %d' % POLL_SLEEP)
        last.append(ld((i + n - 1) % n))
        k._emit(classify('s_waitcnt vmcnt(%d)' % (n - 1)))
        k.vm = []
        k('v_cmp_ne_u32 vcc, s%d, v%d' % (S_EPOCH, V_POLL + i))
        if i < n - 1:
            k('s_cbranch_vccz %s' % done)
        else:
            k('s_cbranch_vccnz %s' % L)
    k.fence()
    k.raw(done + ':')
    k.vm = list(last)


class B:
    s_tmp, s_wbase, s_t2, s_x = 58, 59, 60, 61
    s_dma = 73
    vWo, vR0, vR1 = 208, 209, 210
    ACC = 192
    OFR = 32
    T = 64
    vSw, vSp = 211, 212
    s_sw, s_sp = 90, 62
    HK = 240


def B_setup(k):
    b, g = B, G
    k.c('---- phase B setup')
    t = TMP
    k('v_lshrrev_b32 v%d, 3, v1' % t)
    k('v_mul_u32_u24 v%d, 896, v%d' % (b.vWo, t))
    k('v_and_b32 v%d, 1, v3' % t)
    k('v_lshlrev_b32 v%d, 2, v%d' % (t, t))
    k('v_and_b32 v%d, 7, v1' % (t + 1))
    k('v_xor_b32 v%d, v%d, v%d' % (t, t, t + 1))
    k('v_lshl_add_u32 v%d, v%d, 4, v%d' % (b.vWo, t, b.vWo))
    k('s_lshl_b32 s%d, s%d, 7' % (b.s_tmp, g.s_dtD))
    k('s_mul_i32 s%d, s3, %d' % (b.s_t2, 112 * 896))
    k('s_add_u32 s%d, s%d, s%d' % (b.s_tmp, b.s_tmp, b.s_t2))
    k('v_add_u32 v%d, s%d, v%d' % (b.vWo, b.s_tmp, b.vWo))
    k('s_mul_i32 s%d, s3, %d' % (b.s_wbase, STG_SZ))
    k('s_add_u32 s%d, s%d, %d' % (b.s_wbase, b.s_wbase, LDS_STG))
    k('v_lshrrev_b32 v%d, 5, v1' % t)
    k('v_lshlrev_b32 v%d, 9, v%d' % (b.vR0, t))
    k('v_bfe_u32 v%d, v1, 2, 2' % t)
    k('v_lshl_add_u32 v%d, v%d, 7, v%d' % (b.vR0, t, b.vR0))
    k('v_lshrrev_b32 v%d, 1, v%d' % (t, t))
    k('s_and_b32 s%d, s3, 1' % b.s_tmp)
    k('v_xor_b32 v%d, s%d, v%d' % (t, b.s_tmp, t))
    k('v_lshl_add_u32 v%d, v%d, 6, v%d' % (b.vR0, t, b.vR0))
    k('v_and_b32 v%d, 1, v3' % t)
    k('v_lshl_add_u32 v%d, v%d, 5, v%d' % (b.vR0, t, b.vR0))
    k('v_and_b32 v%d, 3, v1' % t)
    k('v_lshl_add_u32 v%d, v%d, 3, v%d' % (b.vR0, t, b.vR0))
    k('v_add_u32 v%d, %d, v%d' % (b.vR0, LDS_STG, b.vR0))
    k('v_lshrrev_b32 v%d, 5, v1' % t)
    k('v_lshlrev_b32 v%d, 10, v%d' % (t, t))
    k('v_sub_u32 v%d, v%d, v%d' % (b.vR1, b.vR0, t))


def B_wo_dma(k):
    b = B

    def one(i):
        k('s_add_u32 m0, s%d, %d' % (b.s_wbase, i * 1024))
        k('s_mov_b32 s%d, %d' % (b.s_dma, 8 * i * 896))
        k('buffer_load_dwordx4 v%d, %s, s%d offen lds' % (b.vWo, srd(SRD_WO), b.s_dma), tag='wo')
    for i in range(14):
        k.bg_push(lambda i=i: one(i))


def B_wo_read(k, abase):
    b = B
    for h in range(16):
        if h == 8:
            k('v_add_u32 v%d, %d, v%d' % (b.vR0, 2 * STG_SZ, b.vR0))
            k('v_add_u32 v%d, %d, v%d' % (b.vR1, 2 * STG_SZ, b.vR1))
        sh = h == 15 and not M2
        for ks in range(2):
            a = abase + 8 * h + 4 * ks
            o = ((h >> 2) & 1) * STG_SZ + (h & 3) * 3584 + ks * 1024 - (512 if sh else 0)
            k('ds_read_b64_tr_b16 %s, v%d offset:%d' % (ar(a, 2), b.vR0, o))
            k('ds_read_b64_tr_b16 %s, v%d offset:%d' % (ar(a + 2, 2), b.vR1 if ((h & 3) == 3 and ks and not sh) else b.vR0, o + 2048))
            if (2 * h + ks) % 3 != 2:
                k.bg()


def B_xinit(k):
    b, g = B, G
    t = TMP + 2
    k('v_lshrrev_b32 v%d, 5, v1' % t)
    k('v_mul_u32_u24 v%d, %d, v%d' % (t, 4 * 896, t))
    k('v_and_b32 v%d, 31, v1' % (t + 1))
    k('v_lshl_add_u32 v%d, v%d, 1, v%d' % (t, t + 1, t))
    k('s_lshl_b32 s%d, s%d, 1' % (b.s_tmp, g.s_st))
    k('s_lshr_b32 s%d, s3, 1' % b.s_t2)
    k('s_add_u32 s%d, s%d, s%d' % (b.s_tmp, b.s_tmp, b.s_t2))
    k('s_mul_i32 s%d, s%d, %d' % (b.s_tmp, b.s_tmp, 32 * 896))
    k('s_lshl_b32 s%d, s%d, 7' % (b.s_t2, g.s_dtD))
    k('s_add_u32 s%d, s%d, s%d' % (b.s_tmp, b.s_tmp, b.s_t2))
    k('s_and_b32 s%d, s3, 1' % b.s_t2)
    k('s_lshl_b32 s%d, s%d, 6' % (b.s_t2, b.s_t2))
    k('s_add_u32 s%d, s%d, s%d' % (b.s_tmp, b.s_tmp, b.s_t2))
    for q in range(4):
        for r in range(4):
            k('buffer_load_ushort v%d, v%d, %s, s%d offen offset:%d' % (b.ACC + 4 * q + r, t, srd(SRD_X), b.s_tmp, r * 896))
        if q < 3:
            k('s_add_u32 s%d, s%d, %d' % (b.s_tmp, b.s_tmp, 8 * 896))


def B_xinit_finish(k):
    b = B
    for i in range(16):
        k('v_lshlrev_b32 v%d, 16, v%d' % (b.ACC + i, b.ACC + i))


def B_main(k, abase, lds_small, sc1='', hooks=None):
    b, g = B, G
    t = b.T
    k.c('---- phase B main')
    hooks = hooks or {}

    def hook(name):
        if name in hooks:
            hooks[name]()
    k('s_lshl_b32 s%d, s%d, 16' % (b.s_tmp, g.s_st))
    k('s_lshl_b32 s%d, s3, 14' % b.s_t2)
    k('s_add_u32 s%d, s%d, s%d' % (b.s_tmp, b.s_tmp, b.s_t2))
    if OF_OFF:
        k('s_add_u32 s%d, s%d, 0x%x' % (b.s_tmp, b.s_tmp, OF_OFF))
    for i in range(16):
        if i % 4 == 0:
            k('s_add_u32 m0, s%d, %d' % (g.s_stage, i * 1024))
            if i:
                k('s_add_u32 s%d, s%d, 4096' % (b.s_tmp, b.s_tmp))
        k('buffer_load_dwordx4 v4, %s, s%d offen offset:%d %s lds' % (srd(SRD_WS), b.s_tmp, (i % 4) * 1024, sc1), tag='of%d' % (i // 8))
    k('v_and_b32 v%d, 1, v3' % t)
    k('v_mul_u32_u24 v%d, %d, v%d' % (t, STG_SZ, t))
    k('v_lshl_add_u32 v%d, v2, 4, v%d' % (t, t))
    k('v_lshrrev_b32 v%d, 5, v1' % (t + 1))
    k('v_lshl_add_u32 v%d, v%d, 8, v%d' % (t, t + 1, t))
    k('s_lshr_b32 s%d, s3, 1' % b.s_t2)
    k('s_mul_i32 s%d, s%d, %d' % (b.s_t2, b.s_t2, 2 * STG_SZ))
    k('s_add_u32 s%d, s%d, %d' % (b.s_t2, b.s_t2, LDS_STG))
    k('v_add_u32 v%d, s%d, v%d' % (t, b.s_t2, t))
    hook('B_after_of')
    a = vr(b.ACC, 16)

    def rd(i):
        k('ds_read_b128 %s, v%d offset:%d' % (vr(b.OFR + 4 * (i % 8), 4), t, i * 512))
    for half in range(2):
        k.wait_tag('of%d' % half)
        k.barrier()
        if half == 0:
            stamp(k, 11)
        for i in range(16 * half, 16 * half + (6 if half == 0 else 2)):
            rd(i)
        for i in range(16 * half - (4 if half else 0), 16 * half + (12 if half == 0 else 16)):
            k('v_mfma_f32_32x32x16_bf16 %s, %s, %s, %s' % (a, vr(b.OFR + 4 * (i % 8), 4), ar(abase + 4 * i, 4), a))
            if i + 6 < 16 * half + 16 and i + 6 >= 16 * half + (6 if half == 0 else 2):
                rd(i + 6)
            if i % 3 == 0:
                k.bg()
    stamp(k, 12)
    if 'B_tail' in hooks:
        return hook('B_tail')
    Q = t + 4
    V = t + 20
    A = b.ACC
    for i in range(0, 16, 2):
        k('v_pk_mul_f32 %s, %s, %s' % (vr(Q + i, 2), vr(A + i, 2), vr(A + i, 2)))
    def src(base, q, idx):
        r = ((idx & 1) << 1) | (idx >> 1)
        return base + 4 * q + r
    for base, dst in ((A, V), (Q, V + 8)):
        k.bg()
        for q in range(4):
            for p in range(2):
                x = src(base, q, 2 * p)
                k('v_add_f32_dpp v%d, v%d, v%d row_mirror row_mask:0xf bank_mask:0x3' % (dst + 2 * q + p, x, x))
    for base, dst in ((A, V), (Q, V + 8)):
        k.bg()
        for q in range(4):
            for p in range(2):
                x = src(base, q, 2 * p + 1)
                k('v_add_f32_dpp v%d, v%d, v%d row_mirror row_mask:0xf bank_mask:0xc' % (dst + 2 * q + p, x, x))
    k.bg(2)
    for i in range(8):
        k('v_add_f32_dpp v%d, v%d, v%d row_half_mirror row_mask:0xf bank_mask:0x5' % (V + 2 * i, V + 2 * i, V + 2 * i))
    for i in range(8):
        k('v_add_f32_dpp v%d, v%d, v%d row_half_mirror row_mask:0xf bank_mask:0xa' % (V + 2 * i, V + 2 * i + 1, V + 2 * i + 1))
    for i in range(8):
        k('v_add_f32_dpp v%d, v%d, v%d quad_perm:[1,0,3,2] row_mask:0xf bank_mask:0xf' % (V + 2 * i + 1, V + 2 * i, V + 2 * i))
    U = Q
    k.bg(2)
    for i in range(8):
        k('v_add_f32_dpp v%d, v%d, v%d quad_perm:[2,3,0,1] row_mask:0xf bank_mask:0xf' % (U + i, V + 2 * i + 1, V + 2 * i + 1))
    for kind in range(2):
        for i in range(2):
            k('v_permlane16_swap_b32 v%d, v%d' % (U + 4 * kind + 2 * i, U + 4 * kind + 2 * i + 1))
    W_ = V
    for i in range(2):
        for kind in range(2):
            k('v_add_f32 v%d, v%d, v%d' % (W_ + 2 * i + kind, U + 4 * kind + 2 * i, U + 4 * kind + 2 * i + 1))
    k.bg_flush()
    if ST14:
        vA, vC, vG = b.vSp, t + 2, t + 3
        G_ = V + 4
        k('v_cndmask_b32 v%d, v%d, v%d, %s' % (G_, W_, W_ + 2, sr(88, 2)))
        k('v_cndmask_b32 v%d, v%d, v%d, %s' % (G_ + 2, W_ + 1, W_ + 3, sr(88, 2)))
        k('v_mov_b32 v%d, s%d' % (G_ + 1, S_EPOCH))
        k('v_mov_b32 v%d, s%d' % (G_ + 3, S_EPOCH))
        k('s_mov_b32 exec_lo, 0x33333333')
        k('s_mov_b32 exec_hi, 0x33333333')
        k('buffer_store_dwordx4 %s, v%d, %s, s%d offen sc1' % (vr(G_, 4), b.vSw, srd(SRD_WS), b.s_sw))
        k('s_mov_b64 exec, -1')
        k.barrier()
        for i in range(8):
            k('v_cvt_pk_bf16_f32 v%d, v%d, v%d' % (b.HK + i, A + 2 * i, A + 2 * i + 1))
        k('v_and_b32 v%d, 31, v1' % vG)
        B_hh_addr(k)
        hook('B_before_poll')
        stamp(k, 31)
        P0 = t + 32
        L = k.newlabel('Lst')
        done = k.newlabel('Lstd')
        Sx, Qx = t + 88, t + 90

        def ld(s_):
            return [k('buffer_load_dwordx4 %s, v%d, %s, s%d offen offset:%d sc1' % (
                vr(P0 + 28 * s_ + 4 * i, 4), vA, srd(SRD_WS), b.s_sp + (i >> 2), (i & 3) * 1024)) for i in range(7)]
        ld(0)
        k('s_sleep 5')
        k.loop_label(L)
        spin_guard(k)
        last = []
        for s_ in range(2):
            k.vm = []
            last += ld(1 - s_)
            k._emit(classify('s_waitcnt vmcnt(7)'))
            k.vm = []
            p = P0 + 28 * s_
            for i in range(14):
                k('v_xor_b32 v%d, s%d, v%d' % (p + 2 * i + 1, S_EPOCH, p + 2 * i + 1))
            for x, o in ((Sx, 0), (Qx, 2)):
                k('v_add_f32 v%d, v%d, v%d' % (x, p + o, p + o + 4))
                k('v_add_f32 v%d, v%d, v%d' % (x + 1, p + o + 8, p + o + 12))
            k('v_or3_b32 v%d, v%d, v%d, v%d' % (p + 1, p + 1, p + 3, p + 5))
            k('v_or3_b32 v%d, v%d, v%d, v%d' % (p + 7, p + 7, p + 9, p + 11))
            k('v_or3_b32 v%d, v%d, v%d, v%d' % (p + 13, p + 13, p + 15, p + 17))
            k('v_or3_b32 v%d, v%d, v%d, v%d' % (p + 19, p + 19, p + 21, p + 23))
            k('v_or3_b32 v%d, v%d, v%d, v%d' % (p + 1, p + 1, p + 25, p + 27))
            k('v_or3_b32 v%d, v%d, v%d, v%d' % (p + 7, p + 7, p + 13, p + 19))
            k('v_or_b32 v%d, v%d, v%d' % (p + 1, p + 1, p + 7))
            k('v_cmp_ne_u32 vcc, 0, v%d' % (p + 1))
            for x, o in ((Sx, 0), (Qx, 2)):
                k('v_add_f32 v%d, v%d, v%d' % (x, x, p + o + 16))
                k('v_add_f32 v%d, v%d, v%d' % (x + 1, x + 1, p + o + 20))
            for x, o in ((Sx, 0), (Qx, 2)):
                k('v_add_f32 v%d, v%d, v%d' % (x, x, p + o + 24))
            k('%s %s' % (('s_cbranch_vccz', 's_cbranch_vccnz')[s_], (done, L)[s_]))
        k.fence()
        k.raw(done + ':')
        k.vm = list(last)
        stamp(k, 13)
        P0 = t + 92
        for x in (Sx, Qx):
            k('v_add_f32 v%d, v%d, v%d' % (x, x, x + 1))
    else:
        vA, vC, vG = t + 1, t + 2, t + 3
        k('v_and_b32 v%d, 1, v3' % vA)
        k('v_lshlrev_b32 v%d, 6, v%d' % (vA, vA))
        k('v_lshrrev_b32 v%d, 5, v1' % vC)
        k('v_lshl_add_u32 v%d, v%d, 5, v%d' % (vA, vC, vA))
        k('v_bfe_u32 v%d, v1, 2, 2' % vG)
        k('v_lshl_add_u32 v%d, v%d, 3, v%d' % (vA, vG, vA))
        k('s_lshl_b32 s%d, s3, 8' % b.s_tmp)
        k('v_add_u32 v%d, s%d, v%d' % (vA, b.s_tmp, vA))
        k('ds_write_b64 v%d, %s offset:%d' % (vA, vr(W_, 2), lds_small))
        k('ds_write_b64 v%d, %s offset:%d' % (vA, vr(W_ + 2, 2), lds_small + 128))
        k('v_and_b32 v%d, 31, v1' % vG)
        k('v_lshlrev_b32 v%d, 9, v%d' % (vA, vC))
        k('v_lshl_add_u32 v%d, v%d, 4, v%d' % (vA, vG, vA))
        k('v_lshlrev_b32 v%d, 8, v%d' % (vC, vC))
        k('v_lshl_add_u32 v%d, v%d, 3, v%d' % (vC, vG, vC))
        k('s_and_b32 s%d, s%d, 512' % (b.s_tmp, b.s_tmp))
        k('v_add_u32 v%d, s%d, v%d' % (vC, b.s_tmp, vC))
        k('s_lshl_b32 s%d, s%d, 1' % (b.s_tmp, g.s_st))
        k('s_lshr_b32 s%d, s3, 1' % b.s_t2)
        k('s_add_u32 s%d, s%d, s%d' % (b.s_tmp, b.s_tmp, b.s_t2))
        k('s_lshl_b32 s%d, s%d, 12' % (b.s_tmp, b.s_tmp))
        k('s_add_u32 s%d, s%d, 0x%x' % (b.s_tmp, b.s_tmp, STAT_OFF))
        k('s_lshl_b32 s%d, s%d, 9' % (b.s_t2, g.s_dtD))
        k('s_add_u32 s%d, s%d, s%d' % (b.s_t2, b.s_t2, b.s_tmp))
        stamp(k, 23)
        k.wait_lg(0)
        k.barrier()
        k('ds_read_b64 %s, v%d offset:%d' % (vr(V, 2), vC, lds_small))
        G_ = V + 4
        k('v_mov_b32 v%d, s%d' % (G_ + 1, S_EPOCH))
        k('v_mov_b32 v%d, s%d' % (G_ + 3, S_EPOCH))
        k('v_mov_b32 v%d, v%d' % (G_, V))
        k('v_mov_b32 v%d, v%d' % (G_ + 2, V + 1))
        k('v_permlane32_swap_b32 v%d, v%d' % (G_, V))
        k('v_permlane32_swap_b32 v%d, v%d' % (G_ + 2, V + 1))
        k('v_add_f32 v%d, v%d, v%d' % (G_, G_, V))
        k('v_add_f32 v%d, v%d, v%d' % (G_ + 2, G_ + 2, V + 1))
        k('s_bitcmp0_b32 s3, 0')
        k('s_cselect_b32 exec_lo, -1, 0')
        k('s_mov_b32 exec_hi, 0')
        k('buffer_store_dwordx4 %s, v%d, %s, s%d offen sc1' % (vr(G_, 4), vA, srd(SRD_WS), b.s_t2))
        if DBL & 1:
            k('buffer_store_dwordx4 %s, v%d, %s, s%d offen' % (vr(G_, 4), vA, srd(SRD_WS), b.s_t2))
        k('s_mov_b64 exec, -1')
        for i in range(8):
            k('v_cvt_pk_bf16_f32 v%d, v%d, v%d' % (b.HK + i, A + 2 * i, A + 2 * i + 1))
        k('s_lshl_b32 s%d, s%d, 1' % (b.s_x, g.s_dtD))
        k('s_and_b32 s%d, s3, 1' % b.s_t2)
        k('s_add_u32 s%d, s%d, s%d' % (b.s_x, b.s_x, b.s_t2))
        k('s_lshl_b32 s%d, s%d, 7' % (b.s_x, b.s_x))
        k('s_lshl_b32 s%d, s%d, 2' % (b.s_t2, g.s_st))
        k('s_add_u32 s%d, s%d, s%d' % (b.s_x, b.s_x, b.s_t2))
        k('s_and_b32 s%d, s3, 2' % b.s_t2)
        k('s_add_u32 s%d, s%d, s%d' % (b.s_x, b.s_x, b.s_t2))
        k('s_lshl_b32 s%d, s%d, 10' % (b.s_x, b.s_x))
        k('s_add_u32 s%d, s%d, 0x%x' % (b.s_x, b.s_x, HH_OFF))
        k('v_lshlrev_b32 v%d, 4, v%d' % (vC, vG))
        k('v_cmp_gt_u32 %s, 32, v1' % sr(S_T, 2))
        hook('B_before_poll')
        stamp(k, 31)
        P0 = t + 32
        L = k.newlabel('Lst')
        done = k.newlabel('Lstd')
        Sx, Qx = t + 64, t + 66

        def ld(s_):
            r = []
            for i in range(4):
                r.append(k('buffer_load_dwordx4 %s, v%d, %s, s%d offen offset:%d %s' % (
                    vr(P0 + 16 * s_ + 4 * i, 4), vA if i < 3 else vC, srd(SRD_WS), b.s_tmp, i * 1024, ST_SC)))
            return r
        ld(0)
        k('s_sleep 5')
        k.loop_label(L)
        spin_guard(k)
        last = []
        for s_ in range(2):
            k.vm = []
            if ST_SLEEP:
                k('s_sleep %d' % ST_SLEEP)
            last += ld(1 - s_)
            k._emit(classify('s_waitcnt vmcnt(4)'))
            k.vm = []
            p = P0 + 16 * s_
            for i in range(8):
                k('v_xor_b32 v%d, s%d, v%d' % (p + 2 * i + 1, S_EPOCH, p + 2 * i + 1))
            k('v_cndmask_b32 v%d, 0, v%d, %s' % (p + 12, p + 12, sr(S_T, 2)))
            k('v_cndmask_b32 v%d, 0, v%d, %s' % (p + 14, p + 14, sr(S_T, 2)))
            k('v_or3_b32 v%d, v%d, v%d, v%d' % (p + 1, p + 1, p + 3, p + 5))
            k('v_or3_b32 v%d, v%d, v%d, v%d' % (p + 7, p + 7, p + 9, p + 11))
            k('v_or3_b32 v%d, v%d, v%d, v%d' % (p + 1, p + 1, p + 13, p + 15))
            k('v_or_b32 v%d, v%d, v%d' % (p + 1, p + 1, p + 7))
            k('v_cmp_ne_u32 vcc, 0, v%d' % (p + 1))
            for x, o in ((Sx, 0), (Qx, 2)):
                k('v_add_f32 v%d, v%d, v%d' % (x, p + o, p + o + 4))
                k('v_add_f32 v%d, v%d, v%d' % (x + 1, p + o + 8, p + o + 12))
            if s_ == 0:
                k('s_cbranch_vccz %s' % done)
            else:
                k('s_cbranch_vccnz %s' % L)
        k.fence()
        k.raw(done + ':')
        k.vm = list(last)
        stamp(k, 13)
        P0 = t + 68
        for x in (Sx, Qx):
            k('v_add_f32 v%d, v%d, v%d' % (x, x, x + 1))
    k('v_mov_b32 v%d, v%d' % (P0 + 4, Sx))
    k('v_mov_b32 v%d, v%d' % (P0 + 6, Qx))
    k('v_permlane32_swap_b32 v%d, v%d' % (Sx, P0 + 4))
    k('v_permlane32_swap_b32 v%d, v%d' % (Qx, P0 + 6))
    k('v_add_f32 v%d, v%d, v%d' % (Sx, Sx, P0 + 4))
    k('v_add_f32 v%d, v%d, v%d' % (Qx, Qx, P0 + 6))
    M, R = P0 + 1, P0 + 3
    k('v_mul_f32 v%d, %s, v%d' % (M, f32(1.0 / D), Sx))
    k('v_mul_f32 v%d, %s, v%d' % (Qx, f32(1.0 / D), Qx))
    k('v_fma_f32 v%d, -v%d, v%d, v%d' % (Qx, M, M, Qx))
    k('v_max_f32 v%d, 0, v%d' % (Qx, Qx))
    k('v_add_f32 v%d, %s, v%d' % (R, f32(1e-5), Qx))
    k('v_rsq_f32 v%d, v%d' % (R, R))
    k('v_mul_f32 v%d, v%d, v%d' % (Qx, Qx, R))
    k('v_fmaak_f32 v%d, v%d, v%d, %s' % (Qx, Qx, R, f32(1e-5)))
    k('v_rsq_f32 v%d, v%d' % (Qx, Qx))
    k('v_mul_f32 v%d, v%d, v%d' % (R, R, Qx))
    k('s_lshl_b32 s%d, s3, 8' % b.s_t2)
    k('v_lshl_add_u32 v%d, v%d, 2, s%d' % (vC, vG, b.s_t2))
    k('ds_write_b32 v%d, v%d offset:%d' % (vC, M, lds_small + 1024))
    k('ds_write_b32 v%d, v%d offset:%d' % (vC, R, lds_small + 1024 + 128))
    k('v_lshrrev_b32 v%d, 5, v1' % vC)
    k('v_lshl_add_u32 v%d, v%d, 4, s%d' % (vC, vC, b.s_t2))
    MM = 16 if ST14 else P0 + 8
    k.wait_lg(0)
    for q in range(4):
        k('ds_read_b128 %s, v%d offset:%d' % (vr(MM + 4 * q, 4), vC, lds_small + 1024 + 32 * q))
        k('ds_read_b128 %s, v%d offset:%d' % (vr(MM + 16 + 4 * q, 4), vC, lds_small + 1024 + 128 + 32 * q))
    for tp in range(2):
        for i in range(8 * tp, 8 * tp + 8, 2):
            k('v_pk_add_f32 %s, %s, %s neg_lo:[0,1] neg_hi:[0,1]' % (vr(A + i, 2), vr(A + i, 2), vr(MM + i, 2)))
        for i in range(8 * tp, 8 * tp + 8, 2):
            k('v_pk_mul_f32 %s, %s, %s' % (vr(A + i, 2), vr(A + i, 2), vr(MM + 16 + i, 2)))
        p = (P0 + 8 if ST14 else V) + 4 * tp
        for i in range(4):
            k('v_cvt_pk_bf16_f32 v%d, v%d, v%d' % (p + i, A + 8 * tp + 2 * i, A + 8 * tp + 2 * i + 1))
        k('buffer_store_dwordx4 %s, v4, %s, s%d offen offset:%d %s' % (vr(p, 4), srd(SRD_WS), b.s_x, tp * 1024, sc1), tag='hst')


def B_hh_addr(k):
    b, g = B, G
    k('s_lshl_b32 s%d, s%d, 1' % (b.s_x, g.s_dtD))
    k('s_and_b32 s%d, s3, 1' % b.s_t2)
    k('s_add_u32 s%d, s%d, s%d' % (b.s_x, b.s_x, b.s_t2))
    k('s_lshl_b32 s%d, s%d, 7' % (b.s_x, b.s_x))
    k('s_lshl_b32 s%d, s%d, 2' % (b.s_t2, g.s_st))
    k('s_add_u32 s%d, s%d, s%d' % (b.s_x, b.s_x, b.s_t2))
    k('s_and_b32 s%d, s3, 2' % b.s_t2)
    k('s_add_u32 s%d, s%d, s%d' % (b.s_x, b.s_x, b.s_t2))
    k('s_lshl_b32 s%d, s%d, 10' % (b.s_x, b.s_x))
    k('s_add_u32 s%d, s%d, 0x%x' % (b.s_x, b.s_x, HH_OFF))


def B_st14_setup(k):
    b, g = B, G
    t = b.T
    k('v_and_b32 v%d, 1, v1' % t)
    k('v_lshlrev_b32 v%d, 8, v%d' % (b.vSw, t))
    k('v_and_b32 v%d, 1, v3' % t)
    k('v_lshl_add_u32 v%d, v%d, 7, v%d' % (b.vSw, t, b.vSw))
    k('v_lshrrev_b32 v%d, 5, v1' % t)
    k('v_lshl_add_u32 v%d, v%d, 6, v%d' % (b.vSw, t, b.vSw))
    k('v_lshlrev_b32 v%d, 9, v%d' % (b.vSp, t))
    k('v_bfe_u32 v%d, v1, 2, 2' % t)
    k('v_lshl_add_u32 v%d, v%d, 4, v%d' % (b.vSw, t, b.vSw))
    k('v_and_b32 v%d, 31, v1' % t)
    k('v_lshl_add_u32 v%d, v%d, 4, v%d' % (b.vSp, t, b.vSp))
    k('s_lshl_b32 s%d, s%d, 1' % (b.s_sp, g.s_st))
    k('s_lshr_b32 s%d, s3, 1' % b.s_sw)
    k('s_add_u32 s%d, s%d, s%d' % (b.s_sp, b.s_sp, b.s_sw))
    k('s_lshl_b32 s%d, s%d, 13' % (b.s_sp, b.s_sp))
    k('s_add_u32 s%d, s%d, 0x%x' % (b.s_sp, b.s_sp, STAT_OFF))
    k('s_add_u32 s%d, s%d, 4096' % (b.s_sp + 1, b.s_sp))
    k('s_lshl_b32 s%d, s%d, 1' % (b.s_sw, g.s_dtD))
    k('s_and_b32 s88, s3, 1')
    k('s_add_u32 s%d, s%d, s88' % (b.s_sw, b.s_sw))
    k('s_lshl_b32 s%d, s%d, 9' % (b.s_sw, b.s_sw))
    k('s_add_u32 s%d, s%d, s%d' % (b.s_sw, b.s_sw, b.s_sp))
    k('s_mov_b32 s88, 0xaaaaaaaa')
    k('s_mov_b32 s89, 0xaaaaaaaa')


def agent(k):
    g = G
    k.c('---- agent: W2 warm-up')
    if W1_LG < 8:
        assert ROT is True
        k('s_lshr_b32 s%d, s2, 3' % g.s_tmp)
        k('s_sub_u32 s%d, s%d, 28' % (g.s_tmp, g.s_tmp))
        k('s_mul_i32 s%d, s%d, %d' % (g.s_tmp, g.s_tmp, 512 * F * 2))
        k('s_mul_i32 s%d, s3, %d' % (g.s_t2, 16 * F * 2))
        k('s_add_u32 s%d, s%d, s%d' % (g.s_tmp, g.s_tmp, g.s_t2))
        k('s_and_b32 s%d, s2, 7' % g.s_t2)
        k('s_mul_i32 s%d, s%d, 3' % (S_T, g.s_t2))
        k('s_add_u32 s%d, s%d, 4' % (S_T, S_T))
        k('s_lshl_b32 s%d, s%d, 2' % (S_T + 1, g.s_t2))
        k('s_min_u32 s%d, s%d, s%d' % (S_T, S_T, S_T + 1))
        k('s_lshl_b32 s%d, s%d, 7' % (S_T, S_T))
        k('s_add_u32 s%d, s%d, s%d' % (g.s_tmp, g.s_tmp, S_T))
        k('v_lshrrev_b32 v16, 2, v1')
        k('v_mul_u32_u24 v16, %d, v16' % (F * 2))
        k('v_and_b32 v17, 3, v1')
        k('v_lshl_add_u32 v16, v17, 7, v16')
        for g_ in range(W1_LG, 8):
            k('s_mul_i32 s%d, s%d, 56' % (S_T, S_GC + g_))
            k('s_add_u32 s%d, s%d, s%d' % (S_T, S_T, g.s_tmp))
            k('buffer_load_dword v%d, v16, %s, s%d offen' % (26 + g_, srd(SRD_W1), S_T))
    k('s_lshr_b32 s%d, s2, 3' % g.s_tmp)
    k('s_sub_u32 s%d, s%d, 28' % (g.s_tmp, g.s_tmp))
    k('s_mul_i32 s%d, s%d, 28' % (g.s_tmp, g.s_tmp))
    k('s_add_u32 s%d, s%d, s3' % (g.s_tmp, g.s_tmp))
    k('s_lshl_b32 s%d, s%d, 16' % (g.s_tmp, g.s_tmp))
    k('s_and_b32 s%d, s2, 7' % g.s_t2)
    k('s_lshl_b32 s%d, s%d, 9' % (g.s_t2, g.s_t2))
    k('s_add_u32 s%d, s%d, s%d' % (g.s_tmp, g.s_tmp, g.s_t2))
    k('v_lshrrev_b32 v16, 2, v1')
    k('v_lshlrev_b32 v16, 12, v16')
    k('v_and_b32 v17, 3, v1')
    k('v_lshl_add_u32 v16, v17, 7, v16')
    for i in range(7):
        k('s_lshl_b32 s%d, s%d, 6' % (S_T, S_GD + i))
        k('s_add_u32 s%d, s%d, s%d' % (S_T, S_T, g.s_tmp))
        k('buffer_load_dword v%d, v16, %s, s%d offen' % (18 + i, srd(SRD_W2), S_T))
        k.wait_vm(AGENT_DEPTH - 1)
    k.wait_vm(0)
    if AGENT_HH:
        k('s_lshr_b32 s%d, s2, 3' % g.s_tmp)
        k('s_sub_u32 s%d, s%d, 28' % (g.s_tmp, g.s_tmp))
        k('s_lshl_b32 s%d, s%d, 2' % (g.s_tmp, g.s_tmp))
        k('s_add_u32 s%d, s%d, s3' % (g.s_tmp, g.s_tmp))
        k('v_lshrrev_b32 v16, 3, v1')
        k('v_min_u32 v16, 6, v16')
        k('v_lshlrev_b32 v16, 12, v16')
        k('v_bfe_u32 v17, v1, 2, 1')
        k('v_lshl_add_u32 v16, v17, 7, v16')
        k('v_and_b32 v17, 3, v1')
        k('v_lshl_add_u32 v16, v17, 2, v16')
        k('s_lshl_b32 s%d, s%d, 8' % (g.s_t2, g.s_tmp))
        k('s_add_u32 s%d, s%d, 0x%x' % (g.s_t2, g.s_t2, FLAG_B))
        save = POLL_SLEEP
        globals()['POLL_SLEEP'] = 8
        flag_poll(k, 0, 16, g.s_t2)
        globals()['POLL_SLEEP'] = save
        k('v_lshlrev_b32 v16, 7, v1')
        k('s_lshl_b32 s%d, s%d, 13' % (g.s_tmp, g.s_tmp))
        k('s_add_u32 s%d, s%d, 0x%x' % (g.s_tmp, g.s_tmp, HH_OFF))
        for i, db in enumerate(AGENT_HH):
            k('s_add_u32 s%d, s%d, 0x%x' % (g.s_t2, g.s_tmp, db * 0x20000))
            k('buffer_load_dword v%d, v16, %s, s%d offen sc1' % (18 + i, srd(SRD_WS), g.s_t2))
        k.wait_vm(0)


class G:
    ACC = 16
    RING = 80
    NR = 16
    vW1, vW2 = 213, 214
    vRa, vRb = 215, 216
    vSa, vSb = 217, 218
    vCl = 5
    T = 220
    s_dtC, s_ft, s_dtD, s_st, s_tmp, s_t2, s_stage, s_a0, s_a1 = 64, 65, 66, 67, 68, 69, 70, 71, 72
    s_b0, s_b1 = 56, 57


def G_map(k):
    g = G
    k.c('---- C/D tile map')
    k('s_lshr_b32 s%d, s2, 3' % g.s_tmp)
    k('s_mul_i32 s%d, s%d, 37' % (g.s_t2, g.s_tmp))
    k('s_lshr_b32 s%d, s%d, 8' % (g.s_t2, g.s_t2))
    k('s_mul_i32 s%d, s%d, 7' % (g.s_dtC, g.s_t2))
    k('s_sub_u32 s%d, s%d, s%d' % (g.s_dtC, g.s_tmp, g.s_dtC))
    k('s_mov_b32 s%d, s%d' % (g.s_dtD, g.s_dtC))
    k('s_and_b32 s%d, s2, 7' % g.s_tmp)
    k('s_lshl_b32 s%d, s%d, 2' % (g.s_st, g.s_tmp))
    k('s_add_u32 s%d, s%d, s%d' % (g.s_st, g.s_st, g.s_t2))
    k('s_cmp_ge_u32 s%d, 4' % g.s_t2)
    k('s_cselect_b32 s%d, 99, s%d' % (g.s_st, g.s_st))
    k('s_mul_i32 s%d, s%d, 3' % (g.s_a0, g.s_tmp))
    k('s_add_u32 s%d, s%d, 4' % (g.s_a0, g.s_a0))
    k('s_lshl_b32 s%d, s%d, 2' % (g.s_a1, g.s_tmp))
    k('s_cmp_lt_u32 s%d, 4' % g.s_tmp)
    k('s_cselect_b32 s%d, s%d, s%d' % (g.s_ft, g.s_a1, g.s_a0))
    k('s_cselect_b32 s%d, 4, 3' % g.s_a0)
    k('s_add_u32 s%d, s%d, s%d' % (g.s_ft, g.s_ft, g.s_t2))
    k('s_cmp_ge_u32 s%d, s%d' % (g.s_t2, g.s_a0))
    k('s_cselect_b32 s%d, 99, s%d' % (g.s_ft, g.s_ft))


def G_w_setup(k, which, lds_base, per_wave):
    g = G
    t = TMP
    stride = F * 2 if which == 1 else S * 2
    krows = 512 if which == 1 else 448
    vW = g.vW1 if which == 1 else g.vW2
    va, vb = (g.vRa, g.vRb) if which == 1 else (g.vSa, g.vSb)
    s_tile = g.s_ft if which == 1 else g.s_st
    k('s_mul_i32 s%d, s3, %d' % (g.s_stage, per_wave))
    k('s_add_u32 s%d, s%d, %d' % (g.s_stage, g.s_stage, lds_base))
    k('v_lshrrev_b32 v%d, 3, v1' % t)
    k('v_mul_u32_u24 v%d, %d, v%d' % (vW, stride, t))
    k('v_and_b32 v%d, 1, v3' % t)
    k('v_lshlrev_b32 v%d, 2, v%d' % (t, t))
    k('v_and_b32 v%d, 7, v1' % (t + 1))
    k('v_xor_b32 v%d, v%d, v%d' % (t, t, t + 1))
    k('v_lshl_add_u32 v%d, v%d, 4, v%d' % (vW, t, vW))
    k('s_mul_i32 s%d, s3, %d' % (g.s_tmp, krows * stride))
    k('s_lshl_b32 s%d, s%d, 7' % (g.s_t2, s_tile))
    k('s_add_u32 s%d, s%d, s%d' % (g.s_tmp, g.s_tmp, g.s_t2))
    k('s_cmp_ge_u32 s%d, 99' % s_tile)
    k('s_cselect_b32 s%d, 0x%x, s%d' % (g.s_tmp, OOB, g.s_tmp))
    k('v_add_u32 v%d, s%d, v%d' % (vW, g.s_tmp, vW))
    if which == 1:
        k('s_cselect_b32 s%d, 0x%x, 0' % (g.s_tmp, OOB))
        k('v_add_u32 v%d, s%d, v4' % (g.vCl, g.s_tmp))
    k('v_lshrrev_b32 v%d, 5, v1' % t)
    k('v_lshlrev_b32 v%d, 9, v%d' % (va, t))
    k('v_bfe_u32 v%d, v1, 2, 2' % t)
    k('v_lshl_add_u32 v%d, v%d, 7, v%d' % (va, t, va))
    k('v_lshrrev_b32 v%d, 1, v%d' % (t, t))
    k('s_lshr_b32 s%d, s3, 1' % g.s_tmp)
    k('v_xor_b32 v%d, s%d, v%d' % (t, g.s_tmp, t))
    k('v_lshl_add_u32 v%d, v%d, 6, v%d' % (va, t, va))
    k('v_and_b32 v%d, 1, v3' % t)
    k('v_lshl_add_u32 v%d, v%d, 5, v%d' % (va, t, va))
    k('v_and_b32 v%d, 3, v1' % t)
    k('v_lshl_add_u32 v%d, v%d, 3, v%d' % (va, t, va))
    if CD2 and which == 1:
        k('s_and_b32 s%d, s3, 1' % g.s_tmp)
        k('s_lshl_b32 s%d, s%d, 5' % (g.s_tmp, g.s_tmp))
        k('v_xor_b32 v%d, s%d, v%d' % (va, g.s_tmp, va))
    k('v_add_u32 v%d, s%d, v%d' % (va, g.s_stage, va))
    k('v_xor_b32 v%d, 64, v%d' % (vb, va))


ROT = True
S_GC, S_GD = 94, 48


def G_rot_setup(k, which):
    n, base = (8, S_GC) if which == 1 else (7, S_GD)
    t = G.s_tmp
    if ROT in ('x', 'x2'):
        k('s_lshr_b32 s%d, s2, 3' % t)
        k('s_mul_i32 s%d, s%d, 37' % (t, t))
        k('s_lshr_b32 s%d, s%d, 8' % (t, t))
        k('s_and_b32 s%d, s%d, %d' % (t, t, 3 if ROT == 'x' else 1))
        for g_ in range(n):
            if n == 8 or g_ < 4:
                k('s_xor_b32 s%d, s%d, %d' % (base + g_, t, g_))
            elif g_ < 6:
                k('s_and_b32 s%d, s%d, 1' % (base + g_, t))
                k('s_xor_b32 s%d, s%d, %d' % (base + g_, base + g_, g_))
            else:
                k('s_mov_b32 s%d, %d' % (base + g_, g_))
            k('s_lshl_b32 s%d, s%d, 12' % (base + g_, base + g_))
        return
    if ROT == 'q':
        k('s_lshr_b32 s%d, s2, 3' % t)
        k('s_mul_i32 s%d, s%d, 37' % (t, t))
        k('s_lshr_b32 s%d, s%d, 8' % (t, t))
        k('s_and_b32 s%d, s%d, 3' % (t, t))
        k('s_mul_i32 s%d, s%d, %d' % (t, t, n))
        k('s_add_u32 s%d, s%d, 2' % (t, t))
        k('s_lshr_b32 s%d, s%d, 2' % (t, t))
    elif ROT:
        k('s_and_b32 s%d, s2, 7' % t)
    else:
        k('s_mov_b32 s%d, 0' % t)
    for g_ in range(n):
        if g_:
            k('s_add_u32 s%d, s%d, 1' % (t, t))
        k('s_cmp_ge_u32 s%d, %d' % (t, n))
        k('s_cselect_b32 s%d, %d, 0' % (base + g_, n))
        k('s_sub_u32 s%d, s%d, s%d' % (t, t, base + g_))
        k('s_lshl_b32 s%d, s%d, 12' % (base + g_, t))


def G_w_dma(k, which, t0, nt, slot0, tag=None, bg=False):
    g = G
    stride = F * 2 if which == 1 else S * 2

    def one(i):
        slot = slot0 + i // 2
        assert slot < NSLOT
        k.wait_lg_tag('rd%d' % slot)
        k.slot_content = getattr(k, 'slot_content', {})
        k.slot_content[slot] = (which, t0 + i // 2, i % 2)
        k('s_add_u32 m0, s%d, %d' % (g.s_stage, slot0 * 2048 + i * 1024))
        t = t0 + i // 2
        k('s_mul_i32 s%d, s%d, %d' % (B.s_dma, (S_GC if which == 1 else S_GD) + t // 4, 64 * stride // 4096))
        k('s_add_u32 s%d, s%d, %d' % (B.s_dma, B.s_dma, (16 * (t % 4) + 8 * (i % 2)) * stride))
        k('buffer_load_dwordx4 v%d, %s, s%d offen lds' % (g.vW1 if which == 1 else g.vW2, srd(SRD_W1 if which == 1 else SRD_W2), B.s_dma), tag='slot%d' % slot)
    for i in range(2 * nt):
        if bg:
            k.bg_push(lambda i=i: one(i))
        else:
            one(i)


def W1_warm(k, vdst):
    g = G
    t = TMP
    k('s_lshr_b32 s%d, s2, 3' % g.s_tmp)
    k('s_lshl_b32 s%d, s%d, 2' % (g.s_tmp, g.s_tmp))
    k('s_add_u32 s%d, s%d, s3' % (g.s_tmp, g.s_tmp))
    if True:
        k('v_lshlrev_b32 v%d, 7, v1' % t)
        k('s_mul_i32 s%d, s%d, 3200' % (S_T, g.s_tmp))
        k('s_mov_b64 exec, 0x1ffffff')
        k('buffer_load_dword v234, v%d, %s, s%d offen' % (t, srd(SRD_WO), S_T))
        k('s_mov_b64 exec, -1')
    k('v_lshrrev_b32 v%d, 2, v1' % t)
    k('v_mul_u32_u24 v%d, %d, v%d' % (t, F * 2, t))
    k('v_and_b32 v%d, 3, v1' % (t + 1))
    k('v_lshl_add_u32 v%d, v%d, 7, v%d' % (t, t + 1, t))
    k('s_mul_i32 s%d, s%d, %d' % (g.s_tmp, g.s_tmp, 16 * F * 2))
    k('s_and_b32 s%d, s2, 7' % g.s_t2)
    k('s_mul_i32 s%d, s%d, 3' % (S_T, g.s_t2))
    k('s_add_u32 s%d, s%d, 4' % (S_T, S_T))
    k('s_lshl_b32 s%d, s%d, 2' % (S_T + 1, g.s_t2))
    k('s_min_u32 s%d, s%d, s%d' % (S_T, S_T, S_T + 1))
    k('s_lshl_b32 s%d, s%d, 7' % (S_T, S_T))
    k('s_add_u32 s%d, s%d, s%d' % (S_T, S_T, g.s_tmp))
    k('s_cmp_lt_u32 s%d, 4' % g.s_t2)
    k('s_cselect_b32 exec_lo, -1, 0x77777777')
    k('s_cselect_b32 exec_hi, -1, 0x77777777')
    if W1_LG < 8:
        k('s_lshr_b32 s%d, s2, 3' % g.s_tmp)
        k('s_sub_u32 s%d, s%d, s%d' % (g.s_tmp, g.s_tmp, g.s_t2))
        k('s_and_b32 s%d, s%d, 7' % (g.s_tmp, g.s_tmp))
        k('s_cmp_lt_u32 s%d, %d' % (g.s_tmp, W1_LG))
        k('s_cselect_b64 exec, exec, 0')
    k('buffer_load_dword v%d, v%d, %s, s%d offen' % (vdst, t, srd(SRD_W1), S_T))
    k('s_mov_b64 exec, -1')


def G_w_read(k, which, t, slot, areg):
    g = G
    va, vb = (g.vRa, g.vRb) if which == 1 else (g.vSa, g.vSb)
    sec = 1024
    assert k.slot_content[slot] == (which, t, 1), (k.slot_content[slot], which, t)
    k.wait_tag('slot%d' % slot)
    for i, v in enumerate((va, vb)):
        k('ds_read_b64_tr_b16 %s, v%d offset:%d' % (ar(areg + 4 * i, 2), v, slot * 2048), tag='rd%d' % slot)
        k('ds_read_b64_tr_b16 %s, v%d offset:%d' % (ar(areg + 4 * i + 2, 2), v, slot * 2048 + sec), tag='rd%d' % slot)


def G_a_setup(k, which):
    g = G
    nks = 128 if which == 1 else 112
    per = 32 if which == 1 else 28
    base = HH_OFF if which == 1 else U_OFF
    s_dt = g.s_dtC if which == 1 else g.s_dtD
    k('s_lshl_b32 s%d, s%d, 1' % (g.s_tmp, s_dt))
    k('s_and_b32 s%d, s3, 1' % g.s_t2)
    k('s_add_u32 s%d, s%d, s%d' % (g.s_a0, g.s_tmp, g.s_t2))
    k('s_xor_b32 s%d, s%d, 1' % (g.s_a1, g.s_a0))
    k('s_mul_i32 s%d, s3, %d' % (g.s_tmp, per * 1024))
    k('s_add_u32 s%d, s%d, 0x%x' % (g.s_tmp, g.s_tmp, base))
    for s_ in (g.s_a0, g.s_a1):
        k('s_mul_i32 s%d, s%d, %d' % (s_, s_, nks * 1024))
        k('s_add_u32 s%d, s%d, s%d' % (s_, s_, g.s_tmp))


def G_a_load(k, t, sc1='', vo=4, which=1):
    g = G
    if t % 4 == 0:
        gr = (S_GC if which == 1 else S_GD) + t // 4
        k('s_add_u32 s%d, s%d, s%d' % (g.s_b0, g.s_a0, gr))
        k('s_add_u32 s%d, s%d, s%d' % (g.s_b1, g.s_a1, gr))
    r = g.RING + 8 * (t % g.NR)
    for i, s_ in enumerate((g.s_b0, g.s_b1)):
        k('buffer_load_dwordx4 %s, v%d, %s, s%d offen offset:%d %s' % (vr(r + 4 * i, 4), vo, srd(SRD_WS), s_, (t % 4) * 1024, sc1))


def G_mfma(k, t, areg):
    g = G
    r = g.RING + 8 * (t % g.NR)
    for iw in range(2):
        for ia in range(2):
            L = 2 * iw + ia
            a = vr(g.ACC + 16 * L, 16)
            c = '0' if (t == 0 and L != 0) else a
            k('v_mfma_f32_32x32x16_bf16 %s, %s, %s, %s' % (a, ar(areg + 4 * iw, 4), vr(r + 4 * ia, 4), c))


def G_mfma_tail(k, ts, areg, order, writes):
    g = G
    pend = []
    for L in order:
        iw, ia = L >> 1, L & 1
        a = vr(g.ACC + 16 * L, 16)
        for n, t in enumerate(ts):
            r = g.RING + 8 * (t % g.NR)
            k('v_mfma_f32_32x32x16_bf16 %s, %s, %s, %s' % (a, ar(areg(t) + 4 * iw, 4), vr(r + 4 * ia, 4), a))
            if n >= 1:
                per = -(-len(pend) // (len(ts) - n))
                for f in pend[:per]:
                    f()
                pend = pend[per:]
        pend = pend + list(writes.get(L, []))
    for f in pend:
        f()


def C_init(k):
    g = G
    t = g.T
    k('v_lshrrev_b32 v%d, 5, v1' % t)
    k('v_lshlrev_b32 v%d, 3, v%d' % (t, t))
    k('s_lshl_b32 s%d, s%d, 7' % (g.s_tmp, g.s_ft))
    k('s_lshr_b32 s%d, s3, 1' % g.s_t2)
    k('s_lshl_b32 s%d, s%d, 6' % (g.s_t2, g.s_t2))
    k('s_add_u32 s%d, s%d, s%d' % (g.s_tmp, g.s_tmp, g.s_t2))
    for q in range(4):
        k('buffer_load_dwordx2 %s, v%d, %s, s%d offen offset:%d' % (vr(t + 2 + 2 * q, 2), t, srd(SRD_B1), g.s_tmp, 16 * q))


def C_init_finish(k):
    g = G
    t = g.T
    for q in range(4):
        for i in range(2):
            k('v_lshlrev_b32 v%d, 16, v%d' % (g.ACC + 4 * q + 2 * i, t + 2 + 2 * q + i))
            k('v_and_b32 v%d, 0xffff0000, v%d' % (g.ACC + 4 * q + 2 * i + 1, t + 2 + 2 * q + i))


def C_epi_addr(k):
    g = G
    t = g.T
    for L in range(1, 4):
        k('s_xor_b32 s%d, s3, %d' % (g.s_tmp, L))
        k('s_mul_i32 s%d, s%d, %d' % (g.s_tmp, g.s_tmp, STG_SZ))
        k('s_add_u32 s%d, s%d, %d' % (g.s_tmp, g.s_tmp, LDS_STG + (L - 1) * 4096))
        k('v_add_u32 v%d, s%d, v4' % (t + L, g.s_tmp))
    k('v_add_u32 v%d, s%d, v4' % (t, g.s_stage))
    k('s_lshl_b32 s%d, s%d, 1' % (g.s_tmp, g.s_dtC))
    k('s_and_b32 s%d, s3, 1' % g.s_t2)
    k('s_add_u32 s%d, s%d, s%d' % (g.s_tmp, g.s_tmp, g.s_t2))
    k('s_mul_i32 s%d, s%d, 112' % (g.s_tmp, g.s_tmp))
    k('s_lshl_b32 s%d, s%d, 2' % (g.s_t2, g.s_ft))
    k('s_add_u32 s%d, s%d, s%d' % (g.s_tmp, g.s_tmp, g.s_t2))
    k('s_and_b32 s%d, s3, 2' % g.s_t2)
    k('s_add_u32 s%d, s%d, s%d' % (g.s_tmp, g.s_tmp, g.s_t2))
    k('s_lshl_b32 s%d, s%d, 10' % (g.s_tmp, g.s_tmp))
    k('s_add_u32 s%d, s%d, 0x%x' % (g.s_tmp, g.s_tmp, U_OFF))
    c1 = -2.0 * 0.7978845608028654 * 1.4426950408889634
    c2 = c1 * 0.044715
    k('s_mov_b32 s88, %s' % f32(c1))
    k('s_mov_b32 s90, %s' % f32(c2))
    k('v_mov_b32 v%d, s88' % (t + 4))
    k('v_mov_b32 v%d, s88' % (t + 5))


def C_epi_writes(k):
    g = G
    t = g.T
    return {L: [lambda L=L, q=q: k('ds_write_b128 v%d, %s offset:%d' % (t + L, vr(g.ACC + 16 * L + 4 * q, 4), q * 1024))
                for q in range(4)] for L in range(1, 4)}


def C_epilogue(k, sc1=''):
    g = G
    t = g.T
    k.c('---- phase C epilogue')
    k.wait_lg(0)
    k.barrier()
    R = g.ACC + 16
    for q in range(4):
        for L in range(3):
            k('ds_read_b128 %s, v%d offset:%d' % (vr(R + 16 * L + 4 * q, 4), t, L * 4096 + q * 1024))
    sc = 88
    X2 = g.RING
    for half in range(2):
        for i in range(8 * half, 8 * half + 8, 2):
            a = g.ACC + i
            k('v_pk_add_f32 %s, %s, %s' % (vr(R + i, 2), vr(R + i, 2), vr(R + 16 + i, 2)))
            k('v_pk_add_f32 %s, %s, %s' % (vr(a, 2), vr(a, 2), vr(R + 32 + i, 2)))
        for i in range(8 * half, 8 * half + 8, 2):
            a = g.ACC + i
            k('v_pk_add_f32 %s, %s, %s' % (vr(a, 2), vr(a, 2), vr(R + i, 2)))
        for i in range(8 * half, 8 * half + 8, 2):
            a = g.ACC + i
            k('v_pk_mul_f32 %s, %s, %s' % (vr(X2 + i, 2), vr(a, 2), vr(a, 2)))
        for i in range(8 * half, 8 * half + 8, 2):
            k('v_pk_fma_f32 %s, %s, %s, %s op_sel_hi:[1,0,1]' % (vr(X2 + i, 2), vr(X2 + i, 2), sr(sc + 2, 2), vr(t + 4, 2)))
        for i in range(8 * half, 8 * half + 8, 2):
            k('v_pk_mul_f32 %s, %s, %s' % (vr(X2 + i, 2), vr(X2 + i, 2), vr(g.ACC + i, 2)))
        for i in range(8 * half, 8 * half + 8):
            k('v_exp_f32 v%d, v%d' % (X2 + i, X2 + i))
        for i in range(8 * half, 8 * half + 8, 2):
            k('v_pk_add_f32 %s, %s, 1.0 op_sel_hi:[1,0]' % (vr(X2 + i, 2), vr(X2 + i, 2)))
        for i in range(8 * half, 8 * half + 8):
            k('v_rcp_f32 v%d, v%d' % (X2 + i, X2 + i))
        for i in range(8 * half, 8 * half + 8, 2):
            k('v_pk_mul_f32 %s, %s, %s' % (vr(X2 + i, 2), vr(X2 + i, 2), vr(g.ACC + i, 2)))
        p = X2 + 16 + 4 * half
        for i in range(4):
            k('v_cvt_pk_bf16_f32 v%d, v%d, v%d' % (p + i, X2 + 8 * half + 2 * i, X2 + 8 * half + 2 * i + 1))
        k('buffer_store_dwordx4 %s, v%d, %s, s%d offen offset:%d %s' % (vr(p, 4), g.vCl, srd(SRD_WS), g.s_tmp, half * 1024, sc1), tag='ust')


def D_init(k, sc1=''):
    g = G
    t = g.T
    k('v_lshrrev_b32 v%d, 5, v1' % t)
    k('v_lshlrev_b32 v%d, 3, v%d' % (t, t))
    k('s_lshl_b32 s%d, s%d, 7' % (g.s_tmp, g.s_st))
    k('s_lshr_b32 s%d, s3, 1' % g.s_t2)
    k('s_lshl_b32 s%d, s%d, 6' % (g.s_t2, g.s_t2))
    k('s_add_u32 s%d, s%d, s%d' % (g.s_tmp, g.s_tmp, g.s_t2))
    for q in range(4):
        k('buffer_load_dwordx2 %s, v%d, %s, s%d offen offset:%d' % (vr(t + 2 + 2 * q, 2), t, srd(SRD_B2), g.s_tmp, 16 * q))


def D_init_finish(k):
    g = G
    t = g.T
    for q in range(4):
        for i in range(2):
            a = g.ACC + 4 * q + 2 * i
            k('v_lshlrev_b32 v%d, 16, v%d' % (a, t + 2 + 2 * q + i))
            k('v_and_b32 v%d, 0xffff0000, v%d' % (a + 1, t + 2 + 2 * q + i))
            k('v_lshlrev_b32 v%d, 16, v%d' % (t + 18, B.HK + 2 * q + i))
            k('v_and_b32 v%d, 0xffff0000, v%d' % (t + 19, B.HK + 2 * q + i))
            k('v_pk_add_f32 %s, %s, %s' % (vr(a, 2), vr(a, 2), vr(t + 18, 2)))


def D_epilogue(k, lds_red, stride):
    g = G
    t = g.T
    k.c('---- phase D epilogue')
    k('v_lshrrev_b32 v%d, 5, v1' % t)
    k('v_lshlrev_b32 v%d, 10, v%d' % (t, t))
    k('v_and_b32 v%d, 31, v1' % (t + 1))
    k('v_lshl_add_u32 v%d, v%d, 2, v%d' % (t, t + 1, t))
    k('s_lshr_b32 s%d, s3, 1' % g.s_t2)
    k('s_lshl_b32 s%d, s%d, 13' % (g.s_tmp, g.s_t2))
    k('s_and_b32 s%d, s3, 1' % g.s_t2)
    k('s_lshl_b32 s%d, s%d, 7' % (g.s_t2, g.s_t2))
    k('s_add_u32 s%d, s%d, s%d' % (g.s_tmp, g.s_tmp, g.s_t2))
    k('v_add_u32 v%d, s%d, v%d' % (t, g.s_tmp, t))
    k('v_xor_b32 v%d, 128, v%d' % (t + 1, t))
    k('v_xor_b32 v%d, 0x2000, v%d' % (t + 2, t))
    k('v_xor_b32 v%d, 0x2080, v%d' % (t + 3, t))
    k('s_mul_i32 s%d, s3, %d' % (g.s_tmp, stride))
    k('s_add_u32 s%d, s%d, %d' % (g.s_tmp, g.s_tmp, lds_red))
    for L in range(4):
        k('v_add_u32 v%d, s%d, v%d' % (t + L, g.s_tmp, t + L))
    k('s_lshl_b32 s%d, s3, 12' % g.s_tmp)
    k('s_add_u32 s%d, s%d, %d' % (g.s_tmp, g.s_tmp, lds_red))
    k('v_add_u32 v%d, s%d, v4' % (t + 4, g.s_tmp))
    k('v_add_u32 v%d, %d, v%d' % (t + 6, 2 * stride, t + 4))
    k('v_mul_u32_u24 v%d, 896, v3' % (t + 5))
    k('v_lshl_add_u32 v%d, v2, 3, v%d' % (t + 5, t + 5))
    k('s_lshl_b32 s%d, s%d, 2' % (g.s_tmp, g.s_st))
    k('s_add_u32 s%d, s%d, s3' % (g.s_tmp, g.s_tmp))
    k('s_mul_i32 s%d, s%d, %d' % (g.s_tmp, g.s_tmp, 16 * 896))
    k('s_lshl_b32 s%d, s%d, 7' % (g.s_t2, g.s_dtD))
    k('s_add_u32 s%d, s%d, s%d' % (g.s_tmp, g.s_tmp, g.s_t2))
    k('s_add_u32 s%d, s%d, %d' % (g.s_t2, g.s_tmp, 8 * 896))


def D_epi_writes(k):
    g = G
    t = g.T
    return {L: [lambda L=L, q=q, r=r: k('ds_write2st64_b32 v%d, v%d, v%d offset0:%d offset1:%d' % (
        t + L, g.ACC + 16 * L + 4 * q + r, g.ACC + 16 * L + 4 * q + r + 1, 8 * q + r, 8 * q + r + 1))
        for q in range(4) for r in (0, 2)] for L in range(4)}


def D_epilogue2(k, stride):
    g = G
    t = g.T
    k.wait_lg(0)
    k.barrier()
    R = g.ACC
    for i in range(4):
        for w in range(4):
            k('ds_read_b128 %s, v%d offset:%d' % (vr(R + 16 * i + 4 * w, 4), t + 4 if w < 2 else t + 6, (w & 1) * stride + i * 1024))
    for i in range(4):
        r = R + 16 * i
        for j in (0, 2):
            k('v_pk_add_f32 %s, %s, %s' % (vr(r + j, 2), vr(r + j, 2), vr(r + 4 + j, 2)))
            k('v_pk_add_f32 %s, %s, %s' % (vr(r + 8 + j, 2), vr(r + 8 + j, 2), vr(r + 12 + j, 2)))
        for j in (0, 2):
            k('v_pk_add_f32 %s, %s, %s' % (vr(r + j, 2), vr(r + j, 2), vr(r + 8 + j, 2)))
        k('v_cvt_pk_bf16_f32 v%d, v%d, v%d' % (r + 4, r, r + 1))
        k('v_cvt_pk_bf16_f32 v%d, v%d, v%d' % (r + 5, r + 2, r + 3))
        k('buffer_store_dwordx2 %s, v%d, %s, s%d offen offset:%d' % (vr(r + 4, 2), t + 5, srd(SRD_OUT), g.s_t2 if i >= 2 else g.s_tmp, (i % 2) * 4 * 896))
```

```python
import struct
from dsl import Kernel, vr, ar, sr, classify

S, D, H, DH, F = 2048, 448, 16, 28, 1792

OF_OFF = 0x000000
HH_OFF = 0x200000
U_OFF = 0x3C0000
STAT_OFF = 0x548000
FLAG_OFF = 0x5C8000
WS_SIZE = 0x610000
OOB = 0x40000000

SRD_X, SRD_WQKV, SRD_WO, SRD_W1, SRD_W2, SRD_B1, SRD_B2, SRD_OUT, SRD_WS, SRD_DBG = 8, 12, 16, 20, 24, 28, 32, 36, 40, 44
SRD_A = 96
S_WG, S_WAVE = 2, 3
S_EPOCH = 4
S_SPIN = 6
S_ONES = 5
S_T = 86
V_LANE, V_T16, V_G, V_L16 = 1, 2, 3, 4


def f32(x):
    return '0x%08x' % struct.unpack('<I', struct.pack('<f', x))[0]


def srd(base):
    return sr(base, 4)


def prologue(k, nwg, end_label, need):
    k('s_cmp_ge_u32 s2, %d' % nwg)
    k('s_cbranch_scc1 %s' % end_label)
    if getattr(k, 'xcctest', False):
        k('s_getreg_b32 s3, hwreg(HW_REG_XCC_ID)')
        k('s_and_b32 s3, s3, 15')
        k('s_and_b32 s4, s2, 7')
        k('s_cmp_eq_u32 s3, s4')
        k('s_cbranch_scc1 Lxcc_ok')
        for _ in range(8):
            k('s_sleep 127')
        k.raw('Lxcc_ok:')
    if getattr(k, 'scramble', False):
        k('s_and_b32 s3, s2, 7')
        k('s_lshl_b32 s3, s3, 5')
        k('s_lshr_b32 s2, s2, 3')
        k('s_or_b32 s2, s2, s3')
    for base, off, size in need:
        k('s_load_dwordx2 %s, s[0:1], %d' % (sr(base, 2), off))
    k('v_lshrrev_b32 v1, 6, v0')
    k('v_readfirstlane_b32 s3, v1')
    k('v_and_b32 v1, 63, v0')
    k('v_and_b32 v2, 15, v0')
    k('v_lshrrev_b32 v3, 4, v1')
    k('v_lshlrev_b32 v4, 4, v1')
    for base, off, size in need:
        k('s_mov_b32 s%d, 0x%x' % (base + 2, size))
        k('s_mov_b32 s%d, 0x00020000' % (base + 3))
    k('s_mov_b32 s%d, 0x3f803f80' % S_ONES)
    k('s_mov_b32 s%d, 0x200000' % S_SPIN)
    k.end_label = end_label


ARG = dict(x=(SRD_X, 0, S * D * 2), wqkv=(SRD_WQKV, 8, D * 3 * D * 2), wo=(SRD_WO, 16, D * D * 2),
           w1=(SRD_W1, 32, S * F * 2), b1=(SRD_B1, 40, F * 2), w2=(SRD_W2, 48, F * S * 2), b2=(SRD_B2, 56, S * 2),
           out=(SRD_OUT, 64, S * D * 2), dbg=(SRD_DBG, 72, 256), ws=(SRD_WS, 80, WS_SIZE))


def xgroup_reduce(k, regs, tmp, op='v_add_f32'):
    for swap in ('v_permlane32_swap_b32', 'v_permlane16_swap_b32'):
        for r, t in zip(regs, tmp):
            k('v_mov_b32 v%d, v%d' % (t, r))
        for r, t in zip(regs, tmp):
            k('%s v%d, v%d' % (swap, r, t))
        for r, t in zip(regs, tmp):
            k('%s v%d, v%d, v%d' % (op, r, r, t))


A_LDS_CS = 0
A_LDS_ST = 512
A_LDS_KV = 2048
A_LDS_W = 12288
A_LDS_X = 61440
A_XSLOT = [2, 1, 0, 3]
A_LDS_END = A_LDS_X + 4 * 18432
LDS_STG = 12288
STG_SZ = 36864
NSLOT = 18
LDS_END = 163840
LDS_WO = 106496
TMP = 219


def xslot(grp):
    return A_XSLOT.index(grp % 4) * 18432


def phaseA(k, sc1='', hooks=None):
    hooks = hooks or {}
    XR = 16
    ACC = 136
    WF = 88
    ONES = 40
    SQ, SM = 48, 60
    vXl, vXu, vXh, vW, vA0, vA1, vH1, vH2 = 120, 121, 122, 123, 124, 125, 126, 127
    vRe, vRo, vHe, vHo = 128, 129, 130, 131
    vT = 237
    BP, BC, BPA = 240, 244, 248
    s_rb, s_head, s_t0, s_m0w, s_m0x, s_tmp = 48, 49, 50, 51, 52, 53
    s_hm = 54
    s_m0h = 7
    s_hv = S_HV
    s_o0, s_o1 = 62, 63

    def hook(name):
        if name in hooks:
            hooks[name]()

    def xreg(j, blk):
        return XR + (j % 2) * 12 + blk * 4

    def acc(blk, nbi):
        return ACC + blk * 24 + nbi * 4
    H1, H2 = ACC + 48, ACC + 52

    k.c('---- phase A setup')
    k('s_bfe_u32 s%d, s2, 0x20001' % s_rb)
    k('s_lshl_b32 s%d, s%d, 2' % (s_rb, s_rb))
    k('s_lshr_b32 s%d, s2, 6' % s_tmp)
    k('s_add_u32 s%d, s%d, s%d' % (s_rb, s_rb, s_tmp))
    k('s_bfe_u32 s%d, s2, 0x30003' % s_head)
    k('s_and_b32 s%d, s2, 1' % s_tmp)
    k('s_lshl_b32 s%d, s%d, 3' % (s_tmp, s_tmp))
    k('s_add_u32 s%d, s%d, s%d' % (s_head, s_head, s_tmp))
    k('v_lshrrev_b32 v%d, 2, v1' % vT)
    k('v_mul_u32_u24 v%d, 2688, v%d' % (vW, vT))
    k('v_lshrrev_b32 v%d, 5, v1' % vT)
    k('v_lshlrev_b32 v%d, 1, v%d' % (vT, vT))
    k('v_and_b32 v%d, 3, v1' % (vT + 1))
    k('v_xor_b32 v%d, v%d, v%d' % (vT, vT, vT + 1))
    k('v_lshl_add_u32 v%d, v%d, 4, v%d' % (vW, vT, vW))
    k('s_mul_i32 s%d, s%d, 56' % (s_tmp, s_head))
    k('s_min_u32 s%d, s%d, 832' % (s_tmp, s_tmp))
    k('s_mul_i32 s%d, s3, %d' % (s_m0w, 16 * 2688))
    k('s_add_u32 s%d, s%d, s%d' % (s_tmp, s_tmp, s_m0w))
    k('v_add_u32 v%d, s%d, v%d' % (vW, s_tmp, vW))
    k('s_lshr_b32 s%d, s3, 1' % s_tmp)
    k('s_mul_i32 s%d, s%d, 6144' % (s_m0w, s_tmp))
    k('s_and_b32 s%d, s3, 1' % s_tmp)
    k('s_lshl_b32 s%d, s%d, 10' % (s_tmp, s_tmp))
    k('s_add_u32 s%d, s%d, s%d' % (s_m0w, s_m0w, s_tmp))
    k('v_lshrrev_b32 v%d, 3, v1' % vT)
    k('v_mul_u32_u24 v%d, 896, v%d' % (vXh, vT))
    k('v_and_b32 v%d, 7, v1' % vT)
    k('v_xor_b32 v%d, v%d, v3' % (vT, vT))
    k('v_lshl_add_u32 v%d, v%d, 4, v%d' % (vXl, vT, vXh))
    k('s_lshl_b32 s%d, s%d, 7' % (s_t0, s_rb))
    k('s_lshl_b32 s%d, s3, 5' % s_tmp)
    k('s_add_u32 s%d, s%d, s%d' % (s_tmp, s_tmp, s_t0))
    k('s_mul_i32 s%d, s%d, 896' % (s_tmp, s_tmp))
    k('v_xor_b32 v%d, 64, v%d' % (vXu, vXl))
    k('v_add_u32 v%d, s%d, v%d' % (vXl, s_tmp, vXl))
    k('s_add_u32 s%d, s%d, %d' % (s_tmp, s_tmp, 8 * 896))
    k('v_add_u32 v%d, s%d, v%d' % (vXu, s_tmp, vXu))
    k('s_lshl_b32 s%d, s3, 1' % s_tmp)
    k('v_xor_b32 v%d, s%d, v%d' % (vT, s_tmp, vT))
    k('v_lshl_add_u32 v%d, v%d, 4, v%d' % (vXh, vT, vXh))
    k('s_lshl_b32 s%d, s3, 2' % s_tmp)
    k('s_add_u32 s%d, s%d, s%d' % (s_tmp, s_tmp, s_t0))
    k('s_sub_u32 s%d, s%d, 16' % (s_tmp, s_tmp))
    k('s_mul_i32 s%d, s%d, 896' % (s_tmp, s_tmp))
    k('s_cmp_eq_u32 s%d, 0' % s_rb)
    k('s_cselect_b32 s%d, 0x%x, s%d' % (s_tmp, OOB, s_tmp))
    k('v_add_u32 v%d, s%d, v%d' % (vXh, s_tmp, vXh))
    k('s_lshl_b32 s%d, s3, 12' % s_m0x)
    k('s_add_u32 s%d, s%d, %d' % (s_m0x, s_m0x, A_LDS_X + 2048))
    k('s_lshl_b32 s%d, s3, 9' % s_m0h)
    k('s_cmp_eq_u32 s3, 0')
    k('s_cselect_b32 s%d, 0xffffff00, -1' % s_hm)
    k('s_mov_b32 s%d, 0' % (s_hm + 1))

    def dma_group(grp, bg=False):
        tag = 'G%d' % grp
        sd = B.s_dma

        def w_(p):
            k('s_add_u32 m0, s%d, %d' % (s_m0w, A_LDS_W + (grp % 4) * 12288 + p * 2048))
            k('s_mov_b32 s%d, %d' % (sd, grp * 64 * 2688 + p * 896))
            k('buffer_load_dwordx4 v%d, %s, s%d offen lds' % (vW, srd(SRD_WQKV), sd), tag=tag)

        def x_(i):
            k('s_add_u32 m0, s%d, %d' % (s_m0x, xslot(grp) + i * 1024))
            k('s_mov_b32 s%d, %d' % (sd, grp * 128 + (i >> 1) * 16 * 896))
            k('buffer_load_dwordx4 v%d, %s, s%d offen lds' % (vXu if i & 1 else vXl, srd(SRD_X), sd), tag=tag)

        def h_():
            k('s_add_u32 m0, s%d, %d' % (s_m0h, A_LDS_X + xslot(grp)))
            k('s_mov_b32 s%d, %d' % (sd, grp * 128))
            k('s_mov_b64 exec, %s' % sr(s_hm, 2))
            k('buffer_load_dwordx4 v%d, %s, s%d offen lds' % (vXh, srd(SRD_X), sd), tag=tag)
            k('s_mov_b64 exec, -1')
        fs = [lambda p=p: w_(p) for p in range(3)] + [lambda i=i: x_(i) for i in range(4)] + [h_]
        for f in fs:
            if bg:
                k.bg_push(f)
            else:
                f()

    def warm():
        k('s_bfe_u32 s%d, s2, 0x30003' % s_tmp)
        k('s_add_u32 s%d, s%d, 1' % (S_T, s_tmp))
        k('s_lshr_b32 s%d, s%d, 1' % (S_T, S_T))
        k('s_lshr_b32 s%d, s2, 6' % (S_T + 1))
        k('s_mul_i32 s%d, s%d, 5' % (S_T + 1, S_T + 1))
        k('s_add_u32 s%d, s%d, s%d' % (S_T, S_T, S_T + 1))
        k('s_lshl_b32 s%d, s%d, 2' % (S_T, S_T))
        k('s_add_u32 s%d, s%d, s3' % (s_tmp, S_T))
        k('s_mov_b32 s%d, s%d' % (S_WR, s_tmp))
        k('s_mov_b32 s%d, 0x2a54' % S_T)
        k('s_bitcmp1_b32 s%d, s%d' % (S_T, s_head))
        k('s_cselect_b32 s%d, 0x%x, %s' % (s_hv, OOB, '0' if WARM0 else '0x%x' % OOB))
        NL = -(-(448 - WROW) * 12 // 80)
        k('s_mul_i32 s%d, s%d, %d' % (S_T, s_tmp, NL))
        for rep in range(2 if NL > 64 else 1):
            k('v_add_u32 v%d, s%d, v1' % (vT, S_T))
            if rep:
                k('v_add_u32 v%d, 64, v%d' % (vT, vT))
            k('v_mul_u32_u24 v%d, 43691, v%d' % (vT + 1, vT))
            k('v_lshrrev_b32 v%d, 19, v%d' % (vT + 1, vT + 1))
            k('v_mul_u32_u24 v%d, 12, v%d' % (vT + 2, vT + 1))
            k('v_sub_u32 v%d, v%d, v%d' % (vT + 2, vT, vT + 2))
            k('v_lshrrev_b32 v%d, 2, v%d' % (vT + 2, vT + 2))
            k('v_mul_u32_u24 v%d, 896, v%d' % (vT + 2, vT + 2))
            k('v_mul_u32_u24 v%d, 2688, v%d' % (vT + 1, vT + 1))
            k('v_and_b32 v%d, 3, v%d' % (vT, vT))
            k('v_lshlrev_b32 v%d, 7, v%d' % (vT, vT))
            k('v_add3_u32 v%d, v%d, v%d, v%d' % (vT, vT, vT + 1, vT + 2))
            k('v_add_u32 v%d, s%d, v%d' % (vT, s_hv, vT))
            k('s_and_b32 s%d, s2, 1' % (S_T + 1))
            k('s_mul_i32 s%d, s%d, 384' % (S_T + 1, S_T + 1))
            k('s_add_u32 s%d, s%d, %d' % (S_T + 1, S_T + 1, WROW * 2688))
            nl = min(NL - 64 * rep, 64)
            m = (1 << nl) - 1
            k('s_mov_b32 exec_lo, 0x%x' % (m & 0xffffffff))
            k('s_mov_b32 exec_hi, 0x%x' % (m >> 32))
            k('buffer_load_dword v%d, v%d, %s, s%d offen' % (232 - rep, vT, srd(SRD_WQKV), S_T + 1))
            k('s_mov_b64 exec, -1')
        k('v_lshlrev_b32 v%d, 7, v1' % vT)
        k('v_add_u32 v%d, s%d, v%d' % (vT + 1, s_hv, vT))
        k('s_mul_i32 s%d, s%d, %d' % (S_T, s_tmp, 47 * 128))
        k('s_bfe_u32 s%d, s2, 0x20001' % (S_T + 1))
        k('s_mul_i32 s%d, s%d, %d' % (S_T + 1, S_T + 1, 512 * 896))
        k('s_add_u32 s%d, s%d, s%d' % (S_T, S_T, S_T + 1))
        k('s_max_u32 s%d, s%d, %d' % (S_T, S_T, 16 * 896))
        k('s_sub_u32 s%d, s%d, %d' % (S_T, S_T, 16 * 896))
        k('s_mov_b32 exec_hi, 0x7fff')
        k('buffer_load_dword v233, v%d, %s, s%d offen' % (vT + 1, srd(SRD_X), S_T))
        k('s_getpc_b64 %s' % sr(S_T, 2))
        k.raw('Lpc_%s:' % k.name)
        k('s_mul_i32 s%d, s%d, 384' % (s_tmp, s_tmp))
        k('v_add_u32 v%d, s%d, v%d' % (vT, s_tmp, vT))
        k('v_min_u32 v%d, %s-Lpc_%s, v%d' % (vT, k.end_label, k.name, vT))
        k('s_mov_b64 exec, 7')
        k('global_load_dword v236, v%d, %s' % (vT, sr(S_T, 2)))
        k('s_mov_b64 exec, -1')

    hook('A_pre')
    pre, post = START_ORDER.split('|')
    for ch in pre:
        warm() if ch == 'w' else dma_group(int(ch))
    k('v_mul_u32_u24 v%d, 18432, v3' % vT)
    k('v_lshl_add_u32 v%d, v2, 3, v%d' % (vT, vT))
    k('v_mov_b32 v%d, s%d' % (vT + 1, S_ONES))
    k('v_add_u32 v%d, %d, v%d' % (vT, A_LDS_X, vT))
    k('ds_write2_b32 v%d, v%d, v%d offset0:0 offset1:1' % (vT, vT + 1, vT + 1))
    hook('A_after_issue')

    k('v_lshlrev_b32 v%d, 9, v3' % vA0)
    k('v_bfe_u32 v%d, v1, 2, 2' % vT)
    k('v_lshl_add_u32 v%d, v%d, 6, v%d' % (vA0, vT, vA0))
    k('v_and_b32 v%d, 3, v1' % vT)
    k('v_lshl_add_u32 v%d, v%d, 3, v%d' % (vA0, vT, vA0))
    k('v_and_b32 v%d, 1, v3' % vT)
    k('v_lshlrev_b32 v%d, 5, v%d' % (vT, vT))
    k('v_add_u32 v%d, v%d, v%d' % (vA0, vA0, vT))
    k('v_add_u32 v%d, %d, v%d' % (vA0, A_LDS_W, vA0))
    k('v_xor_b32 v%d, 32, v%d' % (vA1, vA0))
    k('s_and_b32 s%d, s3, 1' % s_tmp)
    k('s_lshl_b32 s%d, s%d, 5' % (s_tmp, s_tmp))
    k('v_xor_b32 v%d, s%d, v%d' % (vH2, s_tmp, vA0))
    k('s_lshr_b32 s%d, s3, 1' % s_tmp)
    k('s_lshl_b32 s%d, s%d, 11' % (s_tmp, s_tmp))
    k('s_add_u32 s%d, s%d, 2048' % (s_tmp, s_tmp))
    k('v_add_u32 v%d, s%d, v%d' % (vH1, s_tmp, vH2))
    k('v_lshrrev_b32 v%d, 1, v2' % vT)
    k('v_xor_b32 v%d, v%d, v3' % (vT, vT))
    k('v_lshlrev_b32 v%d, 4, v%d' % (vT, vT))
    k('v_lshl_add_u32 v%d, v2, 7, v%d' % (vT, vT))
    k('v_add_u32 v%d, %d, v%d' % (vHe, A_LDS_X, vT))
    k('v_xor_b32 v%d, 64, v%d' % (vHo, vHe))
    k('v_add_u32 v%d, s%d, v%d' % (vRe, s_m0x, vT))
    k('v_xor_b32 v%d, 64, v%d' % (vRo, vRe))
    k('v_lshlrev_b32 v%d, 2, v3' % vT)
    k('v_sub_u32 v%d, v2, v%d' % (vT, vT))
    k('v_mov_b32 v%d, %s' % (vT + 2, f32(-1e30)))
    for which, base in ((16, BP), (0, BC)):
        for r in range(4):
            k('v_add_u32 v%d, %d, v%d' % (vT + 1, which - r, vT))
            k('v_and_b32 v%d, 0xfffffff1, v%d' % (vT + 1, vT + 1))
            k('v_cmp_eq_u32 vcc, 0, v%d' % (vT + 1))
            k('v_cndmask_b32 v%d, v%d, 0, vcc' % (base + r, vT + 2))
    k('s_or_b32 s%d, s%d, s3' % (s_tmp, s_rb))
    k('s_cmp_eq_u32 s%d, 0' % s_tmp)
    k('s_cselect_b64 vcc, -1, 0')
    for r in range(4):
        k('v_cndmask_b32 v%d, v%d, v%d, vcc' % (BPA + r, BP + r, vT + 2))
    for i in range(4):
        k('v_mov_b32 v%d, s%d' % (ONES + i, S_ONES))

    s_m = 88
    for i, mk in enumerate((0x22222222, 0x44444444, 0x88888888)):
        k('s_mov_b32 s%d, 0x%x' % (s_m + 2 * i, mk))
        k('s_mov_b32 s%d, 0x%x' % (s_m + 2 * i + 1, mk))
    vAd = 72
    k('v_lshlrev_b32 v%d, 4, v3' % vAd)
    k('s_lshl_b32 s%d, s3, 6' % s_tmp)
    k('v_add_u32 v%d, s%d, v%d' % (vAd + 1, s_tmp, vAd))
    k('s_and_b32 s%d, s%d, 64' % (s_tmp, s_tmp))
    k('v_add_u32 v%d, s%d, v%d' % (vAd + 2, s_tmp, vAd))
    k('s_mul_i32 s%d, s3, 384' % s_tmp)
    k('v_lshl_add_u32 v%d, v2, 2, s%d' % (vAd + 3, s_tmp))
    k('v_add_u32 v%d, s%d, v%d' % (vAd + 4, s_tmp, vAd))
    vK, vV = 80, 81
    k('s_and_b32 s%d, s3, 1' % s_tmp)
    k('s_lshl_b32 s%d, s%d, 3' % (s_tmp, s_tmp))
    k('v_add_u32 v%d, s%d, v4' % (vK, s_tmp))
    k('v_lshrrev_b32 v%d, 2, v2' % vV)
    k('v_lshlrev_b32 v%d, 8, v%d' % (vV, vV))
    k('v_lshl_add_u32 v%d, v3, 6, v%d' % (vV, vV))
    k('v_and_b32 v%d, 3, v2' % (vV + 1))
    k('v_lshl_add_u32 v%d, v%d, 1, v%d' % (vV, vV + 1, vV))
    k('v_add_u32 v%d, s%d, v%d' % (vV, s_tmp, vV))
    k('v_add_u32 v%d, 1024, v%d' % (vV, vV))
    k('s_cmp_lt_u32 s3, 2')
    k('s_cselect_b64 vcc, -1, 0')
    k('s_cselect_b32 s%d, 2, 16' % s_tmp)
    k('v_cndmask_b32 v%d, v%d, v%d, vcc' % (vK, vV, vK))
    k('v_add_u32 v%d, s%d, v%d' % (vK + 1, s_tmp, vK))
    k('v_add_u32 v%d, s%d, v%d' % (vK + 2, s_tmp, vK + 1))
    k('v_add_u32 v%d, s%d, v%d' % (vK + 3, s_tmp, vK + 2))
    k('v_lshlrev_b32 v%d, 2, v2' % (vAd + 5))
    k('s_lshl_b32 s%d, s3, 11' % s_tmp)
    k('v_add_u32 v%d, s%d, v4' % (vAd + 6, s_tmp))

    k('s_lshl_b32 s%d, s%d, 3' % (s_o0, s_rb))
    k('s_lshl_b32 s%d, s3, 1' % s_o1)
    k('s_add_u32 s%d, s%d, s%d' % (s_o0, s_o0, s_o1))
    k('s_lshl_b32 s%d, s%d, 4' % (s_o0, s_o0))
    k('s_add_u32 s%d, s%d, s%d' % (s_o0, s_o0, s_head))
    k('s_lshl_b32 s%d, s%d, 10' % (s_o0, s_o0))
    if OF_OFF:
        k('s_add_u32 s%d, s%d, 0x%x' % (s_o0, s_o0, OF_OFF))
    k('s_add_u32 s%d, s%d, 16384' % (s_o1, s_o0))

    frag_addr = [(vA0, 0), (vA1, 0), (vA0, 2048), (vA1, 2048), (vA0, 4096), (vA1, 4096), (vH1, 0), (vH2, 0)]

    def read_frag(f, j, h=None):
        va, off = frag_addr[f]
        o = (j % 8) * 6144 + off
        for hh in ((0, 1) if h is None else (h,)):
            k('ds_read_b64_tr_b16 %s, v%d offset:%d' % (vr(WF + 4 * f + 2 * hh, 2), va, o + 256 * hh))

    def read_x(j, blk=None):
        o = xslot(j // 2)
        for b_ in (range(3) if blk is None else (blk,)):
            if b_ < 2:
                k('ds_read_b128 %s, v%d offset:%d' % (vr(xreg(j, b_), 4), vRo if j & 1 else vRe, o + 2048 * b_))
            else:
                k('ds_read_b128 %s, v%d offset:%d' % (vr(xreg(j, 2), 4), vHo if j & 1 else vHe, o))

    for ch in post:
        warm() if ch == 'w' else dma_group(int(ch))
    T = XR
    RR = 132
    RH = 84
    HC = 224
    pre_ops = []

    def rr(blk):
        return RR + 2 * blk if blk < 2 else RH

    def cs_write():
        k('s_mov_b32 exec_lo, 0x00010001')
        k('s_mov_b32 exec_hi, 0x00010001')
        k('ds_write_b128 v%d, %s offset:%d' % (vAd + 1, vr(H1, 4), A_LDS_CS + 128))
        k('ds_write_b128 v%d, %s offset:%d' % (vAd + 2, vr(H2, 4), A_LDS_CS))
        k('s_mov_b64 exec, -1')

    def st_write():
        k('s_mov_b32 exec_lo, 0x00f0000f')
        k('s_mov_b32 exec_hi, 0xf0000f00')
        for blk in range(3):
            k('ds_write2_b32 v%d, v%d, v%d offset0:%d offset1:%d' % (vAd + 3, rr(blk), rr(blk) + 1,
                                                                   A_LDS_ST // 4 + 32 * blk, A_LDS_ST // 4 + 32 * blk + 16))
        k('s_mov_b64 exec, -1')

    def op(txt):
        pre_ops.append(lambda: k(txt))
    for i in range(3):
        for blk in range(3):
            op('v_cndmask_b32 v%d, v%d, v%d, %s' % (SQ + 4 * blk, SQ + 4 * blk, SQ + 4 * blk + 1 + i, sr(s_m + 2 * i, 2)))
    for blk in range(3):
        op('v_mul_f32 v%d, %s, v%d' % (rr(blk) + 1, f32(1.0 / D), SM + 4 * blk))
    for blk in range(3):
        op('v_mul_f32 v%d, v%d, v%d' % (rr(blk), rr(blk) + 1, rr(blk) + 1))
    for blk in range(3):
        op('v_mul_f32 v%d, %s, v%d' % (SQ + 4 * blk, f32(1.0 / D), SQ + 4 * blk))
    pre_ops.append(cs_write)
    for blk in range(3):
        op('v_sub_f32 v%d, v%d, v%d' % (rr(blk), SQ + 4 * blk, rr(blk)))
    for blk in range(3):
        op('v_max_f32 v%d, 0, v%d' % (rr(blk), rr(blk)))
    for blk in range(3):
        op('v_add_f32 v%d, %s, v%d' % (rr(blk), f32(1e-5), rr(blk)))
    for blk in range(3):
        op('v_rsq_f32 v%d, v%d' % (rr(blk), rr(blk)))
    pre_ops.append(st_write)
    for r in range(4):
        op('v_mov_b32_dpp v%d, v%d row_newbcast:0 row_mask:0xf bank_mask:0xf' % (HC + r, H1 + r))
    for r in range(4):
        op('v_fma_f32 v%d, -v%d, v%d, v%d' % (HC + r, HC + r, RH + 1, H1 + r))

    def keep_masks():
        k('s_cmp_eq_u32 s%d, 15' % s_head)
        k('s_cselect_b32 s%d, 0xffff0000, -1' % s_m)
        k('s_mov_b32 s%d, -1' % (s_m + 1))
        k('s_mov_b32 s%d, -1' % (s_m + 2))
        k('s_cselect_b32 s%d, -1, 0xffff' % (s_m + 3))
    pre_ops.append(keep_masks)

    stamp(k, 1)
    k.wait_tag('G0')
    k.wait_lg(0)
    k.barrier()
    stamp(k, 2)
    read_x(0)
    for f in range(8):
        read_frag(f, 0)
    dma_group(2, bg=True)
    k.lg_slack = 6
    for j in range(14):
        k.c('kstep %d' % j)
        if j + 1 < 14 and (j + 1) % 2 == 0:
            k.bg_flush()
            k.wait_tag('G%d' % ((j + 1) // 2))
            k.barrier()
            if (j + 5) // 2 < 7:
                dma_group((j + 5) // 2, bg=True)
            hook('A_b%d' % j)
        mf = []
        for f in range(8):
            w = vr(WF + 4 * f, 4)
            if f < 6:
                for blk in range(2):
                    a = vr(acc(blk, f), 4)
                    x = vr(xreg(j, blk), 4)
                    c = '0' if j == 0 else a
                    if f < 4:
                        mf.append(('v_mfma_f32_16x16x32_bf16 %s, %s, %s, %s' % (a, w, x, c), f if blk else -1))
                    else:
                        mf.append(('v_mfma_f32_16x16x32_bf16 %s, %s, %s, %s' % (a, x, w, c), f if blk else -1))
            else:
                a = vr(H1 if f == 6 else H2, 4)
                c = '0' if j == 0 else a
                mf.append(('v_mfma_f32_16x16x32_bf16 %s, %s, %s, %s' % (a, w, vr(xreg(j, 2), 4), c), f))
        for f in range(EXP_NSTAT):
            x = vr(xreg(j, f % 3), 4)
            a = vr((SQ if f < 3 else SM) + 4 * (f % 3), 4)
            mf.append(('v_mfma_f32_16x16x32_bf16 %s, %s, %s, %s' % (a, x if f < 3 else vr(ONES, 4), x, '0' if j == 0 else a), -1))
        fill = []
        if j + 1 < 14:
            fill += [lambda i=i: read_x(j + 1, i) for i in range(3)]
        if j == 13:
            mf = mf[14:] + mf[12:14] + mf[4:12] + mf[0:4]
        for i, (txt, done) in enumerate(mf):
            k(txt)
            if j == 13 and i >= 8:
                for f_ in pre_ops[:3]:
                    f_()
                del pre_ops[:3]
            if done >= 0 and j + 1 < 14 and done < EXP_NFRAG:
                fill += [lambda f=done, h=h: read_frag(f, j + 1, h) for h in range(2)]
            if fill:
                fill.pop(0)()
            if i % 5 == 4:
                k.bg()
        for f_ in fill:
            f_()
        if j == 6:
            stamp(k, 3)

        hook('A_k%d' % j)

    k.lg_slack = 0
    k.c('---- phase A epilogue')
    stamp(k, 4)
    for f_ in pre_ops:
        f_()
    k.wait_lg(0)
    k.barrier()
    stamp(k, 40)
    hook('A_e1')
    CS = T + 32
    CSV = T + 48
    L2 = T + 16
    for blk in (1, 2, 0):
        k('ds_read_b32 v%d, v%d offset:%d' % (rr(blk), vAd + 3, A_LDS_ST + 128 * blk))
    for s_ in (2, 3):
        k('ds_read_b128 %s, v%d offset:%d' % (vr(CS + 4 * s_, 4), vAd, A_LDS_CS + 64 * s_))
    k('ds_read_b32 v%d, v%d offset:%d' % (CSV, vAd + 5, A_LDS_CS + 256))
    k('ds_read_b32 v%d, v%d offset:%d' % (CSV + 1, vAd + 5, A_LDS_CS + 320))
    for blk in (1, 0):
        k('ds_read_b128 %s, v%d offset:%d' % (vr(L2 + 8 * blk + 4, 4), vAd + 4, A_LDS_ST + blk * 128 + 64))
        k('ds_read_b128 %s, v%d offset:%d' % (vr(L2 + 8 * blk, 4), vAd + 4, A_LDS_ST + blk * 128))
    for s_ in (0, 1):
        k('ds_read_b128 %s, v%d offset:%d' % (vr(CS + 4 * s_, 4), vAd, A_LDS_CS + 64 * s_))
    RQ = T + 52
    qs = (DH ** -0.5) * 1.4426950408889634
    QT = T + 72
    KT = T + 80
    VV = T + 92

    def fix_qk(blk, nbi, scale_reg, dst):
        a = acc(blk, nbi)
        hi = scale_reg & 1
        for r in (0, 2):
            k('v_pk_fma_f32 %s, %s, %s, %s op_sel:[0,1,0] op_sel_hi:[1,1,1] neg_lo:[0,1,0] neg_hi:[0,1,0]' % (
                vr(a + r, 2), vr(CS + 4 * nbi + r, 2), vr(RR + 2 * blk, 2), vr(a + r, 2)))
        for r in (0, 2):
            k('v_pk_mul_f32 %s, %s, %s op_sel:[0,%d] op_sel_hi:[1,%d]' % (vr(a + r, 2), vr(a + r, 2), vr(scale_reg - hi, 2), hi, hi))
        k('v_cvt_pk_bf16_f32 v%d, v%d, v%d' % (dst, a, a + 1))
        k('v_cvt_pk_bf16_f32 v%d, v%d, v%d' % (dst + 1, a + 2, a + 3))
        k.bg()

    def fix_v(blk, nb):
        a = acc(blk, 4 + nb)
        for r in (0, 2):
            k('v_pk_fma_f32 %s, %s, %s, %s op_sel:[0,%d,0] op_sel_hi:[1,%d,1] neg_lo:[0,1,0] neg_hi:[0,1,0]' % (
                vr(a + r, 2), vr(L2 + 8 * blk + 4 + r, 2), vr(CSV, 2), vr(a + r, 2), nb, nb))
        for r in (0, 2):
            k('v_pk_mul_f32 %s, %s, %s' % (vr(a + r, 2), vr(a + r, 2), vr(L2 + 8 * blk + r, 2)))
        dst = VV + 6 * nb + 2 + 2 * blk
        k('v_cvt_pk_bf16_f32 v%d, v%d, v%d' % (dst, a, a + 1))
        k('v_cvt_pk_bf16_f32 v%d, v%d, v%d' % (dst + 1, a + 2, a + 3))
        k.bg()

    fix_qk(1, 2, RR + 2, KT + 8)
    fix_qk(1, 3, RR + 2, KT + 10)
    k('ds_write_b128 v%d, %s offset:%d' % (vAd + 6, vr(KT + 8, 4), A_LDS_KV + 2048))
    for r in (0, 2):
        k('v_pk_mul_f32 %s, %s, %s op_sel_hi:[1,0]' % (vr(HC + r, 2), vr(HC + r, 2), vr(RH, 2)))
    k('v_cvt_pk_bf16_f32 v%d, v%d, v%d' % (HC, HC, HC + 1))
    k('v_cvt_pk_bf16_f32 v%d, v%d, v%d' % (HC + 2, HC + 2, HC + 3))
    k('ds_write_b16 v%d, v%d offset:%d' % (vK, HC, A_LDS_KV))
    k('ds_write_b16_d16_hi v%d, v%d offset:%d' % (vK + 1, HC, A_LDS_KV))
    k('ds_write_b16 v%d, v%d offset:%d' % (vK + 2, HC + 2, A_LDS_KV))
    k('ds_write_b16_d16_hi v%d, v%d offset:%d' % (vK + 3, HC + 2, A_LDS_KV))
    fix_v(1, 0)
    fix_v(1, 1)
    k('ds_write_b64 v%d, %s offset:%d' % (vAd + 6, vr(VV + 4, 2), A_LDS_KV + 2048 + 1024))
    k('ds_write_b64 v%d, %s offset:%d' % (vAd + 6, vr(VV + 10, 2), A_LDS_KV + 2048 + 1024 + 8))
    for blk in range(2):
        k('v_mul_f32 v%d, %s, v%d' % (RQ + 2 * blk, f32(qs), RR + 2 * blk))
    for blk in range(2):
        k('v_cndmask_b32 v%d, 0, v%d, %s' % (RQ + 2 * blk + 1, RQ + 2 * blk, sr(s_m + 2, 2)))
        k('v_cndmask_b32 v%d, 0, v%d, %s' % (RQ + 2 * blk, RQ + 2 * blk, sr(s_m, 2)))
    fix_qk(0, 2, RR + 0, KT + 4)
    fix_qk(0, 3, RR + 0, KT + 6)
    k.wait_lg(0)
    k.barrier()
    stamp(k, 41)
    k('ds_read_b128 %s, v%d offset:%d' % (vr(KT, 4), vAd + 6, A_LDS_KV))
    k('ds_read_b64 %s, v%d offset:%d' % (vr(VV, 2), vAd + 6, A_LDS_KV + 1024))
    k('ds_read_b64 %s, v%d offset:%d' % (vr(VV + 6, 2), vAd + 6, A_LDS_KV + 1024 + 8))
    fix_qk(1, 0, RQ + 2, QT + 4)
    fix_qk(1, 1, RQ + 3, QT + 6)
    SS = T
    k('v_mfma_f32_16x16x32_bf16 %s, %s, %s, %s' % (vr(SS + 8, 4), vr(KT + 4, 4), vr(QT + 4, 4), vr(BP, 4)))
    k('v_mfma_f32_16x16x32_bf16 %s, %s, %s, %s' % (vr(SS + 12, 4), vr(KT + 8, 4), vr(QT + 4, 4), vr(BC, 4)))
    fix_qk(0, 0, RQ + 0, QT + 0)
    fix_qk(0, 1, RQ + 1, QT + 2)
    k('v_mfma_f32_16x16x32_bf16 %s, %s, %s, %s' % (vr(SS + 0, 4), vr(KT + 0, 4), vr(QT, 4), vr(BPA, 4)))
    k('v_mfma_f32_16x16x32_bf16 %s, %s, %s, %s' % (vr(SS + 4, 4), vr(KT + 4, 4), vr(QT, 4), vr(BC, 4)))
    fix_v(0, 0)
    fix_v(0, 1)
    MX = ACC
    TM = ACC + 2
    for blk in (1, 0):
        s_ = SS + 8 * blk
        k('v_max3_f32 v%d, v%d, v%d, v%d' % (MX + blk, s_, s_ + 1, s_ + 2))
        k('v_max3_f32 v%d, v%d, v%d, v%d' % (TM + blk, s_ + 3, s_ + 4, s_ + 5))
        k('v_max3_f32 v%d, v%d, v%d, v%d' % (MX + blk, MX + blk, s_ + 6, s_ + 7))
        k('v_max_f32 v%d, v%d, v%d' % (MX + blk, MX + blk, TM + blk))
    k.bg()
    xgroup_reduce(k, [MX, MX + 1], [TM, TM + 1], op='v_max_f32')
    k.bg_flush()
    stamp(k, 9)
    SUM = ACC + 4
    PP = ACC + 8
    OO = ACC + 16
    for blk in (1, 0):
        s_ = SS + 8 * blk
        for i in range(0, 8, 2):
            k('v_pk_add_f32 %s, %s, %s op_sel:[0,%d] op_sel_hi:[1,%d] neg_lo:[0,1] neg_hi:[0,1]' % (vr(s_ + i, 2), vr(s_ + i, 2), vr(MX, 2), blk, blk))
        for i in range(8):
            k('v_exp_f32 v%d, v%d' % (s_ + i, s_ + i))
        for i in range(4):
            k('v_cvt_pk_bf16_f32 v%d, v%d, v%d' % (PP + 4 * blk + i, s_ + 2 * i, s_ + 2 * i + 1))
        for nb in range(2):
            k('v_mfma_f32_16x16x32_bf16 %s, %s, %s, 0' % (vr(OO + 8 * blk + 4 * nb, 4), vr(VV + 6 * nb + 2 * blk, 4),
                                                          vr(PP + 4 * blk, 4)))
    for blk in range(2):
        s_ = SS + 8 * blk
        k('v_pk_add_f32 %s, %s, %s' % (vr(s_, 2), vr(s_, 2), vr(s_ + 2, 2)))
        k('v_pk_add_f32 %s, %s, %s' % (vr(s_ + 4, 2), vr(s_ + 4, 2), vr(s_ + 6, 2)))
    for blk in range(2):
        s_ = SS + 8 * blk
        k('v_pk_add_f32 %s, %s, %s' % (vr(s_, 2), vr(s_, 2), vr(s_ + 4, 2)))
    for blk in range(2):
        s_ = SS + 8 * blk
        k('v_add_f32 v%d, v%d, v%d' % (SUM + 2 * blk, s_, s_ + 1))
    xgroup_reduce(k, [SUM, SUM + 2], [TM, TM + 1])
    for blk in range(2):
        k('v_rcp_f32 v%d, v%d' % (SUM + 2 * blk, SUM + 2 * blk))
    for blk in range(2):
        k('v_cndmask_b32 v%d, 0, v%d, %s' % (SUM + 2 * blk + 1, SUM + 2 * blk, sr(s_m + 2, 2)))
        k('v_cndmask_b32 v%d, 0, v%d, %s' % (SUM + 2 * blk, SUM + 2 * blk, sr(s_m, 2)))
    for blk in range(2):
        o = OO + 8 * blk
        for r in (0, 2):
            k('v_pk_mul_f32 %s, %s, %s op_sel_hi:[1,0]' % (vr(o + r, 2), vr(o + r, 2), vr(SUM + 2 * blk, 2)))
        for r in (0, 2):
            k('v_pk_mul_f32 %s, %s, %s op_sel:[0,1] op_sel_hi:[1,1]' % (vr(o + 4 + r, 2), vr(o + 4 + r, 2), vr(SUM + 2 * blk, 2)))
        p = PP + 4 * blk
        for i in range(4):
            k('v_cvt_pk_bf16_f32 v%d, v%d, v%d' % (p + i, o + 2 * i, o + 2 * i + 1))
        k('buffer_store_dwordx4 %s, v4, %s, s%d offen %s' % (vr(p, 4), srd(SRD_WS), s_o0 if blk == 0 else s_o1, sc1), tag='ost')


STAMP_OFF = 0xA00000


DST = {5: 1, 10: 2, 15: 3, 16: 4, 22: 5, 24: 6, 29: 7}


def dstamp(k, idx, vtmp=253, stmp=74):
    if idx not in DST and idx != 0:
        return
    slot = DST.get(idx, 0)
    k('s_memrealtime %s' % sr(stmp, 2))
    k('s_cmp_eq_u32 s2, 131')
    k('s_cselect_b32 s%d, %d, %s' % (stmp + 4, 32 + 4 * slot, '0x%x' % OOB))
    if slot:
        k('s_cmp_eq_u32 s2, 0')
        k('s_cselect_b32 s%d, %d, s%d' % (stmp + 4, 4 * slot, stmp + 4))
    k('v_mov_b32 v%d, s%d' % (vtmp + 2, stmp + 4))
    k('v_mov_b32 v%d, s%d' % (vtmp, stmp))
    k('s_cmp_eq_u32 s3, 0')
    k('s_cselect_b64 exec, 1, 0')
    k('buffer_store_dword v%d, v%d, %s, 0 offen' % (vtmp, vtmp + 2, srd(SRD_DBG)))
    k('s_mov_b64 exec, -1')


def stamp(k, idx, vtmp=253, stmp=74):
    if getattr(k, 'stamps', False) == 'jit':
        L = k.newlabel('Ljit')
        k('s_lshl_b32 s74, s2, 2')
        k('s_add_u32 s74, s74, s3')
        k('s_mul_i32 s74, s74, 0x%x' % ((0x9E3779B1 * (idx + 1 + 64 * JIT_SEED)) & 0xffffffff | 1))
        k('s_lshr_b32 s74, s74, 29')
        k('s_cmp_lg_u32 s74, 0')
        k('s_cbranch_scc1 %s' % L)
        hist = [[h[0], h[1]] for h in k.hist]
        k('s_sleep 100')
        k.raw(L + ':')
        k.hist = k.hist + hist
        return
    if idx >= 32 or (STAMP_SET is not None and idx not in STAMP_SET):
        return
    if getattr(k, 'stamps', False) == 'dbg':
        return dstamp(k, idx, vtmp, stmp)
    if not getattr(k, 'stamps', False):
        return
    k('s_memrealtime %s' % sr(stmp, 2))
    k('s_memtime %s' % sr(stmp + 2, 2))
    k('s_lshl_b32 s%d, s2, 2' % (stmp + 4))
    k('s_add_u32 s%d, s%d, s3' % (stmp + 4, stmp + 4))
    k('s_lshl_b32 s%d, s%d, 7' % (stmp + 4, stmp + 4))
    k('s_add_u32 s%d, s%d, 0x%x' % (stmp + 4, stmp + 4, STAMP_OFF + 4 * idx))
    k('v_mov_b32 v%d, s%d' % (vtmp, stmp))
    k('v_mov_b32 v%d, s%d' % (vtmp + 1, stmp + 2))
    k('v_mov_b32 v%d, 0' % (vtmp + 2))
    k('s_mov_b64 exec, 1')
    k('buffer_store_dword v%d, v%d, %s, s%d offen' % (vtmp, vtmp + 2, srd(SRD_WS), stmp + 4))
    k('s_add_u32 s%d, s%d, 0x20000' % (stmp + 4, stmp + 4))
    k('buffer_store_dword v%d, v%d, %s, s%d offen' % (vtmp + 1, vtmp + 2, srd(SRD_WS), stmp + 4))
    k('s_mov_b64 exec, -1')


def spin_guard(k):
    k('s_sub_u32 s%d, s%d, 1' % (S_SPIN, S_SPIN))
    k('s_cbranch_scc1 %s' % k.end_label)


def epoch_publish(k, vt):
    k('s_memrealtime %s' % sr(S_T, 2))
    k('v_mov_b32 v%d, 0' % (vt + 1))
    k('s_or_b32 s%d, s%d, 1' % (S_T, S_T))
    k('v_mov_b32 v%d, s%d' % (vt, S_T))
    k('s_or_b32 s%d, s2, s3' % S_T)
    k('s_cmp_eq_u32 s%d, 0' % S_T)
    k('s_cselect_b64 exec, 1, 0')
    k('buffer_store_dword v%d, v%d, %s, 0 offen sc1' % (vt, vt + 1, srd(SRD_DBG)))
    k('s_mov_b64 exec, -1')


def epoch_load(k, vt):
    k('v_mov_b32 v%d, 0' % (vt + 1))
    k('buffer_load_dword v%d, v%d, %s, 0 offen sc1' % (vt, vt + 1, srd(SRD_DBG)))


def epoch_get(k, vt):
    L = k.newlabel('Lepg')
    done = k.newlabel('Lepd')
    k('v_readfirstlane_b32 s%d, v%d' % (S_EPOCH, vt))
    k('s_cmp_lg_u32 s%d, 0' % S_EPOCH)
    k.branch_fwd('s_cbranch_scc1', done)
    k.loop_label(L)
    spin_guard(k)
    k('buffer_load_dword v%d, v%d, %s, 0 offen sc1' % (vt, vt + 1, srd(SRD_DBG)))
    k.force_wait(vm=0)
    k('v_readfirstlane_b32 s%d, v%d' % (S_EPOCH, vt))
    k('s_cmp_eq_u32 s%d, 0' % S_EPOCH)
    k('s_cbranch_scc1 %s' % L)
    k.label(done)


FLAG_A = FLAG_OFF
FLAG_B = FLAG_OFF + 0x20000
FLAG_Z = FLAG_OFF + 0x38000
FLAG_C = FLAG_OFF + 0x28000


def flag_store(k, vt, s_off):
    k('v_mov_b32 v%d, s%d' % (vt, S_EPOCH))
    k('s_mov_b64 exec, 1')
    k('buffer_store_dword v%d, v%d, %s, s%d offen sc1' % (vt, vt + 1, srd(SRD_WS), s_off))
    if DBL & 2:
        k('buffer_store_dword v%d, v%d, %s, s%d offen' % (vt, vt + 1, srd(SRD_WS), s_off))
    k('s_mov_b64 exec, -1')


POLL_DEPTH = 3
POLL_GAP = 3
W1_LG = 8
POLL_SC = 'sc1'
ST_SC = 'sc1'
AGENT_HH = ()
JIT_SEED = 0
ST14 = True
WROW = 128
M2 = True
WARM0 = True
CD2 = True
DBL = 0
STAMP_SET = None
S_WR, S_HV = 56, 57
EXP_NSTAT = 6
EXP_NFRAG = 8
POLL_SLEEP = 0
WO_LATE = False
START_ORDER = '01w|'
AGENT_DEPTH = 2
ST_SLEEP = 0
V_POLL = 249


def flag_poll(k, vt, voff, s_off):
    L = k.newlabel('Lpoll')
    done = k.newlabel('Lpd')
    n = POLL_DEPTH

    def ld(i):
        return k('buffer_load_dword v%d, v%d, %s, s%d offen %s' % (V_POLL + i, voff, srd(SRD_WS), s_off, POLL_SC))
    for i in range(n - 1):
        ld(i)
        k('s_sleep %d' % POLL_GAP)
    k.loop_label(L)
    spin_guard(k)
    last = []
    for i in range(n):
        k.vm = []
        if POLL_SLEEP:
            k('s_sleep %d' % POLL_SLEEP)
        last.append(ld((i + n - 1) % n))
        k._emit(classify('s_waitcnt vmcnt(%d)' % (n - 1)))
        k.vm = []
        k('v_cmp_ne_u32 vcc, s%d, v%d' % (S_EPOCH, V_POLL + i))
        if i < n - 1:
            k('s_cbranch_vccz %s' % done)
        else:
            k('s_cbranch_vccnz %s' % L)
    k.fence()
    k.raw(done + ':')
    k.vm = list(last)


class B:
    s_tmp, s_wbase, s_t2, s_x = 58, 59, 60, 61
    s_dma = 73
    vWo, vR0, vR1 = 208, 209, 210
    ACC = 192
    OFR = 32
    T = 64
    vSw, vSp = 211, 212
    s_sw, s_sp = 90, 62
    HK = 240


def B_setup(k):
    b, g = B, G
    k.c('---- phase B setup')
    t = TMP
    k('v_lshrrev_b32 v%d, 3, v1' % t)
    k('v_mul_u32_u24 v%d, 896, v%d' % (b.vWo, t))
    k('v_and_b32 v%d, 1, v3' % t)
    k('v_lshlrev_b32 v%d, 2, v%d' % (t, t))
    k('v_and_b32 v%d, 7, v1' % (t + 1))
    k('v_xor_b32 v%d, v%d, v%d' % (t, t, t + 1))
    k('v_lshl_add_u32 v%d, v%d, 4, v%d' % (b.vWo, t, b.vWo))
    k('s_lshl_b32 s%d, s%d, 7' % (b.s_tmp, g.s_dtD))
    k('s_mul_i32 s%d, s3, %d' % (b.s_t2, 112 * 896))
    k('s_add_u32 s%d, s%d, s%d' % (b.s_tmp, b.s_tmp, b.s_t2))
    k('v_add_u32 v%d, s%d, v%d' % (b.vWo, b.s_tmp, b.vWo))
    k('s_mul_i32 s%d, s3, %d' % (b.s_wbase, STG_SZ))
    k('s_add_u32 s%d, s%d, %d' % (b.s_wbase, b.s_wbase, LDS_STG))
    k('v_lshrrev_b32 v%d, 5, v1' % t)
    k('v_lshlrev_b32 v%d, 9, v%d' % (b.vR0, t))
    k('v_bfe_u32 v%d, v1, 2, 2' % t)
    k('v_lshl_add_u32 v%d, v%d, 7, v%d' % (b.vR0, t, b.vR0))
    k('v_lshrrev_b32 v%d, 1, v%d' % (t, t))
    k('s_and_b32 s%d, s3, 1' % b.s_tmp)
    k('v_xor_b32 v%d, s%d, v%d' % (t, b.s_tmp, t))
    k('v_lshl_add_u32 v%d, v%d, 6, v%d' % (b.vR0, t, b.vR0))
    k('v_and_b32 v%d, 1, v3' % t)
    k('v_lshl_add_u32 v%d, v%d, 5, v%d' % (b.vR0, t, b.vR0))
    k('v_and_b32 v%d, 3, v1' % t)
    k('v_lshl_add_u32 v%d, v%d, 3, v%d' % (b.vR0, t, b.vR0))
    k('v_add_u32 v%d, %d, v%d' % (b.vR0, LDS_STG, b.vR0))
    k('v_lshrrev_b32 v%d, 5, v1' % t)
    k('v_lshlrev_b32 v%d, 10, v%d' % (t, t))
    k('v_sub_u32 v%d, v%d, v%d' % (b.vR1, b.vR0, t))


def B_wo_dma(k):
    b = B

    def one(i):
        k('s_add_u32 m0, s%d, %d' % (b.s_wbase, i * 1024))
        k('s_mov_b32 s%d, %d' % (b.s_dma, 8 * i * 896))
        k('buffer_load_dwordx4 v%d, %s, s%d offen lds' % (b.vWo, srd(SRD_WO), b.s_dma), tag='wo')
    for i in range(14):
        k.bg_push(lambda i=i: one(i))


def B_wo_read(k, abase):
    b = B
    for h in range(16):
        if h == 8:
            k('v_add_u32 v%d, %d, v%d' % (b.vR0, 2 * STG_SZ, b.vR0))
            k('v_add_u32 v%d, %d, v%d' % (b.vR1, 2 * STG_SZ, b.vR1))
        sh = h == 15 and not M2
        for ks in range(2):
            a = abase + 8 * h + 4 * ks
            o = ((h >> 2) & 1) * STG_SZ + (h & 3) * 3584 + ks * 1024 - (512 if sh else 0)
            k('ds_read_b64_tr_b16 %s, v%d offset:%d' % (ar(a, 2), b.vR0, o))
            k('ds_read_b64_tr_b16 %s, v%d offset:%d' % (ar(a + 2, 2), b.vR1 if ((h & 3) == 3 and ks and not sh) else b.vR0, o + 2048))
            if (2 * h + ks) % 3 != 2:
                k.bg()


def B_xinit(k):
    b, g = B, G
    t = TMP + 2
    k('v_lshrrev_b32 v%d, 5, v1' % t)
    k('v_mul_u32_u24 v%d, %d, v%d' % (t, 4 * 896, t))
    k('v_and_b32 v%d, 31, v1' % (t + 1))
    k('v_lshl_add_u32 v%d, v%d, 1, v%d' % (t, t + 1, t))
    k('s_lshl_b32 s%d, s%d, 1' % (b.s_tmp, g.s_st))
    k('s_lshr_b32 s%d, s3, 1' % b.s_t2)
    k('s_add_u32 s%d, s%d, s%d' % (b.s_tmp, b.s_tmp, b.s_t2))
    k('s_mul_i32 s%d, s%d, %d' % (b.s_tmp, b.s_tmp, 32 * 896))
    k('s_lshl_b32 s%d, s%d, 7' % (b.s_t2, g.s_dtD))
    k('s_add_u32 s%d, s%d, s%d' % (b.s_tmp, b.s_tmp, b.s_t2))
    k('s_and_b32 s%d, s3, 1' % b.s_t2)
    k('s_lshl_b32 s%d, s%d, 6' % (b.s_t2, b.s_t2))
    k('s_add_u32 s%d, s%d, s%d' % (b.s_tmp, b.s_tmp, b.s_t2))
    for q in range(4):
        for r in range(4):
            k('buffer_load_ushort v%d, v%d, %s, s%d offen offset:%d' % (b.ACC + 4 * q + r, t, srd(SRD_X), b.s_tmp, r * 896))
        if q < 3:
            k('s_add_u32 s%d, s%d, %d' % (b.s_tmp, b.s_tmp, 8 * 896))


def B_xinit_finish(k):
    b = B
    for i in range(16):
        k('v_lshlrev_b32 v%d, 16, v%d' % (b.ACC + i, b.ACC + i))


def B_main(k, abase, lds_small, sc1='', hooks=None):
    b, g = B, G
    t = b.T
    k.c('---- phase B main')
    hooks = hooks or {}

    def hook(name):
        if name in hooks:
            hooks[name]()
    k('s_lshl_b32 s%d, s%d, 16' % (b.s_tmp, g.s_st))
    k('s_lshl_b32 s%d, s3, 14' % b.s_t2)
    k('s_add_u32 s%d, s%d, s%d' % (b.s_tmp, b.s_tmp, b.s_t2))
    if OF_OFF:
        k('s_add_u32 s%d, s%d, 0x%x' % (b.s_tmp, b.s_tmp, OF_OFF))
    for i in range(16):
        if i % 4 == 0:
            k('s_add_u32 m0, s%d, %d' % (g.s_stage, i * 1024))
            if i:
                k('s_add_u32 s%d, s%d, 4096' % (b.s_tmp, b.s_tmp))
        k('buffer_load_dwordx4 v4, %s, s%d offen offset:%d %s lds' % (srd(SRD_WS), b.s_tmp, (i % 4) * 1024, sc1), tag='of%d' % (i // 8))
    k('v_and_b32 v%d, 1, v3' % t)
    k('v_mul_u32_u24 v%d, %d, v%d' % (t, STG_SZ, t))
    k('v_lshl_add_u32 v%d, v2, 4, v%d' % (t, t))
    k('v_lshrrev_b32 v%d, 5, v1' % (t + 1))
    k('v_lshl_add_u32 v%d, v%d, 8, v%d' % (t, t + 1, t))
    k('s_lshr_b32 s%d, s3, 1' % b.s_t2)
    k('s_mul_i32 s%d, s%d, %d' % (b.s_t2, b.s_t2, 2 * STG_SZ))
    k('s_add_u32 s%d, s%d, %d' % (b.s_t2, b.s_t2, LDS_STG))
    k('v_add_u32 v%d, s%d, v%d' % (t, b.s_t2, t))
    hook('B_after_of')
    a = vr(b.ACC, 16)

    def rd(i):
        k('ds_read_b128 %s, v%d offset:%d' % (vr(b.OFR + 4 * (i % 8), 4), t, i * 512))
    for half in range(2):
        k.wait_tag('of%d' % half)
        k.barrier()
        if half == 0:
            stamp(k, 11)
        for i in range(16 * half, 16 * half + (6 if half == 0 else 2)):
            rd(i)
        for i in range(16 * half - (4 if half else 0), 16 * half + (12 if half == 0 else 16)):
            k('v_mfma_f32_32x32x16_bf16 %s, %s, %s, %s' % (a, vr(b.OFR + 4 * (i % 8), 4), ar(abase + 4 * i, 4), a))
            if i + 6 < 16 * half + 16 and i + 6 >= 16 * half + (6 if half == 0 else 2):
                rd(i + 6)
            if i % 3 == 0:
                k.bg()
    stamp(k, 12)
    if 'B_tail' in hooks:
        return hook('B_tail')
    Q = t + 4
    V = t + 20
    A = b.ACC
    for i in range(0, 16, 2):
        k('v_pk_mul_f32 %s, %s, %s' % (vr(Q + i, 2), vr(A + i, 2), vr(A + i, 2)))
    def src(base, q, idx):
        r = ((idx & 1) << 1) | (idx >> 1)
        return base + 4 * q + r
    for base, dst in ((A, V), (Q, V + 8)):
        k.bg()
        for q in range(4):
            for p in range(2):
                x = src(base, q, 2 * p)
                k('v_add_f32_dpp v%d, v%d, v%d row_mirror row_mask:0xf bank_mask:0x3' % (dst + 2 * q + p, x, x))
    for base, dst in ((A, V), (Q, V + 8)):
        k.bg()
        for q in range(4):
            for p in range(2):
                x = src(base, q, 2 * p + 1)
                k('v_add_f32_dpp v%d, v%d, v%d row_mirror row_mask:0xf bank_mask:0xc' % (dst + 2 * q + p, x, x))
    k.bg(2)
    for i in range(8):
        k('v_add_f32_dpp v%d, v%d, v%d row_half_mirror row_mask:0xf bank_mask:0x5' % (V + 2 * i, V + 2 * i, V + 2 * i))
    for i in range(8):
        k('v_add_f32_dpp v%d, v%d, v%d row_half_mirror row_mask:0xf bank_mask:0xa' % (V + 2 * i, V + 2 * i + 1, V + 2 * i + 1))
    for i in range(8):
        k('v_add_f32_dpp v%d, v%d, v%d quad_perm:[1,0,3,2] row_mask:0xf bank_mask:0xf' % (V + 2 * i + 1, V + 2 * i, V + 2 * i))
    U = Q
    k.bg(2)
    for i in range(8):
        k('v_add_f32_dpp v%d, v%d, v%d quad_perm:[2,3,0,1] row_mask:0xf bank_mask:0xf' % (U + i, V + 2 * i + 1, V + 2 * i + 1))
    for kind in range(2):
        for i in range(2):
            k('v_permlane16_swap_b32 v%d, v%d' % (U + 4 * kind + 2 * i, U + 4 * kind + 2 * i + 1))
    W_ = V
    for i in range(2):
        for kind in range(2):
            k('v_add_f32 v%d, v%d, v%d' % (W_ + 2 * i + kind, U + 4 * kind + 2 * i, U + 4 * kind + 2 * i + 1))
    k.bg_flush()
    if ST14:
        vA, vC, vG = b.vSp, t + 2, t + 3
        G_ = V + 4
        k('v_cndmask_b32 v%d, v%d, v%d, %s' % (G_, W_, W_ + 2, sr(88, 2)))
        k('v_cndmask_b32 v%d, v%d, v%d, %s' % (G_ + 2, W_ + 1, W_ + 3, sr(88, 2)))
        k('v_mov_b32 v%d, s%d' % (G_ + 1, S_EPOCH))
        k('v_mov_b32 v%d, s%d' % (G_ + 3, S_EPOCH))
        k('s_mov_b32 exec_lo, 0x33333333')
        k('s_mov_b32 exec_hi, 0x33333333')
        k('buffer_store_dwordx4 %s, v%d, %s, s%d offen sc1' % (vr(G_, 4), b.vSw, srd(SRD_WS), b.s_sw))
        k('s_mov_b64 exec, -1')
        k.barrier()
        for i in range(8):
            k('v_cvt_pk_bf16_f32 v%d, v%d, v%d' % (b.HK + i, A + 2 * i, A + 2 * i + 1))
        k('v_and_b32 v%d, 31, v1' % vG)
        B_hh_addr(k)
        hook('B_before_poll')
        stamp(k, 31)
        P0 = t + 32
        L = k.newlabel('Lst')
        done = k.newlabel('Lstd')
        Sx, Qx = t + 88, t + 90

        def ld(s_):
            return [k('buffer_load_dwordx4 %s, v%d, %s, s%d offen offset:%d sc1' % (
                vr(P0 + 28 * s_ + 4 * i, 4), vA, srd(SRD_WS), b.s_sp + (i >> 2), (i & 3) * 1024)) for i in range(7)]
        ld(0)
        k('s_sleep 5')
        k.loop_label(L)
        spin_guard(k)
        last = []
        for s_ in range(2):
            k.vm = []
            last += ld(1 - s_)
            k._emit(classify('s_waitcnt vmcnt(7)'))
            k.vm = []
            p = P0 + 28 * s_
            for i in range(14):
                k('v_xor_b32 v%d, s%d, v%d' % (p + 2 * i + 1, S_EPOCH, p + 2 * i + 1))
            for x, o in ((Sx, 0), (Qx, 2)):
                k('v_add_f32 v%d, v%d, v%d' % (x, p + o, p + o + 4))
                k('v_add_f32 v%d, v%d, v%d' % (x + 1, p + o + 8, p + o + 12))
            k('v_or3_b32 v%d, v%d, v%d, v%d' % (p + 1, p + 1, p + 3, p + 5))
            k('v_or3_b32 v%d, v%d, v%d, v%d' % (p + 7, p + 7, p + 9, p + 11))
            k('v_or3_b32 v%d, v%d, v%d, v%d' % (p + 13, p + 13, p + 15, p + 17))
            k('v_or3_b32 v%d, v%d, v%d, v%d' % (p + 19, p + 19, p + 21, p + 23))
            k('v_or3_b32 v%d, v%d, v%d, v%d' % (p + 1, p + 1, p + 25, p + 27))
            k('v_or3_b32 v%d, v%d, v%d, v%d' % (p + 7, p + 7, p + 13, p + 19))
            k('v_or_b32 v%d, v%d, v%d' % (p + 1, p + 1, p + 7))
            k('v_cmp_ne_u32 vcc, 0, v%d' % (p + 1))
            for x, o in ((Sx, 0), (Qx, 2)):
                k('v_add_f32 v%d, v%d, v%d' % (x, x, p + o + 16))
                k('v_add_f32 v%d, v%d, v%d' % (x + 1, x + 1, p + o + 20))
            for x, o in ((Sx, 0), (Qx, 2)):
                k('v_add_f32 v%d, v%d, v%d' % (x, x, p + o + 24))
            k('%s %s' % (('s_cbranch_vccz', 's_cbranch_vccnz')[s_], (done, L)[s_]))
        k.fence()
        k.raw(done + ':')
        k.vm = list(last)
        stamp(k, 13)
        P0 = t + 92
        for x in (Sx, Qx):
            k('v_add_f32 v%d, v%d, v%d' % (x, x, x + 1))
    else:
        vA, vC, vG = t + 1, t + 2, t + 3
        k('v_and_b32 v%d, 1, v3' % vA)
        k('v_lshlrev_b32 v%d, 6, v%d' % (vA, vA))
        k('v_lshrrev_b32 v%d, 5, v1' % vC)
        k('v_lshl_add_u32 v%d, v%d, 5, v%d' % (vA, vC, vA))
        k('v_bfe_u32 v%d, v1, 2, 2' % vG)
        k('v_lshl_add_u32 v%d, v%d, 3, v%d' % (vA, vG, vA))
        k('s_lshl_b32 s%d, s3, 8' % b.s_tmp)
        k('v_add_u32 v%d, s%d, v%d' % (vA, b.s_tmp, vA))
        k('ds_write_b64 v%d, %s offset:%d' % (vA, vr(W_, 2), lds_small))
        k('ds_write_b64 v%d, %s offset:%d' % (vA, vr(W_ + 2, 2), lds_small + 128))
        k('v_and_b32 v%d, 31, v1' % vG)
        k('v_lshlrev_b32 v%d, 9, v%d' % (vA, vC))
        k('v_lshl_add_u32 v%d, v%d, 4, v%d' % (vA, vG, vA))
        k('v_lshlrev_b32 v%d, 8, v%d' % (vC, vC))
        k('v_lshl_add_u32 v%d, v%d, 3, v%d' % (vC, vG, vC))
        k('s_and_b32 s%d, s%d, 512' % (b.s_tmp, b.s_tmp))
        k('v_add_u32 v%d, s%d, v%d' % (vC, b.s_tmp, vC))
        k('s_lshl_b32 s%d, s%d, 1' % (b.s_tmp, g.s_st))
        k('s_lshr_b32 s%d, s3, 1' % b.s_t2)
        k('s_add_u32 s%d, s%d, s%d' % (b.s_tmp, b.s_tmp, b.s_t2))
        k('s_lshl_b32 s%d, s%d, 12' % (b.s_tmp, b.s_tmp))
        k('s_add_u32 s%d, s%d, 0x%x' % (b.s_tmp, b.s_tmp, STAT_OFF))
        k('s_lshl_b32 s%d, s%d, 9' % (b.s_t2, g.s_dtD))
        k('s_add_u32 s%d, s%d, s%d' % (b.s_t2, b.s_t2, b.s_tmp))
        stamp(k, 23)
        k.wait_lg(0)
        k.barrier()
        k('ds_read_b64 %s, v%d offset:%d' % (vr(V, 2), vC, lds_small))
        G_ = V + 4
        k('v_mov_b32 v%d, s%d' % (G_ + 1, S_EPOCH))
        k('v_mov_b32 v%d, s%d' % (G_ + 3, S_EPOCH))
        k('v_mov_b32 v%d, v%d' % (G_, V))
        k('v_mov_b32 v%d, v%d' % (G_ + 2, V + 1))
        k('v_permlane32_swap_b32 v%d, v%d' % (G_, V))
        k('v_permlane32_swap_b32 v%d, v%d' % (G_ + 2, V + 1))
        k('v_add_f32 v%d, v%d, v%d' % (G_, G_, V))
        k('v_add_f32 v%d, v%d, v%d' % (G_ + 2, G_ + 2, V + 1))
        k('s_bitcmp0_b32 s3, 0')
        k('s_cselect_b32 exec_lo, -1, 0')
        k('s_mov_b32 exec_hi, 0')
        k('buffer_store_dwordx4 %s, v%d, %s, s%d offen sc1' % (vr(G_, 4), vA, srd(SRD_WS), b.s_t2))
        if DBL & 1:
            k('buffer_store_dwordx4 %s, v%d, %s, s%d offen' % (vr(G_, 4), vA, srd(SRD_WS), b.s_t2))
        k('s_mov_b64 exec, -1')
        for i in range(8):
            k('v_cvt_pk_bf16_f32 v%d, v%d, v%d' % (b.HK + i, A + 2 * i, A + 2 * i + 1))
        k('s_lshl_b32 s%d, s%d, 1' % (b.s_x, g.s_dtD))
        k('s_and_b32 s%d, s3, 1' % b.s_t2)
        k('s_add_u32 s%d, s%d, s%d' % (b.s_x, b.s_x, b.s_t2))
        k('s_lshl_b32 s%d, s%d, 7' % (b.s_x, b.s_x))
        k('s_lshl_b32 s%d, s%d, 2' % (b.s_t2, g.s_st))
        k('s_add_u32 s%d, s%d, s%d' % (b.s_x, b.s_x, b.s_t2))
        k('s_and_b32 s%d, s3, 2' % b.s_t2)
        k('s_add_u32 s%d, s%d, s%d' % (b.s_x, b.s_x, b.s_t2))
        k('s_lshl_b32 s%d, s%d, 10' % (b.s_x, b.s_x))
        k('s_add_u32 s%d, s%d, 0x%x' % (b.s_x, b.s_x, HH_OFF))
        k('v_lshlrev_b32 v%d, 4, v%d' % (vC, vG))
        k('v_cmp_gt_u32 %s, 32, v1' % sr(S_T, 2))
        hook('B_before_poll')
        stamp(k, 31)
        P0 = t + 32
        L = k.newlabel('Lst')
        done = k.newlabel('Lstd')
        Sx, Qx = t + 64, t + 66

        def ld(s_):
            r = []
            for i in range(4):
                r.append(k('buffer_load_dwordx4 %s, v%d, %s, s%d offen offset:%d %s' % (
                    vr(P0 + 16 * s_ + 4 * i, 4), vA if i < 3 else vC, srd(SRD_WS), b.s_tmp, i * 1024, ST_SC)))
            return r
        ld(0)
        k('s_sleep 5')
        k.loop_label(L)
        spin_guard(k)
        last = []
        for s_ in range(2):
            k.vm = []
            if ST_SLEEP:
                k('s_sleep %d' % ST_SLEEP)
            last += ld(1 - s_)
            k._emit(classify('s_waitcnt vmcnt(4)'))
            k.vm = []
            p = P0 + 16 * s_
            for i in range(8):
                k('v_xor_b32 v%d, s%d, v%d' % (p + 2 * i + 1, S_EPOCH, p + 2 * i + 1))
            k('v_cndmask_b32 v%d, 0, v%d, %s' % (p + 12, p + 12, sr(S_T, 2)))
            k('v_cndmask_b32 v%d, 0, v%d, %s' % (p + 14, p + 14, sr(S_T, 2)))
            k('v_or3_b32 v%d, v%d, v%d, v%d' % (p + 1, p + 1, p + 3, p + 5))
            k('v_or3_b32 v%d, v%d, v%d, v%d' % (p + 7, p + 7, p + 9, p + 11))
            k('v_or3_b32 v%d, v%d, v%d, v%d' % (p + 1, p + 1, p + 13, p + 15))
            k('v_or_b32 v%d, v%d, v%d' % (p + 1, p + 1, p + 7))
            k('v_cmp_ne_u32 vcc, 0, v%d' % (p + 1))
            for x, o in ((Sx, 0), (Qx, 2)):
                k('v_add_f32 v%d, v%d, v%d' % (x, p + o, p + o + 4))
                k('v_add_f32 v%d, v%d, v%d' % (x + 1, p + o + 8, p + o + 12))
            if s_ == 0:
                k('s_cbranch_vccz %s' % done)
            else:
                k('s_cbranch_vccnz %s' % L)
        k.fence()
        k.raw(done + ':')
        k.vm = list(last)
        stamp(k, 13)
        P0 = t + 68
        for x in (Sx, Qx):
            k('v_add_f32 v%d, v%d, v%d' % (x, x, x + 1))
    k('v_mov_b32 v%d, v%d' % (P0 + 4, Sx))
    k('v_mov_b32 v%d, v%d' % (P0 + 6, Qx))
    k('v_permlane32_swap_b32 v%d, v%d' % (Sx, P0 + 4))
    k('v_permlane32_swap_b32 v%d, v%d' % (Qx, P0 + 6))
    k('v_add_f32 v%d, v%d, v%d' % (Sx, Sx, P0 + 4))
    k('v_add_f32 v%d, v%d, v%d' % (Qx, Qx, P0 + 6))
    M, R = P0 + 1, P0 + 3
    k('v_mul_f32 v%d, %s, v%d' % (M, f32(1.0 / D), Sx))
    k('v_mul_f32 v%d, %s, v%d' % (Qx, f32(1.0 / D), Qx))
    k('v_fma_f32 v%d, -v%d, v%d, v%d' % (Qx, M, M, Qx))
    k('v_max_f32 v%d, 0, v%d' % (Qx, Qx))
    k('v_add_f32 v%d, %s, v%d' % (R, f32(1e-5), Qx))
    k('v_rsq_f32 v%d, v%d' % (R, R))
    k('v_mul_f32 v%d, v%d, v%d' % (Qx, Qx, R))
    k('v_fmaak_f32 v%d, v%d, v%d, %s' % (Qx, Qx, R, f32(1e-5)))
    k('v_rsq_f32 v%d, v%d' % (Qx, Qx))
    k('v_mul_f32 v%d, v%d, v%d' % (R, R, Qx))
    k('s_lshl_b32 s%d, s3, 8' % b.s_t2)
    k('v_lshl_add_u32 v%d, v%d, 2, s%d' % (vC, vG, b.s_t2))
    k('ds_write_b32 v%d, v%d offset:%d' % (vC, M, lds_small + 1024))
    k('ds_write_b32 v%d, v%d offset:%d' % (vC, R, lds_small + 1024 + 128))
    k('v_lshrrev_b32 v%d, 5, v1' % vC)
    k('v_lshl_add_u32 v%d, v%d, 4, s%d' % (vC, vC, b.s_t2))
    MM = 16 if ST14 else P0 + 8
    k.wait_lg(0)
    for q in range(4):
        k('ds_read_b128 %s, v%d offset:%d' % (vr(MM + 4 * q, 4), vC, lds_small + 1024 + 32 * q))
        k('ds_read_b128 %s, v%d offset:%d' % (vr(MM + 16 + 4 * q, 4), vC, lds_small + 1024 + 128 + 32 * q))
    for tp in range(2):
        for i in range(8 * tp, 8 * tp + 8, 2):
            k('v_pk_add_f32 %s, %s, %s neg_lo:[0,1] neg_hi:[0,1]' % (vr(A + i, 2), vr(A + i, 2), vr(MM + i, 2)))
        for i in range(8 * tp, 8 * tp + 8, 2):
            k('v_pk_mul_f32 %s, %s, %s' % (vr(A + i, 2), vr(A + i, 2), vr(MM + 16 + i, 2)))
        p = (P0 + 8 if ST14 else V) + 4 * tp
        for i in range(4):
            k('v_cvt_pk_bf16_f32 v%d, v%d, v%d' % (p + i, A + 8 * tp + 2 * i, A + 8 * tp + 2 * i + 1))
        k('buffer_store_dwordx4 %s, v4, %s, s%d offen offset:%d %s' % (vr(p, 4), srd(SRD_WS), b.s_x, tp * 1024, sc1), tag='hst')


def B_hh_addr(k):
    b, g = B, G
    k('s_lshl_b32 s%d, s%d, 1' % (b.s_x, g.s_dtD))
    k('s_and_b32 s%d, s3, 1' % b.s_t2)
    k('s_add_u32 s%d, s%d, s%d' % (b.s_x, b.s_x, b.s_t2))
    k('s_lshl_b32 s%d, s%d, 7' % (b.s_x, b.s_x))
    k('s_lshl_b32 s%d, s%d, 2' % (b.s_t2, g.s_st))
    k('s_add_u32 s%d, s%d, s%d' % (b.s_x, b.s_x, b.s_t2))
    k('s_and_b32 s%d, s3, 2' % b.s_t2)
    k('s_add_u32 s%d, s%d, s%d' % (b.s_x, b.s_x, b.s_t2))
    k('s_lshl_b32 s%d, s%d, 10' % (b.s_x, b.s_x))
    k('s_add_u32 s%d, s%d, 0x%x' % (b.s_x, b.s_x, HH_OFF))


def B_st14_setup(k):
    b, g = B, G
    t = b.T
    k('v_and_b32 v%d, 1, v1' % t)
    k('v_lshlrev_b32 v%d, 8, v%d' % (b.vSw, t))
    k('v_and_b32 v%d, 1, v3' % t)
    k('v_lshl_add_u32 v%d, v%d, 7, v%d' % (b.vSw, t, b.vSw))
    k('v_lshrrev_b32 v%d, 5, v1' % t)
    k('v_lshl_add_u32 v%d, v%d, 6, v%d' % (b.vSw, t, b.vSw))
    k('v_lshlrev_b32 v%d, 9, v%d' % (b.vSp, t))
    k('v_bfe_u32 v%d, v1, 2, 2' % t)
    k('v_lshl_add_u32 v%d, v%d, 4, v%d' % (b.vSw, t, b.vSw))
    k('v_and_b32 v%d, 31, v1' % t)
    k('v_lshl_add_u32 v%d, v%d, 4, v%d' % (b.vSp, t, b.vSp))
    k('s_lshl_b32 s%d, s%d, 1' % (b.s_sp, g.s_st))
    k('s_lshr_b32 s%d, s3, 1' % b.s_sw)
    k('s_add_u32 s%d, s%d, s%d' % (b.s_sp, b.s_sp, b.s_sw))
    k('s_lshl_b32 s%d, s%d, 13' % (b.s_sp, b.s_sp))
    k('s_add_u32 s%d, s%d, 0x%x' % (b.s_sp, b.s_sp, STAT_OFF))
    k('s_add_u32 s%d, s%d, 4096' % (b.s_sp + 1, b.s_sp))
    k('s_lshl_b32 s%d, s%d, 1' % (b.s_sw, g.s_dtD))
    k('s_and_b32 s88, s3, 1')
    k('s_add_u32 s%d, s%d, s88' % (b.s_sw, b.s_sw))
    k('s_lshl_b32 s%d, s%d, 9' % (b.s_sw, b.s_sw))
    k('s_add_u32 s%d, s%d, s%d' % (b.s_sw, b.s_sw, b.s_sp))
    k('s_mov_b32 s88, 0xaaaaaaaa')
    k('s_mov_b32 s89, 0xaaaaaaaa')


def agent(k):
    g = G
    k.c('---- agent: W2 warm-up')
    if W1_LG < 8:
        assert ROT is True
        k('s_lshr_b32 s%d, s2, 3' % g.s_tmp)
        k('s_sub_u32 s%d, s%d, 28' % (g.s_tmp, g.s_tmp))
        k('s_mul_i32 s%d, s%d, %d' % (g.s_tmp, g.s_tmp, 512 * F * 2))
        k('s_mul_i32 s%d, s3, %d' % (g.s_t2, 16 * F * 2))
        k('s_add_u32 s%d, s%d, s%d' % (g.s_tmp, g.s_tmp, g.s_t2))
        k('s_and_b32 s%d, s2, 7' % g.s_t2)
        k('s_mul_i32 s%d, s%d, 3' % (S_T, g.s_t2))
        k('s_add_u32 s%d, s%d, 4' % (S_T, S_T))
        k('s_lshl_b32 s%d, s%d, 2' % (S_T + 1, g.s_t2))
        k('s_min_u32 s%d, s%d, s%d' % (S_T, S_T, S_T + 1))
        k('s_lshl_b32 s%d, s%d, 7' % (S_T, S_T))
        k('s_add_u32 s%d, s%d, s%d' % (g.s_tmp, g.s_tmp, S_T))
        k('v_lshrrev_b32 v16, 2, v1')
        k('v_mul_u32_u24 v16, %d, v16' % (F * 2))
        k('v_and_b32 v17, 3, v1')
        k('v_lshl_add_u32 v16, v17, 7, v16')
        for g_ in range(W1_LG, 8):
            k('s_mul_i32 s%d, s%d, 56' % (S_T, S_GC + g_))
            k('s_add_u32 s%d, s%d, s%d' % (S_T, S_T, g.s_tmp))
            k('buffer_load_dword v%d, v16, %s, s%d offen' % (26 + g_, srd(SRD_W1), S_T))
    k('s_lshr_b32 s%d, s2, 3' % g.s_tmp)
    k('s_sub_u32 s%d, s%d, 28' % (g.s_tmp, g.s_tmp))
    k('s_mul_i32 s%d, s%d, 28' % (g.s_tmp, g.s_tmp))
    k('s_add_u32 s%d, s%d, s3' % (g.s_tmp, g.s_tmp))
    k('s_lshl_b32 s%d, s%d, 16' % (g.s_tmp, g.s_tmp))
    k('s_and_b32 s%d, s2, 7' % g.s_t2)
    k('s_lshl_b32 s%d, s%d, 9' % (g.s_t2, g.s_t2))
    k('s_add_u32 s%d, s%d, s%d' % (g.s_tmp, g.s_tmp, g.s_t2))
    k('v_lshrrev_b32 v16, 2, v1')
    k('v_lshlrev_b32 v16, 12, v16')
    k('v_and_b32 v17, 3, v1')
    k('v_lshl_add_u32 v16, v17, 7, v16')
    for i in range(7):
        k('s_lshl_b32 s%d, s%d, 6' % (S_T, S_GD + i))
        k('s_add_u32 s%d, s%d, s%d' % (S_T, S_T, g.s_tmp))
        k('buffer_load_dword v%d, v16, %s, s%d offen' % (18 + i, srd(SRD_W2), S_T))
        k.wait_vm(AGENT_DEPTH - 1)
    k.wait_vm(0)
    if AGENT_HH:
        k('s_lshr_b32 s%d, s2, 3' % g.s_tmp)
        k('s_sub_u32 s%d, s%d, 28' % (g.s_tmp, g.s_tmp))
        k('s_lshl_b32 s%d, s%d, 2' % (g.s_tmp, g.s_tmp))
        k('s_add_u32 s%d, s%d, s3' % (g.s_tmp, g.s_tmp))
        k('v_lshrrev_b32 v16, 3, v1')
        k('v_min_u32 v16, 6, v16')
        k('v_lshlrev_b32 v16, 12, v16')
        k('v_bfe_u32 v17, v1, 2, 1')
        k('v_lshl_add_u32 v16, v17, 7, v16')
        k('v_and_b32 v17, 3, v1')
        k('v_lshl_add_u32 v16, v17, 2, v16')
        k('s_lshl_b32 s%d, s%d, 8' % (g.s_t2, g.s_tmp))
        k('s_add_u32 s%d, s%d, 0x%x' % (g.s_t2, g.s_t2, FLAG_B))
        save = POLL_SLEEP
        globals()['POLL_SLEEP'] = 8
        flag_poll(k, 0, 16, g.s_t2)
        globals()['POLL_SLEEP'] = save
        k('v_lshlrev_b32 v16, 7, v1')
        k('s_lshl_b32 s%d, s%d, 13' % (g.s_tmp, g.s_tmp))
        k('s_add_u32 s%d, s%d, 0x%x' % (g.s_tmp, g.s_tmp, HH_OFF))
        for i, db in enumerate(AGENT_HH):
            k('s_add_u32 s%d, s%d, 0x%x' % (g.s_t2, g.s_tmp, db * 0x20000))
            k('buffer_load_dword v%d, v16, %s, s%d offen sc1' % (18 + i, srd(SRD_WS), g.s_t2))
        k.wait_vm(0)


class G:
    ACC = 16
    RING = 80
    NR = 16
    vW1, vW2 = 213, 214
    vRa, vRb = 215, 216
    vSa, vSb = 217, 218
    vCl = 5
    T = 220
    s_dtC, s_ft, s_dtD, s_st, s_tmp, s_t2, s_stage, s_a0, s_a1 = 64, 65, 66, 67, 68, 69, 70, 71, 72
    s_b0, s_b1 = 56, 57


def G_map(k):
    g = G
    k.c('---- C/D tile map')
    k('s_lshr_b32 s%d, s2, 3' % g.s_tmp)
    k('s_mul_i32 s%d, s%d, 37' % (g.s_t2, g.s_tmp))
    k('s_lshr_b32 s%d, s%d, 8' % (g.s_t2, g.s_t2))
    k('s_mul_i32 s%d, s%d, 7' % (g.s_dtC, g.s_t2))
    k('s_sub_u32 s%d, s%d, s%d' % (g.s_dtC, g.s_tmp, g.s_dtC))
    k('s_mov_b32 s%d, s%d' % (g.s_dtD, g.s_dtC))
    k('s_and_b32 s%d, s2, 7' % g.s_tmp)
    k('s_lshl_b32 s%d, s%d, 2' % (g.s_st, g.s_tmp))
    k('s_add_u32 s%d, s%d, s%d' % (g.s_st, g.s_st, g.s_t2))
    k('s_cmp_ge_u32 s%d, 4' % g.s_t2)
    k('s_cselect_b32 s%d, 99, s%d' % (g.s_st, g.s_st))
    k('s_mul_i32 s%d, s%d, 3' % (g.s_a0, g.s_tmp))
    k('s_add_u32 s%d, s%d, 4' % (g.s_a0, g.s_a0))
    k('s_lshl_b32 s%d, s%d, 2' % (g.s_a1, g.s_tmp))
    k('s_cmp_lt_u32 s%d, 4' % g.s_tmp)
    k('s_cselect_b32 s%d, s%d, s%d' % (g.s_ft, g.s_a1, g.s_a0))
    k('s_cselect_b32 s%d, 4, 3' % g.s_a0)
    k('s_add_u32 s%d, s%d, s%d' % (g.s_ft, g.s_ft, g.s_t2))
    k('s_cmp_ge_u32 s%d, s%d' % (g.s_t2, g.s_a0))
    k('s_cselect_b32 s%d, 99, s%d' % (g.s_ft, g.s_ft))


def G_w_setup(k, which, lds_base, per_wave):
    g = G
    t = TMP
    stride = F * 2 if which == 1 else S * 2
    krows = 512 if which == 1 else 448
    vW = g.vW1 if which == 1 else g.vW2
    va, vb = (g.vRa, g.vRb) if which == 1 else (g.vSa, g.vSb)
    s_tile = g.s_ft if which == 1 else g.s_st
    k('s_mul_i32 s%d, s3, %d' % (g.s_stage, per_wave))
    k('s_add_u32 s%d, s%d, %d' % (g.s_stage, g.s_stage, lds_base))
    k('v_lshrrev_b32 v%d, 3, v1' % t)
    k('v_mul_u32_u24 v%d, %d, v%d' % (vW, stride, t))
    k('v_and_b32 v%d, 1, v3' % t)
    k('v_lshlrev_b32 v%d, 2, v%d' % (t, t))
    k('v_and_b32 v%d, 7, v1' % (t + 1))
    k('v_xor_b32 v%d, v%d, v%d' % (t, t, t + 1))
    k('v_lshl_add_u32 v%d, v%d, 4, v%d' % (vW, t, vW))
    k('s_mul_i32 s%d, s3, %d' % (g.s_tmp, krows * stride))
    k('s_lshl_b32 s%d, s%d, 7' % (g.s_t2, s_tile))
    k('s_add_u32 s%d, s%d, s%d' % (g.s_tmp, g.s_tmp, g.s_t2))
    k('s_cmp_ge_u32 s%d, 99' % s_tile)
    k('s_cselect_b32 s%d, 0x%x, s%d' % (g.s_tmp, OOB, g.s_tmp))
    k('v_add_u32 v%d, s%d, v%d' % (vW, g.s_tmp, vW))
    if which == 1:
        k('s_cselect_b32 s%d, 0x%x, 0' % (g.s_tmp, OOB))
        k('v_add_u32 v%d, s%d, v4' % (g.vCl, g.s_tmp))
    k('v_lshrrev_b32 v%d, 5, v1' % t)
    k('v_lshlrev_b32 v%d, 9, v%d' % (va, t))
    k('v_bfe_u32 v%d, v1, 2, 2' % t)
    k('v_lshl_add_u32 v%d, v%d, 7, v%d' % (va, t, va))
    k('v_lshrrev_b32 v%d, 1, v%d' % (t, t))
    k('s_lshr_b32 s%d, s3, 1' % g.s_tmp)
    k('v_xor_b32 v%d, s%d, v%d' % (t, g.s_tmp, t))
    k('v_lshl_add_u32 v%d, v%d, 6, v%d' % (va, t, va))
    k('v_and_b32 v%d, 1, v3' % t)
    k('v_lshl_add_u32 v%d, v%d, 5, v%d' % (va, t, va))
    k('v_and_b32 v%d, 3, v1' % t)
    k('v_lshl_add_u32 v%d, v%d, 3, v%d' % (va, t, va))
    if CD2 and which == 1:
        k('s_and_b32 s%d, s3, 1' % g.s_tmp)
        k('s_lshl_b32 s%d, s%d, 5' % (g.s_tmp, g.s_tmp))
        k('v_xor_b32 v%d, s%d, v%d' % (va, g.s_tmp, va))
    k('v_add_u32 v%d, s%d, v%d' % (va, g.s_stage, va))
    k('v_xor_b32 v%d, 64, v%d' % (vb, va))


ROT = True
S_GC, S_GD = 94, 48


def G_rot_setup(k, which):
    n, base = (8, S_GC) if which == 1 else (7, S_GD)
    t = G.s_tmp
    if ROT in ('x', 'x2'):
        k('s_lshr_b32 s%d, s2, 3' % t)
        k('s_mul_i32 s%d, s%d, 37' % (t, t))
        k('s_lshr_b32 s%d, s%d, 8' % (t, t))
        k('s_and_b32 s%d, s%d, %d' % (t, t, 3 if ROT == 'x' else 1))
        for g_ in range(n):
            if n == 8 or g_ < 4:
                k('s_xor_b32 s%d, s%d, %d' % (base + g_, t, g_))
            elif g_ < 6:
                k('s_and_b32 s%d, s%d, 1' % (base + g_, t))
                k('s_xor_b32 s%d, s%d, %d' % (base + g_, base + g_, g_))
            else:
                k('s_mov_b32 s%d, %d' % (base + g_, g_))
            k('s_lshl_b32 s%d, s%d, 12' % (base + g_, base + g_))
        return
    if ROT == 'q':
        k('s_lshr_b32 s%d, s2, 3' % t)
        k('s_mul_i32 s%d, s%d, 37' % (t, t))
        k('s_lshr_b32 s%d, s%d, 8' % (t, t))
        k('s_and_b32 s%d, s%d, 3' % (t, t))
        k('s_mul_i32 s%d, s%d, %d' % (t, t, n))
        k('s_add_u32 s%d, s%d, 2' % (t, t))
        k('s_lshr_b32 s%d, s%d, 2' % (t, t))
    elif ROT:
        k('s_and_b32 s%d, s2, 7' % t)
    else:
        k('s_mov_b32 s%d, 0' % t)
    for g_ in range(n):
        if g_:
            k('s_add_u32 s%d, s%d, 1' % (t, t))
        k('s_cmp_ge_u32 s%d, %d' % (t, n))
        k('s_cselect_b32 s%d, %d, 0' % (base + g_, n))
        k('s_sub_u32 s%d, s%d, s%d' % (t, t, base + g_))
        k('s_lshl_b32 s%d, s%d, 12' % (base + g_, t))


def G_w_dma(k, which, t0, nt, slot0, tag=None, bg=False):
    g = G
    stride = F * 2 if which == 1 else S * 2

    def one(i):
        slot = slot0 + i // 2
        assert slot < NSLOT
        k.wait_lg_tag('rd%d' % slot)
        k.slot_content = getattr(k, 'slot_content', {})
        k.slot_content[slot] = (which, t0 + i // 2, i % 2)
        k('s_add_u32 m0, s%d, %d' % (g.s_stage, slot0 * 2048 + i * 1024))
        t = t0 + i // 2
        k('s_mul_i32 s%d, s%d, %d' % (B.s_dma, (S_GC if which == 1 else S_GD) + t // 4, 64 * stride // 4096))
        k('s_add_u32 s%d, s%d, %d' % (B.s_dma, B.s_dma, (16 * (t % 4) + 8 * (i % 2)) * stride))
        k('buffer_load_dwordx4 v%d, %s, s%d offen lds' % (g.vW1 if which == 1 else g.vW2, srd(SRD_W1 if which == 1 else SRD_W2), B.s_dma), tag='slot%d' % slot)
    for i in range(2 * nt):
        if bg:
            k.bg_push(lambda i=i: one(i))
        else:
            one(i)


def W1_warm_light(k, vdst):
    g = G
    t = TMP
    k('v_lshlrev_b32 v%d, 7, v1' % t)
    k('v_add_u32 v%d, s%d, v%d' % (t, S_HV, t))
    k('s_mul_i32 s%d, s%d, %d' % (S_T, S_WR, 40 * 128))
    k('s_mov_b32 exec_hi, 0xff')
    k('buffer_load_dword v234, v%d, %s, s%d offen' % (t, srd(SRD_WO), S_T))
    k('s_mov_b64 exec, -1')
    k('v_lshrrev_b32 v%d, 2, v1' % t)
    k('v_mul_u32_u24 v%d, %d, v%d' % (t, F * 2, t))
    k('v_and_b32 v%d, 3, v1' % (t + 1))
    k('v_lshl_add_u32 v%d, v%d, 7, v%d' % (t, t + 1, t))
    k('v_add_u32 v%d, s%d, v%d' % (t, S_HV, t))
    k('s_and_b32 s%d, s2, 7' % g.s_t2)
    k('s_bfe_u32 s%d, s%d, 0x20002' % (g.s_tmp, S_WR))
    k('s_add_u32 s%d, s%d, s%d' % (g.s_tmp, g.s_tmp, g.s_t2))
    k('s_and_b32 s%d, s%d, 7' % (g.s_tmp, g.s_tmp))
    k('s_lshl_b32 s%d, s%d, 2' % (g.s_tmp, g.s_tmp))
    k('s_and_b32 s%d, s%d, 0x33' % (S_T, S_WR))
    k('s_lshr_b32 s%d, s%d, 4' % (S_T + 1, S_T))
    k('s_lshl_b32 s%d, s%d, 5' % (S_T + 1, S_T + 1))
    k('s_and_b32 s%d, s%d, 3' % (S_T, S_T))
    k('s_add_u32 s%d, s%d, s%d' % (g.s_tmp, g.s_tmp, S_T))
    k('s_add_u32 s%d, s%d, s%d' % (g.s_tmp, g.s_tmp, S_T + 1))
    k('s_mul_i32 s%d, s%d, %d' % (g.s_tmp, g.s_tmp, 16 * F * 2))
    k('s_mul_i32 s%d, s%d, 3' % (S_T, g.s_t2))
    k('s_add_u32 s%d, s%d, 4' % (S_T, S_T))
    k('s_lshl_b32 s%d, s%d, 2' % (S_T + 1, g.s_t2))
    k('s_min_u32 s%d, s%d, s%d' % (S_T, S_T, S_T + 1))
    k('s_lshl_b32 s%d, s%d, 7' % (S_T, S_T))
    k('s_add_u32 s%d, s%d, s%d' % (S_T, S_T, g.s_tmp))
    k('s_cmp_lt_u32 s%d, 4' % g.s_t2)
    k('s_cselect_b32 exec_lo, -1, 0x77777777')
    k('s_cselect_b32 exec_hi, -1, 0x77777777')
    k('s_cmp_lt_u32 s%d, 64' % S_WR)
    k('s_cselect_b64 exec, exec, 0')
    k('buffer_load_dword v%d, v%d, %s, s%d offen' % (vdst, t, srd(SRD_W1), S_T))
    k('s_mov_b64 exec, -1')


def W1_warm(k, vdst):
    g = G
    t = TMP
    k('s_lshr_b32 s%d, s2, 3' % g.s_tmp)
    k('s_lshl_b32 s%d, s%d, 2' % (g.s_tmp, g.s_tmp))
    k('s_add_u32 s%d, s%d, s3' % (g.s_tmp, g.s_tmp))
    if True:
        k('v_lshlrev_b32 v%d, 7, v1' % t)
        k('s_mul_i32 s%d, s%d, 3200' % (S_T, g.s_tmp))
        k('s_mov_b64 exec, 0x1ffffff')
        k('buffer_load_dword v234, v%d, %s, s%d offen' % (t, srd(SRD_WO), S_T))
        k('s_mov_b64 exec, -1')
    k('v_lshrrev_b32 v%d, 2, v1' % t)
    k('v_mul_u32_u24 v%d, %d, v%d' % (t, F * 2, t))
    k('v_and_b32 v%d, 3, v1' % (t + 1))
    k('v_lshl_add_u32 v%d, v%d, 7, v%d' % (t, t + 1, t))
    k('s_mul_i32 s%d, s%d, %d' % (g.s_tmp, g.s_tmp, 16 * F * 2))
    k('s_and_b32 s%d, s2, 7' % g.s_t2)
    k('s_mul_i32 s%d, s%d, 3' % (S_T, g.s_t2))
    k('s_add_u32 s%d, s%d, 4' % (S_T, S_T))
    k('s_lshl_b32 s%d, s%d, 2' % (S_T + 1, g.s_t2))
    k('s_min_u32 s%d, s%d, s%d' % (S_T, S_T, S_T + 1))
    k('s_lshl_b32 s%d, s%d, 7' % (S_T, S_T))
    k('s_add_u32 s%d, s%d, s%d' % (S_T, S_T, g.s_tmp))
    k('s_cmp_lt_u32 s%d, 4' % g.s_t2)
    k('s_cselect_b32 exec_lo, -1, 0x77777777')
    k('s_cselect_b32 exec_hi, -1, 0x77777777')
    if W1_LG < 8:
        k('s_lshr_b32 s%d, s2, 3' % g.s_tmp)
        k('s_sub_u32 s%d, s%d, s%d' % (g.s_tmp, g.s_tmp, g.s_t2))
        k('s_and_b32 s%d, s%d, 7' % (g.s_tmp, g.s_tmp))
        k('s_cmp_lt_u32 s%d, %d' % (g.s_tmp, W1_LG))
        k('s_cselect_b64 exec, exec, 0')
    k('buffer_load_dword v%d, v%d, %s, s%d offen' % (vdst, t, srd(SRD_W1), S_T))
    k('s_mov_b64 exec, -1')


def G_w_read(k, which, t, slot, areg):
    g = G
    va, vb = (g.vRa, g.vRb) if which == 1 else (g.vSa, g.vSb)
    sec = 1024
    assert k.slot_content[slot] == (which, t, 1), (k.slot_content[slot], which, t)
    k.wait_tag('slot%d' % slot)
    for i, v in enumerate((va, vb)):
        k('ds_read_b64_tr_b16 %s, v%d offset:%d' % (ar(areg + 4 * i, 2), v, slot * 2048), tag='rd%d' % slot)
        k('ds_read_b64_tr_b16 %s, v%d offset:%d' % (ar(areg + 4 * i + 2, 2), v, slot * 2048 + sec), tag='rd%d' % slot)


def G_a_setup(k, which):
    g = G
    nks = 128 if which == 1 else 112
    per = 32 if which == 1 else 28
    base = HH_OFF if which == 1 else U_OFF
    s_dt = g.s_dtC if which == 1 else g.s_dtD
    k('s_lshl_b32 s%d, s%d, 1' % (g.s_tmp, s_dt))
    k('s_and_b32 s%d, s3, 1' % g.s_t2)
    k('s_add_u32 s%d, s%d, s%d' % (g.s_a0, g.s_tmp, g.s_t2))
    k('s_xor_b32 s%d, s%d, 1' % (g.s_a1, g.s_a0))
    k('s_mul_i32 s%d, s3, %d' % (g.s_tmp, per * 1024))
    k('s_add_u32 s%d, s%d, 0x%x' % (g.s_tmp, g.s_tmp, base))
    for s_ in (g.s_a0, g.s_a1):
        k('s_mul_i32 s%d, s%d, %d' % (s_, s_, nks * 1024))
        k('s_add_u32 s%d, s%d, s%d' % (s_, s_, g.s_tmp))


def G_a_load(k, t, sc1='', vo=4, which=1):
    g = G
    if t % 4 == 0:
        gr = (S_GC if which == 1 else S_GD) + t // 4
        k('s_add_u32 s%d, s%d, s%d' % (g.s_b0, g.s_a0, gr))
        k('s_add_u32 s%d, s%d, s%d' % (g.s_b1, g.s_a1, gr))
    r = g.RING + 8 * (t % g.NR)
    for i, s_ in enumerate((g.s_b0, g.s_b1)):
        k('buffer_load_dwordx4 %s, v%d, %s, s%d offen offset:%d %s' % (vr(r + 4 * i, 4), vo, srd(SRD_WS), s_, (t % 4) * 1024, sc1))


def G_mfma(k, t, areg):
    g = G
    r = g.RING + 8 * (t % g.NR)
    for iw in range(2):
        for ia in range(2):
            L = 2 * iw + ia
            a = vr(g.ACC + 16 * L, 16)
            c = '0' if (t == 0 and L != 0) else a
            k('v_mfma_f32_32x32x16_bf16 %s, %s, %s, %s' % (a, ar(areg + 4 * iw, 4), vr(r + 4 * ia, 4), c))


def G_mfma_tail(k, ts, areg, order, writes):
    g = G
    pend = []
    for L in order:
        iw, ia = L >> 1, L & 1
        a = vr(g.ACC + 16 * L, 16)
        for n, t in enumerate(ts):
            r = g.RING + 8 * (t % g.NR)
            k('v_mfma_f32_32x32x16_bf16 %s, %s, %s, %s' % (a, ar(areg(t) + 4 * iw, 4), vr(r + 4 * ia, 4), a))
            if n >= 1:
                per = -(-len(pend) // (len(ts) - n))
                for f in pend[:per]:
                    f()
                pend = pend[per:]
        pend = pend + list(writes.get(L, []))
    for f in pend:
        f()


def C_init(k):
    g = G
    t = g.T
    k('v_lshrrev_b32 v%d, 5, v1' % t)
    k('v_lshlrev_b32 v%d, 3, v%d' % (t, t))
    k('s_lshl_b32 s%d, s%d, 7' % (g.s_tmp, g.s_ft))
    k('s_lshr_b32 s%d, s3, 1' % g.s_t2)
    k('s_lshl_b32 s%d, s%d, 6' % (g.s_t2, g.s_t2))
    k('s_add_u32 s%d, s%d, s%d' % (g.s_tmp, g.s_tmp, g.s_t2))
    for q in range(4):
        k('buffer_load_dwordx2 %s, v%d, %s, s%d offen offset:%d' % (vr(t + 2 + 2 * q, 2), t, srd(SRD_B1), g.s_tmp, 16 * q))


def C_init_finish(k):
    g = G
    t = g.T
    for q in range(4):
        for i in range(2):
            k('v_lshlrev_b32 v%d, 16, v%d' % (g.ACC + 4 * q + 2 * i, t + 2 + 2 * q + i))
            k('v_and_b32 v%d, 0xffff0000, v%d' % (g.ACC + 4 * q + 2 * i + 1, t + 2 + 2 * q + i))


def C_epi_addr(k):
    g = G
    t = g.T
    for L in range(1, 4):
        k('s_xor_b32 s%d, s3, %d' % (g.s_tmp, L))
        k('s_mul_i32 s%d, s%d, %d' % (g.s_tmp, g.s_tmp, STG_SZ))
        k('s_add_u32 s%d, s%d, %d' % (g.s_tmp, g.s_tmp, LDS_STG + (L - 1) * 4096))
        k('v_add_u32 v%d, s%d, v4' % (t + L, g.s_tmp))
    k('v_add_u32 v%d, s%d, v4' % (t, g.s_stage))
    k('s_lshl_b32 s%d, s%d, 1' % (g.s_tmp, g.s_dtC))
    k('s_and_b32 s%d, s3, 1' % g.s_t2)
    k('s_add_u32 s%d, s%d, s%d' % (g.s_tmp, g.s_tmp, g.s_t2))
    k('s_mul_i32 s%d, s%d, 112' % (g.s_tmp, g.s_tmp))
    k('s_lshl_b32 s%d, s%d, 2' % (g.s_t2, g.s_ft))
    k('s_add_u32 s%d, s%d, s%d' % (g.s_tmp, g.s_tmp, g.s_t2))
    k('s_and_b32 s%d, s3, 2' % g.s_t2)
    k('s_add_u32 s%d, s%d, s%d' % (g.s_tmp, g.s_tmp, g.s_t2))
    k('s_lshl_b32 s%d, s%d, 10' % (g.s_tmp, g.s_tmp))
    k('s_add_u32 s%d, s%d, 0x%x' % (g.s_tmp, g.s_tmp, U_OFF))
    c1 = -2.0 * 0.7978845608028654 * 1.4426950408889634
    c2 = c1 * 0.044715
    k('s_mov_b32 s88, %s' % f32(c1))
    k('s_mov_b32 s90, %s' % f32(c2))
    k('v_mov_b32 v%d, s88' % (t + 4))
    k('v_mov_b32 v%d, s88' % (t + 5))


def C_epi_writes(k):
    g = G
    t = g.T
    return {L: [lambda L=L, q=q: k('ds_write_b128 v%d, %s offset:%d' % (t + L, vr(g.ACC + 16 * L + 4 * q, 4), q * 1024))
                for q in range(4)] for L in range(1, 4)}


def C_epilogue(k, sc1=''):
    g = G
    t = g.T
    k.c('---- phase C epilogue')
    k.wait_lg(0)
    k.barrier()
    R = g.ACC + 16
    for q in range(4):
        for L in range(3):
            k('ds_read_b128 %s, v%d offset:%d' % (vr(R + 16 * L + 4 * q, 4), t, L * 4096 + q * 1024))
    sc = 88
    X2 = g.RING
    for half in range(2):
        for i in range(8 * half, 8 * half + 8, 2):
            a = g.ACC + i
            k('v_pk_add_f32 %s, %s, %s' % (vr(R + i, 2), vr(R + i, 2), vr(R + 16 + i, 2)))
            k('v_pk_add_f32 %s, %s, %s' % (vr(a, 2), vr(a, 2), vr(R + 32 + i, 2)))
        for i in range(8 * half, 8 * half + 8, 2):
            a = g.ACC + i
            k('v_pk_add_f32 %s, %s, %s' % (vr(a, 2), vr(a, 2), vr(R + i, 2)))
        for i in range(8 * half, 8 * half + 8, 2):
            a = g.ACC + i
            k('v_pk_mul_f32 %s, %s, %s' % (vr(X2 + i, 2), vr(a, 2), vr(a, 2)))
        for i in range(8 * half, 8 * half + 8, 2):
            k('v_pk_fma_f32 %s, %s, %s, %s op_sel_hi:[1,0,1]' % (vr(X2 + i, 2), vr(X2 + i, 2), sr(sc + 2, 2), vr(t + 4, 2)))
        for i in range(8 * half, 8 * half + 8, 2):
            k('v_pk_mul_f32 %s, %s, %s' % (vr(X2 + i, 2), vr(X2 + i, 2), vr(g.ACC + i, 2)))
        for i in range(8 * half, 8 * half + 8):
            k('v_exp_f32 v%d, v%d' % (X2 + i, X2 + i))
        for i in range(8 * half, 8 * half + 8, 2):
            k('v_pk_add_f32 %s, %s, 1.0 op_sel_hi:[1,0]' % (vr(X2 + i, 2), vr(X2 + i, 2)))
        for i in range(8 * half, 8 * half + 8):
            k('v_rcp_f32 v%d, v%d' % (X2 + i, X2 + i))
        for i in range(8 * half, 8 * half + 8, 2):
            k('v_pk_mul_f32 %s, %s, %s' % (vr(X2 + i, 2), vr(X2 + i, 2), vr(g.ACC + i, 2)))
        p = X2 + 16 + 4 * half
        for i in range(4):
            k('v_cvt_pk_bf16_f32 v%d, v%d, v%d' % (p + i, X2 + 8 * half + 2 * i, X2 + 8 * half + 2 * i + 1))
        k('buffer_store_dwordx4 %s, v%d, %s, s%d offen offset:%d %s' % (vr(p, 4), g.vCl, srd(SRD_WS), g.s_tmp, half * 1024, sc1), tag='ust')


def D_init(k, sc1=''):
    g = G
    t = g.T
    k('v_lshrrev_b32 v%d, 5, v1' % t)
    k('v_lshlrev_b32 v%d, 3, v%d' % (t, t))
    k('s_lshl_b32 s%d, s%d, 7' % (g.s_tmp, g.s_st))
    k('s_lshr_b32 s%d, s3, 1' % g.s_t2)
    k('s_lshl_b32 s%d, s%d, 6' % (g.s_t2, g.s_t2))
    k('s_add_u32 s%d, s%d, s%d' % (g.s_tmp, g.s_tmp, g.s_t2))
    for q in range(4):
        k('buffer_load_dwordx2 %s, v%d, %s, s%d offen offset:%d' % (vr(t + 2 + 2 * q, 2), t, srd(SRD_B2), g.s_tmp, 16 * q))


def D_init_finish(k):
    g = G
    t = g.T
    for q in range(4):
        for i in range(2):
            a = g.ACC + 4 * q + 2 * i
            k('v_lshlrev_b32 v%d, 16, v%d' % (a, t + 2 + 2 * q + i))
            k('v_and_b32 v%d, 0xffff0000, v%d' % (a + 1, t + 2 + 2 * q + i))
            k('v_lshlrev_b32 v%d, 16, v%d' % (t + 18, B.HK + 2 * q + i))
            k('v_and_b32 v%d, 0xffff0000, v%d' % (t + 19, B.HK + 2 * q + i))
            k('v_pk_add_f32 %s, %s, %s' % (vr(a, 2), vr(a, 2), vr(t + 18, 2)))


def D_epilogue(k, lds_red, stride):
    g = G
    t = g.T
    k.c('---- phase D epilogue')
    k('v_lshrrev_b32 v%d, 5, v1' % t)
    k('v_lshlrev_b32 v%d, 10, v%d' % (t, t))
    k('v_and_b32 v%d, 31, v1' % (t + 1))
    k('v_lshl_add_u32 v%d, v%d, 2, v%d' % (t, t + 1, t))
    k('s_lshr_b32 s%d, s3, 1' % g.s_t2)
    k('s_lshl_b32 s%d, s%d, 13' % (g.s_tmp, g.s_t2))
    k('s_and_b32 s%d, s3, 1' % g.s_t2)
    k('s_lshl_b32 s%d, s%d, 7' % (g.s_t2, g.s_t2))
    k('s_add_u32 s%d, s%d, s%d' % (g.s_tmp, g.s_tmp, g.s_t2))
    k('v_add_u32 v%d, s%d, v%d' % (t, g.s_tmp, t))
    k('v_xor_b32 v%d, 128, v%d' % (t + 1, t))
    k('v_xor_b32 v%d, 0x2000, v%d' % (t + 2, t))
    k('v_xor_b32 v%d, 0x2080, v%d' % (t + 3, t))
    k('s_mul_i32 s%d, s3, %d' % (g.s_tmp, stride))
    k('s_add_u32 s%d, s%d, %d' % (g.s_tmp, g.s_tmp, lds_red))
    for L in range(4):
        k('v_add_u32 v%d, s%d, v%d' % (t + L, g.s_tmp, t + L))
    k('s_lshl_b32 s%d, s3, 12' % g.s_tmp)
    k('s_add_u32 s%d, s%d, %d' % (g.s_tmp, g.s_tmp, lds_red))
    k('v_add_u32 v%d, s%d, v4' % (t + 4, g.s_tmp))
    k('v_add_u32 v%d, %d, v%d' % (t + 6, 2 * stride, t + 4))
    k('v_mul_u32_u24 v%d, 896, v3' % (t + 5))
    k('v_lshl_add_u32 v%d, v2, 3, v%d' % (t + 5, t + 5))
    k('s_lshl_b32 s%d, s%d, 2' % (g.s_tmp, g.s_st))
    k('s_add_u32 s%d, s%d, s3' % (g.s_tmp, g.s_tmp))
    k('s_mul_i32 s%d, s%d, %d' % (g.s_tmp, g.s_tmp, 16 * 896))
    k('s_lshl_b32 s%d, s%d, 7' % (g.s_t2, g.s_dtD))
    k('s_add_u32 s%d, s%d, s%d' % (g.s_tmp, g.s_tmp, g.s_t2))
    k('s_add_u32 s%d, s%d, %d' % (g.s_t2, g.s_tmp, 8 * 896))


def D_epi_writes(k):
    g = G
    t = g.T
    return {L: [lambda L=L, q=q, r=r: k('ds_write2st64_b32 v%d, v%d, v%d offset0:%d offset1:%d' % (
        t + L, g.ACC + 16 * L + 4 * q + r, g.ACC + 16 * L + 4 * q + r + 1, 8 * q + r, 8 * q + r + 1))
        for q in range(4) for r in (0, 2)] for L in range(4)}


def D_epilogue2(k, stride):
    g = G
    t = g.T
    k.wait_lg(0)
    k.barrier()
    R = g.ACC
    for i in range(4):
        for w in range(4):
            k('ds_read_b128 %s, v%d offset:%d' % (vr(R + 16 * i + 4 * w, 4), t + 4 if w < 2 else t + 6, (w & 1) * stride + i * 1024))
    for i in range(4):
        r = R + 16 * i
        for j in (0, 2):
            k('v_pk_add_f32 %s, %s, %s' % (vr(r + j, 2), vr(r + j, 2), vr(r + 4 + j, 2)))
            k('v_pk_add_f32 %s, %s, %s' % (vr(r + 8 + j, 2), vr(r + 8 + j, 2), vr(r + 12 + j, 2)))
        for j in (0, 2):
            k('v_pk_add_f32 %s, %s, %s' % (vr(r + j, 2), vr(r + j, 2), vr(r + 8 + j, 2)))
        k('v_cvt_pk_bf16_f32 v%d, v%d, v%d' % (r + 4, r, r + 1))
        k('v_cvt_pk_bf16_f32 v%d, v%d, v%d' % (r + 5, r + 2, r + 3))
        k('buffer_store_dwordx2 %s, v%d, %s, s%d offen offset:%d' % (vr(r + 4, 2), t + 5, srd(SRD_OUT), g.s_t2 if i >= 2 else g.s_tmp, (i % 2) * 4 * 896))
```
